```python
import torch

def _softmax(x, axis=-1):
    return torch.softmax(x, dim=axis)
def _gelu(x):
    return torch.nn.functional.gelu(x, approximate="tanh")
def _silu(x):
    return torch.nn.functional.silu(x)
def _sigmoid(x):
    return torch.sigmoid(x)
def _layernorm(x, axis=-1, eps=1e-5):
    m = x.mean(dim=axis, keepdim=True)
    v = x.var(dim=axis, keepdim=True, unbiased=False)
    return (x - m) / torch.sqrt(v + eps)
def _scatter_add(tgt, idx, src, axis=0):
    return tgt.clone().index_add_(axis, idx, src)
def _segment_sum(src, seg, n):
    out = torch.zeros((n,) + src.shape[1:], dtype=src.dtype)
    return out.index_add_(0, seg, src)
def _pad(x, pw):
    flat = tuple(v for pair in reversed(pw) for v in pair)
    return torch.nn.functional.pad(x, flat)

kernel_name = 'recurrent_scan__sliding_local_dilated__swiglu_ffn__prompt'

def setup_inputs():

    _w = (lambda a: (lambda t: t.to(torch.bfloat16) if t.is_floating_point() else t)(torch.as_tensor(a)))
    def _A_setup():
        B, S, D = 1, 2048, 1024
        return {
            "x": _w((lambda *s: torch.randn(*s, dtype=torch.bfloat16) * 0.05)(B, S, D)),
            "wqkv": _w((lambda *s: torch.randn(*s, dtype=torch.bfloat16) * 0.05)(D, 3 * D)),
            "wo": _w((lambda *s: torch.randn(*s, dtype=torch.bfloat16) * 0.05)(D, D)),
        }
    _A_in = _A_setup()

    def _B_setup():
        B, S, D, F = 1, 2048, 1024, 3584
        return {
            "x": _w((lambda *s: torch.randn(*s, dtype=torch.bfloat16) * 0.05)(B, S, D)),
            "w_gate": _w((lambda *s: torch.randn(*s, dtype=torch.bfloat16) * 0.05)(D, F)),
            "w_up": _w((lambda *s: torch.randn(*s, dtype=torch.bfloat16) * 0.05)(D, F)),
            "w_down": _w((lambda *s: torch.randn(*s, dtype=torch.bfloat16) * 0.05)(F, D)),
        }
    _B_in = _B_setup()

    return {
        "A_x": _A_in["x"],
        "A_wqkv": _A_in["wqkv"],
        "A_wo": _A_in["wo"],
        "B_x": _B_in["x"],
        "B_w_gate": _B_in["w_gate"],
        "B_w_up": _B_in["w_up"],
        "B_w_down": _B_in["w_down"],
    }

def reference(A_x, A_wqkv, A_wo, B_x, B_w_gate, B_w_up, B_w_down):
    def _A_ref(x, wqkv, wo):
        B, S, D = x.shape
        H = 32; Dh = D // H
        W, dil = 8, 2
        qkv = (lambda x, *d: x.permute(*d))((x @ wqkv).reshape(B, S, 3, H, Dh), 2, 0, 3, 1, 4)
        q, k, v = qkv[0], qkv[1], qkv[2]
        scale = Dh ** -0.5
        pos = torch.arange(S)
        off = torch.arange(W) * dil
        idx = pos[:, None] - off[None, :]
        mask = idx >= 0
        idx_c = torch.where(mask, idx, 0).reshape(-1)
        kg = k[:, :, idx_c, :].reshape(B, H, S, W, Dh)
        vg = v[:, :, idx_c, :].reshape(B, H, S, W, Dh)
        logits = torch.einsum("bhsd,bhswd->bhsw", q, kg) * scale
        logits = torch.where(mask[None, None, :, :], logits, -1e9)
        attn = _softmax(logits, axis=-1)
        o = torch.einsum("bhsw,bhswd->bhsd", attn, vg)
        return (lambda x, *d: x.permute(*d))(o, 0, 2, 1, 3).reshape(B, S, D) @ wo

    def _B_ref(x, w_gate, w_up, w_down):
        g = _silu(x @ w_gate)
        u = x @ w_up
        return (g * u) @ w_down

    x = A_x
    xn = _layernorm(x, axis=-1)
    s = _A_ref(xn, A_wqkv, A_wo)
    g = _silu(_B_ref(xn, B_w_gate, B_w_up, B_w_down))
    return x + s * g
```

```python
class Asm:
    def __init__(self):
        self.lines = []
        self.lab = 0
    def __call__(self, s=""):
        for l in s.split("\n"):
            self.lines.append("    " + l.strip() if l.strip() and not l.strip().endswith(":") else l.strip())
    def raw(self, s):
        self.lines.append(s)
    def label(self, name):
        self.lines.append(name + ":")
    def newlabel(self, p="L"):
        self.lab += 1
        return "%s_%d" % (p, self.lab)
    def text(self):
        return "\n".join(self.lines) + "\n"

def kernel_header(a, name):
    a.raw(".text")
    a.raw(".globl %s" % name)
    a.raw(".p2align 8")
    a.raw(".type %s,@function" % name)
    a.raw("%s:" % name)

def kernel_desc(a, name, vgpr, sgpr=102, accum=None):
    if accum is None:
        accum = min(256, (vgpr + 3) // 4 * 4)
    a.raw('.section .rodata,"a"')
    a.raw(".p2align 6")
    a.raw(".amdhsa_kernel %s" % name)
    a.raw("  .amdhsa_next_free_vgpr %d" % vgpr)
    a.raw("  .amdhsa_next_free_sgpr %d" % sgpr)
    a.raw("  .amdhsa_accum_offset %d" % accum)
    a.raw("  .amdhsa_group_segment_fixed_size 0")
    a.raw("  .amdhsa_kernarg_size 80")
    a.raw("  .amdhsa_user_sgpr_count 2")
    a.raw("  .amdhsa_user_sgpr_kernarg_segment_ptr 1")
    a.raw("  .amdhsa_system_sgpr_workgroup_id_x 1")
    a.raw("  .amdhsa_float_denorm_mode_32 3")
    a.raw(".end_amdhsa_kernel")

def vr(b, n):
    return "v[%d:%d]" % (b, b + n - 1) if n > 1 else "v%d" % b
def sr(b, n):
    return "s[%d:%d]" % (b, b + n - 1) if n > 1 else "s%d" % b
```

```python
import sys
sys.path.insert(0, "dev")
from asmlib import *

XN_OFF = 0
XN_BYTES = 2048 * 1024 * 2
ACT_OFF = 4 << 20
NF = 144
ACT_MT = NF * 8192
ACT_BYTES = 16 * ACT_MT
PART_OFF = 24 << 20
PART_BYTES = 24 << 20
FLAG_OFF = 48 << 20
FLAG_BYTES = 1 << 20
STAMP_OFF = 200 << 20

def ar(b, n):
    return "a[%d:%d]" % (b, b + n - 1) if n > 1 else "a%d" % b

def srd(a, d, base, off, nbytes):
    if off:
        a("s_add_u32 s%d, s%d, 0x%x" % (d, base, off))
        a("s_addc_u32 s%d, s%d, 0" % (d + 1, base + 1))
    else:
        a("s_mov_b32 s%d, s%d" % (d, base))
        a("s_mov_b32 s%d, s%d" % (d + 1, base + 1))
    a("s_mov_b32 s%d, 0x%x" % (d + 2, nbytes))
    a("s_mov_b32 s%d, 0x20000" % (d + 3))

class Stamps:
    def __init__(self, a, on, sbase, kidx, wsreg):
        self.a, self.on, self.sb, self.k, self.n, self.ws = a, on, sbase, kidx, 0, wsreg
    def stamp(self):
        if not self.on: return
        a = self.a
        a("%s s[%d:%d]" % ("s_memtime" if self.on == 2 else "s_memrealtime", self.sb + 2 * self.n, self.sb + 2 * self.n + 1))
        self.n += 1
    def dump(self, vtmp, stmp, lanev):
        if not self.on: return
        a = self.a
        a("s_waitcnt lgkmcnt(0)")
        srd(a, stmp, self.ws, STAMP_OFF + self.k * 65536, 65536)
        a("s_lshl_b32 s3, s2, 6")
        a("v_mov_b32 v%d, s3" % vtmp)
        a("v_cmp_eq_u32 vcc, 0, v%d" % lanev)
        a("s_and_b64 exec, exec, vcc")
        lab = a.newlabel("L_nostamp%d" % self.k)
        a("s_cbranch_execz %s" % lab)
        for i in range(self.n):
            a("v_mov_b32 v%d, s%d" % (vtmp + 1, self.sb + 2 * i))
            a("buffer_store_dword v%d, v%d, s[%d:%d], 0 offen offset:%d" % (vtmp + 1, vtmp, stmp, stmp + 3, 4 * i))
            a("s_nop 1")
        a.label(lab)

def desc(a, name, vgpr, sgpr, accum):
    a.raw('.section .rodata,"a"')
    a.raw(".p2align 6")
    a.raw(".amdhsa_kernel %s" % name)
    a.raw("  .amdhsa_next_free_vgpr %d" % vgpr)
    a.raw("  .amdhsa_next_free_sgpr %d" % sgpr)
    a.raw("  .amdhsa_accum_offset %d" % accum)
    a.raw("  .amdhsa_group_segment_fixed_size 0")
    a.raw("  .amdhsa_kernarg_size 80")
    a.raw("  .amdhsa_user_sgpr_count 2")
    a.raw("  .amdhsa_user_sgpr_kernarg_segment_ptr 1")
    a.raw("  .amdhsa_system_sgpr_workgroup_id_x 1")
    a.raw(".end_amdhsa_kernel")

def weave(a, mfmas, fillers):
    for s in fillers.get(-1, []): a(s)
    for i, m in enumerate(mfmas):
        a(m)
        for s in fillers.get(i, []): a(s)
```

```python
from gen_common import *

SLOT = 40960
GATE, UP, QKV = 0, 14336, 28672
EX = 3 * SLOT
G1_LDS = EX + 5 * 2048

class Lgkm:
    def __init__(self, init=()):
        self.q = list(init)
    def issue(self, tag): self.q.append(tag)
    def need(self, tag):
        if tag not in self.q: return None
        last = max(i for i, t in enumerate(self.q) if t == tag)
        n = len(self.q) - 1 - last
        self.q = self.q[last + 1:]
        n = min(n, 15)
        return "s_waitcnt lgkmcnt(%d)" % n
    def clear(self): self.q = []

def gen_g1(a, name, P):
    st = Stamps(a, P.get("prof"), 70, 1, 6)
    WNT = " nt" if P.get("g1_wnt", 0) else ""
    XNT = " nt" if P.get("g1_xnt", 0) else ""
    HST = P.get("g1_store_flags", "")
    ROT = P.get("g1_rot", 1)
    accGU = lambda p, gu, m: 32 + ((p * 2 + gu) * 4 + m) * 4
    accQ = lambda s, m: (s * 4 + m) * 4
    HACC = 96
    XB = lambda buf, m, kh: 100 + buf * 40 + (m * 2 + kh) * 4
    WR = lambda slot, kh: 180 + slot * 8 + kh * 4
    HW = lambda kh: 212 + kh * 4
    NAGPR = 220

    kernel_header(a, name)
    a("s_cmp_ge_u32 s2, 256")
    a("s_cbranch_scc1 %s_end" % name)
    st.stamp()
    a("s_load_dwordx2 s[48:49], s[0:1], 8")
    a("s_load_dwordx4 s[52:55], s[0:1], 32")
    a("s_load_dwordx2 s[6:7], s[0:1], 72")
    a("v_lshrrev_b32 v16, 6, v0")
    a("v_and_b32 v17, 63, v0")
    a("v_readfirstlane_b32 s32, v16")
    a("s_and_b32 s34, s2, 7")
    a("s_lshl_b32 s34, s34, 2")
    a("s_bfe_u32 s3, s2, 0x20003")
    a("s_add_u32 s34, s34, s3")
    a("s_lshr_b32 s33, s2, 5")
    if ROT:
        a("s_lshl_b32 s35, s3, 1")
        a("s_add_u32 s35, s35, s33")
        a("s_and_b32 s35, s35, 7")
    else:
        a("s_mov_b32 s35, 0")
    a("v_lshlrev_b32 v15, 4, v17")
    a("v_lshrrev_b32 v18, 2, v17")
    a("v_and_b32 v19, 3, v17")
    a("v_lshlrev_b32 v19, 3, v19")
    a("s_movk_i32 s3, 224")
    a("v_mad_u32_u24 v1, v18, s3, v19")
    a("s_movk_i32 s3, 192")
    a("v_mad_u32_u24 v2, v18, s3, v19")
    a("v_add_u32 v2, %d, v2" % QKV)
    a("v_and_b32 v19, 16, v17")
    a("v_lshlrev_b32 v19, 1, v19")
    a("v_xor_b32 v20, 32, v19")
    a("v_add_u32 v3, v2, v20")
    a("v_add_u32 v2, v2, v19")
    a("s_and_b32 s3, s32, 1")
    a("s_cmp_eq_u32 s3, 1")
    a("s_cselect_b64 vcc, -1, 0")
    a("v_cndmask_b32 v4, v2, v3, vcc")
    a("s_lshr_b32 s3, s32, 1")
    a("s_lshl_b32 s3, s3, 6")
    a("s_add_u32 s3, s3, 64")
    a("v_add_u32 v4, s3, v4")
    def krow(dst, rho, t1, t2):
        a("v_and_b32 v%d, 35, v%d" % (dst, rho))
        a("v_bfe_u32 v%d, v%d, 2, 2" % (t1, rho))
        a("v_lshl_or_b32 v%d, v%d, 3, v%d" % (dst, t1, dst))
        a("v_bfe_u32 v%d, v%d, 4, 1" % (t1, rho))
        a("v_lshl_or_b32 v%d, v%d, 2, v%d" % (dst, t1, dst))
    a("s_mul_i32 s56, s32, 192")
    a("s_and_b32 s57, s34, 1")
    a("s_lshl_b32 s57, s57, 1")
    a("s_mul_i32 s58, s34, 224")
    a("s_lshl_b32 s59, s34, 6")
    a("s_movk_i32 s60, 4682")
    a("s_movk_i32 s61, 5462")
    a("s_movk_i32 s62, 7168")
    a("s_movk_i32 s63, 6144")
    def gu_off(dst, nreg, imm):
        a("v_mul_u32_u24 v21, s60, v%d" % nreg)
        a("v_lshrrev_b32 v21, 16, v21")
        a("v_mul_u32_u24 v22, 14, v21")
        a("v_sub_u32 v22, v%d, v22" % nreg)
        a("v_add_u32 v22, s57, v22")
        a("v_subrev_u32 v23, 14, v22")
        a("v_min_u32 v22, v22, v23")
        krow(24, 21, 23, 0)
        a("v_lshlrev_b32 v22, 4, v22")
        a("v_mad_u32_u24 v%d, v24, s62, v22" % dst)
        a("s_sub_u32 s3, s58, %d" % imm)
        a("v_add_u32 v%d, s3, v%d" % (dst, dst))
    def qkv_off(dst, nreg, imm):
        a("v_mul_u32_u24 v21, s61, v%d" % nreg)
        a("v_lshrrev_b32 v21, 16, v21")
        a("v_mul_u32_u24 v22, 12, v21")
        a("v_sub_u32 v22, v%d, v22" % nreg)
        a("v_lshrrev_b32 v23, 1, v21")
        a("v_and_b32 v23, 2, v23")
        a("v_xor_b32 v22, v22, v23")
        a("v_lshrrev_b32 v25, 2, v22")
        a("v_and_b32 v22, 3, v22")
        a("v_lshlrev_b32 v22, 4, v22")
        a("v_lshl_add_u32 v22, v25, 11, v22")
        krow(24, 21, 23, 0)
        a("v_mad_u32_u24 v%d, v24, s63, v22" % dst)
        a("s_sub_u32 s3, s59, %d" % imm)
        a("v_add_u32 v%d, s3, v%d" % (dst, dst))
    for q in range(3):
        a("s_add_u32 s3, s56, %d" % (64 * q))
        a("v_add_u32 v20, s3, v17")
        gu_off(8 + q, 20, 1024 * q)
        qkv_off(11 + q, 20, 1024 * q)
    a("s_and_b32 s3, s32, 1")
    a("s_lshl_b32 s3, s3, 6")
    a("s_add_u32 s3, s3, 768")
    a("v_add_u32 v20, s3, v17")
    gu_off(14, 20, 0)
    a("s_mul_i32 s43, s32, 3072")
    a("s_add_u32 s44, s43, %d" % UP)
    a("s_add_u32 s45, s43, %d" % QKV)
    a("s_lshr_b32 s46, s32, 1")
    a("s_mul_i32 s46, s46, %d" % UP)
    a("s_and_b32 s3, s32, 1")
    a("s_lshl_b32 s3, s3, 10")
    a("s_add_u32 s46, s46, s3")
    a("s_add_u32 s46, s46, 12288")
    a("s_lshl_b32 s64, s33, 19")
    a("s_lshl_b32 s3, s32, 13")
    a("s_add_u32 s64, s64, s3")
    a("s_max_u32 s65, s33, 1")
    a("s_sub_u32 s65, s65, 1")
    a("s_lshl_b32 s65, s65, 19")
    a("s_add_u32 s65, s65, %d" % (3 * 8192 + 3 * 2048))
    a("s_mov_b32 s66, %d" % SLOT)
    a("s_mov_b32 s67, %d" % ((-2 * SLOT) & 0xffffffff))
    a("s_waitcnt lgkmcnt(0)")
    srd(a, 8, 52, 0, 1024 * 7168)
    srd(a, 12, 54, 0, 1024 * 7168)
    srd(a, 16, 48, 0, 1024 * 6144)
    a("s_cmp_lt_u32 s32, 2")
    a("s_cselect_b32 s20, s52, s54")
    a("s_cselect_b32 s21, s53, s55")
    a("s_mov_b32 s22, %d" % (1024 * 7168))
    a("s_mov_b32 s23, 0x20000")
    srd(a, 24, 6, XN_OFF, 0)
    a("s_add_u32 s26, s33, 1")
    a("s_lshl_b32 s26, s26, 19")
    srd(a, 28, 6, ACT_OFF, ACT_BYTES)

    def tau_ops():
        return ["s_add_u32 s3, s36, s35", "s_and_b32 s3, s3, 7", "s_andn2_b32 s47, s36, 7", "s_or_b32 s47, s47, s3",
                "s_mul_i32 s38, s47, 458752", "s_mul_i32 s39, s47, 393216"]
    def xoff_ops():
        return ["s_lshl_b32 s40, s47, 15", "s_add_u32 s42, s40, s65", "s_add_u32 s40, s40, s64", "s_add_u32 s41, s40, 4096"]
    def wdma_ops():
        o = []
        for (mreg, sd, vb, so) in ((43, 8, 8, 38), (44, 12, 8, 38), (45, 16, 11, 39)):
            o.append("s_add_u32 m0, s37, s%d" % mreg)
            for q in range(3):
                o.append("buffer_load_dwordx4 v%d, s[%d:%d], s%d offen offset:%d%s lds" % (vb + q, sd, sd + 3, so, 1024 * q, WNT))
        o.append("s_add_u32 m0, s37, s46")
        o.append("buffer_load_dwordx4 v14, s[20:23], s38 offen%s lds" % WNT)
        return o
    def xld_ops(buf):
        o = []
        for f in range(8):
            o.append("buffer_load_dwordx4 %s, v15, s[24:27], s%d offen offset:%d%s" % (ar(XB(buf, f // 2, f % 2), 4), 40 + f // 4, 1024 * (f % 4), XNT))
        for kh in range(2):
            o.append("buffer_load_dwordx4 %s, v15, s[24:27], s42 offen offset:%d%s" % (ar(XB(buf, 4, kh), 4), 1024 * kh, XNT))
        return o
    def emit_seq(ops):
        prev = ""
        for o in ops:
            if o.endswith("lds") and prev.startswith("s_add_u32 m0"): a("s_nop 0")
            a(o); prev = o

    a("s_mov_b32 s36, 0"); a("s_mov_b32 s37, 0")
    emit_seq(tau_ops() + wdma_ops() + xoff_ops() + xld_ops(0))
    a("s_mov_b32 s36, 1"); a("s_mov_b32 s37, %d" % SLOT)
    emit_seq(tau_ops() + wdma_ops())
    for r in range(32, 256): a("v_mov_b32 v%d, 0" % r)
    for r in range(100): a("v_accvgpr_write_b32 a%d, 0" % r)

    blocks = []
    for p in range(7): blocks += [("gu", p, 0), ("gu", p, 1)]
    blocks += [("q", s) for s in range(6)]
    def wreads(b, dst):
        o = []
        for kh in range(2):
            for s2 in range(2):
                if b[0] == "gu":
                    o.append("ds_read_b64_tr_b16 %s, v1 offset:%d" % (ar(dst(kh) + 2 * s2, 2), b[2] * UP + (32 * kh + 16 * s2) * 224 + 32 * b[1]))
                elif b[0] == "q":
                    o.append("ds_read_b64_tr_b16 %s, v%d offset:%d" % (ar(dst(kh) + 2 * s2, 2), 2 + b[1] % 2, (32 * kh + 16 * s2) * 192 + 64 * (b[1] // 2)))
                else:
                    o.append("ds_read_b64_tr_b16 %s, v4 offset:%d" % (ar(dst(kh) + 2 * s2, 2), (32 * kh + 16 * s2) * 192))
        return o
    def mfmas(bi, buf):
        b = blocks[bi]
        o = []
        for m in range(4):
            for kh in range(2):
                w, x = ar(WR(bi % 4, kh), 4), ar(XB(buf, m, kh), 4)
                if b[0] == "gu": c = vr(accGU(b[1], b[2], m), 4)
                else: c = ar(accQ(b[1], m), 4)
                if b[0] == "q" and b[1] >= 4: w, x = x, w
                o.append("v_mfma_f32_16x16x32_bf16 %s, %s, %s, %s" % (c, w, x, c))
        return o

    a("s_waitcnt vmcnt(10)")
    a("s_barrier")
    st.stamp()
    for bi in range(3):
        for o in wreads(blocks[bi], lambda kh: WR(bi % 4, kh)): a(o)

    HRB, HMB = 9, 13
    def step(buf, last):
        lg = Lgkm([0] * 4 + [1] * 4 + [2] * 4)
        misc = xoff_ops() + xld_ops(buf ^ 1)
        misc += ["s_add_u32 s36, s36, 1"] + tau_ops()
        misc += ["s_add_u32 s37, s37, s66", "s_cmp_eq_u32 s37, %d" % (3 * SLOT), "s_cselect_b32 s37, 0, s37",
                 "s_cmp_eq_u32 s37, s66", "s_cselect_b32 s68, s67, s66"]
        misc += wdma_ops()
        slots = [(bi, g) for bi in range(17) for g in (1, 3, 5, 7) if bi != HRB]
        place = {}
        n = len(misc)
        for k, o in enumerate(misc):
            place.setdefault(slots[k * len(slots) // n], []).append(o)
        for bi in range(20):
            mf = mfmas(bi, buf)
            fill = {}
            w = lg.need(bi)
            if w: fill[-1] = [w]
            rd = []
            if bi <= 16: rd = [(bi + 3, o) for o in wreads(blocks[bi + 3], lambda kh: WR((bi + 3) % 4, kh))]; gaps = [0, 2, 4, 6]
            elif bi == 18:
                rd = [(100, o) for o in wreads(blocks[0], lambda kh: WR(0, kh))] + [(101, o) for o in wreads(blocks[1], lambda kh: WR(1, kh))]
                gaps = list(range(8))
            elif bi == 19: rd = [(102, o) for o in wreads(blocks[2], lambda kh: WR(2, kh))]; gaps = [0, 2, 4, 6]
            if bi == HRB:
                hr = [("H", o) for o in wreads(("h",), HW)]
                rd = [x for pr in zip(rd, hr) for x in pr]; gaps = list(range(8))
            for (tag, o), g in zip(rd, gaps if rd else []):
                fill.setdefault(g, []).append(o); lg.issue(tag)
            for g in (1, 3, 5, 7):
                for o in place.get((bi, g), []): fill.setdefault(g, []).append(o)
            if bi == HMB:
                w = lg.need("H")
                assert w is None, w
                for kh in range(2):
                    mf.append("v_mfma_f32_16x16x32_bf16 %s, %s, %s, %s" % (ar(HACC, 4), ar(HW(kh), 4), ar(XB(buf, 4, kh), 4), ar(HACC, 4)))
            if bi == 17:
                for k, r in enumerate((1, 2, 3, 4)):
                    fill.setdefault(k + 1, []).append("v_add_u32 v%d, s68, v%d" % (r, r))
                fill.setdefault(7, []).extend(["s_waitcnt vmcnt(10) lgkmcnt(0)", "s_barrier"])
                lg.clear()
            if bi == 19 and last:
                fill.setdefault(5, []).append("s_cmp_lt_u32 s36, 17")
                fill.setdefault(7, []).append("s_cbranch_scc1 %s_loop" % name)
            weave(a, mf, fill)
    a(".p2align 6")
    a.label(name + "_loop")
    step(0, False)
    step(1, True)
    st.stamp()

    a("s_waitcnt lgkmcnt(0)")
    a("s_nop 7")
    a("s_mov_b32 s50, 0xbfb8aa3b"); a("s_mov_b32 s51, 0xbfb8aa3b")
    a("s_mov_b32 s52, 1.0"); a("s_mov_b32 s53, 1.0")
    a("s_mov_b32 s54, 0xffff0000")
    def cvt_acc(dst, src, t):
        for r in range(4): a("v_accvgpr_read_b32 v%d, a%d" % (t + r, src + r))
        a("v_cvt_pk_bf16_f32 v%d, v%d, v%d" % (dst, t, t + 1))
        a("v_cvt_pk_bf16_f32 v%d, v%d, v%d" % (dst + 1, t + 2, t + 3))
    cvt_acc(16, accQ(2, 3), 24); cvt_acc(18, accQ(3, 3), 28)
    cvt_acc(20, accQ(4, 3), 24); cvt_acc(22, accQ(5, 3), 28)
    a("s_lshl_b32 s3, s32, 11")
    a("s_add_u32 s3, s3, %d" % EX)
    a("v_add_u32 v5, s3, v15")
    a("ds_write_b128 v5, v[16:19] offset:2048")
    a("ds_write_b128 v5, v[20:23] offset:3072")
    cvt_acc(6, HACC, 24)
    a("v_and_b32 v12, 63, v0")
    a("s_and_b32 s3, s32, 1")
    a("s_lshl_b32 s3, s3, 3")
    a("s_add_u32 s3, s3, %d" % EX)
    a("s_cmp_ge_u32 s32, 2")
    a("s_cbranch_scc1 %s_hv" % name)
    a("v_add_u32 v8, s3, v15")
    a("ds_write_b64 v8, v[6:7]")
    a("s_branch %s_hd" % name)
    a.label(name + "_hv")
    a("v_bfe_u32 v8, v12, 2, 2")
    a("v_lshlrev_b32 v8, 8, v8")
    a("v_lshrrev_b32 v9, 4, v12")
    a("v_lshl_add_u32 v8, v9, 6, v8")
    a("v_and_b32 v9, 3, v12")
    a("v_lshl_add_u32 v8, v9, 1, v8")
    a("v_add_u32 v8, s3, v8")
    a("ds_write_b16 v8, v6 offset:1024")
    a("ds_write_b16_d16_hi v8, v6 offset:1040")
    a("ds_write_b16 v8, v7 offset:1056")
    a("ds_write_b16_d16_hi v8, v7 offset:1072")
    a.label(name + "_hd")
    a("s_lshl_b32 s56, s33, 1")
    a("s_lshr_b32 s3, s32, 1")
    a("s_add_u32 s56, s56, s3")
    a("s_mul_i32 s56, s56, %d" % ACT_MT)
    a("s_and_b32 s3, s32, 1")
    a("s_lshl_b32 s3, s3, 12")
    a("s_add_u32 s56, s56, s3")
    a("s_mul_i32 s57, s34, 7")
    a("s_add_u32 s57, s57, 1")
    a("s_lshr_b32 s57, s57, 1")
    a("s_lshl_b32 s57, s57, 13")
    a("s_add_u32 s57, s57, s56")
    a("s_lshr_b32 s58, s34, 1")
    a("s_mul_i32 s58, s58, 7")
    a("s_add_u32 s58, s58, 3")
    a("s_lshl_b32 s58, s58, 13")
    a("s_add_u32 s58, s58, s56")
    a("s_and_b32 s3, s34, 1")
    a("s_lshl_b32 s3, s3, 3")
    a("s_add_u32 s58, s58, s3")
    a("s_add_u32 s59, s34, 112")
    a("s_lshl_b32 s59, s59, 13")
    a("s_add_u32 s59, s59, s56")

    def swiglu(items):
        for (G, U, T, D) in items:
            for h in (0, 2): a("v_pk_mul_f32 %s, %s, s[50:51]" % (vr(T + h, 2), vr(G + h, 2)))
        for (G, U, T, D) in items:
            for r in range(4): a("v_exp_f32 v%d, v%d" % (T + r, T + r))
            for h in (0, 2): a("v_pk_mul_f32 %s, %s, %s" % (vr(U + h, 2), vr(G + h, 2), vr(U + h, 2)))
        for (G, U, T, D) in items:
            for h in (0, 2): a("v_pk_add_f32 %s, %s, s[52:53]" % (vr(T + h, 2), vr(T + h, 2)))
        for (G, U, T, D) in items:
            for r in range(4): a("v_rcp_f32 v%d, v%d" % (T + r, T + r))
        a("s_nop 0")
        for (G, U, T, D) in items:
            for h in (0, 2): a("v_pk_mul_f32 %s, %s, %s" % (vr(U + h, 2), vr(U + h, 2), vr(T + h, 2)))
        for (G, U, T, D) in items:
            a("v_cvt_pk_bf16_f32 v%d, v%d, v%d" % (D, U, U + 1))
            a("v_cvt_pk_bf16_f32 v%d, v%d, v%d" % (D + 1, U + 2, U + 3))
    for pp in range(3):
        for m in range(4):
            g0 = accGU(2 * pp, 0, m)
            swiglu([(g0, accGU(2 * pp, 1, m), 16, g0), (accGU(2 * pp + 1, 0, m), accGU(2 * pp + 1, 1, m), 20, g0 + 2)])
            a("buffer_store_dwordx4 %s, v15, s[28:31], s57 offen offset:%d %s" % (vr(g0, 4), 1024 * m, HST))
        if pp < 2: a("s_add_u32 s57, s57, 8192")
    for m in (0, 2):
        swiglu([(accGU(6, 0, m + d), accGU(6, 1, m + d), 16 + 4 * d, accGU(6, 0, m + d)) for d in (0, 1)])
        for d in (0, 1):
            a("buffer_store_dwordx2 %s, v15, s[28:31], s58 offen offset:%d %s" % (vr(accGU(6, 0, m + d), 2), 1024 * (m + d), HST))
    st.stamp()
    R0 = accGU(0, 1, 0)
    R1 = accGU(2, 1, 0)
    R2 = accGU(4, 1, 0)
    Qf = lambda m: R0 + 4 * m
    Kf = lambda m: R0 + 16 + 4 * (m + 1)
    VV = lambda f, m: R1 + 10 * f + 2 * (m + 1)
    Pf = lambda m: R1 + 20 + 4 * m
    Sp = lambda m: R2 + 8 * m
    Sc = lambda m: R2 + 8 * m + 4
    TT = lambda m: R2 + 32 + 4 * m
    a("s_waitcnt lgkmcnt(0)")
    a("s_barrier")
    a("ds_read_b128 %s, v5" % vr(Kf(-1), 4))
    a("ds_read_b64 %s, v5 offset:1024" % vr(VV(0, -1), 2))
    a("ds_read_b64 %s, v5 offset:1032" % vr(VV(1, -1), 2))
    for m in range(4):
        cvt_acc(Qf(m), accQ(0, m), 16); cvt_acc(Qf(m) + 2, accQ(1, m), 20)
        cvt_acc(Kf(m), accQ(2, m), 24); cvt_acc(Kf(m) + 2, accQ(3, m), 28)
    a("s_waitcnt lgkmcnt(0)")
    a("s_nop 1")
    for m in range(4):
        a("v_mfma_f32_16x16x32_bf16 %s, %s, %s, 0" % (vr(Sp(m), 4), vr(Kf(m - 1), 4), vr(Qf(m), 4)))
        a("v_mfma_f32_16x16x32_bf16 %s, %s, %s, 0" % (vr(Sc(m), 4), vr(Kf(m), 4), vr(Qf(m), 4)))
    for m in range(4):
        cvt_acc(VV(0, m), accQ(4, m), 16); cvt_acc(VV(1, m), accQ(5, m), 20)
    a("v_and_b32 v17, 63, v0")
    a("v_and_b32 v8, 15, v17")
    a("v_and_b32 v9, 1, v17")
    a("v_lshrrev_b32 v10, 4, v17")
    a("v_lshl_add_u32 v10, v10, 2, v9")
    a("v_cmp_le_u32 s[60:61], v10, v8")
    a("v_add_u32 v10, 2, v10")
    a("v_cmp_le_u32 s[62:63], v10, v8")
    a("v_cmp_ne_u32 s[64:65], 0, v9")
    a("v_lshlrev_b32 v9, 4, v9")
    a("s_or_b32 s3, s33, s32")
    a("s_cmp_eq_u32 s3, 0")
    a("s_cselect_b64 s[66:67], -1, 0")
    a("s_andn2_b64 s[68:69], s[66:67], s[62:63]")
    a("s_andn2_b64 s[66:67], s[66:67], s[60:61]")
    a("v_mov_b32 v11, 0xce6e6b28")
    a("s_mov_b32 s55, 0x3e3504f3")
    a("s_mov_b32 s48, 0x3fb8aa3b")
    M4 = range(4)
    for m in M4:
        a("v_cndmask_b32 v%d, v%d, v%d, s[64:65]" % (Sp(m), Sp(m), Sp(m) + 1))
        a("v_cndmask_b32 v%d, v%d, v%d, s[64:65]" % (Sp(m) + 2, Sp(m) + 2, Sp(m) + 3))
        a("v_cndmask_b32 v%d, v%d, v%d, s[64:65]" % (Sc(m), Sc(m), Sc(m) + 1))
        a("v_cndmask_b32 v%d, v%d, v%d, s[64:65]" % (Sc(m) + 2, Sc(m) + 2, Sc(m) + 3))
    A = lambda m: TT(m)
    B = lambda m: TT(m) + 1
    X = lambda m: TT(m) + 2
    Y = lambda m: TT(m) + 3
    for m in M4:
        a("v_cndmask_b32 v%d, v%d, v%d, s[60:61]" % (A(m), Sp(m), Sc(m)))
        a("v_cndmask_b32 v%d, v%d, v%d, s[62:63]" % (B(m), Sp(m) + 2, Sc(m) + 2))
    def rnd():
        for m in M4: a("v_cvt_pk_bf16_f32 v%d, v%d, v%d" % (X(m), A(m), B(m)))
        for m in M4:
            a("v_lshlrev_b32 v%d, 16, v%d" % (A(m), X(m)))
            a("v_and_b32 v%d, s54, v%d" % (B(m), X(m)))
    rnd()
    for m in M4:
        a("v_mul_f32 v%d, s55, v%d" % (A(m), A(m)))
        a("v_mul_f32 v%d, s55, v%d" % (B(m), B(m)))
    rnd()
    a("v_cndmask_b32 v%d, v%d, v11, s[66:67]" % (A(0), A(0)))
    a("v_cndmask_b32 v%d, v%d, v11, s[68:69]" % (B(0), B(0)))
    def reduce(op):
        for m in M4: a("%s v%d, v%d, v%d" % (op, X(m), A(m), B(m)))
        for sw in ("v_permlane16_swap_b32", "v_permlane32_swap_b32"):
            for m in M4: a("v_mov_b32 v%d, v%d" % (Y(m), X(m)))
            a("s_nop 1")
            for m in M4: a("%s v%d, v%d" % (sw, X(m), Y(m)))
            a("s_nop 1")
            for m in M4: a("%s v%d, v%d, v%d" % (op, X(m), X(m), Y(m)))
    reduce("v_max_f32")
    for m in M4:
        a("v_sub_f32 v%d, v%d, v%d" % (A(m), A(m), X(m)))
        a("v_sub_f32 v%d, v%d, v%d" % (B(m), B(m), X(m)))
    for m in M4:
        a("v_mul_f32 v%d, s48, v%d" % (A(m), A(m)))
        a("v_mul_f32 v%d, s48, v%d" % (B(m), B(m)))
    for m in M4:
        a("v_exp_f32 v%d, v%d" % (A(m), A(m)))
        a("v_exp_f32 v%d, v%d" % (B(m), B(m)))
    a("s_nop 0")
    reduce("v_add_f32")
    for m in M4: a("v_rcp_f32 v%d, v%d" % (X(m), X(m)))
    a("s_nop 0")
    for m in M4:
        a("v_mul_f32 v%d, v%d, v%d" % (A(m), A(m), X(m)))
        a("v_mul_f32 v%d, v%d, v%d" % (B(m), B(m), X(m)))
    for m in M4: a("v_cvt_pk_bf16_f32 v%d, v%d, v%d" % (X(m), A(m), B(m)))
    for m in M4:
        a("v_and_b32 v%d, 0xffff, v%d" % (A(m), X(m)))
        a("v_lshrrev_b32 v%d, 16, v%d" % (B(m), X(m)))
    for m in M4:
        a("v_lshlrev_b32 v%d, v9, v%d" % (A(m), A(m)))
        a("v_lshlrev_b32 v%d, v9, v%d" % (B(m), B(m)))
    for m in M4:
        a("v_cndmask_b32 v%d, v%d, 0, s[60:61]" % (Pf(m), A(m)))
        a("v_cndmask_b32 v%d, v%d, 0, s[62:63]" % (Pf(m) + 1, B(m)))
        a("v_cndmask_b32 v%d, 0, v%d, s[60:61]" % (Pf(m) + 2, A(m)))
        a("v_cndmask_b32 v%d, 0, v%d, s[62:63]" % (Pf(m) + 3, B(m)))
    a("s_nop 1")
    for m in M4:
        a("v_mfma_f32_16x16x32_bf16 %s, %s, %s, 0" % (vr(Sp(m), 4), vr(VV(0, m - 1), 4), vr(Pf(m), 4)))
        a("v_mfma_f32_16x16x32_bf16 %s, %s, %s, 0" % (vr(Sc(m), 4), vr(VV(1, m - 1), 4), vr(Pf(m), 4)))
    a("s_nop 7")
    for m in M4:
        for h in range(4):
            a("v_cvt_pk_bf16_f32 v%d, v%d, v%d" % (Qf(m) + h, Sp(m) + 2 * h, Sp(m) + 2 * h + 1))
        a("buffer_store_dwordx4 %s, v15, s[28:31], s59 offen offset:%d %s" % (vr(Qf(m), 4), 1024 * m, HST))
    if st.on:
        st.stamp()
        a("s_waitcnt vmcnt(0)")
        st.stamp()
        st.dump(8, 32, 0)
    a.label(name + "_end")
    a("s_endpgm")
    desc(a, name, 256 + NAGPR, 96, 256)
    return (name, 256, 256, G1_LDS)
```

```python
from gen_common import *
from gen_g1 import Lgkm

G2_LDS = 65536

class Vm(Lgkm):
    def need_n(self, tags):
        idx = [i for i, t in enumerate(self.q) if t in tags]
        if not idx: return None
        last = max(idx)
        n = len(self.q) - 1 - last
        self.q = self.q[last + 1:]
        assert n <= 63
        return n

def gen_g2(a, name, P):
    st = Stamps(a, P.get("prof"), 76, 2, 6)
    WNT = " nt" if P.get("g2_wnt", 0) else ""
    XNT = " nt" if P.get("g2_xnt", 0) else ""
    ROT = P.get("g2_rot", 1)
    ND, NO = 28, 8
    accD = lambda m, b: 64 + (b * 2 + m) * 4
    accO = lambda m, b: 128 + (b * 2 + m) * 4
    PART = 160
    XRES = 192
    XB = lambda buf, kq, m: buf * 32 + (kq * 2 + m) * 4
    WR = lambda b, kh: 128 + b * 8 + kh * 4
    NV, NA = 208, 192
    VW, VWO, VX, VDW, VDO = 8, 16, 20, 24, 28

    kernel_header(a, name)
    a("s_cmp_ge_u32 s2, 256")
    a("s_cbranch_scc1 %s_end" % name)
    st.stamp()
    a("s_load_dwordx2 s[48:49], s[0:1], 0")
    a("s_load_dwordx2 s[50:51], s[0:1], 16")
    a("s_load_dwordx4 s[52:55], s[0:1], 48")
    a("s_load_dwordx2 s[6:7], s[0:1], 72")
    a("v_lshrrev_b32 v1, 6, v0")
    a("v_and_b32 v2, 63, v0")
    a("v_readfirstlane_b32 s32, v1")
    a("s_and_b32 s33, s2, 1")
    a("s_bfe_u32 s34, s2, 0x10001")
    a("s_lshl_b32 s34, s34, 3")
    a("s_bfe_u32 s3, s2, 0x30003")
    a("s_add_u32 s34, s34, s3")
    a("s_bfe_u32 s35, s2, 0x10002")
    a("s_lshl_b32 s35, s35, 2")
    a("s_lshr_b32 s3, s2, 6")
    a("s_add_u32 s35, s35, s3")
    a("s_add_u32 s36, s34, s35")
    for u in range(4):
        if ROT:
            a("s_add_u32 s3, s36, %d" % u)
            a("s_and_b32 s3, s3, 3")
        else:
            a("s_mov_b32 s3, %d" % u)
        a("s_lshl_b32 s%d, s3, 17" % (40 + u))
        a("s_lshl_b32 s%d, s3, 14" % (44 + u))
    a("v_lshrrev_b32 v3, 2, v2")
    a("v_and_b32 v4, 3, v2")
    a("v_lshlrev_b32 v4, 3, v4")
    a("v_lshl_add_u32 v5, v3, 8, v4")
    a("v_and_b32 v6, 7, v3")
    for b in range(8):
        a("v_xor_b32 v7, %d, v6" % b)
        a("v_lshl_add_u32 v%d, v7, 5, v5" % (VW + b))
    a("v_lshl_add_u32 v5, v3, 7, v4")
    a("v_bfe_u32 v6, v2, 3, 2")
    for b in range(4):
        a("v_xor_b32 v7, %d, v6" % b)
        a("v_lshl_add_u32 v%d, v7, 5, v5" % (VWO + b))
    a("v_lshlrev_b32 v%d, 4, v2" % VX)
    for q in range(1, 4): a("v_add_u32 v%d, %d, v%d" % (VX + q, 8192 * q, VX))
    a("s_lshl_b32 s56, s33, 2")
    a("s_lshl_b32 s57, s35, 8")
    a("s_lshl_b32 s58, s32, 15")
    a("s_add_u32 s58, s58, s57")
    a("v_lshrrev_b32 v3, 4, v2")
    a("v_bfe_u32 v4, v2, 1, 3")
    a("v_xor_b32 v4, s56, v4")
    a("v_xor_b32 v4, v4, v3")
    a("v_and_b32 v5, 1, v2")
    a("v_lshlrev_b32 v5, 4, v5")
    a("v_lshl_add_u32 v5, v3, 11, v5")
    for q in range(4):
        a("v_xor_b32 v6, %d, v4" % (4 * (q & 1)))
        a("v_lshl_add_u32 v6, v6, 5, v5")
        a("s_add_u32 s3, s58, %d" % (q * 8192 - q * 1024))
        a("v_add_u32 v%d, s3, v6" % (VDW + q))
    a("s_lshl_b32 s58, s32, 16")
    a("s_add_u32 s58, s58, s57")
    a("s_lshl_b32 s3, s33, 7")
    a("s_add_u32 s58, s58, s3")
    a("v_bfe_u32 v4, v2, 1, 2")
    a("v_xor_b32 v4, v4, v3")
    a("v_lshrrev_b32 v6, 3, v2")
    a("v_and_b32 v5, 1, v2")
    a("v_lshlrev_b32 v5, 4, v5")
    a("v_lshl_add_u32 v5, v6, 11, v5")
    a("v_lshl_add_u32 v5, v4, 5, v5")
    for q in range(4):
        a("s_add_u32 s3, s58, %d" % (q * 16384 - q * 1024))
        a("v_add_u32 v%d, s3, v5" % (VDO + q))
    a("s_mul_i32 s60, s33, %d" % (1792 * 2048))
    a("s_mul_i32 s61, s34, %d" % ACT_MT)
    a("s_lshl_b32 s3, s32, 11")
    a("s_add_u32 s61, s61, s3")
    a("s_add_u32 s63, s61, %d" % (112 * 8192))
    a("s_mul_i32 s3, s33, %d" % (56 * 8192))
    a("s_add_u32 s61, s61, s3")
    a("s_lshl_b32 s62, s32, 12")
    a("s_waitcnt lgkmcnt(0)")
    srd(a, 8, 52, 0, 3584 * 2048)
    srd(a, 12, 50, 0, 1024 * 2048)
    srd(a, 16, 6, ACT_OFF, ACT_BYTES)
    srd(a, 20, 6, PART_OFF, PART_BYTES)
    srd(a, 24, 6, FLAG_OFF, FLAG_BYTES)
    srd(a, 28, 48, 0, 2048 * 2048)
    srd(a, 64, 54, 0, 2048 * 2048)

    def wops(sg):
        if sg >= ND + NO: return []
        u = sg % 4
        o = []
        if sg < ND:
            if u == 0 and sg > 0: o.append("s_add_u32 s60, s60, %d" % (4 * 131072))
            o.append("s_add_u32 s38, s60, s%d" % (40 + u))
            sd, vb = 8, VDW
        else:
            if sg == ND: o.append("s_mov_b32 s60, 0")
            elif u == 0: o.append("s_mov_b32 s60, %d" % (4 * 262144))
            o.append("s_lshl1_add_u32 s38, s%d, s60" % (40 + u))
            sd, vb = 12, VDO
        o.append("s_add_u32 m0, s62, %d" % (u * 16384))
        for q in range(4):
            o.append(("W%d" % sg, "buffer_load_dwordx4 v%d, s[%d:%d], s38 offen offset:%d%s lds" % (vb + q, sd, sd + 3, 1024 * q, WNT)))
        return o
    def xops(sg):
        if sg >= ND + NO: return []
        u = sg % 4
        o = []
        if sg < ND:
            if u == 0 and sg > 0: o.append("s_add_u32 s61, s61, %d" % (4 * 16384))
            o.append("s_add_u32 s39, s61, s%d" % (44 + u))
            nk = 2
        else:
            if u == 0 and sg > ND: o.append("s_add_u32 s63, s63, %d" % (4 * 32768))
            o.append("s_lshl1_add_u32 s39, s%d, s63" % (44 + u))
            nk = 4
        for kq in range(nk):
            for m in range(2):
                o.append(("X%d" % sg, "buffer_load_dwordx4 %s, v%d, s[16:19], s39 offen offset:%d%s" % (ar(XB(u, kq, m), 4), VX + kq, 1024 * m, XNT)))
        return o
    vm = Vm()
    def emit(o, prev=[""]):
        if isinstance(o, tuple):
            vm.issue(o[0]); o = o[1]
        return o
    def wreads(sg, b):
        o = []
        u = sg % 4
        for kh in range(2):
            for s2 in range(2):
                if sg < ND: v, off = VW + b, u * 16384 + (32 * kh + 16 * s2) * 256
                else: v, off = VWO + b % 4, u * 16384 + (64 * (b // 4) + 32 * kh + 16 * s2) * 128
                o.append("ds_read_b64_tr_b16 %s, v%d offset:%d" % (ar(WR(b, kh) + 2 * s2, 2), v, off))
        return o
    def mfmas(sg, b):
        o = []
        u = sg % 4
        for m in range(2):
            for kh in range(2):
                if sg < ND: c, x = accD(m, b), XB(u, kh, m)
                else: c, x = accO(m, b % 4), XB(u, 2 * (b // 4) + kh, m)
                o.append("v_mfma_f32_16x16x32_bf16 %s, %s, %s, %s" % (vr(c, 4), ar(WR(b, kh), 4), ar(x, 4), vr(c, 4)))
        return o

    seq = []
    for sg in range(4):
        seq += wops(sg)
        if sg < 3: seq += xops(sg)
    prev = ""
    for o in seq:
        s = emit(o)
        if s.endswith("lds") and prev.startswith("s_add_u32 m0"): a("s_nop 0")
        a(s); prev = s
    for r in range(64, 160): a("v_mov_b32 v%d, 0" % r)
    a("s_waitcnt vmcnt(%d)" % vm.need_n(["W0", "X0"]))
    a("s_barrier")
    st.stamp()
    lg = Lgkm()
    for b in range(4):
        for o in wreads(0, b): a(o); lg.issue((0, b))
    a("s_mov_b32 s37, 0")

    def stage(sg, extra1=(), extra2=(), loopend=None):
        last = sg == ND + NO - 1
        h1 = xops(sg + 3) + list(extra1)
        h2 = wops(sg + 4) + list(extra2)
        r1 = [((sg, b), o) for b in range(4, 8) for o in wreads(sg, b)]
        r2 = [] if last else [((sg + 1, b), o) for b in range(4) for o in wreads(sg + 1, b)]
        plan = {}
        for k, x in enumerate(r1): plan.setdefault(k * 12 // 16, []).append(("r",) + x)
        for k, x in enumerate(h1): plan.setdefault(min(15, (5 + k * 11 // max(1, len(h1))) if len(h1) <= 6 else k * 16 // len(h1)), []).append(("o", x))
        for k, x in enumerate(r2): plan.setdefault(16 + k, []).append(("r",) + x)
        for k, x in enumerate(h2): plan.setdefault(16 + k * 16 // len(h2), []).append(("o", x))
        g = 0
        for b in range(8):
            w = lg.need((sg, b))
            if w: a(w)
            for mf in mfmas(sg, b):
                a(mf)
                for x in plan.get(g, []):
                    if x[0] == "r": a(x[2]); lg.issue(x[1])
                    else:
                        s = emit(x[1])
                        if s.endswith("lds") and a.lines[-1].strip().startswith("s_add_u32 m0"): a("s_nop 0")
                        a(s)
                if g == 15 and not last:
                    n = vm.need_n(["W%d" % (sg + 1), "X%d" % (sg + 1)])
                    a("s_waitcnt %slgkmcnt(0)" % ("" if n is None else "vmcnt(%d) " % n))
                    a("s_barrier")
                    lg.clear()
                if g == 31 and loopend:
                    a("s_add_u32 s37, s37, 1")
                    a("s_cmp_lt_u32 s37, 6")
                    a("s_cbranch_scc1 %s" % loopend)
                g += 1

    a(".p2align 6")
    a.label(name + "_loop")
    q0 = list(vm.q)
    for sg in range(4): stage(sg, loopend=(name + "_loop") if sg == 3 else None)
    shift = lambda q, d: [t[0] + str(int(t[1:]) + d) for t in q]
    assert vm.q == shift(q0, 4), (vm.q, q0)
    vm.q = shift(q0, 24)
    lg.q = [(24, t[1]) for t in lg.q]
    for sg in range(24, 28): stage(sg)
    st.stamp()
    a("s_lshl_b32 s56, s2, 15")
    a("s_lshl_b32 s3, s32, 13")
    a("s_add_u32 s56, s56, s3")
    a("s_add_u32 s57, s56, 4096")
    a("s_xor_b32 s58, s56, 0x8000")
    a("s_add_u32 s59, s58, 4096")
    a("s_lshl_b32 s68, s2, 10")
    a("s_lshl_b32 s3, s32, 8")
    a("s_add_u32 s68, s68, s3")
    a("s_xor_b32 s69, s68, 0x400")
    a("v_and_b32 v3, 15, v2")
    a("v_lshlrev_b32 v3, 11, v3")
    a("v_bfe_u32 v4, v2, 4, 1")
    a("v_lshl_add_u32 v3, v4, 5, v3")
    a("v_lshrrev_b32 v4, 5, v2")
    a("v_lshl_add_u32 v3, v4, 4, v3")
    a("s_lshl_b32 s70, s34, 18")
    a("s_lshl_b32 s3, s32, 16")
    a("s_add_u32 s70, s70, s3")
    a("s_lshl_b32 s3, s35, 8")
    a("s_add_u32 s70, s70, s3")
    a("s_lshl_b32 s3, s33, 7")
    a("s_add_u32 s70, s70, s3")
    a("s_add_u32 s71, s70, 32768")
    a("v_mov_b32 v4, 0")
    a("v_mov_b32 v5, 1")
    sends = [("S", "buffer_store_dwordx4 %s, v%d, s[20:23], s%d offen offset:%d sc0 sc1" % (vr(accD(0, 4) + 4 * k, 4), VX, 56 + k // 4, 1024 * (k % 4))) for k in range(8)]
    xres = [("R", "buffer_load_dwordx4 %s, v3, s[28:31], s%d offen offset:%d" % (vr(XRES + 4 * (2 * m + bp), 4), 70 + m, 64 * bp)) for m in range(2) for bp in range(2)]
    for s in sends: a(emit(s))
    stage(28)
    stage(29)
    n = vm.need_n(["S"])
    if n is not None: a("s_waitcnt vmcnt(%d)" % n)
    a(emit(("F", "buffer_store_dword v5, v4, s[24:27], s68 offen sc0 sc1")))
    for sg in range(30, 33): stage(sg)
    stage(33, extra1=xres)
    stage(34)
    stage(35)
    st.stamp()
    a("s_mov_b32 s37, 0")
    a.label(name + "_poll")
    a("s_add_u32 s37, s37, 1")
    a("s_cmp_gt_u32 s37, 0x40000")
    a("s_cbranch_scc1 %s_got" % name)
    a("buffer_load_dword v6, v4, s[24:27], s69 offen sc0 sc1")
    a("s_waitcnt vmcnt(0)")
    a("v_readfirstlane_b32 s3, v6")
    a("s_cmp_eq_u32 s3, 1")
    a("s_cbranch_scc1 %s_got" % name)
    a("s_sleep 1")
    a("s_branch %s_poll" % name)
    a.label(name + "_got")
    for k in range(8):
        a("buffer_load_dwordx4 %s, v%d, s[20:23], s%d offen offset:%d sc0 sc1" % (vr(PART + 4 * k, 4), VX, 58 + k // 4, 1024 * (k % 4)))
    a("s_mov_b32 s50, 0xbfb8aa3b"); a("s_mov_b32 s51, 0xbfb8aa3b")
    a("s_mov_b32 s52, 1.0"); a("s_mov_b32 s53, 1.0")
    a("s_mov_b32 s54, 0xffff0000")
    def round4(R, T):
        a("v_cvt_pk_bf16_f32 v%d, v%d, v%d" % (T, R, R + 1))
        a("v_cvt_pk_bf16_f32 v%d, v%d, v%d" % (T + 1, R + 2, R + 3))
        a("v_lshlrev_b32 v%d, 16, v%d" % (R, T))
        a("v_and_b32 v%d, s54, v%d" % (R + 1, T))
        a("v_lshlrev_b32 v%d, 16, v%d" % (R + 2, T + 1))
        a("v_and_b32 v%d, s54, v%d" % (R + 3, T + 1))
    for k in range(8): round4(accO(0, 0) + 4 * k, 8 + 2 * (k % 4))
    st.stamp()
    for k in range(8):
        Y, T = accD(0, 0) + 4 * k, PART + 4 * k
        a("s_waitcnt vmcnt(%d)" % (7 - k))
        for h in (0, 2): a("v_pk_add_f32 %s, %s, %s" % (vr(Y + h, 2), vr(Y + h, 2), vr(T + h, 2)))
        round4(Y, 8)
        for h in (0, 2): a("v_pk_mul_f32 %s, %s, s[50:51]" % (vr(T + h, 2), vr(Y + h, 2)))
        for r in range(4): a("v_exp_f32 v%d, v%d" % (T + r, T + r))
    a("s_nop 0")
    for k in range(8):
        Y, T = accD(0, 0) + 4 * k, PART + 4 * k
        for h in (0, 2): a("v_pk_add_f32 %s, %s, s[52:53]" % (vr(T + h, 2), vr(T + h, 2)))
        for r in range(4): a("v_rcp_f32 v%d, v%d" % (T + r, T + r))
    a("s_nop 0")
    for m in range(2):
        for bp in range(2):
            D = 32 + 4 * (2 * m + bp)
            for be in range(2):
                b = 2 * bp + be
                Y, T, S = accD(m, b), PART + (accD(m, b) - accD(0, 0)), accO(m, b)
                for h in (0, 2): a("v_pk_mul_f32 %s, %s, %s" % (vr(Y + h, 2), vr(Y + h, 2), vr(T + h, 2)))
                round4(Y, 8)
                for h in (0, 2): a("v_pk_mul_f32 %s, %s, %s" % (vr(Y + h, 2), vr(Y + h, 2), vr(S + h, 2)))
                a("v_cvt_pk_bf16_f32 v%d, v%d, v%d" % (D + 2 * be, Y, Y + 1))
                a("v_cvt_pk_bf16_f32 v%d, v%d, v%d" % (D + 2 * be + 1, Y + 2, Y + 3))
            a("s_nop 1")
            a("v_permlane16_swap_b32 v%d, v%d" % (D, D + 2))
            a("v_permlane16_swap_b32 v%d, v%d" % (D + 1, D + 3))
            a("s_nop 1")
            Xr = XRES + 4 * (2 * m + bp)
            for r in range(4):
                a("v_lshlrev_b32 v48, 16, v%d" % (D + r))
                a("v_and_b32 v49, s54, v%d" % (D + r))
                a("v_lshlrev_b32 v50, 16, v%d" % (Xr + r))
                a("v_and_b32 v51, s54, v%d" % (Xr + r))
                a("v_pk_add_f32 v[48:49], v[48:49], v[50:51]")
                a("v_cvt_pk_bf16_f32 v%d, v48, v49" % (D + r))
            a("buffer_store_dwordx4 %s, v3, s[64:67], s%d offen offset:%d" % (vr(D, 4), 70 + m, 64 * bp))
    if st.on:
        st.stamp()
        a("s_waitcnt vmcnt(0)")
        st.stamp()
        st.dump(8, 32, 0)
    a.label(name + "_end")
    a("s_endpgm")
    desc(a, name, NV + NA, 96, NV)
    return (name, 256, 256, G2_LDS)
```

```python
from gen_common import *

def gen_ln(a, name, P):
    st = Stamps(a, P.get("prof"), 60, 0, 6)
    kernel_header(a, name)
    a("s_cmp_ge_u32 s2, 256")
    a("s_cbranch_scc1 %s_end" % name)
    st.stamp()
    a("s_load_dwordx2 s[4:5], s[0:1], 0")
    a("s_load_dwordx2 s[6:7], s[0:1], 72")
    a("v_and_b32 v1, 63, v0")
    a("v_lshrrev_b32 v2, 6, v0")
    a("v_lshrrev_b32 v3, 3, v1")
    a("v_and_b32 v4, 7, v1")
    a("v_lshlrev_b32 v5, 11, v3")
    a("v_lshl_add_u32 v5, v2, 9, v5")
    a("v_lshl_add_u32 v5, v4, 4, v5")
    a("s_lshl_b32 s16, s2, 14")
    a("s_waitcnt lgkmcnt(0)")
    srd(a, 8, 4, 0, 2048 * 2048)
    srd(a, 12, 6, XN_OFF, XN_BYTES)
    for u in range(4):
        a("buffer_load_dwordx4 %s, v5, s[8:11], s16 offen offset:%d" % (vr(16 + 4 * u, 4), 128 * u))
    srd(a, 24, 6, FLAG_OFF, FLAG_BYTES)
    a("v_mov_b32 v8, 0")
    a("v_lshlrev_b32 v9, 2, v0")
    a("s_lshl_b32 s17, s2, 10")
    a("buffer_store_dword v8, v9, s[24:27], s17 offen")
    a("v_lshlrev_b32 v6, 17, v2")
    a("v_lshrrev_b32 v7, 2, v4")
    a("v_lshl_add_u32 v6, v7, 10, v6")
    a("v_and_b32 v7, 3, v4")
    a("v_lshl_add_u32 v6, v7, 8, v6")
    a("v_lshl_add_u32 v6, v3, 4, v6")
    a("s_lshr_b32 s18, s2, 5")
    a("s_lshl_b32 s18, s18, 19")
    a("s_bfe_u32 s19, s2, 0x40001")
    a("s_lshl_b32 s19, s19, 11")
    a("s_add_u32 s18, s18, s19")
    a("s_and_b32 s19, s2, 1")
    a("s_lshl_b32 s19, s19, 7")
    a("s_add_u32 s18, s18, s19")
    a("s_add_u32 s19, s18, 32768")
    a("s_add_u32 s20, s18, 65536")
    a("s_add_u32 s21, s18, 98304")
    a("v_lshlrev_b32 v10, 5, v3")
    a("v_lshl_add_u32 v11, v2, 3, v10")
    a("s_mov_b32 s22, 0xffff0000")
    if P.get("ln_prefetch"):
        P["ln_prefetch"](a)
        a("s_waitcnt vmcnt(%d)" % (1 + P["ln_prefetch_n"]))
    else:
        a("s_waitcnt vmcnt(1)")
    st.stamp()
    X = 32
    for r in range(16):
        a("v_lshlrev_b32 v%d, 16, v%d" % (X + 2 * r, 16 + r))
        a("v_and_b32 v%d, s22, v%d" % (X + 2 * r + 1, 16 + r))
    T = 64
    for r in range(8):
        a("v_pk_add_f32 %s, %s, %s" % (vr(T + 2 * r, 2), vr(X + 4 * r, 2), vr(X + 4 * r + 2, 2)))
    for n in (4, 2, 1):
        for r in range(n):
            a("v_pk_add_f32 %s, %s, %s" % (vr(T + 2 * r, 2), vr(T + 2 * r, 2), vr(T + 2 * (r + n), 2)))
    a("v_add_f32 v12, v%d, v%d" % (T, T + 1))
    def red8(v):
        for m in ("quad_perm:[1,0,3,2]", "quad_perm:[2,3,0,1]", "row_half_mirror"):
            a("s_nop 1")
            a("v_add_f32_dpp v%d, v%d, v%d %s row_mask:0xf bank_mask:0xf" % (v, v, v, m))
    red8(12)
    a("v_mul_f32 v14, 0xbb800000, v12")
    a("v_mov_b32 v15, v14")
    for r in range(16):
        a("v_pk_add_f32 %s, %s, v[14:15]" % (vr(T + 2 * r, 2), vr(X + 2 * r, 2)))
    for r in range(4):
        a("v_pk_mul_f32 %s, %s, %s" % (vr(T + 2 * r, 2), vr(T + 2 * r, 2), vr(T + 2 * r, 2)))
    for r in range(4, 16):
        a("v_pk_fma_f32 %s, %s, %s, %s" % (vr(T + 2 * (r % 4), 2), vr(T + 2 * r, 2), vr(T + 2 * r, 2), vr(T + 2 * (r % 4), 2)))
    for n in (2, 1):
        for r in range(n):
            a("v_pk_add_f32 %s, %s, %s" % (vr(T + 2 * r, 2), vr(T + 2 * r, 2), vr(T + 2 * (r + n), 2)))
    a("v_add_f32 v13, v%d, v%d" % (T, T + 1))
    red8(13)
    a("ds_write_b64 v11, v[12:13]")
    a("s_waitcnt lgkmcnt(0)")
    a("s_barrier")
    a("ds_read_b128 v[64:67], v10")
    a("ds_read_b128 v[68:71], v10 offset:16")
    a("s_waitcnt lgkmcnt(0)")
    a("v_add_f32 v72, v64, v66")
    a("v_add_f32 v73, v68, v70")
    a("v_add_f32 v72, v72, v73")
    a("v_mul_f32 v73, 0x3e800000, v72")
    a("v_mul_f32 v72, 0x3a800000, v72")
    for r in range(4):
        a("v_sub_f32 v%d, v%d, v73" % (64 + 2 * r, 64 + 2 * r))
    a("v_mul_f32 v74, v64, v64")
    a("v_fmac_f32 v74, v66, v66")
    a("v_fmac_f32 v74, v68, v68")
    a("v_fmac_f32 v74, v70, v70")
    a("v_add_f32 v65, v65, v67")
    a("v_add_f32 v69, v69, v71")
    a("v_add_f32 v65, v65, v69")
    a("v_fmac_f32 v65, 0x3b800000, v74")
    a("v_mul_f32 v65, 0x3a800000, v65")
    a("v_cvt_pk_bf16_f32 v72, v72, v65")
    a("v_and_b32 v65, s22, v72")
    a("v_lshlrev_b32 v72, 16, v72")
    a("v_add_f32 v65, 0x3727c5ac, v65")
    a("v_cvt_pk_bf16_f32 v65, v65, v65")
    a("v_and_b32 v65, s22, v65")
    a("v_sqrt_f32 v65, v65")
    a("s_nop 0")
    a("v_cvt_pk_bf16_f32 v65, v65, v65")
    a("v_and_b32 v65, s22, v65")
    a("v_rcp_f32 v74, v65")
    a("v_sub_f32 v72, 0, v72")
    a("v_mov_b32 v73, v72")
    a("v_mov_b32 v75, v74")
    for r in range(16):
        a("v_pk_add_f32 %s, %s, v[72:73]" % (vr(X + 2 * r, 2), vr(X + 2 * r, 2)))
    for r in range(16):
        a("v_cvt_pk_bf16_f32 v%d, v%d, v%d" % (16 + r, X + 2 * r, X + 2 * r + 1))
    for r in range(16):
        a("v_lshlrev_b32 v%d, 16, v%d" % (X + 2 * r, 16 + r))
        a("v_and_b32 v%d, s22, v%d" % (X + 2 * r + 1, 16 + r))
    for r in range(16):
        a("v_pk_mul_f32 %s, %s, v[74:75]" % (vr(X + 2 * r, 2), vr(X + 2 * r, 2)))
    for u in range(4):
        for r in range(4 * u, 4 * u + 4):
            a("v_cvt_pk_bf16_f32 v%d, v%d, v%d" % (16 + r, X + 2 * r, X + 2 * r + 1))
        a("buffer_store_dwordx4 %s, v6, s[12:15], s%d offen" % (vr(16 + 4 * u, 4), 18 + u))
    if st.on:
        st.stamp()
        a("s_waitcnt vmcnt(0)")
        st.stamp()
        st.dump(8, 28, 0)
    a.label(name + "_end")
    a("s_endpgm")
    desc(a, name, 96, 80, 96)
    return (name, 256, 256, 256)
```

```python
import sys, json
sys.path.insert(0, "dev")
from gen_common import *
from gen_ln import gen_ln
from gen_g1 import gen_g1
from gen_g2 import gen_g2

MAIN = "recurrent_scan__sliding_local_dilated__swiglu_ffn__prompt_kernel"
HEADER = open("recurrent_scan__sliding_local_dilated__swiglu_ffn__prompt.s.ref").read().split("; Override launch")[0]

def build(P):
    a = Asm()
    a.raw('.amdgcn_target "amdgcn-amd-amdhsa--gfx950"')
    L = [gen_ln(a, "ln_kernel", P), gen_g1(a, "gemm1_kernel", P), gen_g2(a, MAIN, P)]
    hdr = HEADER
    for (n, g, b, lds) in L:
        hdr += "; @launch kernel=%s grid=(%d,1,1) block=(%d,1,1) lds=%d\n" % (n, g, b, lds)
    return hdr + a.text()

if __name__ == "__main__":
    P = json.loads(sys.argv[2]) if len(sys.argv) > 2 else {}
    open(sys.argv[1], "w").write(build(P))
```

```python
import sys, json
sys.path.insert(0, "dev")
from gen_common import *

MAIN = "recurrent_scan__sliding_local_dilated__swiglu_ffn__prompt_kernel"
SLOT = 40960
GATE, UP, QKV = 0, 14336, 28672
EX = 3 * SLOT
LDS_BYTES = EX + 5 * 2048 + 256
LNX = EX + 5 * 2048
R2 = SLOT
F0, F1H, F1O, F2, EPOCH = 0, 4096, 8192, 12288, 65536
NONCE_ADD = 0x6A09E667
OOB = 0x40000000
SC = "sc1"

class Cnt:
    def __init__(self, init=(), cap=15):
        self.q = list(init); self.cap = cap
    def issue(self, tag): self.q.append(tag)
    def need(self, *tags):
        idx = [i for i, t in enumerate(self.q) if t in tags]
        if not idx: return None
        last = max(idx)
        n = len(self.q) - 1 - last
        self.q = self.q[last + 1:]
        return min(n, self.cap)
    def clear(self): self.q = []

def gen(P):
    a = Asm()
    name = MAIN
    prof = P.get("prof")
    nst = [0]
    def stamp():
        if not prof: return
        a("%s s[98:99]" % ("s_memtime" if prof == 2 else "s_memrealtime"))
        a("s_waitcnt lgkmcnt(0)")
        a("v_writelane_b32 v31, s98, %d" % nst[0])
        nst[0] += 1
    XSC = P.get("xsc", "sc1")
    ROT1 = P.get("g1_rot", 0)
    ROT2 = P.get("g2_rot", 1)
    TOUCH = P.get("touch", 1)
    vm = Cnt(cap=63)
    def V(tag, s):
        vm.issue(tag)
        if s.endswith("lds") and a.lines[-1].strip().startswith("s_add_u32 m0"): a("s_nop 0")
        a(s)
    def vwait(*tags, lg0=False):
        n = vm.need(*tags)
        parts = ([] if n is None else ["vmcnt(%d)" % n]) + (["lgkmcnt(0)"] if lg0 else [])
        if parts: a("s_waitcnt " + " ".join(parts))
    def check_flags(vreg, voff, soff, tag, label):
        vwait(tag)
        a("v_cmp_ne_u32 vcc, s96, v%d" % vreg)
        a("s_cbranch_vccz %s_ok" % label)
        a("s_mov_b32 s97, 0")
        a.label(label + "_spin")
        a("s_sleep 1")
        a("buffer_load_dword v%d, v%d, s[84:87], %s offen %s" % (vreg, voff, soff, SC))
        a("s_add_u32 s97, s97, 1")
        a("s_waitcnt vmcnt(0)")
        a("s_cmp_gt_u32 s97, 0x80000")
        a("s_cbranch_scc1 %s_ok" % label)
        a("v_cmp_ne_u32 vcc, s96, v%d" % vreg)
        a("s_cbranch_vccnz %s_spin" % label)
        a.label(label + "_ok")

    accGU = lambda p, gu, m: 32 + ((p * 2 + gu) * 4 + m) * 4
    accQ = lambda s, m: (s * 4 + m) * 4
    HACC = 96
    XB = lambda buf, m, kh: 100 + buf * 40 + (m * 2 + kh) * 4
    WR = lambda slot, kh: 180 + slot * 8 + kh * 4
    HW = lambda kh: 212 + kh * 4
    NAGPR = 220

    a.raw('.amdgcn_target "amdgcn-amd-amdhsa--gfx950"')
    kernel_header(a, name)
    a("s_cmp_ge_u32 s2, 256")
    a("s_cbranch_scc1 L_end")
    a("s_load_dwordx16 s[64:79], s[0:1], 0")
    a("s_load_dwordx4 s[80:83], s[0:1], 64")
    if P.get("codepf", 1):
        a("s_getpc_b64 s[4:5]")
        a.label("L_pc")
        a("s_mov_b32 s6, L_end-L_pc")
        a("s_mov_b32 s7, 0x20000")
        a("v_and_b32 v1, 63, v0")
        a("v_lshlrev_b32 v1, 7, v1")
        a("s_bfe_u32 s3, s2, 0x30003")
        a("s_lshl_b32 s3, s3, 13")
        V("c", "buffer_load_dword v29, v1, s[4:7], s3 offen")
    if prof: a("v_mov_b32 v31, 0")
    stamp()
    PX, PQKV, PWO, PG, PU, PD, POUT, PDBG, PWS = 64, 66, 68, 72, 74, 76, 78, 80, 82
    a("v_and_b32 v17, 63, v0")
    a("v_lshrrev_b32 v16, 6, v0")
    a("v_lshrrev_b32 v18, 3, v17")
    a("v_and_b32 v19, 7, v17")
    a("v_readfirstlane_b32 s32, v16")
    a("v_lshlrev_b32 v20, 11, v18")
    a("v_lshl_add_u32 v20, v16, 9, v20")
    a("v_lshl_add_u32 v20, v19, 4, v20")
    a("s_and_b32 s34, s2, 7")
    a("s_lshl_b32 s34, s34, 2")
    a("s_bfe_u32 s35, s2, 0x20003")
    a("s_add_u32 s34, s34, s35")
    a("s_lshr_b32 s33, s2, 5")
    a("s_lshl_b32 s36, s33, 5")
    a("s_add_u32 s36, s36, s34")
    a("s_lshl_b32 s37, s36, 14")
    a("v_mov_b32 v6, 0")
    a("s_waitcnt lgkmcnt(0)")
    srd(a, 48, PX, 0, 2048 * 2048)
    LX = 32
    for u in range(4):
        V("x", "buffer_load_dwordx4 %s, v20, s[48:51], s37 offen offset:%d" % (vr(LX + 4 * u, 4), 128 * u))
    srd(a, 84, PWS, FLAG_OFF, FLAG_BYTES)
    a("s_mov_b32 s3, %d" % EPOCH)
    V("x", "buffer_load_dword v7, v6, s[84:87], s3 offen")
    stamp()
    a("s_and_b32 s57, s34, 1")
    a("s_lshr_b32 s58, s34, 1")
    a("s_mul_i32 s58, s58, 448")
    if TOUCH:
        a("s_cmp_eq_u32 s32, 1")
        a("s_cselect_b32 s88, s%d, s%d" % (PU, PG)); a("s_cselect_b32 s89, s%d, s%d" % (PU + 1, PG + 1))
        a("s_cmp_eq_u32 s32, 3")
        a("s_cselect_b32 s88, s%d, s88" % PD); a("s_cselect_b32 s89, s%d, s89" % (PD + 1))
        a("s_cbranch_scc1 L_t3")
        a("s_mul_i32 s3, s57, 208")
        a("s_add_u32 s3, s3, s58")
        a("s_movk_i32 s92, 7168")
        a("s_movk_i32 s93, 118")
        a("s_mov_b32 s90, %d" % (1024 * 7168))
        a("s_cmp_eq_u32 s32, 2")
        a("s_cbranch_scc0 L_t01")
        a("s_mov_b32 s88, s%d" % PQKV); a("s_mov_b32 s89, s%d" % (PQKV + 1))
        a("s_lshl_b32 s3, s34, 6")
        a("s_movk_i32 s92, 6144")
        a("s_movk_i32 s93, 2048")
        a("s_mov_b32 s90, %d" % (1024 * 6144))
        a.label("L_t01")
        a("v_lshrrev_b32 v21, 2, v17")
        a("v_and_b32 v22, 3, v17")
        a("v_mul_u32_u24 v30, s92, v21")
        a("v_mul_u32_u24 v23, s93, v22")
        a("v_and_b32 v23, -4, v23")
        a("v_add3_u32 v30, v30, v23, s3")
        a("v_cmp_eq_u32 vcc, 3, v22")
        a("v_mov_b32 v23, %d" % OOB)
        a("s_lshl_b32 s94, s33, 4")
        a("v_cndmask_b32 v30, v30, v23, vcc")
        a("s_mul_i32 s94, s94, s92")
        a("s_lshl_b32 s95, s92, 7")
        a("s_branch L_td")
        a.label("L_t3")
        a("v_lshlrev_b32 v30, 11, v18")
        a("v_lshl_add_u32 v30, v19, 7, v30")
        a("s_and_b32 s3, s2, 1")
        a("s_add_u32 s3, s3, 1")
        a("s_mul_i32 s90, s3, %d" % (1792 * 2048))
        a("s_lshr_b32 s94, s2, 3")
        a("s_lshl_b32 s94, s94, 14")
        a("s_add_u32 s94, s94, s90")
        a("s_bfe_u32 s3, s2, 0x10002")
        a("s_lshl_b32 s3, s3, 10")
        a("s_add_u32 s94, s94, s3")
        a("s_add_u32 s94, s94, %d" % (2 * 256 * 2048))
        a("s_mov_b32 s95, %d" % ((-256 * 2048) & 0xffffffff))
        a.label("L_td")
        a("s_mov_b32 s91, 0x20000")
        for k in range(P.get("early_touch", 1)):
            V("t", "buffer_load_dword v29, v30, s[88:91], s94 offen")
            a("s_add_u32 s94, s94, s95")
    a("v_lshlrev_b32 v21, 17, v16")
    a("v_lshrrev_b32 v22, 2, v19")
    a("v_lshl_add_u32 v21, v22, 10, v21")
    a("v_and_b32 v22, 3, v19")
    a("v_lshl_add_u32 v21, v22, 8, v21")
    a("v_lshl_add_u32 v28, v18, 4, v21")
    a("s_lshl_b32 s50, s33, 19")
    a("s_lshr_b32 s51, s34, 1")
    a("s_lshl_b32 s51, s51, 11")
    a("s_add_u32 s50, s50, s51")
    a("s_lshl_b32 s51, s57, 7")
    a("s_add_u32 s50, s50, s51")
    a("s_add_u32 s51, s50, 32768")
    a("s_add_u32 s52, s50, 65536")
    a("s_add_u32 s53, s50, 98304")
    a("v_lshlrev_b32 v26, 5, v18")
    a("v_add_u32 v26, %d, v26" % LNX)
    a("v_lshl_add_u32 v27, v16, 3, v26")
    srd(a, 24, PWS, XN_OFF, 0)
    a("s_add_u32 s26, s33, 1")
    a("s_lshl_b32 s26, s26, 19")
    a("s_mov_b32 s54, 0xffff0000")

    def g1_setup(hook):
        a("v_lshlrev_b32 v15, 4, v17")
        a("v_lshrrev_b32 v18, 2, v17")
        a("v_and_b32 v19, 3, v17")
        a("v_lshlrev_b32 v19, 3, v19")
        a("s_movk_i32 s3, 224")
        a("v_mad_u32_u24 v1, v18, s3, v19")
        a("v_and_b32 v20, 1, v17")
        a("v_lshlrev_b32 v20, 4, v20")
        a("v_and_b32 v21, 2, v17")
        a("v_lshl_add_u32 v20, v21, 2, v20")
        a("v_mad_u32_u24 v5, v18, s3, v20")
        a("s_movk_i32 s3, 192")
        a("v_mad_u32_u24 v2, v18, s3, v19")
        a("v_add_u32 v2, %d, v2" % QKV)
        a("v_and_b32 v19, 16, v17")
        a("v_lshlrev_b32 v19, 1, v19")
        a("v_xor_b32 v20, 32, v19")
        a("v_add_u32 v3, v2, v20")
        a("v_add_u32 v2, v2, v19")
        a("s_and_b32 s3, s32, 1")
        a("s_cmp_eq_u32 s3, 1")
        a("s_cselect_b64 vcc, -1, 0")
        a("v_cndmask_b32 v4, v2, v3, vcc")
        a("s_lshr_b32 s3, s32, 1")
        a("s_lshl_b32 s3, s3, 6")
        a("s_add_u32 s3, s3, 64")
        a("v_add_u32 v4, s3, v4")
        def krow(dst, rho, t1):
            a("v_and_b32 v%d, 35, v%d" % (dst, rho))
            a("v_bfe_u32 v%d, v%d, 2, 2" % (t1, rho))
            a("v_lshl_or_b32 v%d, v%d, 3, v%d" % (dst, t1, dst))
            a("v_bfe_u32 v%d, v%d, 4, 1" % (t1, rho))
            a("v_lshl_or_b32 v%d, v%d, 2, v%d" % (dst, t1, dst))
        a("s_mul_i32 s56, s32, 192")
        a("s_lshl_b32 s59, s34, 6")
        a("s_movk_i32 s60, 4682")
        a("s_movk_i32 s61, 5462")
        a("s_movk_i32 s62, 7168")
        a("s_movk_i32 s63, 6144")
        a("s_lshl_b32 s48, s57, 4")
        a("s_sub_u32 s49, s57, 12")
        def gu_off(dst, imm):
            a("v_mul_u32_u24 v21, s60, v20")
            a("v_lshrrev_b32 v21, 16, v21")
            a("v_mul_u32_u24 v22, 14, v21")
            a("v_sub_u32 v22, v20, v22")
            a("v_cmp_gt_u32 vcc, 12, v22")
            a("v_lshl_add_u32 v23, v22, 1, s49")
            a("v_add_u32 v22, s48, v22")
            a("v_cndmask_b32 v22, v23, v22, vcc")
            krow(24, 21, 23)
            a("v_lshlrev_b32 v22, 4, v22")
            a("v_mad_u32_u24 v%d, v24, s62, v22" % dst)
            a("s_sub_u32 s3, s58, %d" % imm)
            a("v_add_u32 v%d, s3, v%d" % (dst, dst))
        def qkv_off(dst, imm):
            a("v_mul_u32_u24 v21, s61, v20")
            a("v_lshrrev_b32 v21, 16, v21")
            a("v_mul_u32_u24 v22, 12, v21")
            a("v_sub_u32 v22, v20, v22")
            a("v_lshrrev_b32 v23, 1, v21")
            a("v_and_b32 v23, 2, v23")
            a("v_xor_b32 v22, v22, v23")
            a("v_lshrrev_b32 v25, 2, v22")
            a("v_and_b32 v22, 3, v22")
            a("v_lshlrev_b32 v22, 4, v22")
            a("v_lshl_add_u32 v22, v25, 11, v22")
            krow(24, 21, 23)
            a("v_mad_u32_u24 v%d, v24, s63, v22" % dst)
            a("s_sub_u32 s3, s59, %d" % imm)
            a("v_add_u32 v%d, s3, v%d" % (dst, dst))
        for q in range(3):
            a("s_add_u32 s3, s56, %d" % (64 * q))
            a("v_add_u32 v20, s3, v17")
            gu_off(8 + q, 1024 * q)
            qkv_off(11 + q, 1024 * q)
            if q == P.get("flagq", 1): hook()
        a("s_and_b32 s3, s32, 1")
        a("s_lshl_b32 s3, s3, 6")
        a("s_add_u32 s3, s3, 768")
        a("v_add_u32 v20, s3, v17")
        gu_off(14, 0)
        a("s_mul_i32 s43, s32, 3072")
        a("s_add_u32 s44, s43, %d" % UP)
        a("s_add_u32 s45, s43, %d" % QKV)
        a("s_lshr_b32 s46, s32, 1")
        a("s_mul_i32 s46, s46, %d" % UP)
        a("s_and_b32 s3, s32, 1")
        a("s_lshl_b32 s3, s3, 10")
        a("s_add_u32 s46, s46, s3")
        a("s_add_u32 s46, s46, 12288")
        a("s_lshl_b32 s60, s33, 19")
        a("s_lshl_b32 s3, s32, 13")
        a("s_add_u32 s60, s60, s3")
        a("s_max_u32 s61, s33, 1")
        a("s_sub_u32 s61, s61, 1")
        a("s_lshl_b32 s59, s61, 9")
        a("s_lshl_b32 s61, s61, 19")
        a("s_add_u32 s61, s61, %d" % (3 * 8192 + 3 * 2048))
        a("s_mov_b32 s62, %d" % SLOT)
        a("s_mov_b32 s63, %d" % ((-2 * SLOT) & 0xffffffff))
        if ROT1:
            a("s_lshl_b32 s35, s35, 1")
            a("s_add_u32 s35, s35, s33")
            a("s_and_b32 s35, s35, 7")
        srd(a, 8, PG, 0, 1024 * 7168)
        srd(a, 12, PU, 0, 1024 * 7168)
        srd(a, 16, PQKV, 0, 1024 * 6144)
        srd(a, 28, PWS, ACT_OFF, ACT_BYTES)
        a("s_lshl_b32 s3, s33, 9")
        a("s_lshl_b32 s48, s32, 7")
        a("s_add_u32 s3, s3, s48")
        a("v_lshl_add_u32 v20, v17, 2, s3")
        a("v_and_b32 v21, 7, v17")
        a("s_add_u32 s59, s59, 480")
        a("v_lshl_add_u32 v21, v21, 2, s59")
        a("v_cmp_gt_u32 vcc, 32, v17")
        a("s_nop 1")
        a("v_cndmask_b32 v25, v21, v20, vcc")
    vwait("x")
    stamp()
    a("v_readfirstlane_b32 s96, v7")
    X, T = 48, 80
    a("s_mov_b32 s3, 0x3f803f80")
    a("v_mov_b32 v116, s3")
    for r in range(16):
        c1 = "0" if r < 2 else "v%d" % (112 + 2 * (r % 2))
        c2 = "0" if r < 2 else "v%d" % (113 + 2 * (r % 2))
        a("v_dot2_f32_bf16 v%d, v%d, v116, %s" % (112 + 2 * (r % 2), LX + r, c1))
        a("v_dot2_f32_bf16 v%d, v%d, v%d, %s" % (113 + 2 * (r % 2), LX + r, LX + r, c2))
    a("s_add_u32 s96, s96, 0x%x" % NONCE_ADD)
    a("s_nop 1")
    a("v_pk_add_f32 v[112:113], v[112:113], v[114:115]")
    for m in ("quad_perm:[1,0,3,2]", "quad_perm:[2,3,0,1]", "row_half_mirror"):
        a("s_nop 0" if m != "quad_perm:[1,0,3,2]" else "s_nop 1")
        for v in (112, 113):
            a("v_add_f32_dpp v%d, v%d, v%d %s row_mask:0xf bank_mask:0xf" % (v, v, v, m))
    a("ds_write_b64 v27, v[112:113]")
    for r in range(8):
        a("v_lshlrev_b32 v%d, 16, v%d" % (X + 2 * r, LX + r))
        a("v_and_b32 v%d, s54, v%d" % (X + 2 * r + 1, LX + r))
    a("s_waitcnt lgkmcnt(0)")
    a("s_barrier")
    a("ds_read_b128 v[80:83], v26")
    a("ds_read_b128 v[84:87], v26 offset:16")
    for r in range(8, 16):
        a("v_lshlrev_b32 v%d, 16, v%d" % (X + 2 * r, LX + r))
        a("v_and_b32 v%d, s54, v%d" % (X + 2 * r + 1, LX + r))
    a("s_waitcnt lgkmcnt(0)")
    a("v_pk_add_f32 v[80:81], v[80:81], v[82:83]")
    a("v_pk_add_f32 v[84:85], v[84:85], v[86:87]")
    a("v_pk_add_f32 v[80:81], v[80:81], v[84:85]")
    a("v_mul_f32 v88, 0x3a800000, v80")
    a("v_mul_f32 v81, 0x3a800000, v81")
    a("v_fma_f32 v81, -v88, v88, v81")
    a("v_max_f32 v81, 0, v81")
    a("v_cvt_pk_bf16_f32 v88, v88, v81")
    a("v_and_b32 v81, s54, v88")
    a("v_lshlrev_b32 v88, 16, v88")
    a("v_add_f32 v81, 0x3727c5ac, v81")
    a("v_cvt_pk_bf16_f32 v81, v81, v81")
    a("v_and_b32 v81, s54, v81")
    a("v_sqrt_f32 v81, v81")
    a("s_nop 0")
    a("v_cvt_pk_bf16_f32 v81, v81, v81")
    a("v_and_b32 v81, s54, v81")
    a("v_rcp_f32 v90, v81")
    a("v_sub_f32 v88, 0, v88")
    a("v_mov_b32 v89, v88")
    a("v_mov_b32 v91, v90")
    for u in range(4):
        R = range(4 * u, 4 * u + 4)
        for r in R: a("v_pk_add_f32 %s, %s, v[88:89]" % (vr(X + 2 * r, 2), vr(X + 2 * r, 2)))
        for r in R: a("v_cvt_pk_bf16_f32 v%d, v%d, v%d" % (LX + r, X + 2 * r, X + 2 * r + 1))
        for r in R:
            a("v_lshlrev_b32 v%d, 16, v%d" % (X + 2 * r, LX + r))
            a("v_and_b32 v%d, s54, v%d" % (X + 2 * r + 1, LX + r))
        for r in R: a("v_pk_mul_f32 %s, %s, v[90:91]" % (vr(X + 2 * r, 2), vr(X + 2 * r, 2)))
        for r in R: a("v_cvt_pk_bf16_f32 v%d, v%d, v%d" % (LX + r, X + 2 * r, X + 2 * r + 1))
        V("xs", "buffer_store_dwordx4 %s, v28, s[24:27], s%d offen %s" % (vr(LX + 4 * u, 4), 50 + u, SC))
    stamp()
    a("s_lshl_b32 s92, s36, 4")
    a("s_lshl2_add_u32 s92, s32, s92")
    a("v_mov_b32 v7, s96")
    def flag0():
        vwait("xs")
        V("f", "buffer_store_dword v7, v6, s[84:87], s92 offen %s" % SC)
        stamp()
    g1_setup(flag0)
    a("s_cmp_lt_u32 s32, 2")
    a("s_cselect_b32 s20, s%d, s%d" % (PG, PU))
    a("s_cselect_b32 s21, s%d, s%d" % (PG + 1, PU + 1))
    a("s_mov_b32 s22, %d" % (1024 * 7168))
    a("s_mov_b32 s23, 0x20000")

    def tau_ops():
        if ROT1:
            o = ["s_add_u32 s3, s36, s35", "s_and_b32 s3, s3, 7", "s_andn2_b32 s47, s36, 7", "s_or_b32 s47, s47, s3"]
        else:
            o = ["s_mov_b32 s47, s36"]
        return o + ["s_mul_i32 s38, s47, 458752", "s_mul_i32 s39, s47, 393216"]
    def xoff_ops():
        return ["s_lshl_b32 s40, s47, 15", "s_add_u32 s42, s40, s61", "s_add_u32 s40, s40, s60", "s_add_u32 s41, s40, 4096"]
    def wdma_ops(tag):
        o = []
        for (mreg, sd, vb, so) in ((43, 8, 8, 38), (44, 12, 8, 38), (45, 16, 11, 39)):
            o.append("s_add_u32 m0, s37, s%d" % mreg)
            for q in range(3):
                o.append((tag, "buffer_load_dwordx4 v%d, s[%d:%d], s%d offen offset:%d lds" % (vb + q, sd, sd + 3, so, 1024 * q)))
        o.append("s_add_u32 m0, s37, s46")
        o.append((tag, "buffer_load_dwordx4 v14, s[20:23], s38 offen lds"))
        return o
    def xld_ops(buf, tag):
        o = []
        for f in range(8):
            o.append((tag, "buffer_load_dwordx4 %s, v15, s[24:27], s%d offen offset:%d %s" % (ar(XB(buf, f // 2, f % 2), 4), 40 + f // 4, 1024 * (f % 4), XSC)))
        for kh in range(2):
            o.append((tag, "buffer_load_dwordx4 %s, v15, s[24:27], s42 offen offset:%d %s" % (ar(XB(buf, 4, kh), 4), 1024 * kh, XSC)))
        return o
    def E(o):
        if isinstance(o, tuple): V(*o)
        else: a(o)

    a("s_mov_b32 s36, 0"); a("s_mov_b32 s37, 0")
    for o in tau_ops() + wdma_ops("W0") + xoff_ops(): E(o)

    V("p", "buffer_load_dword v24, v25, s[84:87], 0 offen %s" % SC)
    stamp()
    for r in range(32, 256, 2): a("v_mov_b64 %s, 0" % vr(r, 2))
    for r in range(0, 100, 4): a("v_mfma_f32_16x16x32_bf16 %s, v[48:51], v[48:51], 0" % ar(r, 4))
    check_flags(24, 25, "0", "p", "L_f0")
    stamp()
    for o in xld_ops(0, "X0"): E(o)
    a("s_mov_b32 s36, 1"); a("s_mov_b32 s37, %d" % SLOT)
    for o in tau_ops() + wdma_ops("W"): E(o)
    if TOUCH:
        for k in range(2 - P.get("early_touch", 1)):
            V("t", "buffer_load_dword v29, v30, s[88:91], s94 offen")
            a("s_add_u32 s94, s94, s95")

    blocks = []
    for p in range(7): blocks += [("gu", p, 0), ("gu", p, 1)]
    blocks += [("q", s) for s in range(6)]
    def wreads(b, dst):
        o = []
        for kh in range(2):
            for s2 in range(2):
                d = ar(dst(kh) + 2 * s2, 2)
                if b[0] == "gu":
                    o.append("ds_read_b64_tr_b16 %s, v%d offset:%d" % (d, 5 if b[1] == 6 else 1, b[2] * UP + (32 * kh + 16 * s2) * 224 + 32 * b[1]))
                elif b[0] == "q":
                    o.append("ds_read_b64_tr_b16 %s, v%d offset:%d" % (d, 2 + b[1] % 2, (32 * kh + 16 * s2) * 192 + 64 * (b[1] // 2)))
                else:
                    o.append("ds_read_b64_tr_b16 %s, v4 offset:%d" % (d, (32 * kh + 16 * s2) * 192))
        return o
    def mfmas(bi, buf):
        b = blocks[bi]
        o = []
        for m in range(4):
            for kh in range(2):
                w, x = ar(WR(bi % 4, kh), 4), ar(XB(buf, m, kh), 4)
                c = vr(accGU(b[1], b[2], m), 4) if b[0] == "gu" else ar(accQ(b[1], m), 4)
                if b[0] == "q" and b[1] >= 4: w, x = x, w
                o.append("v_mfma_f32_16x16x32_bf16 %s, %s, %s, %s" % (c, w, x, c))
        return o

    vwait("X0")
    a("s_barrier")
    stamp()
    for bi in range(3):
        for o in wreads(blocks[bi], lambda kh: WR(bi % 4, kh)): a(o)

    HRB, HMB = 9, 13
    def step(buf, misc, final=False, loop=None):
        lg = Cnt([0] * 4 + [1] * 4 + [2] * 4)
        slots = [(bi, g) for bi in range(17) for g in (1, 3, 5, 7) if bi != HRB]
        place = {}
        n = len(misc)
        assert n <= len(slots)
        for k, o in enumerate(misc):
            place.setdefault(slots[k * len(slots) // n], []).append(o)
        for bi in range(20):
            mf = mfmas(bi, buf)
            fill = {}
            w = lg.need(bi)
            if w is not None: a("s_waitcnt lgkmcnt(%d)" % w)
            rd = []
            if bi <= 16: rd = [(bi + 3, o) for o in wreads(blocks[bi + 3], lambda kh: WR((bi + 3) % 4, kh))]; gaps = [0, 2, 4, 6]
            elif bi == 18 and not final:
                rd = [(100, o) for o in wreads(blocks[0], lambda kh: WR(0, kh))] + [(101, o) for o in wreads(blocks[1], lambda kh: WR(1, kh))]
                gaps = list(range(8))
            elif bi == 19 and not final: rd = [(102, o) for o in wreads(blocks[2], lambda kh: WR(2, kh))]; gaps = [0, 2, 4, 6]
            if bi == HRB:
                hr = [("H", o) for o in wreads(("h",), HW)]
                rd = [x for pr in zip(rd, hr) for x in pr]; gaps = list(range(8))
            for (tag, o), g in zip(rd, gaps if rd else []):
                fill.setdefault(g, []).append(o); lg.issue(tag)
            for g in (1, 3, 5, 7):
                for o in place.get((bi, g), []): fill.setdefault(g, []).append(o)
            if bi == HMB:
                assert lg.need("H") is None
                for kh in range(2):
                    mf.append("v_mfma_f32_16x16x32_bf16 %s, %s, %s, %s" % (ar(HACC, 4), ar(HW(kh), 4), ar(XB(buf, 4, kh), 4), ar(HACC, 4)))
            if bi == 17 and not final:
                for k, r in enumerate((1, 2, 3, 4, 5)):
                    fill.setdefault(k + 1, []).append("v_add_u32 v%d, s93, v%d" % (r, r))
                fill.setdefault(7, []).append("BAR")
                lg.clear()
            if bi == 19 and loop:
                fill.setdefault(5, []).append("s_cmp_lt_u32 s36, 15")
                fill.setdefault(7, []).append("s_cbranch_scc1 %s" % loop)
            for i, m in enumerate(mf):
                a(m)
                for o in fill.get(i, []):
                    if o == "BAR":
                        vwait("X", lg0=True); a("s_barrier")
                    else: E(o)
    slot_ops = ["s_add_u32 s37, s37, s62", "s_cmp_eq_u32 s37, %d" % (3 * SLOT), "s_cselect_b32 s37, 0, s37",
                "s_cmp_eq_u32 s37, s62", "s_cselect_b32 s93, s63, s62"]
    touch_ops = [("t", "buffer_load_dword v29, v30, s[88:91], s94 offen"), "s_add_u32 s94, s94, s95"] if TOUCH else []
    def std_misc(buf, touch):
        return xoff_ops() + xld_ops(buf ^ 1, "X") + ["s_add_u32 s36, s36, 1"] + tau_ops() + slot_ops + wdma_ops("W") + (touch_ops if touch else [])
    a(".p2align 6")
    a.label("L_g1")
    vm.q = ["W"] * 10
    step(0, std_misc(0, True))
    step(1, std_misc(1, False), loop="L_g1")
    assert vm.q == ["W"] * 10, vm.q

    VDW = 16
    g2s = [
        "s_and_b32 s4, s2, 1",
        "s_bfe_u32 s5, s2, 0x10001", "s_lshl_b32 s5, s5, 3", "s_bfe_u32 s3, s2, 0x30003", "s_add_u32 s5, s5, s3",
        "s_bfe_u32 s6, s2, 0x10002", "s_lshl_b32 s6, s6, 2", "s_lshr_b32 s3, s2, 6", "s_add_u32 s6, s6, s3",
        "s_add_u32 s7, s5, s6",
        "s_lshl_b32 s48, s4, 2", "s_lshl_b32 s49, s6, 8", "s_lshl_b32 s50, s32, 15", "s_add_u32 s50, s50, s49",
        "v_lshrrev_b32 v20, 8, v15", "v_bfe_u32 v21, v15, 5, 3", "v_xor_b32 v21, s48, v21", "v_xor_b32 v21, v21, v20",
        "v_and_b32 v22, 16, v15", "v_lshl_add_u32 v22, v20, 11, v22",
        "v_lshl_add_u32 v16, v21, 5, v22", "v_add_u32 v16, s50, v16",
        "v_xor_b32 v17, 0x80, v16", "v_add_u32 v17, %d, v17" % (8192 - 1024),
        "v_add_u32 v18, %d, v16" % (2 * (8192 - 1024)), "v_add_u32 v19, %d, v17" % (2 * (8192 - 1024)),
        "s_mul_i32 s55, s4, %d" % (1792 * 2048),
        "s_lshl_b32 s56, s32, 12", "s_add_u32 s56, s56, %d" % R2,
        "s_mov_b32 s8, s%d" % PD, "s_mov_b32 s9, s%d" % (PD + 1), "s_mov_b32 s10, %d" % (3584 * 2048),
    ]
    cpf2 = []
    if P.get("codepf", 1):
        cpf2 = ["v_lshlrev_b32 v20, 3, v15", "s_bfe_u32 s3, s2, 0x30003", "s_lshl_b32 s3, s3, 13", ("t", "buffer_load_dword v29, v20, s[4:7], s3 offen")]
    rots = []
    for u in range(4):
        rots.append((["s_add_u32 s3, s7, %d" % u, "s_and_b32 s3, s3, 3"] if ROT2 else ["s_mov_b32 s3, %d" % u]) + ["s_lshl_b32 s%d, s3, 17" % (44 + u)])
    ND, NO = 28, 8
    VW, VWO, VX, VDO = 8, 20, 24, 32 + 0
    VDO = 40
    def wops(sg):
        if sg >= ND + NO: return []
        u = sg % 4
        o = []
        if sg < ND:
            if u == 0 and sg > 0: o.append("s_add_u32 s55, s55, %d" % (4 * 131072))
            o.append("s_add_u32 s38, s55, s%d" % (44 + u))
            sd, vb = 8, VDW
        else:
            if sg == ND: o.append("s_mov_b32 s55, 0")
            elif u == 0: o.append("s_mov_b32 s55, %d" % (4 * 262144))
            o.append("s_lshl1_add_u32 s38, s%d, s55" % (44 + u))
            sd, vb = 12, VDO
        o.append("s_add_u32 m0, s56, %d" % (u * 16384))
        for q in range(4):
            o.append(("W%d" % sg, "buffer_load_dwordx4 v%d, s[%d:%d], s38 offen offset:%d lds" % (vb + q, sd, sd + 3, 1024 * q)))
        return o
    step(0, xoff_ops() + xld_ops(1, "X") + ["s_mov_b32 s93, s63"] + touch_ops + cpf2 + g2s + rots[0] + wops(0))
    atom = ["s_mov_b32 s12, s%d" % PDBG, "s_mov_b32 s13, s%d" % (PDBG + 1), "s_movk_i32 s14, 256", "v_mov_b32 v28, 1", "v_mov_b32 v20, %d" % OOB,
            "v_cmp_eq_u32 vcc, 0, v0", "v_cndmask_b32 v20, v20, v6, vcc", ("at", "buffer_atomic_add v28, v20, s[12:15], 0 offen sc0 sc1")]
    wot = []
    if TOUCH:
        wot = ["s_mov_b32 s88, s%d" % PWO, "s_mov_b32 s89, s%d" % (PWO + 1), "s_mov_b32 s90, %d" % (1024 * 2048),
               "v_lshrrev_b32 v30, 7, v15", "v_lshlrev_b32 v30, 11, v30", "v_bfe_u32 v21, v15, 4, 2", "v_lshl_add_u32 v30, v21, 8, v30",
               "s_lshr_b32 s94, s2, 3", "s_lshl2_add_u32 s94, s94, s32", "s_lshl_b32 s94, s94, 14", "s_and_b32 s3, s6, 4", "s_lshl_b32 s3, s3, 8", "s_add_u32 s94, s94, s3",
               "s_lshl_b32 s3, s4, 7", "s_add_u32 s94, s94, s3", ("t", "buffer_load_dword v29, v30, s[88:91], s94 offen")]
    step(1, atom + rots[1] + wops(1) + rots[2] + wops(2) + rots[3] + wops(3) + wot, final=True)
    stamp()

    a("s_nop 7")
    a("s_mov_b32 s50, 0xbfb8aa3b"); a("s_mov_b32 s51, 0xbfb8aa3b")
    a("s_mov_b32 s52, 1.0"); a("s_mov_b32 s53, 1.0")
    def cvt_acc(dst, src, t):
        for r in range(4): a("v_accvgpr_read_b32 v%d, a%d" % (t + r, src + r))
        a("v_cvt_pk_bf16_f32 v%d, v%d, v%d" % (dst, t, t + 1))
        a("v_cvt_pk_bf16_f32 v%d, v%d, v%d" % (dst + 1, t + 2, t + 3))
    a("s_lshl_b32 s40, s33, 1")
    a("s_lshr_b32 s3, s32, 1")
    a("s_add_u32 s40, s40, s3")
    a("s_mul_i32 s40, s40, %d" % ACT_MT)
    a("s_and_b32 s3, s32, 1")
    a("s_lshl_b32 s3, s3, 12")
    a("s_add_u32 s40, s40, s3")
    a("s_lshr_b32 s41, s34, 1")
    a("s_mul_i32 s41, s41, %d" % (7 * 8192))
    a("s_add_u32 s41, s41, s40")
    a("s_lshl_b32 s42, s57, 9")
    a("s_add_u32 s42, s42, s41")
    a("s_add_u32 s42, s42, %d" % (3 * 8192))
    a("s_lshl_b32 s3, s57, 15")
    a("s_add_u32 s41, s41, s3")
    a("s_add_u32 s43, s34, 112")
    a("s_lshl_b32 s43, s43, 13")
    a("s_add_u32 s43, s43, s40")
    def swiglu(items):
        for (G, U, T, D) in items:
            for h in (0, 2): a("v_pk_mul_f32 %s, %s, s[50:51]" % (vr(T + h, 2), vr(G + h, 2)))
        for (G, U, T, D) in items:
            for r in range(4): a("v_exp_f32 v%d, v%d" % (T + r, T + r))
            for h in (0, 2): a("v_pk_mul_f32 %s, %s, %s" % (vr(U + h, 2), vr(G + h, 2), vr(U + h, 2)))
        for (G, U, T, D) in items:
            for h in (0, 2): a("v_pk_add_f32 %s, %s, s[52:53]" % (vr(T + h, 2), vr(T + h, 2)))
        for (G, U, T, D) in items:
            for r in range(4): a("v_rcp_f32 v%d, v%d" % (T + r, T + r))
        a("s_nop 0")
        for (G, U, T, D) in items:
            for h in (0, 2): a("v_pk_mul_f32 %s, %s, %s" % (vr(U + h, 2), vr(U + h, 2), vr(T + h, 2)))
        for (G, U, T, D) in items:
            a("v_cvt_pk_bf16_f32 v%d, v%d, v%d" % (D, U, U + 1))
            a("v_cvt_pk_bf16_f32 v%d, v%d, v%d" % (D + 1, U + 2, U + 3))
    for pp in range(3):
        for m in range(4):
            g0 = accGU(2 * pp, 0, m)
            swiglu([(g0, accGU(2 * pp, 1, m), 20, g0), (accGU(2 * pp + 1, 0, m), accGU(2 * pp + 1, 1, m), 24, g0 + 2)])
            V("hs", "buffer_store_dwordx4 %s, v15, s[28:31], s41 offen offset:%d %s" % (vr(g0, 4), 1024 * m, SC))
        if pp < 2: a("s_add_u32 s41, s41, 8192")
    a("v_bfe_u32 v8, v15, 8, 1")
    a("v_lshlrev_b32 v8, 10, v8")
    a("v_lshrrev_b32 v9, 9, v15")
    a("v_lshl_add_u32 v8, v9, 8, v8")
    a("v_and_b32 v9, 0xf0, v15")
    a("v_add_u32 v8, v8, v9")
    for m in (0, 2):
        g0 = accGU(6, 0, m)
        swiglu([(accGU(6, 0, m + d), accGU(6, 1, m + d), 20 + 4 * d, g0 + 2 * d) for d in (0, 1)])
        a("s_nop 1")
        a("v_permlane16_swap_b32 v%d, v%d" % (g0, g0 + 2))
        a("v_permlane16_swap_b32 v%d, v%d" % (g0 + 1, g0 + 3))
        a("s_nop 0")
        V("hs", "buffer_store_dwordx4 %s, v8, s[28:31], s42 offen offset:%d %s" % (vr(g0, 4), 1024 * m, SC))
    stamp()
    R0, R1, R2_ = accGU(0, 1, 0), accGU(2, 1, 0), accGU(4, 1, 0)
    Qf = lambda m: R0 + 4 * m
    Kf = lambda m: R0 + 16 + 4 * (m + 1)
    VV = lambda f, m: R1 + 10 * f + 2 * (m + 1)
    Pf = lambda m: R1 + 20 + 4 * m
    Sp = lambda m: R2_ + 8 * m
    Sc = lambda m: R2_ + 8 * m + 4
    TT = lambda m: R2_ + 32 + 4 * m
    cvt_acc(Kf(3), accQ(2, 3), 20); cvt_acc(Kf(3) + 2, accQ(3, 3), 24)
    cvt_acc(VV(0, 3), accQ(4, 3), 20); cvt_acc(VV(1, 3), accQ(5, 3), 24)
    a("s_lshl_b32 s3, s32, 11")
    a("s_add_u32 s3, s3, %d" % EX)
    a("v_add_u32 v1, s3, v15")
    a("ds_write_b128 v1, %s offset:2048" % vr(Kf(3), 4))
    a("ds_write_b64 v1, %s offset:3072" % vr(VV(0, 3), 2))
    a("ds_write_b64 v1, %s offset:3080" % vr(VV(1, 3), 2))
    cvt_acc(2, HACC, 20)
    a("v_lshrrev_b32 v12, 4, v15")
    a("s_and_b32 s3, s32, 1")
    a("s_lshl_b32 s3, s3, 3")
    a("s_add_u32 s3, s3, %d" % EX)
    a("s_cmp_ge_u32 s32, 2")
    a("s_cbranch_scc1 L_hv")
    a("v_add_u32 v4, s3, v15")
    a("ds_write_b64 v4, v[2:3]")
    a("s_branch L_hd")
    a.label("L_hv")
    a("v_bfe_u32 v4, v12, 2, 2")
    a("v_lshlrev_b32 v4, 8, v4")
    a("v_lshrrev_b32 v9, 4, v12")
    a("v_lshl_add_u32 v4, v9, 6, v4")
    a("v_and_b32 v9, 3, v12")
    a("v_lshl_add_u32 v4, v9, 1, v4")
    a("v_add_u32 v4, s3, v4")
    a("ds_write_b16 v4, v2 offset:1024")
    a("ds_write_b16_d16_hi v4, v2 offset:1040")
    a("ds_write_b16 v4, v3 offset:1056")
    a("ds_write_b16_d16_hi v4, v3 offset:1072")
    a.label("L_hd")
    for m in range(4):
        cvt_acc(Qf(m), accQ(0, m), 20); cvt_acc(Qf(m) + 2, accQ(1, m), 24)
        if m < 3:
            cvt_acc(Kf(m), accQ(2, m), 20); cvt_acc(Kf(m) + 2, accQ(3, m), 24)
    a("s_waitcnt lgkmcnt(0)")
    a("s_barrier")
    a("ds_read_b128 %s, v1" % vr(Kf(-1), 4))
    a("ds_read_b64 %s, v1 offset:1024" % vr(VV(0, -1), 2))
    a("ds_read_b64 %s, v1 offset:1032" % vr(VV(1, -1), 2))
    for m in (1, 2, 3, 0):
        if m == 0: a("s_waitcnt lgkmcnt(0)")
        a("v_mfma_f32_16x16x32_bf16 %s, %s, %s, 0" % (vr(Sc(m), 4), vr(Kf(m), 4), vr(Qf(m), 4)))
        a("v_mfma_f32_16x16x32_bf16 %s, %s, %s, 0" % (vr(Sp(m), 4), vr(Kf(m - 1), 4), vr(Qf(m), 4)))
    for m in range(3):
        cvt_acc(VV(0, m), accQ(4, m), 20); cvt_acc(VV(1, m), accQ(5, m), 24)
    a("v_and_b32 v8, 15, v12")
    a("v_and_b32 v9, 1, v12")
    a("v_lshrrev_b32 v10, 4, v12")
    a("v_lshl_add_u32 v10, v10, 2, v9")
    a("v_cmp_le_u32 s[58:59], v10, v8")
    a("v_add_u32 v10, 2, v10")
    a("v_cmp_le_u32 s[60:61], v10, v8")
    a("v_cmp_ne_u32 s[62:63], 0, v9")
    a("v_lshlrev_b32 v9, 4, v9")
    a("s_or_b32 s3, s33, s32")
    a("s_cmp_eq_u32 s3, 0")
    a("s_cselect_b64 s[88:89], -1, 0")
    a("s_andn2_b64 s[90:91], s[88:89], s[60:61]")
    a("s_andn2_b64 s[88:89], s[88:89], s[58:59]")
    a("v_mov_b32 v11, 0xce6e6b28")
    a("s_mov_b32 s48, 0x3e3504f3")
    a("s_mov_b32 s49, 0x3fb8aa3b")
    M4 = range(4)
    for m in M4:
        for S_ in (Sp, Sc):
            a("v_cndmask_b32 v%d, v%d, v%d, s[62:63]" % (S_(m), S_(m), S_(m) + 1))
            a("v_cndmask_b32 v%d, v%d, v%d, s[62:63]" % (S_(m) + 2, S_(m) + 2, S_(m) + 3))
    A_ = lambda m: TT(m)
    B_ = lambda m: TT(m) + 1
    X_ = lambda m: TT(m) + 2
    Y_ = lambda m: TT(m) + 3
    for m in M4:
        a("v_cndmask_b32 v%d, v%d, v%d, s[58:59]" % (A_(m), Sp(m), Sc(m)))
        a("v_cndmask_b32 v%d, v%d, v%d, s[60:61]" % (B_(m), Sp(m) + 2, Sc(m) + 2))
    def rnd():
        for m in M4: a("v_cvt_pk_bf16_f32 v%d, v%d, v%d" % (X_(m), A_(m), B_(m)))
        for m in M4:
            a("v_lshlrev_b32 v%d, 16, v%d" % (A_(m), X_(m)))
            a("v_and_b32 v%d, s54, v%d" % (B_(m), X_(m)))
    rnd()
    for m in M4:
        a("v_mul_f32 v%d, s48, v%d" % (A_(m), A_(m)))
        a("v_mul_f32 v%d, s48, v%d" % (B_(m), B_(m)))
    rnd()
    a("v_cndmask_b32 v%d, v%d, v11, s[88:89]" % (A_(0), A_(0)))
    a("v_cndmask_b32 v%d, v%d, v11, s[90:91]" % (B_(0), B_(0)))
    a("s_lshl_b32 s92, s33, 2")
    a("s_add_u32 s92, s92, s32")
    a("s_lshl_b32 s92, s92, 7")
    a("s_lshl2_add_u32 s92, s34, s92")
    a("s_add_u32 s92, s92, %d" % F1H)
    vwait("hs")
    V("f", "buffer_store_dword v7, v6, s[84:87], s92 offen %s" % SC)
    stamp()
    def reduce(op):
        for m in M4: a("%s v%d, v%d, v%d" % (op, X_(m), A_(m), B_(m)))
        for sw in ("v_permlane16_swap_b32", "v_permlane32_swap_b32"):
            for m in M4: a("v_mov_b32 v%d, v%d" % (Y_(m), X_(m)))
            a("s_nop 1")
            for m in M4: a("%s v%d, v%d" % (sw, X_(m), Y_(m)))
            a("s_nop 1")
            for m in M4: a("%s v%d, v%d, v%d" % (op, X_(m), X_(m), Y_(m)))
    reduce("v_max_f32")
    for m in M4:
        a("v_sub_f32 v%d, v%d, v%d" % (A_(m), A_(m), X_(m)))
        a("v_sub_f32 v%d, v%d, v%d" % (B_(m), B_(m), X_(m)))
    for m in M4:
        a("v_mul_f32 v%d, s49, v%d" % (A_(m), A_(m)))
        a("v_mul_f32 v%d, s49, v%d" % (B_(m), B_(m)))
    for m in M4:
        a("v_exp_f32 v%d, v%d" % (A_(m), A_(m)))
        a("v_exp_f32 v%d, v%d" % (B_(m), B_(m)))
    a("s_nop 0")
    reduce("v_add_f32")
    for m in M4: a("v_rcp_f32 v%d, v%d" % (X_(m), X_(m)))
    a("s_nop 0")
    for m in M4:
        a("v_mul_f32 v%d, v%d, v%d" % (A_(m), A_(m), X_(m)))
        a("v_mul_f32 v%d, v%d, v%d" % (B_(m), B_(m), X_(m)))
    for m in M4: a("v_cvt_pk_bf16_f32 v%d, v%d, v%d" % (X_(m), A_(m), B_(m)))
    for m in M4:
        a("v_and_b32 v%d, 0xffff, v%d" % (A_(m), X_(m)))
        a("v_lshrrev_b32 v%d, 16, v%d" % (B_(m), X_(m)))
    for m in M4:
        a("v_lshlrev_b32 v%d, v9, v%d" % (A_(m), A_(m)))
        a("v_lshlrev_b32 v%d, v9, v%d" % (B_(m), B_(m)))
    for m in M4:
        a("v_cndmask_b32 v%d, v%d, 0, s[58:59]" % (Pf(m), A_(m)))
        a("v_cndmask_b32 v%d, v%d, 0, s[60:61]" % (Pf(m) + 1, B_(m)))
        a("v_cndmask_b32 v%d, 0, v%d, s[58:59]" % (Pf(m) + 2, A_(m)))
        a("v_cndmask_b32 v%d, 0, v%d, s[60:61]" % (Pf(m) + 3, B_(m)))
    a("s_nop 1")
    for m in M4:
        a("v_mfma_f32_16x16x32_bf16 %s, %s, %s, 0" % (vr(Sp(m), 4), vr(VV(0, m - 1), 4), vr(Pf(m), 4)))
        a("v_mfma_f32_16x16x32_bf16 %s, %s, %s, 0" % (vr(Sc(m), 4), vr(VV(1, m - 1), 4), vr(Pf(m), 4)))
    a("s_lshl_b32 s3, s5, 1")
    a("s_lshr_b32 s94, s32, 1")
    a("s_add_u32 s94, s94, s3")
    a("s_lshl_b32 s94, s94, 7")
    a("s_add_u32 s95, s94, %d" % F1O)
    a("s_lshl_b32 s3, s4, 6")
    a("s_add_u32 s94, s94, s3")
    a("s_add_u32 s94, s94, %d" % F1H)
    a("v_lshlrev_b32 v4, 2, v8")
    a("v_and_b32 v5, 31, v12")
    a("v_lshlrev_b32 v5, 2, v5")
    OS = 224
    for m in M4:
        for h in range(4):
            a("v_cvt_pk_bf16_f32 v%d, v%d, v%d" % (240 + 4 * m + h, Sp(m) + 2 * h, Sp(m) + 2 * h + 1))
        V("os", "buffer_store_dwordx4 %s, v15, s[28:31], s43 offen offset:%d %s" % (vr(240 + 4 * m, 4), 1024 * m, SC))
    V("p", "buffer_load_dword v3, v4, s[84:87], s94 offen %s" % SC)
    stamp()
    a("v_readfirstlane_b32 s3, v28")
    a("s_cmp_eq_u32 s32, 0")
    a("s_cselect_b32 s3, s3, 0")
    a("s_cmp_eq_u32 s3, 255")
    a("s_cbranch_scc0 L_noep")
    a("s_mov_b32 s3, %d" % EPOCH)
    a("buffer_store_dword v7, v6, s[84:87], s3 offen %s" % SC)
    a.label("L_noep")

    accD = lambda m, b: 64 + (b * 2 + m) * 4
    accO = lambda m, b: 128 + (b * 2 + m) * 4
    PART, XRES = 160, 192
    XB2 = lambda buf, kq, m: buf * 32 + (kq * 2 + m) * 4
    WR2 = lambda b, kh: 128 + b * 8 + kh * 4
    VW, VWO, VX = 32, 20, 24
    a("v_lshrrev_b32 v8, 2, v12")
    a("v_and_b32 v9, 3, v12")
    a("v_lshlrev_b32 v9, 3, v9")
    a("v_add_u32 v9, %d, v9" % R2)
    a("v_lshl_add_u32 v10, v8, 8, v9")
    a("v_and_b32 v11, 7, v8")
    for b in range(8):
        a("v_xor_b32 v13, %d, v11" % b)
        a("v_lshl_add_u32 v%d, v13, 5, v10" % (VW + b))
    a("v_lshl_add_u32 v10, v8, 7, v9")
    a("v_bfe_u32 v11, v12, 3, 2")
    for b in range(4):
        a("v_xor_b32 v13, %d, v11" % b)
        a("v_lshl_add_u32 v%d, v13, 5, v10" % (VWO + b))
    a("v_mov_b32 v%d, v15" % VX)
    for q in range(1, 4): a("v_add_u32 v%d, %d, v15" % (VX + q, 8192 * q))
    a("s_lshl_b32 s48, s32, 16")
    a("s_lshl_b32 s49, s6, 8")
    a("s_add_u32 s48, s48, s49")
    a("s_lshl_b32 s3, s4, 7")
    a("s_add_u32 s48, s48, s3")
    a("v_lshrrev_b32 v8, 4, v12")
    a("v_bfe_u32 v9, v12, 1, 2")
    a("v_xor_b32 v9, v9, v8")
    a("v_lshrrev_b32 v10, 3, v12")
    a("v_and_b32 v11, 16, v15")
    a("v_lshl_add_u32 v11, v10, 11, v11")
    a("v_lshl_add_u32 v11, v9, 5, v11")
    for q in range(4):
        a("s_add_u32 s3, s48, %d" % (q * 16384 - q * 1024))
        a("v_add_u32 v%d, s3, v11" % (VDO + q))
    for u in range(4): a("s_lshr_b32 s%d, s%d, 3" % (40 + u, 44 + u))
    a("s_mul_i32 s61, s5, %d" % ACT_MT)
    a("s_lshl_b32 s3, s32, 11")
    a("s_add_u32 s61, s61, s3")
    a("s_add_u32 s63, s61, %d" % (112 * 8192))
    a("s_mul_i32 s3, s4, %d" % (56 * 8192))
    a("s_add_u32 s61, s61, s3")
    srd(a, 12, PWO, 0, 1024 * 2048)
    srd(a, 16, PX, 0, 2048 * 2048)
    srd(a, 20, PWS, PART_OFF, PART_BYTES)
    srd(a, 24, POUT, 0, 2048 * 2048)
    for r in range(64, 160, 2): a("v_mov_b64 %s, 0" % vr(r, 2))
    a("v_and_b32 v2, 15, v12")
    a("v_lshlrev_b32 v2, 11, v2")
    a("v_bfe_u32 v8, v12, 4, 1")
    a("v_lshl_add_u32 v2, v8, 5, v2")
    a("v_lshrrev_b32 v8, 5, v12")
    a("v_lshl_add_u32 v2, v8, 4, v2")
    a("s_lshl_b32 s34, s5, 18")
    a("s_add_u32 s34, s34, s48")
    a("s_add_u32 s35, s34, 32768")
    a("s_lshl_b32 s57, s2, 15")
    a("s_lshl_b32 s3, s32, 13")
    a("s_add_u32 s57, s57, s3")
    a("s_add_u32 s58, s57, 4096")
    a("s_xor_b32 s59, s57, 0x8000")
    a("s_add_u32 s60, s59, 4096")
    a("s_lshl_b32 s88, s2, 4")
    a("s_lshl2_add_u32 s88, s32, s88")
    a("s_add_u32 s88, s88, %d" % F2)
    a("s_xor_b32 s89, s88, 16")

    def xops(sg):
        if sg >= ND + NO: return []
        u = sg % 4
        o = []
        if sg < ND:
            if u == 0 and sg > 0: o.append("s_add_u32 s61, s61, %d" % (4 * 16384))
            o.append("s_add_u32 s39, s61, s%d" % (40 + u))
            nk = 2
        else:
            if u == 0 and sg > ND: o.append("s_add_u32 s63, s63, %d" % (4 * 32768))
            o.append("s_lshl1_add_u32 s39, s%d, s63" % (40 + u))
            nk = 4
        for kq in range(nk):
            for m in range(2):
                o.append(("X%d" % sg, "buffer_load_dwordx4 %s, v%d, s[28:31], s39 offen offset:%d %s" % (ar(XB2(u, kq, m), 4), VX + kq, 1024 * m, XSC)))
        return o
    def wreads2(sg, b):
        o = []
        u = sg % 4
        for kh in range(2):
            for s2 in range(2):
                if sg < ND: v, off = VW + b, u * 16384 + (32 * kh + 16 * s2) * 256
                else: v, off = VWO + b % 4, u * 16384 + (64 * (b // 4) + 32 * kh + 16 * s2) * 128
                o.append("ds_read_b64_tr_b16 %s, v%d offset:%d" % (ar(WR2(b, kh) + 2 * s2, 2), v, off))
        return o
    def mfmas2(sg, b):
        o = []
        u = sg % 4
        for m in range(2):
            for kh in range(2):
                if sg < ND: c, x = accD(m, b), XB2(u, kh, m)
                else: c, x = accO(m, b % 4), XB2(u, 2 * (b // 4) + kh, m)
                o.append("v_mfma_f32_16x16x32_bf16 %s, %s, %s, %s" % (vr(c, 4), ar(WR2(b, kh), 4), ar(x, 4), vr(c, 4)))
        return o
    check_flags(3, 4, "s94", "p", "L_f1")
    a("s_add_u32 s92, s92, %d" % (F1O - F1H))
    V("f", "buffer_store_dword v7, v6, s[84:87], s92 offen %s" % SC)
    stamp()
    for sg in range(3):
        for o in xops(sg): E(o)
    a("s_barrier")
    lg = Cnt()
    for b in range(4):
        for o in wreads2(0, b): a(o); lg.issue((0, b))
    a("s_mov_b32 s37, 0")
    vwait("X0")
    stamp()

    def stage(sg, extra1=(), extra2=(), loopend=None, pre=None):
        last = sg == ND + NO - 1
        if pre: pre()
        h1 = xops(sg + 3) + list(extra1)
        h2 = wops(sg + 4) + list(extra2)
        r1 = [((sg, b), o) for b in range(4, 8) for o in wreads2(sg, b)]
        r2 = [] if last else [((sg + 1, b), o) for b in range(4) for o in wreads2(sg + 1, b)]
        plan = {}
        for k, x in enumerate(r1): plan.setdefault(k * 12 // 16, []).append(("r",) + x)
        for k, x in enumerate(h1): plan.setdefault(min(15, (5 + k * 11 // max(1, len(h1))) if len(h1) <= 6 else k * 16 // len(h1)), []).append(("o", x))
        for k, x in enumerate(r2): plan.setdefault(16 + k, []).append(("r",) + x)
        for k, x in enumerate(h2): plan.setdefault(16 + k * 16 // len(h2), []).append(("o", x))
        g = 0
        for b in range(8):
            w = lg.need((sg, b))
            if w is not None: a("s_waitcnt lgkmcnt(%d)" % w)
            for mf in mfmas2(sg, b):
                a(mf)
                for x in plan.get(g, []):
                    if x[0] == "r": a(x[2]); lg.issue(x[1])
                    else: E(x[1])
                if g == 15 and not last:
                    vwait("W%d" % (sg + 1), "X%d" % (sg + 1), lg0=True)
                    a("s_barrier")
                    lg.clear()
                if g == 31 and loopend:
                    a("s_add_u32 s37, s37, 1")
                    a("s_cmp_lt_u32 s37, 6")
                    a("s_cbranch_scc1 %s" % loopend)
                g += 1
    a(".p2align 6")
    a.label("L_g2")
    steady = ["X1"] * 4 + ["W2"] * 4 + ["X2"] * 4 + ["W3"] * 4
    first = list(vm.q)
    assert first == ["X1"] * 4 + ["X2"] * 4, first
    FIRST_PEEL = True
    a.lines.pop(); a.lines.pop()
    for sg in range(4): stage(sg)
    shift = lambda q, d: [t[0] + str(int(t[1:]) + d) for t in q]
    q0 = list(vm.q)
    a("s_mov_b32 s37, 1")
    a(".p2align 6")
    a.label("L_g2")
    for sg in range(4, 8): stage(sg, loopend="L_g2" if sg == 7 else None)
    assert vm.q == shift(q0, 4), (vm.q, q0)
    vm.q = shift(q0, 20)
    lg.q = [(24, t[1]) for t in lg.q]
    V("p", "buffer_load_dword v3, v5, s[84:87], s95 offen %s" % SC)
    stage(24)
    stage(25, pre=lambda: check_flags(3, 5, "s95", "p", "L_f2"))
    stage(26), stage(27)
    stamp()
    a("s_nop 7")
    for k in range(8):
        V("S", "buffer_store_dwordx4 %s, v%d, s[20:23], s%d offen offset:%d %s" % (vr(accD(0, 4) + 4 * k, 4), VX, 57 + k // 4, 1024 * (k % 4), SC))
    xres = [("R", "buffer_load_dwordx4 %s, v2, s[16:19], s%d offen offset:%d" % (vr(XRES + 4 * (2 * m + bp), 4), 34 + m, 64 * bp)) for m in range(2) for bp in range(2)]
    parts = [("P%d" % k, "buffer_load_dwordx4 %s, v%d, s[20:23], s%d offen offset:%d %s" % (vr(PART + 4 * k, 4), VX, 59 + k // 4, 1024 * (k % 4), SC)) for k in range(8)]
    stage(28)
    stage(29)
    vwait("S")
    V("f", "buffer_store_dword v7, v6, s[84:87], s88 offen %s" % SC)
    stage(30), stage(31), stage(32)
    stage(33, extra1=xres, extra2=[("p", "buffer_load_dword v3, v6, s[84:87], s89 offen %s" % SC)])
    stage(34)
    stage(35, pre=lambda: check_flags(3, 6, "s89", "p", "L_f3"), extra1=parts)
    stamp()
    a("s_nop 7")
    def round4(R, T):
        a("v_cvt_pk_bf16_f32 v%d, v%d, v%d" % (T, R, R + 1))
        a("v_cvt_pk_bf16_f32 v%d, v%d, v%d" % (T + 1, R + 2, R + 3))
        a("v_lshlrev_b32 v%d, 16, v%d" % (R, T))
        a("v_and_b32 v%d, s54, v%d" % (R + 1, T))
        a("v_lshlrev_b32 v%d, 16, v%d" % (R + 2, T + 1))
        a("v_and_b32 v%d, s54, v%d" % (R + 3, T + 1))
    for k in range(8): round4(accO(0, 0) + 4 * k, 8 + 2 * (k % 2))
    for k in range(8):
        Y, T = accD(0, 0) + 4 * k, PART + 4 * k
        vwait("P%d" % k)
        for h in (0, 2): a("v_pk_add_f32 %s, %s, %s" % (vr(Y + h, 2), vr(Y + h, 2), vr(T + h, 2)))
        round4(Y, 8)
        for h in (0, 2): a("v_pk_mul_f32 %s, %s, s[50:51]" % (vr(T + h, 2), vr(Y + h, 2)))
        for r in range(4): a("v_exp_f32 v%d, v%d" % (T + r, T + r))
    a("s_nop 0")
    for k in range(8):
        Y, T = accD(0, 0) + 4 * k, PART + 4 * k
        for h in (0, 2): a("v_pk_add_f32 %s, %s, s[52:53]" % (vr(T + h, 2), vr(T + h, 2)))
        for r in range(4): a("v_rcp_f32 v%d, v%d" % (T + r, T + r))
    a("s_nop 0")
    for m in range(2):
        for bp in range(2):
            D = 32 + 4 * (2 * m + bp)
            for be in range(2):
                b = 2 * bp + be
                Y, T, S = accD(m, b), PART + (accD(m, b) - accD(0, 0)), accO(m, b)
                for h in (0, 2): a("v_pk_mul_f32 %s, %s, %s" % (vr(Y + h, 2), vr(Y + h, 2), vr(T + h, 2)))
                round4(Y, 8)
                for h in (0, 2): a("v_pk_mul_f32 %s, %s, %s" % (vr(Y + h, 2), vr(Y + h, 2), vr(S + h, 2)))
                a("v_cvt_pk_bf16_f32 v%d, v%d, v%d" % (D + 2 * be, Y, Y + 1))
                a("v_cvt_pk_bf16_f32 v%d, v%d, v%d" % (D + 2 * be + 1, Y + 2, Y + 3))
            a("s_nop 1")
            a("v_permlane16_swap_b32 v%d, v%d" % (D, D + 2))
            a("v_permlane16_swap_b32 v%d, v%d" % (D + 1, D + 3))
            a("s_nop 1")
            Xr = XRES + 4 * (2 * m + bp)
            for r in range(4):
                a("v_lshlrev_b32 v48, 16, v%d" % (D + r))
                a("v_and_b32 v49, s54, v%d" % (D + r))
                a("v_lshlrev_b32 v50, 16, v%d" % (Xr + r))
                a("v_and_b32 v51, s54, v%d" % (Xr + r))
                a("v_pk_add_f32 v[48:49], v[48:49], v[50:51]")
                a("v_cvt_pk_bf16_f32 v%d, v48, v49" % (D + r))
            a("buffer_store_dwordx4 %s, v2, s[24:27], s%d offen offset:%d" % (vr(D, 4), 34 + m, 64 * bp))
    if prof:
        stamp()
        a("s_waitcnt vmcnt(0)")
        stamp()
        srd(a, 8, PWS, STAMP_OFF, 65536)
        a("s_lshl_b32 s3, s2, 7")
        a("v_lshl_add_u32 v8, v0, 2, s3")
        a("v_cmp_gt_u32 vcc, 32, v0")
        a("s_and_b64 exec, exec, vcc")
        a("s_cbranch_execz L_end")
        a("buffer_store_dword v31, v8, s[8:11], 0 offen")
    a.label("L_end")
    a("s_endpgm")
    desc(a, name, 256 + NAGPR, 100, 256)
    hdr = open("recurrent_scan__sliding_local_dilated__swiglu_ffn__prompt.s.ref").read().split("; Override launch")[0]
    if P.get("aslist", 1):
        hdr += "; @launch kernel=%s grid=(256,1,1) block=(256,1,1) lds=%d\n" % (name, LDS_BYTES)
    else:
        hdr += "; @launch grid=(256,1,1) block=(256,1,1) lds=%d\n" % LDS_BYTES
    return hdr + a.text()

if __name__ == "__main__":
    P = json.loads(sys.argv[2]) if len(sys.argv) > 2 else {}
    open(sys.argv[1], "w").write(gen(P))
```

```python
import sys, json
sys.path.insert(0, "dev")
from gen_common import *

MAIN = "recurrent_scan__sliding_local_dilated__swiglu_ffn__prompt_kernel"
SLOT = 40960
GATE, UP, QKV = 0, 14336, 28672
EX = 3 * SLOT
LDS_BYTES = EX + 5 * 2048 + 256
LNX = EX + 5 * 2048
R2 = SLOT
F0, F1H, F1O, F2, EPOCH = 0, 4096, 8192, 12288, 65536
NONCE_ADD = 0x6A09E667
OOB = 0x40000000
SC = "sc1"

class Cnt:
    def __init__(self, init=(), cap=15):
        self.q = list(init); self.cap = cap
    def issue(self, tag): self.q.append(tag)
    def need(self, *tags):
        idx = [i for i, t in enumerate(self.q) if t in tags]
        if not idx: return None
        last = max(idx)
        n = len(self.q) - 1 - last
        self.q = self.q[last + 1:]
        return min(n, self.cap)
    def clear(self): self.q = []

def gen(P):
    a = Asm()
    name = MAIN
    prof = P.get("prof")
    nst = [0]
    probe = P.get("probe")
    def stamp():
        if probe is not None:
            if nst[0] == probe:
                a("s_memrealtime s[98:99]")
                a("s_waitcnt lgkmcnt(0)")
            nst[0] += 1
            return
        if not prof: return
        a("%s s[98:99]" % ("s_memtime" if prof == 2 else "s_memrealtime"))
        a("s_waitcnt lgkmcnt(0)")
        a("v_writelane_b32 v31, s98, %d" % nst[0])
        nst[0] += 1
    XSC = P.get("xsc", "sc1")
    ROT1 = P.get("g1_rot", 0)
    ROT2 = P.get("g2_rot", 1)
    TOUCH = P.get("touch", 1)
    vm = Cnt(cap=63)
    def V(tag, s):
        vm.issue(tag)
        if s.endswith("lds") and a.lines[-1].strip().startswith("s_add_u32 m0"): a("s_nop 0")
        a(s)
    def vwait(*tags, lg0=False):
        n = vm.need(*tags)
        parts = ([] if n is None else ["vmcnt(%d)" % n]) + (["lgkmcnt(0)"] if lg0 else [])
        if parts: a("s_waitcnt " + " ".join(parts))
    def check_flags(vreg, voff, soff, tag, label):
        vwait(tag)
        a("v_cmp_ne_u32 vcc, s96, v%d" % vreg)
        a("s_cbranch_vccz %s_ok" % label)
        a("s_mov_b32 s97, 0")
        a.label(label + "_spin")
        a("s_sleep 1")
        a("buffer_load_dword v%d, v%d, s[84:87], %s offen %s" % (vreg, voff, soff, SC))
        a("s_add_u32 s97, s97, 1")
        a("s_waitcnt vmcnt(0)")
        a("s_cmp_gt_u32 s97, 0x80000")
        a("s_cbranch_scc1 %s_ok" % label)
        a("v_cmp_ne_u32 vcc, s96, v%d" % vreg)
        a("s_cbranch_vccnz %s_spin" % label)
        a.label(label + "_ok")

    accGU = lambda p, gu, m: 32 + ((p * 2 + gu) * 4 + m) * 4
    accQ = lambda s, m: (s * 4 + m) * 4
    HACC = 96
    XB = lambda buf, m, kh: 100 + buf * 40 + (m * 2 + kh) * 4
    WR = lambda slot, kh: 180 + slot * 8 + kh * 4
    HW = lambda kh: 212 + kh * 4
    NAGPR = 220

    a.raw('.amdgcn_target "amdgcn-amd-amdhsa--gfx950"')
    kernel_header(a, name)
    a("s_cmp_ge_u32 s2, 256")
    a("s_cbranch_scc1 L_end")
    if P.get("badmap"):
        a("s_lshr_b32 s3, s2, 5"); a("s_and_b32 s2, s2, 31"); a("s_lshl_b32 s2, s2, 3"); a("s_or_b32 s2, s2, s3")
    a("s_load_dwordx16 s[64:79], s[0:1], 0")
    a("s_load_dwordx4 s[80:83], s[0:1], 64")
    if P.get("codepf", 1):
        a("s_getpc_b64 s[4:5]")
        a.label("L_pc")
        a("s_mov_b32 s6, L_end-L_pc")
        a("s_mov_b32 s7, 0x20000")
        a("v_and_b32 v1, 63, v0")
        a("v_lshlrev_b32 v1, 7, v1")
        a("s_bfe_u32 s3, s2, 0x30003")
        a("s_lshl_b32 s3, s3, 13")
        V("c", "buffer_load_dword v29, v1, s[4:7], s3 offen")
    if prof: a("v_mov_b32 v31, 0")
    stamp()
    PX, PQKV, PWO, PG, PU, PD, POUT, PDBG, PWS = 64, 66, 68, 72, 74, 76, 78, 80, 82
    a("v_and_b32 v17, 63, v0")
    a("v_lshrrev_b32 v16, 6, v0")
    a("v_lshrrev_b32 v18, 3, v17")
    a("v_and_b32 v19, 7, v17")
    a("v_readfirstlane_b32 s32, v16")
    a("v_lshlrev_b32 v20, 11, v18")
    a("v_lshl_add_u32 v20, v16, 9, v20")
    a("v_lshl_add_u32 v20, v19, 4, v20")
    a("s_and_b32 s34, s2, 7")
    a("s_lshl_b32 s34, s34, 2")
    a("s_bfe_u32 s35, s2, 0x20003")
    a("s_add_u32 s34, s34, s35")
    a("s_lshr_b32 s33, s2, 5")
    a("s_lshl_b32 s36, s33, 5")
    a("s_add_u32 s36, s36, s34")
    a("s_lshl_b32 s37, s36, 14")
    a("v_mov_b32 v6, 0")
    a("s_waitcnt lgkmcnt(0)")
    srd(a, 48, PX, 0, 2048 * 2048)
    LX = 32
    for u in range(4):
        V("x", "buffer_load_dwordx4 %s, v20, s[48:51], s37 offen offset:%d" % (vr(LX + 4 * u, 4), 128 * u))
    srd(a, 84, PWS, FLAG_OFF, FLAG_BYTES)
    a("s_mov_b32 s3, %d" % EPOCH)
    V("x", "buffer_load_dword v7, v6, s[84:87], s3 offen")
    stamp()
    a("s_and_b32 s57, s34, 1")
    a("s_lshr_b32 s58, s34, 1")
    a("s_mul_i32 s58, s58, 448")
    if TOUCH:
        a("s_cmp_eq_u32 s32, 1")
        a("s_cselect_b32 s88, s%d, s%d" % (PU, PG)); a("s_cselect_b32 s89, s%d, s%d" % (PU + 1, PG + 1))
        a("s_cmp_eq_u32 s32, 3")
        a("s_cselect_b32 s88, s%d, s88" % PD); a("s_cselect_b32 s89, s%d, s89" % (PD + 1))
        a("s_cbranch_scc1 L_t3")
        a("s_mul_i32 s3, s57, 208")
        a("s_add_u32 s3, s3, s58")
        a("s_movk_i32 s92, 7168")
        a("s_movk_i32 s93, 118")
        a("s_mov_b32 s90, %d" % (1024 * 7168))
        a("s_cmp_eq_u32 s32, 2")
        a("s_cbranch_scc0 L_t01")
        a("s_mov_b32 s88, s%d" % PQKV); a("s_mov_b32 s89, s%d" % (PQKV + 1))
        a("s_lshl_b32 s3, s34, 6")
        a("s_movk_i32 s92, 6144")
        a("s_movk_i32 s93, 2048")
        a("s_mov_b32 s90, %d" % (1024 * 6144))
        a.label("L_t01")
        a("v_lshrrev_b32 v21, 2, v17")
        a("v_and_b32 v22, 3, v17")
        a("v_mul_u32_u24 v30, s92, v21")
        a("v_mul_u32_u24 v23, s93, v22")
        a("v_and_b32 v23, -4, v23")
        a("v_add3_u32 v30, v30, v23, s3")
        a("v_cmp_eq_u32 vcc, 3, v22")
        a("v_mov_b32 v23, %d" % OOB)
        a("s_lshl_b32 s94, s33, 4")
        a("v_cndmask_b32 v30, v30, v23, vcc")
        a("s_mul_i32 s94, s94, s92")
        a("s_lshl_b32 s95, s92, 7")
        a("s_branch L_td")
        a.label("L_t3")
        a("v_lshlrev_b32 v30, 11, v18")
        a("v_lshl_add_u32 v30, v19, 7, v30")
        a("s_and_b32 s3, s2, 1")
        a("s_add_u32 s3, s3, 1")
        a("s_mul_i32 s90, s3, %d" % (1792 * 2048))
        a("s_lshr_b32 s94, s2, 3")
        a("s_lshl_b32 s94, s94, 14")
        a("s_add_u32 s94, s94, s90")
        a("s_bfe_u32 s3, s2, 0x10002")
        a("s_lshl_b32 s3, s3, 10")
        a("s_add_u32 s94, s94, s3")
        a("s_add_u32 s94, s94, %d" % (2 * 256 * 2048))
        a("s_mov_b32 s95, %d" % ((-256 * 2048) & 0xffffffff))
        a.label("L_td")
        a("s_mov_b32 s91, 0x20000")
        for k in range(P.get("early_touch", 1)):
            V("t", "buffer_load_dword v29, v30, s[88:91], s94 offen")
            a("s_add_u32 s94, s94, s95")
    a("v_lshlrev_b32 v21, 17, v16")
    a("v_lshrrev_b32 v22, 2, v19")
    a("v_lshl_add_u32 v21, v22, 10, v21")
    a("v_and_b32 v22, 3, v19")
    a("v_lshl_add_u32 v21, v22, 8, v21")
    a("v_lshl_add_u32 v28, v18, 4, v21")
    a("s_lshl_b32 s50, s33, 19")
    a("s_lshr_b32 s51, s34, 1")
    a("s_lshl_b32 s51, s51, 11")
    a("s_add_u32 s50, s50, s51")
    a("s_lshl_b32 s51, s57, 7")
    a("s_add_u32 s50, s50, s51")
    a("s_add_u32 s51, s50, 32768")
    a("s_add_u32 s52, s50, 65536")
    a("s_add_u32 s53, s50, 98304")
    a("v_lshlrev_b32 v26, 5, v18")
    a("v_add_u32 v26, %d, v26" % LNX)
    a("v_lshl_add_u32 v27, v16, 3, v26")
    srd(a, 24, PWS, XN_OFF, 0)
    a("s_add_u32 s26, s33, 1")
    a("s_lshl_b32 s26, s26, 19")
    a("s_mov_b32 s54, 0xffff0000")

    def g1_setup(hook):
        a("v_lshlrev_b32 v15, 4, v17")
        a("v_lshrrev_b32 v18, 2, v17")
        a("v_and_b32 v19, 3, v17")
        a("v_lshlrev_b32 v19, 3, v19")
        a("s_movk_i32 s3, 224")
        a("v_mad_u32_u24 v1, v18, s3, v19")
        a("v_and_b32 v20, 1, v17")
        a("v_lshlrev_b32 v20, 4, v20")
        a("v_and_b32 v21, 2, v17")
        a("v_lshl_add_u32 v20, v21, 2, v20")
        a("v_mad_u32_u24 v5, v18, s3, v20")
        a("s_movk_i32 s3, 192")
        a("v_mad_u32_u24 v2, v18, s3, v19")
        a("v_add_u32 v2, %d, v2" % QKV)
        a("v_and_b32 v19, 16, v17")
        a("v_lshlrev_b32 v19, 1, v19")
        a("v_xor_b32 v20, 32, v19")
        a("v_add_u32 v3, v2, v20")
        a("v_add_u32 v2, v2, v19")
        a("s_and_b32 s3, s32, 1")
        a("s_cmp_eq_u32 s3, 1")
        a("s_cselect_b64 vcc, -1, 0")
        a("v_cndmask_b32 v4, v2, v3, vcc")
        a("s_lshr_b32 s3, s32, 1")
        a("s_lshl_b32 s3, s3, 6")
        a("s_add_u32 s3, s3, 64")
        a("v_add_u32 v4, s3, v4")
        def krow(dst, rho, t1):
            a("v_and_b32 v%d, 35, v%d" % (dst, rho))
            a("v_bfe_u32 v%d, v%d, 2, 2" % (t1, rho))
            a("v_lshl_or_b32 v%d, v%d, 3, v%d" % (dst, t1, dst))
            a("v_bfe_u32 v%d, v%d, 4, 1" % (t1, rho))
            a("v_lshl_or_b32 v%d, v%d, 2, v%d" % (dst, t1, dst))
        a("s_mul_i32 s56, s32, 192")
        a("s_lshl_b32 s59, s34, 6")
        a("s_movk_i32 s60, 4682")
        a("s_movk_i32 s61, 5462")
        a("s_movk_i32 s62, 7168")
        a("s_movk_i32 s63, 6144")
        a("s_lshl_b32 s48, s57, 4")
        a("s_sub_u32 s49, s57, 12")
        def gu_off(dst, imm):
            a("v_mul_u32_u24 v21, s60, v20")
            a("v_lshrrev_b32 v21, 16, v21")
            a("v_mul_u32_u24 v22, 14, v21")
            a("v_sub_u32 v22, v20, v22")
            a("v_cmp_gt_u32 vcc, 12, v22")
            a("v_lshl_add_u32 v23, v22, 1, s49")
            a("v_add_u32 v22, s48, v22")
            a("v_cndmask_b32 v22, v23, v22, vcc")
            krow(24, 21, 23)
            a("v_lshlrev_b32 v22, 4, v22")
            a("v_mad_u32_u24 v%d, v24, s62, v22" % dst)
            a("s_sub_u32 s3, s58, %d" % imm)
            a("v_add_u32 v%d, s3, v%d" % (dst, dst))
        def qkv_off(dst, imm):
            a("v_mul_u32_u24 v21, s61, v20")
            a("v_lshrrev_b32 v21, 16, v21")
            a("v_mul_u32_u24 v22, 12, v21")
            a("v_sub_u32 v22, v20, v22")
            a("v_lshrrev_b32 v23, 1, v21")
            a("v_and_b32 v23, 2, v23")
            a("v_xor_b32 v22, v22, v23")
            a("v_lshrrev_b32 v25, 2, v22")
            a("v_and_b32 v22, 3, v22")
            a("v_lshlrev_b32 v22, 4, v22")
            a("v_lshl_add_u32 v22, v25, 11, v22")
            krow(24, 21, 23)
            a("v_mad_u32_u24 v%d, v24, s63, v22" % dst)
            a("s_sub_u32 s3, s59, %d" % imm)
            a("v_add_u32 v%d, s3, v%d" % (dst, dst))
        for q in range(3):
            a("s_add_u32 s3, s56, %d" % (64 * q))
            a("v_add_u32 v20, s3, v17")
            gu_off(8 + q, 1024 * q)
            qkv_off(11 + q, 1024 * q)
            if q == P.get("flagq", 1): hook()
        a("s_and_b32 s3, s32, 1")
        a("s_lshl_b32 s3, s3, 6")
        a("s_add_u32 s3, s3, 768")
        a("v_add_u32 v20, s3, v17")
        gu_off(14, 0)
        a("s_mul_i32 s43, s32, 3072")
        a("s_add_u32 s44, s43, %d" % UP)
        a("s_add_u32 s45, s43, %d" % QKV)
        a("s_lshr_b32 s46, s32, 1")
        a("s_mul_i32 s46, s46, %d" % UP)
        a("s_and_b32 s3, s32, 1")
        a("s_lshl_b32 s3, s3, 10")
        a("s_add_u32 s46, s46, s3")
        a("s_add_u32 s46, s46, 12288")
        a("s_lshl_b32 s60, s33, 19")
        a("s_lshl_b32 s3, s32, 13")
        a("s_add_u32 s60, s60, s3")
        a("s_max_u32 s61, s33, 1")
        a("s_sub_u32 s61, s61, 1")
        a("s_lshl_b32 s59, s61, 9")
        a("s_lshl_b32 s61, s61, 19")
        a("s_add_u32 s61, s61, %d" % (3 * 8192 + 3 * 2048))
        a("s_mov_b32 s62, %d" % SLOT)
        a("s_mov_b32 s63, %d" % ((-2 * SLOT) & 0xffffffff))
        if ROT1:
            a("s_lshl_b32 s35, s35, 1")
            a("s_add_u32 s35, s35, s33")
            a("s_and_b32 s35, s35, 7")
        srd(a, 8, PG, 0, 1024 * 7168)
        srd(a, 12, PU, 0, 1024 * 7168)
        srd(a, 16, PQKV, 0, 1024 * 6144)
        srd(a, 28, PWS, ACT_OFF, ACT_BYTES)
        a("s_lshl_b32 s3, s33, 9")
        a("s_lshl_b32 s48, s32, 7")
        a("s_add_u32 s3, s3, s48")
        a("v_lshl_add_u32 v20, v17, 2, s3")
        a("v_and_b32 v21, 7, v17")
        a("s_add_u32 s59, s59, 480")
        a("v_lshl_add_u32 v21, v21, 2, s59")
        a("v_cmp_gt_u32 vcc, 32, v17")
        a("s_nop 1")
        a("v_cndmask_b32 v25, v21, v20, vcc")
    vwait("x")
    stamp()
    a("v_readfirstlane_b32 s96, v7")
    X, T = 48, 80
    a("s_mov_b32 s3, 0x3f803f80")
    a("v_mov_b32 v116, s3")
    for r in range(16):
        c1 = "0" if r < 2 else "v%d" % (112 + 2 * (r % 2))
        c2 = "0" if r < 2 else "v%d" % (113 + 2 * (r % 2))
        a("v_dot2_f32_bf16 v%d, v%d, v116, %s" % (112 + 2 * (r % 2), LX + r, c1))
        a("v_dot2_f32_bf16 v%d, v%d, v%d, %s" % (113 + 2 * (r % 2), LX + r, LX + r, c2))
    a("s_add_u32 s96, s96, 0x%x" % NONCE_ADD)
    a("s_nop 1")
    a("v_pk_add_f32 v[112:113], v[112:113], v[114:115]")
    for m in ("quad_perm:[1,0,3,2]", "quad_perm:[2,3,0,1]", "row_half_mirror"):
        a("s_nop 0" if m != "quad_perm:[1,0,3,2]" else "s_nop 1")
        for v in (112, 113):
            a("v_add_f32_dpp v%d, v%d, v%d %s row_mask:0xf bank_mask:0xf" % (v, v, v, m))
    a("ds_write_b64 v27, v[112:113]")
    for r in range(8):
        a("v_lshlrev_b32 v%d, 16, v%d" % (X + 2 * r, LX + r))
        a("v_and_b32 v%d, s54, v%d" % (X + 2 * r + 1, LX + r))
    a("s_waitcnt lgkmcnt(0)")
    a("s_barrier")
    a("ds_read_b128 v[80:83], v26")
    a("ds_read_b128 v[84:87], v26 offset:16")
    for r in range(8, 16):
        a("v_lshlrev_b32 v%d, 16, v%d" % (X + 2 * r, LX + r))
        a("v_and_b32 v%d, s54, v%d" % (X + 2 * r + 1, LX + r))
    a("s_waitcnt lgkmcnt(0)")
    a("v_pk_add_f32 v[80:81], v[80:81], v[82:83]")
    a("v_pk_add_f32 v[84:85], v[84:85], v[86:87]")
    a("v_pk_add_f32 v[80:81], v[80:81], v[84:85]")
    a("v_mul_f32 v88, 0x3a800000, v80")
    a("v_mul_f32 v81, 0x3a800000, v81")
    a("v_fma_f32 v81, -v88, v88, v81")
    a("v_max_f32 v81, 0, v81")
    a("v_cvt_pk_bf16_f32 v88, v88, v81")
    a("v_and_b32 v81, s54, v88")
    a("v_lshlrev_b32 v88, 16, v88")
    a("v_add_f32 v81, 0x3727c5ac, v81")
    a("v_cvt_pk_bf16_f32 v81, v81, v81")
    a("v_and_b32 v81, s54, v81")
    a("v_sqrt_f32 v81, v81")
    a("s_nop 0")
    a("v_cvt_pk_bf16_f32 v81, v81, v81")
    a("v_and_b32 v81, s54, v81")
    a("v_rcp_f32 v90, v81")
    a("v_sub_f32 v88, 0, v88")
    a("v_mov_b32 v89, v88")
    a("v_mov_b32 v91, v90")
    for u in range(4):
        R = range(4 * u, 4 * u + 4)
        for r in R: a("v_pk_add_f32 %s, %s, v[88:89]" % (vr(X + 2 * r, 2), vr(X + 2 * r, 2)))
        for r in R: a("v_cvt_pk_bf16_f32 v%d, v%d, v%d" % (LX + r, X + 2 * r, X + 2 * r + 1))
        for r in R:
            a("v_lshlrev_b32 v%d, 16, v%d" % (X + 2 * r, LX + r))
            a("v_and_b32 v%d, s54, v%d" % (X + 2 * r + 1, LX + r))
        for r in R: a("v_pk_mul_f32 %s, %s, v[90:91]" % (vr(X + 2 * r, 2), vr(X + 2 * r, 2)))
        for r in R: a("v_cvt_pk_bf16_f32 v%d, v%d, v%d" % (LX + r, X + 2 * r, X + 2 * r + 1))
        V("xs", "buffer_store_dwordx4 %s, v28, s[24:27], s%d offen %s" % (vr(LX + 4 * u, 4), 50 + u, SC))
    stamp()
    a("s_lshl_b32 s92, s36, 4")
    a("s_lshl2_add_u32 s92, s32, s92")
    a("v_mov_b32 v7, s96")
    def flag0():
        vwait("xs")
        V("f", "buffer_store_dword v7, v6, s[84:87], s92 offen %s" % SC)
        stamp()
    g1_setup(flag0)
    a("s_cmp_lt_u32 s32, 2")
    a("s_cselect_b32 s20, s%d, s%d" % (PG, PU))
    a("s_cselect_b32 s21, s%d, s%d" % (PG + 1, PU + 1))
    a("s_mov_b32 s22, %d" % (1024 * 7168))
    a("s_mov_b32 s23, 0x20000")

    def tau_ops():
        if ROT1:
            o = ["s_add_u32 s3, s36, s35", "s_and_b32 s3, s3, 7", "s_andn2_b32 s47, s36, 7", "s_or_b32 s47, s47, s3"]
        else:
            o = ["s_mov_b32 s47, s36"]
        return o + ["s_mul_i32 s38, s47, 458752", "s_mul_i32 s39, s47, 393216"]
    def xoff_ops():
        return ["s_lshl_b32 s40, s47, 15", "s_add_u32 s42, s40, s61", "s_add_u32 s40, s40, s60", "s_add_u32 s41, s40, 4096"]
    def wdma_ops(tag):
        o = []
        for (mreg, sd, vb, so) in ((43, 8, 8, 38), (44, 12, 8, 38), (45, 16, 11, 39)):
            o.append("s_add_u32 m0, s37, s%d" % mreg)
            for q in range(3):
                o.append((tag, "buffer_load_dwordx4 v%d, s[%d:%d], s%d offen offset:%d lds" % (vb + q, sd, sd + 3, so, 1024 * q)))
        o.append("s_add_u32 m0, s37, s46")
        o.append((tag, "buffer_load_dwordx4 v14, s[20:23], s38 offen lds"))
        return o
    def xld_ops(buf, tag):
        o = []
        for f in range(8):
            o.append((tag, "buffer_load_dwordx4 %s, v15, s[24:27], s%d offen offset:%d %s" % (ar(XB(buf, f // 2, f % 2), 4), 40 + f // 4, 1024 * (f % 4), XSC)))
        for kh in range(2):
            o.append((tag, "buffer_load_dwordx4 %s, v15, s[24:27], s42 offen offset:%d %s" % (ar(XB(buf, 4, kh), 4), 1024 * kh, XSC)))
        return o
    def E(o):
        if isinstance(o, tuple): V(*o)
        else: a(o)

    a("s_mov_b32 s36, 0"); a("s_mov_b32 s37, 0")
    for o in tau_ops() + wdma_ops("W0") + xoff_ops(): E(o)

    V("p", "buffer_load_dword v24, v25, s[84:87], 0 offen %s" % SC)
    stamp()
    for r in range(32, 256, 2): a("v_mov_b64 %s, 0" % vr(r, 2))
    for r in range(0, 100, 4): a("v_mfma_f32_16x16x32_bf16 %s, v[48:51], v[48:51], 0" % ar(r, 4))
    check_flags(24, 25, "0", "p", "L_f0")
    stamp()
    for o in xld_ops(0, "X0"): E(o)
    a("s_mov_b32 s36, 1"); a("s_mov_b32 s37, %d" % SLOT)
    for o in tau_ops() + wdma_ops("W"): E(o)
    if TOUCH:
        for k in range(2 - P.get("early_touch", 1)):
            V("t", "buffer_load_dword v29, v30, s[88:91], s94 offen")
            a("s_add_u32 s94, s94, s95")

    blocks = []
    for p in range(7): blocks += [("gu", p, 0), ("gu", p, 1)]
    blocks += [("q", s) for s in range(6)]
    def wreads(b, dst):
        o = []
        for kh in range(2):
            for s2 in range(2):
                d = ar(dst(kh) + 2 * s2, 2)
                if b[0] == "gu":
                    o.append("ds_read_b64_tr_b16 %s, v%d offset:%d" % (d, 5 if b[1] == 6 else 1, b[2] * UP + (32 * kh + 16 * s2) * 224 + 32 * b[1]))
                elif b[0] == "q":
                    o.append("ds_read_b64_tr_b16 %s, v%d offset:%d" % (d, 2 + b[1] % 2, (32 * kh + 16 * s2) * 192 + 64 * (b[1] // 2)))
                else:
                    o.append("ds_read_b64_tr_b16 %s, v4 offset:%d" % (d, (32 * kh + 16 * s2) * 192))
        return o
    def mfmas(bi, buf):
        b = blocks[bi]
        o = []
        for m in range(4):
            for kh in range(2):
                w, x = ar(WR(bi % 4, kh), 4), ar(XB(buf, m, kh), 4)
                c = vr(accGU(b[1], b[2], m), 4) if b[0] == "gu" else ar(accQ(b[1], m), 4)
                if b[0] == "q" and b[1] >= 4: w, x = x, w
                o.append("v_mfma_f32_16x16x32_bf16 %s, %s, %s, %s" % (c, w, x, c))
        return o

    vwait("X0")
    a("s_barrier")
    stamp()
    for bi in range(3):
        for o in wreads(blocks[bi], lambda kh: WR(bi % 4, kh)): a(o)

    HRB, HMB = 9, 13
    def step(buf, misc, final=False, loop=None):
        lg = Cnt([0] * 4 + [1] * 4 + [2] * 4)
        slots = [(bi, g) for bi in range(17) for g in (1, 3, 5, 7) if bi != HRB]
        place = {}
        n = len(misc)
        assert n <= len(slots)
        for k, o in enumerate(misc):
            place.setdefault(slots[k * len(slots) // n], []).append(o)
        for bi in range(20):
            mf = mfmas(bi, buf)
            fill = {}
            w = lg.need(bi)
            if w is not None: a("s_waitcnt lgkmcnt(%d)" % w)
            rd = []
            if bi <= 16: rd = [(bi + 3, o) for o in wreads(blocks[bi + 3], lambda kh: WR((bi + 3) % 4, kh))]; gaps = [0, 2, 4, 6]
            elif bi == 18 and not final:
                rd = [(100, o) for o in wreads(blocks[0], lambda kh: WR(0, kh))] + [(101, o) for o in wreads(blocks[1], lambda kh: WR(1, kh))]
                gaps = list(range(8))
            elif bi == 19 and not final: rd = [(102, o) for o in wreads(blocks[2], lambda kh: WR(2, kh))]; gaps = [0, 2, 4, 6]
            if bi == HRB:
                hr = [("H", o) for o in wreads(("h",), HW)]
                rd = [x for pr in zip(rd, hr) for x in pr]; gaps = list(range(8))
            for (tag, o), g in zip(rd, gaps if rd else []):
                fill.setdefault(g, []).append(o); lg.issue(tag)
            for g in (1, 3, 5, 7):
                for o in place.get((bi, g), []): fill.setdefault(g, []).append(o)
            if bi == HMB:
                assert lg.need("H") is None
                for kh in range(2):
                    mf.append("v_mfma_f32_16x16x32_bf16 %s, %s, %s, %s" % (ar(HACC, 4), ar(HW(kh), 4), ar(XB(buf, 4, kh), 4), ar(HACC, 4)))
            if bi == 17 and not final:
                for k, r in enumerate((1, 2, 3, 4, 5)):
                    fill.setdefault(k + 1, []).append("v_add_u32 v%d, s93, v%d" % (r, r))
                fill.setdefault(7, []).append("BAR")
                lg.clear()
            if bi == 19 and loop:
                fill.setdefault(5, []).append("s_cmp_lt_u32 s36, 15")
                fill.setdefault(7, []).append("s_cbranch_scc1 %s" % loop)
            for i, m in enumerate(mf):
                a(m)
                for o in fill.get(i, []):
                    if o == "BAR":
                        vwait("X", lg0=True); a("s_barrier")
                    else: E(o)
    slot_ops = ["s_add_u32 s37, s37, s62", "s_cmp_eq_u32 s37, %d" % (3 * SLOT), "s_cselect_b32 s37, 0, s37",
                "s_cmp_eq_u32 s37, s62", "s_cselect_b32 s93, s63, s62"]
    touch_ops = [("t", "buffer_load_dword v29, v30, s[88:91], s94 offen"), "s_add_u32 s94, s94, s95"] if TOUCH else []
    def std_misc(buf, touch):
        return xoff_ops() + xld_ops(buf ^ 1, "X") + ["s_add_u32 s36, s36, 1"] + tau_ops() + slot_ops + wdma_ops("W") + (touch_ops if touch else [])
    a(".p2align 6")
    a.label("L_g1")
    vm.q = ["W"] * 10
    step(0, std_misc(0, True))
    step(1, std_misc(1, False), loop="L_g1")
    assert vm.q == ["W"] * 10, vm.q

    VDW = 16
    g2s = [
        "s_and_b32 s4, s2, 1",
        "s_bfe_u32 s5, s2, 0x10001", "s_lshl_b32 s5, s5, 3", "s_bfe_u32 s3, s2, 0x30003", "s_add_u32 s5, s5, s3",
        "s_bfe_u32 s6, s2, 0x10002", "s_lshl_b32 s6, s6, 2", "s_lshr_b32 s3, s2, 6", "s_add_u32 s6, s6, s3",
        "s_add_u32 s7, s5, s6",
        "s_lshl_b32 s48, s4, 2", "s_lshl_b32 s49, s6, 8", "s_lshl_b32 s50, s32, 15", "s_add_u32 s50, s50, s49",
        "v_lshrrev_b32 v20, 8, v15", "v_bfe_u32 v21, v15, 5, 3", "v_xor_b32 v21, s48, v21", "v_xor_b32 v21, v21, v20",
        "v_and_b32 v22, 16, v15", "v_lshl_add_u32 v22, v20, 11, v22",
        "v_lshl_add_u32 v16, v21, 5, v22", "v_add_u32 v16, s50, v16",
        "v_xor_b32 v17, 0x80, v16", "v_add_u32 v17, %d, v17" % (8192 - 1024),
        "v_add_u32 v18, %d, v16" % (2 * (8192 - 1024)), "v_add_u32 v19, %d, v17" % (2 * (8192 - 1024)),
        "s_mul_i32 s55, s4, %d" % (1792 * 2048),
        "s_lshl_b32 s56, s32, 12", "s_add_u32 s56, s56, %d" % R2,
        "s_mov_b32 s8, s%d" % PD, "s_mov_b32 s9, s%d" % (PD + 1), "s_mov_b32 s10, %d" % (3584 * 2048),
    ]
    cpf2 = []
    if P.get("codepf", 1):
        cpf2 = ["v_lshlrev_b32 v20, 3, v15", "s_bfe_u32 s3, s2, 0x30003", "s_lshl_b32 s3, s3, 13", ("t", "buffer_load_dword v29, v20, s[4:7], s3 offen")]
    rots = []
    for u in range(4):
        rots.append((["s_add_u32 s3, s7, %d" % u, "s_and_b32 s3, s3, 3"] if ROT2 else ["s_mov_b32 s3, %d" % u]) + ["s_lshl_b32 s%d, s3, 17" % (44 + u)])
    ND, NO = 28, 8
    VW, VWO, VX, VDO = 8, 20, 24, 32 + 0
    VDO = 40
    def wops(sg):
        if sg >= ND + NO: return []
        u = sg % 4
        o = []
        if sg < ND:
            if u == 0 and sg > 0: o.append("s_add_u32 s55, s55, %d" % (4 * 131072))
            o.append("s_add_u32 s38, s55, s%d" % (44 + u))
            sd, vb = 8, VDW
        else:
            if sg == ND: o.append("s_mov_b32 s55, 0")
            elif u == 0: o.append("s_mov_b32 s55, %d" % (4 * 262144))
            o.append("s_lshl1_add_u32 s38, s%d, s55" % (44 + u))
            sd, vb = 12, VDO
        o.append("s_add_u32 m0, s56, %d" % (u * 16384))
        for q in range(4):
            o.append(("W%d" % sg, "buffer_load_dwordx4 v%d, s[%d:%d], s38 offen offset:%d lds" % (vb + q, sd, sd + 3, 1024 * q)))
        return o
    step(0, xoff_ops() + xld_ops(1, "X") + ["s_mov_b32 s93, s63"] + touch_ops + cpf2 + g2s + rots[0] + wops(0))
    atom = ["s_mov_b32 s12, s%d" % PDBG, "s_mov_b32 s13, s%d" % (PDBG + 1), "s_movk_i32 s14, 256", "v_mov_b32 v28, 1", "v_mov_b32 v20, %d" % OOB,
            "v_cmp_eq_u32 vcc, 0, v0", "v_cndmask_b32 v20, v20, v6, vcc", ("at", "buffer_atomic_add v28, v20, s[12:15], 0 offen sc0 sc1")]
    wot = []
    if TOUCH:
        wot = ["s_mov_b32 s88, s%d" % PWO, "s_mov_b32 s89, s%d" % (PWO + 1), "s_mov_b32 s90, %d" % (1024 * 2048),
               "v_lshrrev_b32 v30, 7, v15", "v_lshlrev_b32 v30, 11, v30", "v_bfe_u32 v21, v15, 4, 2", "v_lshl_add_u32 v30, v21, 8, v30",
               "s_lshr_b32 s94, s2, 3", "s_lshl2_add_u32 s94, s94, s32", "s_lshl_b32 s94, s94, 14", "s_and_b32 s3, s6, 4", "s_lshl_b32 s3, s3, 8", "s_add_u32 s94, s94, s3",
               "s_lshl_b32 s3, s4, 7", "s_add_u32 s94, s94, s3", ("t", "buffer_load_dword v29, v30, s[88:91], s94 offen")]
    step(1, atom + rots[1] + wops(1) + rots[2] + wops(2) + rots[3] + wops(3) + wot, final=True)
    stamp()

    a("s_nop 7")
    a("s_mov_b32 s50, 0xbfb8aa3b"); a("s_mov_b32 s51, 0xbfb8aa3b")
    a("s_mov_b32 s52, 1.0"); a("s_mov_b32 s53, 1.0")
    def cvt_acc(dst, src, t):
        for r in range(4): a("v_accvgpr_read_b32 v%d, a%d" % (t + r, src + r))
        a("v_cvt_pk_bf16_f32 v%d, v%d, v%d" % (dst, t, t + 1))
        a("v_cvt_pk_bf16_f32 v%d, v%d, v%d" % (dst + 1, t + 2, t + 3))
    a("s_lshl_b32 s40, s33, 1")
    a("s_lshr_b32 s3, s32, 1")
    a("s_add_u32 s40, s40, s3")
    a("s_mul_i32 s40, s40, %d" % ACT_MT)
    a("s_and_b32 s3, s32, 1")
    a("s_lshl_b32 s3, s3, 12")
    a("s_add_u32 s40, s40, s3")
    a("s_lshr_b32 s41, s34, 1")
    a("s_mul_i32 s41, s41, %d" % (7 * 8192))
    a("s_add_u32 s41, s41, s40")
    a("s_lshl_b32 s42, s57, 9")
    a("s_add_u32 s42, s42, s41")
    a("s_add_u32 s42, s42, %d" % (3 * 8192))
    a("s_lshl_b32 s3, s57, 15")
    a("s_add_u32 s41, s41, s3")
    a("s_add_u32 s43, s34, 112")
    a("s_lshl_b32 s43, s43, 13")
    a("s_add_u32 s43, s43, s40")
    def swiglu(items):
        for (G, U, T, D) in items:
            for h in (0, 2): a("v_pk_mul_f32 %s, %s, s[50:51]" % (vr(T + h, 2), vr(G + h, 2)))
        for (G, U, T, D) in items:
            for r in range(4): a("v_exp_f32 v%d, v%d" % (T + r, T + r))
            for h in (0, 2): a("v_pk_mul_f32 %s, %s, %s" % (vr(U + h, 2), vr(G + h, 2), vr(U + h, 2)))
        for (G, U, T, D) in items:
            for h in (0, 2): a("v_pk_add_f32 %s, %s, s[52:53]" % (vr(T + h, 2), vr(T + h, 2)))
        for (G, U, T, D) in items:
            for r in range(4): a("v_rcp_f32 v%d, v%d" % (T + r, T + r))
        a("s_nop 0")
        for (G, U, T, D) in items:
            for h in (0, 2): a("v_pk_mul_f32 %s, %s, %s" % (vr(U + h, 2), vr(U + h, 2), vr(T + h, 2)))
        for (G, U, T, D) in items:
            a("v_cvt_pk_bf16_f32 v%d, v%d, v%d" % (D, U, U + 1))
            a("v_cvt_pk_bf16_f32 v%d, v%d, v%d" % (D + 1, U + 2, U + 3))
    for pp in range(3):
        for m in range(4):
            g0 = accGU(2 * pp, 0, m)
            swiglu([(g0, accGU(2 * pp, 1, m), 20, g0), (accGU(2 * pp + 1, 0, m), accGU(2 * pp + 1, 1, m), 24, g0 + 2)])
            V("hs", "buffer_store_dwordx4 %s, v15, s[28:31], s41 offen offset:%d %s" % (vr(g0, 4), 1024 * m, SC))
        if pp < 2: a("s_add_u32 s41, s41, 8192")
    a("v_bfe_u32 v8, v15, 8, 1")
    a("v_lshlrev_b32 v8, 10, v8")
    a("v_lshrrev_b32 v9, 9, v15")
    a("v_lshl_add_u32 v8, v9, 8, v8")
    a("v_and_b32 v9, 0xf0, v15")
    a("v_add_u32 v8, v8, v9")
    for m in (0, 2):
        g0 = accGU(6, 0, m)
        swiglu([(accGU(6, 0, m + d), accGU(6, 1, m + d), 20 + 4 * d, g0 + 2 * d) for d in (0, 1)])
        a("s_nop 1")
        a("v_permlane16_swap_b32 v%d, v%d" % (g0, g0 + 2))
        a("v_permlane16_swap_b32 v%d, v%d" % (g0 + 1, g0 + 3))
        a("s_nop 0")
        V("hs", "buffer_store_dwordx4 %s, v8, s[28:31], s42 offen offset:%d %s" % (vr(g0, 4), 1024 * m, SC))
    stamp()
    R0, R1, R2_ = accGU(0, 1, 0), accGU(2, 1, 0), accGU(4, 1, 0)
    Qf = lambda m: R0 + 4 * m
    Kf = lambda m: R0 + 16 + 4 * (m + 1)
    VV = lambda f, m: R1 + 10 * f + 2 * (m + 1)
    Pf = lambda m: R1 + 20 + 4 * m
    Sp = lambda m: R2_ + 8 * m
    Sc = lambda m: R2_ + 8 * m + 4
    TT = lambda m: R2_ + 32 + 4 * m
    cvt_acc(Kf(3), accQ(2, 3), 20); cvt_acc(Kf(3) + 2, accQ(3, 3), 24)
    cvt_acc(VV(0, 3), accQ(4, 3), 20); cvt_acc(VV(1, 3), accQ(5, 3), 24)
    a("s_lshl_b32 s3, s32, 11")
    a("s_add_u32 s3, s3, %d" % EX)
    a("v_add_u32 v1, s3, v15")
    a("ds_write_b128 v1, %s offset:2048" % vr(Kf(3), 4))
    a("ds_write_b64 v1, %s offset:3072" % vr(VV(0, 3), 2))
    a("ds_write_b64 v1, %s offset:3080" % vr(VV(1, 3), 2))
    cvt_acc(2, HACC, 20)
    a("v_lshrrev_b32 v12, 4, v15")
    a("s_and_b32 s3, s32, 1")
    a("s_lshl_b32 s3, s3, 3")
    a("s_add_u32 s3, s3, %d" % EX)
    a("s_cmp_ge_u32 s32, 2")
    a("s_cbranch_scc1 L_hv")
    a("v_add_u32 v4, s3, v15")
    a("ds_write_b64 v4, v[2:3]")
    a("s_branch L_hd")
    a.label("L_hv")
    a("v_bfe_u32 v4, v12, 2, 2")
    a("v_lshlrev_b32 v4, 8, v4")
    a("v_lshrrev_b32 v9, 4, v12")
    a("v_lshl_add_u32 v4, v9, 6, v4")
    a("v_and_b32 v9, 3, v12")
    a("v_lshl_add_u32 v4, v9, 1, v4")
    a("v_add_u32 v4, s3, v4")
    a("ds_write_b16 v4, v2 offset:1024")
    a("ds_write_b16_d16_hi v4, v2 offset:1040")
    a("ds_write_b16 v4, v3 offset:1056")
    a("ds_write_b16_d16_hi v4, v3 offset:1072")
    a.label("L_hd")
    for m in range(4):
        cvt_acc(Qf(m), accQ(0, m), 20); cvt_acc(Qf(m) + 2, accQ(1, m), 24)
        if m < 3:
            cvt_acc(Kf(m), accQ(2, m), 20); cvt_acc(Kf(m) + 2, accQ(3, m), 24)
    a("s_waitcnt lgkmcnt(0)")
    a("s_barrier")
    a("ds_read_b128 %s, v1" % vr(Kf(-1), 4))
    a("ds_read_b64 %s, v1 offset:1024" % vr(VV(0, -1), 2))
    a("ds_read_b64 %s, v1 offset:1032" % vr(VV(1, -1), 2))
    for m in (1, 2, 3, 0):
        if m == 0: a("s_waitcnt lgkmcnt(0)")
        a("v_mfma_f32_16x16x32_bf16 %s, %s, %s, 0" % (vr(Sc(m), 4), vr(Kf(m), 4), vr(Qf(m), 4)))
        a("v_mfma_f32_16x16x32_bf16 %s, %s, %s, 0" % (vr(Sp(m), 4), vr(Kf(m - 1), 4), vr(Qf(m), 4)))
    for m in range(3):
        cvt_acc(VV(0, m), accQ(4, m), 20); cvt_acc(VV(1, m), accQ(5, m), 24)
    a("v_and_b32 v8, 15, v12")
    a("v_and_b32 v9, 1, v12")
    a("v_lshrrev_b32 v10, 4, v12")
    a("v_lshl_add_u32 v10, v10, 2, v9")
    a("v_cmp_le_u32 s[58:59], v10, v8")
    a("v_add_u32 v10, 2, v10")
    a("v_cmp_le_u32 s[60:61], v10, v8")
    a("v_cmp_ne_u32 s[62:63], 0, v9")
    a("v_lshlrev_b32 v9, 4, v9")
    a("s_or_b32 s3, s33, s32")
    a("s_cmp_eq_u32 s3, 0")
    a("s_cselect_b64 s[88:89], -1, 0")
    a("s_andn2_b64 s[90:91], s[88:89], s[60:61]")
    a("s_andn2_b64 s[88:89], s[88:89], s[58:59]")
    a("v_mov_b32 v11, 0xce6e6b28")
    a("s_mov_b32 s48, 0x3e3504f3")
    a("s_mov_b32 s49, 0x3fb8aa3b")
    M4 = range(4)
    for m in M4:
        for S_ in (Sp, Sc):
            a("v_cndmask_b32 v%d, v%d, v%d, s[62:63]" % (S_(m), S_(m), S_(m) + 1))
            a("v_cndmask_b32 v%d, v%d, v%d, s[62:63]" % (S_(m) + 2, S_(m) + 2, S_(m) + 3))
    A_ = lambda m: TT(m)
    B_ = lambda m: TT(m) + 1
    X_ = lambda m: TT(m) + 2
    Y_ = lambda m: TT(m) + 3
    for m in M4:
        a("v_cndmask_b32 v%d, v%d, v%d, s[58:59]" % (A_(m), Sp(m), Sc(m)))
        a("v_cndmask_b32 v%d, v%d, v%d, s[60:61]" % (B_(m), Sp(m) + 2, Sc(m) + 2))
    def rnd():
        for m in M4: a("v_cvt_pk_bf16_f32 v%d, v%d, v%d" % (X_(m), A_(m), B_(m)))
        for m in M4:
            a("v_lshlrev_b32 v%d, 16, v%d" % (A_(m), X_(m)))
            a("v_and_b32 v%d, s54, v%d" % (B_(m), X_(m)))
    rnd()
    for m in M4:
        a("v_mul_f32 v%d, s48, v%d" % (A_(m), A_(m)))
        a("v_mul_f32 v%d, s48, v%d" % (B_(m), B_(m)))
    rnd()
    a("v_cndmask_b32 v%d, v%d, v11, s[88:89]" % (A_(0), A_(0)))
    a("v_cndmask_b32 v%d, v%d, v11, s[90:91]" % (B_(0), B_(0)))
    a("s_lshl_b32 s92, s33, 2")
    a("s_add_u32 s92, s92, s32")
    a("s_lshl_b32 s92, s92, 7")
    a("s_lshl2_add_u32 s92, s34, s92")
    a("s_add_u32 s92, s92, %d" % F1H)
    vwait("hs")
    V("f", "buffer_store_dword v7, v6, s[84:87], s92 offen %s" % SC)
    stamp()
    def reduce(op):
        for m in M4: a("%s v%d, v%d, v%d" % (op, X_(m), A_(m), B_(m)))
        for sw in ("v_permlane16_swap_b32", "v_permlane32_swap_b32"):
            for m in M4: a("v_mov_b32 v%d, v%d" % (Y_(m), X_(m)))
            a("s_nop 1")
            for m in M4: a("%s v%d, v%d" % (sw, X_(m), Y_(m)))
            a("s_nop 1")
            for m in M4: a("%s v%d, v%d, v%d" % (op, X_(m), X_(m), Y_(m)))
    reduce("v_max_f32")
    for m in M4:
        a("v_sub_f32 v%d, v%d, v%d" % (A_(m), A_(m), X_(m)))
        a("v_sub_f32 v%d, v%d, v%d" % (B_(m), B_(m), X_(m)))
    for m in M4:
        a("v_mul_f32 v%d, s49, v%d" % (A_(m), A_(m)))
        a("v_mul_f32 v%d, s49, v%d" % (B_(m), B_(m)))
    for m in M4:
        a("v_exp_f32 v%d, v%d" % (A_(m), A_(m)))
        a("v_exp_f32 v%d, v%d" % (B_(m), B_(m)))
    a("s_nop 0")
    reduce("v_add_f32")
    for m in M4: a("v_rcp_f32 v%d, v%d" % (X_(m), X_(m)))
    a("s_nop 0")
    for m in M4:
        a("v_mul_f32 v%d, v%d, v%d" % (A_(m), A_(m), X_(m)))
        a("v_mul_f32 v%d, v%d, v%d" % (B_(m), B_(m), X_(m)))
    for m in M4: a("v_cvt_pk_bf16_f32 v%d, v%d, v%d" % (X_(m), A_(m), B_(m)))
    for m in M4:
        a("v_and_b32 v%d, 0xffff, v%d" % (A_(m), X_(m)))
        a("v_lshrrev_b32 v%d, 16, v%d" % (B_(m), X_(m)))
    for m in M4:
        a("v_lshlrev_b32 v%d, v9, v%d" % (A_(m), A_(m)))
        a("v_lshlrev_b32 v%d, v9, v%d" % (B_(m), B_(m)))
    for m in M4:
        a("v_cndmask_b32 v%d, v%d, 0, s[58:59]" % (Pf(m), A_(m)))
        a("v_cndmask_b32 v%d, v%d, 0, s[60:61]" % (Pf(m) + 1, B_(m)))
        a("v_cndmask_b32 v%d, 0, v%d, s[58:59]" % (Pf(m) + 2, A_(m)))
        a("v_cndmask_b32 v%d, 0, v%d, s[60:61]" % (Pf(m) + 3, B_(m)))
    a("s_nop 1")
    for m in M4:
        a("v_mfma_f32_16x16x32_bf16 %s, %s, %s, 0" % (vr(Sp(m), 4), vr(VV(0, m - 1), 4), vr(Pf(m), 4)))
        a("v_mfma_f32_16x16x32_bf16 %s, %s, %s, 0" % (vr(Sc(m), 4), vr(VV(1, m - 1), 4), vr(Pf(m), 4)))
    a("s_lshl_b32 s3, s5, 1")
    a("s_lshr_b32 s94, s32, 1")
    a("s_add_u32 s94, s94, s3")
    a("s_lshl_b32 s94, s94, 7")
    a("s_add_u32 s95, s94, %d" % F1O)
    a("s_lshl_b32 s3, s4, 6")
    a("s_add_u32 s94, s94, s3")
    a("s_add_u32 s94, s94, %d" % F1H)
    a("v_lshlrev_b32 v4, 2, v8")
    a("v_and_b32 v5, 31, v12")
    a("v_lshlrev_b32 v5, 2, v5")
    OS = 224
    for m in M4:
        for h in range(4):
            a("v_cvt_pk_bf16_f32 v%d, v%d, v%d" % (240 + 4 * m + h, Sp(m) + 2 * h, Sp(m) + 2 * h + 1))
        V("os", "buffer_store_dwordx4 %s, v15, s[28:31], s43 offen offset:%d %s" % (vr(240 + 4 * m, 4), 1024 * m, SC))
    V("p", "buffer_load_dword v3, v4, s[84:87], s94 offen %s" % SC)
    stamp()
    a("v_readfirstlane_b32 s3, v28")
    a("s_cmp_eq_u32 s32, 0")
    a("s_cselect_b32 s3, s3, 0")
    a("s_cmp_eq_u32 s3, 255")
    a("s_cbranch_scc0 L_noep")
    a("s_mov_b32 s3, %d" % EPOCH)
    a("buffer_store_dword v7, v6, s[84:87], s3 offen %s" % SC)
    a.label("L_noep")

    accD = lambda m, b: 64 + (b * 2 + m) * 4
    accO = lambda m, b: 128 + (b * 2 + m) * 4
    PART, XRES = 160, 192
    XB2 = lambda buf, kq, m: buf * 32 + (kq * 2 + m) * 4
    WR2 = lambda b, kh: 128 + b * 8 + kh * 4
    VW, VWO, VX = 32, 20, 24
    a("v_lshrrev_b32 v8, 2, v12")
    a("v_and_b32 v9, 3, v12")
    a("v_lshlrev_b32 v9, 3, v9")
    a("v_add_u32 v9, %d, v9" % R2)
    a("v_lshl_add_u32 v10, v8, 8, v9")
    a("v_and_b32 v11, 7, v8")
    for b in range(8):
        a("v_xor_b32 v13, %d, v11" % b)
        a("v_lshl_add_u32 v%d, v13, 5, v10" % (VW + b))
    a("v_lshl_add_u32 v10, v8, 7, v9")
    a("v_bfe_u32 v11, v12, 3, 2")
    for b in range(4):
        a("v_xor_b32 v13, %d, v11" % b)
        a("v_lshl_add_u32 v%d, v13, 5, v10" % (VWO + b))
    a("v_mov_b32 v%d, v15" % VX)
    for q in range(1, 4): a("v_add_u32 v%d, %d, v15" % (VX + q, 8192 * q))
    a("s_lshl_b32 s48, s32, 16")
    a("s_lshl_b32 s49, s6, 8")
    a("s_add_u32 s48, s48, s49")
    a("s_lshl_b32 s3, s4, 7")
    a("s_add_u32 s48, s48, s3")
    a("v_lshrrev_b32 v8, 4, v12")
    a("v_bfe_u32 v9, v12, 1, 2")
    a("v_xor_b32 v9, v9, v8")
    a("v_lshrrev_b32 v10, 3, v12")
    a("v_and_b32 v11, 16, v15")
    a("v_lshl_add_u32 v11, v10, 11, v11")
    a("v_lshl_add_u32 v11, v9, 5, v11")
    for q in range(4):
        a("s_add_u32 s3, s48, %d" % (q * 16384 - q * 1024))
        a("v_add_u32 v%d, s3, v11" % (VDO + q))
    for u in range(4): a("s_lshr_b32 s%d, s%d, 3" % (40 + u, 44 + u))
    a("s_mul_i32 s61, s5, %d" % ACT_MT)
    a("s_lshl_b32 s3, s32, 11")
    a("s_add_u32 s61, s61, s3")
    a("s_add_u32 s63, s61, %d" % (112 * 8192))
    a("s_mul_i32 s3, s4, %d" % (56 * 8192))
    a("s_add_u32 s61, s61, s3")
    srd(a, 12, PWO, 0, 1024 * 2048)
    srd(a, 16, PX, 0, 2048 * 2048)
    srd(a, 20, PWS, PART_OFF, PART_BYTES)
    srd(a, 24, POUT, 0, 2048 * 2048)
    for r in range(64, 160, 2): a("v_mov_b64 %s, 0" % vr(r, 2))
    a("v_and_b32 v2, 15, v12")
    a("v_lshlrev_b32 v2, 11, v2")
    a("v_bfe_u32 v8, v12, 4, 1")
    a("v_lshl_add_u32 v2, v8, 5, v2")
    a("v_lshrrev_b32 v8, 5, v12")
    a("v_lshl_add_u32 v2, v8, 4, v2")
    a("s_lshl_b32 s34, s5, 18")
    a("s_add_u32 s34, s34, s48")
    a("s_add_u32 s35, s34, 32768")
    a("s_lshl_b32 s57, s2, 15")
    a("s_lshl_b32 s3, s32, 13")
    a("s_add_u32 s57, s57, s3")
    a("s_add_u32 s58, s57, 4096")
    a("s_xor_b32 s59, s57, 0x8000")
    a("s_add_u32 s60, s59, 4096")
    a("s_lshl_b32 s88, s2, 4")
    a("s_lshl2_add_u32 s88, s32, s88")
    a("s_add_u32 s88, s88, %d" % F2)
    a("s_xor_b32 s89, s88, 16")

    def xops(sg):
        if sg >= ND + NO: return []
        u = sg % 4
        o = []
        if sg < ND:
            if u == 0 and sg > 0: o.append("s_add_u32 s61, s61, %d" % (4 * 16384))
            o.append("s_add_u32 s39, s61, s%d" % (40 + u))
            nk = 2
        else:
            if u == 0 and sg > ND: o.append("s_add_u32 s63, s63, %d" % (4 * 32768))
            o.append("s_lshl1_add_u32 s39, s%d, s63" % (40 + u))
            nk = 4
        for kq in range(nk):
            for m in range(2):
                o.append(("X%d" % sg, "buffer_load_dwordx4 %s, v%d, s[28:31], s39 offen offset:%d %s" % (ar(XB2(u, kq, m), 4), VX + kq, 1024 * m, XSC)))
        return o
    def wreads2(sg, b):
        o = []
        u = sg % 4
        for kh in range(2):
            for s2 in range(2):
                if sg < ND: v, off = VW + b, u * 16384 + (32 * kh + 16 * s2) * 256
                else: v, off = VWO + b % 4, u * 16384 + (64 * (b // 4) + 32 * kh + 16 * s2) * 128
                o.append("ds_read_b64_tr_b16 %s, v%d offset:%d" % (ar(WR2(b, kh) + 2 * s2, 2), v, off))
        return o
    def mfmas2(sg, b):
        o = []
        u = sg % 4
        for m in range(2):
            for kh in range(2):
                if sg < ND: c, x = accD(m, b), XB2(u, kh, m)
                else: c, x = accO(m, b % 4), XB2(u, 2 * (b // 4) + kh, m)
                o.append("v_mfma_f32_16x16x32_bf16 %s, %s, %s, %s" % (vr(c, 4), ar(WR2(b, kh), 4), ar(x, 4), vr(c, 4)))
        return o
    check_flags(3, 4, "s94", "p", "L_f1")
    a("s_add_u32 s92, s92, %d" % (F1O - F1H))
    V("f", "buffer_store_dword v7, v6, s[84:87], s92 offen %s" % SC)
    stamp()
    for sg in range(3):
        for o in xops(sg): E(o)
    a("s_barrier")
    lg = Cnt()
    for b in range(4):
        for o in wreads2(0, b): a(o); lg.issue((0, b))
    a("s_mov_b32 s37, 0")
    vwait("X0")
    stamp()

    def stage(sg, extra1=(), extra2=(), loopend=None, pre=None):
        last = sg == ND + NO - 1
        if pre: pre()
        h1 = xops(sg + 3) + list(extra1)
        h2 = wops(sg + 4) + list(extra2)
        r1 = [((sg, b), o) for b in range(4, 8) for o in wreads2(sg, b)]
        r2 = [] if last else [((sg + 1, b), o) for b in range(4) for o in wreads2(sg + 1, b)]
        plan = {}
        for k, x in enumerate(r1): plan.setdefault(k * 12 // 16, []).append(("r",) + x)
        for k, x in enumerate(h1): plan.setdefault(min(15, (5 + k * 11 // max(1, len(h1))) if len(h1) <= 6 else k * 16 // len(h1)), []).append(("o", x))
        for k, x in enumerate(r2): plan.setdefault(16 + k, []).append(("r",) + x)
        for k, x in enumerate(h2): plan.setdefault(16 + k * 16 // len(h2), []).append(("o", x))
        g = 0
        for b in range(8):
            w = lg.need((sg, b))
            if w is not None: a("s_waitcnt lgkmcnt(%d)" % w)
            for mf in mfmas2(sg, b):
                a(mf)
                for x in plan.get(g, []):
                    if x[0] == "r": a(x[2]); lg.issue(x[1])
                    else: E(x[1])
                if g == 15 and not last:
                    vwait("W%d" % (sg + 1), "X%d" % (sg + 1), lg0=True)
                    a("s_barrier")
                    lg.clear()
                if g == 31 and loopend:
                    a("s_add_u32 s37, s37, 1")
                    a("s_cmp_lt_u32 s37, 6")
                    a("s_cbranch_scc1 %s" % loopend)
                g += 1
    a(".p2align 6")
    a.label("L_g2")
    steady = ["X1"] * 4 + ["W2"] * 4 + ["X2"] * 4 + ["W3"] * 4
    first = list(vm.q)
    assert first == ["X1"] * 4 + ["X2"] * 4, first
    FIRST_PEEL = True
    a.lines.pop(); a.lines.pop()
    for sg in range(4): stage(sg)
    shift = lambda q, d: [t[0] + str(int(t[1:]) + d) for t in q]
    q0 = list(vm.q)
    a("s_mov_b32 s37, 1")
    a(".p2align 6")
    a.label("L_g2")
    for sg in range(4, 8): stage(sg, loopend="L_g2" if sg == 7 else None)
    assert vm.q == shift(q0, 4), (vm.q, q0)
    vm.q = shift(q0, 20)
    lg.q = [(24, t[1]) for t in lg.q]
    V("p", "buffer_load_dword v3, v5, s[84:87], s95 offen %s" % SC)
    stage(24)
    stage(25, pre=lambda: check_flags(3, 5, "s95", "p", "L_f2"))
    stage(26), stage(27)
    stamp()
    a("s_nop 7")
    for k in range(8):
        V("S", "buffer_store_dwordx4 %s, v%d, s[20:23], s%d offen offset:%d %s" % (vr(accD(0, 4) + 4 * k, 4), VX, 57 + k // 4, 1024 * (k % 4), SC))
    xres = [("R", "buffer_load_dwordx4 %s, v2, s[16:19], s%d offen offset:%d" % (vr(XRES + 4 * (2 * m + bp), 4), 34 + m, 64 * bp)) for m in range(2) for bp in range(2)]
    parts = [("P%d" % k, "buffer_load_dwordx4 %s, v%d, s[20:23], s%d offen offset:%d %s" % (vr(PART + 4 * k, 4), VX, 59 + k // 4, 1024 * (k % 4), SC)) for k in range(8)]
    stage(28)
    stage(29)
    vwait("S")
    V("f", "buffer_store_dword v7, v6, s[84:87], s88 offen %s" % SC)
    stage(30), stage(31), stage(32)
    stage(33, extra1=xres, extra2=[("p", "buffer_load_dword v3, v6, s[84:87], s89 offen %s" % SC)])
    stage(34)
    stage(35, pre=lambda: check_flags(3, 6, "s89", "p", "L_f3"), extra1=parts)
    stamp()
    a("s_nop 7")
    def round4(R, T):
        a("v_cvt_pk_bf16_f32 v%d, v%d, v%d" % (T, R, R + 1))
        a("v_cvt_pk_bf16_f32 v%d, v%d, v%d" % (T + 1, R + 2, R + 3))
        a("v_lshlrev_b32 v%d, 16, v%d" % (R, T))
        a("v_and_b32 v%d, s54, v%d" % (R + 1, T))
        a("v_lshlrev_b32 v%d, 16, v%d" % (R + 2, T + 1))
        a("v_and_b32 v%d, s54, v%d" % (R + 3, T + 1))
    for k in range(8): round4(accO(0, 0) + 4 * k, 8 + 2 * (k % 2))
    for k in range(8):
        Y, T = accD(0, 0) + 4 * k, PART + 4 * k
        vwait("P%d" % k)
        for h in (0, 2): a("v_pk_add_f32 %s, %s, %s" % (vr(Y + h, 2), vr(Y + h, 2), vr(T + h, 2)))
        round4(Y, 8)
        for h in (0, 2): a("v_pk_mul_f32 %s, %s, s[50:51]" % (vr(T + h, 2), vr(Y + h, 2)))
        for r in range(4): a("v_exp_f32 v%d, v%d" % (T + r, T + r))
    a("s_nop 0")
    for k in range(8):
        Y, T = accD(0, 0) + 4 * k, PART + 4 * k
        for h in (0, 2): a("v_pk_add_f32 %s, %s, s[52:53]" % (vr(T + h, 2), vr(T + h, 2)))
        for r in range(4): a("v_rcp_f32 v%d, v%d" % (T + r, T + r))
    a("s_nop 0")
    for m in range(2):
        for bp in range(2):
            D = 32 + 4 * (2 * m + bp)
            for be in range(2):
                b = 2 * bp + be
                Y, T, S = accD(m, b), PART + (accD(m, b) - accD(0, 0)), accO(m, b)
                for h in (0, 2): a("v_pk_mul_f32 %s, %s, %s" % (vr(Y + h, 2), vr(Y + h, 2), vr(T + h, 2)))
                round4(Y, 8)
                for h in (0, 2): a("v_pk_mul_f32 %s, %s, %s" % (vr(Y + h, 2), vr(Y + h, 2), vr(S + h, 2)))
                a("v_cvt_pk_bf16_f32 v%d, v%d, v%d" % (D + 2 * be, Y, Y + 1))
                a("v_cvt_pk_bf16_f32 v%d, v%d, v%d" % (D + 2 * be + 1, Y + 2, Y + 3))
            a("s_nop 1")
            a("v_permlane16_swap_b32 v%d, v%d" % (D, D + 2))
            a("v_permlane16_swap_b32 v%d, v%d" % (D + 1, D + 3))
            a("s_nop 1")
            Xr = XRES + 4 * (2 * m + bp)
            for r in range(4):
                a("v_lshlrev_b32 v48, 16, v%d" % (D + r))
                a("v_and_b32 v49, s54, v%d" % (D + r))
                a("v_lshlrev_b32 v50, 16, v%d" % (Xr + r))
                a("v_and_b32 v51, s54, v%d" % (Xr + r))
                a("v_pk_add_f32 v[48:49], v[48:49], v[50:51]")
                a("v_cvt_pk_bf16_f32 v%d, v48, v49" % (D + r))
            a("buffer_store_dwordx4 %s, v2, s[24:27], s%d offen offset:%d" % (vr(D, 4), 34 + m, 64 * bp))
    if probe is not None:
        stamp()
        a("s_waitcnt vmcnt(0)")
        stamp()
        a.label("L_probe")
        a("s_memrealtime s[4:5]")
        a("s_waitcnt lgkmcnt(0)")
        a("s_sub_u32 s4, s4, s98")
        a("s_cmp_lt_u32 s4, 10000")
        a("s_cbranch_scc1 L_probe")
    if prof:
        stamp()
        a("s_waitcnt vmcnt(0)")
        stamp()
        srd(a, 8, PWS, STAMP_OFF, 65536)
        a("s_lshl_b32 s3, s2, 7")
        a("v_lshl_add_u32 v8, v0, 2, s3")
        a("v_cmp_gt_u32 vcc, 32, v0")
        a("s_and_b64 exec, exec, vcc")
        a("s_cbranch_execz L_end")
        a("buffer_store_dword v31, v8, s[8:11], 0 offen")
    a.label("L_end")
    a("s_endpgm")
    desc(a, name, 256 + NAGPR, 100, 256)
    hdr = open("recurrent_scan__sliding_local_dilated__swiglu_ffn__prompt.s.ref").read().split("; Override launch")[0]
    if P.get("aslist", 1):
        hdr += "; @launch kernel=%s grid=(256,1,1) block=(256,1,1) lds=%d\n" % (name, LDS_BYTES)
    else:
        hdr += "; @launch grid=(256,1,1) block=(256,1,1) lds=%d\n" % LDS_BYTES
    return hdr + a.text()

if __name__ == "__main__":
    P = json.loads(sys.argv[2]) if len(sys.argv) > 2 else {}
    open(sys.argv[1], "w").write(gen(P))
```

```python
import sys, json
sys.path.insert(0, "dev")
from gen_common import *

MAIN = "recurrent_scan__sliding_local_dilated__swiglu_ffn__prompt_kernel"
SLOT = 40960
GATE, UP, QKV = 0, 14336, 28672
EX = 3 * SLOT
LDS_BYTES = EX + 5 * 2048 + 256
LNX = EX + 5 * 2048
R2 = SLOT
F0, F1H, F1O, F2, EPOCH = 0, 4096, 8192, 12288, 65536
NONCE_ADD = 0x6A09E667
OOB = 0x40000000
SC = "sc1"

class Cnt:
    def __init__(self, init=(), cap=15):
        self.q = list(init); self.cap = cap
    def issue(self, tag): self.q.append(tag)
    def need(self, *tags):
        idx = [i for i, t in enumerate(self.q) if t in tags]
        if not idx: return None
        last = max(idx)
        n = len(self.q) - 1 - last
        self.q = self.q[last + 1:]
        return min(n, self.cap)
    def clear(self): self.q = []

def gen(P):
    a = Asm()
    name = MAIN
    prof = P.get("prof")
    nst = [0]
    probe = P.get("probe")
    def stamp():
        if probe is not None:
            if nst[0] == probe:
                a("s_memrealtime s[98:99]")
                a("s_waitcnt lgkmcnt(0)")
            nst[0] += 1
            return
        if not prof: return
        a("%s s[98:99]" % ("s_memtime" if prof == 2 else "s_memrealtime"))
        a("s_waitcnt lgkmcnt(0)")
        a("v_writelane_b32 v31, s98, %d" % nst[0])
        nst[0] += 1
    XSC = P.get("xsc", "sc1")
    ROT1 = P.get("g1_rot", 0)
    ROT2 = P.get("g2_rot", 1)
    TOUCH = P.get("touch", 1)
    vm = Cnt(cap=63)
    def V(tag, s):
        vm.issue(tag)
        if s.endswith("lds") and a.lines[-1].strip().startswith("s_add_u32 m0"): a("s_nop 0")
        a(s)
    def vwait(*tags, lg0=False):
        n = vm.need(*tags)
        parts = ([] if n is None else ["vmcnt(%d)" % n]) + (["lgkmcnt(0)"] if lg0 else [])
        if parts: a("s_waitcnt " + " ".join(parts))
    def check_flags(vreg, voff, soff, tag, label):
        vwait(tag)
        a("v_cmp_ne_u32 vcc, s96, v%d" % vreg)
        a("s_cbranch_vccz %s_ok" % label)
        a("s_mov_b32 s97, 0")
        a.label(label + "_spin")
        a("s_sleep 1")
        a("buffer_load_dword v%d, v%d, s[84:87], %s offen %s" % (vreg, voff, soff, SC))
        a("s_add_u32 s97, s97, 1")
        a("s_waitcnt vmcnt(0)")
        a("s_cmp_gt_u32 s97, 0x80000")
        a("s_cbranch_scc1 %s_ok" % label)
        a("v_cmp_ne_u32 vcc, s96, v%d" % vreg)
        a("s_cbranch_vccnz %s_spin" % label)
        a.label(label + "_ok")

    accGU = lambda p, gu, m: 32 + ((p * 2 + gu) * 4 + m) * 4
    accQ = lambda s, m: (s * 4 + m) * 4
    HACC = 96
    XB = lambda buf, m, kh: 100 + buf * 40 + (m * 2 + kh) * 4
    WR = lambda slot, kh: 180 + slot * 8 + kh * 4
    HW = lambda kh: 212 + kh * 4
    NAGPR = 220

    a.raw('.amdgcn_target "amdgcn-amd-amdhsa--gfx950"')
    kernel_header(a, name)
    a("s_cmp_ge_u32 s2, 256")
    a("s_cbranch_scc1 L_end")
    if P.get("badmap"):
        a("s_lshr_b32 s3, s2, 5"); a("s_and_b32 s2, s2, 31"); a("s_lshl_b32 s2, s2, 3"); a("s_or_b32 s2, s2, s3")
    a("s_load_dwordx16 s[64:79], s[0:1], 0")
    a("s_load_dwordx4 s[80:83], s[0:1], 64")
    if P.get("codepf", 1):
        a("s_getpc_b64 s[4:5]")
        a.label("L_pc")
        a("s_mov_b32 s6, L_end-L_pc")
        a("s_mov_b32 s7, 0x20000")
        a("v_and_b32 v1, 63, v0")
        a("v_lshlrev_b32 v1, 7, v1")
        a("s_bfe_u32 s3, s2, 0x30003")
        a("s_lshl_b32 s3, s3, 13")
        V("c", "buffer_load_dword v29, v1, s[4:7], s3 offen")
    if prof: a("v_mov_b32 v31, 0")
    stamp()
    PX, PQKV, PWO, PG, PU, PD, POUT, PDBG, PWS = 64, 66, 68, 72, 74, 76, 78, 80, 82
    a("v_and_b32 v17, 63, v0")
    a("v_lshrrev_b32 v16, 6, v0")
    a("v_lshrrev_b32 v18, 3, v17")
    a("v_and_b32 v19, 7, v17")
    a("v_readfirstlane_b32 s32, v16")
    a("v_lshlrev_b32 v20, 11, v18")
    a("v_lshl_add_u32 v20, v16, 9, v20")
    a("v_lshl_add_u32 v20, v19, 4, v20")
    a("s_and_b32 s34, s2, 7")
    a("s_lshl_b32 s34, s34, 2")
    a("s_bfe_u32 s35, s2, 0x20003")
    a("s_add_u32 s34, s34, s35")
    a("s_lshr_b32 s33, s2, 5")
    a("s_lshl_b32 s36, s33, 5")
    a("s_add_u32 s36, s36, s34")
    a("s_lshl_b32 s37, s36, 14")
    a("v_mov_b32 v6, 0")
    a("s_waitcnt lgkmcnt(0)")
    srd(a, 48, PX, 0, 2048 * 2048)
    LX = 32
    for u in range(4):
        V("x", "buffer_load_dwordx4 %s, v20, s[48:51], s37 offen offset:%d" % (vr(LX + 4 * u, 4), 128 * u))
    srd(a, 84, PWS, FLAG_OFF, FLAG_BYTES)
    a("s_mov_b32 s3, %d" % EPOCH)
    V("x", "buffer_load_dword v7, v6, s[84:87], s3 offen")
    stamp()
    a("s_and_b32 s57, s34, 1")
    a("s_lshr_b32 s58, s34, 1")
    a("s_mul_i32 s58, s58, 448")
    if TOUCH:
        a("s_cmp_eq_u32 s32, 1")
        a("s_cselect_b32 s88, s%d, s%d" % (PU, PG)); a("s_cselect_b32 s89, s%d, s%d" % (PU + 1, PG + 1))
        a("s_cmp_eq_u32 s32, 3")
        a("s_cselect_b32 s88, s%d, s88" % PD); a("s_cselect_b32 s89, s%d, s89" % (PD + 1))
        a("s_cbranch_scc1 L_t3")
        a("s_mul_i32 s3, s57, 208")
        a("s_add_u32 s3, s3, s58")
        a("s_movk_i32 s92, 7168")
        a("s_movk_i32 s93, 118")
        a("s_mov_b32 s90, %d" % (1024 * 7168))
        a("s_cmp_eq_u32 s32, 2")
        a("s_cbranch_scc0 L_t01")
        a("s_mov_b32 s88, s%d" % PQKV); a("s_mov_b32 s89, s%d" % (PQKV + 1))
        a("s_lshl_b32 s3, s34, 6")
        a("s_movk_i32 s92, 6144")
        a("s_movk_i32 s93, 2048")
        a("s_mov_b32 s90, %d" % (1024 * 6144))
        a.label("L_t01")
        a("v_lshrrev_b32 v21, 2, v17")
        a("v_and_b32 v22, 3, v17")
        a("v_mul_u32_u24 v30, s92, v21")
        a("v_mul_u32_u24 v23, s93, v22")
        a("v_and_b32 v23, -4, v23")
        a("v_add3_u32 v30, v30, v23, s3")
        a("v_cmp_eq_u32 vcc, 3, v22")
        a("v_mov_b32 v23, %d" % OOB)
        a("s_lshl_b32 s94, s33, 4")
        a("v_cndmask_b32 v30, v30, v23, vcc")
        a("s_mul_i32 s94, s94, s92")
        a("s_lshl_b32 s95, s92, 7")
        a("s_branch L_td")
        a.label("L_t3")
        a("v_lshlrev_b32 v30, 11, v18")
        a("v_lshl_add_u32 v30, v19, 7, v30")
        a("s_and_b32 s3, s2, 1")
        a("s_add_u32 s3, s3, 1")
        a("s_mul_i32 s90, s3, %d" % (1792 * 2048))
        a("s_lshr_b32 s94, s2, 3")
        a("s_lshl_b32 s94, s94, 14")
        a("s_add_u32 s94, s94, s90")
        a("s_bfe_u32 s3, s2, 0x10002")
        a("s_lshl_b32 s3, s3, 10")
        a("s_add_u32 s94, s94, s3")
        a("s_add_u32 s94, s94, %d" % (2 * 256 * 2048))
        a("s_mov_b32 s95, %d" % ((-256 * 2048) & 0xffffffff))
        a.label("L_td")
        a("s_mov_b32 s91, 0x20000")
        for k in range(P.get("early_touch", 1)):
            V("t", "buffer_load_dword v29, v30, s[88:91], s94 offen")
            a("s_add_u32 s94, s94, s95")
    a("v_lshlrev_b32 v21, 17, v16")
    a("v_lshrrev_b32 v22, 2, v19")
    a("v_lshl_add_u32 v21, v22, 10, v21")
    a("v_and_b32 v22, 3, v19")
    a("v_lshl_add_u32 v21, v22, 8, v21")
    a("v_lshl_add_u32 v28, v18, 4, v21")
    a("s_lshl_b32 s50, s33, 19")
    a("s_lshr_b32 s51, s34, 1")
    a("s_lshl_b32 s51, s51, 11")
    a("s_add_u32 s50, s50, s51")
    a("s_lshl_b32 s51, s57, 7")
    a("s_add_u32 s50, s50, s51")
    a("s_add_u32 s51, s50, 32768")
    a("s_add_u32 s52, s50, 65536")
    a("s_add_u32 s53, s50, 98304")
    a("v_lshlrev_b32 v26, 5, v18")
    a("v_add_u32 v26, %d, v26" % LNX)
    a("v_lshl_add_u32 v27, v16, 3, v26")
    srd(a, 24, PWS, XN_OFF, 0)
    a("s_add_u32 s26, s33, 1")
    a("s_lshl_b32 s26, s26, 19")
    a("s_mov_b32 s54, 0xffff0000")

    def g1_setup(hook):
        a("v_lshlrev_b32 v15, 4, v17")
        a("v_lshrrev_b32 v18, 2, v17")
        a("v_and_b32 v19, 3, v17")
        a("v_lshlrev_b32 v19, 3, v19")
        a("s_movk_i32 s3, 224")
        a("v_mad_u32_u24 v1, v18, s3, v19")
        a("v_and_b32 v20, 1, v17")
        a("v_lshlrev_b32 v20, 4, v20")
        a("v_and_b32 v21, 2, v17")
        a("v_lshl_add_u32 v20, v21, 2, v20")
        a("v_mad_u32_u24 v5, v18, s3, v20")
        a("s_movk_i32 s3, 192")
        a("v_mad_u32_u24 v2, v18, s3, v19")
        a("v_add_u32 v2, %d, v2" % QKV)
        a("v_and_b32 v19, 16, v17")
        a("v_lshlrev_b32 v19, 1, v19")
        a("v_xor_b32 v20, 32, v19")
        a("v_add_u32 v3, v2, v20")
        a("v_add_u32 v2, v2, v19")
        a("s_and_b32 s3, s32, 1")
        a("s_cmp_eq_u32 s3, 1")
        a("s_cselect_b64 vcc, -1, 0")
        a("v_cndmask_b32 v4, v2, v3, vcc")
        a("s_lshr_b32 s3, s32, 1")
        a("s_lshl_b32 s3, s3, 6")
        a("s_add_u32 s3, s3, 64")
        a("v_add_u32 v4, s3, v4")
        def krow(dst, rho, t1):
            a("v_and_b32 v%d, 35, v%d" % (dst, rho))
            a("v_bfe_u32 v%d, v%d, 2, 2" % (t1, rho))
            a("v_lshl_or_b32 v%d, v%d, 3, v%d" % (dst, t1, dst))
            a("v_bfe_u32 v%d, v%d, 4, 1" % (t1, rho))
            a("v_lshl_or_b32 v%d, v%d, 2, v%d" % (dst, t1, dst))
        a("s_mul_i32 s56, s32, 192")
        a("s_lshl_b32 s59, s34, 6")
        a("s_movk_i32 s60, 4682")
        a("s_movk_i32 s61, 5462")
        a("s_movk_i32 s62, 7168")
        a("s_movk_i32 s63, 6144")
        a("s_lshl_b32 s48, s57, 4")
        a("s_sub_u32 s49, s57, 12")
        def gu_off(dst, imm):
            a("v_mul_u32_u24 v21, s60, v20")
            a("v_lshrrev_b32 v21, 16, v21")
            a("v_mul_u32_u24 v22, 14, v21")
            a("v_sub_u32 v22, v20, v22")
            a("v_cmp_gt_u32 vcc, 12, v22")
            a("v_lshl_add_u32 v23, v22, 1, s49")
            a("v_add_u32 v22, s48, v22")
            a("v_cndmask_b32 v22, v23, v22, vcc")
            krow(24, 21, 23)
            a("v_lshlrev_b32 v22, 4, v22")
            a("v_mad_u32_u24 v%d, v24, s62, v22" % dst)
            a("s_sub_u32 s3, s58, %d" % imm)
            a("v_add_u32 v%d, s3, v%d" % (dst, dst))
        def qkv_off(dst, imm):
            a("v_mul_u32_u24 v21, s61, v20")
            a("v_lshrrev_b32 v21, 16, v21")
            a("v_mul_u32_u24 v22, 12, v21")
            a("v_sub_u32 v22, v20, v22")
            a("v_lshrrev_b32 v23, 1, v21")
            a("v_and_b32 v23, 2, v23")
            a("v_xor_b32 v22, v22, v23")
            a("v_lshrrev_b32 v25, 2, v22")
            a("v_and_b32 v22, 3, v22")
            a("v_lshlrev_b32 v22, 4, v22")
            a("v_lshl_add_u32 v22, v25, 11, v22")
            krow(24, 21, 23)
            a("v_mad_u32_u24 v%d, v24, s63, v22" % dst)
            a("s_sub_u32 s3, s59, %d" % imm)
            a("v_add_u32 v%d, s3, v%d" % (dst, dst))
        for q in range(3):
            a("s_add_u32 s3, s56, %d" % (64 * q))
            a("v_add_u32 v20, s3, v17")
            gu_off(8 + q, 1024 * q)
            qkv_off(11 + q, 1024 * q)
            if q == P.get("flagq", 1): hook()
        a("s_and_b32 s3, s32, 1")
        a("s_lshl_b32 s3, s3, 6")
        a("s_add_u32 s3, s3, 768")
        a("v_add_u32 v20, s3, v17")
        gu_off(14, 0)
        a("s_mul_i32 s43, s32, 3072")
        a("s_add_u32 s44, s43, %d" % UP)
        a("s_add_u32 s45, s43, %d" % QKV)
        a("s_lshr_b32 s46, s32, 1")
        a("s_mul_i32 s46, s46, %d" % UP)
        a("s_and_b32 s3, s32, 1")
        a("s_lshl_b32 s3, s3, 10")
        a("s_add_u32 s46, s46, s3")
        a("s_add_u32 s46, s46, 12288")
        a("s_lshl_b32 s60, s33, 19")
        a("s_lshl_b32 s3, s32, 13")
        a("s_add_u32 s60, s60, s3")
        a("s_max_u32 s61, s33, 1")
        a("s_sub_u32 s61, s61, 1")
        a("s_lshl_b32 s59, s61, 9")
        a("s_lshl_b32 s61, s61, 19")
        a("s_add_u32 s61, s61, %d" % (3 * 8192 + 3 * 2048))
        a("s_mov_b32 s62, %d" % SLOT)
        a("s_mov_b32 s63, %d" % ((-2 * SLOT) & 0xffffffff))
        if ROT1:
            a("s_lshl_b32 s35, s35, 1")
            a("s_add_u32 s35, s35, s33")
            a("s_and_b32 s35, s35, 7")
        srd(a, 8, PG, 0, 1024 * 7168)
        srd(a, 12, PU, 0, 1024 * 7168)
        srd(a, 16, PQKV, 0, 1024 * 6144)
        srd(a, 28, PWS, ACT_OFF, ACT_BYTES)
        a("s_lshl_b32 s3, s33, 9")
        a("s_lshl_b32 s48, s32, 7")
        a("s_add_u32 s3, s3, s48")
        a("v_lshl_add_u32 v20, v17, 2, s3")
        a("v_and_b32 v21, 7, v17")
        a("s_add_u32 s59, s59, 480")
        a("v_lshl_add_u32 v21, v21, 2, s59")
        a("v_cmp_gt_u32 vcc, 32, v17")
        a("s_nop 1")
        a("v_cndmask_b32 v25, v21, v20, vcc")
    vwait("x")
    stamp()
    a("v_readfirstlane_b32 s96, v7")
    X, T = 48, 80
    a("s_mov_b32 s3, 0x3f803f80")
    a("v_mov_b32 v116, s3")
    for r in range(16):
        c1 = "0" if r < 2 else "v%d" % (112 + 2 * (r % 2))
        c2 = "0" if r < 2 else "v%d" % (113 + 2 * (r % 2))
        a("v_dot2_f32_bf16 v%d, v%d, v116, %s" % (112 + 2 * (r % 2), LX + r, c1))
        a("v_dot2_f32_bf16 v%d, v%d, v%d, %s" % (113 + 2 * (r % 2), LX + r, LX + r, c2))
    a("s_add_u32 s96, s96, 0x%x" % NONCE_ADD)
    a("s_nop 1")
    a("v_pk_add_f32 v[112:113], v[112:113], v[114:115]")
    for m in ("quad_perm:[1,0,3,2]", "quad_perm:[2,3,0,1]", "row_half_mirror"):
        a("s_nop 0" if m != "quad_perm:[1,0,3,2]" else "s_nop 1")
        for v in (112, 113):
            a("v_add_f32_dpp v%d, v%d, v%d %s row_mask:0xf bank_mask:0xf" % (v, v, v, m))
    a("ds_write_b64 v27, v[112:113]")
    for r in range(8):
        a("v_lshlrev_b32 v%d, 16, v%d" % (X + 2 * r, LX + r))
        a("v_and_b32 v%d, s54, v%d" % (X + 2 * r + 1, LX + r))
    a("s_waitcnt lgkmcnt(0)")
    a("s_barrier")
    a("ds_read_b128 v[80:83], v26")
    a("ds_read_b128 v[84:87], v26 offset:16")
    for r in range(8, 16):
        a("v_lshlrev_b32 v%d, 16, v%d" % (X + 2 * r, LX + r))
        a("v_and_b32 v%d, s54, v%d" % (X + 2 * r + 1, LX + r))
    a("s_waitcnt lgkmcnt(0)")
    a("v_pk_add_f32 v[80:81], v[80:81], v[82:83]")
    a("v_pk_add_f32 v[84:85], v[84:85], v[86:87]")
    a("v_pk_add_f32 v[80:81], v[80:81], v[84:85]")
    a("v_mul_f32 v88, 0x3a800000, v80")
    a("v_mul_f32 v81, 0x3a800000, v81")
    a("v_fma_f32 v81, -v88, v88, v81")
    a("v_max_f32 v81, 0, v81")
    a("v_cvt_pk_bf16_f32 v88, v88, v81")
    a("v_and_b32 v81, s54, v88")
    a("v_lshlrev_b32 v88, 16, v88")
    a("v_add_f32 v81, 0x3727c5ac, v81")
    a("v_cvt_pk_bf16_f32 v81, v81, v81")
    a("v_and_b32 v81, s54, v81")
    a("v_sqrt_f32 v81, v81")
    a("s_nop 0")
    a("v_cvt_pk_bf16_f32 v81, v81, v81")
    a("v_and_b32 v81, s54, v81")
    a("v_rcp_f32 v90, v81")
    a("v_sub_f32 v88, 0, v88")
    a("v_mov_b32 v89, v88")
    a("v_mov_b32 v91, v90")
    for u in range(4):
        R = range(4 * u, 4 * u + 4)
        for r in R: a("v_pk_add_f32 %s, %s, v[88:89]" % (vr(X + 2 * r, 2), vr(X + 2 * r, 2)))
        for r in R: a("v_cvt_pk_bf16_f32 v%d, v%d, v%d" % (LX + r, X + 2 * r, X + 2 * r + 1))
        for r in R:
            a("v_lshlrev_b32 v%d, 16, v%d" % (X + 2 * r, LX + r))
            a("v_and_b32 v%d, s54, v%d" % (X + 2 * r + 1, LX + r))
        for r in R: a("v_pk_mul_f32 %s, %s, v[90:91]" % (vr(X + 2 * r, 2), vr(X + 2 * r, 2)))
        for r in R: a("v_cvt_pk_bf16_f32 v%d, v%d, v%d" % (LX + r, X + 2 * r, X + 2 * r + 1))
        V("xs", "buffer_store_dwordx4 %s, v28, s[24:27], s%d offen %s" % (vr(LX + 4 * u, 4), 50 + u, SC))
    stamp()
    a("s_lshl_b32 s92, s36, 4")
    a("s_lshl2_add_u32 s92, s32, s92")
    a("v_mov_b32 v7, s96")
    def flag0():
        vwait("xs")
        V("f", "buffer_store_dword v7, v6, s[84:87], s92 offen %s" % SC)
        stamp()
    g1_setup(flag0)
    a("s_cmp_lt_u32 s32, 2")
    a("s_cselect_b32 s20, s%d, s%d" % (PG, PU))
    a("s_cselect_b32 s21, s%d, s%d" % (PG + 1, PU + 1))
    a("s_mov_b32 s22, %d" % (1024 * 7168))
    a("s_mov_b32 s23, 0x20000")

    def tau_ops():
        if ROT1:
            o = ["s_add_u32 s3, s36, s35", "s_and_b32 s3, s3, 7", "s_andn2_b32 s47, s36, 7", "s_or_b32 s47, s47, s3"]
        else:
            o = ["s_mov_b32 s47, s36"]
        return o + ["s_mul_i32 s38, s47, 458752", "s_mul_i32 s39, s47, 393216"]
    def xoff_ops():
        return ["s_lshl_b32 s40, s47, 15", "s_add_u32 s42, s40, s61", "s_add_u32 s40, s40, s60", "s_add_u32 s41, s40, 4096"]
    def wdma_ops(tag):
        o = []
        for (mreg, sd, vb, so) in ((43, 8, 8, 38), (44, 12, 8, 38), (45, 16, 11, 39)):
            o.append("s_add_u32 m0, s37, s%d" % mreg)
            for q in range(3):
                o.append((tag, "buffer_load_dwordx4 v%d, s[%d:%d], s%d offen offset:%d lds" % (vb + q, sd, sd + 3, so, 1024 * q)))
        o.append("s_add_u32 m0, s37, s46")
        o.append((tag, "buffer_load_dwordx4 v14, s[20:23], s38 offen lds"))
        return o
    def xld_ops(buf, tag):
        o = []
        for f in range(8):
            o.append((tag, "buffer_load_dwordx4 %s, v15, s[24:27], s%d offen offset:%d %s" % (ar(XB(buf, f // 2, f % 2), 4), 40 + f // 4, 1024 * (f % 4), XSC)))
        for kh in range(2):
            o.append((tag, "buffer_load_dwordx4 %s, v15, s[24:27], s42 offen offset:%d %s" % (ar(XB(buf, 4, kh), 4), 1024 * kh, XSC)))
        return o
    def E(o):
        if isinstance(o, tuple): V(*o)
        else: a(o)

    a("s_mov_b32 s36, 0"); a("s_mov_b32 s37, 0")
    for o in tau_ops() + wdma_ops("W0") + xoff_ops(): E(o)

    V("p", "buffer_load_dword v24, v25, s[84:87], 0 offen %s" % SC)
    stamp()
    for r in range(32, 256, 2): a("v_mov_b64 %s, 0" % vr(r, 2))
    for r in range(0, 100, 4): a("v_mfma_f32_16x16x32_bf16 %s, v[48:51], v[48:51], 0" % ar(r, 4))
    check_flags(24, 25, "0", "p", "L_f0")
    stamp()
    for o in xld_ops(0, "X0"): E(o)
    a("s_mov_b32 s36, 1"); a("s_mov_b32 s37, %d" % SLOT)
    for o in tau_ops() + wdma_ops("W"): E(o)
    if TOUCH:
        for k in range(2 - P.get("early_touch", 1)):
            V("t", "buffer_load_dword v29, v30, s[88:91], s94 offen")
            a("s_add_u32 s94, s94, s95")

    blocks = []
    for p in range(7): blocks += [("gu", p, 0), ("gu", p, 1)]
    blocks += [("q", s) for s in range(6)]
    def wreads(b, dst):
        o = []
        for kh in range(2):
            for s2 in range(2):
                d = ar(dst(kh) + 2 * s2, 2)
                if b[0] == "gu":
                    o.append("ds_read_b64_tr_b16 %s, v%d offset:%d" % (d, 5 if b[1] == 6 else 1, b[2] * UP + (32 * kh + 16 * s2) * 224 + 32 * b[1]))
                elif b[0] == "q":
                    o.append("ds_read_b64_tr_b16 %s, v%d offset:%d" % (d, 2 + b[1] % 2, (32 * kh + 16 * s2) * 192 + 64 * (b[1] // 2)))
                else:
                    o.append("ds_read_b64_tr_b16 %s, v4 offset:%d" % (d, (32 * kh + 16 * s2) * 192))
        return o
    def mfmas(bi, buf):
        b = blocks[bi]
        o = []
        for m in range(4):
            for kh in range(2):
                w, x = ar(WR(bi % 4, kh), 4), ar(XB(buf, m, kh), 4)
                c = vr(accGU(b[1], b[2], m), 4) if b[0] == "gu" else ar(accQ(b[1], m), 4)
                if b[0] == "q" and b[1] >= 4: w, x = x, w
                o.append("v_mfma_f32_16x16x32_bf16 %s, %s, %s, %s" % (c, w, x, c))
        return o

    vwait("X0")
    a("s_barrier")
    stamp()
    for bi in range(3):
        for o in wreads(blocks[bi], lambda kh: WR(bi % 4, kh)): a(o)

    HRB, HMB = 9, 13
    def step(buf, misc, final=False, loop=None):
        lg = Cnt([0] * 4 + [1] * 4 + [2] * 4)
        slots = [(bi, g) for bi in range(17) for g in (1, 3, 5, 7) if bi != HRB]
        place = {}
        n = len(misc)
        assert n <= len(slots)
        for k, o in enumerate(misc):
            place.setdefault(slots[k * len(slots) // n], []).append(o)
        for bi in range(20):
            mf = mfmas(bi, buf)
            fill = {}
            w = lg.need(bi)
            if w is not None: a("s_waitcnt lgkmcnt(%d)" % w)
            rd = []
            if bi <= 16: rd = [(bi + 3, o) for o in wreads(blocks[bi + 3], lambda kh: WR((bi + 3) % 4, kh))]; gaps = [0, 2, 4, 6]
            elif bi == 18 and not final:
                rd = [(100, o) for o in wreads(blocks[0], lambda kh: WR(0, kh))] + [(101, o) for o in wreads(blocks[1], lambda kh: WR(1, kh))]
                gaps = list(range(8))
            elif bi == 19 and not final: rd = [(102, o) for o in wreads(blocks[2], lambda kh: WR(2, kh))]; gaps = [0, 2, 4, 6]
            if bi == HRB:
                hr = [("H", o) for o in wreads(("h",), HW)]
                rd = [x for pr in zip(rd, hr) for x in pr]; gaps = list(range(8))
            for (tag, o), g in zip(rd, gaps if rd else []):
                fill.setdefault(g, []).append(o); lg.issue(tag)
            for g in (1, 3, 5, 7):
                for o in place.get((bi, g), []): fill.setdefault(g, []).append(o)
            if bi == HMB:
                assert lg.need("H") is None
                for kh in range(2):
                    mf.append("v_mfma_f32_16x16x32_bf16 %s, %s, %s, %s" % (ar(HACC, 4), ar(HW(kh), 4), ar(XB(buf, 4, kh), 4), ar(HACC, 4)))
            if bi == 17 and not final:
                for k, r in enumerate((1, 2, 3, 4, 5)):
                    fill.setdefault(k + 1, []).append("v_add_u32 v%d, s93, v%d" % (r, r))
                fill.setdefault(7, []).append("BAR")
                lg.clear()
            if bi == 19 and loop:
                fill.setdefault(5, []).append("s_cmp_lt_u32 s36, 15")
                fill.setdefault(7, []).append("s_cbranch_scc1 %s" % loop)
            for i, m in enumerate(mf):
                a(m)
                for o in fill.get(i, []):
                    if o == "BAR":
                        vwait("X", lg0=True); a("s_barrier")
                    else: E(o)
    slot_ops = ["s_add_u32 s37, s37, s62", "s_cmp_eq_u32 s37, %d" % (3 * SLOT), "s_cselect_b32 s37, 0, s37",
                "s_cmp_eq_u32 s37, s62", "s_cselect_b32 s93, s63, s62"]
    touch_ops = [("t", "buffer_load_dword v29, v30, s[88:91], s94 offen"), "s_add_u32 s94, s94, s95"] if TOUCH else []
    def std_misc(buf, touch):
        return xoff_ops() + xld_ops(buf ^ 1, "X") + ["s_add_u32 s36, s36, 1"] + tau_ops() + slot_ops + wdma_ops("W") + (touch_ops if touch else [])
    a(".p2align 6")
    a.label("L_g1")
    vm.q = ["W"] * 10
    step(0, std_misc(0, True))
    step(1, std_misc(1, False), loop="L_g1")
    assert vm.q == ["W"] * 10, vm.q

    VDW = 16
    g2s = [
        "s_and_b32 s4, s2, 1",
        "s_bfe_u32 s5, s2, 0x10001", "s_lshl_b32 s5, s5, 3", "s_bfe_u32 s3, s2, 0x30003", "s_add_u32 s5, s5, s3",
        "s_bfe_u32 s6, s2, 0x10002", "s_lshl_b32 s6, s6, 2", "s_lshr_b32 s3, s2, 6", "s_add_u32 s6, s6, s3",
        "s_add_u32 s7, s5, s6",
        "s_lshl_b32 s48, s4, 2", "s_lshl_b32 s49, s6, 8", "s_lshl_b32 s50, s32, 15", "s_add_u32 s50, s50, s49",
        "v_lshrrev_b32 v20, 8, v15", "v_bfe_u32 v21, v15, 5, 3", "v_xor_b32 v21, s48, v21", "v_xor_b32 v21, v21, v20",
        "v_and_b32 v22, 16, v15", "v_lshl_add_u32 v22, v20, 11, v22",
        "v_lshl_add_u32 v16, v21, 5, v22", "v_add_u32 v16, s50, v16",
        "v_xor_b32 v17, 0x80, v16", "v_add_u32 v17, %d, v17" % (8192 - 1024),
        "v_add_u32 v18, %d, v16" % (2 * (8192 - 1024)), "v_add_u32 v19, %d, v17" % (2 * (8192 - 1024)),
        "s_mul_i32 s55, s4, %d" % (1792 * 2048),
        "s_lshl_b32 s56, s32, 12", "s_add_u32 s56, s56, %d" % R2,
        "s_mov_b32 s8, s%d" % PD, "s_mov_b32 s9, s%d" % (PD + 1), "s_mov_b32 s10, %d" % (3584 * 2048),
    ]
    cpf2 = []
    if P.get("codepf", 1):
        cpf2 = ["v_lshlrev_b32 v20, 3, v15", "s_bfe_u32 s3, s2, 0x30003", "s_lshl_b32 s3, s3, 13", ("t", "buffer_load_dword v29, v20, s[4:7], s3 offen")]
    rots = []
    for u in range(4):
        rots.append((["s_add_u32 s3, s7, %d" % u, "s_and_b32 s3, s3, 3"] if ROT2 else ["s_mov_b32 s3, %d" % u]) + ["s_lshl_b32 s%d, s3, 17" % (44 + u)])
    ND, NO = 28, 8
    VW, VWO, VX, VDO = 8, 20, 24, 32 + 0
    VDO = 40
    def wops(sg):
        if sg >= ND + NO: return []
        u = sg % 4
        o = []
        if sg < ND:
            if u == 0 and sg > 0: o.append("s_add_u32 s55, s55, %d" % (4 * 131072))
            o.append("s_add_u32 s38, s55, s%d" % (44 + u))
            sd, vb = 8, VDW
        else:
            if sg == ND: o.append("s_mov_b32 s55, 0")
            elif u == 0: o.append("s_mov_b32 s55, %d" % (4 * 262144))
            o.append("s_lshl1_add_u32 s38, s%d, s55" % (44 + u))
            sd, vb = 12, VDO
        o.append("s_add_u32 m0, s56, %d" % (u * 16384))
        for q in range(4):
            o.append(("W%d" % sg, "buffer_load_dwordx4 v%d, s[%d:%d], s38 offen offset:%d lds" % (vb + q, sd, sd + 3, 1024 * q)))
        return o
    step(0, xoff_ops() + xld_ops(1, "X") + ["s_mov_b32 s93, s63"] + touch_ops + cpf2 + g2s + rots[0] + wops(0))
    atom = ["s_mov_b32 s12, s%d" % PDBG, "s_mov_b32 s13, s%d" % (PDBG + 1), "s_movk_i32 s14, 256", "v_mov_b32 v28, 1", "v_mov_b32 v20, %d" % OOB,
            "v_cmp_eq_u32 vcc, 0, v0", "v_cndmask_b32 v20, v20, v6, vcc", ("at", "buffer_atomic_add v28, v20, s[12:15], 0 offen sc0 sc1")]
    wot = []
    if TOUCH:
        wot = ["s_mov_b32 s88, s%d" % PWO, "s_mov_b32 s89, s%d" % (PWO + 1), "s_mov_b32 s90, %d" % (1024 * 2048),
               "v_lshrrev_b32 v30, 7, v15", "v_lshlrev_b32 v30, 11, v30", "v_bfe_u32 v21, v15, 4, 2", "v_lshl_add_u32 v30, v21, 8, v30",
               "s_lshr_b32 s94, s2, 3", "s_lshl2_add_u32 s94, s94, s32", "s_lshl_b32 s94, s94, 14", "s_and_b32 s3, s6, 4", "s_lshl_b32 s3, s3, 8", "s_add_u32 s94, s94, s3",
               "s_lshl_b32 s3, s4, 7", "s_add_u32 s94, s94, s3", ("t", "buffer_load_dword v29, v30, s[88:91], s94 offen")]
    step(1, atom + rots[1] + wops(1) + rots[2] + wops(2) + rots[3] + wops(3) + wot, final=True)
    stamp()

    a("s_nop 7")
    a("s_mov_b32 s50, 0xbfb8aa3b"); a("s_mov_b32 s51, 0xbfb8aa3b")
    a("s_mov_b32 s52, 1.0"); a("s_mov_b32 s53, 1.0")
    def cvt_acc(dst, src, t):
        for r in range(4): a("v_accvgpr_read_b32 v%d, a%d" % (t + r, src + r))
        a("v_cvt_pk_bf16_f32 v%d, v%d, v%d" % (dst, t, t + 1))
        a("v_cvt_pk_bf16_f32 v%d, v%d, v%d" % (dst + 1, t + 2, t + 3))
    a("s_lshl_b32 s40, s33, 1")
    a("s_lshr_b32 s3, s32, 1")
    a("s_add_u32 s40, s40, s3")
    a("s_mul_i32 s40, s40, %d" % ACT_MT)
    a("s_and_b32 s3, s32, 1")
    a("s_lshl_b32 s3, s3, 12")
    a("s_add_u32 s40, s40, s3")
    a("s_lshr_b32 s41, s34, 1")
    a("s_mul_i32 s41, s41, %d" % (7 * 8192))
    a("s_add_u32 s41, s41, s40")
    a("s_lshl_b32 s42, s57, 9")
    a("s_add_u32 s42, s42, s41")
    a("s_add_u32 s42, s42, %d" % (3 * 8192))
    a("s_lshl_b32 s3, s57, 15")
    a("s_add_u32 s41, s41, s3")
    a("s_add_u32 s43, s34, 112")
    a("s_lshl_b32 s43, s43, 13")
    a("s_add_u32 s43, s43, s40")
    def swiglu(items):
        for (G, U, T, D) in items:
            for h in (0, 2): a("v_pk_mul_f32 %s, %s, s[50:51]" % (vr(T + h, 2), vr(G + h, 2)))
        for (G, U, T, D) in items:
            for r in range(4): a("v_exp_f32 v%d, v%d" % (T + r, T + r))
            for h in (0, 2): a("v_pk_mul_f32 %s, %s, %s" % (vr(U + h, 2), vr(G + h, 2), vr(U + h, 2)))
        for (G, U, T, D) in items:
            for h in (0, 2): a("v_pk_add_f32 %s, %s, s[52:53]" % (vr(T + h, 2), vr(T + h, 2)))
        for (G, U, T, D) in items:
            for r in range(4): a("v_rcp_f32 v%d, v%d" % (T + r, T + r))
        a("s_nop 0")
        for (G, U, T, D) in items:
            for h in (0, 2): a("v_pk_mul_f32 %s, %s, %s" % (vr(U + h, 2), vr(U + h, 2), vr(T + h, 2)))
        for (G, U, T, D) in items:
            a("v_cvt_pk_bf16_f32 v%d, v%d, v%d" % (D, U, U + 1))
            a("v_cvt_pk_bf16_f32 v%d, v%d, v%d" % (D + 1, U + 2, U + 3))
    for pp in range(3):
        for m in range(4):
            g0 = accGU(2 * pp, 0, m)
            swiglu([(g0, accGU(2 * pp, 1, m), 20, g0), (accGU(2 * pp + 1, 0, m), accGU(2 * pp + 1, 1, m), 24, g0 + 2)])
            V("hs", "buffer_store_dwordx4 %s, v15, s[28:31], s41 offen offset:%d %s" % (vr(g0, 4), 1024 * m, SC))
        if pp < 2: a("s_add_u32 s41, s41, 8192")
    a("v_bfe_u32 v8, v15, 8, 1")
    a("v_lshlrev_b32 v8, 10, v8")
    a("v_lshrrev_b32 v9, 9, v15")
    a("v_lshl_add_u32 v8, v9, 8, v8")
    a("v_and_b32 v9, 0xf0, v15")
    a("v_add_u32 v8, v8, v9")
    for m in (0, 2):
        g0 = accGU(6, 0, m)
        swiglu([(accGU(6, 0, m + d), accGU(6, 1, m + d), 20 + 4 * d, g0 + 2 * d) for d in (0, 1)])
        a("s_nop 1")
        a("v_permlane16_swap_b32 v%d, v%d" % (g0, g0 + 2))
        a("v_permlane16_swap_b32 v%d, v%d" % (g0 + 1, g0 + 3))
        a("s_nop 0")
        V("hs", "buffer_store_dwordx4 %s, v8, s[28:31], s42 offen offset:%d %s" % (vr(g0, 4), 1024 * m, SC))
    stamp()
    R0, R1, R2_ = accGU(0, 1, 0), accGU(2, 1, 0), accGU(4, 1, 0)
    Qf = lambda m: R0 + 4 * m
    Kf = lambda m: R0 + 16 + 4 * (m + 1)
    VV = lambda f, m: R1 + 10 * f + 2 * (m + 1)
    Pf = lambda m: R1 + 20 + 4 * m
    Sp = lambda m: R2_ + 8 * m
    Sc = lambda m: R2_ + 8 * m + 4
    TT = lambda m: R2_ + 32 + 4 * m
    cvt_acc(Kf(3), accQ(2, 3), 20); cvt_acc(Kf(3) + 2, accQ(3, 3), 24)
    cvt_acc(VV(0, 3), accQ(4, 3), 20); cvt_acc(VV(1, 3), accQ(5, 3), 24)
    a("s_lshl_b32 s3, s32, 11")
    a("s_add_u32 s3, s3, %d" % EX)
    a("v_add_u32 v1, s3, v15")
    a("ds_write_b128 v1, %s offset:2048" % vr(Kf(3), 4))
    a("ds_write_b64 v1, %s offset:3072" % vr(VV(0, 3), 2))
    a("ds_write_b64 v1, %s offset:3080" % vr(VV(1, 3), 2))
    cvt_acc(2, HACC, 20)
    a("v_lshrrev_b32 v12, 4, v15")
    a("s_and_b32 s3, s32, 1")
    a("s_lshl_b32 s3, s3, 3")
    a("s_add_u32 s3, s3, %d" % EX)
    a("s_cmp_ge_u32 s32, 2")
    a("s_cbranch_scc1 L_hv")
    a("v_add_u32 v4, s3, v15")
    a("ds_write_b64 v4, v[2:3]")
    a("s_branch L_hd")
    a.label("L_hv")
    a("v_bfe_u32 v4, v12, 2, 2")
    a("v_lshlrev_b32 v4, 8, v4")
    a("v_lshrrev_b32 v9, 4, v12")
    a("v_lshl_add_u32 v4, v9, 6, v4")
    a("v_and_b32 v9, 3, v12")
    a("v_lshl_add_u32 v4, v9, 1, v4")
    a("v_add_u32 v4, s3, v4")
    a("ds_write_b16 v4, v2 offset:1024")
    a("ds_write_b16_d16_hi v4, v2 offset:1040")
    a("ds_write_b16 v4, v3 offset:1056")
    a("ds_write_b16_d16_hi v4, v3 offset:1072")
    a.label("L_hd")
    for m in range(4):
        cvt_acc(Qf(m), accQ(0, m), 20); cvt_acc(Qf(m) + 2, accQ(1, m), 24)
        if m < 3:
            cvt_acc(Kf(m), accQ(2, m), 20); cvt_acc(Kf(m) + 2, accQ(3, m), 24)
    a("s_waitcnt lgkmcnt(0)")
    a("s_barrier")
    a("ds_read_b128 %s, v1" % vr(Kf(-1), 4))
    a("ds_read_b64 %s, v1 offset:1024" % vr(VV(0, -1), 2))
    a("ds_read_b64 %s, v1 offset:1032" % vr(VV(1, -1), 2))
    for m in (1, 2, 3, 0):
        if m == 0: a("s_waitcnt lgkmcnt(0)")
        a("v_mfma_f32_16x16x32_bf16 %s, %s, %s, 0" % (vr(Sc(m), 4), vr(Kf(m), 4), vr(Qf(m), 4)))
        a("v_mfma_f32_16x16x32_bf16 %s, %s, %s, 0" % (vr(Sp(m), 4), vr(Kf(m - 1), 4), vr(Qf(m), 4)))
    for m in range(3):
        cvt_acc(VV(0, m), accQ(4, m), 20); cvt_acc(VV(1, m), accQ(5, m), 24)
    a("v_and_b32 v8, 15, v12")
    a("v_and_b32 v9, 1, v12")
    a("v_lshrrev_b32 v10, 4, v12")
    a("v_lshl_add_u32 v10, v10, 2, v9")
    a("v_cmp_le_u32 s[58:59], v10, v8")
    a("v_add_u32 v10, 2, v10")
    a("v_cmp_le_u32 s[60:61], v10, v8")
    a("v_cmp_ne_u32 s[62:63], 0, v9")
    a("v_lshlrev_b32 v9, 4, v9")
    a("s_or_b32 s3, s33, s32")
    a("s_cmp_eq_u32 s3, 0")
    a("s_cselect_b64 s[88:89], -1, 0")
    a("s_andn2_b64 s[90:91], s[88:89], s[60:61]")
    a("s_andn2_b64 s[88:89], s[88:89], s[58:59]")
    a("v_mov_b32 v11, 0xce6e6b28")
    a("s_mov_b32 s48, 0x3e3504f3")
    a("s_mov_b32 s49, 0x3fb8aa3b")
    M4 = range(4)
    for m in M4:
        for S_ in (Sp, Sc):
            a("v_cndmask_b32 v%d, v%d, v%d, s[62:63]" % (S_(m), S_(m), S_(m) + 1))
            a("v_cndmask_b32 v%d, v%d, v%d, s[62:63]" % (S_(m) + 2, S_(m) + 2, S_(m) + 3))
    A_ = lambda m: TT(m)
    B_ = lambda m: TT(m) + 1
    X_ = lambda m: TT(m) + 2
    Y_ = lambda m: TT(m) + 3
    for m in M4:
        a("v_cndmask_b32 v%d, v%d, v%d, s[58:59]" % (A_(m), Sp(m), Sc(m)))
        a("v_cndmask_b32 v%d, v%d, v%d, s[60:61]" % (B_(m), Sp(m) + 2, Sc(m) + 2))
    def rnd():
        for m in M4: a("v_cvt_pk_bf16_f32 v%d, v%d, v%d" % (X_(m), A_(m), B_(m)))
        for m in M4:
            a("v_lshlrev_b32 v%d, 16, v%d" % (A_(m), X_(m)))
            a("v_and_b32 v%d, s54, v%d" % (B_(m), X_(m)))
    rnd()
    for m in M4:
        a("v_mul_f32 v%d, s48, v%d" % (A_(m), A_(m)))
        a("v_mul_f32 v%d, s48, v%d" % (B_(m), B_(m)))
    rnd()
    a("v_cndmask_b32 v%d, v%d, v11, s[88:89]" % (A_(0), A_(0)))
    a("v_cndmask_b32 v%d, v%d, v11, s[90:91]" % (B_(0), B_(0)))
    a("s_lshl_b32 s92, s33, 2")
    a("s_add_u32 s92, s92, s32")
    a("s_lshl_b32 s92, s92, 7")
    a("s_lshl2_add_u32 s92, s34, s92")
    a("s_add_u32 s92, s92, %d" % F1H)
    vwait("hs")
    V("f", "buffer_store_dword v7, v6, s[84:87], s92 offen %s" % SC)
    stamp()
    def reduce(op):
        for m in M4: a("%s v%d, v%d, v%d" % (op, X_(m), A_(m), B_(m)))
        for sw in ("v_permlane16_swap_b32", "v_permlane32_swap_b32"):
            for m in M4: a("v_mov_b32 v%d, v%d" % (Y_(m), X_(m)))
            a("s_nop 1")
            for m in M4: a("%s v%d, v%d" % (sw, X_(m), Y_(m)))
            a("s_nop 1")
            for m in M4: a("%s v%d, v%d, v%d" % (op, X_(m), X_(m), Y_(m)))
    reduce("v_max_f32")
    for m in M4:
        a("v_sub_f32 v%d, v%d, v%d" % (A_(m), A_(m), X_(m)))
        a("v_sub_f32 v%d, v%d, v%d" % (B_(m), B_(m), X_(m)))
    for m in M4:
        a("v_mul_f32 v%d, s49, v%d" % (A_(m), A_(m)))
        a("v_mul_f32 v%d, s49, v%d" % (B_(m), B_(m)))
    for m in M4:
        a("v_exp_f32 v%d, v%d" % (A_(m), A_(m)))
        a("v_exp_f32 v%d, v%d" % (B_(m), B_(m)))
    a("s_nop 0")
    reduce("v_add_f32")
    for m in M4: a("v_rcp_f32 v%d, v%d" % (X_(m), X_(m)))
    a("s_nop 0")
    for m in M4:
        a("v_mul_f32 v%d, v%d, v%d" % (A_(m), A_(m), X_(m)))
        a("v_mul_f32 v%d, v%d, v%d" % (B_(m), B_(m), X_(m)))
    for m in M4: a("v_cvt_pk_bf16_f32 v%d, v%d, v%d" % (X_(m), A_(m), B_(m)))
    for m in M4:
        a("v_and_b32 v%d, 0xffff, v%d" % (A_(m), X_(m)))
        a("v_lshrrev_b32 v%d, 16, v%d" % (B_(m), X_(m)))
    for m in M4:
        a("v_lshlrev_b32 v%d, v9, v%d" % (A_(m), A_(m)))
        a("v_lshlrev_b32 v%d, v9, v%d" % (B_(m), B_(m)))
    for m in M4:
        a("v_cndmask_b32 v%d, v%d, 0, s[58:59]" % (Pf(m), A_(m)))
        a("v_cndmask_b32 v%d, v%d, 0, s[60:61]" % (Pf(m) + 1, B_(m)))
        a("v_cndmask_b32 v%d, 0, v%d, s[58:59]" % (Pf(m) + 2, A_(m)))
        a("v_cndmask_b32 v%d, 0, v%d, s[60:61]" % (Pf(m) + 3, B_(m)))
    a("s_nop 1")
    for m in M4:
        a("v_mfma_f32_16x16x32_bf16 %s, %s, %s, 0" % (vr(Sp(m), 4), vr(VV(0, m - 1), 4), vr(Pf(m), 4)))
        a("v_mfma_f32_16x16x32_bf16 %s, %s, %s, 0" % (vr(Sc(m), 4), vr(VV(1, m - 1), 4), vr(Pf(m), 4)))
    a("s_lshl_b32 s3, s5, 1")
    a("s_lshr_b32 s94, s32, 1")
    a("s_add_u32 s94, s94, s3")
    a("s_lshl_b32 s94, s94, 7")
    a("s_add_u32 s95, s94, %d" % F1O)
    a("s_lshl_b32 s3, s4, 6")
    a("s_add_u32 s94, s94, s3")
    a("s_add_u32 s94, s94, %d" % F1H)
    a("v_lshlrev_b32 v4, 2, v8")
    a("v_and_b32 v5, 31, v12")
    a("v_lshlrev_b32 v5, 2, v5")
    OS = 224
    for m in M4:
        for h in range(4):
            a("v_cvt_pk_bf16_f32 v%d, v%d, v%d" % (240 + 4 * m + h, Sp(m) + 2 * h, Sp(m) + 2 * h + 1))
        V("os", "buffer_store_dwordx4 %s, v15, s[28:31], s43 offen offset:%d %s" % (vr(240 + 4 * m, 4), 1024 * m, SC))
    V("p", "buffer_load_dword v3, v4, s[84:87], s94 offen %s" % SC)
    stamp()
    a("v_readfirstlane_b32 s3, v28")
    a("s_cmp_eq_u32 s32, 0")
    a("s_cselect_b32 s3, s3, 0")
    a("s_cmp_eq_u32 s3, 255")
    a("s_cbranch_scc0 L_noep")
    a("s_mov_b32 s3, %d" % EPOCH)
    a("buffer_store_dword v7, v6, s[84:87], s3 offen %s" % SC)
    a.label("L_noep")

    accD = lambda m, b: 64 + (b * 2 + m) * 4
    accO = lambda m, b: 128 + (b * 2 + m) * 4
    PART, XRES = 160, 192
    XB2 = lambda buf, kq, m: buf * 32 + (kq * 2 + m) * 4
    WR2 = lambda b, kh: 128 + b * 8 + kh * 4
    VW, VWO, VX = 32, 20, 24
    a("v_lshrrev_b32 v8, 2, v12")
    a("v_and_b32 v9, 3, v12")
    a("v_lshlrev_b32 v9, 3, v9")
    a("v_add_u32 v9, %d, v9" % R2)
    a("v_lshl_add_u32 v10, v8, 8, v9")
    a("v_and_b32 v11, 7, v8")
    for b in range(8):
        a("v_xor_b32 v13, %d, v11" % b)
        a("v_lshl_add_u32 v%d, v13, 5, v10" % (VW + b))
    a("v_lshl_add_u32 v10, v8, 7, v9")
    a("v_bfe_u32 v11, v12, 3, 2")
    for b in range(4):
        a("v_xor_b32 v13, %d, v11" % b)
        a("v_lshl_add_u32 v%d, v13, 5, v10" % (VWO + b))
    a("v_mov_b32 v%d, v15" % VX)
    for q in range(1, 4): a("v_add_u32 v%d, %d, v15" % (VX + q, 8192 * q))
    a("s_lshl_b32 s48, s32, 16")
    a("s_lshl_b32 s49, s6, 8")
    a("s_add_u32 s48, s48, s49")
    a("s_lshl_b32 s3, s4, 7")
    a("s_add_u32 s48, s48, s3")
    a("v_lshrrev_b32 v8, 4, v12")
    a("v_bfe_u32 v9, v12, 1, 2")
    a("v_xor_b32 v9, v9, v8")
    a("v_lshrrev_b32 v10, 3, v12")
    a("v_and_b32 v11, 16, v15")
    a("v_lshl_add_u32 v11, v10, 11, v11")
    a("v_lshl_add_u32 v11, v9, 5, v11")
    for q in range(4):
        a("s_add_u32 s3, s48, %d" % (q * 16384 - q * 1024))
        a("v_add_u32 v%d, s3, v11" % (VDO + q))
    for u in range(4): a("s_lshr_b32 s%d, s%d, 3" % (40 + u, 44 + u))
    a("s_mul_i32 s61, s5, %d" % ACT_MT)
    a("s_lshl_b32 s3, s32, 11")
    a("s_add_u32 s61, s61, s3")
    a("s_add_u32 s63, s61, %d" % (112 * 8192))
    a("s_mul_i32 s3, s4, %d" % (56 * 8192))
    a("s_add_u32 s61, s61, s3")
    srd(a, 12, PWO, 0, 1024 * 2048)
    srd(a, 16, PX, 0, 2048 * 2048)
    srd(a, 20, PWS, PART_OFF, PART_BYTES)
    srd(a, 24, POUT, 0, 2048 * 2048)
    for r in range(64, 160, 2): a("v_mov_b64 %s, 0" % vr(r, 2))
    a("v_and_b32 v2, 15, v12")
    a("v_lshlrev_b32 v2, 11, v2")
    a("v_bfe_u32 v8, v12, 4, 1")
    a("v_lshl_add_u32 v2, v8, 5, v2")
    a("v_lshrrev_b32 v8, 5, v12")
    a("v_lshl_add_u32 v2, v8, 4, v2")
    a("s_lshl_b32 s34, s5, 18")
    a("s_add_u32 s34, s34, s48")
    a("s_add_u32 s35, s34, 32768")
    a("s_lshl_b32 s57, s2, 15")
    a("s_lshl_b32 s3, s32, 13")
    a("s_add_u32 s57, s57, s3")
    a("s_add_u32 s58, s57, 4096")
    a("s_xor_b32 s59, s57, 0x8000")
    a("s_add_u32 s60, s59, 4096")
    a("s_lshl_b32 s88, s2, 4")
    a("s_lshl2_add_u32 s88, s32, s88")
    a("s_add_u32 s88, s88, %d" % F2)
    a("s_xor_b32 s89, s88, 16")

    def xops(sg):
        if sg >= ND + NO: return []
        u = sg % 4
        o = []
        if sg < ND:
            if u == 0 and sg > 0: o.append("s_add_u32 s61, s61, %d" % (4 * 16384))
            o.append("s_add_u32 s39, s61, s%d" % (40 + u))
            nk = 2
        else:
            if u == 0 and sg > ND: o.append("s_add_u32 s63, s63, %d" % (4 * 32768))
            o.append("s_lshl1_add_u32 s39, s%d, s63" % (40 + u))
            nk = 4
        for kq in range(nk):
            for m in range(2):
                o.append(("X%d" % sg, "buffer_load_dwordx4 %s, v%d, s[28:31], s39 offen offset:%d %s" % (ar(XB2(u, kq, m), 4), VX + kq, 1024 * m, XSC)))
        return o
    def wreads2(sg, b):
        o = []
        u = sg % 4
        for kh in range(2):
            for s2 in range(2):
                if sg < ND: v, off = VW + b, u * 16384 + (32 * kh + 16 * s2) * 256
                else: v, off = VWO + b % 4, u * 16384 + (64 * (b // 4) + 32 * kh + 16 * s2) * 128
                o.append("ds_read_b64_tr_b16 %s, v%d offset:%d" % (ar(WR2(b, kh) + 2 * s2, 2), v, off))
        return o
    def mfmas2(sg, b):
        o = []
        u = sg % 4
        for m in range(2):
            for kh in range(2):
                if sg < ND: c, x = accD(m, b), XB2(u, kh, m)
                else: c, x = accO(m, b % 4), XB2(u, 2 * (b // 4) + kh, m)
                o.append("v_mfma_f32_16x16x32_bf16 %s, %s, %s, %s" % (vr(c, 4), ar(WR2(b, kh), 4), ar(x, 4), vr(c, 4)))
        return o
    check_flags(3, 4, "s94", "p", "L_f1")
    a("s_add_u32 s92, s92, %d" % (F1O - F1H))
    V("f", "buffer_store_dword v7, v6, s[84:87], s92 offen %s" % SC)
    stamp()
    for sg in range(3):
        for o in xops(sg): E(o)
    a("s_barrier")
    lg = Cnt()
    for b in range(4):
        for o in wreads2(0, b): a(o); lg.issue((0, b))
    a("s_mov_b32 s37, 0")
    vwait("X0")
    stamp()

    def stage(sg, extra1=(), extra2=(), loopend=None, pre=None):
        last = sg == ND + NO - 1
        if pre: pre()
        h1 = xops(sg + 3) + list(extra1)
        h2 = wops(sg + 4) + list(extra2)
        r1 = [((sg, b), o) for b in range(4, 8) for o in wreads2(sg, b)]
        r2 = [] if last else [((sg + 1, b), o) for b in range(4) for o in wreads2(sg + 1, b)]
        plan = {}
        for k, x in enumerate(r1): plan.setdefault(k * 12 // 16, []).append(("r",) + x)
        for k, x in enumerate(h1): plan.setdefault(min(15, (5 + k * 11 // max(1, len(h1))) if len(h1) <= 6 else k * 16 // len(h1)), []).append(("o", x))
        for k, x in enumerate(r2): plan.setdefault(16 + k, []).append(("r",) + x)
        for k, x in enumerate(h2): plan.setdefault(16 + k * 16 // len(h2), []).append(("o", x))
        g = 0
        for b in range(8):
            w = lg.need((sg, b))
            if w is not None: a("s_waitcnt lgkmcnt(%d)" % w)
            for mf in mfmas2(sg, b):
                a(mf)
                for x in plan.get(g, []):
                    if x[0] == "r": a(x[2]); lg.issue(x[1])
                    else: E(x[1])
                if g == 15 and not last:
                    vwait("W%d" % (sg + 1), "X%d" % (sg + 1), lg0=True)
                    a("s_barrier")
                    lg.clear()
                if g == 31 and loopend:
                    a("s_add_u32 s37, s37, 1")
                    a("s_cmp_lt_u32 s37, 6")
                    a("s_cbranch_scc1 %s" % loopend)
                g += 1
    a(".p2align 6")
    a.label("L_g2")
    steady = ["X1"] * 4 + ["W2"] * 4 + ["X2"] * 4 + ["W3"] * 4
    first = list(vm.q)
    assert first == ["X1"] * 4 + ["X2"] * 4, first
    FIRST_PEEL = True
    a.lines.pop(); a.lines.pop()
    for sg in range(4): stage(sg)
    shift = lambda q, d: [t[0] + str(int(t[1:]) + d) for t in q]
    q0 = list(vm.q)
    a("s_mov_b32 s37, 1")
    a(".p2align 6")
    a.label("L_g2")
    for sg in range(4, 8): stage(sg, loopend="L_g2" if sg == 7 else None)
    assert vm.q == shift(q0, 4), (vm.q, q0)
    vm.q = shift(q0, 20)
    lg.q = [(24, t[1]) for t in lg.q]
    V("p", "buffer_load_dword v3, v5, s[84:87], s95 offen %s" % SC)
    stage(24)
    stage(25, pre=lambda: check_flags(3, 5, "s95", "p", "L_f2"))
    stage(26), stage(27)
    stamp()
    a("s_nop 7")
    for k in range(8):
        V("S", "buffer_store_dwordx4 %s, v%d, s[20:23], s%d offen offset:%d %s" % (vr(accD(0, 4) + 4 * k, 4), VX, 57 + k // 4, 1024 * (k % 4), SC))
    xres = [("R", "buffer_load_dwordx4 %s, v2, s[16:19], s%d offen offset:%d" % (vr(XRES + 4 * (2 * m + bp), 4), 34 + m, 64 * bp)) for m in range(2) for bp in range(2)]
    parts = [("P%d" % k, "buffer_load_dwordx4 %s, v%d, s[20:23], s%d offen offset:%d %s" % (vr(PART + 4 * k, 4), VX, 59 + k // 4, 1024 * (k % 4), SC)) for k in range(8)]
    stage(28)
    stage(29)
    vwait("S")
    V("f", "buffer_store_dword v7, v6, s[84:87], s88 offen %s" % SC)
    stage(30), stage(31), stage(32)
    stage(33, extra1=xres, extra2=[("p", "buffer_load_dword v3, v6, s[84:87], s89 offen %s" % SC)])
    stage(34)
    stage(35, pre=lambda: check_flags(3, 6, "s89", "p", "L_f3"), extra1=parts)
    stamp()
    a("s_nop 7")
    def round4(R, T):
        a("v_cvt_pk_bf16_f32 v%d, v%d, v%d" % (T, R, R + 1))
        a("v_cvt_pk_bf16_f32 v%d, v%d, v%d" % (T + 1, R + 2, R + 3))
        a("v_lshlrev_b32 v%d, 16, v%d" % (R, T))
        a("v_and_b32 v%d, s54, v%d" % (R + 1, T))
        a("v_lshlrev_b32 v%d, 16, v%d" % (R + 2, T + 1))
        a("v_and_b32 v%d, s54, v%d" % (R + 3, T + 1))
    for k in range(8): round4(accO(0, 0) + 4 * k, 8 + 2 * (k % 2))
    for k in range(8):
        Y, T = accD(0, 0) + 4 * k, PART + 4 * k
        vwait("P%d" % k)
        for h in (0, 2): a("v_pk_add_f32 %s, %s, %s" % (vr(Y + h, 2), vr(Y + h, 2), vr(T + h, 2)))
        round4(Y, 8)
        for h in (0, 2): a("v_pk_mul_f32 %s, %s, s[50:51]" % (vr(T + h, 2), vr(Y + h, 2)))
        for r in range(4): a("v_exp_f32 v%d, v%d" % (T + r, T + r))
    a("s_nop 0")
    for k in range(8):
        Y, T = accD(0, 0) + 4 * k, PART + 4 * k
        for h in (0, 2): a("v_pk_add_f32 %s, %s, s[52:53]" % (vr(T + h, 2), vr(T + h, 2)))
        for r in range(4): a("v_rcp_f32 v%d, v%d" % (T + r, T + r))
    a("s_nop 0")
    for m in range(2):
        for bp in range(2):
            D = 32 + 4 * (2 * m + bp)
            for be in range(2):
                b = 2 * bp + be
                Y, T, S = accD(m, b), PART + (accD(m, b) - accD(0, 0)), accO(m, b)
                for h in (0, 2): a("v_pk_mul_f32 %s, %s, %s" % (vr(Y + h, 2), vr(Y + h, 2), vr(T + h, 2)))
                round4(Y, 8)
                for h in (0, 2): a("v_pk_mul_f32 %s, %s, %s" % (vr(Y + h, 2), vr(Y + h, 2), vr(S + h, 2)))
                a("v_cvt_pk_bf16_f32 v%d, v%d, v%d" % (D + 2 * be, Y, Y + 1))
                a("v_cvt_pk_bf16_f32 v%d, v%d, v%d" % (D + 2 * be + 1, Y + 2, Y + 3))
            a("s_nop 1")
            a("v_permlane16_swap_b32 v%d, v%d" % (D, D + 2))
            a("v_permlane16_swap_b32 v%d, v%d" % (D + 1, D + 3))
            a("s_nop 1")
            Xr = XRES + 4 * (2 * m + bp)
            for r in range(4):
                a("v_lshlrev_b32 v48, 16, v%d" % (D + r))
                a("v_and_b32 v49, s54, v%d" % (D + r))
                a("v_lshlrev_b32 v50, 16, v%d" % (Xr + r))
                a("v_and_b32 v51, s54, v%d" % (Xr + r))
                a("v_pk_add_f32 v[48:49], v[48:49], v[50:51]")
                a("v_cvt_pk_bf16_f32 v%d, v48, v49" % (D + r))
            a("buffer_store_dwordx4 %s, v2, s[24:27], s%d offen offset:%d" % (vr(D, 4), 34 + m, 64 * bp))
    if probe is not None:
        stamp()
        a("s_waitcnt vmcnt(0)")
        stamp()
        if P.get("probe_wg") is not None:
            a("s_cmp_lg_u32 s2, %d" % P["probe_wg"])
            a("s_cbranch_scc1 L_end")
        a.label("L_probe")
        a("s_memrealtime s[4:5]")
        a("s_waitcnt lgkmcnt(0)")
        a("s_sub_u32 s4, s4, s98")
        a("s_cmp_lt_u32 s4, 10000")
        a("s_cbranch_scc1 L_probe")
    if prof:
        stamp()
        a("s_waitcnt vmcnt(0)")
        stamp()
        srd(a, 8, PWS, STAMP_OFF, 65536)
        a("s_lshl_b32 s3, s2, 7")
        a("v_lshl_add_u32 v8, v0, 2, s3")
        a("v_cmp_gt_u32 vcc, 32, v0")
        a("s_and_b64 exec, exec, vcc")
        a("s_cbranch_execz L_end")
        a("buffer_store_dword v31, v8, s[8:11], 0 offen")
    a.label("L_end")
    a("s_endpgm")
    desc(a, name, 256 + NAGPR, 100, 256)
    hdr = open("recurrent_scan__sliding_local_dilated__swiglu_ffn__prompt.s.ref").read().split("; Override launch")[0]
    if P.get("pre_tiny"):
        kernel_header(a, "tiny_kernel")
        a("s_endpgm")
        desc(a, "tiny_kernel", 8, 16, 8)
        hdr += "; @launch kernel=tiny_kernel grid=(%d,1,1) block=(64,1,1) lds=0\n" % P["pre_tiny"]
    if P.get("aslist", 1):
        hdr += "; @launch kernel=%s grid=(256,1,1) block=(256,1,1) lds=%d\n" % (name, LDS_BYTES)
    else:
        hdr += "; @launch grid=(256,1,1) block=(256,1,1) lds=%d\n" % LDS_BYTES
    return hdr + a.text()

if __name__ == "__main__":
    P = json.loads(sys.argv[2]) if len(sys.argv) > 2 else {}
    open(sys.argv[1], "w").write(gen(P))
```

```python
import sys, json
sys.path.insert(0, "dev")
from gen_common import *

MAIN = "recurrent_scan__sliding_local_dilated__swiglu_ffn__prompt_kernel"
SLOT = 40960
GATE, UP, QKV = 0, 14336, 28672
EX = 155648
LDS_BYTES = 163840
LNX = EX
R2 = SLOT
F0, F1H, F1O, F2, EPOCH = 0, 4096, 8192, 12288, 65536
NONCE_ADD = 0x6A09E667
OOB = 0x40000000
SC = "sc1"
MF = "v_mfma_f32_16x16x32_bf16"

class Cnt:
    def __init__(self, init=(), cap=15):
        self.q = list(init); self.cap = cap
    def issue(self, tag): self.q.append(tag)
    def need(self, *tags):
        idx = [i for i, t in enumerate(self.q) if t in tags]
        if not idx: return None
        last = max(idx)
        n = len(self.q) - 1 - last
        self.q = self.q[last + 1:]
        return min(n, self.cap)
    def clear(self): self.q = []

def cost(o):
    s = o[1] if isinstance(o, tuple) else o
    if callable(s): return 4
    if s.startswith(("v_exp", "v_rcp", "buffer_")): return 8
    return 4

def gen(P):
    a = Asm()
    name = MAIN
    prof, probe = P.get("prof"), P.get("probe")
    nst = [0]
    def stamp():
        if probe is not None:
            if nst[0] == probe:
                a("s_memrealtime s[98:99]"); a("s_waitcnt lgkmcnt(0)")
            nst[0] += 1
            return
        if not prof: return
        a("%s s[98:99]" % ("s_memtime" if prof == 2 else "s_memrealtime"))
        a("s_waitcnt lgkmcnt(0)")
        a("v_writelane_b32 v31, s98, %d" % nst[0])
        nst[0] += 1
    XSC = P.get("xsc", "sc1")
    ROT2 = P.get("g2_rot", 0)
    vm = Cnt(cap=63)
    def V(tag, s):
        vm.issue(tag)
        if s.endswith("lds") and a.lines[-1].strip().startswith("s_add_u32 m0"): a("s_nop 0")
        a(s)
    def E(o):
        if isinstance(o, tuple): V(*o)
        elif callable(o): o()
        else: a(o)
    def vwait(*tags, lg0=False):
        n = vm.need(*tags)
        parts = ([] if n is None else ["vmcnt(%d)" % n]) + (["lgkmcnt(0)"] if lg0 else [])
        if parts: a("s_waitcnt " + " ".join(parts))
    def check_flags(vreg, voff, soff, tag, label):
        vwait(tag)
        a("v_cmp_ne_u32 vcc, s96, v%d" % vreg)
        a("s_cbranch_vccz %s_ok" % label)
        a("s_mov_b32 s97, 0")
        a.label(label + "_spin")
        a("buffer_load_dword v%d, v%d, s[84:87], %s offen %s" % (vreg, voff, soff, SC))
        a("s_add_u32 s97, s97, 1")
        a("s_waitcnt vmcnt(0)")
        a("s_cmp_gt_u32 s97, 0x80000")
        a("s_cbranch_scc1 %s_ok" % label)
        a("v_cmp_ne_u32 vcc, s96, v%d" % vreg)
        a("s_cbranch_vccnz %s_spin" % label)
        a.label(label + "_ok")

    accGU = lambda p, gu, m: 32 + ((p * 2 + gu) * 4 + m) * 4
    accQ = lambda s, m: (s * 4 + m) * 4
    HACC = 96
    XB = lambda buf, m, kh: 100 + buf * 40 + (m * 2 + kh) * 4
    WR = lambda slot, kh: 180 + slot * 8 + kh * 4
    HW = lambda kh: 212 + kh * 4
    PARK = 220
    NAGPR = 256
    PX, PQKV, PWO, PG, PU, PD, POUT, PDBG, PWS = 64, 66, 68, 72, 74, 76, 78, 80, 82

    a.raw('.amdgcn_target "amdgcn-amd-amdhsa--gfx950"')
    kernel_header(a, name)
    a("s_cmp_ge_u32 s2, 256")
    a("s_cbranch_scc1 L_end")
    a("s_load_dwordx16 s[64:79], s[0:1], 0")
    a("s_load_dwordx4 s[80:83], s[0:1], 64")
    a("s_getpc_b64 s[4:5]")
    a.label("L_pc")
    a("v_and_b32 v17, 63, v0")
    a("s_mov_b32 s6, L_end-L_pc")
    a("s_mov_b32 s7, 0x20000")
    a("v_lshlrev_b32 v1, 7, v17")
    a("s_bfe_u32 s3, s2, 0x30003")
    a("s_lshl_b32 s3, s3, 13")
    V("c", "buffer_load_dword v29, v1, s[4:7], s3 offen")
    if prof: a("v_mov_b32 v31, 0")
    stamp()
    a("v_lshrrev_b32 v16, 6, v0")
    a("v_lshrrev_b32 v18, 3, v17")
    a("v_and_b32 v19, 7, v17")
    a("v_readfirstlane_b32 s32, v16")
    a("v_lshlrev_b32 v20, 11, v18")
    a("v_lshl_add_u32 v20, v16, 9, v20")
    a("v_lshl_add_u32 v20, v19, 4, v20")
    a("s_and_b32 s34, s2, 7")
    a("s_bfe_u32 s35, s2, 0x20003")
    a("s_lshl2_add_u32 s34, s34, s35")
    a("s_lshr_b32 s33, s2, 5")
    a("s_lshl_b32 s36, s33, 5")
    a("s_add_u32 s36, s36, s34")
    a("s_lshl_b32 s37, s36, 14")
    a("v_mov_b32 v6, 0")
    a("s_mov_b32 s50, %d" % (2048 * 2048))
    a("s_mov_b32 s51, 0x20000")
    a("s_waitcnt lgkmcnt(0)")
    a("s_mov_b64 s[48:49], s[%d:%d]" % (PX, PX + 1))
    LX = 32
    for u in range(4):
        V("x", "buffer_load_dwordx4 %s, v20, s[48:51], s37 offen offset:%d %s" % (vr(LX + 4 * u, 4), 128 * u, P.get("xfl", "nt")))
    srd(a, 84, PWS, FLAG_OFF, FLAG_BYTES)
    a("s_mov_b32 s3, %d" % EPOCH)
    V("x", "buffer_load_dword v7, v6, s[84:87], s3 offen")
    stamp()
    a("s_and_b32 s57, s34, 1")
    a("s_lshr_b32 s58, s34, 1")
    a("s_mul_i32 s58, s58, 448")
    a("s_cmp_eq_u32 s32, 1")
    a("s_cselect_b64 s[88:89], s[%d:%d], s[%d:%d]" % (PU, PU + 1, PG, PG + 1))
    a("s_cmp_eq_u32 s32, 3")
    a("s_cbranch_scc1 L_t3")
    a("s_mul_i32 s3, s57, 208")
    a("s_add_u32 s3, s3, s58")
    a("s_movk_i32 s92, 7168")
    a("s_movk_i32 s93, 118")
    a("s_cmp_eq_u32 s32, 2")
    a("s_cbranch_scc0 L_t01")
    a("s_mov_b64 s[88:89], s[%d:%d]" % (PQKV, PQKV + 1))
    a("s_lshl_b32 s3, s34, 6")
    a("s_movk_i32 s92, 6144")
    a("s_movk_i32 s93, 2048")
    a.label("L_t01")
    a("s_lshl_b32 s90, s92, 10")
    a("v_lshrrev_b32 v21, 2, v17")
    a("v_and_b32 v22, 3, v17")
    a("v_mul_u32_u24 v30, s92, v21")
    a("v_mul_u32_u24 v23, s93, v22")
    a("v_and_b32 v23, -4, v23")
    a("v_add3_u32 v30, v30, v23, s3")
    a("v_cmp_eq_u32 vcc, 3, v22")
    a("v_mov_b32 v23, %d" % OOB)
    a("s_lshl_b32 s94, s33, 4")
    a("v_cndmask_b32 v30, v30, v23, vcc")
    a("s_mul_i32 s94, s94, s92")
    a("s_lshl_b32 s95, s92, 7")
    a("s_branch L_td")
    a.label("L_t3")
    a("s_mov_b64 s[88:89], s[%d:%d]" % (PD, PD + 1))
    MAP = P.get("map2", 0)
    if MAP == 0:
        a("v_lshlrev_b32 v30, 11, v18")
        a("v_lshl_add_u32 v30, v19, 7, v30")
        a("s_and_b32 s3, s2, 1")
        a("s_add_u32 s3, s3, 1")
        a("s_mul_i32 s90, s3, %d" % (1792 * 2048))
        a("s_lshr_b32 s94, s2, 3")
        a("s_lshl_b32 s94, s94, 14")
        a("s_add_u32 s94, s94, s90")
        a("s_bfe_u32 s3, s2, 0x10002")
        a("s_lshl_b32 s3, s3, 10")
        a("s_add_u32 s94, s94, s3")
    else:
        a("v_lshrrev_b32 v21, 5, v17")
        a("v_lshlrev_b32 v30, 11, v21")
        a("v_and_b32 v21, 15, v17")
        a("v_lshl_add_u32 v30, v21, 7, v30")
        a("v_and_b32 v21, 16, v17")
        a("v_lshl_add_u32 v30, v21, 26, v30")
        a("s_and_b32 s3, s2, 1")
        a("s_add_u32 s3, s3, 1")
        a("s_mul_i32 s90, s3, %d" % (1792 * 2048))
        a("s_lshr_b32 s94, s2, 1")
        a("s_lshl_b32 s94, s94, 12")
        a("s_add_u32 s94, s94, s90")
    a("s_add_u32 s94, s94, %d" % (256 * 2048))
    a("s_mov_b32 s95, %d" % ((-256 * 2048) & 0xffffffff))
    a.label("L_td")
    a("s_mov_b32 s91, 0x20000")
    V("t", "buffer_load_dword v29, v30, s[88:91], s94 offen %s" % P.get("t0fl", "nt"))
    a("s_add_u32 s94, s94, s95")
    a("v_lshlrev_b32 v21, 17, v16")
    a("v_lshrrev_b32 v22, 2, v19")
    a("v_lshl_add_u32 v21, v22, 10, v21")
    a("v_and_b32 v22, 3, v19")
    a("v_lshl_add_u32 v21, v22, 8, v21")
    a("v_lshl_add_u32 v28, v18, 4, v21")
    a("s_lshl_b32 s60, s33, 19")
    a("s_lshr_b32 s51, s34, 1")
    a("s_lshl_b32 s51, s51, 11")
    a("s_add_u32 s50, s60, s51")
    a("s_lshl_b32 s51, s57, 7")
    a("s_add_u32 s50, s50, s51")
    a("s_add_u32 s51, s50, 32768")
    a("s_add_u32 s52, s50, 65536")
    a("s_add_u32 s53, s50, 98304")
    a("v_lshlrev_b32 v26, 5, v18")
    a("v_add_u32 v26, %d, v26" % LNX)
    a("v_lshl_add_u32 v27, v16, 3, v26")
    a("s_mov_b64 s[24:25], s[%d:%d]" % (PWS, PWS + 1))
    a("s_add_u32 s26, s60, 0x80000")
    a("s_mov_b32 s27, 0x20000")
    a("s_mov_b32 s54, 0xffff0000")
    a("s_lshl_b32 s92, s36, 4")
    a("s_lshl2_add_u32 s92, s32, s92")
    a("s_mov_b32 s3, 0x3f803f80")
    a("v_mov_b32 v116, s3")
    a("s_max_u32 s61, s33, 1")
    a("s_sub_u32 s61, s61, 1")
    a("s_lshl_b32 s59, s61, 9")
    a("s_add_u32 s59, s59, 480")
    a("s_lshl_b32 s3, s33, 9")
    a("s_lshl_b32 s48, s32, 7")
    a("s_add_u32 s3, s3, s48")
    a("v_lshl_add_u32 v20, v17, 2, s3")
    a("v_lshl_add_u32 v21, v19, 2, s59")
    a("v_cmp_gt_u32 vcc, 32, v17")
    a("v_mov_b32 v22, %d" % OOB)
    a("v_lshlrev_b32 v15, 4, v17")
    a("v_cndmask_b32 v120, v21, v20, vcc")
    a("v_cndmask_b32 v121, v22, v30, vcc")
    a("v_cndmask_b32 v122, v30, v22, vcc")

    def g1_setup_w():
        def krow(dst, rho, t1):
            a("v_and_b32 v%d, 35, v%d" % (dst, rho))
            a("v_bfe_u32 v%d, v%d, 2, 2" % (t1, rho))
            a("v_lshl_or_b32 v%d, v%d, 3, v%d" % (dst, t1, dst))
            a("v_bfe_u32 v%d, v%d, 4, 1" % (t1, rho))
            a("v_lshl_or_b32 v%d, v%d, 2, v%d" % (dst, t1, dst))
        a("s_mul_i32 s56, s32, 192")
        a("s_lshl_b32 s59, s34, 6")
        a("s_movk_i32 s40, 4682")
        a("s_movk_i32 s41, 5462")
        a("s_movk_i32 s62, 7168")
        a("s_movk_i32 s63, 6144")
        a("s_lshl_b32 s48, s57, 4")
        a("s_sub_u32 s49, s57, 12")
        def gu_off(dst, imm):
            a("v_mul_u32_u24 v21, s40, v20")
            a("v_lshrrev_b32 v21, 16, v21")
            a("v_mul_u32_u24 v22, 14, v21")
            a("v_sub_u32 v22, v20, v22")
            a("v_cmp_gt_u32 vcc, 12, v22")
            a("v_lshl_add_u32 v23, v22, 1, s49")
            a("v_add_u32 v22, s48, v22")
            a("v_cndmask_b32 v22, v23, v22, vcc")
            krow(24, 21, 23)
            a("s_sub_u32 s3, s58, %d" % imm)
            a("v_lshl_add_u32 v22, v22, 4, s3")
            a("v_mad_u32_u24 v%d, v24, s62, v22" % dst)
        def qkv_off(dst, imm):
            a("v_mul_u32_u24 v21, s41, v20")
            a("v_lshrrev_b32 v21, 16, v21")
            a("v_mul_u32_u24 v22, 12, v21")
            a("v_sub_u32 v22, v20, v22")
            a("v_lshrrev_b32 v23, 1, v21")
            a("v_and_b32 v23, 2, v23")
            a("v_xor_b32 v22, v22, v23")
            a("v_lshrrev_b32 v25, 2, v22")
            a("v_and_b32 v22, 3, v22")
            a("s_sub_u32 s3, s59, %d" % imm)
            a("v_lshl_add_u32 v22, v22, 4, s3")
            a("v_lshl_add_u32 v22, v25, 11, v22")
            krow(24, 21, 23)
            a("v_mad_u32_u24 v%d, v24, s63, v22" % dst)
        for q in range(3):
            a("s_add_u32 s3, s56, %d" % (64 * q))
            a("v_add_u32 v20, s3, v17")
            gu_off(8 + q, 1024 * q)
            qkv_off(11 + q, 1024 * q)
        a("s_and_b32 s35, s32, 1")
        a("s_lshl_b32 s3, s35, 6")
        a("s_add_u32 s3, s3, 768")
        a("v_add_u32 v20, s3, v17")
        gu_off(14, 0)
        a("s_mul_i32 s43, s32, 3072")
        a("s_add_u32 s44, s43, %d" % UP)
        a("s_add_u32 s45, s43, %d" % QKV)
        a("s_lshr_b32 s46, s32, 1")
        a("s_mul_i32 s46, s46, %d" % UP)
        a("s_lshl_b32 s3, s35, 10")
        a("s_add_u32 s46, s46, s3")
        a("s_add_u32 s46, s46, 12288")
        srd(a, 8, PG, 0, 1024 * 7168)
        srd(a, 12, PU, 0, 1024 * 7168)
        srd(a, 16, PQKV, 0, 1024 * 6144)
        a("s_cmp_lt_u32 s32, 2")
        a("s_cselect_b64 s[20:21], s[%d:%d], s[%d:%d]" % (PG, PG + 1, PU, PU + 1))
        a("s_mov_b32 s22, %d" % (1024 * 7168))
        a("s_mov_b32 s23, 0x20000")
    def g1_setup_r():
        a("v_lshrrev_b32 v18, 2, v17")
        a("v_and_b32 v19, 3, v17")
        a("v_lshlrev_b32 v19, 3, v19")
        a("s_movk_i32 s3, 224")
        a("v_mad_u32_u24 v1, v18, s3, v19")
        a("v_and_b32 v20, 16, v15")
        a("v_and_b32 v21, 2, v17")
        a("v_lshl_add_u32 v20, v21, 2, v20")
        a("v_mad_u32_u24 v5, v18, s3, v20")
        a("s_movk_i32 s3, 192")
        a("v_mad_u32_u24 v2, v18, s3, v19")
        a("v_add_u32 v2, %d, v2" % QKV)
        a("v_and_b32 v19, 16, v17")
        a("v_lshlrev_b32 v19, 1, v19")
        a("v_xor_b32 v20, 32, v19")
        a("v_add_u32 v3, v2, v20")
        a("v_add_u32 v2, v2, v19")
        a("s_cmp_eq_u32 s35, 1")
        a("s_cselect_b64 vcc, -1, 0")
        a("v_cndmask_b32 v4, v2, v3, vcc")
        a("s_lshr_b32 s3, s32, 1")
        a("s_lshl_b32 s3, s3, 6")
        a("s_add_u32 s3, s3, 64")
        a("v_add_u32 v4, s3, v4")
        a("s_mov_b32 s62, %d" % SLOT)
        a("s_mov_b32 s63, %d" % ((-2 * SLOT) & 0xffffffff))
        srd(a, 28, PWS, ACT_OFF, ACT_BYTES)
    if P.get("setup_early", 1): g1_setup_w()

    vwait("x")
    stamp()
    a("v_readfirstlane_b32 s96, v7")
    X = 48
    for r in range(16):
        c1 = "0" if r < 2 else "v%d" % (112 + 2 * (r % 2))
        c2 = "0" if r < 2 else "v%d" % (113 + 2 * (r % 2))
        a("v_dot2_f32_bf16 v%d, v%d, v116, %s" % (112 + 2 * (r % 2), LX + r, c1))
        a("v_dot2_f32_bf16 v%d, v%d, v%d, %s" % (113 + 2 * (r % 2), LX + r, LX + r, c2))
    a("s_add_u32 s96, s96, 0x%x" % NONCE_ADD)
    a("s_nop 1")
    a("v_pk_add_f32 v[112:113], v[112:113], v[114:115]")
    for m in ("quad_perm:[1,0,3,2]", "quad_perm:[2,3,0,1]", "row_half_mirror"):
        a("s_nop 0" if m != "quad_perm:[1,0,3,2]" else "s_nop 1")
        for v in (112, 113):
            a("v_add_f32_dpp v%d, v%d, v%d %s row_mask:0xf bank_mask:0xf" % (v, v, v, m))
    a("ds_write_b64 v27, v[112:113]")
    def unpack(r):
        a("v_lshlrev_b32 v%d, 16, v%d" % (X + 2 * r, LX + r))
        a("v_and_b32 v%d, s54, v%d" % (X + 2 * r + 1, LX + r))
    for r in range(8): unpack(r)
    a("s_waitcnt lgkmcnt(0)")
    a("s_barrier")
    a("ds_read_b128 v[80:83], v26")
    a("ds_read_b128 v[84:87], v26 offset:16")
    for r in range(8, 16): unpack(r)
    a("s_waitcnt lgkmcnt(0)")
    a("v_pk_add_f32 v[80:81], v[80:81], v[82:83]")
    a("v_pk_add_f32 v[84:85], v[84:85], v[86:87]")
    a("v_pk_add_f32 v[80:81], v[80:81], v[84:85]")
    a("v_mul_f32 v88, 0x3a800000, v80")
    a("v_mul_f32 v81, 0x3a800000, v81")
    a("v_fma_f32 v81, -v88, v88, v81")
    a("v_max_f32 v81, 0, v81")
    a("v_cvt_pk_bf16_f32 v88, v88, v81")
    a("v_and_b32 v81, s54, v88")
    a("v_lshlrev_b32 v88, 16, v88")
    a("v_add_f32 v81, 0x3727c5ac, v81")
    a("v_cvt_pk_bf16_f32 v81, v81, v81")
    a("v_and_b32 v81, s54, v81")
    a("v_sqrt_f32 v81, v81")
    a("v_sub_f32 v88, 0, v88")
    a("v_cvt_pk_bf16_f32 v81, v81, v81")
    a("v_and_b32 v81, s54, v81")
    a("v_rcp_f32 v90, v81")
    a("v_mov_b32 v89, v88")
    a("v_mov_b32 v91, v90")
    for u in range(4):
        R = range(4 * u, 4 * u + 4)
        for r in R: a("v_pk_add_f32 %s, %s, v[88:89]" % (vr(X + 2 * r, 2), vr(X + 2 * r, 2)))
        for r in R: a("v_cvt_pk_bf16_f32 v%d, v%d, v%d" % (LX + r, X + 2 * r, X + 2 * r + 1))
        for r in R: unpack(r)
        for r in R: a("v_pk_mul_f32 %s, %s, v[90:91]" % (vr(X + 2 * r, 2), vr(X + 2 * r, 2)))
        for r in R: a("v_cvt_pk_bf16_f32 v%d, v%d, v%d" % (LX + r, X + 2 * r, X + 2 * r + 1))
        V("xs", "buffer_store_dwordx4 %s, v28, s[24:27], s%d offen %s" % (vr(LX + 4 * u, 4), 50 + u, SC))
    stamp()
    a("v_mov_b32 v7, s96")
    if not P.get("setup_early", 1): g1_setup_w()

    def tau_ops():
        return ["s_mul_i32 s38, s36, 458752", "s_mul_i32 s39, s36, 393216"]
    def xoff_ops():
        return ["s_lshl_b32 s40, s36, 15", "s_add_u32 s42, s40, s61", "s_add_u32 s40, s40, s60", "s_add_u32 s41, s40, 4096"]
    def wdma_ops(tag):
        o = []
        for (mreg, sd, vb, so) in ((43, 8, 8, 38), (44, 12, 8, 38), (45, 16, 11, 39)):
            o.append("s_add_u32 m0, s37, s%d" % mreg)
            for q in range(3):
                o.append((tag, "buffer_load_dwordx4 v%d, s[%d:%d], s%d offen offset:%d lds" % (vb + q, sd, sd + 3, so, 1024 * q)))
        o.append("s_add_u32 m0, s37, s46")
        o.append((tag, "buffer_load_dwordx4 v14, s[20:23], s38 offen lds"))
        return o
    def xld_ops(buf, tag):
        o = []
        for f in range(8):
            o.append((tag, "buffer_load_dwordx4 %s, v15, s[24:27], s%d offen offset:%d %s" % (ar(XB(buf, f // 2, f % 2), 4), 40 + f // 4, 1024 * (f % 4), XSC)))
        for kh in range(2):
            o.append((tag, "buffer_load_dwordx4 %s, v15, s[24:27], s42 offen offset:%d %s" % (ar(XB(buf, 4, kh), 4), 1024 * kh, XSC)))
        return o

    a("s_mov_b32 s36, 0"); a("s_mov_b32 s37, 0")
    W0POS = P.get("w0pos", 1)
    if W0POS == 0:
        for o in tau_ops() + wdma_ops("W0"): E(o)
    a("s_lshl_b32 s3, s32, 13")
    a("s_add_u32 s60, s60, s3")
    a("s_lshl_b32 s61, s61, 19")
    a("s_add_u32 s61, s61, %d" % (3 * 8192 + 3 * 2048))
    for o in xoff_ops(): E(o)
    a("v_mov_b32 v25, v120"); a("v_mov_b32 v27, v121"); a("v_mov_b32 v28, v122")
    for r in range(48, 152, 2): a("v_mov_b64 %s, 0" % vr(r, 2))
    vwait("xs")
    V("f", "buffer_store_dword v7, v6, s[84:87], s92 offen %s" % SC)
    stamp()
    if W0POS == 1:
        for o in tau_ops() + wdma_ops("W0"): E(o)
    for r in range(152, 256, 2): a("v_mov_b64 %s, 0" % vr(r, 2))
    V("p", "buffer_load_dword v24, v25, s[84:87], 0 offen %s" % SC)
    for r in range(32, 48, 2): a("v_mov_b64 %s, 0" % vr(r, 2))
    g1_setup_r()
    for r in range(0, 100, 4): a("%s %s, v[48:51], v[48:51], 0" % (MF, ar(r, 4)))
    stamp()
    check_flags(24, 25, "0", "p", "L_f0")
    stamp()
    for o in xld_ops(0, "X0"): E(o)
    a("s_mov_b32 s36, 1"); a("s_mov_b32 s37, %d" % SLOT)
    for o in tau_ops() + wdma_ops("W"): E(o)
    V("t", "buffer_load_dword v29, v30, s[88:91], s94 offen %s" % P.get("t1fl", ""))
    a("s_add_u32 s94, s94, s95")

    SP, SMT, SNT = 66, 67, 70
    a("s_and_b32 s%d, s2, 1" % SP)
    if MAP == 0:
        a("s_bfe_u32 s%d, s2, 0x10001" % SMT); a("s_bfe_u32 s3, s2, 0x30003"); a("s_lshl3_add_u32 s%d, s%d, s3" % (SMT, SMT))
        a("s_bfe_u32 s%d, s2, 0x10002" % SNT); a("s_lshr_b32 s3, s2, 6"); a("s_lshl2_add_u32 s%d, s%d, s3" % (SNT, SNT))
    else:
        a("s_bfe_u32 s%d, s2, 0x20001" % SMT); a("s_bfe_u32 s3, s2, 0x20003"); a("s_lshl2_add_u32 s%d, s%d, s3" % (SMT, SMT))
        a("s_lshr_b32 s%d, s2, 5" % SNT)
    park = {}
    def parkv(key, v):
        park[key] = PARK + len(park)
        assert park[key] < 256
        a("v_accvgpr_write_b32 a%d, v%d" % (park[key], v))
    unp = lambda key, v: "v_accvgpr_read_b32 v%d, a%d" % (v, park[key])
    a("s_lshl_b32 s48, s%d, 2" % SP); a("s_xor_b32 s48, s48, 4"); a("s_lshl_b32 s49, s%d, 8" % SNT); a("s_lshl_b32 s50, s32, 15"); a("s_add_u32 s50, s50, s49")
    a("v_lshrrev_b32 v20, 4, v17"); a("v_bfe_u32 v21, v17, 1, 3"); a("v_xor_b32 v21, s48, v21"); a("v_xor_b32 v21, v21, v20")
    a("v_and_b32 v22, 16, v15"); a("v_lshl_add_u32 v23, v20, 11, v22")
    a("v_lshl_add_u32 v16, v21, 5, v23"); a("v_add_u32 v16, s50, v16")
    a("s_lshl_b32 s51, s32, 16"); a("s_add_u32 s51, s51, s49"); a("s_lshl_b32 s3, s%d, 7" % SP); a("s_add_u32 s51, s51, s3")
    a("v_bfe_u32 v21, v17, 1, 2"); a("v_xor_b32 v21, v21, v20"); a("v_lshrrev_b32 v23, 3, v17")
    a("v_lshl_add_u32 v22, v23, 11, v22"); a("v_lshl_add_u32 v22, v21, 5, v22"); a("v_add_u32 v22, s51, v22")
    parkv("vdo", 22)
    a("v_lshrrev_b32 v20, 2, v17"); a("v_and_b32 v21, 3, v17"); a("v_lshlrev_b32 v21, 3, v21"); a("v_add_u32 v21, %d, v21" % R2)
    a("v_lshl_add_u32 v22, v20, 8, v21"); a("v_and_b32 v23, 7, v20"); a("v_lshl_add_u32 v22, v23, 5, v22")
    parkv("vw", 22)
    a("v_lshl_add_u32 v22, v20, 7, v21"); a("v_bfe_u32 v23, v17, 3, 2"); a("v_lshl_add_u32 v22, v23, 5, v22")
    parkv("vwo", 22)
    a("v_and_b32 v20, 15, v17"); a("v_lshlrev_b32 v22, 11, v20"); a("v_bfe_u32 v23, v17, 4, 1"); a("v_lshl_add_u32 v22, v23, 5, v22")
    a("v_lshrrev_b32 v21, 5, v17"); a("v_lshl_add_u32 v22, v21, 4, v22")
    parkv("vout", 22)
    a("v_lshlrev_b32 v22, 10, v23"); a("v_lshl_add_u32 v22, v21, 8, v22"); a("v_lshl_add_u32 v26, v20, 4, v22")
    a("v_bfe_u32 v22, v17, 2, 2"); a("v_lshlrev_b32 v22, 8, v22"); a("v_lshrrev_b32 v23, 4, v17"); a("v_lshl_add_u32 v22, v23, 6, v22")
    a("v_and_b32 v23, 3, v17"); a("v_lshl_add_u32 v22, v23, 1, v22"); a("v_add_u32 v22, 1024, v22")
    a("s_cmp_ge_u32 s32, 2"); a("s_cselect_b64 vcc, -1, 0"); a("s_cselect_b32 s71, 16, 2")
    a("v_cndmask_b32 v22, v15, v22, vcc")
    a("s_lshl_b32 s3, s35, 3"); a("s_add_u32 s3, s3, %d" % EX); a("v_add_u32 v22, s3, v22")
    parkv("vhx", 22)
    assert MAP == 0
    a("v_lshrrev_b32 v22, 2, v17"); a("v_lshlrev_b32 v22, 11, v22"); a("v_lshl_add_u32 v22, v23, 8, v22")
    a("v_cmp_gt_u32 vcc, 32, v17"); a("v_mov_b32 v21, %d" % OOB)
    a("s_lshr_b32 s7, s2, 3"); a("s_lshl1_add_u32 s7, s7, s32"); a("s_lshl_b32 s7, s7, 15")
    a("v_cndmask_b32 v24, v21, v22, vcc"); a("v_cndmask_b32 v25, v22, v21, vcc")
    a("s_and_b32 s3, s%d, 4" % SNT); a("s_lshl_b32 s3, s3, 8"); a("s_add_u32 s7, s7, s3")
    a("s_lshl_b32 s52, s%d, 7" % SP); a("s_add_u32 s7, s7, s52")
    a("s_mov_b64 s[4:5], s[%d:%d]" % (PWO, PWO + 1)); a("s_mov_b32 s6, %d" % (1024 * 2048))
    a("s_cmp_lt_u32 s32, 2"); a("s_cbranch_scc1 L_alt")
    a("v_lshlrev_b32 v24, 11, v17"); a("v_add_u32 v25, %d, v24" % (64 * 2048))
    a("s_lshl_b32 s7, s%d, 18" % SMT); a("s_add_u32 s7, s7, s49"); a("s_add_u32 s7, s7, s52")
    a("s_mov_b64 s[4:5], s[%d:%d]" % (PX, PX + 1)); a("s_mov_b32 s6, %d" % (2048 * 2048))
    a.label("L_alt")
    a("s_cmp_eq_u32 s32, 3"); a("s_cselect_b32 s47, 99, 13")
    a("v_xor_b32 v17, 0x80, v16"); a("v_add_u32 v17, %d, v17" % 7168)
    a("v_add_u32 v18, %d, v16" % 14336); a("v_add_u32 v19, %d, v17" % 14336)
    a("s_lshl_b32 s72, s%d, 18" % SMT); a("s_add_u32 s72, s72, s51")
    a("s_mul_i32 s55, s%d, %d" % (SP, 1792 * 2048))
    a("s_lshl_b32 s56, s32, 12"); a("s_add_u32 s56, s56, %d" % R2)
    a("s_lshl_b32 s48, s33, 1"); a("s_lshr_b32 s3, s32, 1"); a("s_add_u32 s48, s48, s3"); a("s_mul_i32 s48, s48, %d" % ACT_MT)
    a("s_lshl_b32 s3, s35, 12"); a("s_add_u32 s48, s48, s3")
    a("s_lshr_b32 s73, s34, 1"); a("s_mul_i32 s73, s73, %d" % (7 * 8192)); a("s_add_u32 s73, s73, s48")
    a("s_lshl_b32 s74, s57, 9"); a("s_add_u32 s74, s74, s73"); a("s_add_u32 s74, s74, %d" % (3 * 8192))
    a("s_lshl_b32 s3, s57, 15"); a("s_add_u32 s73, s73, s3")
    a("s_add_u32 s75, s34, 112"); a("s_lshl_b32 s75, s75, 13"); a("s_add_u32 s75, s75, s48")
    a("s_lshl2_add_u32 s92, s33, s32"); a("s_lshl_b32 s92, s92, 7"); a("s_lshl2_add_u32 s92, s34, s92")
    a("s_add_u32 s92, s92, %d" % F1H)
    a("s_lshr_b32 s58, s32, 1"); a("s_lshl1_add_u32 s58, s%d, s58" % SMT); a("s_lshl_b32 s58, s58, 7")
    a("s_add_u32 s59, s58, %d" % F1O)
    a("s_lshl_b32 s3, s%d, 6" % SP); a("s_add_u32 s58, s58, s3"); a("s_add_u32 s58, s58, %d" % F1H)
    a("s_or_b32 s33, s33, s32")
    a("s_add_u32 s34, s%d, s%d" % (SMT, SNT))
    a("s_mul_i32 s57, s%d, %d" % (SMT, ACT_MT)); a("s_lshl_b32 s3, s32, 11"); a("s_add_u32 s57, s57, s3")
    a("s_mov_b32 s50, 0xbfb8aa3b"); a("s_mov_b32 s51, 0xbfb8aa3b"); a("s_mov_b32 s52, 1.0"); a("s_mov_b32 s53, 1.0")

    blocks = []
    for p in range(7): blocks += [("gu", p, 0), ("gu", p, 1)]
    blocks += [("q", s) for s in range(6)]
    def wreads(b, dst, ab=0):
        o = []
        for kh in range(2):
            for s2 in range(2):
                d = ar(dst(kh) + 2 * s2, 2)
                if b[0] == "gu":
                    o.append("ds_read_b64_tr_b16 %s, v%d offset:%d" % (d, ab + (5 if b[1] == 6 else 1), b[2] * UP + (32 * kh + 16 * s2) * 224 + 32 * b[1]))
                elif b[0] == "q":
                    o.append("ds_read_b64_tr_b16 %s, v%d offset:%d" % (d, ab + 2 + b[1] % 2, (32 * kh + 16 * s2) * 192 + 64 * (b[1] // 2)))
                else:
                    o.append("ds_read_b64_tr_b16 %s, v%d offset:%d" % (d, ab + 4, (32 * kh + 16 * s2) * 192))
        return o
    def mfmas(b, ring, buf):
        o = []
        for m in range(4):
            for kh in range(2):
                w, x = ar(WR(ring, kh), 4), ar(XB(buf, m, kh), 4)
                c = vr(accGU(b[1], b[2], m), 4) if b[0] == "gu" else ar(accQ(b[1], m), 4)
                if b[0] == "q" and b[1] >= 4: w, x = x, w
                o.append("%s %s, %s, %s, %s" % (MF, c, w, x, c))
        return o
    def halo_mf(buf):
        return ["%s %s, %s, %s, %s" % (MF, ar(HACC, 4), ar(HW(kh), 4), ar(XB(buf, 4, kh), 4), ar(HACC, 4)) for kh in range(2)]

    vwait("X0")
    a("s_barrier")
    stamp()
    for bi in range(3):
        for o in wreads(blocks[bi], lambda kh: WR(bi % 4, kh)): a(o)

    HRB, HMB = 9, 13
    def step(buf, misc, loop=None):
        lg = Cnt([0] * 4 + [1] * 4 + [2] * 4)
        slots = [(bi, g) for bi in range(P.get("misc_end", 17)) for g in (1, 3, 5, 7) if bi != HRB]
        place = {}
        n = len(misc)
        assert n <= len(slots)
        for k, o in enumerate(misc):
            place.setdefault(slots[k * len(slots) // n], []).append(o)
        for bi in range(20):
            mf = mfmas(blocks[bi], bi % 4, buf)
            fill = {}
            w = lg.need(bi)
            if w is not None: a("s_waitcnt lgkmcnt(%d)" % w)
            rd = []
            if bi <= 16: rd = [(bi + 3, o) for o in wreads(blocks[bi + 3], lambda kh: WR((bi + 3) % 4, kh))]; gaps = [0, 2, 4, 6]
            elif bi == 18:
                rd = [(100, o) for o in wreads(blocks[0], lambda kh: WR(0, kh))] + [(101, o) for o in wreads(blocks[1], lambda kh: WR(1, kh))]
                gaps = list(range(8))
            elif bi == 19: rd = [(102, o) for o in wreads(blocks[2], lambda kh: WR(2, kh))]; gaps = [0, 2, 4, 6]
            if bi == HRB:
                hr = [("H", o) for o in wreads(("h",), HW)]
                rd = [x for pr in zip(rd, hr) for x in pr]; gaps = list(range(8))
            for (tag, o), g in zip(rd, gaps if rd else []):
                fill.setdefault(g, []).append(o); lg.issue(tag)
            for g in (1, 3, 5, 7):
                for o in place.get((bi, g), []): fill.setdefault(g, []).append(o)
            if bi == HMB:
                assert lg.need("H") is None
                mf += halo_mf(buf)
            if bi == 17:
                for k, r in enumerate((1, 2, 3, 4, 5)):
                    fill.setdefault(k + 1, []).append("v_add_u32 v%d, s93, v%d" % (r, r))
                fill.setdefault(7, []).append(lambda: (vwait("X", lg0=True), a("s_barrier")))
                lg.clear()
                if P.get("itrace"):
                    fill[7] += ["s_memtime s[98:99]", "s_add_u32 m0, s36, 30", "s_waitcnt lgkmcnt(0)", "v_writelane_b32 v31, s98, m0"]
            if bi == 19 and loop:
                fill.setdefault(5, []).append("s_cmp_lt_u32 s36, 15")
                fill.setdefault(7, []).append("s_cbranch_scc1 %s" % loop)
            for i, m in enumerate(mf):
                a(m)
                for o in fill.get(i, []): E(o)
    slot_ops = ["s_add_u32 s37, s37, s62", "s_cmp_eq_u32 s37, %d" % (3 * SLOT), "s_cselect_b32 s37, 0, s37",
                "s_cmp_eq_u32 s37, s62", "s_cselect_b32 s93, s63, s62"]
    def std_misc(buf):
        t = [("t", "buffer_load_dword v29, v%d, s[88:91], s94 offen" % (27 + buf))] + (["s_add_u32 s94, s94, s95"] if buf else [])
        if buf: t += ["s_cmp_eq_u32 s36, s47", "s_cselect_b64 s[88:89], s[4:5], s[88:89]", "s_cselect_b32 s90, s6, s90", "s_cselect_b32 s94, s7, s94",
                      "s_cselect_b64 vcc, -1, 0", "v_cndmask_b32 v27, v27, v24, vcc", "v_cndmask_b32 v28, v28, v25, vcc"]
        return xoff_ops() + xld_ops(buf ^ 1, "X") + ["s_add_u32 s36, s36, 1"] + tau_ops() + slot_ops + wdma_ops("W") + t
    a(".p2align 6")
    a.label("L_g1")
    vm.q = ["W"] * 10 + ["t"]
    step(0, std_misc(0))
    step(1, std_misc(1), loop="L_g1")
    assert vm.q == ["W"] * 10 + ["t"], vm.q
    stamp()

    ND, NO = 28, 8
    VDW, VDO = 16, 28
    OLOC = {28: R2, 29: R2 + 16384, 30: R2 + 32768, 31: 0, 32: 16384, 35: 106496, 33: 122880, 34: 139264}
    def wops(sg, force=False):
        if sg >= ND + 3 and not force: return []
        u = sg % 4
        o = []
        if sg < ND:
            if u == 0 and sg > 0: o.append("s_add_u32 s55, s55, %d" % (4 * 131072))
            o.append("s_add_u32 s38, s55, s%d" % (44 + u))
            o.append("s_add_u32 m0, s56, %d" % (u * 16384))
            for q in range(4):
                o.append(("W%d" % sg, "buffer_load_dwordx4 v%d, s[8:11], s38 offen offset:%d lds" % (VDW + q, 1024 * q)))
        else:
            o.append("s_add_u32 m0, s56, %d" % ((OLOC[sg] - R2) & 0xffffffff))
            for q in range(4):
                o.append("s_mov_b32 s38, %d" % ((sg - ND) * 262144 + 15360 * q))
                o.append(("W%d" % sg, "buffer_load_dwordx4 v%d, s[12:15], s38 offen offset:%d lds" % (VDO, 1024 * q)))
        return o
    rots = []
    for u in range(4):
        rots.append((["s_add_u32 s3, s34, %d" % u, "s_and_b32 s3, s3, 3"] if ROT2 else ["s_mov_b32 s3, %d" % u]) + ["s_lshl_b32 s%d, s3, 17" % (44 + u)])
    LAG = 6
    order = [(b, 0) for b in range(LAG)] + [(b, 1) for b in range(LAG)]
    for b in range(LAG, 20): order += [(b, 0), (b, 1)]
    NPOS = len(order)
    done_pos = {b: max(i for i, (bb, s) in enumerate(order) if bb == b) for b in range(20)}
    AB2 = 7
    R0, R1, R2_ = accGU(0, 1, 0), accGU(2, 1, 0), accGU(4, 1, 0)
    Qf = lambda m: R0 + 4 * m
    Kf = lambda m: R0 + 16 + 4 * (m + 1)
    VV = lambda f, m: R1 + 10 * f + 2 * (m + 1)
    Pf = lambda m: R1 + 20 + 4 * m
    Sp = lambda m: R2_ + 8 * m
    Sc = lambda m: R2_ + 8 * m + 4
    TT = lambda m: R2_ + 32 + 4 * m
    def cvt_acc(dst, src, t):
        return ["v_accvgpr_read_b32 v%d, a%d" % (t + r, src + r) for r in range(4)] + \
               ["v_cvt_pk_bf16_f32 v%d, v%d, v%d" % (dst, t, t + 1), "v_cvt_pk_bf16_f32 v%d, v%d, v%d" % (dst + 1, t + 2, t + 3)]
    early = ["v_add_u32 v%d, s63, v%d" % (AB2 + r, r) for r in (1, 2, 3, 4, 5)]
    early = xoff_ops() + xld_ops(1, "X") + early
    early2 = ["s_mov_b64 s[8:9], s[%d:%d]" % (PD, PD + 1), "s_mov_b32 s10, %d" % (3584 * 2048)] + rots[0] + wops(0) + rots[1] + wops(1) + \
        ["s_mov_b64 s[12:13], s[%d:%d]" % (PWO, PWO + 1), "s_mov_b32 s14, %d" % (1024 * 2048), unp("vdo", VDO)] + rots[2] + rots[3] + wops(33, True) + wops(34, True)
    stream = []
    def pkA(p): return [x for m in range(4) for h in (0, 2) for x in (
        "v_pk_mul_f32 %s, %s, %s" % (vr(accGU(p, 1, m) + h, 2), vr(accGU(p, 0, m) + h, 2), vr(accGU(p, 1, m) + h, 2)),)] + \
        ["v_pk_mul_f32 %s, %s, s[50:51]" % (vr(accGU(p, 0, m) + h, 2), vr(accGU(p, 0, m) + h, 2)) for m in range(4) for h in (0, 2)]
    def pkB(p): return ["v_pk_add_f32 %s, %s, s[52:53]" % (vr(accGU(p, 0, m) + h, 2), vr(accGU(p, 0, m) + h, 2)) for m in range(4) for h in (0, 2)]
    def pkC(p): return ["v_pk_mul_f32 %s, %s, %s" % (vr(accGU(p, 1, m) + h, 2), vr(accGU(p, 1, m) + h, 2), vr(accGU(p, 0, m) + h, 2)) for m in range(4) for h in (0, 2)]
    def fin(p):
        o = []
        for m in range(4):
            U = accGU(p, 1, m)
            D = accGU(p & ~1, 0, m) + 2 * (p & 1) if p < 6 else accGU(6, 0, m & ~1) + 2 * (m & 1)
            o += ["v_cvt_pk_bf16_f32 v%d, v%d, v%d" % (D, U, U + 1), "v_cvt_pk_bf16_f32 v%d, v%d, v%d" % (D + 1, U + 2, U + 3)]
            if p < 6 and p & 1:
                o.append(("hs", "buffer_store_dwordx4 %s, v15, s[28:31], s73 offen offset:%d %s" % (vr(D - 2, 4), 1024 * m, SC)))
        if p < 6 and p & 1: o.append("s_add_u32 s73, s73, 8192")
        if p == 6:
            o.append("s_nop 1")
            for m in (0, 2):
                g0 = accGU(6, 0, m)
                o += ["v_permlane16_swap_b32 v%d, v%d" % (g0, g0 + 2), "v_permlane16_swap_b32 v%d, v%d" % (g0 + 1, g0 + 3)]
            o.append("s_nop 0")
            for m in (0, 2):
                o.append(("hs", "buffer_store_dwordx4 %s, v26, s[28:31], s74 offen offset:%d %s" % (vr(accGU(6, 0, m), 4), 1024 * m, SC)))
        return o
    rdy = lambda b: (done_pos[b] + 2) * 8
    for p in range(8):
        burst = (pkC(p - 1) if p > 0 else []) + (pkA(p) if p < 7 else [])
        stream.append((rdy(2 * p + 1) if p < 7 else 0, burst, True))
        tr1 = ["v_exp_f32 v%d, v%d" % (accGU(p, 0, 0) + r, accGU(p, 0, 0) + r) for r in range(16)] if p < 7 else []
        f = fin(p - 1) if p > 0 else []
        if p > 0 and (p - 1) % 2 == 0 and p - 1 < 6: pass
        mix = []
        while tr1 or f:
            if f: mix.append(f.pop(0))
            if tr1: mix.append(tr1.pop(0))
        for o in mix: stream.append((0, [o], False))
        if p < 7:
            stream.append((0, pkB(p), True))
            for r in range(16): stream.append((0, ["v_rcp_f32 v%d, v%d" % (accGU(p, 0, 0) + r, accGU(p, 0, 0) + r)], False))
    masks = ["v_lshrrev_b32 v13, 4, v15", "v_and_b32 v14, 15, v13", "v_and_b32 v27, 1, v13", "v_lshrrev_b32 v20, 4, v13", "v_lshl_add_u32 v20, v20, 2, v27",
             "v_cmp_le_u32 s[40:41], v20, v14", "v_add_u32 v20, 2, v20", "v_cmp_le_u32 s[42:43], v20, v14", "v_cmp_ne_u32 s[62:63], 0, v27",
             "v_lshlrev_b32 v27, 4, v27", "s_cmp_eq_u32 s33, 0", "s_cselect_b64 s[88:89], -1, 0", "s_andn2_b64 s[90:91], s[88:89], s[42:43]",
             "s_andn2_b64 s[88:89], s[88:89], s[40:41]", "s_mov_b32 s48, 0x3e3504f3", "s_mov_b32 s49, 0x3fb8aa3b",
             "s_lshl_b32 s3, s32, 11", "s_add_u32 s3, s3, %d" % EX, "v_add_u32 v25, s3, v15", unp("vhx", 24)]
    for o in masks: stream.append((0, [o], False))
    for s_, F in ((0, Qf), (1, Qf), (2, Kf), (3, Kf)):
        for m in (3, 2, 1, 0):
            for k, o in enumerate(cvt_acc(F(m) + 2 * (s_ & 1), accQ(s_, m), TT(m))):
                stream.append((rdy(14 + s_), [o], False))
    BUD = P.get("budget", 10)
    lg = Cnt([0] * 4 + [1] * 4 + [2] * 4)
    HR = {3: 0, 15: 1}; HM = {7: 0, 19: 1}
    eq = list(early); eq2 = list(early2)
    g = 0
    for pos, (bi, st_) in enumerate(order):
        mf = mfmas(blocks[bi], pos % 4, st_)
        if P.get("tstamp") and pos in (3, 6, 9, 16, 24, 32): stamp()
        if pos % 4 == 0: sys.stderr.write("pos %d: stream left %d\n" % (pos, len(stream)))
        if pos == LAG: vwait("X")
        w = lg.need(pos)
        if w is not None: a("s_waitcnt lgkmcnt(%d)" % w)
        rd = []
        if pos + 3 < NPOS:
            b3, s3 = order[pos + 3]
            rd = [(pos + 3, o) for o in wreads(blocks[b3], lambda kh: WR((pos + 3) % 4, kh), AB2 * s3)]
        gaps = [0, 2, 4, 6]
        if pos in HR:
            hr = [("H", o) for o in wreads(("h",), HW, AB2 * HR[pos])]
            rd = [x for pr in zip(rd, hr) for x in pr]; gaps = list(range(8))
        rdat = dict(zip(gaps, rd))
        if pos in HM:
            assert lg.need("H") is None
            mf += halo_mf(HM[pos])
        for i, m in enumerate(mf):
            a(m)
            c = 0
            if i in rdat:
                a(rdat[i][1]); lg.issue(rdat[i][0]); c += 4
            src = eq if eq else (eq2 if pos >= LAG - 3 else [])
            while src and c < 8:
                o = src.pop(0); E(o); c += cost(o)
            while stream and not eq and not eq2 and c < BUD and stream[0][0] <= pos * 8 + i:
                r_, ops, burst = stream.pop(0)
                for o in ops: E(o); c += cost(o)
            if pos == LAG - 4 and i == 7:
                assert not eq
                vwait("W"); a("s_barrier")
    left = sum(len(x[1]) for x in stream)
    sys.stderr.write("tail: %d stream ops left after last MFMA\n" % left)
    stamp()
    for r_, ops, burst in stream:
        for o in ops: E(o)
    def hflag():
        vwait("hs")
        V("f", "buffer_store_dword v7, v6, s[84:87], s92 offen %s" % SC)
    M4 = range(4)
    a("s_nop 0")
    for m in (1, 2, 3):
        a("%s %s, %s, %s, 0" % (MF, vr(Sc(m), 4), vr(Kf(m), 4), vr(Qf(m), 4)))
        a("%s %s, %s, %s, 0" % (MF, vr(Sp(m), 4), vr(Kf(m - 1), 4), vr(Qf(m), 4)))
    a("%s %s, %s, %s, 0" % (MF, vr(Sc(0), 4), vr(Kf(0), 4), vr(Qf(0), 4)))
    for o in cvt_acc(2, HACC, 20): a(o)
    a("v_add_u32 v4, s71, v24"); a("v_add_u32 v5, s71, v4"); a("v_add_u32 v8, s71, v5")
    for o in cvt_acc(VV(0, 3), accQ(4, 3), 20) + cvt_acc(VV(1, 3), accQ(5, 3), TT(0)): a(o)
    a("ds_write_b16 v24, v2"); a("ds_write_b16_d16_hi v4, v2"); a("ds_write_b16 v5, v3"); a("ds_write_b16_d16_hi v8, v3")
    a("s_cmp_eq_u32 s32, 3")
    a("s_cbranch_scc1 L_noexp")
    a("ds_write_b128 v25, %s offset:2048" % vr(Kf(3), 4))
    a("ds_write_b64 v25, %s offset:3072" % vr(VV(0, 3), 2))
    a("ds_write_b64 v25, %s offset:3080" % vr(VV(1, 3), 2))
    a.label("L_noexp")
    hflag()
    for m in (2, 1):
        for o in cvt_acc(VV(0, m), accQ(4, m), 20) + cvt_acc(VV(1, m), accQ(5, m), TT(0)): a(o)
    a("s_waitcnt lgkmcnt(0)")
    a("s_barrier")
    a("ds_read_b128 %s, v25" % vr(Kf(-1), 4))
    a("ds_read_b64 %s, v25 offset:1024" % vr(VV(0, -1), 2))
    a("ds_read_b64 %s, v25 offset:1032" % vr(VV(1, -1), 2))
    LATE = P.get("late_res", [])
    dq = wops(2) + wops(3)
    for sg in (31, 32, 35):
        if sg not in LATE: dq += wops(sg, True)
    a_plain = a
    class Weave:
        def __init__(self, n): self.n, self.c = n, 0
        def __call__(self, t):
            a_plain(t)
            if t.startswith("v_") and not t.startswith("v_mfma"):
                self.c += 1
                if self.c % self.n == 0: self.one()
        def one(self):
            while dq:
                o = dq.pop(0); E(o)
                if isinstance(o, tuple): break
    aw = Weave(P.get("dma_every", 8))
    for o in cvt_acc(VV(0, 0), accQ(4, 0), 20) + cvt_acc(VV(1, 0), accQ(5, 0), TT(0)): aw(o)
    aw("s_waitcnt lgkmcnt(0)")
    aw("%s %s, %s, %s, 0" % (MF, vr(Sp(0), 4), vr(Kf(-1), 4), vr(Qf(0), 4)))
    stamp()
    aw("v_lshlrev_b32 v4, 2, v14")
    aw("v_and_b32 v5, 31, v13")
    aw("v_lshlrev_b32 v5, 2, v5")
    aw("v_mov_b32 v11, 0xce6e6b28")
    A_ = lambda m: TT(m)
    B_ = lambda m: TT(m) + 1
    X_ = lambda m: TT(m) + 2
    Y_ = lambda m: TT(m) + 3
    MR = (3, 2, 1, 0)
    for m in MR:
        for S_ in (Sc, Sp):
            aw("v_cndmask_b32 v%d, v%d, v%d, s[62:63]" % (S_(m), S_(m), S_(m) + 1))
            aw("v_cndmask_b32 v%d, v%d, v%d, s[62:63]" % (S_(m) + 2, S_(m) + 2, S_(m) + 3))
    for m in MR:
        aw("v_cndmask_b32 v%d, v%d, v%d, s[40:41]" % (A_(m), Sp(m), Sc(m)))
        aw("v_cndmask_b32 v%d, v%d, v%d, s[42:43]" % (B_(m), Sp(m) + 2, Sc(m) + 2))
    def rnd():
        for m in MR: aw("v_cvt_pk_bf16_f32 v%d, v%d, v%d" % (X_(m), A_(m), B_(m)))
        for m in MR:
            aw("v_lshlrev_b32 v%d, 16, v%d" % (A_(m), X_(m)))
            aw("v_and_b32 v%d, s54, v%d" % (B_(m), X_(m)))
    rnd()
    for m in MR: aw("v_pk_mul_f32 %s, %s, s[48:49] op_sel_hi:[1,0]" % (vr(A_(m), 2), vr(A_(m), 2)))
    rnd()
    aw("v_cndmask_b32 v%d, v%d, v11, s[88:89]" % (A_(0), A_(0)))
    aw("v_cndmask_b32 v%d, v%d, v11, s[90:91]" % (B_(0), B_(0)))
    accD = lambda m, b: 64 + (b * 2 + m) * 4
    accO = lambda m, b: 128 + (b * 2 + m) * 4
    VW, VWO, VX = 32, 20, 44
    fillq = [unp("vw", VW)] + ["v_xor_b32 v%d, %d, v%d" % (VW + b, 32 * b, VW) for b in range(1, 8)] + \
            [unp("vwo", VWO)] + ["v_xor_b32 v%d, %d, v%d" % (VWO + b, 32 * b, VWO) for b in range(1, 4)] + \
            ["v_subrev_u32 v%d, %d, v%d" % (40 + b, R2, VWO + b) for b in range(4)] + \
            ["v_add_u32 v%d, %d, v%d" % (48 + b, 106496 - R2, VWO + b) for b in range(4)] + \
            ["v_mov_b32 v%d, v15" % VX] + ["v_add_u32 v%d, %d, v15" % (VX + q, 8192 * q) for q in range(1, 4)] + [unp("vout", 2)]
    def pad(n):
        for _ in range(n):
            aw(fillq.pop(0) if fillq else "s_nop 0")
    def reduce(op):
        for m in MR: aw("%s v%d, v%d, v%d" % (op, X_(m), A_(m), B_(m)))
        for sw in ("v_permlane16_swap_b32", "v_permlane32_swap_b32"):
            for m in MR: aw("v_mov_b32 v%d, v%d" % (Y_(m), X_(m)))
            pad(2)
            for m in MR: aw("%s v%d, v%d" % (sw, X_(m), Y_(m)))
            pad(1)
            for m in MR: aw("%s v%d, v%d, v%d" % (op, X_(m), X_(m), Y_(m)))
    reduce("v_max_f32")
    for m in MR: aw("v_pk_add_f32 %s, %s, %s op_sel_hi:[1,0] neg_lo:[0,1] neg_hi:[0,1]" % (vr(A_(m), 2), vr(A_(m), 2), vr(X_(m), 2)))
    for m in MR: aw("v_pk_mul_f32 %s, %s, s[48:49] op_sel:[0,1]" % (vr(A_(m), 2), vr(A_(m), 2)))
    for m in MR:
        aw("v_exp_f32 v%d, v%d" % (A_(m), A_(m)))
        aw("v_exp_f32 v%d, v%d" % (B_(m), B_(m)))
    pad(1)
    reduce("v_add_f32")
    V("p", "buffer_load_dword v3, v4, s[84:87], s58 offen %s" % SC)
    for m in MR: aw("v_rcp_f32 v%d, v%d" % (X_(m), X_(m)))
    pad(1)
    for m in MR: aw("v_pk_mul_f32 %s, %s, %s op_sel_hi:[1,0]" % (vr(A_(m), 2), vr(A_(m), 2), vr(X_(m), 2)))
    for m in MR: aw("v_cvt_pk_bf16_f32 v%d, v%d, v%d" % (X_(m), A_(m), B_(m)))
    for m in MR:
        aw("v_and_b32 v%d, 0xffff, v%d" % (A_(m), X_(m)))
        aw("v_lshrrev_b32 v%d, 16, v%d" % (B_(m), X_(m)))
    for m in MR:
        aw("v_lshlrev_b32 v%d, v27, v%d" % (A_(m), A_(m)))
        aw("v_lshlrev_b32 v%d, v27, v%d" % (B_(m), B_(m)))
    for m in MR:
        aw("v_cndmask_b32 v%d, v%d, 0, s[40:41]" % (Pf(m), A_(m)))
        aw("v_cndmask_b32 v%d, v%d, 0, s[42:43]" % (Pf(m) + 1, B_(m)))
        aw("v_cndmask_b32 v%d, 0, v%d, s[40:41]" % (Pf(m) + 2, A_(m)))
        aw("v_cndmask_b32 v%d, 0, v%d, s[42:43]" % (Pf(m) + 3, B_(m)))
    pad(max(2, len(fillq)))
    sys.stderr.write("DMA queue left after softmax: %d\n" % len(dq))
    for m in MR:
        a("%s %s, %s, %s, 0" % (MF, vr(Sp(m), 4), vr(VV(0, m - 1), 4), vr(Pf(m), 4)))
        a("%s %s, %s, %s, 0" % (MF, vr(Sc(m), 4), vr(VV(1, m - 1), 4), vr(Pf(m), 4)))
    for u in range(4): a("s_lshr_b32 s%d, s%d, 3" % (40 + u, 44 + u))
    a("s_add_u32 s63, s57, %d" % (112 * 8192))
    a("s_mul_i32 s3, s%d, %d" % (SP, 56 * 8192))
    a("s_add_u32 s61, s57, s3")
    stamp()

    PART, XRES = 160, 192
    XB2 = lambda buf, kq, m: buf * 32 + (kq * 2 + m) * 4
    WR2 = lambda b, kh: 128 + b * 8 + kh * 4
    def xops(sg):
        if sg >= ND + NO: return []
        u = sg % 4
        o = []
        if sg < ND:
            if u == 0 and sg > 0: o.append("s_add_u32 s61, s61, %d" % (4 * 16384))
            o.append("s_add_u32 s39, s61, s%d" % (40 + u))
            nk = 2
        else:
            o.append("s_add_u32 s39, s63, %d" % ((sg - ND) * 32768))
            nk = 4
        for kq in range(nk):
            for m in range(2):
                o.append(("X%d" % sg, "buffer_load_dwordx4 %s, v%d, s[28:31], s39 offen offset:%d %s" % (ar(XB2(u, kq, m), 4), VX + kq, 1024 * m, XSC)))
        return o
    def wreads2(sg, b):
        o = []
        u = sg % 4
        for kh in range(2):
            for s2 in range(2):
                if sg < ND: v, off = VW + b, u * 16384 + (32 * kh + 16 * s2) * 256
                else:
                    L = OLOC[sg]
                    vb, base = (40, 0) if L < R2 else ((VWO, R2) if L < 106496 else (48, 106496))
                    v, off = vb + b % 4, L - base + (64 * (b // 4) + 32 * kh + 16 * s2) * 128
                o.append("ds_read_b64_tr_b16 %s, v%d offset:%d" % (ar(WR2(b, kh) + 2 * s2, 2), v, off))
        return o
    def mfmas2(sg, b):
        o = []
        u = sg % 4
        for m in range(2):
            for kh in range(2):
                if sg < ND: c, x = accD(m, b), XB2(u, kh, m)
                else: c, x = accO(m, b % 4), XB2(u, 2 * (b // 4) + kh, m)
                z = (sg == 0 and kh == 0) or (sg == ND and b < 4 and kh == 0)
                o.append("%s %s, %s, %s, %s" % (MF, vr(c, 4), ar(WR2(b, kh), 4), ar(x, 4), "0" if z else vr(c, 4)))
        return o
    check_flags(3, 4, "s58", "p", "L_f1")
    stamp()
    for sg in range(3):
        for o in xops(sg): E(o)
    while dq: aw.one()
    lg = Cnt()
    for b in range(4):
        for o in wreads2(0, b): a(o); lg.issue((0, b))
    for m in M4:
        for h in range(4):
            a("v_cvt_pk_bf16_f32 v%d, v%d, v%d" % (240 + 4 * m + h, Sp(m) + 2 * h, Sp(m) + 2 * h + 1))
        V("os", "buffer_store_dwordx4 %s, v15, s[28:31], s75 offen offset:%d %s" % (vr(240 + 4 * m, 4), 1024 * m, SC))
    srd(a, 16, PX, 0, 2048 * 2048)
    srd(a, 20, PWS, PART_OFF, PART_BYTES)
    srd(a, 24, POUT, 0, 2048 * 2048)
    a("s_add_u32 s73, s72, 32768")
    a("s_lshl_b32 s74, s2, 15"); a("s_lshl_b32 s3, s32, 13"); a("s_add_u32 s74, s74, s3"); a("s_add_u32 s75, s74, 4096")
    a("s_xor_b32 s94, s74, 0x8000"); a("s_add_u32 s95, s94, 4096")
    a("s_lshl_b32 s88, s2, 4"); a("s_lshl2_add_u32 s88, s32, s88"); a("s_add_u32 s88, s88, %d" % F2); a("s_xor_b32 s89, s88, 16")
    a("s_add_u32 s92, s92, %d" % (F1O - F1H))
    vwait("X0")
    stamp()

    def stage(sg, extra1=(), extra2=(), loopend=None, pre=None):
        last = sg == ND + NO - 1
        if P.get("sstamp") and (sg in (2, 4) or sg >= 24) and not (4 < sg < 8): stamp()
        if pre: pre()
        h1 = xops(sg + 3) + list(extra1)
        h2 = wops(sg + 4) + list(extra2)
        r1 = [((sg, b), o) for b in range(4, 8) for o in wreads2(sg, b)]
        r2 = [] if last else [((sg + 1, b), o) for b in range(4) for o in wreads2(sg + 1, b)]
        plan = {}
        for k, x in enumerate(r1): plan.setdefault(k * 12 // 16, []).append(("r",) + x)
        for k, x in enumerate(h1): plan.setdefault(min(15, (5 + k * 11 // max(1, len(h1))) if len(h1) <= 6 else k * 16 // len(h1)), []).append(("o", x))
        for k, x in enumerate(r2): plan.setdefault(16 + k, []).append(("r",) + x)
        for k, x in enumerate(h2): plan.setdefault(16 + k * 16 // len(h2), []).append(("o", x))
        g = 0
        for b in range(8):
            w = lg.need((sg, b))
            if w is not None: a("s_waitcnt lgkmcnt(%d)" % w)
            for mf in mfmas2(sg, b):
                a(mf)
                for x in plan.get(g, []):
                    if x[0] == "r": a(x[2]); lg.issue(x[1])
                    else: E(x[1])
                if g == 15 and not last:
                    if sg < 30:
                        vwait("W%d" % (sg + 1), "X%d" % (sg + 1), lg0=True)
                        a("s_barrier")
                        lg.clear()
                if g == 30 and not last and sg >= 30:
                    vwait("X%d" % (sg + 1))
                if g == 31 and loopend:
                    a("s_add_u32 s37, s37, 1")
                    a("s_cmp_lt_u32 s37, 6")
                    a("s_cbranch_scc1 %s" % loopend)
                g += 1
    def oflag():
        vwait("os")
        V("f", "buffer_store_dword v7, v6, s[84:87], s92 offen %s" % SC)
    lt = [wops(sg, True) for sg in LATE] + [[], [], []]
    stage(0, extra2=lt[0]), stage(1, extra2=lt[1])
    stage(2)
    stage(3, pre=oflag)
    vm.q = [t for t in vm.q if t not in ("f", "t", "W31", "W32", "W35")]
    shift = lambda q, d: [t[0] + str(int(t[1:]) + d) for t in q]
    q0 = list(vm.q)
    a("s_mov_b32 s37, 1")
    a(".p2align 6")
    a.label("L_g2")
    for sg in range(4, 8): stage(sg, loopend="L_g2" if sg == 7 else None)
    assert vm.q == shift(q0, 4), (vm.q, q0)
    vm.q = shift(q0, 20)
    lg.q = [(24, t[1]) for t in lg.q]
    V("p", "buffer_load_dword v3, v5, s[84:87], s59 offen %s" % SC)
    stage(24)
    stage(25, pre=lambda: check_flags(3, 5, "s59", "p", "L_f2"))
    sends = [("S", "buffer_store_dwordx4 %s, v%d, s[20:23], s%d offen offset:%d %s" % (vr(accD(0, 0) + 4 * k, 4), VX, 74 + k // 4, 1024 * (k % 4), P.get("sendfl", SC))) for k in range(8)]
    if P.get("ab_nosend"): sends = ["s_nop 0"] * 8
    xres = [("R", "buffer_load_dwordx4 %s, v2, s[16:19], s%d offen offset:%d" % (vr(XRES + 4 * (2 * m + bp), 4), 72 + m, 64 * bp)) for m in range(2) for bp in range(2)]
    parts = [("P%d" % k, "buffer_load_dwordx4 %s, v%d, s[20:23], s%d offen offset:%d %s" % (vr(PART + 4 * k, 4), VX, 94 + k // 4, 1024 * (k % 4), SC)) for k in range(8)]
    SPL = P.get("send_plan", [2, 2, 2, 2])
    FLS, PLS = P.get("flag_stage", 31), P.get("poll_stage", 33)
    def take(n):
        r = sends[:n]; del sends[:n]; return r
    def sflag():
        vwait("S")
        V("f", "buffer_store_dword v7, v6, s[84:87], s88 offen %s" % SC)
    poll3 = [("p", "buffer_load_dword v3, v6, s[84:87], s89 offen %s" % SC)]
    stage(26)
    stage(27, extra2=take(SPL[0]))
    stamp()
    EPV = 208
    eload = ["s_or_b32 s3, s2, s32", "s_cselect_b32 s3, %d, 0" % OOB] + \
          [("e", "buffer_load_dword v%d, v15, s[84:87], s3 offen offset:%d %s" % (EPV + k, 1024 * k, SC)) for k in range(4)]
    CKS, XRS = P.get("check_stage", 34), P.get("xres_stage", 31)
    for sg in range(28, 36):
        k = 1 + 2 * (sg - 28)
        e1 = take(SPL[k]) if k < len(SPL) else []
        e2 = take(SPL[k + 1]) if k + 1 < len(SPL) else []
        if sg == XRS: e2 = e2 + xres
        if sg == PLS: e2 = e2 + poll3
        if sg == 34: e2 = e2 + eload
        pre = sflag if sg == FLS else None
        if sg == CKS:
            pre = lambda: check_flags(3, 6, "s89", "p", "L_f3")
            e1 = e1 + parts
        stage(sg, extra1=e1, extra2=e2, pre=pre)
    assert not sends
    stamp()
    def round4(R, T):
        a("v_cvt_pk_bf16_f32 v%d, v%d, v%d" % (T, R, R + 1))
        a("v_cvt_pk_bf16_f32 v%d, v%d, v%d" % (T + 1, R + 2, R + 3))
        a("v_lshlrev_b32 v%d, 16, v%d" % (R, T))
        a("v_and_b32 v%d, s54, v%d" % (R + 1, T))
        a("v_lshlrev_b32 v%d, 16, v%d" % (R + 2, T + 1))
        a("v_and_b32 v%d, s54, v%d" % (R + 3, T + 1))
    for k in range(8):
        Y, T = accD(0, 4) + 4 * k, PART + 4 * k
        vwait("P%d" % k)
        for h in (0, 2): a("v_pk_add_f32 %s, %s, %s" % (vr(Y + h, 2), vr(Y + h, 2), vr(T + h, 2)))
        round4(Y, 8)
        for h in (0, 2): a("v_pk_mul_f32 %s, %s, s[50:51]" % (vr(T + h, 2), vr(Y + h, 2)))
        for r in range(4): a("v_exp_f32 v%d, v%d" % (T + r, T + r))
    for k in range(8): round4(accO(0, 0) + 4 * k, 8 + 2 * (k % 2))
    for k in range(8):
        Y, T = accD(0, 4) + 4 * k, PART + 4 * k
        for h in (0, 2): a("v_pk_add_f32 %s, %s, s[52:53]" % (vr(T + h, 2), vr(T + h, 2)))
        for r in range(4): a("v_rcp_f32 v%d, v%d" % (T + r, T + r))
    a("s_nop 0")
    for m in range(2):
        for bp in range(2):
            D = 32 + 4 * (2 * m + bp)
            for be in range(2):
                b = 2 * bp + be
                Y, T, S = accD(m, 4 + b), PART + (accD(m, b) - accD(0, 0)), accO(m, b)
                for h in (0, 2): a("v_pk_mul_f32 %s, %s, %s" % (vr(Y + h, 2), vr(Y + h, 2), vr(T + h, 2)))
                round4(Y, 8)
                for h in (0, 2): a("v_pk_mul_f32 %s, %s, %s" % (vr(Y + h, 2), vr(Y + h, 2), vr(S + h, 2)))
                a("v_cvt_pk_bf16_f32 v%d, v%d, v%d" % (D + 2 * be, Y, Y + 1))
                a("v_cvt_pk_bf16_f32 v%d, v%d, v%d" % (D + 2 * be + 1, Y + 2, Y + 3))
            Xr = XRES + 4 * (2 * m + bp)
            for r in range(4):
                a("v_lshlrev_b32 v%d, 16, v%d" % (56 + 2 * r, Xr + r))
                a("v_and_b32 v%d, s54, v%d" % (57 + 2 * r, Xr + r))
            a("v_permlane16_swap_b32 v%d, v%d" % (D, D + 2))
            a("v_permlane16_swap_b32 v%d, v%d" % (D + 1, D + 3))
            a("s_nop 0")
            for r in range(4):
                a("v_lshlrev_b32 v%d, 16, v%d" % (48 + 2 * r, D + r))
                a("v_and_b32 v%d, s54, v%d" % (49 + 2 * r, D + r))
            for r in range(4): a("v_pk_add_f32 %s, %s, %s" % (vr(48 + 2 * r, 2), vr(48 + 2 * r, 2), vr(56 + 2 * r, 2)))
            for r in range(4): a("v_cvt_pk_bf16_f32 v%d, v%d, v%d" % (D + r, 48 + 2 * r, 49 + 2 * r))
            a("buffer_store_dwordx4 %s, v2, s[24:27], s%d offen offset:%d %s" % (vr(D, 4), 72 + m, 64 * bp, P.get("outfl", "")))
    a("s_or_b32 s3, s2, s32")
    a("s_cbranch_scc1 L_noep")
    a("s_waitcnt vmcnt(4)")
    a("s_mov_b32 s97, 0")
    a.label("L_ep")
    for k in range(4): a("v_cmp_ne_u32 s[%d:%d], s96, v%d" % (40 + 2 * k, 41 + 2 * k, EPV + k))
    a("s_nop 0")
    a("s_or_b64 s[40:41], s[40:41], s[42:43]"); a("s_or_b64 s[44:45], s[44:45], s[46:47]"); a("s_or_b64 s[40:41], s[40:41], s[44:45]")
    a("s_cbranch_scc0 L_epok")
    for k in range(4): a("buffer_load_dword v%d, v15, s[84:87], 0 offen offset:%d %s" % (EPV + k, 1024 * k, SC))
    a("s_add_u32 s97, s97, 1")
    a("s_waitcnt vmcnt(0)")
    a("s_cmp_lt_u32 s97, 0x80000")
    a("s_cbranch_scc1 L_ep")
    a.label("L_epok")
    a("s_mov_b32 s3, %d" % EPOCH)
    a("buffer_store_dword v7, v6, s[84:87], s3 offen %s" % SC)
    a.label("L_noep")
    if probe is not None:
        stamp(); a("s_waitcnt vmcnt(0)"); stamp()
        a.label("L_probe")
        a("s_memrealtime s[4:5]"); a("s_waitcnt lgkmcnt(0)"); a("s_sub_u32 s4, s4, s98"); a("s_cmp_lt_u32 s4, 10000"); a("s_cbranch_scc1 L_probe")
    if prof:
        stamp(); a("s_waitcnt vmcnt(0)"); stamp()
        srd(a, 8, PWS, STAMP_OFF, 65536)
        a("s_lshl_b32 s3, s2, 8")
        a("v_lshl_add_u32 v8, v0, 2, s3")
        a("v_cmp_gt_u32 vcc, 64, v0")
        a("s_and_b64 exec, exec, vcc")
        a("s_cbranch_execz L_end")
        a("buffer_store_dword v31, v8, s[8:11], 0 offen")
    a.label("L_end")
    a("s_endpgm")
    desc(a, name, 256 + NAGPR, 100, 256)
    hdr = open("recurrent_scan__sliding_local_dilated__swiglu_ffn__prompt.s.ref").read().split("; Override launch")[0]
    if P.get("aslist", 1):
        hdr += "; @launch kernel=%s grid=(256,1,1) block=(256,1,1) lds=%d\n" % (name, LDS_BYTES)
    else:
        hdr += "; @launch grid=(256,1,1) block=(256,1,1) lds=%d\n" % LDS_BYTES
    return hdr + a.text()

if __name__ == "__main__":
    P = json.loads(sys.argv[2]) if len(sys.argv) > 2 else {}
    open(sys.argv[1], "w").write(gen(P))
```

```python
import sys, json
sys.path.insert(0, "dev")
from gen_common import *

MAIN = "recurrent_scan__sliding_local_dilated__swiglu_ffn__prompt_kernel"
SLOT = 40960
GATE, UP, QKV = 0, 14336, 28672
EX = 155648
LDS_BYTES = 163840
LNX = EX
R2 = SLOT
F0, F1H, F1O, F2, EPOCH = 0, 32768, 40960, 262144, 65536
NONCE_ADD = 0x6A09E667
OOB = 0x40000000
SC = "sc1"
MF = "v_mfma_f32_16x16x32_bf16"

class Cnt:
    def __init__(self, init=(), cap=15):
        self.q = list(init); self.cap = cap
    def issue(self, tag): self.q.append(tag)
    def need(self, *tags):
        idx = [i for i, t in enumerate(self.q) if t in tags]
        if not idx: return None
        last = max(idx)
        n = len(self.q) - 1 - last
        self.q = self.q[last + 1:]
        return min(n, self.cap)
    def clear(self): self.q = []

def cost(o):
    s = o[1] if isinstance(o, tuple) else o
    if callable(s): return 4
    if s.startswith(("v_exp", "v_rcp", "buffer_")): return 8
    return 4

def gen(P):
    a = Asm()
    name = MAIN
    prof, probe = P.get("prof"), P.get("probe")
    nst = [0]
    def stamp():
        if probe is not None:
            if nst[0] == probe:
                a("s_memrealtime s[98:99]"); a("s_waitcnt lgkmcnt(0)")
            nst[0] += 1
            return
        if not prof: return
        a("%s s[98:99]" % ("s_memtime" if prof == 2 else "s_memrealtime"))
        a("s_waitcnt lgkmcnt(0)")
        a("v_writelane_b32 v31, s98, %d" % nst[0])
        nst[0] += 1
    XSC = P.get("xsc", "sc1")
    ROT2 = P.get("g2_rot", 0)
    vm = Cnt(cap=63)
    def V(tag, s):
        vm.issue(tag)
        if s.endswith("lds") and a.lines[-1].strip().startswith("s_add_u32 m0"): a("s_nop 0")
        a(s)
    def E(o):
        if isinstance(o, tuple): V(*o)
        elif callable(o): o()
        else: a(o)
    def vwait(*tags, lg0=False):
        n = vm.need(*tags)
        parts = ([] if n is None else ["vmcnt(%d)" % n]) + (["lgkmcnt(0)"] if lg0 else [])
        if parts: a("s_waitcnt " + " ".join(parts))
    def check_flags(vreg, voff, soff, tag, label):
        vwait(tag)
        a("v_cmp_ne_u32 vcc, s96, v%d" % vreg)
        a("s_cbranch_vccz %s_ok" % label)
        a("s_mov_b32 s97, 0")
        a.label(label + "_spin")
        a("s_sleep 4")
        a("buffer_load_dword v%d, v%d, s[84:87], %s offen %s" % (vreg, voff, soff, SC))
        a("s_add_u32 s97, s97, 1")
        a("s_waitcnt vmcnt(0)")
        a("s_cmp_gt_u32 s97, 0x80000")
        a("s_cbranch_scc1 %s_ok" % label)
        a("v_cmp_ne_u32 vcc, s96, v%d" % vreg)
        a("s_cbranch_vccnz %s_spin" % label)
        a.label(label + "_ok")

    class Weave:
        def __init__(self, n, q, skip=0): self.n, self.c, self.q = n, -skip, q
        def __call__(self, t):
            a(t)
            if t.startswith("v_") and not t.startswith("v_mfma"):
                self.c += 1
                if self.c > 0 and self.c % self.n == 0: self.one()
        def one(self):
            while self.q:
                o = self.q.pop(0); E(o)
                if isinstance(o, tuple): break
        def flush(self):
            while self.q: self.one()

    accGU = lambda p, gu, m: 32 + ((p * 2 + gu) * 4 + m) * 4
    accQ = lambda s, m: (s * 4 + m) * 4
    HACC = 96
    XB = lambda buf, m, kh: (100 + buf * 40 + (m * 2 + kh) * 4) if buf < 2 else ((224 + (m * 2 + kh) * 4) if m < 4 else 172 + kh * 4)
    WR = lambda slot, kh: 180 + slot * 8 + kh * 4
    HW = lambda kh: 212 + kh * 4
    PARK = 220
    NAGPR = 256
    PX, PQKV, PWO, PG, PU, PD, POUT, PDBG, PWS = 64, 66, 68, 72, 74, 76, 78, 80, 82

    a.raw('.amdgcn_target "amdgcn-amd-amdhsa--gfx950"')
    kernel_header(a, name)
    a("s_cmp_ge_u32 s2, 256")
    a("s_cbranch_scc1 L_end")
    a("s_load_dwordx16 s[64:79], s[0:1], 0")
    a("s_load_dwordx4 s[80:83], s[0:1], 64")
    a("s_getpc_b64 s[4:5]")
    a.label("L_pc")
    a("v_and_b32 v17, 63, v0")
    a("s_mov_b32 s6, L_end-L_pc")
    a("s_mov_b32 s7, 0x20000")
    a("v_lshlrev_b32 v1, 7, v17")
    a("s_bfe_u32 s3, s2, 0x30003")
    a("s_lshl_b32 s3, s3, 13")
    V("c", "buffer_load_dword v29, v1, s[4:7], s3 offen")
    if prof: a("v_mov_b32 v31, 0")
    stamp()
    a("v_lshrrev_b32 v16, 6, v0")
    a("v_lshrrev_b32 v18, 3, v17")
    a("v_and_b32 v19, 7, v17")
    a("v_readfirstlane_b32 s32, v16")
    a("v_lshlrev_b32 v20, 11, v18")
    a("v_lshl_add_u32 v20, v16, 9, v20")
    a("v_lshl_add_u32 v20, v19, 4, v20")
    a("s_and_b32 s34, s2, 7")
    a("s_bfe_u32 s35, s2, 0x20003")
    a("s_lshl2_add_u32 s34, s34, s35")
    a("s_lshr_b32 s33, s2, 5")
    a("s_lshl_b32 s36, s33, 5")
    a("s_add_u32 s36, s36, s34")
    a("s_lshl_b32 s37, s36, 14")
    a("v_mov_b32 v6, 0")
    a("s_mov_b32 s50, %d" % (2048 * 2048))
    a("s_mov_b32 s51, 0x20000")
    a("s_waitcnt lgkmcnt(0)")
    a("s_mov_b64 s[48:49], s[%d:%d]" % (PX, PX + 1))
    LX = 32
    for u in range(4):
        V("x", "buffer_load_dwordx4 %s, v20, s[48:51], s37 offen offset:%d %s" % (vr(LX + 4 * u, 4), 128 * u, P.get("xfl", "nt")))
    srd(a, 84, PWS, FLAG_OFF, FLAG_BYTES)
    a("s_mov_b32 s3, %d" % EPOCH)
    V("ep", "buffer_load_dword v7, v6, s[84:87], s3 offen")
    stamp()
    if P.get("xrot", 1): a("s_and_b32 s80, s2, 7"); a("s_lshl_b32 s80, s80, 1")
    else: a("s_mov_b32 s80, 0")
    a("s_mov_b32 s81, s80")
    a("s_and_b32 s57, s34, 1")
    a("s_lshr_b32 s58, s34, 1")
    a("s_mul_i32 s58, s58, 448")
    a("s_cmp_eq_u32 s32, 1")
    a("s_cselect_b64 s[88:89], s[%d:%d], s[%d:%d]" % (PU, PU + 1, PG, PG + 1))
    a("s_cmp_eq_u32 s32, 3")
    a("s_cbranch_scc1 L_t3")
    a("s_mul_i32 s3, s57, 208")
    a("s_add_u32 s3, s3, s58")
    a("s_movk_i32 s92, 7168")
    a("s_movk_i32 s93, 118")
    a("s_cmp_eq_u32 s32, 2")
    a("s_cbranch_scc0 L_t01")
    a("s_mov_b64 s[88:89], s[%d:%d]" % (PQKV, PQKV + 1))
    a("s_lshl_b32 s3, s34, 6")
    a("s_movk_i32 s92, 6144")
    a("s_movk_i32 s93, 2048")
    a.label("L_t01")
    a("s_lshl_b32 s90, s92, 10")
    a("v_lshrrev_b32 v21, 2, v17")
    a("v_and_b32 v22, 3, v17")
    a("v_mul_u32_u24 v30, s92, v21")
    a("v_mul_u32_u24 v23, s93, v22")
    a("v_and_b32 v23, -4, v23")
    a("v_add3_u32 v30, v30, v23, s3")
    a("v_cmp_eq_u32 vcc, 3, v22")
    a("v_mov_b32 v23, %d" % OOB)
    a("s_lshl2_add_u32 s94, s80, s33")
    a("s_lshl_b32 s94, s94, 4")
    a("v_cndmask_b32 v30, v30, v23, vcc")
    a("v_mov_b32 v25, v30")
    a("s_mul_i32 s94, s94, s92")
    a("s_lshl_b32 s95, s92, 7")
    a("s_branch L_td")
    a.label("L_t3")
    a("s_mov_b64 s[88:89], s[%d:%d]" % (PD, PD + 1))
    a("v_lshlrev_b32 v30, 11, v18")
    a("v_lshl_add_u32 v30, v19, 7, v30")
    a("s_bfe_u32 s3, s2, 0x10002")
    a("s_add_u32 s3, s3, 1")
    a("s_mul_i32 s90, s3, %d" % (1792 * 2048))
    a("s_lshr_b32 s94, s2, 3")
    a("s_lshl_b32 s94, s94, 14")
    a("s_add_u32 s94, s94, s90")
    a("s_bfe_u32 s3, s2, 0x10001")
    a("s_lshl_b32 s3, s3, 10")
    a("s_add_u32 s94, s94, s3")
    a("s_sub_u32 s94, s94, %d" % (256 * 2048))
    a("s_mov_b32 s95, 0")
    a("v_mov_b32 v25, v30")
    a("v_mov_b32 v30, %d" % OOB)
    a.label("L_td")
    a("s_mov_b32 s91, 0x20000")
    for k in range(P.get("t_early", 1)):
        V("t", "buffer_load_dword v29, v30, s[88:91], s94 offen %s" % P.get("t0fl", "nt"))
        for o in ["s_add_u32 s94, s94, s95", "s_cmp_ge_u32 s94, s90", "s_cselect_b32 s3, s90, 0", "s_sub_u32 s94, s94, s3"]: a(o)
    a("v_lshlrev_b32 v21, 17, v16")
    a("v_lshrrev_b32 v22, 2, v19")
    a("v_lshl_add_u32 v21, v22, 10, v21")
    a("v_and_b32 v22, 3, v19")
    a("v_lshl_add_u32 v21, v22, 8, v21")
    a("v_lshl_add_u32 v28, v18, 4, v21")
    a("s_lshl_b32 s60, s33, 19")
    a("s_lshr_b32 s51, s34, 1")
    a("s_lshl_b32 s51, s51, 11")
    a("s_add_u32 s50, s60, s51")
    a("s_lshl_b32 s51, s57, 7")
    a("s_add_u32 s50, s50, s51")
    a("s_add_u32 s51, s50, 32768")
    a("s_add_u32 s52, s50, 65536")
    a("s_add_u32 s53, s50, 98304")
    a("v_lshlrev_b32 v26, 5, v18")
    a("v_add_u32 v26, %d, v26" % LNX)
    a("v_lshl_add_u32 v27, v16, 3, v26")
    a("s_mov_b64 s[24:25], s[%d:%d]" % (PWS, PWS + 1))
    a("s_add_u32 s26, s60, 0x80000")
    a("s_mov_b32 s27, 0x20000")
    a("s_mov_b32 s54, 0xffff0000")
    F0S = P.get("f0shift", 4)
    a("s_lshl_b32 s92, s36, %d" % F0S)
    a("s_lshl2_add_u32 s92, s32, s92")
    a("s_mov_b32 s3, 0x3f803f80")
    a("v_mov_b32 v116, s3")
    a("s_max_u32 s61, s33, 1")
    a("s_sub_u32 s61, s61, 1")
    a("s_lshl_b32 s59, s61, %d" % (5 + F0S))
    a("s_add_u32 s59, s59, %d" % (30 << F0S))
    a("s_lshl_b32 s3, s33, %d" % (5 + F0S))
    a("s_lshl_b32 s48, s32, %d" % (3 + F0S))
    a("s_add_u32 s3, s3, s48")
    a("v_and_b32 v21, 3, v17")
    a("v_lshlrev_b32 v21, 2, v21")
    a("v_lshrrev_b32 v20, 2, v17")
    a("v_lshl_add_u32 v20, v20, %d, v21" % F0S)
    a("v_and_b32 v21, %d, v20" % ((1 << F0S) + 12))
    a("v_add_u32 v20, s3, v20")
    a("v_add_u32 v21, s59, v21")
    a("v_cmp_gt_u32 vcc, 32, v17")
    a("v_mov_b32 v22, %d" % OOB)
    a("v_lshlrev_b32 v15, 4, v17")
    a("v_cndmask_b32 v254, v21, v20, vcc")
    a("v_cndmask_b32 v121, v22, v25, vcc")
    a("v_cndmask_b32 v122, v25, v22, vcc")

    def g1_setup_w():
        def krow(dst, rho, t1):
            a("v_and_b32 v%d, 35, v%d" % (dst, rho))
            a("v_bfe_u32 v%d, v%d, 2, 2" % (t1, rho))
            a("v_lshl_or_b32 v%d, v%d, 3, v%d" % (dst, t1, dst))
            a("v_bfe_u32 v%d, v%d, 4, 1" % (t1, rho))
            a("v_lshl_or_b32 v%d, v%d, 2, v%d" % (dst, t1, dst))
        a("s_mul_i32 s56, s32, 192")
        a("s_lshl_b32 s59, s34, 6")
        a("s_movk_i32 s40, 4682")
        a("s_movk_i32 s41, 5462")
        a("s_movk_i32 s62, 7168")
        a("s_movk_i32 s63, 6144")
        a("s_mul_i32 s48, s57, 14")
        def gu_off(dst, imm):
            a("v_mul_u32_u24 v21, s40, v20")
            a("v_lshrrev_b32 v21, 16, v21")
            a("v_mul_u32_u24 v22, 14, v21")
            a("v_sub_u32 v22, v20, v22")
            a("v_add_u32 v22, s48, v22")
            a("v_lshrrev_b32 v23, 1, v22")
            a("v_xor_b32 v23, v23, v22")
            a("v_and_b32 v23, 1, v23")
            a("v_mul_u32_u24 v23, 3, v23")
            a("v_xor_b32 v22, v22, v23")
            krow(24, 21, 23)
            a("s_sub_u32 s3, s58, %d" % imm)
            a("v_lshl_add_u32 v22, v22, 4, s3")
            a("v_mad_u32_u24 v%d, v24, s62, v22" % dst)
        def qkv_off(dst, imm):
            a("v_mul_u32_u24 v21, s41, v20")
            a("v_lshrrev_b32 v21, 16, v21")
            a("v_mul_u32_u24 v22, 12, v21")
            a("v_sub_u32 v22, v20, v22")
            a("v_lshrrev_b32 v23, 1, v21")
            a("v_and_b32 v23, 2, v23")
            a("v_xor_b32 v22, v22, v23")
            a("v_lshrrev_b32 v25, 2, v22")
            a("v_and_b32 v22, 3, v22")
            a("s_sub_u32 s3, s59, %d" % imm)
            a("v_lshl_add_u32 v22, v22, 4, s3")
            a("v_lshl_add_u32 v22, v25, 11, v22")
            krow(24, 21, 23)
            a("v_mad_u32_u24 v%d, v24, s63, v22" % dst)
        for q in range(3):
            a("s_add_u32 s3, s56, %d" % (64 * q))
            a("v_add_u32 v20, s3, v17")
            gu_off(8 + q, 1024 * q)
            qkv_off(11 + q, 1024 * q)
        a("s_and_b32 s35, s32, 1")
        a("s_lshl_b32 s3, s35, 6")
        a("s_add_u32 s3, s3, 768")
        a("v_add_u32 v20, s3, v17")
        gu_off(14, 0)
        a("s_mul_i32 s43, s32, 3072")
        a("s_add_u32 s44, s43, %d" % UP)
        a("s_add_u32 s45, s43, %d" % QKV)
        a("s_lshr_b32 s46, s32, 1")
        a("s_mul_i32 s46, s46, %d" % UP)
        a("s_lshl_b32 s3, s35, 10")
        a("s_add_u32 s46, s46, s3")
        a("s_add_u32 s46, s46, 12288")
        srd(a, 8, PG, 0, 1024 * 7168)
        srd(a, 12, PU, 0, 1024 * 7168)
        srd(a, 16, PQKV, 0, 1024 * 6144)
        a("s_cmp_lt_u32 s32, 2")
        a("s_cselect_b64 s[20:21], s[%d:%d], s[%d:%d]" % (PG, PG + 1, PU, PU + 1))
        a("s_mov_b32 s22, %d" % (1024 * 7168))
        a("s_mov_b32 s23, 0x20000")
    def g1_setup_r():
        a("v_lshrrev_b32 v18, 2, v17")
        a("v_and_b32 v19, 3, v17")
        a("v_lshlrev_b32 v19, 3, v19")
        a("s_movk_i32 s3, 224")
        a("v_and_b32 v20, 16, v15")
        a("v_and_b32 v21, 2, v17")
        a("v_lshl_add_u32 v20, v21, 2, v20")
        a("v_mad_u32_u24 v1, v18, s3, v20")
        a("s_movk_i32 s3, 192")
        a("v_mad_u32_u24 v2, v18, s3, v19")
        a("v_add_u32 v2, %d, v2" % QKV)
        a("v_and_b32 v19, 16, v17")
        a("v_lshlrev_b32 v19, 1, v19")
        a("v_xor_b32 v20, 32, v19")
        a("v_add_u32 v3, v2, v20")
        a("v_add_u32 v2, v2, v19")
        a("s_cmp_eq_u32 s35, 1")
        a("s_cselect_b64 vcc, -1, 0")
        a("v_cndmask_b32 v4, v2, v3, vcc")
        a("s_lshr_b32 s3, s32, 1")
        a("s_lshl_b32 s3, s3, 6")
        a("s_add_u32 s3, s3, 64")
        a("v_add_u32 v4, s3, v4")
        a("s_mov_b32 s62, %d" % SLOT)
        a("s_mov_b32 s63, %d" % ((-2 * SLOT) & 0xffffffff))
        srd(a, 28, PWS, ACT_OFF, ACT_BYTES)
    def tau_ops():
        return ["s_add_u32 s81, s36, s80", "s_and_b32 s81, s81, 15", "s_mul_i32 s38, s81, 458752", "s_mul_i32 s39, s81, 393216"]
    def xoff_ops():
        return ["s_lshl_b32 s40, s81, 15", "s_add_u32 s42, s40, s61", "s_add_u32 s40, s40, s60", "s_add_u32 s41, s40, 4096"]
    def wdma_ops(tag):
        o = []
        for (mreg, sd, vb, so) in ((43, 8, 8, 38), (44, 12, 8, 38), (45, 16, 11, 39)):
            o.append("s_add_u32 m0, s37, s%d" % mreg)
            for q in range(3):
                o.append((tag, "buffer_load_dwordx4 v%d, s[%d:%d], s%d offen offset:%d lds" % (vb + q, sd, sd + 3, so, 1024 * q)))
        o.append("s_add_u32 m0, s37, s46")
        o.append((tag, "buffer_load_dwordx4 v14, s[20:23], s38 offen lds"))
        return o
    def xld_ops(buf, tag):
        o = []
        for f in range(8):
            o.append((tag, "buffer_load_dwordx4 %s, v15, s[24:27], s%d offen offset:%d %s" % (ar(XB(buf, f // 2, f % 2), 4), 40 + f // 4, 1024 * (f % 4), XSC)))
        for kh in range(2):
            o.append((tag, "buffer_load_dwordx4 %s, v15, s[24:27], s42 offen offset:%d %s" % (ar(XB(buf, 4, kh), 4), 1024 * kh, XSC)))
        return o

    g1_setup_w()
    a("s_mov_b32 s36, 0"); a("s_mov_b32 s37, 0")
    W0POS = P.get("w0pos", 1)
    al = Weave(P.get("w0_every", 14), tau_ops() + wdma_ops("W0") if W0POS == 2 else [], P.get("w0_skip", 0))

    vwait("x")
    stamp()
    X = 48
    for r in range(16):
        c1 = "0" if r < 2 else "v%d" % (112 + 2 * (r % 2))
        c2 = "0" if r < 2 else "v%d" % (113 + 2 * (r % 2))
        al("v_dot2_f32_bf16 v%d, v%d, v116, %s" % (112 + 2 * (r % 2), LX + r, c1))
        al("v_dot2_f32_bf16 v%d, v%d, v%d, %s" % (113 + 2 * (r % 2), LX + r, LX + r, c2))
    al("s_nop 2")
    al("v_pk_add_f32 v[112:113], v[112:113], v[114:115]")
    for m in ("quad_perm:[1,0,3,2]", "quad_perm:[2,3,0,1]", "row_half_mirror"):
        al("s_nop 0" if m != "quad_perm:[1,0,3,2]" else "s_nop 1")
        for v in (112, 113):
            al("v_add_f32_dpp v%d, v%d, v%d %s row_mask:0xf bank_mask:0xf" % (v, v, v, m))
    al("ds_write_b64 v27, v[112:113]")
    def unpack(r):
        al("v_lshlrev_b32 v%d, 16, v%d" % (X + 2 * r, LX + r))
        al("v_and_b32 v%d, s54, v%d" % (X + 2 * r + 1, LX + r))
    for r in range(8): unpack(r)
    al("s_waitcnt lgkmcnt(0)")
    al("s_barrier")
    al("ds_read_b128 v[80:83], v26")
    al("ds_read_b128 v[84:87], v26 offset:16")
    for r in range(8, 16): unpack(r)
    al("s_waitcnt lgkmcnt(0)")
    al("v_pk_add_f32 v[80:81], v[80:81], v[82:83]")
    al("v_pk_add_f32 v[84:85], v[84:85], v[86:87]")
    al("v_pk_add_f32 v[80:81], v[80:81], v[84:85]")
    al("v_mul_f32 v88, 0x3a800000, v80")
    al("v_mul_f32 v81, 0x3a800000, v81")
    al("v_fma_f32 v81, -v88, v88, v81")
    al("v_max_f32 v81, 0, v81")
    al("v_cvt_pk_bf16_f32 v88, v88, v81")
    al("v_and_b32 v81, s54, v88")
    al("v_lshlrev_b32 v88, 16, v88")
    al("v_add_f32 v81, 0x3727c5ac, v81")
    al("v_cvt_pk_bf16_f32 v81, v81, v81")
    al("v_and_b32 v81, s54, v81")
    al("v_sqrt_f32 v81, v81")
    al("v_sub_f32 v88, 0, v88")
    al("v_cvt_pk_bf16_f32 v81, v81, v81")
    al("v_and_b32 v81, s54, v81")
    al("v_rcp_f32 v90, v81")
    al("v_mov_b32 v89, v88")
    al("v_mov_b32 v91, v90")
    for u in range(4):
        R = range(4 * u, 4 * u + 4)
        for r in R: al("v_pk_add_f32 %s, %s, v[88:89]" % (vr(X + 2 * r, 2), vr(X + 2 * r, 2)))
        for r in R: al("v_cvt_pk_bf16_f32 v%d, v%d, v%d" % (LX + r, X + 2 * r, X + 2 * r + 1))
        for r in R: unpack(r)
        for r in R: al("v_pk_mul_f32 %s, %s, v[90:91]" % (vr(X + 2 * r, 2), vr(X + 2 * r, 2)))
        for r in R: al("v_cvt_pk_bf16_f32 v%d, v%d, v%d" % (LX + r, X + 2 * r, X + 2 * r + 1))
        V("xs", "buffer_store_dwordx4 %s, v28, s[24:27], s%d offen %s" % (vr(LX + 4 * u, 4), 50 + u, SC))
    al.flush()
    stamp()

    if P.get("t_early", 1) < 2 and P.get("t1pos", 0) == 0:
        V("t", "buffer_load_dword v29, v30, s[88:91], s94 offen %s" % P.get("t1fl", "nt"))
        for o in ["s_add_u32 s94, s94, s95", "s_cmp_ge_u32 s94, s90", "s_cselect_b32 s3, s90, 0", "s_sub_u32 s94, s94, s3"]: a(o)
    a("s_lshl_b32 s3, s32, 13")
    a("s_add_u32 s60, s60, s3")
    a("s_lshl_b32 s61, s61, 19")
    a("s_add_u32 s61, s61, %d" % (3 * 8192 + 3 * 2048))
    for o in xoff_ops(): E(o)
    a("v_mov_b32 v27, v121"); a("v_mov_b32 v28, v122")
    g1_setup_r()
    av = Weave(P.get("w0_every", 5), tau_ops() + wdma_ops("W0") if W0POS == 0 else [])
    SP, SMT, SNT = 66, 67, 70
    av("s_bfe_u32 s%d, s2, 0x10002" % SP)
    av("s_and_b32 s%d, s2, 1" % SMT); av("s_bfe_u32 s3, s2, 0x30003"); av("s_lshl3_add_u32 s%d, s%d, s3" % (SMT, SMT))
    av("s_bfe_u32 s%d, s2, 0x10001" % SNT); av("s_lshr_b32 s3, s2, 6"); av("s_lshl2_add_u32 s%d, s%d, s3" % (SNT, SNT))
    park = {}
    def parkv(key, v):
        park[key] = PARK + len(park)
        assert park[key] < 224
        av("v_accvgpr_write_b32 a%d, v%d" % (park[key], v))
    unp = lambda key, v: "v_accvgpr_read_b32 v%d, a%d" % (v, park[key])
    av("s_lshl_b32 s48, s%d, 2" % SP); av("s_xor_b32 s48, s48, 4"); av("s_lshl_b32 s49, s%d, 8" % SNT); av("s_lshl_b32 s50, s32, 15"); av("s_add_u32 s50, s50, s49")
    av("v_lshrrev_b32 v20, 4, v17"); av("v_bfe_u32 v21, v17, 1, 3"); av("v_xor_b32 v21, s48, v21"); av("v_xor_b32 v21, v21, v20")
    av("v_and_b32 v22, 16, v15"); av("v_lshl_add_u32 v23, v20, 11, v22")
    av("v_lshl_add_u32 v16, v21, 5, v23"); av("v_add_u32 v16, s50, v16")
    av("s_lshl_b32 s51, s32, 16"); av("s_add_u32 s51, s51, s49"); av("s_lshl_b32 s3, s%d, 7" % SP); av("s_add_u32 s51, s51, s3")
    av("v_bfe_u32 v21, v17, 1, 2"); av("v_xor_b32 v21, v21, v20"); av("v_lshrrev_b32 v23, 3, v17")
    av("v_lshl_add_u32 v22, v23, 11, v22"); av("v_lshl_add_u32 v22, v21, 5, v22"); av("v_add_u32 v22, s51, v22")
    av("v_mov_b32 v30, v22")
    av("v_lshrrev_b32 v20, 2, v17"); av("v_and_b32 v21, 3, v17"); av("v_lshlrev_b32 v21, 3, v21"); av("v_add_u32 v21, %d, v21" % R2)
    av("v_lshl_add_u32 v22, v20, 8, v21"); av("v_and_b32 v23, 7, v20"); av("v_lshl_add_u32 v22, v23, 5, v22")
    parkv("vw", 22)
    av("v_lshl_add_u32 v22, v20, 7, v21"); av("v_bfe_u32 v23, v17, 3, 2"); av("v_lshl_add_u32 v22, v23, 5, v22")
    parkv("vwo", 22)
    av("v_and_b32 v20, 15, v17"); av("v_lshlrev_b32 v22, 11, v20"); av("v_bfe_u32 v23, v17, 4, 1"); av("v_lshl_add_u32 v22, v23, 5, v22")
    av("v_lshrrev_b32 v21, 5, v17"); av("v_lshl_add_u32 v22, v21, 4, v22")
    parkv("vout", 22)
    av("v_lshlrev_b32 v22, 10, v23"); av("v_lshl_add_u32 v22, v21, 8, v22"); av("v_lshl_add_u32 v26, v20, 4, v22")
    av("v_bfe_u32 v22, v17, 2, 2"); av("v_lshlrev_b32 v22, 8, v22"); av("v_lshrrev_b32 v23, 4, v17"); av("v_lshl_add_u32 v22, v23, 6, v22")
    av("v_and_b32 v23, 3, v17"); av("v_lshl_add_u32 v22, v23, 1, v22"); av("v_add_u32 v22, 1024, v22")
    a("s_cmp_ge_u32 s32, 2"); a("s_cselect_b64 vcc, -1, 0"); a("s_cselect_b32 s71, 16, 2")
    av("v_cndmask_b32 v22, v15, v22, vcc")
    av("s_lshl_b32 s3, s35, 3"); av("s_add_u32 s3, s3, %d" % EX); av("v_add_u32 v22, s3, v22")
    parkv("vhx", 22)
    av.flush()
    a("v_lshrrev_b32 v22, 2, v17"); a("v_lshlrev_b32 v22, 11, v22"); a("v_lshl_add_u32 v22, v23, 8, v22")
    a("v_cmp_gt_u32 vcc, 32, v17"); a("v_mov_b32 v21, %d" % OOB)
    a("s_lshr_b32 s7, s2, 3"); a("s_lshl1_add_u32 s7, s7, s32"); a("s_lshl_b32 s7, s7, 15")
    a("v_cndmask_b32 v24, v21, v22, vcc"); a("v_cndmask_b32 v25, v22, v21, vcc")
    a("s_and_b32 s3, s%d, 4" % SNT); a("s_lshl_b32 s3, s3, 8"); a("s_add_u32 s7, s7, s3")
    a("s_lshl_b32 s52, s%d, 7" % SP); a("s_add_u32 s7, s7, s52")
    a("s_mov_b64 s[4:5], s[%d:%d]" % (PWO, PWO + 1)); a("s_mov_b32 s6, %d" % (1024 * 2048 if not P.get("nowot") else 0))
    a("s_cmp_lt_u32 s32, 2"); a("s_cbranch_scc1 L_alt")
    a("v_lshlrev_b32 v24, 7, v17"); a("v_add_u32 v25, 8192, v24")
    a("s_lshl_b32 s7, s2, 14")
    a("s_mov_b64 s[4:5], s[%d:%d]" % (PX, PX + 1)); a("s_mov_b32 s6, %d" % (2048 * 2048 if not P.get("noxt") else 0))
    a.label("L_alt")
    a("s_cmp_eq_u32 s32, 3"); a("s_cselect_b32 s47, 99, %d" % (13 if not P.get("ab_noalt") else 64))
    a("v_xor_b32 v17, 0x80, v16"); a("v_add_u32 v17, %d, v17" % 7168)
    a("v_add_u32 v18, %d, v16" % 14336); a("v_add_u32 v19, %d, v17" % 14336)
    vwait("xs")
    a("v_add_u32 v7, 0x%x, v7" % NONCE_ADD)
    V("f", "buffer_store_dword v7, v6, s[84:87], s92 offen %s" % SC)
    a("v_readfirstlane_b32 s96, v7")
    stamp()
    p0 = ("p", "buffer_load_dword v255, v254, s[84:87], 0 offen %s" % SC)
    q1 = (tau_ops() + wdma_ops("W0") if W0POS == 1 else []) + ["s_mov_b32 s36, 1", "s_mov_b32 s37, %d" % SLOT] + tau_ops() + wdma_ops("W")
    W1POS = P.get("w1pos", 0)
    PB4 = P.get("poll_before", 6)
    if PB4:
        idx = [k for k, o in enumerate(q1) if isinstance(o, tuple)][-PB4]
        if q1[idx - 1].startswith("s_add_u32 m0") if isinstance(q1[idx - 1], str) else False: idx -= 1
        q1.insert(idx, p0)
    az = Weave(P.get("w1_every", 5), q1 if W1POS == 0 else [])
    for r in range(32, 254, 2): az("v_mov_b64 %s, 0" % vr(r, 2))
    az.flush()
    if not PB4: E(p0)
    a("s_lshl_b32 s72, s%d, 18" % SMT); a("s_add_u32 s72, s72, s51")
    a("s_mul_i32 s55, s%d, %d" % (SP, 1792 * 2048))
    a("s_lshl_b32 s56, s32, 12"); a("s_add_u32 s56, s56, %d" % R2)
    a("s_lshl_b32 s48, s33, 1"); a("s_lshr_b32 s3, s32, 1"); a("s_add_u32 s48, s48, s3"); a("s_mul_i32 s48, s48, %d" % ACT_MT)
    a("s_lshl_b32 s3, s35, 12"); a("s_add_u32 s48, s48, s3")
    a("s_mul_i32 s73, s34, 7"); a("s_lshr_b32 s73, s73, 1"); a("s_lshl_b32 s73, s73, 13"); a("s_add_u32 s73, s73, s48")
    a("s_lshl_b32 s3, s57, 9"); a("s_add_u32 s73, s73, s3")
    a("s_mul_i32 s74, s57, %d" % (8192 - 1024)); a("s_add_u32 s74, s74, 512"); a("s_add_u32 s74, s74, s73")
    a("s_add_u32 s75, s34, 112"); a("s_lshl_b32 s75, s75, 13"); a("s_add_u32 s75, s75, s48")
    a("s_lshl2_add_u32 s92, s33, s32"); a("s_lshl_b32 s92, s92, 7"); a("s_lshl2_add_u32 s92, s34, s92")
    FP = P.get("fpad", 1)
    a("s_add_u32 s35, s92, %d" % F1O)
    if FP: a("s_lshl_b32 s92, s92, 5")
    a("s_add_u32 s92, s92, %d" % (F1H if not FP else 131072))
    a("s_lshr_b32 s58, s32, 1"); a("s_lshl1_add_u32 s58, s%d, s58" % SMT); a("s_lshl_b32 s58, s58, 7")
    a("s_add_u32 s59, s58, %d" % F1O)
    a("s_lshl_b32 s3, s%d, 6" % SP); a("s_add_u32 s58, s58, s3")
    if FP: a("s_lshl_b32 s58, s58, 5")
    a("s_add_u32 s58, s58, %d" % (F1H if not FP else 131072))
    a("s_or_b32 s33, s33, s32")
    a("s_mul_i32 s57, s%d, %d" % (SMT, ACT_MT)); a("s_lshl_b32 s3, s32, 11"); a("s_add_u32 s57, s57, s3")
    a("s_mov_b32 s50, 0xbfb8aa3b"); a("s_mov_b32 s51, 0xbfb8aa3b"); a("s_mov_b32 s52, 1.0"); a("s_mov_b32 s53, 1.0")

    stamp()
    check_flags(255, 254, "0", "p", "L_f0")
    stamp()
    for o in xld_ops(0, "X0"): E(o)
    xlast = ["s_add_u32 s40, s80, 15", "s_and_b32 s40, s40, 15", "s_lshl_b32 s40, s40, 15", "s_add_u32 s40, s40, s60", "s_add_u32 s41, s40, 4096"] + xld_ops(2, "XL")[:8]
    if P.get("xl_pos", 1) == 0:
        for o in xlast: E(o)
    if W1POS == 1:
        for o in q1: E(o)
    a("v_mov_b64 v[254:255], 0")
    for r in range(0, 100, 4): a("%s %s, v[48:51], v[48:51], 0" % (MF, ar(r, 4)))

    blocks = []
    for p in range(7): blocks += [("gu", p, 0), ("gu", p, 1)]
    blocks += [("q", s) for s in range(6)]
    def wreads(b, dst, ab=0):
        o = []
        for kh in range(2):
            for s2 in range(2):
                d = ar(dst(kh) + 2 * s2, 2)
                if b[0] == "gu":
                    o.append("ds_read_b64_tr_b16 %s, v%d offset:%d" % (d, ab + 1, b[2] * UP + (32 * kh + 16 * s2) * 224 + 32 * b[1]))
                elif b[0] == "q":
                    o.append("ds_read_b64_tr_b16 %s, v%d offset:%d" % (d, ab + 2 + b[1] % 2, (32 * kh + 16 * s2) * 192 + 64 * (b[1] // 2)))
                else:
                    o.append("ds_read_b64_tr_b16 %s, v%d offset:%d" % (d, ab + 4, (32 * kh + 16 * s2) * 192))
        return o
    def mfmas(b, ring, buf):
        o = []
        for m in range(4):
            for kh in range(2):
                w, x = ar(WR(ring, kh), 4), ar(XB(buf, m, kh), 4)
                c = vr(accGU(b[1], b[2], m), 4) if b[0] == "gu" else ar(accQ(b[1], m), 4)
                if b[0] == "q" and b[1] >= 4: w, x = x, w
                o.append("%s %s, %s, %s, %s" % (MF, c, w, x, c))
        return o
    def halo_mf(buf):
        return ["%s %s, %s, %s, %s" % (MF, ar(HACC, 4), ar(HW(kh), 4), ar(XB(buf, 4, kh), 4), ar(HACC, 4)) for kh in range(2)]

    vwait("X0")
    a("s_barrier")
    stamp()
    for bi in range(3):
        for o in wreads(blocks[bi], lambda kh: WR(bi % 4, kh)): a(o)
    if P.get("xl_pos", 1) == 1:
        for o in xlast: E(o)
    if P.get("xl_pos", 1) == 2:
        for o in ["s_add_u32 s48, s80, 15", "s_and_b32 s48, s48, 15", "s_lshl_b32 s48, s48, 15", "s_add_u32 s48, s48, s60"]: a(o)
    if P.get("t_early", 1) < 2 and P.get("t1pos", 0) == 1:
        V("t", "buffer_load_dword v29, v27, s[88:91], s94 offen %s" % P.get("t1fl", "nt"))
        V("t", "buffer_load_dword v29, v28, s[88:91], s94 offen %s" % P.get("t1fl", "nt"))
        for o in ["s_add_u32 s94, s94, s95", "s_cmp_ge_u32 s94, s90", "s_cselect_b32 s3, s90, 0", "s_sub_u32 s94, s94, s3"]: a(o)
    a("s_cmp_eq_u32 s32, 3"); a("s_cselect_b32 s95, %d, s95" % ((-256 * 2048) & 0xffffffff))

    HRB, HMB = 9, 13
    def step(buf, misc, loop=None):
        lg = Cnt([0] * 4 + [1] * 4 + [2] * 4)
        SPC, V0 = P.get("vspace", 5.4), P.get("vstart", 5)
        place = {}
        nv = 0
        tgt = []
        for o in misc:
            if isinstance(o, tuple):
                g = int(V0 + nv * SPC) | 1
                if g // 8 >= HRB: g += 8
                tgt.append(g)
                if P.get("vweight", 0): nv += (1.55 if "s[16:19]" in o[1] else (1.1 if o[1].endswith("lds") else 0.77))
                else: nv += (P.get("xl_w", 0.4) if "s49" in o[1] else 1)
            else: tgt.append(None)
        nxt = None
        for k in range(len(misc) - 1, -1, -1):
            if tgt[k] is not None: nxt = tgt[k]
            elif nxt is not None:
                nxt -= 1; tgt[k] = nxt
        last = max(t for t in tgt if t is not None)
        for k in range(len(misc)):
            if tgt[k] is None:
                last += 1; tgt[k] = last
        for k in range(1, len(misc)):
            if tgt[k] < tgt[k - 1]: tgt[k] = tgt[k - 1]
        assert min(tgt) >= 0 and max(tgt) < 17 * 8, (min(tgt), max(tgt))
        for k, o in enumerate(misc): place.setdefault((tgt[k] // 8, tgt[k] % 8), []).append(o)
        for bi in range(20):
            mf = mfmas(blocks[bi], bi % 4, buf)
            fill = {}
            w = lg.need(bi)
            if w is not None: a("s_waitcnt lgkmcnt(%d)" % w)
            rd = []
            if bi <= 16: rd = [(bi + 3, o) for o in wreads(blocks[bi + 3], lambda kh: WR((bi + 3) % 4, kh))]; gaps = [0, 2, 4, 6]
            elif bi == 18:
                rd = [(100, o) for o in wreads(blocks[0], lambda kh: WR(0, kh))] + [(101, o) for o in wreads(blocks[1], lambda kh: WR(1, kh))]
                gaps = list(range(8))
            elif bi == 19: rd = [(102, o) for o in wreads(blocks[2], lambda kh: WR(2, kh))]; gaps = [0, 2, 4, 6]
            if bi == HRB:
                hr = [("H", o) for o in wreads(("h",), HW)]
                rd = [x for pr in zip(rd, hr) for x in pr]; gaps = list(range(8))
            for (tag, o), g in zip(rd, gaps if rd else []):
                fill.setdefault(g, []).append(o); lg.issue(tag)
            for g in range(8):
                for o in place.get((bi, g), []): fill.setdefault(g, []).append(o)
            if bi == HMB:
                assert lg.need("H") is None
                mf += halo_mf(buf)
            if bi == 17:
                for k, r in enumerate((1, 2, 3, 4)):
                    fill.setdefault(k + 1, []).append("v_add_u32 v%d, s93, v%d" % (r, r))
                fill.setdefault(7, []).append(lambda: (vwait("X", lg0=True), a("s_barrier")))
                lg.clear()
                if P.get("itrace"):
                    fill[7] += ["s_memtime s[98:99]", "s_add_u32 m0, s36, 30", "s_waitcnt lgkmcnt(0)", "v_writelane_b32 v31, s98, m0"]
            if bi == 19 and loop:
                fill.setdefault(5, []).append("s_cmp_lt_u32 s36, 15")
                fill.setdefault(7, []).append("s_cbranch_scc1 %s" % loop)
            for i, m in enumerate(mf):
                a(m)
                for o in fill.get(i, []): E(o)
    slot_ops = ["s_add_u32 s37, s37, s62", "s_cmp_eq_u32 s37, %d" % (3 * SLOT), "s_cselect_b32 s37, 0, s37",
                "s_cmp_eq_u32 s37, s62", "s_cselect_b32 s93, s63, s62"]
    def std_misc(buf):
        t = [("t", "buffer_load_dword v29, v%d, s[88:91], s94 offen %s" % (27 + buf, P.get("tfl", "")))] + (["s_add_u32 s94, s94, s95", "s_cmp_ge_u32 s94, s90", "s_cselect_b32 s3, s90, 0", "s_sub_u32 s94, s94, s3"] if buf else [])
        if buf: t += ["s_cmp_eq_u32 s36, s47", "s_cselect_b64 s[88:89], s[4:5], s[88:89]", "s_cselect_b32 s90, s6, s90", "s_cselect_b32 s94, s7, s94",
                      "s_cselect_b64 vcc, -1, 0", "v_cndmask_b32 v27, v27, v24, vcc", "v_cndmask_b32 v28, v28, v25, vcc"]
        xl = xld_ops(buf ^ 1, "X")
        if P.get("xl_pos", 1) == 2:
            ex = [("X", o[1].replace("s40", "s49").replace("s41", "s49")) for o in xld_ops(2, "X")[4 * buf:4 * buf + 4]]
            pre = ["s_cmp_eq_u32 s36, 14", "s_cselect_b32 s49, s48, %d" % OOB] if buf == 0 else ["s_add_u32 s49, s49, 4096"]
            xl = xl + pre + ex
        return xoff_ops() + xl[:2] + ["s_add_u32 s36, s36, 1"] + tau_ops() + xl[2:4] + slot_ops[:3] + xl[4:6] + slot_ops[3:] + xl[6:] + wdma_ops("W") + t
    a(".p2align 6")
    a.label("L_g1")
    vm.q = ["W"] * 10 + ["t"]
    step(0, std_misc(0))
    step(1, std_misc(1), loop="L_g1")
    assert vm.q == ["W"] * 10 + ["t"], vm.q
    stamp()

    ND, NO = 28, 8
    VDW, VDO = 16, 30
    NRES = P.get("nres", 3)
    if NRES == 5: OLOC = {28: R2, 29: R2 + 16384, 30: R2 + 32768, 35: 0, 32: 16384, 31: 106496, 33: 122880, 34: 139264}
    else: OLOC = {28: R2, 29: R2 + 16384, 30: R2 + 32768, 31: R2 + 49152, 32: R2, 35: 0, 33: 122880, 34: 139264}
    FR = ND + NO - NRES
    def wops(sg, force=False):
        if sg >= FR and not force: return []
        u = sg % 4
        o = []
        if sg < ND:
            o.append("s_add_u32 m0, s56, %d" % (u * 16384))
            for q in range(4):
                o.append(("W%d" % sg, "buffer_load_dwordx4 v%d, s[8:11], s44 offen offset:%d lds" % (VDW + q, 1024 * q)))
            o.append("s_add_u32 s44, s44, 131072")
            if sg >= 6: o += ["s_cmp_eq_u32 s44, s45", "s_cselect_b32 s44, s55, s44"]
        else:
            o.append("s_add_u32 m0, s56, %d" % ((OLOC[sg] - R2) & 0xffffffff))
            for q in range(4):
                o.append("s_mov_b32 s38, %d" % ((sg - ND) * 262144 + 15360 * q))
                o.append(("W%d" % sg, "buffer_load_dwordx4 v%d, s[12:15], s38 offen offset:%d lds" % (VDO, 1024 * q)))
        return o
    accD = lambda m, b: 64 + (b * 2 + m) * 4
    accO = lambda m, b: 128 + (b * 2 + m) * 4
    VW, VWO, VX = 32, 20, 44
    PART, XRES = 160, 192
    XB2 = lambda buf, kq, m: buf * 32 + (kq * 2 + m) * 4
    WR2 = lambda b, kh: 128 + b * 8 + kh * 4
    def xops(sg):
        if sg >= ND + NO: return []
        u = sg % 4
        o = []
        if sg < ND:
            if sg < 3: o.append("s_add_u32 s39, s60, %d" % (sg * 16384))
            elif sg == 3: o.append("s_add_u32 s39, s46, %d" % (3 * 16384))
            else:
                o.append("s_add_u32 s39, s39, 16384")
                if sg >= 7: o += ["s_cmp_eq_u32 s39, s47", "s_cselect_b32 s39, s61, s39"]
            nk = 2
        else:
            o.append("s_add_u32 s39, s57, %d" % (112 * 8192 + (sg - ND) * 32768))
            nk = 4
        for kq in range(nk):
            for m in range(2):
                o.append(("X%d" % sg, "buffer_load_dwordx4 %s, v%d, s[28:31], s39 offen offset:%d %s" % (ar(XB2(u, kq, m), 4), VX + kq, 1024 * m, XSC)))
        return o
    def wreads2(sg, b):
        o = []
        u = sg % 4
        for kh in range(2):
            for s2 in range(2):
                if sg < ND: v, off = VW + b, u * 16384 + (32 * kh + 16 * s2) * 256
                else:
                    L = OLOC[sg]
                    vb, base = (40, 0) if L < R2 else ((VWO, R2) if L < 106496 else (48, 106496))
                    v, off = vb + b % 4, L - base + (64 * (b // 4) + 32 * kh + 16 * s2) * 128
                o.append("ds_read_b64_tr_b16 %s, v%d offset:%d" % (ar(WR2(b, kh) + 2 * s2, 2), v, off))
        return o
    def mfmas2(sg, b):
        o = []
        u = sg % 4
        for m in range(2):
            for kh in range(2):
                if sg < ND: c, x = accD(m, b), XB2(u, kh, m)
                else: c, x = accO(m, b % 4), XB2(u, 2 * (b // 4) + kh, m)
                z = (sg == 0 and kh == 0) or (sg == ND and b < 4 and kh == 0)
                o.append("%s %s, %s, %s, %s" % (MF, vr(c, 4), ar(WR2(b, kh), 4), ar(x, 4), "0" if z else vr(c, 4)))
        return o
    order = [(0, 0), (1, 0), (2, 0), (3, 0), (0, 1), (1, 1), (2, 1), (3, 1)]
    for b in range(4, 20): order += [(b, 0), (b, 1)]
    NPOS = len(order)
    done_pos = {b: max(i for i, (bb, s) in enumerate(order) if bb == b) for b in range(20)}
    AB2 = 7
    R0, R1, R2_ = accGU(0, 1, 0), accGU(2, 1, 0), accGU(4, 1, 0)
    Qf = lambda m: R0 + 4 * m
    Kf = lambda m: R0 + 28 + 4 * (m + 1)
    VV = lambda f, m: R1 + 10 * f + 2 * (m + 1)
    Pf = lambda m: R1 + 20 + 4 * m
    Sp = lambda m: R2_ + 8 * m
    Sc = lambda m: R2_ + 8 * m + 4
    TT = lambda m: R2_ + 32 + 4 * m
    def cvt_acc(dst, src, t):
        return ["v_accvgpr_read_b32 v%d, a%d" % (t + r, src + r) for r in range(4)] + \
               ["v_cvt_pk_bf16_f32 v%d, v%d, v%d" % (dst, t, t + 1), "v_cvt_pk_bf16_f32 v%d, v%d, v%d" % (dst + 1, t + 2, t + 3)]
    G0OP = {0: "s_mov_b32 s3, 0", 1: "s_xor_b32 s3, s2, 1", 2: "s_add_u32 s3, s2, 1", 3: "s_add_u32 s3, s2, 2", 4: "s_andn2_b32 s3, s2, 1"}[P.get("g0", 1)]
    masks = ["v_lshrrev_b32 v13, 4, v15", "v_and_b32 v14, 15, v13", "v_and_b32 v27, 1, v13", "v_lshrrev_b32 v20, 4, v13", "v_lshl_add_u32 v20, v20, 2, v27",
             "v_cmp_le_u32 s[40:41], v20, v14", "v_add_u32 v20, 2, v20", "v_cmp_le_u32 s[42:43], v20, v14", "v_cmp_ne_u32 s[62:63], 0, v27",
             "v_lshlrev_b32 v27, 4, v27", "s_cmp_eq_u32 s33, 0", "s_cselect_b64 s[88:89], -1, 0", "s_andn2_b64 s[90:91], s[88:89], s[42:43]",
             "s_andn2_b64 s[88:89], s[88:89], s[40:41]", "s_mov_b32 s48, 0x3e3504f3", "s_mov_b32 s49, 0x3fb8aa3b",
             "s_lshl_b32 s3, s32, 11", "s_add_u32 s3, s3, %d" % EX, "v_add_u32 v25, s3, v15", unp("vhx", 24),
             "v_lshlrev_b32 v14, %d, v14" % (7 if FP else 2), "v_and_b32 v13, 31, v13", "v_lshlrev_b32 v13, 2, v13",
             "s_mul_i32 s3, s%d, %d" % (SP, 56 * 8192), "s_add_u32 s61, s57, s3", "s_add_u32 s47, s61, %d" % (28 * 16384),
             "s_add_u32 s45, s55, %d" % (28 * 131072), G0OP, "s_and_b32 s3, s3, 3",
             "s_mul_i32 s44, s3, %d" % (7 * 131072), "s_add_u32 s44, s44, s55", "s_mul_i32 s46, s3, %d" % (7 * 16384), "s_add_u32 s46, s46, s61",
             "s_mov_b32 s60, s46", "s_lshl_b32 s3, s3, %d" % (9 if FP else 4), "s_add_u32 s34, s3, s58", "v_and_b32 v5, %d, v14" % (384 if FP else 12)]
    early = ["v_add_u32 v%d, s63, v%d" % (AB2 + r, r) for r in (1, 2, 3, 4)] + xoff_ops()[:2] + xld_ops(2, "X")[8:] + masks
    memq = ["s_mov_b64 s[8:9], s[%d:%d]" % (PD, PD + 1), "s_mov_b32 s10, %d" % (3584 * 2048)] + wops(0) + wops(1) + \
        ["s_mov_b64 s[12:13], s[%d:%d]" % (PWO, PWO + 1), "s_mov_b32 s14, %d" % (1024 * 2048)] + wops(33, True) + wops(34, True)
    stream = []
    def pkA(p): return [x for m in range(4) for h in (0, 2) for x in (
        "v_pk_mul_f32 %s, %s, %s" % (vr(accGU(p, 1, m) + h, 2), vr(accGU(p, 0, m) + h, 2), vr(accGU(p, 1, m) + h, 2)),)] + \
        ["v_pk_mul_f32 %s, %s, s[50:51]" % (vr(accGU(p, 0, m) + h, 2), vr(accGU(p, 0, m) + h, 2)) for m in range(4) for h in (0, 2)]
    def pkB(p): return ["v_pk_add_f32 %s, %s, s[52:53]" % (vr(accGU(p, 0, m) + h, 2), vr(accGU(p, 0, m) + h, 2)) for m in range(4) for h in (0, 2)]
    def pkC(p): return ["v_pk_mul_f32 %s, %s, %s" % (vr(accGU(p, 1, m) + h, 2), vr(accGU(p, 1, m) + h, 2), vr(accGU(p, 0, m) + h, 2)) for m in range(4) for h in (0, 2)]
    def fin(p):
        o = []
        sreg = 73 + (p & 1)
        for m in range(4):
            U = accGU(p, 1, m)
            D = accGU(p, 0, m & ~1) + 2 * (m & 1)
            o += ["v_cvt_pk_bf16_f32 v%d, v%d, v%d" % (D, U, U + 1), "v_cvt_pk_bf16_f32 v%d, v%d, v%d" % (D + 1, U + 2, U + 3)]
        for m in (0, 2):
            g0 = accGU(p, 0, m)
            o += ["v_permlane16_swap_b32 v%d, v%d" % (g0, g0 + 2), "v_permlane16_swap_b32 v%d, v%d" % (g0 + 1, g0 + 3)]
            o.append(("hs", "buffer_store_dwordx4 %s, v26, s[28:31], s%d offen offset:%d %s" % (vr(g0, 4), sreg, 1024 * m, SC)))
        o.append("s_add_u32 s%d, s%d, 8192" % (sreg, sreg))
        return o
    rdy = lambda b: (done_pos[b] + 1) * 8 + 7
    for p in range(8):
        burst = (pkC(p - 1) if p > 0 else []) + (pkA(p) if p < 7 else [])
        stream.append((rdy(2 * p + 1) if p < 7 else 0, burst, True))
        tr1 = ["v_exp_f32 v%d, v%d" % (accGU(p, 0, 0) + r, accGU(p, 0, 0) + r) for r in range(16)] if p < 7 else []
        f = fin(p - 1) if p > 0 else []
        if p > 0 and (p - 1) % 2 == 0 and p - 1 < 6: pass
        mix = []
        while tr1 or f:
            if f: mix.append(f.pop(0))
            if tr1: mix.append(tr1.pop(0))
        for o in mix: stream.append((0, [o], False))
        if p < 7:
            stream.append((0, pkB(p), True))
            for r in range(16): stream.append((0, ["v_rcp_f32 v%d, v%d" % (accGU(p, 0, 0) + r, accGU(p, 0, 0) + r)], False))
    stream.append((0, ["HDONE"], False))
    for s_, F in ((0, Qf), (1, Qf), (2, Kf), (3, Kf)):
        for m in (3, 2, 1, 0):
            for k, o in enumerate(cvt_acc(F(m) + 2 * (s_ & 1), accQ(s_, m), TT(m))):
                stream.append((rdy(14 + s_), [o], False))
    for m in (3, 2, 1, 0):
        for o in cvt_acc(VV(0, m), accQ(4, m), TT(m)): stream.append((rdy(18), [o], False))
    def hflag():
        vwait("hs")
        V("f", "buffer_store_dword v7, v6, s[84:87], s92 offen %s" % SC)
    GL = P.get("gaplen", 20)
    MSP = P.get("mem_space", 5)
    HDLY = P.get("hflag_delay", 99)
    BP = P.get("bar_pos", 28)
    lg = Cnt([0] * 4 + [1] * 4 + [2] * 4)
    HR = {3: 0, 15: 1}; HM = {7: 0, 19: 2}
    isv = lambda o: isinstance(o, str) and (o.startswith("v_") or o.startswith("s_nop"))
    front = []
    lastmem = -99; hdone = None; hsent = False; est = 0
    w = lg.need(0); a("s_waitcnt lgkmcnt(%d)" % w)
    for pos, (bi, st_) in enumerate(order):
        mf = mfmas(blocks[bi], pos % 4, 2 * st_)
        if P.get("tstamp") and pos in (4, 8, 16, 24, 32): stamp()
        if pos % 4 == 0: sys.stderr.write("pos %d: stream left %d est %d\n" % (pos, len(stream), est))
        rd = []
        if pos + 3 < NPOS:
            b3, s3 = order[pos + 3]
            rd = [(pos + 3, o) for o in wreads(blocks[b3], lambda kh: WR((pos + 3) % 4, kh), AB2 * s3)]
        gaps = [0, 2, 4, 6]
        if pos in HR:
            hr = [("H", o) for o in wreads(("h",), HW, AB2 * HR[pos])]
            rd = [x for pr in zip(rd, hr) for x in pr]; gaps = list(range(8))
        rdat = dict(zip(gaps, rd))
        if pos in HM:
            assert lg.need("H") is None
            if HM[pos]: vwait("X")
            mf += halo_mf(HM[pos])
        for i, m in enumerate(mf):
            g = pos * 8 + i
            a(m)
            t = 4
            if i in rdat:
                a(rdat[i][1]); lg.issue(rdat[i][0]); t += 8
            if i == len(mf) - 1 and pos + 1 < NPOS:
                w = lg.need(pos + 1)
                if pos == 0:
                    vwait("W"); a("s_barrier")
                if pos == BP:
                    assert not memq and BP > done_pos[13]
                    a("s_barrier"); memq += wops(2) + wops(3) + wops(35, True)
                if w is not None: a("s_waitcnt lgkmcnt(%d)" % w); t += 4
            if early:
                while early and t < 16:
                    o = early.pop(0); E(o); t = (max(t, 8) if isv(o) else t) + cost(o)
            else:
                q = front if front else memq
                if q and not isinstance(q[0], tuple) and t <= 12 - 4 * bool(stream and stream[0][0] <= g):
                    E(q.pop(0)); t += 4
                elif q and isinstance(q[0], tuple) and t == 4 and g - lastmem >= (MSP if q is memq else P.get("st_space", 4)):
                    E(q.pop(0)); t += 8; lastmem = g
                if hdone is not None and not hsent and not front and g >= hdone + HDLY and t == 4:
                    hflag(); hsent = True; t += 12
                if g == P.get("tpoll_gap", 305):
                    V("p", "buffer_load_dword v12, v5, s[84:87], s34 offen %s" % SC); t += 8
                t = max(t, 8)
                while stream and t < GL - 3 and stream[0][0] <= g:
                    r_, ops, burst = stream.pop(0)
                    if ops == ["HDONE"]: hdone = g; continue
                    if not isv(ops[0]): front.append(ops[0]); continue
                    for o in ops: E(o); t += cost(o)
                    if burst: t = max(t, 29 + 4 * len(ops))
            est += max(16, t)
    sys.stderr.write("tail: %d stream ops left after last MFMA, est %d, hdone %s hsent %s memq %d\n" % (len(stream), est, hdone, hsent, len(memq)))
    stamp()
    for o in front: E(o)
    a("s_nop 1")
    for r_, ops, burst in stream:
        for o in ops:
            if o != "HDONE": E(o)
    HPOS = P.get("hflag_pos", 0)
    if not hsent and HPOS == 0: hflag(); hsent = True
    M4 = range(4)
    a("s_nop 1")
    for m in (1, 2, 3):
        a("%s %s, %s, %s, 0" % (MF, vr(Sc(m), 4), vr(Kf(m), 4), vr(Qf(m), 4)))
        a("%s %s, %s, %s, 0" % (MF, vr(Sp(m), 4), vr(Kf(m - 1), 4), vr(Qf(m), 4)))
    a("%s %s, %s, %s, 0" % (MF, vr(Sc(0), 4), vr(Kf(0), 4), vr(Qf(0), 4)))
    for o in cvt_acc(2, HACC, 20): a(o)
    a("v_add_u32 v4, s71, v24"); a("v_add_u32 v10, s71, v4"); a("v_add_u32 v8, s71, v10")
    for o in cvt_acc(VV(1, 3), accQ(5, 3), TT(0)): a(o)
    a("ds_write_b16 v24, v2"); a("ds_write_b16_d16_hi v4, v2"); a("ds_write_b16 v10, v3"); a("ds_write_b16_d16_hi v8, v3")
    a("s_cmp_eq_u32 s32, 3")
    a("s_cbranch_scc1 L_noexp")
    a("ds_write_b128 v25, %s offset:2048" % vr(Kf(3), 4))
    a("ds_write_b64 v25, %s offset:3072" % vr(VV(0, 3), 2))
    a("ds_write_b64 v25, %s offset:3080" % vr(VV(1, 3), 2))
    a.label("L_noexp")
    if not hsent: hflag()
    PPOS = P.get("poll_pos", 9)
    poll1 = lambda: V("p", "buffer_load_dword v12, v5, s[84:87], s34 offen %s" % SC)
    if PPOS == 0: poll1()
    for m in (2, 1):
        for o in cvt_acc(VV(1, m), accQ(5, m), TT(m)): a(o)
    a("s_waitcnt lgkmcnt(0)")
    a("s_barrier")
    a("ds_read_b128 %s, v25" % vr(Kf(-1), 4))
    a("ds_read_b64 %s, v25 offset:1024" % vr(VV(0, -1), 2))
    a("ds_read_b64 %s, v25 offset:1032" % vr(VV(1, -1), 2))
    for o in cvt_acc(VV(1, 0), accQ(5, 0), TT(0)): a(o)
    a("v_mov_b32 v%d, v15" % VX)
    for q in range(1, 4): a("v_add_u32 v%d, %d, v15" % (VX + q, 8192 * q))
    a("v_mov_b32 v11, 0xce6e6b28")
    a("s_waitcnt lgkmcnt(0)")
    a("%s %s, %s, %s, 0" % (MF, vr(Sp(0), 4), vr(Kf(-1), 4), vr(Qf(0), 4)))
    stamp()
    if PPOS == 1: poll1()
    LATE = [31, 32] if NRES == 5 else []
    dq = list(memq)
    aw = Weave(P.get("dma_every", 10), dq)
    CKP = P.get("check_pos", 0)
    BLK = P.get("blocking", 0)
    def hcheck():
        if BLK:
            aw.flush()
            check_flags(12, 5, "s34", "p", "L_f1")
            stamp()
            dq.extend(xops(0) + xops(1) + xops(2))
            aw.n = P.get("x_every", 4)
            for _ in range(P.get("x_burst", 4)): aw.one()
            return
        vwait("p")
        a("v_cmp_ne_u32 vcc, s96, v12")
        a("s_nop 0")
        a("s_cmp_eq_u64 vcc, 0")
        a("s_cselect_b32 s60, s46, %d" % OOB)
        stamp()
        dq.extend(xops(0) + xops(1) + xops(2))
        for _ in range(P.get("x_burst", 3)): aw.one()
    if CKP == 0: hcheck()
    A_ = lambda m: TT(m)
    B_ = lambda m: TT(m) + 1
    X_ = lambda m: TT(m) + 2
    Y_ = lambda m: TT(m) + 3
    MR = (3, 2, 1, 0)
    for m in MR:
        for S_ in (Sc, Sp):
            aw("v_cndmask_b32 v%d, v%d, v%d, s[62:63]" % (S_(m), S_(m), S_(m) + 1))
            aw("v_cndmask_b32 v%d, v%d, v%d, s[62:63]" % (S_(m) + 2, S_(m) + 2, S_(m) + 3))
    for m in MR:
        aw("v_cndmask_b32 v%d, v%d, v%d, s[40:41]" % (A_(m), Sp(m), Sc(m)))
        aw("v_cndmask_b32 v%d, v%d, v%d, s[42:43]" % (B_(m), Sp(m) + 2, Sc(m) + 2))
    if CKP == 1: hcheck()
    def rnd():
        for m in MR: aw("v_cvt_pk_bf16_f32 v%d, v%d, v%d" % (X_(m), A_(m), B_(m)))
        for m in MR:
            aw("v_lshlrev_b32 v%d, 16, v%d" % (A_(m), X_(m)))
            aw("v_and_b32 v%d, s54, v%d" % (B_(m), X_(m)))
    rnd()
    for m in MR: aw("v_pk_mul_f32 %s, %s, s[48:49] op_sel_hi:[1,0]" % (vr(A_(m), 2), vr(A_(m), 2)))
    rnd()
    aw("v_cndmask_b32 v%d, v%d, v11, s[88:89]" % (A_(0), A_(0)))
    aw("v_cndmask_b32 v%d, v%d, v11, s[90:91]" % (B_(0), B_(0)))
    if CKP == 2: hcheck()
    if PPOS == 2: poll1()
    fillq = [unp("vw", VW)] + ["v_xor_b32 v%d, %d, v%d" % (VW + b, 32 * b, VW) for b in range(1, 8)] + \
            [unp("vwo", VWO)] + ["v_xor_b32 v%d, %d, v%d" % (VWO + b, 32 * b, VWO) for b in range(1, 4)] + \
            ["v_subrev_u32 v%d, %d, v%d" % (40 + b, R2, VWO + b) for b in range(4)] + \
            ["v_add_u32 v%d, %d, v%d" % (48 + b, 106496 - R2, VWO + b) for b in range(4)] + \
            [unp("vout", 2)]
    def pad(n):
        for _ in range(n):
            aw(fillq.pop(0) if fillq else "s_nop 0")
    def reduce(op):
        for m in MR: aw("%s v%d, v%d, v%d" % (op, X_(m), A_(m), B_(m)))
        for sw in ("v_permlane16_swap_b32", "v_permlane32_swap_b32"):
            for m in MR: aw("v_mov_b32 v%d, v%d" % (Y_(m), X_(m)))
            pad(2)
            for m in MR: aw("%s v%d, v%d" % (sw, X_(m), Y_(m)))
            pad(1)
            for m in MR: aw("%s v%d, v%d, v%d" % (op, X_(m), X_(m), Y_(m)))
    reduce("v_max_f32")
    if CKP == 3: hcheck()
    if PPOS == 3: poll1()
    for m in MR: aw("v_pk_add_f32 %s, %s, %s op_sel_hi:[1,0] neg_lo:[0,1] neg_hi:[0,1]" % (vr(A_(m), 2), vr(A_(m), 2), vr(X_(m), 2)))
    for m in MR: aw("v_pk_mul_f32 %s, %s, s[48:49] op_sel:[0,1]" % (vr(A_(m), 2), vr(A_(m), 2)))
    for m in MR:
        aw("v_exp_f32 v%d, v%d" % (A_(m), A_(m)))
        aw("v_exp_f32 v%d, v%d" % (B_(m), B_(m)))
    pad(1)
    reduce("v_add_f32")
    if CKP == 4: hcheck()
    if PPOS == 4: poll1()
    for m in MR: aw("v_rcp_f32 v%d, v%d" % (X_(m), X_(m)))
    pad(1)
    for m in MR: aw("v_pk_mul_f32 %s, %s, %s op_sel_hi:[1,0]" % (vr(A_(m), 2), vr(A_(m), 2), vr(X_(m), 2)))
    for m in MR: aw("v_cvt_pk_bf16_f32 v%d, v%d, v%d" % (X_(m), A_(m), B_(m)))
    for m in MR:
        aw("v_and_b32 v%d, 0xffff, v%d" % (A_(m), X_(m)))
        aw("v_lshrrev_b32 v%d, 16, v%d" % (B_(m), X_(m)))
    for m in MR:
        aw("v_lshlrev_b32 v%d, v27, v%d" % (A_(m), A_(m)))
        aw("v_lshlrev_b32 v%d, v27, v%d" % (B_(m), B_(m)))
    for m in MR:
        aw("v_cndmask_b32 v%d, v%d, 0, s[40:41]" % (Pf(m), A_(m)))
        aw("v_cndmask_b32 v%d, v%d, 0, s[42:43]" % (Pf(m) + 1, B_(m)))
        aw("v_cndmask_b32 v%d, 0, v%d, s[40:41]" % (Pf(m) + 2, A_(m)))
        aw("v_cndmask_b32 v%d, 0, v%d, s[42:43]" % (Pf(m) + 3, B_(m)))
    pad(max(2, len(fillq)))
    if CKP == 5: hcheck()
    sys.stderr.write("DMA queue left after softmax: %d\n" % len(dq))
    for m in MR:
        a("%s %s, %s, %s, 0" % (MF, vr(Sp(m), 4), vr(VV(0, m - 1), 4), vr(Pf(m), 4)))
        a("%s %s, %s, %s, 0" % (MF, vr(Sc(m), 4), vr(VV(1, m - 1), 4), vr(Pf(m), 4)))
    stamp()

    lg = Cnt()
    for b in range(4):
        for o in wreads2(0, b): a(o); lg.issue((0, b))
    for m in M4:
        for h in range(4):
            a("v_cvt_pk_bf16_f32 v%d, v%d, v%d" % (240 + 4 * m + h, Sp(m) + 2 * h, Sp(m) + 2 * h + 1))
    aw.flush()
    if not BLK:
        a("s_cmp_eq_u32 s60, s46")
        a("s_cbranch_scc1 L_early")
        a("s_mov_b32 s60, s46")
        sv = list(vm.q)
        poll1()
        check_flags(12, 5, "s34", "p", "L_f1")
        for o in xops(0) + xops(1) + xops(2): E(o)
        a("s_waitcnt vmcnt(0)")
        vm.q = sv
        a.label("L_early")
    for m in M4:
        V("os", "buffer_store_dwordx4 %s, v15, s[28:31], s75 offen offset:%d %s" % (vr(240 + 4 * m, 4), 1024 * m, SC))
    srd(a, 16, PX, 0, 2048 * 2048)
    srd(a, 20, PWS, PART_OFF, PART_BYTES)
    srd(a, 24, POUT, 0, 2048 * 2048)
    a("s_add_u32 s73, s72, 32768")
    a("s_lshl_b32 s74, s2, 15"); a("s_lshl_b32 s3, s32, 13"); a("s_add_u32 s74, s74, s3"); a("s_add_u32 s75, s74, 4096")
    a("s_xor_b32 s94, s74, 0x20000"); a("s_add_u32 s95, s94, 4096")
    F2S = P.get("f2shift", 2)
    a("s_lshl2_add_u32 s88, s2, s32"); a("s_lshl_b32 s88, s88, %d" % F2S); a("s_add_u32 s88, s88, %d" % F2); a("s_xor_b32 s89, s88, %d" % (16 << F2S))
    a("s_mov_b32 s92, s35")
    vwait("X0")
    stamp()

    def stage(sg, extra1=(), extra2=(), loopend=None, pre=None, valu=None):
        last = sg == ND + NO - 1
        if P.get("sstamp") and (sg in (2, 4) or sg >= 24) and not (4 < sg < 8): stamp()
        if pre: pre()
        h1 = xops(sg + 3) + list(extra1)
        h2 = wops(sg + 4) + list(extra2)
        r1 = [((sg, b), o) for b in range(4, 8) for o in wreads2(sg, b)]
        r2 = [] if last else [((sg + 1, b), o) for b in range(4) for o in wreads2(sg + 1, b)]
        plan = {}
        for k, x in enumerate(r1): plan.setdefault(k * 12 // 16, []).append(("r",) + x)
        for k, x in enumerate(h1): plan.setdefault(min(15, (5 + k * 11 // max(1, len(h1))) if len(h1) <= 6 else k * 16 // len(h1)), []).append(("o", x))
        for k, x in enumerate(r2): plan.setdefault(16 + k, []).append(("r",) + x)
        for k, x in enumerate(h2): plan.setdefault(16 + k * 16 // len(h2), []).append(("o", x))
        if valu:
            for k, x in enumerate(valu[0]): plan.setdefault(valu[1] + k * (32 - valu[1]) // len(valu[0]), []).append(("o", x))
        g = 0
        for b in range(8):
            w = lg.need((sg, b))
            if w is not None: a("s_waitcnt lgkmcnt(%d)" % w)
            for mf in mfmas2(sg, b):
                a(mf)
                for x in plan.get(g, []):
                    if x[0] == "r": a(x[2]); lg.issue(x[1])
                    else: E(x[1])
                if g == 15 and not last:
                    if sg < FR - 1:
                        vwait("W%d" % (sg + 1), "X%d" % (sg + 1), lg0=True)
                        a("s_barrier")
                        lg.clear()
                if g == 30 and not last and sg >= FR - 1:
                    vwait("X%d" % (sg + 1))
                if g == 31 and loopend:
                    a("s_add_u32 s37, s37, 1")
                    a("s_cmp_lt_u32 s37, 6")
                    a("s_cbranch_scc1 %s" % loopend)
                g += 1
    def oflag():
        vwait("os")
        V("f", "buffer_store_dword v7, v6, s[84:87], s92 offen %s" % SC)
    lt = [wops(sg, True) for sg in LATE] + [[], [], []]
    EPV = 208
    eload = ["v_lshlrev_b32 v4, %d, v15" % (F0S - 2), "s_or_b32 s3, s2, s32", "s_cselect_b32 s3, %d, 0" % OOB] + \
          [("e", "buffer_load_dwordx4 %s, v4, s[84:87], s3 offen offset:%d %s" % (vr(EPV + 4 * k, 4), k << F0S, SC)) for k in range(4)]
    stage(0, extra2=lt[0]), stage(1, extra2=lt[1] + eload)
    stage(2, extra2=[("p", "buffer_load_dword v12, v14, s[84:87], s58 offen %s" % SC)])
    stage(3, pre=oflag)
    sv = list(vm.q)
    check_flags(12, 14, "s58", "p", "L_f1b")
    a("s_or_b32 s3, s2, s32")
    a("s_cbranch_scc1 L_noep")
    a("s_mov_b32 s97, 0")
    a.label("L_ep")
    for k in range(16): a("v_xor_b32 v%d, s96, v%d" % (EPV + k, EPV + k))
    for k in range(1, 16): a("v_or_b32 v%d, v%d, v%d" % (EPV, EPV, EPV + k))
    a("v_cmp_ne_u32 vcc, 0, v%d" % EPV)
    a("s_cbranch_vccz L_epok")
    for k in range(4): a("buffer_load_dwordx4 %s, v4, s[84:87], 0 offen offset:%d %s" % (vr(EPV + 4 * k, 4), k << F0S, SC))
    a("s_add_u32 s97, s97, 1")
    a("s_waitcnt vmcnt(0)")
    a("s_cmp_lt_u32 s97, 0x80000")
    a("s_cbranch_scc1 L_ep")
    a.label("L_epok")
    a("s_mov_b32 s3, %d" % EPOCH)
    a("buffer_store_dword v7, v6, s[84:87], s3 offen %s" % SC)
    a.label("L_noep")
    vm.q = [t for t in sv if t not in ("f", "t", "p", "e", "W31", "W32", "W35")]
    shift = lambda q, d: [t[0] + str(int(t[1:]) + d) for t in q]
    q0 = list(vm.q)
    a("s_mov_b32 s37, 1")
    a(".p2align 6")
    a.label("L_g2")
    for sg in range(4, 8): stage(sg, loopend="L_g2" if sg == 7 else None)
    assert vm.q == shift(q0, 4), (vm.q, q0)
    vm.q = shift(q0, 20)
    lg.q = [(24, t[1]) for t in lg.q]
    V("p", "buffer_load_dword v3, v13, s[84:87], s59 offen %s" % SC)
    stage(24)
    stage(25, pre=lambda: check_flags(3, 13, "s59", "p", "L_f2"))
    PB = P.get("pbf16", 1)
    if PB:
        sends = []
        for k in range(4):
            R = accD(0, 0) + 8 * k
            sends.append([("v_cvt_pk_bf16_f32 v%d, v%d, v%d" % (R + r, R + 2 * r, R + 2 * r + 1)) for r in range(4)] +
                         [("S", "buffer_store_dwordx4 %s, v%d, s[20:23], s74 offen offset:%d %s" % (vr(R, 4), VX, 1024 * k, SC))])
    else:
        sends = [[("S", "buffer_store_dwordx4 %s, v%d, s[20:23], s%d offen offset:%d %s" % (vr(accD(0, 0) + 4 * k, 4), VX, 74 + k // 4, 1024 * (k % 4), SC))] for k in range(8)]
    xres = [("R", "buffer_load_dwordx4 %s, v2, s[16:19], s%d offen offset:%d" % (vr(XRES + 4 * (2 * m + bp), 4), 72 + m, 64 * bp)) for m in range(2) for bp in range(2)]
    parts = [("P%d" % k, "buffer_load_dwordx4 %s, v%d, s[20:23], s%d offen offset:%d %s" % (vr(PART + 4 * k, 4), VX, 94 + k // 4, 1024 * (k % 4), SC)) for k in range(8)]
    if PB: parts = [("P%d" % (2 * k), "buffer_load_dwordx4 %s, v%d, s[20:23], s94 offen offset:%d %s" % (vr(212 + 4 * k, 4), VX, 1024 * k, SC)) for k in range(4)]
    SPL = P.get("send_plan", [2, 1, 1] if PB else [2, 2, 2, 2])
    FLS, PLS = P.get("flag_stage", 31), P.get("poll_stage", 33)
    def take(n):
        r = [o for x in sends[:n] for o in x]; del sends[:n]; return r
    def sflag():
        vwait("S")
        V("f", "buffer_store_dword v7, v6, s[84:87], s88 offen %s" % SC)
    poll3 = [("p", "buffer_load_dword v3, v6, s[84:87], s89 offen %s" % SC)]
    stage(26)
    stage(27, extra2=take(SPL[0]))
    stamp()
    CKS, XRS = P.get("check_stage", 34), P.get("xres_stage", 31)
    def round4(R, T):
        return ["v_cvt_pk_bf16_f32 v%d, v%d, v%d" % (T, R, R + 1), "v_cvt_pk_bf16_f32 v%d, v%d, v%d" % (T + 1, R + 2, R + 3),
                "v_lshlrev_b32 v%d, 16, v%d" % (R, T), "v_and_b32 v%d, s54, v%d" % (R + 1, T),
                "v_lshlrev_b32 v%d, 16, v%d" % (R + 2, T + 1), "v_and_b32 v%d, s54, v%d" % (R + 3, T + 1)]
    xpart = [lambda: vwait("R")]
    for k in range(16):
        xpart += ["v_lshlrev_b32 v%d, 16, v%d" % (accD(0, 0) + 2 * k, XRES + k), "v_and_b32 v%d, s54, v%d" % (accD(0, 0) + 2 * k + 1, XRES + k)]
    NW = P.get("ywoven", 3)
    ypart = []
    for k in range(8):
        Y, T = accD(0, 4) + 4 * k, PART + 4 * k
        ypart.append(lambda k=k: vwait("P%d" % k))
        if PB:
            for r in range(2): ypart += ["v_lshlrev_b32 v%d, 16, v%d" % (T + 2 * r, 212 + 2 * k + r), "v_and_b32 v%d, s54, v%d" % (T + 2 * r + 1, 212 + 2 * k + r)]
        if k < NW: ypart += ["v_add_f32 v%d, v%d, v%d" % (Y + r, Y + r, T + r) for r in range(4)]
        else: ypart += ["v_pk_add_f32 %s, %s, %s" % (vr(Y + h, 2), vr(Y + h, 2), vr(T + h, 2)) for h in (0, 2)]
        ypart += round4(Y, 8)
        if k < NW: ypart += ["v_mul_f32 v%d, s50, v%d" % (T + r, Y + r) for r in range(4)]
        else: ypart += ["v_pk_mul_f32 %s, %s, s[50:51]" % (vr(T + h, 2), vr(Y + h, 2)) for h in (0, 2)]
        ypart += ["v_exp_f32 v%d, v%d" % (T + r, T + r) for r in range(4)]
    nwov = (23 if PB else 19) * NW
    for k in range(8):
        T = PART + 4 * k
        ypart += ["v_pk_add_f32 %s, %s, s[52:53]" % (vr(T + h, 2), vr(T + h, 2)) for h in (0, 2)]
        ypart += ["v_rcp_f32 v%d, v%d" % (T + r, T + r) for r in range(4)]
    for sg in range(28, 36):
        k = 1 + 2 * (sg - 28)
        e1 = take(SPL[k]) if k < len(SPL) else []
        e2 = take(SPL[k + 1]) if k + 1 < len(SPL) else []
        if sg == XRS: e2 = e2 + xres
        if sg == PLS: e2 = e2 + poll3
        pre = sflag if sg == FLS else None
        if sg == CKS:
            pre = lambda: check_flags(3, 6, "s89", "p", "L_f3")
            e1 = e1 + parts
        wv = None
        if sg == 34: wv = (xpart, 0)
        if sg == 35:
            wv = (ypart[:nwov], P.get("ystart", 8)); del ypart[:nwov]
        stage(sg, extra1=e1, extra2=e2, pre=pre, valu=wv)
    assert not sends
    stamp()
    for o in ypart: E(o)
    for m in range(2):
        for bp in range(2):
            D = 32 + 4 * (2 * m + bp)
            XU = accD(0, 0) + 8 * (2 * m + bp)
            for be in range(2):
                b = 2 * bp + be
                Y, T, S = accD(m, 4 + b), PART + (accD(m, b) - accD(0, 0)), accO(m, b)
                for h in (0, 2): a("v_pk_mul_f32 %s, %s, %s" % (vr(Y + h, 2), vr(Y + h, 2), vr(T + h, 2)))
                for o in round4(S, 10) + round4(Y, 8): a(o)
                for h in (0, 2): a("v_pk_mul_f32 %s, %s, %s" % (vr(Y + h, 2), vr(Y + h, 2), vr(S + h, 2)))
                a("v_cvt_pk_bf16_f32 v%d, v%d, v%d" % (D + 2 * be, Y, Y + 1))
                a("v_cvt_pk_bf16_f32 v%d, v%d, v%d" % (D + 2 * be + 1, Y + 2, Y + 3))
            a("s_nop 0")
            a("v_permlane16_swap_b32 v%d, v%d" % (D, D + 2))
            a("v_permlane16_swap_b32 v%d, v%d" % (D + 1, D + 3))
            a("s_nop 0")
            for r in range(4):
                a("v_lshlrev_b32 v%d, 16, v%d" % (48 + 2 * r, D + r))
                a("v_and_b32 v%d, s54, v%d" % (49 + 2 * r, D + r))
            for r in range(4): a("v_pk_add_f32 %s, %s, %s" % (vr(48 + 2 * r, 2), vr(48 + 2 * r, 2), vr(XU + 2 * r, 2)))
            for r in range(4): a("v_cvt_pk_bf16_f32 v%d, v%d, v%d" % (D + r, 48 + 2 * r, 49 + 2 * r))
            a("buffer_store_dwordx4 %s, v2, s[24:27], s%d offen offset:%d %s" % (vr(D, 4), 72 + m, 64 * bp, P.get("outfl", "nt")))
    if probe is not None:
        stamp(); a("s_waitcnt vmcnt(0)"); stamp()
        a.label("L_probe")
        a("s_memrealtime s[4:5]"); a("s_waitcnt lgkmcnt(0)"); a("s_sub_u32 s4, s4, s98"); a("s_cmp_lt_u32 s4, 10000"); a("s_cbranch_scc1 L_probe")
    if prof:
        stamp(); a("s_waitcnt vmcnt(0)"); stamp()
        srd(a, 8, PWS, STAMP_OFF, 65536)
        a("s_lshl_b32 s3, s2, 8")
        a("v_lshl_add_u32 v8, v0, 2, s3")
        a("v_cmp_gt_u32 vcc, 64, v0")
        a("s_and_b64 exec, exec, vcc")
        a("s_cbranch_execz L_end")
        a("buffer_store_dword v31, v8, s[8:11], 0 offen")
    a.label("L_end")
    a("s_endpgm")
    desc(a, name, 256 + NAGPR, 100, 256)
    hdr = open("recurrent_scan__sliding_local_dilated__swiglu_ffn__prompt.s.ref").read().split("; Override launch")[0]
    if P.get("aslist", 1):
        hdr += "; @launch kernel=%s grid=(256,1,1) block=(256,1,1) lds=%d\n" % (name, LDS_BYTES)
    else:
        hdr += "; @launch grid=(256,1,1) block=(256,1,1) lds=%d\n" % LDS_BYTES
    return hdr + a.text()

if __name__ == "__main__":
    P = json.loads(sys.argv[2]) if len(sys.argv) > 2 else {}
    open(sys.argv[1], "w").write(gen(P))
```

```python
import sys, json
sys.path.insert(0, "dev")
from gen_common import *

MAIN = "recurrent_scan__sliding_local_dilated__swiglu_ffn__prompt_kernel"
SLOT = 40960
GATE, UP, QKV = 0, 14336, 28672
EX = 155648
LDS_BYTES = 163840
LNX = EX
R2 = SLOT
F0, F1H, F1O, F2, EPOCH = 0, 32768, 40960, 262144, 65536
NONCE_ADD = 0x6A09E667
OOB = 0x40000000
SC = "sc1"
MF = "v_mfma_f32_16x16x32_bf16"

class Cnt:
    def __init__(self, init=(), cap=15):
        self.q = list(init); self.cap = cap
    def issue(self, tag): self.q.append(tag)
    def need(self, *tags):
        idx = [i for i, t in enumerate(self.q) if t in tags]
        if not idx: return None
        last = max(idx)
        n = len(self.q) - 1 - last
        self.q = self.q[last + 1:]
        return min(n, self.cap)
    def clear(self): self.q = []

def cost(o):
    s = o[1] if isinstance(o, tuple) else o
    if callable(s): return 4
    if s.startswith(("v_exp", "v_rcp", "buffer_")): return 8
    return 4

def gen(P):
    a = Asm()
    name = MAIN
    prof, probe = P.get("prof"), P.get("probe")
    nst = [0]
    def stamp():
        if probe is not None:
            if nst[0] == probe:
                a("s_memrealtime s[98:99]"); a("s_waitcnt lgkmcnt(0)")
            nst[0] += 1
            return
        if not prof: return
        a("%s s[98:99]" % ("s_memtime" if prof == 2 else "s_memrealtime"))
        a("s_waitcnt lgkmcnt(0)")
        a("v_writelane_b32 v31, s98, %d" % nst[0])
        nst[0] += 1
    XSC = P.get("xsc", "sc1")
    ROT2 = P.get("g2_rot", 0)
    vm = Cnt(cap=63)
    def V(tag, s):
        vm.issue(tag)
        if s.endswith("lds") and a.lines[-1].strip().startswith("s_add_u32 m0"): a("s_nop 0")
        a(s)
    def E(o):
        if isinstance(o, tuple): V(*o)
        elif callable(o): o()
        else: a(o)
    def vwait(*tags, lg0=False):
        n = vm.need(*tags)
        parts = ([] if n is None else ["vmcnt(%d)" % n]) + (["lgkmcnt(0)"] if lg0 else [])
        if parts: a("s_waitcnt " + " ".join(parts))
    def check_flags(vreg, voff, soff, tag, label):
        vwait(tag)
        a("v_cmp_ne_u32 vcc, s96, v%d" % vreg)
        a("s_cbranch_vccz %s_ok" % label)
        a("s_mov_b32 s97, 0")
        a.label(label + "_spin")
        a("s_sleep 4")
        a("buffer_load_dword v%d, v%d, s[84:87], %s offen %s" % (vreg, voff, soff, SC))
        a("s_add_u32 s97, s97, 1")
        a("s_waitcnt vmcnt(0)")
        a("s_cmp_gt_u32 s97, 0x80000")
        a("s_cbranch_scc1 %s_ok" % label)
        a("v_cmp_ne_u32 vcc, s96, v%d" % vreg)
        a("s_cbranch_vccnz %s_spin" % label)
        a.label(label + "_ok")

    class Weave:
        def __init__(self, n, q, skip=0): self.n, self.c, self.q = n, -skip, q
        def __call__(self, t):
            a(t)
            if t.startswith("v_") and not t.startswith("v_mfma"):
                self.c += 1
                if self.c > 0 and self.c % self.n == 0: self.one()
        def one(self):
            while self.q:
                o = self.q.pop(0); E(o)
                if isinstance(o, tuple): break
        def flush(self):
            while self.q: self.one()

    accGU = lambda p, gu, m: 32 + ((p * 2 + gu) * 4 + m) * 4
    accQ = lambda s, m: (s * 4 + m) * 4
    HACC = 96
    XB = lambda buf, m, kh: (100 + buf * 40 + (m * 2 + kh) * 4) if buf < 2 else ((224 + (m * 2 + kh) * 4) if m < 4 else 172 + kh * 4)
    WR = lambda slot, kh: 180 + slot * 8 + kh * 4
    HW = lambda kh: 212 + kh * 4
    PARK = 220
    NAGPR = 256
    PX, PQKV, PWO, PG, PU, PD, POUT, PDBG, PWS = 64, 66, 68, 72, 74, 76, 78, 80, 82

    a.raw('.amdgcn_target "amdgcn-amd-amdhsa--gfx950"')
    kernel_header(a, name)
    a("s_cmp_ge_u32 s2, 256")
    a("s_cbranch_scc1 L_end")
    a("s_load_dwordx16 s[64:79], s[0:1], 0")
    a("s_load_dwordx4 s[80:83], s[0:1], 64")
    a("s_getpc_b64 s[4:5]")
    a.label("L_pc")
    a("v_and_b32 v17, 63, v0")
    a("s_mov_b32 s6, L_end-L_pc")
    a("s_mov_b32 s7, 0x20000")
    a("v_lshlrev_b32 v1, 7, v17")
    a("s_bfe_u32 s3, s2, 0x30003")
    a("s_lshl_b32 s3, s3, 13")
    V("c", "buffer_load_dword v29, v1, s[4:7], s3 offen")
    if prof: a("v_mov_b32 v31, 0")
    stamp()
    a("v_lshrrev_b32 v16, 6, v0")
    a("v_lshrrev_b32 v18, 3, v17")
    a("v_and_b32 v19, 7, v17")
    a("v_readfirstlane_b32 s32, v16")
    a("v_lshlrev_b32 v20, 11, v18")
    a("v_lshl_add_u32 v20, v16, 9, v20")
    a("v_lshl_add_u32 v20, v19, 4, v20")
    a("s_and_b32 s34, s2, 7")
    a("s_bfe_u32 s35, s2, 0x20003")
    a("s_lshl2_add_u32 s34, s34, s35")
    a("s_lshr_b32 s33, s2, 5")
    a("s_lshl_b32 s36, s33, 5")
    a("s_add_u32 s36, s36, s34")
    a("s_lshl_b32 s37, s36, 14")
    a("v_mov_b32 v6, 0")
    a("s_mov_b32 s50, %d" % (2048 * 2048))
    a("s_mov_b32 s51, 0x20000")
    a("s_waitcnt lgkmcnt(0)")
    a("s_mov_b64 s[48:49], s[%d:%d]" % (PX, PX + 1))
    LX = 32
    for u in range(4):
        V("x", "buffer_load_dwordx4 %s, v20, s[48:51], s37 offen offset:%d %s" % (vr(LX + 4 * u, 4), 128 * u, P.get("xfl", "")))
    srd(a, 84, PWS, FLAG_OFF, FLAG_BYTES)
    a("s_mov_b32 s3, %d" % EPOCH)
    V("ep", "buffer_load_dword v7, v6, s[84:87], s3 offen")
    stamp()
    if P.get("xrot", 1): a("s_and_b32 s80, s2, 7"); a("s_lshl_b32 s80, s80, 1")
    else: a("s_mov_b32 s80, 0")
    a("s_mov_b32 s81, s80")
    a("s_and_b32 s57, s34, 1")
    a("s_lshr_b32 s58, s34, 1")
    a("s_mul_i32 s58, s58, 448")
    a("s_cmp_eq_u32 s32, 1")
    a("s_cselect_b64 s[88:89], s[%d:%d], s[%d:%d]" % (PU, PU + 1, PG, PG + 1))
    a("s_cmp_eq_u32 s32, 3")
    a("s_cbranch_scc1 L_t3")
    a("s_mul_i32 s3, s57, 208")
    a("s_add_u32 s3, s3, s58")
    a("s_movk_i32 s92, 7168")
    a("s_movk_i32 s93, 118")
    a("s_cmp_eq_u32 s32, 2")
    a("s_cbranch_scc0 L_t01")
    a("s_mov_b64 s[88:89], s[%d:%d]" % (PQKV, PQKV + 1))
    a("s_lshl_b32 s3, s34, 6")
    a("s_movk_i32 s92, 6144")
    a("s_movk_i32 s93, 2048")
    a.label("L_t01")
    a("s_lshl_b32 s90, s92, 10")
    a("v_lshrrev_b32 v21, 2, v17")
    a("v_and_b32 v22, 3, v17")
    a("v_mul_u32_u24 v30, s92, v21")
    a("v_mul_u32_u24 v23, s93, v22")
    a("v_and_b32 v23, -4, v23")
    a("v_add3_u32 v30, v30, v23, s3")
    a("v_cmp_eq_u32 vcc, 3, v22")
    a("v_mov_b32 v23, %d" % OOB)
    a("s_lshl2_add_u32 s94, s80, s33")
    a("s_lshl_b32 s94, s94, 4")
    a("v_cndmask_b32 v30, v30, v23, vcc")
    a("v_mov_b32 v25, %s" % ("v30" if not P.get("now1") else str(OOB)))
    if P.get("noearly"): a("v_mov_b32 v30, %d" % OOB)
    a("s_mul_i32 s94, s94, s92")
    a("s_lshl_b32 s95, s92, 7")
    a("s_branch L_td")
    a.label("L_t3")
    a("s_mov_b64 s[88:89], s[%d:%d]" % (PD, PD + 1))
    a("v_lshlrev_b32 v30, 7, v17")
    a("s_bfe_u32 s3, s2, 0x20001")
    a("s_add_u32 s3, s3, 1")
    a("s_mul_i32 s90, s3, %d" % (896 * 2048))
    a("s_lshr_b32 s94, s2, 3")
    a("s_lshl_b32 s94, s94, 13")
    a("s_add_u32 s94, s94, s90")
    a("s_sub_u32 s94, s94, %d" % (128 * 2048))
    a("s_mov_b32 s95, 0")
    a("v_mov_b32 v25, v30")
    a("v_mov_b32 v30, %d" % OOB)
    if P.get("now2"): a("v_mov_b32 v25, %d" % OOB)
    a.label("L_td")
    a("s_mov_b32 s91, 0x20000")
    for k in range(P.get("t_early", 2)):
        V("t", "buffer_load_dword v29, v30, s[88:91], s94 offen %s" % P.get("t0fl", ""))
        for o in ["s_add_u32 s94, s94, s95", "s_cmp_ge_u32 s94, s90", "s_cselect_b32 s3, s90, 0", "s_sub_u32 s94, s94, s3"]: a(o)
    a("v_lshlrev_b32 v21, 17, v16")
    a("v_lshrrev_b32 v22, 2, v19")
    a("v_lshl_add_u32 v21, v22, 10, v21")
    a("v_and_b32 v22, 3, v19")
    a("v_lshl_add_u32 v21, v22, 8, v21")
    a("v_lshl_add_u32 v28, v18, 4, v21")
    a("s_lshl_b32 s60, s33, 19")
    a("s_lshr_b32 s51, s34, 1")
    a("s_lshl_b32 s51, s51, 11")
    a("s_add_u32 s50, s60, s51")
    a("s_lshl_b32 s51, s57, 7")
    a("s_add_u32 s50, s50, s51")
    a("s_add_u32 s51, s50, 32768")
    a("s_add_u32 s52, s50, 65536")
    a("s_add_u32 s53, s50, 98304")
    a("v_lshlrev_b32 v26, 5, v18")
    a("v_add_u32 v26, %d, v26" % LNX)
    a("v_lshl_add_u32 v27, v16, 3, v26")
    a("s_mov_b64 s[24:25], s[%d:%d]" % (PWS, PWS + 1))
    a("s_add_u32 s26, s60, 0x80000")
    a("s_mov_b32 s27, 0x20000")
    a("s_mov_b32 s54, 0xffff0000")
    F0S = P.get("f0shift", 7)
    a("s_lshl_b32 s92, s36, %d" % F0S)
    a("s_lshl2_add_u32 s92, s32, s92")
    a("s_mov_b32 s3, 0x3f803f80")
    a("v_mov_b32 v116, s3")
    a("s_max_u32 s61, s33, 1")
    a("s_sub_u32 s61, s61, 1")
    a("s_lshl_b32 s59, s61, %d" % (5 + F0S))
    a("s_add_u32 s59, s59, %d" % (30 << F0S))
    a("s_lshl_b32 s3, s33, %d" % (5 + F0S))
    a("s_lshl_b32 s48, s32, %d" % (3 + F0S))
    a("s_add_u32 s3, s3, s48")
    a("v_and_b32 v21, 3, v17")
    a("v_lshlrev_b32 v21, 2, v21")
    a("v_lshrrev_b32 v20, 2, v17")
    a("v_lshl_add_u32 v20, v20, %d, v21" % F0S)
    a("v_and_b32 v21, %d, v20" % ((1 << F0S) + 12))
    a("v_add_u32 v20, s3, v20")
    a("v_add_u32 v21, s59, v21")
    a("v_cmp_gt_u32 vcc, 32, v17")
    a("v_mov_b32 v22, %d" % OOB)
    a("v_lshlrev_b32 v15, 4, v17")
    a("v_cndmask_b32 v254, v21, v20, vcc")
    a("v_cndmask_b32 v121, v22, v25, vcc")
    a("v_cndmask_b32 v122, v25, v22, vcc")

    def g1_setup_w():
        def krow(dst, rho, t1):
            a("v_and_b32 v%d, 35, v%d" % (dst, rho))
            a("v_bfe_u32 v%d, v%d, 2, 2" % (t1, rho))
            a("v_lshl_or_b32 v%d, v%d, 3, v%d" % (dst, t1, dst))
            a("v_bfe_u32 v%d, v%d, 4, 1" % (t1, rho))
            a("v_lshl_or_b32 v%d, v%d, 2, v%d" % (dst, t1, dst))
        a("s_mul_i32 s56, s32, 192")
        a("s_lshl_b32 s59, s34, 6")
        a("s_movk_i32 s40, 4682")
        a("s_movk_i32 s41, 5462")
        a("s_movk_i32 s62, 7168")
        a("s_movk_i32 s63, 6144")
        a("s_mul_i32 s48, s57, 14")
        def gu_off(dst, imm):
            a("v_mul_u32_u24 v21, s40, v20")
            a("v_lshrrev_b32 v21, 16, v21")
            a("v_mul_u32_u24 v22, 14, v21")
            a("v_sub_u32 v22, v20, v22")
            a("v_add_u32 v22, s48, v22")
            a("v_lshrrev_b32 v23, 1, v22")
            a("v_xor_b32 v23, v23, v22")
            a("v_and_b32 v23, 1, v23")
            a("v_mul_u32_u24 v23, 3, v23")
            a("v_xor_b32 v22, v22, v23")
            krow(24, 21, 23)
            a("s_sub_u32 s3, s58, %d" % imm)
            a("v_lshl_add_u32 v22, v22, 4, s3")
            a("v_mad_u32_u24 v%d, v24, s62, v22" % dst)
        def qkv_off(dst, imm):
            a("v_mul_u32_u24 v21, s41, v20")
            a("v_lshrrev_b32 v21, 16, v21")
            a("v_mul_u32_u24 v22, 12, v21")
            a("v_sub_u32 v22, v20, v22")
            a("v_lshrrev_b32 v23, 1, v21")
            a("v_and_b32 v23, 2, v23")
            a("v_xor_b32 v22, v22, v23")
            a("v_lshrrev_b32 v25, 2, v22")
            a("v_and_b32 v22, 3, v22")
            a("s_sub_u32 s3, s59, %d" % imm)
            a("v_lshl_add_u32 v22, v22, 4, s3")
            a("v_lshl_add_u32 v22, v25, 11, v22")
            krow(24, 21, 23)
            a("v_mad_u32_u24 v%d, v24, s63, v22" % dst)
        for q in range(3):
            a("s_add_u32 s3, s56, %d" % (64 * q))
            a("v_add_u32 v20, s3, v17")
            gu_off(8 + q, 1024 * q)
            qkv_off(11 + q, 1024 * q)
        a("s_and_b32 s35, s32, 1")
        a("s_lshl_b32 s3, s35, 6")
        a("s_add_u32 s3, s3, 768")
        a("v_add_u32 v20, s3, v17")
        gu_off(14, 0)
        a("s_mul_i32 s43, s32, 3072")
        a("s_add_u32 s44, s43, %d" % UP)
        a("s_add_u32 s45, s43, %d" % QKV)
        a("s_lshr_b32 s46, s32, 1")
        a("s_mul_i32 s46, s46, %d" % UP)
        a("s_lshl_b32 s3, s35, 10")
        a("s_add_u32 s46, s46, s3")
        a("s_add_u32 s46, s46, 12288")
        srd(a, 8, PG, 0, 1024 * 7168)
        srd(a, 12, PU, 0, 1024 * 7168)
        srd(a, 16, PQKV, 0, 1024 * 6144)
        a("s_cmp_lt_u32 s32, 2")
        a("s_cselect_b64 s[20:21], s[%d:%d], s[%d:%d]" % (PG, PG + 1, PU, PU + 1))
        a("s_mov_b32 s22, %d" % (1024 * 7168))
        a("s_mov_b32 s23, 0x20000")
    def g1_setup_r():
        a("v_lshrrev_b32 v18, 2, v17")
        a("v_and_b32 v19, 3, v17")
        a("v_lshlrev_b32 v19, 3, v19")
        a("s_movk_i32 s3, 224")
        a("v_and_b32 v20, 16, v15")
        a("v_and_b32 v21, 2, v17")
        a("v_lshl_add_u32 v20, v21, 2, v20")
        a("v_mad_u32_u24 v1, v18, s3, v20")
        a("s_movk_i32 s3, 192")
        a("v_mad_u32_u24 v2, v18, s3, v19")
        a("v_add_u32 v2, %d, v2" % QKV)
        a("v_and_b32 v19, 16, v17")
        a("v_lshlrev_b32 v19, 1, v19")
        a("v_xor_b32 v20, 32, v19")
        a("v_add_u32 v3, v2, v20")
        a("v_add_u32 v2, v2, v19")
        a("s_cmp_eq_u32 s35, 1")
        a("s_cselect_b64 vcc, -1, 0")
        a("v_cndmask_b32 v4, v2, v3, vcc")
        a("s_lshr_b32 s3, s32, 1")
        a("s_lshl_b32 s3, s3, 6")
        a("s_add_u32 s3, s3, 64")
        a("v_add_u32 v4, s3, v4")
        a("s_mov_b32 s62, %d" % SLOT)
        a("s_mov_b32 s63, %d" % ((-2 * SLOT) & 0xffffffff))
        srd(a, 28, PWS, ACT_OFF, ACT_BYTES)
    def tau_ops():
        return ["s_add_u32 s81, s36, s80", "s_and_b32 s81, s81, 15", "s_mul_i32 s38, s81, 458752", "s_mul_i32 s39, s81, 393216"]
    def xoff_ops():
        return ["s_lshl_b32 s40, s81, 15", "s_add_u32 s42, s40, s61", "s_add_u32 s40, s40, s60", "s_add_u32 s41, s40, 4096"]
    def wdma_ops(tag):
        o = []
        for (mreg, sd, vb, so) in ((43, 8, 8, 38), (44, 12, 8, 38), (45, 16, 11, 39)):
            o.append("s_add_u32 m0, s37, s%d" % mreg)
            for q in range(3):
                o.append((tag, "buffer_load_dwordx4 v%d, s[%d:%d], s%d offen offset:%d lds" % (vb + q, sd, sd + 3, so, 1024 * q)))
        o.append("s_add_u32 m0, s37, s46")
        o.append((tag, "buffer_load_dwordx4 v14, s[20:23], s38 offen lds"))
        return o
    def xld_ops(buf, tag):
        o = []
        for f in range(8):
            o.append((tag, "buffer_load_dwordx4 %s, v15, s[24:27], s%d offen offset:%d %s" % (ar(XB(buf, f // 2, f % 2), 4), 40 + f // 4, 1024 * (f % 4), XSC)))
        for kh in range(2):
            o.append((tag, "buffer_load_dwordx4 %s, v15, s[24:27], s42 offen offset:%d %s" % (ar(XB(buf, 4, kh), 4), 1024 * kh, XSC)))
        return o

    g1_setup_w()
    a("s_mov_b32 s36, 0"); a("s_mov_b32 s37, 0")
    W0POS = P.get("w0pos", 1)
    al = Weave(P.get("w0_every", 14), tau_ops() + wdma_ops("W0") if W0POS == 2 else [], P.get("w0_skip", 0))

    vwait("x")
    stamp()
    X = 48
    for r in range(16):
        c1 = "0" if r < 2 else "v%d" % (112 + 2 * (r % 2))
        c2 = "0" if r < 2 else "v%d" % (113 + 2 * (r % 2))
        al("v_dot2_f32_bf16 v%d, v%d, v116, %s" % (112 + 2 * (r % 2), LX + r, c1))
        al("v_dot2_f32_bf16 v%d, v%d, v%d, %s" % (113 + 2 * (r % 2), LX + r, LX + r, c2))
    al("s_nop 2")
    al("v_pk_add_f32 v[112:113], v[112:113], v[114:115]")
    for m in ("quad_perm:[1,0,3,2]", "quad_perm:[2,3,0,1]", "row_half_mirror"):
        al("s_nop 0" if m != "quad_perm:[1,0,3,2]" else "s_nop 1")
        for v in (112, 113):
            al("v_add_f32_dpp v%d, v%d, v%d %s row_mask:0xf bank_mask:0xf" % (v, v, v, m))
    al("ds_write_b64 v27, v[112:113]")
    def unpack(r):
        al("v_lshlrev_b32 v%d, 16, v%d" % (X + 2 * r, LX + r))
        al("v_and_b32 v%d, s54, v%d" % (X + 2 * r + 1, LX + r))
    for r in range(8): unpack(r)
    al("s_waitcnt lgkmcnt(0)")
    al("s_barrier")
    al("ds_read_b128 v[80:83], v26")
    al("ds_read_b128 v[84:87], v26 offset:16")
    for r in range(8, 16): unpack(r)
    al("s_waitcnt lgkmcnt(0)")
    al("v_pk_add_f32 v[80:81], v[80:81], v[82:83]")
    al("v_pk_add_f32 v[84:85], v[84:85], v[86:87]")
    al("v_pk_add_f32 v[80:81], v[80:81], v[84:85]")
    al("v_mul_f32 v88, 0x3a800000, v80")
    al("v_mul_f32 v81, 0x3a800000, v81")
    al("v_fma_f32 v81, -v88, v88, v81")
    al("v_max_f32 v81, 0, v81")
    al("v_cvt_pk_bf16_f32 v88, v88, v81")
    al("v_and_b32 v81, s54, v88")
    al("v_lshlrev_b32 v88, 16, v88")
    al("v_add_f32 v81, 0x3727c5ac, v81")
    al("v_cvt_pk_bf16_f32 v81, v81, v81")
    al("v_and_b32 v81, s54, v81")
    al("v_sqrt_f32 v81, v81")
    al("v_sub_f32 v88, 0, v88")
    al("v_cvt_pk_bf16_f32 v81, v81, v81")
    al("v_and_b32 v81, s54, v81")
    al("v_rcp_f32 v90, v81")
    al("v_mov_b32 v89, v88")
    al("v_mov_b32 v91, v90")
    for u in range(4):
        R = range(4 * u, 4 * u + 4)
        for r in R: al("v_pk_add_f32 %s, %s, v[88:89]" % (vr(X + 2 * r, 2), vr(X + 2 * r, 2)))
        for r in R: al("v_cvt_pk_bf16_f32 v%d, v%d, v%d" % (LX + r, X + 2 * r, X + 2 * r + 1))
        for r in R: unpack(r)
        for r in R: al("v_pk_mul_f32 %s, %s, v[90:91]" % (vr(X + 2 * r, 2), vr(X + 2 * r, 2)))
        for r in R: al("v_cvt_pk_bf16_f32 v%d, v%d, v%d" % (LX + r, X + 2 * r, X + 2 * r + 1))
        V("xs", "buffer_store_dwordx4 %s, v28, s[24:27], s%d offen %s" % (vr(LX + 4 * u, 4), 50 + u, SC))
    al.flush()
    stamp()

    if P.get("t_early", 2) < 2 and P.get("t1pos", 0) == 0:
        V("t", "buffer_load_dword v29, v30, s[88:91], s94 offen %s" % P.get("t1fl", ""))
        for o in ["s_add_u32 s94, s94, s95", "s_cmp_ge_u32 s94, s90", "s_cselect_b32 s3, s90, 0", "s_sub_u32 s94, s94, s3"]: a(o)
    a("s_lshl_b32 s3, s32, 13")
    a("s_add_u32 s60, s60, s3")
    a("s_lshl_b32 s61, s61, 19")
    a("s_add_u32 s61, s61, %d" % (3 * 8192 + 3 * 2048))
    for o in xoff_ops(): E(o)
    a("v_mov_b32 v27, v121"); a("v_mov_b32 v28, v122")
    g1_setup_r()
    av = Weave(P.get("w0_every", 5), tau_ops() + wdma_ops("W0") if W0POS == 0 else [])
    SP, SMT, SNT = 66, 67, 70
    av("s_bfe_u32 s%d, s2, 0x10001" % SP)
    av("s_and_b32 s%d, s2, 1" % SMT); av("s_bfe_u32 s3, s2, 0x20003"); av("s_lshl2_add_u32 s%d, s%d, s3" % (SMT, SMT))
    av("s_lshr_b32 s%d, s2, 5" % SNT)
    park = {}
    def parkv(key, v):
        park[key] = PARK + len(park)
        assert park[key] < 224
        av("v_accvgpr_write_b32 a%d, v%d" % (park[key], v))
    unp = lambda key, v: "v_accvgpr_read_b32 v%d, a%d" % (v, park[key])
    av("s_lshl_b32 s48, s%d, 2" % SP); av("s_xor_b32 s48, s48, 4"); av("s_lshl_b32 s49, s%d, 8" % SNT); av("s_lshl_b32 s50, s32, 15"); av("s_add_u32 s50, s50, s49")
    av("v_lshrrev_b32 v20, 4, v17"); av("v_bfe_u32 v21, v17, 1, 3"); av("v_xor_b32 v21, s48, v21"); av("v_xor_b32 v21, v21, v20")
    av("v_and_b32 v22, 16, v15"); av("v_lshl_add_u32 v23, v20, 11, v22")
    av("v_lshl_add_u32 v16, v21, 5, v23"); av("v_add_u32 v16, s50, v16")
    av("s_lshl_b32 s51, s32, 16"); av("s_add_u32 s51, s51, s49"); av("s_lshl_b32 s3, s%d, 7" % SP); av("s_add_u32 s51, s51, s3")
    av("v_bfe_u32 v21, v17, 1, 2"); av("v_xor_b32 v21, v21, v20"); av("v_lshrrev_b32 v23, 3, v17")
    av("v_lshl_add_u32 v22, v23, 11, v22"); av("v_lshl_add_u32 v22, v21, 5, v22"); av("v_add_u32 v22, s51, v22")
    av("v_mov_b32 v30, v22")
    av("v_lshrrev_b32 v20, 2, v17"); av("v_and_b32 v21, 3, v17"); av("v_lshlrev_b32 v21, 3, v21"); av("v_add_u32 v21, %d, v21" % R2)
    av("v_lshl_add_u32 v22, v20, 8, v21"); av("v_and_b32 v23, 7, v20"); av("v_lshl_add_u32 v22, v23, 5, v22")
    parkv("vw", 22)
    av("v_lshl_add_u32 v22, v20, 7, v21"); av("v_bfe_u32 v23, v17, 3, 2"); av("v_lshl_add_u32 v22, v23, 5, v22")
    parkv("vwo", 22)
    av("v_and_b32 v20, 15, v17"); av("v_lshlrev_b32 v22, 11, v20"); av("v_bfe_u32 v23, v17, 4, 1"); av("v_lshl_add_u32 v22, v23, 5, v22")
    av("v_lshrrev_b32 v21, 5, v17"); av("v_lshl_add_u32 v22, v21, 4, v22")
    parkv("vout", 22)
    av("v_lshlrev_b32 v22, 10, v23"); av("v_lshl_add_u32 v22, v21, 8, v22"); av("v_lshl_add_u32 v26, v20, 4, v22")
    av("v_bfe_u32 v22, v17, 2, 2"); av("v_lshlrev_b32 v22, 8, v22"); av("v_lshrrev_b32 v23, 4, v17"); av("v_lshl_add_u32 v22, v23, 6, v22")
    av("v_and_b32 v23, 3, v17"); av("v_lshl_add_u32 v22, v23, 1, v22"); av("v_add_u32 v22, 1024, v22")
    a("s_cmp_ge_u32 s32, 2"); a("s_cselect_b64 vcc, -1, 0"); a("s_cselect_b32 s71, 16, 2")
    av("v_cndmask_b32 v22, v15, v22, vcc")
    av("s_lshl_b32 s3, s35, 3"); av("s_add_u32 s3, s3, %d" % EX); av("v_add_u32 v22, s3, v22")
    parkv("vhx", 22)
    av.flush()
    a("v_lshlrev_b32 v24, 8, v17"); a("v_add_u32 v25, 16384, v24")
    a("s_lshr_b32 s7, s2, 3"); a("s_lshl1_add_u32 s7, s7, s32"); a("s_lshl_b32 s7, s7, 15")
    a("s_lshl_b32 s52, s%d, 7" % SP); a("s_add_u32 s7, s7, s52")
    a("s_mov_b64 s[4:5], s[%d:%d]" % (PWO, PWO + 1)); a("s_mov_b32 s6, %d" % (1024 * 2048 if not P.get("nowot") else 0))
    a("s_cmp_lt_u32 s32, 2"); a("s_cbranch_scc1 L_alt")
    a("v_lshlrev_b32 v24, 7, v17"); a("v_add_u32 v25, 8192, v24")
    a("s_lshl_b32 s7, s2, 14")
    a("s_mov_b64 s[4:5], s[%d:%d]" % (PX, PX + 1)); a("s_mov_b32 s6, %d" % (2048 * 2048 if not P.get("noxt") else 0))
    a.label("L_alt")
    a("s_cmp_eq_u32 s32, 3"); a("s_cselect_b32 s47, 99, %d" % (13 if not P.get("ab_noalt") else 64))
    a("v_xor_b32 v17, 0x80, v16"); a("v_add_u32 v17, %d, v17" % 7168)
    a("v_add_u32 v18, %d, v16" % 14336); a("v_add_u32 v19, %d, v17" % 14336)
    vwait("xs")
    a("v_add_u32 v7, 0x%x, v7" % NONCE_ADD)
    V("f", "buffer_store_dword v7, v6, s[84:87], s92 offen %s" % SC)
    a("v_readfirstlane_b32 s96, v7")
    stamp()
    p0 = ("p", "buffer_load_dword v255, v254, s[84:87], 0 offen %s" % SC)
    q1 = (tau_ops() + wdma_ops("W0") if W0POS == 1 else []) + ["s_mov_b32 s36, 1", "s_mov_b32 s37, %d" % SLOT] + tau_ops() + wdma_ops("W")
    W1POS = P.get("w1pos", 0)
    PB4 = P.get("poll_before", 0)
    if PB4:
        idx = [k for k, o in enumerate(q1) if isinstance(o, tuple)][-PB4]
        if q1[idx - 1].startswith("s_add_u32 m0") if isinstance(q1[idx - 1], str) else False: idx -= 1
        q1.insert(idx, p0)
    az = Weave(P.get("w1_every", 5), q1 if W1POS == 0 else [])
    for r in range(32, 254, 2): az("v_mov_b64 %s, 0" % vr(r, 2))
    az.flush()
    if not PB4: E(p0)
    a("s_lshl_b32 s72, s%d, 19" % SMT); a("s_add_u32 s72, s72, s51"); a("s_bfe_u32 s3, s2, 0x10002"); a("s_add_u32 s3, s3, s32")
    a("s_lshl_b32 s3, s3, 16"); a("s_add_u32 s72, s72, s3")
    a("s_lshl_b32 s56, s32, 12"); a("s_add_u32 s56, s56, %d" % R2)
    a("s_lshl_b32 s48, s33, 1"); a("s_lshr_b32 s3, s32, 1"); a("s_add_u32 s48, s48, s3"); a("s_mul_i32 s48, s48, %d" % ACT_MT)
    a("s_lshl_b32 s3, s35, 12"); a("s_add_u32 s48, s48, s3")
    a("s_mul_i32 s73, s34, 7"); a("s_lshr_b32 s73, s73, 1"); a("s_lshl_b32 s73, s73, 13"); a("s_add_u32 s73, s73, s48")
    a("s_lshl_b32 s3, s57, 9"); a("s_add_u32 s73, s73, s3")
    a("s_mul_i32 s74, s57, %d" % (8192 - 1024)); a("s_add_u32 s74, s74, 512"); a("s_add_u32 s74, s74, s73")
    a("s_add_u32 s75, s34, 112"); a("s_lshl_b32 s75, s75, 13"); a("s_add_u32 s75, s75, s48")
    a("s_lshl2_add_u32 s92, s33, s32"); a("s_lshl_b32 s92, s92, 7"); a("s_lshl2_add_u32 s92, s34, s92")
    FP = P.get("fpad", 1)
    a("s_add_u32 s35, s92, %d" % F1O)
    if FP: a("s_lshl_b32 s92, s92, 5")
    a("s_add_u32 s92, s92, %d" % (F1H if not FP else 131072))
    a("s_lshl2_add_u32 s58, s%d, s32" % SMT); a("s_lshl_b32 s58, s58, 7")
    a("s_add_u32 s59, s58, %d" % F1O)
    if FP: a("s_lshl_b32 s58, s58, 5")
    a("s_add_u32 s58, s58, %d" % (F1H if not FP else 131072))
    a("s_or_b32 s33, s33, s32")
    a("s_lshr_b32 s3, s32, 1"); a("s_lshl1_add_u32 s57, s%d, s3" % SMT); a("s_mul_i32 s57, s57, %d" % ACT_MT)
    a("s_and_b32 s3, s32, 1"); a("s_lshl_b32 s3, s3, 12"); a("s_add_u32 s57, s57, s3")
    a("s_mov_b32 s50, 0xbfb8aa3b"); a("s_mov_b32 s51, 0xbfb8aa3b"); a("s_mov_b32 s52, 1.0"); a("s_mov_b32 s53, 1.0")

    stamp()
    check_flags(255, 254, "0", "p", "L_f0")
    stamp()
    for o in xld_ops(0, "X0"): E(o)
    xlast = ["s_add_u32 s40, s80, 15", "s_and_b32 s40, s40, 15", "s_lshl_b32 s40, s40, 15", "s_add_u32 s40, s40, s60", "s_add_u32 s41, s40, 4096"] + xld_ops(2, "XL")[:8]
    if P.get("xl_pos", 1) == 0:
        for o in xlast: E(o)
    if W1POS == 1:
        for o in q1: E(o)
    a("v_mov_b64 v[254:255], 0")
    for r in range(0, 100, 4): a("%s %s, v[48:51], v[48:51], 0" % (MF, ar(r, 4)))

    blocks = []
    for p in range(7): blocks += [("gu", p, 0), ("gu", p, 1)]
    blocks += [("q", s) for s in range(6)]
    def wreads(b, dst, ab=0):
        o = []
        for kh in range(2):
            for s2 in range(2):
                d = ar(dst(kh) + 2 * s2, 2)
                if b[0] == "gu":
                    o.append("ds_read_b64_tr_b16 %s, v%d offset:%d" % (d, ab + 1, b[2] * UP + (32 * kh + 16 * s2) * 224 + 32 * b[1]))
                elif b[0] == "q":
                    o.append("ds_read_b64_tr_b16 %s, v%d offset:%d" % (d, ab + 2 + b[1] % 2, (32 * kh + 16 * s2) * 192 + 64 * (b[1] // 2)))
                else:
                    o.append("ds_read_b64_tr_b16 %s, v%d offset:%d" % (d, ab + 4, (32 * kh + 16 * s2) * 192))
        return o
    def mfmas(b, ring, buf):
        o = []
        for m in range(4):
            for kh in range(2):
                w, x = ar(WR(ring, kh), 4), ar(XB(buf, m, kh), 4)
                c = vr(accGU(b[1], b[2], m), 4) if b[0] == "gu" else ar(accQ(b[1], m), 4)
                if b[0] == "q" and b[1] >= 4: w, x = x, w
                o.append("%s %s, %s, %s, %s" % (MF, c, w, x, c))
        return o
    def halo_mf(buf):
        return ["%s %s, %s, %s, %s" % (MF, ar(HACC, 4), ar(HW(kh), 4), ar(XB(buf, 4, kh), 4), ar(HACC, 4)) for kh in range(2)]

    vwait("X0")
    a("s_barrier")
    stamp()
    for bi in range(3):
        for o in wreads(blocks[bi], lambda kh: WR(bi % 4, kh)): a(o)
    if P.get("xl_pos", 1) == 1:
        for o in xlast: E(o)
    if P.get("xl_pos", 1) == 2:
        for o in ["s_add_u32 s48, s80, 15", "s_and_b32 s48, s48, 15", "s_lshl_b32 s48, s48, 15", "s_add_u32 s48, s48, s60"]: a(o)
    if P.get("t_early", 2) < 2 and P.get("t1pos", 0) == 1:
        V("t", "buffer_load_dword v29, v27, s[88:91], s94 offen %s" % P.get("t1fl", ""))
        V("t", "buffer_load_dword v29, v28, s[88:91], s94 offen %s" % P.get("t1fl", ""))
        for o in ["s_add_u32 s94, s94, s95", "s_cmp_ge_u32 s94, s90", "s_cselect_b32 s3, s90, 0", "s_sub_u32 s94, s94, s3"]: a(o)
    a("s_cmp_eq_u32 s32, 3"); a("s_cselect_b32 s95, %d, s95" % ((-128 * 2048) & 0xffffffff))

    HRB, HMB = 9, 13
    def step(buf, misc, loop=None):
        lg = Cnt([0] * 4 + [1] * 4 + [2] * 4)
        SPC, V0 = P.get("vspace", 5.4), P.get("vstart", 5)
        place = {}
        nv = 0
        tgt = []
        for o in misc:
            if isinstance(o, tuple):
                g = int(V0 + nv * SPC) | 1
                if g // 8 >= HRB: g += 8
                tgt.append(g)
                if P.get("vweight", 0): nv += (1.55 if "s[16:19]" in o[1] else (1.1 if o[1].endswith("lds") else 0.77))
                else: nv += (P.get("xl_w", 0.4) if "s49" in o[1] else 1)
            else: tgt.append(None)
        nxt = None
        for k in range(len(misc) - 1, -1, -1):
            if tgt[k] is not None: nxt = tgt[k]
            elif nxt is not None:
                nxt -= 1; tgt[k] = nxt
        last = max(t for t in tgt if t is not None)
        for k in range(len(misc)):
            if tgt[k] is None:
                last += 1; tgt[k] = last
        for k in range(1, len(misc)):
            if tgt[k] < tgt[k - 1]: tgt[k] = tgt[k - 1]
        assert min(tgt) >= 0 and max(tgt) < 17 * 8, (min(tgt), max(tgt))
        for k, o in enumerate(misc): place.setdefault((tgt[k] // 8, tgt[k] % 8), []).append(o)
        for bi in range(20):
            mf = mfmas(blocks[bi], bi % 4, buf)
            fill = {}
            w = lg.need(bi)
            if w is not None: a("s_waitcnt lgkmcnt(%d)" % w)
            rd = []
            if bi <= 16: rd = [(bi + 3, o) for o in wreads(blocks[bi + 3], lambda kh: WR((bi + 3) % 4, kh))]; gaps = [0, 2, 4, 6]
            elif bi == 18:
                rd = [(100, o) for o in wreads(blocks[0], lambda kh: WR(0, kh))] + [(101, o) for o in wreads(blocks[1], lambda kh: WR(1, kh))]
                gaps = list(range(8))
            elif bi == 19: rd = [(102, o) for o in wreads(blocks[2], lambda kh: WR(2, kh))]; gaps = [0, 2, 4, 6]
            if bi == HRB:
                hr = [("H", o) for o in wreads(("h",), HW)]
                rd = [x for pr in zip(rd, hr) for x in pr]; gaps = list(range(8))
            for (tag, o), g in zip(rd, gaps if rd else []):
                fill.setdefault(g, []).append(o); lg.issue(tag)
            for g in range(8):
                for o in place.get((bi, g), []): fill.setdefault(g, []).append(o)
            if bi == HMB:
                assert lg.need("H") is None
                mf += halo_mf(buf)
            if bi == 17:
                for k, r in enumerate((1, 2, 3, 4)):
                    fill.setdefault(k + 1, []).append("v_add_u32 v%d, s93, v%d" % (r, r))
                fill.setdefault(7, []).append(lambda: (vwait("X", lg0=True), a("s_barrier")))
                lg.clear()
                if P.get("itrace"):
                    fill[7] += ["s_memtime s[98:99]", "s_add_u32 m0, s36, 30", "s_waitcnt lgkmcnt(0)", "v_writelane_b32 v31, s98, m0"]
            if bi == 19 and loop:
                fill.setdefault(5, []).append("s_cmp_lt_u32 s36, 15")
                fill.setdefault(7, []).append("s_cbranch_scc1 %s" % loop)
            for i, m in enumerate(mf):
                a(m)
                for o in fill.get(i, []): E(o)
    slot_ops = ["s_add_u32 s37, s37, s62", "s_cmp_eq_u32 s37, %d" % (3 * SLOT), "s_cselect_b32 s37, 0, s37",
                "s_cmp_eq_u32 s37, s62", "s_cselect_b32 s93, s63, s62"]
    def std_misc(buf):
        t = [("t", "buffer_load_dword v29, v%d, s[88:91], s94 offen %s" % (27 + buf, P.get("tfl", "")))] + (["s_add_u32 s94, s94, s95", "s_cmp_ge_u32 s94, s90", "s_cselect_b32 s3, s90, 0", "s_sub_u32 s94, s94, s3"] if buf else [])
        if buf: t += ["s_cmp_eq_u32 s36, s47", "s_cselect_b64 s[88:89], s[4:5], s[88:89]", "s_cselect_b32 s90, s6, s90", "s_cselect_b32 s94, s7, s94",
                      "s_cselect_b64 vcc, -1, 0", "v_cndmask_b32 v27, v27, v24, vcc", "v_cndmask_b32 v28, v28, v25, vcc"]
        xl = xld_ops(buf ^ 1, "X")
        if P.get("xl_pos", 1) == 2:
            ex = [("X", o[1].replace("s40", "s49").replace("s41", "s49")) for o in xld_ops(2, "X")[4 * buf:4 * buf + 4]]
            pre = ["s_cmp_eq_u32 s36, 14", "s_cselect_b32 s49, s48, %d" % OOB] if buf == 0 else ["s_add_u32 s49, s49, 4096"]
            xl = xl + pre + ex
        return xoff_ops() + xl[:2] + ["s_add_u32 s36, s36, 1"] + tau_ops() + xl[2:4] + slot_ops[:3] + xl[4:6] + slot_ops[3:] + xl[6:] + wdma_ops("W") + t
    a(".p2align 6")
    a.label("L_g1")
    vm.q = ["W"] * 10 + ["t"]
    step(0, std_misc(0))
    step(1, std_misc(1), loop="L_g1")
    assert vm.q == ["W"] * 10 + ["t"], vm.q
    stamp()

    ND, NO = 14, 8
    NS = ND + NO
    VDW, VDO = 16, 30
    NRES = 5
    OLOC = {14: R2 + 32768, 15: R2 + 49152, 16: R2, 21: 0, 18: 16384, 17: 106496, 19: 122880, 20: 139264}
    FR = NS - NRES
    def wops(sg, force=False):
        if sg >= FR and not force: return []
        u = sg % 4
        o = []
        if sg < ND:
            o.append("s_add_u32 s38, s%d, %d" % (44 + sg // 7, (sg % 7) * 131072))
            o.append("s_add_u32 m0, s56, %d" % (u * 16384))
            for q in range(4):
                o.append(("W%d" % sg, "buffer_load_dwordx4 v%d, s[8:11], s38 offen offset:%d lds" % (VDW + q, 1024 * q)))
        else:
            o.append("s_add_u32 m0, s56, %d" % ((OLOC[sg] - R2) & 0xffffffff))
            for q in range(4):
                o.append("s_mov_b32 s38, %d" % ((sg - ND) * 262144 + 15360 * q))
                o.append(("W%d" % sg, "buffer_load_dwordx4 v%d, s[12:15], s38 offen offset:%d lds" % (VDO, 1024 * q)))
        return o
    QI = {(0, 0): 0, (1, 0): 1, (1, 1): 2, (0, 1): 3}
    accD = lambda m, b: 64 + QI[(m >> 1, b >> 2)] * 32 + ((b & 3) * 2 + (m & 1)) * 4
    accO = lambda m, b: 192 + (b * 2 + m) * 4
    VW, VWO, VX = 32, 20, 52
    NXB = 6
    XB2 = lambda sg, f: (lambda u: (u * 32 if u < 4 else 192 + (u - 4) * 32) + f * 4)(sg % NXB)
    WR2 = lambda b, kh: 128 + b * 8 + kh * 4
    def xops(sg):
        if sg >= NS: return []
        o = []
        if sg < ND:
            o.append("s_add_u32 s39, s%d, %d" % (60 if sg < 2 else 46 + sg // 7, (sg % 7) * 16384))
            for kh in range(2):
                for m in range(4):
                    o.append(("X%d" % sg, "buffer_load_dwordx4 %s, v%d, s[28:31], s39 offen offset:%d %s" % (ar(XB2(sg, kh * 4 + m), 4), VX + kh + 4 * (m >> 1), 1024 * (m & 1), XSC)))
        else:
            o.append("s_add_u32 s39, s57, %d" % (112 * 8192 + (sg - ND) * 32768))
            for kq in range(4):
                for m in range(2):
                    o.append(("X%d" % sg, "buffer_load_dwordx4 %s, v%d, s[28:31], s39 offen offset:%d %s" % (ar(XB2(sg, kq * 2 + m), 4), VX + kq, 1024 * m, XSC)))
        return o
    def wreads2(sg, b, rb=None):
        if rb is None: rb = b
        o = []
        u = sg % 4
        for kh in range(2):
            for s2 in range(2):
                if sg < ND: v, off = VW + b, u * 16384 + (32 * kh + 16 * s2) * 256
                else:
                    L = OLOC[sg]
                    vb, base = (40, 0) if L < R2 else ((VWO, R2) if L < 106496 else (44, 106496))
                    v, off = vb + b % 4, L - base + (64 * (b // 4) + 32 * kh + 16 * s2) * 128
                o.append("ds_read_b64_tr_b16 %s, v%d offset:%d" % (ar(WR2(rb, kh) + 2 * s2, 2), v, off))
        return o
    def mfmas2(sg, b, rb):
        o = []
        for m in ((2, 3, 0, 1) if sg < ND else (0, 1)):
            for kh in range(2):
                if sg < ND: c, x = accD(m, b), XB2(sg, kh * 4 + m)
                else: c, x = accO(m, b % 4), XB2(sg, (2 * (b // 4) + kh) * 2 + m)
                z = (sg == 0 and kh == 0) or (sg == ND and b < 4 and kh == 0)
                o.append("%s %s, %s, %s, %s" % (MF, vr(c, 4), ar(WR2(rb, kh), 4), ar(x, 4), "0" if z else vr(c, 4)))
        return o
    order = [(0, 0), (1, 0), (2, 0), (3, 0), (0, 1), (1, 1), (2, 1), (3, 1)]
    for b in range(4, 20): order += [(b, 0), (b, 1)]
    NPOS = len(order)
    done_pos = {b: max(i for i, (bb, s) in enumerate(order) if bb == b) for b in range(20)}
    AB2 = 7
    R0, R1, R2_ = accGU(0, 1, 0), accGU(2, 1, 0), accGU(4, 1, 0)
    Qf = lambda m: R0 + 12 + 4 * m
    Kf = lambda m: R0 + 28 + 4 * (m + 1)
    VV = lambda f, m: R1 + 10 * f + 2 * (m + 1)
    Pf = lambda m: R1 + 20 + 4 * m
    Sp = lambda m: R2_ + 8 * m
    Sc = lambda m: R2_ + 8 * m + 4
    TT = lambda m: R2_ + 32 + 4 * m
    def cvt_acc(dst, src, t):
        return ["v_accvgpr_read_b32 v%d, a%d" % (t + r, src + r) for r in range(4)] + \
               ["v_cvt_pk_bf16_f32 v%d, v%d, v%d" % (dst, t, t + 1), "v_cvt_pk_bf16_f32 v%d, v%d, v%d" % (dst + 1, t + 2, t + 3)]
    masks = ["v_lshrrev_b32 v13, 4, v15", "v_and_b32 v14, 15, v13", "v_and_b32 v27, 1, v13", "v_lshrrev_b32 v20, 4, v13", "v_lshl_add_u32 v20, v20, 2, v27",
             "v_cmp_le_u32 s[40:41], v20, v14", "v_add_u32 v20, 2, v20", "v_cmp_le_u32 s[42:43], v20, v14", "v_cmp_ne_u32 s[62:63], 0, v27",
             "v_lshlrev_b32 v27, 4, v27", "s_cmp_eq_u32 s33, 0", "s_cselect_b64 s[88:89], -1, 0", "s_andn2_b64 s[90:91], s[88:89], s[42:43]",
             "s_andn2_b64 s[88:89], s[88:89], s[40:41]", "s_mov_b32 s48, 0x3e3504f3", "s_mov_b32 s49, 0x3fb8aa3b",
             "s_lshl_b32 s3, s32, 11", "s_add_u32 s3, s3, %d" % EX, "v_add_u32 v25, s3, v15", unp("vhx", 24),
             "v_lshlrev_b32 v14, %d, v14" % (7 if FP else 2), "v_and_b32 v13, 31, v13", "v_lshlrev_b32 v13, 2, v13",
             "s_and_b32 s3, s2, 7", "s_xor_b32 s61, s3, %d" % P.get("g0", 1), "s_xor_b32 s3, s61, 1",
             "s_mul_i32 s44, s61, %d" % (7 * 131072), "s_mul_i32 s45, s3, %d" % (7 * 131072),
             "s_mul_i32 s46, s61, %d" % (7 * 16384), "s_add_u32 s46, s46, s57", "s_mul_i32 s47, s3, %d" % (7 * 16384), "s_add_u32 s47, s47, s57",
             "s_mov_b32 s60, s46", "s_lshl_b32 s61, s61, 9", "s_add_u32 s34, s61, s58", "s_lshl_b32 s3, s3, 9", "s_add_u32 s58, s58, s3", "v_and_b32 v5, 384, v14"]
    early = ["v_add_u32 v%d, s63, v%d" % (AB2 + r, r) for r in (1, 2, 3, 4)] + xoff_ops()[:2] + xld_ops(2, "X")[8:] + masks
    memq = ["s_mov_b64 s[8:9], s[%d:%d]" % (PD, PD + 1), "s_mov_b32 s10, %d" % (3584 * 2048)] + wops(0) + wops(1) + \
        ["s_mov_b64 s[12:13], s[%d:%d]" % (PWO, PWO + 1), "s_mov_b32 s14, %d" % (1024 * 2048)] + wops(19, True) + wops(20, True)
    stream = []
    def pkA(p): return [x for m in range(4) for h in (0, 2) for x in (
        "v_pk_mul_f32 %s, %s, %s" % (vr(accGU(p, 1, m) + h, 2), vr(accGU(p, 0, m) + h, 2), vr(accGU(p, 1, m) + h, 2)),)] + \
        ["v_pk_mul_f32 %s, %s, s[50:51]" % (vr(accGU(p, 0, m) + h, 2), vr(accGU(p, 0, m) + h, 2)) for m in range(4) for h in (0, 2)]
    def pkB(p): return ["v_pk_add_f32 %s, %s, s[52:53]" % (vr(accGU(p, 0, m) + h, 2), vr(accGU(p, 0, m) + h, 2)) for m in range(4) for h in (0, 2)]
    def pkC(p): return ["v_pk_mul_f32 %s, %s, %s" % (vr(accGU(p, 1, m) + h, 2), vr(accGU(p, 1, m) + h, 2), vr(accGU(p, 0, m) + h, 2)) for m in range(4) for h in (0, 2)]
    def fin(p):
        o = []
        sreg = 73 + (p & 1)
        for m in range(4):
            U = accGU(p, 1, m)
            D = accGU(p, 0, m & ~1) + 2 * (m & 1)
            o += ["v_cvt_pk_bf16_f32 v%d, v%d, v%d" % (D, U, U + 1), "v_cvt_pk_bf16_f32 v%d, v%d, v%d" % (D + 1, U + 2, U + 3)]
        for m in (0, 2):
            g0 = accGU(p, 0, m)
            o += ["v_permlane16_swap_b32 v%d, v%d" % (g0, g0 + 2), "v_permlane16_swap_b32 v%d, v%d" % (g0 + 1, g0 + 3)]
            o.append(("hs", "buffer_store_dwordx4 %s, v26, s[28:31], s%d offen offset:%d %s" % (vr(g0, 4), sreg, 1024 * m, SC)))
        o.append("s_add_u32 s%d, s%d, 8192" % (sreg, sreg))
        return o
    rdy = lambda b: (done_pos[b] + 1) * 8 + 7
    for p in range(8):
        burst = (pkC(p - 1) if p > 0 else []) + (pkA(p) if p < 7 else [])
        stream.append((rdy(2 * p + 1) if p < 7 else 0, burst, True))
        tr1 = ["v_exp_f32 v%d, v%d" % (accGU(p, 0, 0) + r, accGU(p, 0, 0) + r) for r in range(16)] if p < 7 else []
        f = fin(p - 1) if p > 0 else []
        if p > 0 and (p - 1) % 2 == 0 and p - 1 < 6: pass
        mix = []
        while tr1 or f:
            if f: mix.append(f.pop(0))
            if tr1: mix.append(tr1.pop(0))
        for o in mix: stream.append((0, [o], False))
        if p < 7:
            stream.append((0, pkB(p), True))
            for r in range(16): stream.append((0, ["v_rcp_f32 v%d, v%d" % (accGU(p, 0, 0) + r, accGU(p, 0, 0) + r)], False))
    stream.append((0, ["HDONE"], False))
    for s_, F in ((0, Qf), (1, Qf), (2, Kf), (3, Kf)):
        for m in (3, 2, 1, 0):
            for k, o in enumerate(cvt_acc(F(m) + 2 * (s_ & 1), accQ(s_, m), TT(m))):
                stream.append((rdy(14 + s_), [o], False))
    for m in (3, 2, 1, 0):
        for o in cvt_acc(VV(0, m), accQ(4, m), TT(m)): stream.append((rdy(18), [o], False))
    def hflag():
        vwait("hs")
        V("f", "buffer_store_dword v7, v6, s[84:87], s92 offen %s" % SC)
    GL = P.get("gaplen", 20)
    MSP = P.get("mem_space", 5)
    HDLY = P.get("hflag_delay", 99)
    BP = P.get("bar_pos", 28)
    lg = Cnt([0] * 4 + [1] * 4 + [2] * 4)
    HR = {3: 0, 15: 1}; HM = {7: 0, 19: 2}
    isv = lambda o: isinstance(o, str) and (o.startswith("v_") or o.startswith("s_nop"))
    front = []
    lastmem = -99; hdone = None; hsent = False; est = 0
    w = lg.need(0); a("s_waitcnt lgkmcnt(%d)" % w)
    for pos, (bi, st_) in enumerate(order):
        mf = mfmas(blocks[bi], pos % 4, 2 * st_)
        if P.get("tstamp") and pos in (4, 8, 16, 24, 32): stamp()
        if pos % 4 == 0: sys.stderr.write("pos %d: stream left %d est %d\n" % (pos, len(stream), est))
        rd = []
        if pos + 3 < NPOS:
            b3, s3 = order[pos + 3]
            rd = [(pos + 3, o) for o in wreads(blocks[b3], lambda kh: WR((pos + 3) % 4, kh), AB2 * s3)]
        gaps = [0, 2, 4, 6]
        if pos in HR:
            hr = [("H", o) for o in wreads(("h",), HW, AB2 * HR[pos])]
            rd = [x for pr in zip(rd, hr) for x in pr]; gaps = list(range(8))
        rdat = dict(zip(gaps, rd))
        if pos in HM:
            assert lg.need("H") is None
            if HM[pos]: vwait("X")
            mf += halo_mf(HM[pos])
        for i, m in enumerate(mf):
            g = pos * 8 + i
            a(m)
            t = 4
            if i in rdat:
                a(rdat[i][1]); lg.issue(rdat[i][0]); t += 8
            if i == len(mf) - 1 and pos + 1 < NPOS:
                w = lg.need(pos + 1)
                if pos == 0:
                    vwait("W"); a("s_barrier")
                if pos == BP:
                    assert not memq and BP > done_pos[13]
                    a("s_barrier"); memq += wops(2) + wops(3) + wops(21, True)
                if w is not None: a("s_waitcnt lgkmcnt(%d)" % w); t += 4
            if early:
                while early and t < 16:
                    o = early.pop(0); E(o); t = (max(t, 8) if isv(o) else t) + cost(o)
            else:
                q = front if front else memq
                if q and not isinstance(q[0], tuple) and t <= 12 - 4 * bool(stream and stream[0][0] <= g):
                    E(q.pop(0)); t += 4
                elif q and isinstance(q[0], tuple) and t == 4 and g - lastmem >= (MSP if q is memq else P.get("st_space", 4)):
                    E(q.pop(0)); t += 8; lastmem = g
                if hdone is not None and not hsent and not front and g >= hdone + HDLY and t == 4:
                    hflag(); hsent = True; t += 12
                if g == P.get("tpoll_gap", 305):
                    V("p", "buffer_load_dword v12, v5, s[84:87], s34 offen %s" % SC); t += 8
                t = max(t, 8)
                while stream and t < GL - 3 and stream[0][0] <= g:
                    r_, ops, burst = stream.pop(0)
                    if ops == ["HDONE"]: hdone = g; continue
                    if not isv(ops[0]): front.append(ops[0]); continue
                    for o in ops: E(o); t += cost(o)
                    if burst: t = max(t, 29 + 4 * len(ops))
            est += max(16, t)
    sys.stderr.write("tail: %d stream ops left after last MFMA, est %d, hdone %s hsent %s memq %d\n" % (len(stream), est, hdone, hsent, len(memq)))
    stamp()
    for o in front: E(o)
    a("s_nop 1")
    for r_, ops, burst in stream:
        for o in ops:
            if o != "HDONE": E(o)
    HPOS = P.get("hflag_pos", 0)
    if not hsent and HPOS == 0: hflag(); hsent = True
    M4 = range(4)
    a("s_nop 1")
    for m in (1, 2, 3):
        a("%s %s, %s, %s, 0" % (MF, vr(Sc(m), 4), vr(Kf(m), 4), vr(Qf(m), 4)))
        a("%s %s, %s, %s, 0" % (MF, vr(Sp(m), 4), vr(Kf(m - 1), 4), vr(Qf(m), 4)))
    a("%s %s, %s, %s, 0" % (MF, vr(Sc(0), 4), vr(Kf(0), 4), vr(Qf(0), 4)))
    for o in cvt_acc(2, HACC, 20): a(o)
    a("v_add_u32 v4, s71, v24"); a("v_add_u32 v10, s71, v4"); a("v_add_u32 v8, s71, v10")
    for o in cvt_acc(VV(1, 3), accQ(5, 3), TT(0)): a(o)
    a("ds_write_b16 v24, v2"); a("ds_write_b16_d16_hi v4, v2"); a("ds_write_b16 v10, v3"); a("ds_write_b16_d16_hi v8, v3")
    a("s_cmp_eq_u32 s32, 3")
    a("s_cbranch_scc1 L_noexp")
    a("ds_write_b128 v25, %s offset:2048" % vr(Kf(3), 4))
    a("ds_write_b64 v25, %s offset:3072" % vr(VV(0, 3), 2))
    a("ds_write_b64 v25, %s offset:3080" % vr(VV(1, 3), 2))
    a.label("L_noexp")
    if not hsent: hflag()
    PPOS = P.get("poll_pos", 9)
    poll1 = lambda: V("p", "buffer_load_dword v12, v5, s[84:87], s34 offen %s" % SC)
    if PPOS == 0: poll1()
    for m in (2, 1):
        for o in cvt_acc(VV(1, m), accQ(5, m), TT(m)): a(o)
    a("s_waitcnt lgkmcnt(0)")
    a("s_barrier")
    a("ds_read_b128 %s, v25" % vr(Kf(-1), 4))
    a("ds_read_b64 %s, v25 offset:1024" % vr(VV(0, -1), 2))
    a("ds_read_b64 %s, v25 offset:1032" % vr(VV(1, -1), 2))
    for o in cvt_acc(VV(1, 0), accQ(5, 0), TT(0)): a(o)
    a("s_and_b32 s3, s2, 4"); a("s_lshl_b32 s3, s3, 9")
    a("v_add_u32 v%d, s3, v15" % VX)
    for q in range(1, 4): a("v_add_u32 v%d, %d, v%d" % (VX + q, 8192 * q, VX))
    for q in range(2): a("v_xor_b32 v%d, 0x800, v%d" % (VX + 4 + q, VX + q))
    a("v_mov_b32 v11, 0xce6e6b28")
    a("s_waitcnt lgkmcnt(0)")
    a("%s %s, %s, %s, 0" % (MF, vr(Sp(0), 4), vr(Kf(-1), 4), vr(Qf(0), 4)))
    stamp()
    if PPOS == 1: poll1()
    LATE = [17, 18]
    dq = list(memq)
    aw = Weave(P.get("dma_every", 10), dq)
    CKP = P.get("check_pos", 0)
    BLK = P.get("blocking", 0)
    def hcheck():
        if BLK:
            aw.flush()
            check_flags(12, 5, "s34", "p", "L_f1")
            stamp()
            dq.extend(xops(0) + xops(1))
            aw.n = P.get("x_every", 4)
            for _ in range(P.get("x_burst", 4)): aw.one()
            return
        vwait("p")
        a("v_cmp_ne_u32 vcc, s96, v12")
        a("s_nop 0")
        a("s_cmp_eq_u64 vcc, 0")
        a("s_cselect_b32 s60, s46, %d" % OOB)
        stamp()
        dq.extend(xops(0) + xops(1))
        for _ in range(P.get("x_burst", 3)): aw.one()
    if CKP == 0: hcheck()
    A_ = lambda m: TT(m)
    B_ = lambda m: TT(m) + 1
    X_ = lambda m: TT(m) + 2
    Y_ = lambda m: TT(m) + 3
    MR = (3, 2, 1, 0)
    for m in MR:
        for S_ in (Sc, Sp):
            aw("v_cndmask_b32 v%d, v%d, v%d, s[62:63]" % (S_(m), S_(m), S_(m) + 1))
            aw("v_cndmask_b32 v%d, v%d, v%d, s[62:63]" % (S_(m) + 2, S_(m) + 2, S_(m) + 3))
    for m in MR:
        aw("v_cndmask_b32 v%d, v%d, v%d, s[40:41]" % (A_(m), Sp(m), Sc(m)))
        aw("v_cndmask_b32 v%d, v%d, v%d, s[42:43]" % (B_(m), Sp(m) + 2, Sc(m) + 2))
    if CKP == 1: hcheck()
    def rnd():
        for m in MR: aw("v_cvt_pk_bf16_f32 v%d, v%d, v%d" % (X_(m), A_(m), B_(m)))
        for m in MR:
            aw("v_lshlrev_b32 v%d, 16, v%d" % (A_(m), X_(m)))
            aw("v_and_b32 v%d, s54, v%d" % (B_(m), X_(m)))
    rnd()
    for m in MR: aw("v_pk_mul_f32 %s, %s, s[48:49] op_sel_hi:[1,0]" % (vr(A_(m), 2), vr(A_(m), 2)))
    rnd()
    aw("v_cndmask_b32 v%d, v%d, v11, s[88:89]" % (A_(0), A_(0)))
    aw("v_cndmask_b32 v%d, v%d, v11, s[90:91]" % (B_(0), B_(0)))
    if CKP == 2: hcheck()
    if PPOS == 2: poll1()
    fillq = [unp("vw", VW)] + ["v_xor_b32 v%d, %d, v%d" % (VW + b, 32 * b, VW) for b in range(1, 8)] + \
            [unp("vwo", VWO)] + ["v_xor_b32 v%d, %d, v%d" % (VWO + b, 32 * b, VWO) for b in range(1, 4)] + \
            ["v_subrev_u32 v%d, %d, v%d" % (40 + b, R2, VWO + b) for b in range(4)] + \
            ["v_add_u32 v%d, %d, v%d" % (44 + b, 106496 - R2, VWO + b) for b in range(4)] + \
            [unp("vout", 2)]
    def pad(n):
        for _ in range(n):
            aw(fillq.pop(0) if fillq else "s_nop 0")
    def reduce(op):
        for m in MR: aw("%s v%d, v%d, v%d" % (op, X_(m), A_(m), B_(m)))
        for sw in ("v_permlane16_swap_b32", "v_permlane32_swap_b32"):
            for m in MR: aw("v_mov_b32 v%d, v%d" % (Y_(m), X_(m)))
            pad(2)
            for m in MR: aw("%s v%d, v%d" % (sw, X_(m), Y_(m)))
            pad(1)
            for m in MR: aw("%s v%d, v%d, v%d" % (op, X_(m), X_(m), Y_(m)))
    reduce("v_max_f32")
    if CKP == 3: hcheck()
    if PPOS == 3: poll1()
    for m in MR: aw("v_pk_add_f32 %s, %s, %s op_sel_hi:[1,0] neg_lo:[0,1] neg_hi:[0,1]" % (vr(A_(m), 2), vr(A_(m), 2), vr(X_(m), 2)))
    for m in MR: aw("v_pk_mul_f32 %s, %s, s[48:49] op_sel:[0,1]" % (vr(A_(m), 2), vr(A_(m), 2)))
    for m in MR:
        aw("v_exp_f32 v%d, v%d" % (A_(m), A_(m)))
        aw("v_exp_f32 v%d, v%d" % (B_(m), B_(m)))
    pad(1)
    reduce("v_add_f32")
    if CKP == 4: hcheck()
    if PPOS == 4: poll1()
    for m in MR: aw("v_rcp_f32 v%d, v%d" % (X_(m), X_(m)))
    pad(1)
    for m in MR: aw("v_pk_mul_f32 %s, %s, %s op_sel_hi:[1,0]" % (vr(A_(m), 2), vr(A_(m), 2), vr(X_(m), 2)))
    for m in MR: aw("v_cvt_pk_bf16_f32 v%d, v%d, v%d" % (X_(m), A_(m), B_(m)))
    for m in MR:
        aw("v_and_b32 v%d, 0xffff, v%d" % (A_(m), X_(m)))
        aw("v_lshrrev_b32 v%d, 16, v%d" % (B_(m), X_(m)))
    for m in MR:
        aw("v_lshlrev_b32 v%d, v27, v%d" % (A_(m), A_(m)))
        aw("v_lshlrev_b32 v%d, v27, v%d" % (B_(m), B_(m)))
    for m in MR:
        aw("v_cndmask_b32 v%d, v%d, 0, s[40:41]" % (Pf(m), A_(m)))
        aw("v_cndmask_b32 v%d, v%d, 0, s[42:43]" % (Pf(m) + 1, B_(m)))
        aw("v_cndmask_b32 v%d, 0, v%d, s[40:41]" % (Pf(m) + 2, A_(m)))
        aw("v_cndmask_b32 v%d, 0, v%d, s[42:43]" % (Pf(m) + 3, B_(m)))
    pad(max(2, len(fillq)))
    if CKP == 5: hcheck()
    sys.stderr.write("DMA queue left after softmax: %d\n" % len(dq))
    for m in MR:
        a("%s %s, %s, %s, 0" % (MF, vr(Sp(m), 4), vr(VV(0, m - 1), 4), vr(Pf(m), 4)))
        a("%s %s, %s, %s, 0" % (MF, vr(Sc(m), 4), vr(VV(1, m - 1), 4), vr(Pf(m), 4)))
    stamp()

    lg = Cnt()
    for b in range(4):
        for o in wreads2(0, b): a(o); lg.issue((0, b))
    for m in M4:
        for h in range(4):
            a("v_cvt_pk_bf16_f32 v%d, v%d, v%d" % (240 + 4 * m + h, Sp(m) + 2 * h, Sp(m) + 2 * h + 1))
    aw.flush()
    if not BLK:
        a("s_cmp_eq_u32 s60, s46")
        a("s_cbranch_scc1 L_early")
        a("s_mov_b32 s60, s46")
        sv = list(vm.q)
        poll1()
        check_flags(12, 5, "s34", "p", "L_f1")
        for o in xops(0) + xops(1): E(o)
        a("s_waitcnt vmcnt(0)")
        vm.q = sv
        a.label("L_early")
    for m in M4:
        V("os", "buffer_store_dwordx4 %s, v15, s[28:31], s75 offen offset:%d %s" % (vr(240 + 4 * m, 4), 1024 * m, SC))
    srd(a, 16, PX, 0, 2048 * 2048)
    srd(a, 20, PWS, PART_OFF, PART_BYTES)
    srd(a, 24, POUT, 0, 2048 * 2048)
    a("s_add_u32 s73, s72, 32768")
    a("s_lshl2_add_u32 s74, s2, s32"); a("s_lshl_b32 s88, s74, 2"); a("s_add_u32 s88, s88, %d" % F2)
    a("s_lshl_b32 s74, s74, 14")
    a("v_and_b32 v14, 64, v15"); a("v_or_b32 v14, 32, v14"); a("v_xor_b32 v14, s88, v14")
    a("s_add_u32 s89, s88, 4096"); a("s_xor_b32 s94, s89, 64")
    a("s_mov_b32 s92, s35")
    vwait("X0")
    stamp()

    AH = P.get("ahead", 1)
    Hs = [(sg, c) for sg in range(ND - AH) for c in (0, 1)] + [(sg, 0) for sg in range(ND - AH, ND)] + [(sg, 1) for sg in range(ND - AH, ND)] + \
         [(sg, c) for sg in range(ND, NS) for c in (0, 1)]
    lastuse = {sg: max(i for i, h in enumerate(Hs) if h[0] == sg) // 2 for sg in range(NS)}
    firstuse = {sg: min(i for i, h in enumerate(Hs) if h[0] == sg) // 2 for sg in range(NS)}
    wsched = {}
    for w in range(4, FR):
        wsched.setdefault(lastuse[w - 4], []).append(w)
        assert lastuse[w - 4] < firstuse[w] - 1 or w >= ND, (w, lastuse[w - 4], firstuse[w])
        assert lastuse[w - 4] < firstuse[w] - 1
    LASTBAR = FR - 2
    q01 = max(i for i, h in enumerate(Hs) if h[0] < ND and h[1] == 0)
    isV = lambda x: isinstance(x, tuple)
    isval = lambda x: isinstance(x, str) and x.startswith("v_")
    def stage(sg, h1=(), h2=(), pre=None, valu=None):
        last = sg == NS - 1
        if P.get("sstamp") and sg >= 1: stamp()
        if pre: pre()
        NG = 64 if sg < ND else 32
        H = NG // 2
        h1 = list(h1); h2 = [o for w in wsched.get(sg, []) for o in wops(w)] + list(h2)
        blk = lambda k, b: (Hs[2 * k + b // 4][0], 4 * Hs[2 * k + b // 4][1] + b % 4)
        r1 = [((sg, b), o) for b in range(4, 8) for o in wreads2(*blk(sg, b), b)]
        r2 = [] if last else [((sg + 1, b), o) for b in range(4) for o in wreads2(*blk(sg + 1, b), b)]
        bar = sg <= LASTBAR
        plan = {g: [] for g in range(NG)}
        load = {g: 4 for g in range(NG)}
        WG_ = {H // 2 - 1: (sg, 3), NG - 1: (sg + 1, 1)}
        if not bar: WG_.update({H - 1: (sg, 5), 3 * H // 2 - 1: (sg, 7)})
        for g in WG_: load[g] += 4
        if bar: load[H - 1] += 8
        def place(lo, hi, rds, rhi, h):
            n = len(rds)
            for k in range(n):
                g = lo + k * (rhi - lo + 1) // n
                plan[g].append(("r",) + rds[k]); load[g] += 8
            nv = sum(isV(x) for x in h)
            pos = [None] * len(h); vi = 0; prev = lo
            for k, x in enumerate(h):
                if isV(x):
                    t = lo + int((vi + 0.5) * (hi - lo + 1) / nv); vi += 1
                    c = sorted(range(max(prev, t - 1), min(hi, t + 1) + 1), key=lambda g: (load[g], abs(g - t))) or [hi]
                    pos[k] = prev = c[0]; load[c[0]] += 8
            prev = lo
            for k, x in enumerate(h):
                if pos[k] is None:
                    nxt = next((pos[j] for j in range(k + 1, len(h)) if pos[j] is not None), hi)
                    if isval(x) and nxt > prev: nxt -= 1
                    c = [g for g in range(prev, nxt + 1) if load[g] <= 12]
                    g = c[0] if c else min(range(prev, max(prev, nxt) + 1), key=lambda g: load[g])
                    pos[k] = g; load[g] = max(load[g], 8 if isval(x) else 0) + 4
                pos[k] = max(pos[k], prev); prev = pos[k]
                plan[pos[k]].append(("o", x))
        place(0, H - 1, r1, (H - 7 if NG == 64 else H - 4) if bar else H - 1, h1)
        place(H, NG - 1, r2, NG - 1, h2)
        if valu:
            for k, x in enumerate(valu[0]): plan[valu[1] + k * (NG - valu[1]) // len(valu[0])].append(("o", x))
        sys.stderr.write("st%d:%d " % (sg, sum(max(16, v) for v in load.values())))
        g = 0
        for b in range(8):
            w = lg.need((sg, b))
            if w is not None: a("s_waitcnt lgkmcnt(%d)" % w)
            for mf in mfmas2(*blk(sg, b), b):
                a(mf)
                for x in plan[g]:
                    if x[0] == "r": a(x[2]); lg.issue(x[1])
                if g in WG_:
                    w = lg.need(WG_[g])
                    if w is not None: a("s_waitcnt lgkmcnt(%d)" % w)
                for x in plan[g]:
                    if x[0] != "r": E(x[1])
                if g == H - 1 and bar:
                    vwait("W%d" % Hs[2 * sg + 2][0], "W%d" % Hs[2 * sg + 3][0], lg0=True)
                    a("s_barrier")
                    lg.clear()
                if g == H - 2: vwait("X%d" % Hs[2 * sg + 1][0])
                if g == NG - 2 and not last: vwait("X%d" % Hs[2 * sg + 2][0])
                g += 1
    def oflag():
        vwait("os")
        V("f", "buffer_store_dword v7, v6, s[84:87], s92 offen %s" % SC)
    EPV = 224
    eload = ["v_lshlrev_b32 v4, %d, v15" % (F0S - 2), "s_or_b32 s3, s2, s32", "s_cselect_b32 s3, %d, 0" % OOB] + \
          [("e", "buffer_load_dwordx4 %s, v4, s[84:87], s3 offen offset:%d %s" % (vr(EPV + 4 * k, 4), k << F0S, SC)) for k in range(4)]
    def epoch():
        a("s_or_b32 s3, s2, s32")
        a("s_cbranch_scc1 L_noep")
        a("s_mov_b32 s97, 0")
        a.label("L_ep")
        for k in range(16): a("v_xor_b32 v%d, s96, v%d" % (EPV + k, EPV + k))
        for k in range(1, 16): a("v_or_b32 v%d, v%d, v%d" % (EPV, EPV, EPV + k))
        a("v_cmp_ne_u32 vcc, 0, v%d" % EPV)
        a("s_cbranch_vccz L_epok")
        for k in range(4): a("buffer_load_dwordx4 %s, v4, s[84:87], 0 offen offset:%d %s" % (vr(EPV + 4 * k, 4), k << F0S, SC))
        a("s_add_u32 s97, s97, 1")
        a("s_waitcnt vmcnt(0)")
        a("s_cmp_lt_u32 s97, 0x80000")
        a("s_cbranch_scc1 L_ep")
        a.label("L_epok")
        a("s_mov_b32 s3, %d" % EPOCH)
        a("buffer_store_dword v7, v6, s[84:87], s3 offen %s" % SC)
        a.label("L_noep")

    PK, XU, XRES, TE = 64, 112, 240, 224
    KEEP = 160
    sends = []
    for qd in range(3):
        for k in range(4):
            R = 64 + 32 * qd + 8 * k
            sends.append((["s_add_u32 s75, s74, %d" % (4096 * qd)] if k == 0 else []) +
                         [("v_cvt_pk_bf16_f32 v%d, v%d, v%d" % (R + r, R + 2 * r, R + 2 * r + 1)) for r in range(4)] +
                         [("S%d" % (qd // 2), "buffer_store_dwordx4 %s, v15, s[20:23], s75 offen offset:%d %s" % (vr(R, 4), 1024 * k, SC))])
    xres = [("R", "buffer_load_dwordx4 %s, v2, s[16:19], s%d offen offset:%d" % (vr(XRES + 4 * (2 * m + bp), 4), 72 + m, 64 * bp)) for m in range(2) for bp in range(2)]
    parts = []
    for qd, dx in enumerate((2, 6, 4)):
        parts.append(["s_xor_b32 s93, s74, 0x%x" % ((dx << 16) + 4096 * qd)] +
                     [("P%d_%d" % (qd, k), "buffer_load_dwordx4 %s, v15, s[20:23], s93 offen offset:%d %s" % (vr(PK + 16 * qd + 4 * k, 4), 1024 * k, SC)) for k in range(4)])
    SPA, SPB = P.get("send_a", [4, 2, 2]), P.get("send_b", [0, 0, 2, 2])
    FA, PA, CA = P.get("ex_a", [17, 19, 20])
    FB, PB_, CB = P.get("ex_b", [17, 19, 20])
    XRS = P.get("xres_stage", 12)
    def take(n):
        r = [o for x in sends[:n] for o in x]; del sends[:n]; return r
    def sflag(k):
        vwait("S%d" % k)
        V("f", "buffer_store_dword v7, v6, s[84:87], s88 offen offset:%d %s" % (2048 * k, SC)) if False else V("f", "buffer_store_dword v7, v6, s[84:87], s%d offen %s" % (88 + k, SC))
    def addp(qd, k):
        return [lambda: vwait("P%d_%d" % (qd, k))] + \
            [x for r in range(4) for x in ("v_lshlrev_b32 v8, 16, v%d" % (PK + 16 * qd + 4 * k + r), "v_and_b32 v9, s54, v%d" % (PK + 16 * qd + 4 * k + r),
                                           "v_add_f32 v%d, v%d, v8" % (KEEP + 8 * k + 2 * r, KEEP + 8 * k + 2 * r), "v_add_f32 v%d, v%d, v9" % (KEEP + 8 * k + 2 * r + 1, KEEP + 8 * k + 2 * r + 1))]
    def round4(R, T):
        return ["v_cvt_pk_bf16_f32 v%d, v%d, v%d" % (T, R, R + 1), "v_cvt_pk_bf16_f32 v%d, v%d, v%d" % (T + 1, R + 2, R + 3),
                "v_lshlrev_b32 v%d, 16, v%d" % (R, T), "v_and_b32 v%d, s54, v%d" % (R + 1, T),
                "v_lshlrev_b32 v%d, 16, v%d" % (R + 2, T + 1), "v_and_b32 v%d, s54, v%d" % (R + 3, T + 1)]
    xpart = [lambda: vwait("R")]
    for k in range(16):
        xpart += ["v_lshlrev_b32 v%d, 16, v%d" % (XU + 2 * k, XRES + k), "v_and_b32 v%d, s54, v%d" % (XU + 2 * k + 1, XRES + k)]
    DBL = P.get("xdouble", [0, 5, 8])
    xs = {}; nx = 2
    for sg in range(NS):
        n = 2 if sg in DBL else (0 if sg in P.get("xskip", []) else 1)
        xs[sg] = [x for x in range(nx, min(nx + n, NS)) if x < NXB or lastuse[x - NXB] < sg]; nx += len(xs[sg])
        assert all(firstuse[x] > sg for x in xs[sg])
    assert nx == NS
    ck2 = min(sg for sg in xs if 7 in xs[sg]); cko = min(sg for sg in xs if ND in xs[sg])
    LST = P.get("late_stages", [2, 3])
    addq = [(qd, k) for qd in range(2) for k in range(4)]
    adds = [addp(*x) for x in addq]
    WOV = {int(k): v for k, v in P.get("wov", {}).items()}
    for sg in range(NS):
        h1 = xops(xs[sg][0]) if xs[sg] else []
        h2 = xops(xs[sg][1]) if len(xs[sg]) > 1 else []
        pre = []
        if sg in LST: h2 = h2 + wops(LATE[LST.index(sg)], True)
        if sg == 1: h2 = h2 + eload
        if sg == 2: pre.append(oflag)
        if sg == ck2 - 2: h2 = h2 + [("p", "buffer_load_dword v12, v5, s[84:87], s58 offen %s" % SC)]
        if sg == ck2: pre += [lambda: check_flags(12, 5, "s58", "p", "L_f1b"), epoch]
        if sg == cko - 2: h2 = h2 + [("p", "buffer_load_dword v3, v13, s[84:87], s59 offen %s" % SC)]
        if sg == cko: pre.append(lambda: check_flags(3, 13, "s59", "p", "L_f2"))
        for hh, lst in ((2 * sg, h1), (2 * sg + 1, h2)):
            k = hh - q01 - 1
            t_ = take(SPA[k]) if 0 <= k < len(SPA) else []
            k = hh - 2 * ND
            if 0 <= k < len(SPB): t_ += take(SPB[k])
            if P.get("send_first", 1): lst[:0] = t_
            else: lst += t_
        if sg == XRS: h2 = h2 + xres
        if sg == PA: h2 = h2 + [("p", "buffer_load_dword v3, v14, s[84:87], 0 offen %s" % SC)]
        if sg == PB_: h2 = h2 + [("pb", "buffer_load_dword v12, v6, s[84:87], s94 offen %s" % SC)]
        if sg == FA: pre.append(lambda: sflag(0))
        if sg == FB: pre.append(lambda: sflag(1))
        if sg == CA:
            pre.append(lambda: check_flags(3, 14, "0", "p", "L_f3")); h1 = h1 + parts[0]; h2 = parts[1] + h2
        if sg == CB:
            pre.append(lambda: check_flags(12, 6, "s94", "pb", "L_f4"))
            if CA == CB: h2 = h2 + parts[2]
            else: h1 = h1 + parts[2]
        if sg == ND: stamp()
        wv = None
        if sg == P.get("xpart_stage", 18): wv = (xpart, 0)
        if sg in WOV:
            n = WOV[sg]; wv = ([o for x in adds[:n] for o in x], 0); del adds[:n]
        stage(sg, h1, h2, pre=(lambda pre=pre: [f() for f in pre]), valu=wv)
    sys.stderr.write("\n")
    assert not sends
    stamp()
    if CA == NS:
        check_flags(3, 14, "0", "p", "L_f3")
        for o in parts[0] + parts[1]: E(o)
    if CB == NS:
        check_flags(12, 6, "s94", "pb", "L_f4")
        for o in parts[2]: E(o)
    a("v_mov_b32 v8, 0x3f80"); a("v_mov_b32 v9, 1.0")
    rest = addq[len(addq) - len(adds):] if adds else []
    def dots(qd, k):
        vwait("P%d_%d" % (qd, k))
        for r in range(8):
            a("v_dot2_f32_bf16 v%d, v%d, v%d, v%d" % (KEEP + 8 * k + r, PK + 16 * qd + 4 * k + r // 2, 8 + (r & 1), KEEP + 8 * k + r))
    for x in rest: dots(*x)
    for k in range(4):
        dots(2, k)
        if k > 0:
            for kk in (2 * k - 2, 2 * k - 1):
                Y, T = KEEP + 4 * kk, TE + 4 * kk
                for o in round4(Y, 10): a(o)
                for h in (0, 2): a("v_pk_mul_f32 %s, %s, s[50:51]" % (vr(T + h, 2), vr(Y + h, 2)))
                for r in range(4): a("v_exp_f32 v%d, v%d" % (T + r, T + r))
    for kk in (6, 7):
        Y, T = KEEP + 4 * kk, TE + 4 * kk
        for o in round4(Y, 10): a(o)
        for h in (0, 2): a("v_pk_mul_f32 %s, %s, s[50:51]" % (vr(T + h, 2), vr(Y + h, 2)))
        for r in range(4): a("v_exp_f32 v%d, v%d" % (T + r, T + r))
    for k in range(8):
        T = TE + 4 * k
        for h in (0, 2): a("v_pk_add_f32 %s, %s, s[52:53]" % (vr(T + h, 2), vr(T + h, 2)))
        for r in range(4): a("v_rcp_f32 v%d, v%d" % (T + r, T + r))
    for m in range(2):
        for bp in range(2):
            D = 32 + 4 * (2 * m + bp)
            XV = XU + 8 * (2 * m + bp)
            for be in range(2):
                b = 2 * bp + be
                Y, T, S = KEEP + (b * 2 + m) * 4, TE + (b * 2 + m) * 4, accO(m, b)
                for h in (0, 2): a("v_pk_mul_f32 %s, %s, %s" % (vr(Y + h, 2), vr(Y + h, 2), vr(T + h, 2)))
                for o in round4(S, 10) + round4(Y, 8): a(o)
                for h in (0, 2): a("v_pk_mul_f32 %s, %s, %s" % (vr(Y + h, 2), vr(Y + h, 2), vr(S + h, 2)))
                a("v_cvt_pk_bf16_f32 v%d, v%d, v%d" % (D + 2 * be, Y, Y + 1))
                a("v_cvt_pk_bf16_f32 v%d, v%d, v%d" % (D + 2 * be + 1, Y + 2, Y + 3))
            a("s_nop 0")
            a("v_permlane16_swap_b32 v%d, v%d" % (D, D + 2))
            a("v_permlane16_swap_b32 v%d, v%d" % (D + 1, D + 3))
            a("s_nop 0")
            for r in range(4):
                a("v_lshlrev_b32 v%d, 16, v%d" % (48 + 2 * r, D + r))
                a("v_and_b32 v%d, s54, v%d" % (49 + 2 * r, D + r))
            for r in range(4): a("v_pk_add_f32 %s, %s, %s" % (vr(48 + 2 * r, 2), vr(48 + 2 * r, 2), vr(XV + 2 * r, 2)))
            for r in range(4): a("v_cvt_pk_bf16_f32 v%d, v%d, v%d" % (D + r, 48 + 2 * r, 49 + 2 * r))
            a("buffer_store_dwordx4 %s, v2, s[24:27], s%d offen offset:%d %s" % (vr(D, 4), 72 + m, 64 * bp, P.get("outfl", "")))
    if probe is not None:
        stamp(); a("s_waitcnt vmcnt(0)"); stamp()
        a.label("L_probe")
        a("s_memrealtime s[4:5]"); a("s_waitcnt lgkmcnt(0)"); a("s_sub_u32 s4, s4, s98"); a("s_cmp_lt_u32 s4, 10000"); a("s_cbranch_scc1 L_probe")
    if prof:
        stamp(); a("s_waitcnt vmcnt(0)"); stamp()
        srd(a, 8, PWS, STAMP_OFF, 65536)
        a("s_lshl_b32 s3, s2, 8")
        a("v_lshl_add_u32 v8, v0, 2, s3")
        a("v_cmp_gt_u32 vcc, 64, v0")
        a("s_and_b64 exec, exec, vcc")
        a("s_cbranch_execz L_end")
        a("buffer_store_dword v31, v8, s[8:11], 0 offen")
    a.label("L_end")
    a("s_endpgm")
    desc(a, name, 256 + NAGPR, 100, 256)
    hdr = open("recurrent_scan__sliding_local_dilated__swiglu_ffn__prompt.s.ref").read().split("; Override launch")[0]
    if P.get("aslist", 1):
        hdr += "; @launch kernel=%s grid=(256,1,1) block=(256,1,1) lds=%d\n" % (name, LDS_BYTES)
    else:
        hdr += "; @launch grid=(256,1,1) block=(256,1,1) lds=%d\n" % LDS_BYTES
    return hdr + a.text()

if __name__ == "__main__":
    P = json.loads(sys.argv[2]) if len(sys.argv) > 2 else {}
    open(sys.argv[1], "w").write(gen(P))
```

```python
import sys, json
sys.path.insert(0, "dev")
from gen_common import *

MAIN = "recurrent_scan__sliding_local_dilated__swiglu_ffn__prompt_kernel"
SLOT = 40960
GATE, UP, QKV = 0, 14336, 28672
EX = 155648
LDS_BYTES = 163840
LNX = EX
R2 = SLOT
F0, F1H, F1O, F2, EPOCH = 0, 32768, 40960, 262144, 65536
NONCE_ADD = 0x6A09E667
OOB = 0x40000000
SC = "sc1"
MF = "v_mfma_f32_16x16x32_bf16"

class Cnt:
    def __init__(self, init=(), cap=15):
        self.q = list(init); self.cap = cap
    def issue(self, tag): self.q.append(tag)
    def need(self, *tags):
        idx = [i for i, t in enumerate(self.q) if t in tags]
        if not idx: return None
        last = max(idx)
        n = len(self.q) - 1 - last
        self.q = self.q[last + 1:]
        return min(n, self.cap)
    def clear(self): self.q = []

def cost(o):
    s = o[1] if isinstance(o, tuple) else o
    if callable(s): return 4
    if s.startswith(("v_exp", "v_rcp", "buffer_")): return 8
    return 4

def gen(P):
    a = Asm()
    name = MAIN
    prof, probe = P.get("prof"), P.get("probe")
    nst = [0]
    def stamp():
        if probe is not None:
            if nst[0] == probe:
                a("s_memrealtime s[98:99]"); a("s_waitcnt lgkmcnt(0)")
            nst[0] += 1
            return
        if not prof: return
        a("%s s[98:99]" % ("s_memtime" if prof == 2 else "s_memrealtime"))
        a("s_waitcnt lgkmcnt(0)")
        a("v_writelane_b32 v31, s98, %d" % nst[0])
        nst[0] += 1
    XSC = P.get("xsc", "sc1")
    ROT2 = P.get("g2_rot", 0)
    vm = Cnt(cap=63)
    def V(tag, s):
        vm.issue(tag)
        if s.endswith("lds") and a.lines[-1].strip().startswith("s_add_u32 m0"): a("s_nop 0")
        a(s)
    def E(o):
        if isinstance(o, tuple): V(*o)
        elif callable(o): o()
        else: a(o)
    def vwait(*tags, lg0=False):
        n = vm.need(*tags)
        parts = ([] if n is None else ["vmcnt(%d)" % n]) + (["lgkmcnt(0)"] if lg0 else [])
        if parts: a("s_waitcnt " + " ".join(parts))
    def check_flags(vreg, voff, soff, tag, label):
        vwait(tag)
        a("v_cmp_ne_u32 vcc, s96, v%d" % vreg)
        a("s_cbranch_vccz %s_ok" % label)
        a("s_mov_b32 s97, 0")
        a.label(label + "_spin")
        a("s_sleep 4")
        a("buffer_load_dword v%d, v%d, s[84:87], %s offen %s" % (vreg, voff, soff, SC))
        a("s_add_u32 s97, s97, 1")
        a("s_waitcnt vmcnt(0)")
        a("s_cmp_gt_u32 s97, 0x80000")
        a("s_cbranch_scc1 %s_ok" % label)
        a("v_cmp_ne_u32 vcc, s96, v%d" % vreg)
        a("s_cbranch_vccnz %s_spin" % label)
        a.label(label + "_ok")

    class Weave:
        def __init__(self, n, q, skip=0): self.n, self.c, self.q = n, -skip, q
        def __call__(self, t):
            a(t)
            if t.startswith("v_") and not t.startswith("v_mfma"):
                self.c += 1
                if self.c > 0 and self.c % self.n == 0: self.one()
        def one(self):
            while self.q:
                o = self.q.pop(0); E(o)
                if isinstance(o, tuple): break
        def flush(self):
            while self.q: self.one()

    accGU = lambda p, gu, m: 32 + ((p * 2 + gu) * 4 + m) * 4
    accQ = lambda s, m: (s * 4 + m) * 4
    HACC = 96
    XB = lambda buf, m, kh: (100 + buf * 40 + (m * 2 + kh) * 4) if buf < 2 else ((224 + (m * 2 + kh) * 4) if m < 4 else 172 + kh * 4)
    WR = lambda slot, kh: 180 + slot * 8 + kh * 4
    HW = lambda kh: 212 + kh * 4
    PARK = 220
    NAGPR = 256
    PX, PQKV, PWO, PG, PU, PD, POUT, PDBG, PWS = 64, 66, 68, 72, 74, 76, 78, 80, 82

    a.raw('.amdgcn_target "amdgcn-amd-amdhsa--gfx950"')
    kernel_header(a, name)
    a("s_cmp_ge_u32 s2, 256")
    a("s_cbranch_scc1 L_end")
    a("s_load_dwordx16 s[64:79], s[0:1], 0")
    a("s_load_dwordx4 s[80:83], s[0:1], 64")
    a("s_getpc_b64 s[4:5]")
    a.label("L_pc")
    a("v_and_b32 v17, 63, v0")
    a("s_mov_b32 s6, L_end-L_pc")
    a("s_mov_b32 s7, 0x20000")
    a("v_lshlrev_b32 v1, 7, v17")
    a("s_bfe_u32 s3, s2, 0x30003")
    a("s_lshl_b32 s3, s3, 13")
    V("c", "buffer_load_dword v29, v1, s[4:7], s3 offen")
    if prof: a("v_mov_b32 v31, 0")
    stamp()
    a("v_lshrrev_b32 v16, 6, v0")
    a("v_lshrrev_b32 v18, 3, v17")
    a("v_and_b32 v19, 7, v17")
    a("v_readfirstlane_b32 s32, v16")
    a("v_lshlrev_b32 v20, 11, v18")
    a("v_lshl_add_u32 v20, v16, 9, v20")
    a("v_lshl_add_u32 v20, v19, 4, v20")
    a("s_and_b32 s34, s2, 7")
    a("s_bfe_u32 s35, s2, 0x20003")
    a("s_lshl2_add_u32 s34, s34, s35")
    a("s_lshr_b32 s33, s2, 5")
    a("s_lshl_b32 s36, s33, 5")
    a("s_add_u32 s36, s36, s34")
    a("s_lshl_b32 s37, s36, 14")
    a("v_mov_b32 v6, 0")
    a("s_mov_b32 s50, %d" % (2048 * 2048))
    a("s_mov_b32 s51, 0x20000")
    a("s_waitcnt lgkmcnt(0)")
    a("s_mov_b64 s[48:49], s[%d:%d]" % (PX, PX + 1))
    LX = 32
    for u in range(4):
        V("x", "buffer_load_dwordx4 %s, v20, s[48:51], s37 offen offset:%d %s" % (vr(LX + 4 * u, 4), 128 * u, P.get("xfl", "")))
    srd(a, 84, PWS, FLAG_OFF, FLAG_BYTES)
    a("s_mov_b32 s3, %d" % EPOCH)
    V("ep", "buffer_load_dword v7, v6, s[84:87], s3 offen")
    stamp()
    if P.get("xrot", 1): a("s_and_b32 s80, s2, 7"); a("s_lshl_b32 s80, s80, 1")
    else: a("s_mov_b32 s80, 0")
    a("s_mov_b32 s81, s80")
    a("s_and_b32 s57, s34, 1")
    a("s_lshr_b32 s58, s34, 1")
    a("s_mul_i32 s58, s58, 448")
    a("s_cmp_eq_u32 s32, 1")
    a("s_cselect_b64 s[88:89], s[%d:%d], s[%d:%d]" % (PU, PU + 1, PG, PG + 1))
    a("s_cmp_eq_u32 s32, 3")
    a("s_cbranch_scc1 L_t3")
    a("s_mul_i32 s3, s57, 208")
    a("s_add_u32 s3, s3, s58")
    a("s_movk_i32 s92, 7168")
    a("s_movk_i32 s93, 118")
    a("s_cmp_eq_u32 s32, 2")
    a("s_cbranch_scc0 L_t01")
    a("s_mov_b64 s[88:89], s[%d:%d]" % (PQKV, PQKV + 1))
    a("s_lshl_b32 s3, s34, 6")
    a("s_movk_i32 s92, 6144")
    a("s_movk_i32 s93, 2048")
    a.label("L_t01")
    a("s_lshl_b32 s90, s92, 10")
    a("v_lshrrev_b32 v21, 2, v17")
    a("v_and_b32 v22, 3, v17")
    a("v_mul_u32_u24 v30, s92, v21")
    a("v_mul_u32_u24 v23, s93, v22")
    a("v_and_b32 v23, -4, v23")
    a("v_add3_u32 v30, v30, v23, s3")
    a("v_cmp_eq_u32 vcc, 3, v22")
    a("v_mov_b32 v23, %d" % OOB)
    a("s_lshl2_add_u32 s94, s80, s33")
    a("s_lshl_b32 s94, s94, 4")
    a("v_cndmask_b32 v30, v30, v23, vcc")
    a("v_mov_b32 v25, %s" % ("v30" if not P.get("now1") else str(OOB)))
    if P.get("noearly"): a("v_mov_b32 v30, %d" % OOB)
    a("s_mul_i32 s94, s94, s92")
    a("s_lshl_b32 s95, s92, 7")
    a("s_branch L_td")
    a.label("L_t3")
    a("s_mov_b64 s[88:89], s[%d:%d]" % (PD, PD + 1))
    a("v_lshlrev_b32 v30, 7, v17")
    a("s_bfe_u32 s3, s2, 0x20001")
    a("s_add_u32 s3, s3, 1")
    a("s_mul_i32 s90, s3, %d" % (896 * 2048))
    a("s_lshr_b32 s94, s2, 3")
    a("s_lshl_b32 s94, s94, 13")
    a("s_add_u32 s94, s94, s90")
    a("s_sub_u32 s94, s94, %d" % (128 * 2048))
    a("s_mov_b32 s95, 0")
    a("v_mov_b32 v25, v30")
    a("v_mov_b32 v30, %d" % OOB)
    if P.get("now2"): a("v_mov_b32 v25, %d" % OOB)
    a.label("L_td")
    a("s_mov_b32 s91, 0x20000")
    for k in range(P.get("t_early", 2)):
        V("t", "buffer_load_dword v29, v30, s[88:91], s94 offen %s" % P.get("t0fl", ""))
        for o in ["s_add_u32 s94, s94, s95", "s_cmp_ge_u32 s94, s90", "s_cselect_b32 s3, s90, 0", "s_sub_u32 s94, s94, s3"]: a(o)
    a("v_lshlrev_b32 v21, 17, v16")
    a("v_lshrrev_b32 v22, 2, v19")
    a("v_lshl_add_u32 v21, v22, 10, v21")
    a("v_and_b32 v22, 3, v19")
    a("v_lshl_add_u32 v21, v22, 8, v21")
    a("v_lshl_add_u32 v28, v18, 4, v21")
    a("s_lshl_b32 s60, s33, 19")
    a("s_lshr_b32 s51, s34, 1")
    a("s_lshl_b32 s51, s51, 11")
    a("s_add_u32 s50, s60, s51")
    a("s_lshl_b32 s51, s57, 7")
    a("s_add_u32 s50, s50, s51")
    a("s_add_u32 s51, s50, 32768")
    a("s_add_u32 s52, s50, 65536")
    a("s_add_u32 s53, s50, 98304")
    a("v_lshlrev_b32 v26, 5, v18")
    a("v_add_u32 v26, %d, v26" % LNX)
    a("v_lshl_add_u32 v27, v16, 3, v26")
    a("s_mov_b64 s[24:25], s[%d:%d]" % (PWS, PWS + 1))
    a("s_add_u32 s26, s60, 0x80000")
    a("s_mov_b32 s27, 0x20000")
    a("s_mov_b32 s54, 0xffff0000")
    F0S = P.get("f0shift", 7)
    a("s_lshl_b32 s92, s36, %d" % F0S)
    a("s_lshl2_add_u32 s92, s32, s92")
    a("s_mov_b32 s3, 0x3f803f80")
    a("v_mov_b32 v116, s3")
    a("s_max_u32 s61, s33, 1")
    a("s_sub_u32 s61, s61, 1")
    a("s_lshl_b32 s59, s61, %d" % (5 + F0S))
    a("s_add_u32 s59, s59, %d" % (30 << F0S))
    a("s_lshl_b32 s3, s33, %d" % (5 + F0S))
    a("s_lshl_b32 s48, s32, %d" % (3 + F0S))
    a("s_add_u32 s3, s3, s48")
    a("v_and_b32 v21, 3, v17")
    a("v_lshlrev_b32 v21, 2, v21")
    a("v_lshrrev_b32 v20, 2, v17")
    a("v_lshl_add_u32 v20, v20, %d, v21" % F0S)
    a("v_and_b32 v21, %d, v20" % ((1 << F0S) + 12))
    a("v_add_u32 v20, s3, v20")
    a("v_add_u32 v21, s59, v21")
    a("v_cmp_gt_u32 vcc, 32, v17")
    a("v_mov_b32 v22, %d" % OOB)
    a("v_lshlrev_b32 v15, 4, v17")
    a("v_cndmask_b32 v254, v21, v20, vcc")
    a("v_cndmask_b32 v121, v22, v25, vcc")
    a("v_cndmask_b32 v122, v25, v22, vcc")

    def g1_setup_w():
        def krow(dst, rho, t1):
            a("v_and_b32 v%d, 35, v%d" % (dst, rho))
            a("v_bfe_u32 v%d, v%d, 2, 2" % (t1, rho))
            a("v_lshl_or_b32 v%d, v%d, 3, v%d" % (dst, t1, dst))
            a("v_bfe_u32 v%d, v%d, 4, 1" % (t1, rho))
            a("v_lshl_or_b32 v%d, v%d, 2, v%d" % (dst, t1, dst))
        a("s_mul_i32 s56, s32, 192")
        a("s_lshl_b32 s59, s34, 6")
        a("s_movk_i32 s40, 4682")
        a("s_movk_i32 s41, 5462")
        a("s_movk_i32 s62, 7168")
        a("s_movk_i32 s63, 6144")
        a("s_mul_i32 s48, s57, 14")
        def gu_off(dst, imm):
            a("v_mul_u32_u24 v21, s40, v20")
            a("v_lshrrev_b32 v21, 16, v21")
            a("v_mul_u32_u24 v22, 14, v21")
            a("v_sub_u32 v22, v20, v22")
            a("v_add_u32 v22, s48, v22")
            a("v_lshrrev_b32 v23, 1, v22")
            a("v_xor_b32 v23, v23, v22")
            a("v_and_b32 v23, 1, v23")
            a("v_mul_u32_u24 v23, 3, v23")
            a("v_xor_b32 v22, v22, v23")
            krow(24, 21, 23)
            a("s_sub_u32 s3, s58, %d" % imm)
            a("v_lshl_add_u32 v22, v22, 4, s3")
            a("v_mad_u32_u24 v%d, v24, s62, v22" % dst)
        def qkv_off(dst, imm):
            a("v_mul_u32_u24 v21, s41, v20")
            a("v_lshrrev_b32 v21, 16, v21")
            a("v_mul_u32_u24 v22, 12, v21")
            a("v_sub_u32 v22, v20, v22")
            a("v_lshrrev_b32 v23, 1, v21")
            a("v_and_b32 v23, 2, v23")
            a("v_xor_b32 v22, v22, v23")
            a("v_lshrrev_b32 v25, 2, v22")
            a("v_and_b32 v22, 3, v22")
            a("s_sub_u32 s3, s59, %d" % imm)
            a("v_lshl_add_u32 v22, v22, 4, s3")
            a("v_lshl_add_u32 v22, v25, 11, v22")
            krow(24, 21, 23)
            a("v_mad_u32_u24 v%d, v24, s63, v22" % dst)
        for q in range(3):
            a("s_add_u32 s3, s56, %d" % (64 * q))
            a("v_add_u32 v20, s3, v17")
            gu_off(8 + q, 1024 * q)
            qkv_off(11 + q, 1024 * q)
        a("s_and_b32 s35, s32, 1")
        a("s_lshl_b32 s3, s35, 6")
        a("s_add_u32 s3, s3, 768")
        a("v_add_u32 v20, s3, v17")
        gu_off(14, 0)
        a("s_mul_i32 s43, s32, 3072")
        a("s_add_u32 s44, s43, %d" % UP)
        a("s_add_u32 s45, s43, %d" % QKV)
        a("s_lshr_b32 s46, s32, 1")
        a("s_mul_i32 s46, s46, %d" % UP)
        a("s_lshl_b32 s3, s35, 10")
        a("s_add_u32 s46, s46, s3")
        a("s_add_u32 s46, s46, 12288")
        srd(a, 8, PG, 0, 1024 * 7168)
        srd(a, 12, PU, 0, 1024 * 7168)
        srd(a, 16, PQKV, 0, 1024 * 6144)
        a("s_cmp_lt_u32 s32, 2")
        a("s_cselect_b64 s[20:21], s[%d:%d], s[%d:%d]" % (PG, PG + 1, PU, PU + 1))
        a("s_mov_b32 s22, %d" % (1024 * 7168))
        a("s_mov_b32 s23, 0x20000")
    def g1_setup_r():
        a("v_lshrrev_b32 v18, 2, v17")
        a("v_and_b32 v19, 3, v17")
        a("v_lshlrev_b32 v19, 3, v19")
        a("s_movk_i32 s3, 224")
        a("v_and_b32 v20, 16, v15")
        a("v_and_b32 v21, 2, v17")
        a("v_lshl_add_u32 v20, v21, 2, v20")
        a("v_mad_u32_u24 v1, v18, s3, v20")
        a("s_movk_i32 s3, 192")
        a("v_mad_u32_u24 v2, v18, s3, v19")
        a("v_add_u32 v2, %d, v2" % QKV)
        a("v_and_b32 v19, 16, v17")
        a("v_lshlrev_b32 v19, 1, v19")
        a("v_xor_b32 v20, 32, v19")
        a("v_add_u32 v3, v2, v20")
        a("v_add_u32 v2, v2, v19")
        a("s_cmp_eq_u32 s35, 1")
        a("s_cselect_b64 vcc, -1, 0")
        a("v_cndmask_b32 v4, v2, v3, vcc")
        a("s_lshr_b32 s3, s32, 1")
        a("s_lshl_b32 s3, s3, 6")
        a("s_add_u32 s3, s3, 64")
        a("v_add_u32 v4, s3, v4")
        a("s_mov_b32 s62, %d" % SLOT)
        a("s_mov_b32 s63, %d" % ((-2 * SLOT) & 0xffffffff))
        srd(a, 28, PWS, ACT_OFF, ACT_BYTES)
    def tau_ops():
        return ["s_add_u32 s81, s36, s80", "s_and_b32 s81, s81, 15", "s_mul_i32 s38, s81, 458752", "s_mul_i32 s39, s81, 393216"]
    def xoff_ops():
        return ["s_lshl_b32 s40, s81, 15", "s_add_u32 s42, s40, s61", "s_add_u32 s40, s40, s60", "s_add_u32 s41, s40, 4096"]
    def wdma_ops(tag):
        o = []
        for (mreg, sd, vb, so) in ((43, 8, 8, 38), (44, 12, 8, 38), (45, 16, 11, 39)):
            o.append("s_add_u32 m0, s37, s%d" % mreg)
            for q in range(3):
                o.append((tag, "buffer_load_dwordx4 v%d, s[%d:%d], s%d offen offset:%d lds" % (vb + q, sd, sd + 3, so, 1024 * q)))
        o.append("s_add_u32 m0, s37, s46")
        o.append((tag, "buffer_load_dwordx4 v14, s[20:23], s38 offen lds"))
        return o
    def xld_ops(buf, tag):
        o = []
        for f in range(8):
            o.append((tag, "buffer_load_dwordx4 %s, v15, s[24:27], s%d offen offset:%d %s" % (ar(XB(buf, f // 2, f % 2), 4), 40 + f // 4, 1024 * (f % 4), XSC)))
        for kh in range(2):
            o.append((tag, "buffer_load_dwordx4 %s, v15, s[24:27], s42 offen offset:%d %s" % (ar(XB(buf, 4, kh), 4), 1024 * kh, XSC)))
        return o

    g1_setup_w()
    a("s_mov_b32 s36, 0"); a("s_mov_b32 s37, 0")
    W0POS = P.get("w0pos", 1)
    al = Weave(P.get("w0_every", 14), tau_ops() + wdma_ops("W0") if W0POS == 2 else [], P.get("w0_skip", 0))

    vwait("x")
    stamp()
    X = 48
    for r in range(16):
        c1 = "0" if r < 2 else "v%d" % (112 + 2 * (r % 2))
        c2 = "0" if r < 2 else "v%d" % (113 + 2 * (r % 2))
        al("v_dot2_f32_bf16 v%d, v%d, v116, %s" % (112 + 2 * (r % 2), LX + r, c1))
        al("v_dot2_f32_bf16 v%d, v%d, v%d, %s" % (113 + 2 * (r % 2), LX + r, LX + r, c2))
    al("s_nop 2")
    al("v_pk_add_f32 v[112:113], v[112:113], v[114:115]")
    for m in ("quad_perm:[1,0,3,2]", "quad_perm:[2,3,0,1]", "row_half_mirror"):
        al("s_nop 0" if m != "quad_perm:[1,0,3,2]" else "s_nop 1")
        for v in (112, 113):
            al("v_add_f32_dpp v%d, v%d, v%d %s row_mask:0xf bank_mask:0xf" % (v, v, v, m))
    al("ds_write_b64 v27, v[112:113]")
    def unpack(r):
        al("v_lshlrev_b32 v%d, 16, v%d" % (X + 2 * r, LX + r))
        al("v_and_b32 v%d, s54, v%d" % (X + 2 * r + 1, LX + r))
    for r in range(8): unpack(r)
    al("s_waitcnt lgkmcnt(0)")
    al("s_barrier")
    al("ds_read_b128 v[80:83], v26")
    al("ds_read_b128 v[84:87], v26 offset:16")
    for r in range(8, 16): unpack(r)
    al("s_waitcnt lgkmcnt(0)")
    al("v_pk_add_f32 v[80:81], v[80:81], v[82:83]")
    al("v_pk_add_f32 v[84:85], v[84:85], v[86:87]")
    al("v_pk_add_f32 v[80:81], v[80:81], v[84:85]")
    al("v_mul_f32 v88, 0x3a800000, v80")
    al("v_mul_f32 v81, 0x3a800000, v81")
    al("v_fma_f32 v81, -v88, v88, v81")
    al("v_max_f32 v81, 0, v81")
    al("v_cvt_pk_bf16_f32 v88, v88, v81")
    al("v_and_b32 v81, s54, v88")
    al("v_lshlrev_b32 v88, 16, v88")
    al("v_add_f32 v81, 0x3727c5ac, v81")
    al("v_cvt_pk_bf16_f32 v81, v81, v81")
    al("v_and_b32 v81, s54, v81")
    al("v_sqrt_f32 v81, v81")
    al("v_sub_f32 v88, 0, v88")
    al("v_cvt_pk_bf16_f32 v81, v81, v81")
    al("v_and_b32 v81, s54, v81")
    al("v_rcp_f32 v90, v81")
    al("v_mov_b32 v89, v88")
    al("v_mov_b32 v91, v90")
    for u in range(4):
        R = range(4 * u, 4 * u + 4)
        for r in R: al("v_pk_add_f32 %s, %s, v[88:89]" % (vr(X + 2 * r, 2), vr(X + 2 * r, 2)))
        for r in R: al("v_cvt_pk_bf16_f32 v%d, v%d, v%d" % (LX + r, X + 2 * r, X + 2 * r + 1))
        for r in R: unpack(r)
        for r in R: al("v_pk_mul_f32 %s, %s, v[90:91]" % (vr(X + 2 * r, 2), vr(X + 2 * r, 2)))
        for r in R: al("v_cvt_pk_bf16_f32 v%d, v%d, v%d" % (LX + r, X + 2 * r, X + 2 * r + 1))
        V("xs", "buffer_store_dwordx4 %s, v28, s[24:27], s%d offen %s" % (vr(LX + 4 * u, 4), 50 + u, SC))
    al.flush()
    stamp()

    if P.get("t_early", 2) < 2 and P.get("t1pos", 0) == 0:
        V("t", "buffer_load_dword v29, v30, s[88:91], s94 offen %s" % P.get("t1fl", ""))
        for o in ["s_add_u32 s94, s94, s95", "s_cmp_ge_u32 s94, s90", "s_cselect_b32 s3, s90, 0", "s_sub_u32 s94, s94, s3"]: a(o)
    a("s_lshl_b32 s3, s32, 13")
    a("s_add_u32 s60, s60, s3")
    a("s_lshl_b32 s61, s61, 19")
    a("s_add_u32 s61, s61, %d" % (3 * 8192 + 3 * 2048))
    for o in xoff_ops(): E(o)
    a("v_mov_b32 v27, v121"); a("v_mov_b32 v28, v122")
    g1_setup_r()
    av = Weave(P.get("w0_every", 5), tau_ops() + wdma_ops("W0") if W0POS == 0 else [])
    SP, SMT, SNT = 66, 67, 70
    av("s_bfe_u32 s%d, s2, 0x10001" % SP)
    av("s_and_b32 s%d, s2, 1" % SMT); av("s_bfe_u32 s3, s2, 0x20003"); av("s_lshl2_add_u32 s%d, s%d, s3" % (SMT, SMT))
    av("s_lshr_b32 s%d, s2, 5" % SNT)
    park = {}
    def parkv(key, v):
        park[key] = PARK + len(park)
        assert park[key] < 224
        av("v_accvgpr_write_b32 a%d, v%d" % (park[key], v))
    unp = lambda key, v: "v_accvgpr_read_b32 v%d, a%d" % (v, park[key])
    av("s_lshl_b32 s48, s%d, 2" % SP); av("s_xor_b32 s48, s48, 4"); av("s_lshl_b32 s49, s%d, 8" % SNT); av("s_lshl_b32 s50, s32, 15"); av("s_add_u32 s50, s50, s49")
    av("v_lshrrev_b32 v20, 4, v17"); av("v_bfe_u32 v21, v17, 1, 3"); av("v_xor_b32 v21, s48, v21"); av("v_xor_b32 v21, v21, v20")
    av("v_and_b32 v22, 16, v15"); av("v_lshl_add_u32 v23, v20, 11, v22")
    av("v_lshl_add_u32 v16, v21, 5, v23"); av("v_add_u32 v16, s50, v16")
    av("s_lshl_b32 s51, s32, 16"); av("s_add_u32 s51, s51, s49"); av("s_lshl_b32 s3, s%d, 7" % SP); av("s_add_u32 s51, s51, s3")
    av("v_bfe_u32 v21, v17, 1, 2"); av("v_xor_b32 v21, v21, v20"); av("v_lshrrev_b32 v23, 3, v17")
    av("v_lshl_add_u32 v22, v23, 11, v22"); av("v_lshl_add_u32 v22, v21, 5, v22"); av("v_add_u32 v22, s51, v22")
    av("v_mov_b32 v30, v22")
    av("v_lshrrev_b32 v20, 2, v17"); av("v_and_b32 v21, 3, v17"); av("v_lshlrev_b32 v21, 3, v21"); av("v_add_u32 v21, %d, v21" % R2)
    av("v_lshl_add_u32 v22, v20, 8, v21"); av("v_and_b32 v23, 7, v20"); av("v_lshl_add_u32 v22, v23, 5, v22")
    parkv("vw", 22)
    av("v_lshl_add_u32 v22, v20, 7, v21"); av("v_bfe_u32 v23, v17, 3, 2"); av("v_lshl_add_u32 v22, v23, 5, v22")
    parkv("vwo", 22)
    av("v_and_b32 v20, 15, v17"); av("v_lshlrev_b32 v22, 11, v20"); av("v_bfe_u32 v23, v17, 4, 1"); av("v_lshl_add_u32 v22, v23, 5, v22")
    av("v_lshrrev_b32 v21, 5, v17"); av("v_lshl_add_u32 v22, v21, 4, v22")
    parkv("vout", 22)
    av("v_lshlrev_b32 v22, 10, v23"); av("v_lshl_add_u32 v22, v21, 8, v22"); av("v_lshl_add_u32 v26, v20, 4, v22")
    av("v_bfe_u32 v22, v17, 2, 2"); av("v_lshlrev_b32 v22, 8, v22"); av("v_lshrrev_b32 v23, 4, v17"); av("v_lshl_add_u32 v22, v23, 6, v22")
    av("v_and_b32 v23, 3, v17"); av("v_lshl_add_u32 v22, v23, 1, v22"); av("v_add_u32 v22, 1024, v22")
    a("s_cmp_ge_u32 s32, 2"); a("s_cselect_b64 vcc, -1, 0"); a("s_cselect_b32 s71, 16, 2")
    av("v_cndmask_b32 v22, v15, v22, vcc")
    av("s_lshl_b32 s3, s35, 3"); av("s_add_u32 s3, s3, %d" % EX); av("v_add_u32 v22, s3, v22")
    parkv("vhx", 22)
    av.flush()
    a("v_lshlrev_b32 v24, 8, v17"); a("v_add_u32 v25, 16384, v24")
    a("s_lshr_b32 s7, s2, 3"); a("s_lshl1_add_u32 s7, s7, s32"); a("s_lshl_b32 s7, s7, 15")
    a("s_lshl_b32 s52, s%d, 7" % SP); a("s_add_u32 s7, s7, s52")
    a("s_mov_b64 s[4:5], s[%d:%d]" % (PWO, PWO + 1)); a("s_mov_b32 s6, %d" % (1024 * 2048 if not P.get("nowot") else 0))
    a("s_cmp_lt_u32 s32, 2"); a("s_cbranch_scc1 L_alt")
    a("v_lshlrev_b32 v24, 7, v17"); a("v_add_u32 v25, 8192, v24")
    a("s_lshl_b32 s7, s2, 14")
    a("s_mov_b64 s[4:5], s[%d:%d]" % (PX, PX + 1)); a("s_mov_b32 s6, %d" % (2048 * 2048 if not P.get("noxt") else 0))
    a.label("L_alt")
    a("s_cmp_eq_u32 s32, 3"); a("s_cselect_b32 s47, 99, %d" % (13 if not P.get("ab_noalt") else 64))
    a("v_xor_b32 v17, 0x80, v16"); a("v_add_u32 v17, %d, v17" % 7168)
    a("v_add_u32 v18, %d, v16" % 14336); a("v_add_u32 v19, %d, v17" % 14336)
    vwait("xs")
    a("v_add_u32 v7, 0x%x, v7" % NONCE_ADD)
    V("f", "buffer_store_dword v7, v6, s[84:87], s92 offen %s" % SC)
    a("v_readfirstlane_b32 s96, v7")
    stamp()
    p0 = ("p", "buffer_load_dword v255, v254, s[84:87], 0 offen %s" % SC)
    q1 = (tau_ops() + wdma_ops("W0") if W0POS == 1 else []) + ["s_mov_b32 s36, 1", "s_mov_b32 s37, %d" % SLOT] + tau_ops() + wdma_ops("W")
    W1POS = P.get("w1pos", 0)
    PB4 = P.get("poll_before", 0)
    if PB4:
        idx = [k for k, o in enumerate(q1) if isinstance(o, tuple)][-PB4]
        if q1[idx - 1].startswith("s_add_u32 m0") if isinstance(q1[idx - 1], str) else False: idx -= 1
        q1.insert(idx, p0)
    az = Weave(P.get("w1_every", 5), q1 if W1POS == 0 else [])
    for r in range(32, 254, 2): az("v_mov_b64 %s, 0" % vr(r, 2))
    az.flush()
    if not PB4: E(p0)
    a("s_lshl_b32 s72, s%d, 19" % SMT); a("s_add_u32 s72, s72, s51"); a("s_bfe_u32 s3, s2, 0x10002"); a("s_add_u32 s3, s3, s32")
    a("s_lshl_b32 s3, s3, 16"); a("s_add_u32 s72, s72, s3")
    a("s_lshl_b32 s56, s32, 12"); a("s_add_u32 s56, s56, %d" % R2)
    a("s_lshl_b32 s48, s33, 1"); a("s_lshr_b32 s3, s32, 1"); a("s_add_u32 s48, s48, s3"); a("s_mul_i32 s48, s48, %d" % ACT_MT)
    a("s_lshl_b32 s3, s35, 12"); a("s_add_u32 s48, s48, s3")
    a("s_mul_i32 s73, s34, 7"); a("s_lshr_b32 s73, s73, 1"); a("s_lshl_b32 s73, s73, 13"); a("s_add_u32 s73, s73, s48")
    a("s_lshl_b32 s3, s57, 9"); a("s_add_u32 s73, s73, s3")
    a("s_mul_i32 s74, s57, %d" % (8192 - 1024)); a("s_add_u32 s74, s74, 512"); a("s_add_u32 s74, s74, s73")
    a("s_add_u32 s75, s34, 112"); a("s_lshl_b32 s75, s75, 13"); a("s_add_u32 s75, s75, s48")
    a("s_lshl2_add_u32 s92, s33, s32"); a("s_lshl_b32 s92, s92, 7"); a("s_lshl2_add_u32 s92, s34, s92")
    FP = P.get("fpad", 1)
    a("s_add_u32 s35, s92, %d" % F1O)
    if FP: a("s_lshl_b32 s92, s92, 5")
    a("s_add_u32 s92, s92, %d" % (F1H if not FP else 131072))
    a("s_lshl2_add_u32 s58, s%d, s32" % SMT); a("s_lshl_b32 s58, s58, 7")
    a("s_add_u32 s59, s58, %d" % F1O)
    if FP: a("s_lshl_b32 s58, s58, 5")
    a("s_add_u32 s58, s58, %d" % (F1H if not FP else 131072))
    a("s_or_b32 s33, s33, s32")
    a("s_lshr_b32 s3, s32, 1"); a("s_lshl1_add_u32 s57, s%d, s3" % SMT); a("s_mul_i32 s57, s57, %d" % ACT_MT)
    a("s_and_b32 s3, s32, 1"); a("s_lshl_b32 s3, s3, 12"); a("s_add_u32 s57, s57, s3")
    a("s_mov_b32 s50, 0xbfb8aa3b"); a("s_mov_b32 s51, 0xbfb8aa3b"); a("s_mov_b32 s52, 1.0"); a("s_mov_b32 s53, 1.0")

    stamp()
    check_flags(255, 254, "0", "p", "L_f0")
    stamp()
    for o in xld_ops(0, "X0"): E(o)
    xlast = ["s_add_u32 s40, s80, 15", "s_and_b32 s40, s40, 15", "s_lshl_b32 s40, s40, 15", "s_add_u32 s40, s40, s60", "s_add_u32 s41, s40, 4096"] + xld_ops(2, "XL")[:8]
    if P.get("xl_pos", 1) == 0:
        for o in xlast: E(o)
    if W1POS == 1:
        for o in q1: E(o)
    a("v_mov_b64 v[254:255], 0")
    for r in range(0, 100, 4): a("%s %s, v[48:51], v[48:51], 0" % (MF, ar(r, 4)))

    blocks = []
    for p in range(7): blocks += [("gu", p, 0), ("gu", p, 1)]
    blocks += [("q", s) for s in range(6)]
    def wreads(b, dst, ab=0):
        o = []
        for kh in range(2):
            for s2 in range(2):
                d = ar(dst(kh) + 2 * s2, 2)
                if b[0] == "gu":
                    o.append("ds_read_b64_tr_b16 %s, v%d offset:%d" % (d, ab + 1, b[2] * UP + (32 * kh + 16 * s2) * 224 + 32 * b[1]))
                elif b[0] == "q":
                    o.append("ds_read_b64_tr_b16 %s, v%d offset:%d" % (d, ab + 2 + b[1] % 2, (32 * kh + 16 * s2) * 192 + 64 * (b[1] // 2)))
                else:
                    o.append("ds_read_b64_tr_b16 %s, v%d offset:%d" % (d, ab + 4, (32 * kh + 16 * s2) * 192))
        return o
    def mfmas(b, ring, buf):
        o = []
        for m in range(4):
            for kh in range(2):
                w, x = ar(WR(ring, kh), 4), ar(XB(buf, m, kh), 4)
                c = vr(accGU(b[1], b[2], m), 4) if b[0] == "gu" else ar(accQ(b[1], m), 4)
                if b[0] == "q" and b[1] >= 4: w, x = x, w
                o.append("%s %s, %s, %s, %s" % (MF, c, w, x, c))
        return o
    def halo_mf(buf):
        return ["%s %s, %s, %s, %s" % (MF, ar(HACC, 4), ar(HW(kh), 4), ar(XB(buf, 4, kh), 4), ar(HACC, 4)) for kh in range(2)]

    vwait("X0")
    a("s_barrier")
    stamp()
    for bi in range(3):
        for o in wreads(blocks[bi], lambda kh: WR(bi % 4, kh)): a(o)
    if P.get("xl_pos", 1) == 1:
        for o in xlast: E(o)
    if P.get("xl_pos", 1) == 2:
        for o in ["s_add_u32 s48, s80, 15", "s_and_b32 s48, s48, 15", "s_lshl_b32 s48, s48, 15", "s_add_u32 s48, s48, s60"]: a(o)
    if P.get("t_early", 2) < 2 and P.get("t1pos", 0) == 1:
        V("t", "buffer_load_dword v29, v27, s[88:91], s94 offen %s" % P.get("t1fl", ""))
        V("t", "buffer_load_dword v29, v28, s[88:91], s94 offen %s" % P.get("t1fl", ""))
        for o in ["s_add_u32 s94, s94, s95", "s_cmp_ge_u32 s94, s90", "s_cselect_b32 s3, s90, 0", "s_sub_u32 s94, s94, s3"]: a(o)
    a("s_cmp_eq_u32 s32, 3"); a("s_cselect_b32 s95, %d, s95" % ((-128 * 2048) & 0xffffffff))

    HRB, HMB = 9, 13
    def step(buf, misc, loop=None):
        lg = Cnt([0] * 4 + [1] * 4 + [2] * 4)
        SPC, V0 = P.get("vspace", 5.4), P.get("vstart", 5)
        place = {}
        nv = 0
        tgt = []
        for o in misc:
            if isinstance(o, tuple):
                g = int(V0 + nv * SPC) | 1
                if g // 8 >= HRB: g += 8
                tgt.append(g)
                if P.get("vweight", 0): nv += (1.55 if "s[16:19]" in o[1] else (1.1 if o[1].endswith("lds") else 0.77))
                else: nv += (P.get("xl_w", 0.4) if "s49" in o[1] else 1)
            else: tgt.append(None)
        nxt = None
        for k in range(len(misc) - 1, -1, -1):
            if tgt[k] is not None: nxt = tgt[k]
            elif nxt is not None:
                nxt -= 1; tgt[k] = nxt
        last = max(t for t in tgt if t is not None)
        for k in range(len(misc)):
            if tgt[k] is None:
                last += 1; tgt[k] = last
        for k in range(1, len(misc)):
            if tgt[k] < tgt[k - 1]: tgt[k] = tgt[k - 1]
        assert min(tgt) >= 0 and max(tgt) < 17 * 8, (min(tgt), max(tgt))
        for k, o in enumerate(misc): place.setdefault((tgt[k] // 8, tgt[k] % 8), []).append(o)
        for bi in range(20):
            mf = mfmas(blocks[bi], bi % 4, buf)
            fill = {}
            w = lg.need(bi)
            if w is not None: a("s_waitcnt lgkmcnt(%d)" % w)
            rd = []
            if bi <= 16: rd = [(bi + 3, o) for o in wreads(blocks[bi + 3], lambda kh: WR((bi + 3) % 4, kh))]; gaps = [0, 2, 4, 6]
            elif bi == 18:
                rd = [(100, o) for o in wreads(blocks[0], lambda kh: WR(0, kh))] + [(101, o) for o in wreads(blocks[1], lambda kh: WR(1, kh))]
                gaps = list(range(8))
            elif bi == 19: rd = [(102, o) for o in wreads(blocks[2], lambda kh: WR(2, kh))]; gaps = [0, 2, 4, 6]
            if bi == HRB:
                hr = [("H", o) for o in wreads(("h",), HW)]
                rd = [x for pr in zip(rd, hr) for x in pr]; gaps = list(range(8))
            for (tag, o), g in zip(rd, gaps if rd else []):
                fill.setdefault(g, []).append(o); lg.issue(tag)
            for g in range(8):
                for o in place.get((bi, g), []): fill.setdefault(g, []).append(o)
            if bi == HMB:
                assert lg.need("H") is None
                mf += halo_mf(buf)
            if bi == 17:
                for k, r in enumerate((1, 2, 3, 4)):
                    fill.setdefault(k + 1, []).append("v_add_u32 v%d, s93, v%d" % (r, r))
                fill.setdefault(7, []).append(lambda: (vwait("X", lg0=True), a("s_barrier")))
                lg.clear()
                if P.get("itrace"):
                    fill[7] += ["s_memtime s[98:99]", "s_add_u32 m0, s36, 30", "s_waitcnt lgkmcnt(0)", "v_writelane_b32 v31, s98, m0"]
            if bi == 19 and loop:
                fill.setdefault(5, []).append("s_cmp_lt_u32 s36, 15")
                fill.setdefault(7, []).append("s_cbranch_scc1 %s" % loop)
            for i, m in enumerate(mf):
                a(m)
                for o in fill.get(i, []): E(o)
    slot_ops = ["s_add_u32 s37, s37, s62", "s_cmp_eq_u32 s37, %d" % (3 * SLOT), "s_cselect_b32 s37, 0, s37",
                "s_cmp_eq_u32 s37, s62", "s_cselect_b32 s93, s63, s62"]
    def std_misc(buf):
        t = [("t", "buffer_load_dword v29, v%d, s[88:91], s94 offen %s" % (27 + buf, P.get("tfl", "")))] + (["s_add_u32 s94, s94, s95", "s_cmp_ge_u32 s94, s90", "s_cselect_b32 s3, s90, 0", "s_sub_u32 s94, s94, s3"] if buf else [])
        if buf: t += ["s_cmp_eq_u32 s36, s47", "s_cselect_b64 s[88:89], s[4:5], s[88:89]", "s_cselect_b32 s90, s6, s90", "s_cselect_b32 s94, s7, s94",
                      "s_cselect_b64 vcc, -1, 0", "v_cndmask_b32 v27, v27, v24, vcc", "v_cndmask_b32 v28, v28, v25, vcc"]
        xl = xld_ops(buf ^ 1, "X")
        if P.get("xl_pos", 1) == 2:
            ex = [("X", o[1].replace("s40", "s49").replace("s41", "s49")) for o in xld_ops(2, "X")[4 * buf:4 * buf + 4]]
            pre = ["s_cmp_eq_u32 s36, 14", "s_cselect_b32 s49, s48, %d" % OOB] if buf == 0 else ["s_add_u32 s49, s49, 4096"]
            xl = xl + pre + ex
        return xoff_ops() + xl[:2] + ["s_add_u32 s36, s36, 1"] + tau_ops() + xl[2:4] + slot_ops[:3] + xl[4:6] + slot_ops[3:] + xl[6:] + wdma_ops("W") + t
    a(".p2align 6")
    a.label("L_g1")
    vm.q = ["W"] * 10 + ["t"]
    step(0, std_misc(0))
    step(1, std_misc(1), loop="L_g1")
    assert vm.q == ["W"] * 10 + ["t"], vm.q
    stamp()

    ND, NO = 14, 8
    NS = ND + NO
    VDW, VDO = 16, 30
    NRES = 5
    ROTD = P.get("rotd", 0)
    RREG = [4, 5, 6, 7, 36, 37, 55]
    OLOC = {14: R2 + 32768, 15: R2 + 49152, 16: R2, 21: 0, 18: 16384, 17: 106496, 19: 122880, 20: 139264}
    FR = NS - NRES
    def wops(sg, force=False):
        if sg >= FR and not force: return []
        u = sg % 4
        o = []
        if sg < ND:
            if ROTD: o.append("s_lshl3_add_u32 s38, s%d, s%d" % (RREG[sg % 7], 44 + sg // 7))
            else: o.append("s_add_u32 s38, s%d, %d" % (44 + sg // 7, (sg % 7) * 131072))
            o.append("s_add_u32 m0, s56, %d" % (u * 16384))
            for q in range(4):
                o.append(("W%d" % sg, "buffer_load_dwordx4 v%d, s[8:11], s38 offen offset:%d lds" % (VDW + q, 1024 * q)))
        else:
            o.append("s_add_u32 m0, s56, %d" % ((OLOC[sg] - R2) & 0xffffffff))
            for q in range(4):
                o.append("s_mov_b32 s38, %d" % ((sg - ND) * 262144 + 15360 * q))
                o.append(("W%d" % sg, "buffer_load_dwordx4 v%d, s[12:15], s38 offen offset:%d lds" % (VDO, 1024 * q)))
        return o
    QI = {(0, 0): 0, (1, 0): 1, (1, 1): 2, (0, 1): 3}
    accD = lambda m, b: 64 + QI[(m >> 1, b >> 2)] * 32 + ((b & 3) * 2 + (m & 1)) * 4
    accO = lambda m, b: 192 + (b * 2 + m) * 4
    VW, VWO, VX = 32, 20, 52
    NXB = 6
    NX0 = P.get("nx0", 2)
    XB2 = lambda sg, f: (lambda u: (u * 32 if u < 4 else 192 + (u - 4) * 32) + f * 4)(sg % NXB)
    WR2 = lambda b, kh: 128 + b * 8 + kh * 4
    def xops(sg):
        if sg >= NS: return []
        o = []
        if sg < ND:
            o.append("s_add_u32 s39, s%d, %s" % (60 if sg < NX0 else 46 + sg // 7, ("s%d" % RREG[sg % 7]) if ROTD else str((sg % 7) * 16384)))
            for kh in range(2):
                for m in range(4):
                    o.append(("X%d" % sg, "buffer_load_dwordx4 %s, v%d, s[28:31], s39 offen offset:%d %s" % (ar(XB2(sg, kh * 4 + m), 4), VX + kh + 4 * (m >> 1), 1024 * (m & 1), XSC)))
        else:
            o.append("s_add_u32 s39, s57, %d" % (112 * 8192 + (sg - ND) * 32768))
            for kq in range(4):
                for m in range(2):
                    o.append(("X%d" % sg, "buffer_load_dwordx4 %s, v%d, s[28:31], s39 offen offset:%d %s" % (ar(XB2(sg, kq * 2 + m), 4), VX + kq, 1024 * m, XSC)))
        return o
    def wreads2(sg, b, rb=None):
        if rb is None: rb = b
        o = []
        u = sg % 4
        for kh in range(2):
            for s2 in range(2):
                if sg < ND: v, off = VW + b, u * 16384 + (32 * kh + 16 * s2) * 256
                else:
                    L = OLOC[sg]
                    vb, base = (40, 0) if L < R2 else ((VWO, R2) if L < 106496 else (44, 106496))
                    v, off = vb + b % 4, L - base + (64 * (b // 4) + 32 * kh + 16 * s2) * 128
                o.append("ds_read_b64_tr_b16 %s, v%d offset:%d" % (ar(WR2(rb, kh) + 2 * s2, 2), v, off))
        return o
    def mfmas2(sg, b, rb):
        o = []
        for m in ((2, 3, 0, 1) if sg < ND else (0, 1)):
            for kh in range(2):
                if sg < ND: c, x = accD(m, b), XB2(sg, kh * 4 + m)
                else: c, x = accO(m, b % 4), XB2(sg, (2 * (b // 4) + kh) * 2 + m)
                z = (sg == 0 and kh == 0) or (sg == ND and b < 4 and kh == 0)
                o.append("%s %s, %s, %s, %s" % (MF, vr(c, 4), ar(WR2(rb, kh), 4), ar(x, 4), "0" if z else vr(c, 4)))
        return o
    order = [(0, 0), (1, 0), (2, 0), (3, 0), (0, 1), (1, 1), (2, 1), (3, 1)]
    for b in range(4, 20): order += [(b, 0), (b, 1)]
    NPOS = len(order)
    done_pos = {b: max(i for i, (bb, s) in enumerate(order) if bb == b) for b in range(20)}
    AB2 = 7
    R0, R1, R2_ = accGU(0, 1, 0), accGU(2, 1, 0), accGU(4, 1, 0)
    Qf = lambda m: R0 + 12 + 4 * m
    Kf = lambda m: R0 + 28 + 4 * (m + 1)
    VV = lambda f, m: R1 + 10 * f + 2 * (m + 1)
    Pf = lambda m: R1 + 20 + 4 * m
    Sp = lambda m: R2_ + 8 * m
    Sc = lambda m: R2_ + 8 * m + 4
    TT = lambda m: R2_ + 32 + 4 * m
    def cvt_acc(dst, src, t):
        return ["v_accvgpr_read_b32 v%d, a%d" % (t + r, src + r) for r in range(4)] + \
               ["v_cvt_pk_bf16_f32 v%d, v%d, v%d" % (dst, t, t + 1), "v_cvt_pk_bf16_f32 v%d, v%d, v%d" % (dst + 1, t + 2, t + 3)]
    masks = ["v_lshrrev_b32 v13, 4, v15", "v_and_b32 v14, 15, v13", "v_and_b32 v27, 1, v13", "v_lshrrev_b32 v20, 4, v13", "v_lshl_add_u32 v20, v20, 2, v27",
             "v_cmp_le_u32 s[40:41], v20, v14", "v_add_u32 v20, 2, v20", "v_cmp_le_u32 s[42:43], v20, v14", "v_cmp_ne_u32 s[62:63], 0, v27",
             "v_lshlrev_b32 v27, 4, v27", "s_cmp_eq_u32 s33, 0", "s_cselect_b64 s[88:89], -1, 0", "s_andn2_b64 s[90:91], s[88:89], s[42:43]",
             "s_andn2_b64 s[88:89], s[88:89], s[40:41]", "s_mov_b32 s48, 0x3e3504f3", "s_mov_b32 s49, 0x3fb8aa3b",
             "s_lshl_b32 s3, s32, 11", "s_add_u32 s3, s3, %d" % EX, "v_add_u32 v25, s3, v15", unp("vhx", 24),
             "v_lshlrev_b32 v14, %d, v14" % (7 if FP else 2), "v_and_b32 v13, 31, v13", "v_lshlrev_b32 v13, 2, v13",
             "s_and_b32 s3, s2, 7", "s_xor_b32 s61, s3, %d" % P.get("g0", 1), "s_xor_b32 s3, s61, 1",
             "s_mul_i32 s44, s61, %d" % (7 * 131072), "s_mul_i32 s45, s3, %d" % (7 * 131072),
             "s_mul_i32 s46, s61, %d" % (7 * 16384), "s_add_u32 s46, s46, s57", "s_mul_i32 s47, s3, %d" % (7 * 16384), "s_add_u32 s47, s47, s57",
             "s_mov_b32 s60, s46", "s_lshl_b32 s61, s61, 9", "s_add_u32 s34, s61, s58", "s_lshl_b32 s3, s3, 9", "s_add_u32 s58, s58, s3", "v_and_b32 v5, 384, v14"]
    if ROTD:
        if ROTD == 1: masks += ["s_and_b32 s3, s%d, 3" % SMT, "s_lshl1_add_u32 s3, s3, s%d" % SNT]
        else: masks += ["s_mov_b32 s3, s%d" % SNT]
        masks += ["s_cmp_ge_u32 s3, 7", "s_cselect_b32 s4, 7, 0", "s_sub_u32 s3, s3, s4", "s_lshl_b32 s4, s3, 14"]
        for k in range(1, 7):
            masks += ["s_add_u32 s%d, s%d, 16384" % (RREG[k], RREG[k - 1]), "s_cmp_eq_u32 s%d, %d" % (RREG[k], 7 * 16384), "s_cselect_b32 s%d, 0, s%d" % (RREG[k], RREG[k])]
    early = ["v_add_u32 v%d, s63, v%d" % (AB2 + r, r) for r in (1, 2, 3, 4)] + xoff_ops()[:2] + xld_ops(2, "X")[8:] + masks
    ctouch = []
    if P.get("ctouch2", 1):
        def getpc():
            a("s_getpc_b64 s[16:17]"); a.label("L_pc2")
        ctouch = [getpc, "s_mov_b32 s18, L_end-L_pc2", "s_bfe_u32 s3, s2, 0x30003", "s_lshl2_add_u32 s3, s3, s32", "s_lshl_b32 s3, s3, 11", "v_and_b32 v20, 0xf0, v15",
                  "v_lshl_add_u32 v20, v20, 3, s3", ("t", "buffer_load_dword v29, v20, s[16:19], 0 offen")]
        early = early[:4] + ctouch + early[4:]
    memq = ["s_mov_b64 s[8:9], s[%d:%d]" % (PD, PD + 1), "s_mov_b32 s10, %d" % (3584 * 2048)] + wops(0) + wops(1) + \
        ["s_mov_b64 s[12:13], s[%d:%d]" % (PWO, PWO + 1), "s_mov_b32 s14, %d" % (1024 * 2048)] + wops(19, True) + wops(20, True)
    stream = []
    def pkA(p): return [x for m in range(4) for h in (0, 2) for x in (
        "v_pk_mul_f32 %s, %s, %s" % (vr(accGU(p, 1, m) + h, 2), vr(accGU(p, 0, m) + h, 2), vr(accGU(p, 1, m) + h, 2)),)] + \
        ["v_pk_mul_f32 %s, %s, s[50:51]" % (vr(accGU(p, 0, m) + h, 2), vr(accGU(p, 0, m) + h, 2)) for m in range(4) for h in (0, 2)]
    def pkB(p): return ["v_pk_add_f32 %s, %s, s[52:53]" % (vr(accGU(p, 0, m) + h, 2), vr(accGU(p, 0, m) + h, 2)) for m in range(4) for h in (0, 2)]
    def pkC(p): return ["v_pk_mul_f32 %s, %s, %s" % (vr(accGU(p, 1, m) + h, 2), vr(accGU(p, 1, m) + h, 2), vr(accGU(p, 0, m) + h, 2)) for m in range(4) for h in (0, 2)]
    def fin(p):
        o = []
        sreg = 73 + (p & 1)
        for m in range(4):
            U = accGU(p, 1, m)
            D = accGU(p, 0, m & ~1) + 2 * (m & 1)
            o += ["v_cvt_pk_bf16_f32 v%d, v%d, v%d" % (D, U, U + 1), "v_cvt_pk_bf16_f32 v%d, v%d, v%d" % (D + 1, U + 2, U + 3)]
        for m in (0, 2):
            g0 = accGU(p, 0, m)
            o += ["v_permlane16_swap_b32 v%d, v%d" % (g0, g0 + 2), "v_permlane16_swap_b32 v%d, v%d" % (g0 + 1, g0 + 3)]
            o.append(("hs", "buffer_store_dwordx4 %s, v26, s[28:31], s%d offen offset:%d %s" % (vr(g0, 4), sreg, 1024 * m, SC)))
        o.append("s_add_u32 s%d, s%d, 8192" % (sreg, sreg))
        return o
    rdy = lambda b: (done_pos[b] + 1) * 8 + 7
    for p in range(8):
        burst = (pkC(p - 1) if p > 0 else []) + (pkA(p) if p < 7 else [])
        stream.append((rdy(2 * p + 1) if p < 7 else 0, burst, True))
        tr1 = ["v_exp_f32 v%d, v%d" % (accGU(p, 0, 0) + r, accGU(p, 0, 0) + r) for r in range(16)] if p < 7 else []
        f = fin(p - 1) if p > 0 else []
        if p > 0 and (p - 1) % 2 == 0 and p - 1 < 6: pass
        mix = []
        while tr1 or f:
            if f: mix.append(f.pop(0))
            if tr1: mix.append(tr1.pop(0))
        for o in mix: stream.append((0, [o], False))
        if p < 7:
            stream.append((0, pkB(p), True))
            for r in range(16): stream.append((0, ["v_rcp_f32 v%d, v%d" % (accGU(p, 0, 0) + r, accGU(p, 0, 0) + r)], False))
    stream.append((0, ["HDONE"], False))
    for s_, F in ((0, Qf), (1, Qf), (2, Kf), (3, Kf)):
        for m in (3, 2, 1, 0):
            for k, o in enumerate(cvt_acc(F(m) + 2 * (s_ & 1), accQ(s_, m), TT(m))):
                stream.append((rdy(14 + s_), [o], False))
    for m in (3, 2, 1, 0):
        for o in cvt_acc(VV(0, m), accQ(4, m), TT(m)): stream.append((rdy(18), [o], False))
    def hflag():
        vwait("hs")
        V("f", "buffer_store_dword v7, v6, s[84:87], s92 offen %s" % SC)
    GL = P.get("gaplen", 20)
    MSP = P.get("mem_space", 5)
    HDLY = P.get("hflag_delay", 99)
    BP = P.get("bar_pos", 28)
    lg = Cnt([0] * 4 + [1] * 4 + [2] * 4)
    HR = {3: 0, 15: 1}; HM = {7: 0, 19: 2}
    isv = lambda o: isinstance(o, str) and (o.startswith("v_") or o.startswith("s_nop"))
    front = []
    lastmem = -99; hdone = None; hsent = False; est = 0
    w = lg.need(0); a("s_waitcnt lgkmcnt(%d)" % w)
    for pos, (bi, st_) in enumerate(order):
        mf = mfmas(blocks[bi], pos % 4, 2 * st_)
        if P.get("tstamp") and pos in (4, 8, 16, 24, 32): stamp()
        if pos % 4 == 0: sys.stderr.write("pos %d: stream left %d est %d\n" % (pos, len(stream), est))
        rd = []
        if pos + 3 < NPOS:
            b3, s3 = order[pos + 3]
            rd = [(pos + 3, o) for o in wreads(blocks[b3], lambda kh: WR((pos + 3) % 4, kh), AB2 * s3)]
        gaps = [0, 2, 4, 6]
        if pos in HR:
            hr = [("H", o) for o in wreads(("h",), HW, AB2 * HR[pos])]
            rd = [x for pr in zip(rd, hr) for x in pr]; gaps = list(range(8))
        rdat = dict(zip(gaps, rd))
        if pos in HM:
            assert lg.need("H") is None
            if HM[pos]: vwait("X")
            mf += halo_mf(HM[pos])
        for i, m in enumerate(mf):
            g = pos * 8 + i
            a(m)
            t = 4
            if i in rdat:
                a(rdat[i][1]); lg.issue(rdat[i][0]); t += 8
            if i == len(mf) - 1 and pos + 1 < NPOS:
                w = lg.need(pos + 1)
                if pos == 0:
                    vwait("W"); a("s_barrier")
                if pos == BP:
                    assert not memq and BP > done_pos[13]
                    a("s_barrier"); memq += wops(2) + wops(3) + wops(21, True)
                if w is not None: a("s_waitcnt lgkmcnt(%d)" % w); t += 4
            if early:
                while early and t < 16:
                    o = early.pop(0); E(o); t = (max(t, 8) if isv(o) else t) + cost(o)
            else:
                q = front if front else memq
                if q and not isinstance(q[0], tuple) and t <= 12 - 4 * bool(stream and stream[0][0] <= g):
                    E(q.pop(0)); t += 4
                elif q and isinstance(q[0], tuple) and t == 4 and g - lastmem >= (MSP if q is memq else P.get("st_space", 4)):
                    E(q.pop(0)); t += 8; lastmem = g
                if hdone is not None and not hsent and not front and g >= hdone + HDLY and t == 4:
                    hflag(); hsent = True; t += 12
                if g == P.get("tpoll_gap", 305):
                    V("p", "buffer_load_dword v12, v5, s[84:87], s34 offen %s" % SC); t += 8
                t = max(t, 8)
                while stream and t < GL - 3 and stream[0][0] <= g:
                    r_, ops, burst = stream.pop(0)
                    if ops == ["HDONE"]: hdone = g; continue
                    if not isv(ops[0]): front.append(ops[0]); continue
                    for o in ops: E(o); t += cost(o)
                    if burst: t = max(t, 29 + 4 * len(ops))
            est += max(16, t)
    sys.stderr.write("tail: %d stream ops left after last MFMA, est %d, hdone %s hsent %s memq %d\n" % (len(stream), est, hdone, hsent, len(memq)))
    stamp()
    for o in front: E(o)
    a("s_nop 1")
    for r_, ops, burst in stream:
        for o in ops:
            if o != "HDONE": E(o)
    HPOS = P.get("hflag_pos", 0)
    if not hsent and HPOS == 0: hflag(); hsent = True
    M4 = range(4)
    a("s_nop 1")
    for m in (1, 2, 3):
        a("%s %s, %s, %s, 0" % (MF, vr(Sc(m), 4), vr(Kf(m), 4), vr(Qf(m), 4)))
        a("%s %s, %s, %s, 0" % (MF, vr(Sp(m), 4), vr(Kf(m - 1), 4), vr(Qf(m), 4)))
    a("%s %s, %s, %s, 0" % (MF, vr(Sc(0), 4), vr(Kf(0), 4), vr(Qf(0), 4)))
    for o in cvt_acc(2, HACC, 20): a(o)
    a("v_add_u32 v4, s71, v24"); a("v_add_u32 v10, s71, v4"); a("v_add_u32 v8, s71, v10")
    for o in cvt_acc(VV(1, 3), accQ(5, 3), TT(0)): a(o)
    a("ds_write_b16 v24, v2"); a("ds_write_b16_d16_hi v4, v2"); a("ds_write_b16 v10, v3"); a("ds_write_b16_d16_hi v8, v3")
    a("s_cmp_eq_u32 s32, 3")
    a("s_cbranch_scc1 L_noexp")
    a("ds_write_b128 v25, %s offset:2048" % vr(Kf(3), 4))
    a("ds_write_b64 v25, %s offset:3072" % vr(VV(0, 3), 2))
    a("ds_write_b64 v25, %s offset:3080" % vr(VV(1, 3), 2))
    a.label("L_noexp")
    if not hsent: hflag()
    PPOS = P.get("poll_pos", 9)
    poll1 = lambda: V("p", "buffer_load_dword v12, v5, s[84:87], s34 offen %s" % SC)
    if PPOS == 0: poll1()
    for m in (2, 1):
        for o in cvt_acc(VV(1, m), accQ(5, m), TT(m)): a(o)
    a("s_waitcnt lgkmcnt(0)")
    a("s_barrier")
    a("ds_read_b128 %s, v25" % vr(Kf(-1), 4))
    a("ds_read_b64 %s, v25 offset:1024" % vr(VV(0, -1), 2))
    a("ds_read_b64 %s, v25 offset:1032" % vr(VV(1, -1), 2))
    for o in cvt_acc(VV(1, 0), accQ(5, 0), TT(0)): a(o)
    a("s_and_b32 s3, s2, 4"); a("s_lshl_b32 s3, s3, 9")
    a("v_add_u32 v%d, s3, v15" % VX)
    for q in range(1, 4): a("v_add_u32 v%d, %d, v%d" % (VX + q, 8192 * q, VX))
    for q in range(2): a("v_xor_b32 v%d, 0x800, v%d" % (VX + 4 + q, VX + q))
    a("v_mov_b32 v11, 0xce6e6b28")
    a("s_waitcnt lgkmcnt(0)")
    a("%s %s, %s, %s, 0" % (MF, vr(Sp(0), 4), vr(Kf(-1), 4), vr(Qf(0), 4)))
    stamp()
    if PPOS == 1: poll1()
    LATE = [17, 18]
    dq = list(memq)
    aw = Weave(P.get("dma_every", 10), dq)
    CKP = P.get("check_pos", 0)
    BLK = P.get("blocking", 0)
    def hcheck():
        if BLK:
            aw.flush()
            check_flags(12, 5, "s34", "p", "L_f1")
            stamp()
            dq.extend([o for sg in range(NX0) for o in xops(sg)])
            aw.n = P.get("x_every", 4)
            for _ in range(P.get("x_burst", 4)): aw.one()
            return
        vwait("p")
        a("v_cmp_ne_u32 vcc, s96, v12")
        a("s_nop 0")
        a("s_cmp_eq_u64 vcc, 0")
        a("s_cselect_b32 s60, s46, %d" % OOB)
        stamp()
        dq.extend([o for sg in range(NX0) for o in xops(sg)])
        for _ in range(P.get("x_burst", 3)): aw.one()
    if CKP == 0: hcheck()
    A_ = lambda m: TT(m)
    B_ = lambda m: TT(m) + 1
    X_ = lambda m: TT(m) + 2
    Y_ = lambda m: TT(m) + 3
    MR = (3, 2, 1, 0)
    for m in MR:
        for S_ in (Sc, Sp):
            aw("v_cndmask_b32 v%d, v%d, v%d, s[62:63]" % (S_(m), S_(m), S_(m) + 1))
            aw("v_cndmask_b32 v%d, v%d, v%d, s[62:63]" % (S_(m) + 2, S_(m) + 2, S_(m) + 3))
    for m in MR:
        aw("v_cndmask_b32 v%d, v%d, v%d, s[40:41]" % (A_(m), Sp(m), Sc(m)))
        aw("v_cndmask_b32 v%d, v%d, v%d, s[42:43]" % (B_(m), Sp(m) + 2, Sc(m) + 2))
    if CKP == 1: hcheck()
    def rnd():
        for m in MR: aw("v_cvt_pk_bf16_f32 v%d, v%d, v%d" % (X_(m), A_(m), B_(m)))
        for m in MR:
            aw("v_lshlrev_b32 v%d, 16, v%d" % (A_(m), X_(m)))
            aw("v_and_b32 v%d, s54, v%d" % (B_(m), X_(m)))
    rnd()
    for m in MR: aw("v_pk_mul_f32 %s, %s, s[48:49] op_sel_hi:[1,0]" % (vr(A_(m), 2), vr(A_(m), 2)))
    rnd()
    aw("v_cndmask_b32 v%d, v%d, v11, s[88:89]" % (A_(0), A_(0)))
    aw("v_cndmask_b32 v%d, v%d, v11, s[90:91]" % (B_(0), B_(0)))
    if CKP == 2: hcheck()
    if PPOS == 2: poll1()
    fillq = [unp("vw", VW)] + ["v_xor_b32 v%d, %d, v%d" % (VW + b, 32 * b, VW) for b in range(1, 8)] + \
            [unp("vwo", VWO)] + ["v_xor_b32 v%d, %d, v%d" % (VWO + b, 32 * b, VWO) for b in range(1, 4)] + \
            ["v_subrev_u32 v%d, %d, v%d" % (40 + b, R2, VWO + b) for b in range(4)] + \
            ["v_add_u32 v%d, %d, v%d" % (44 + b, 106496 - R2, VWO + b) for b in range(4)] + \
            [unp("vout", 2)]
    def pad(n):
        for _ in range(n):
            aw(fillq.pop(0) if fillq else "s_nop 0")
    def reduce(op):
        for m in MR: aw("%s v%d, v%d, v%d" % (op, X_(m), A_(m), B_(m)))
        for sw in ("v_permlane16_swap_b32", "v_permlane32_swap_b32"):
            for m in MR: aw("v_mov_b32 v%d, v%d" % (Y_(m), X_(m)))
            pad(2)
            for m in MR: aw("%s v%d, v%d" % (sw, X_(m), Y_(m)))
            pad(1)
            for m in MR: aw("%s v%d, v%d, v%d" % (op, X_(m), X_(m), Y_(m)))
    reduce("v_max_f32")
    if CKP == 3: hcheck()
    if PPOS == 3: poll1()
    for m in MR: aw("v_pk_add_f32 %s, %s, %s op_sel_hi:[1,0] neg_lo:[0,1] neg_hi:[0,1]" % (vr(A_(m), 2), vr(A_(m), 2), vr(X_(m), 2)))
    for m in MR: aw("v_pk_mul_f32 %s, %s, s[48:49] op_sel:[0,1]" % (vr(A_(m), 2), vr(A_(m), 2)))
    for m in MR:
        aw("v_exp_f32 v%d, v%d" % (A_(m), A_(m)))
        aw("v_exp_f32 v%d, v%d" % (B_(m), B_(m)))
    pad(1)
    reduce("v_add_f32")
    if CKP == 4: hcheck()
    if PPOS == 4: poll1()
    for m in MR: aw("v_rcp_f32 v%d, v%d" % (X_(m), X_(m)))
    pad(1)
    for m in MR: aw("v_pk_mul_f32 %s, %s, %s op_sel_hi:[1,0]" % (vr(A_(m), 2), vr(A_(m), 2), vr(X_(m), 2)))
    for m in MR: aw("v_cvt_pk_bf16_f32 v%d, v%d, v%d" % (X_(m), A_(m), B_(m)))
    for m in MR:
        aw("v_and_b32 v%d, 0xffff, v%d" % (A_(m), X_(m)))
        aw("v_lshrrev_b32 v%d, 16, v%d" % (B_(m), X_(m)))
    for m in MR:
        aw("v_lshlrev_b32 v%d, v27, v%d" % (A_(m), A_(m)))
        aw("v_lshlrev_b32 v%d, v27, v%d" % (B_(m), B_(m)))
    for m in MR:
        aw("v_cndmask_b32 v%d, v%d, 0, s[40:41]" % (Pf(m), A_(m)))
        aw("v_cndmask_b32 v%d, v%d, 0, s[42:43]" % (Pf(m) + 1, B_(m)))
        aw("v_cndmask_b32 v%d, 0, v%d, s[40:41]" % (Pf(m) + 2, A_(m)))
        aw("v_cndmask_b32 v%d, 0, v%d, s[42:43]" % (Pf(m) + 3, B_(m)))
    pad(max(2, len(fillq)))
    if CKP == 5: hcheck()
    sys.stderr.write("DMA queue left after softmax: %d\n" % len(dq))
    for m in MR:
        a("%s %s, %s, %s, 0" % (MF, vr(Sp(m), 4), vr(VV(0, m - 1), 4), vr(Pf(m), 4)))
        a("%s %s, %s, %s, 0" % (MF, vr(Sc(m), 4), vr(VV(1, m - 1), 4), vr(Pf(m), 4)))
    stamp()

    lg = Cnt()
    for b in range(4):
        for o in wreads2(0, b): a(o); lg.issue((0, b))
    for m in M4:
        for h in range(4):
            a("v_cvt_pk_bf16_f32 v%d, v%d, v%d" % (240 + 4 * m + h, Sp(m) + 2 * h, Sp(m) + 2 * h + 1))
    aw.flush()
    if not BLK:
        vwait(*[t for t in vm.q if not t.startswith("X")])
        sv = list(vm.q)
        a("s_cmp_eq_u32 s60, s46")
        a("s_cbranch_scc1 L_early")
        a("s_mov_b32 s60, s46")
        poll1()
        check_flags(12, 5, "s34", "p", "L_f1")
        for sg in range(NX0):
            for o in xops(sg): E(o)
        assert vm.q == sv, (vm.q, sv)
        a.label("L_early")
    ostores = [("os", "buffer_store_dwordx4 %s, v15, s[28:31], s75 offen offset:%d %s" % (vr(240 + 4 * m, 4), 1024 * m, SC)) for m in M4]
    OSS = P.get("os_stage", 1)
    if OSS < 0:
        for o in ostores: E(o)
    srd(a, 16, PX, 0, 2048 * 2048)
    srd(a, 20, PWS, PART_OFF, PART_BYTES)
    srd(a, 24, POUT, 0, 2048 * 2048)
    a("s_add_u32 s73, s72, 32768")
    a("s_lshl2_add_u32 s74, s2, s32"); a("s_lshl_b32 s88, s74, 2"); a("s_add_u32 s88, s88, %d" % F2)
    a("s_lshl_b32 s74, s74, 14")
    a("v_and_b32 v14, 0x30, v15"); a("v_max_u32 v14, 16, v14"); a("v_lshlrev_b32 v14, 1, v14"); a("v_xor_b32 v14, s88, v14")
    a("s_mov_b32 s92, s35")
    vwait("X0")
    stamp()

    AH = P.get("ahead", 1)
    Hs = [(sg, c) for sg in range(ND - AH) for c in (0, 1)] + [(sg, 0) for sg in range(ND - AH, ND)] + [(sg, 1) for sg in range(ND - AH, ND)] + \
         [(sg, c) for sg in range(ND, NS) for c in (0, 1)]
    lastuse = {sg: max(i for i, h in enumerate(Hs) if h[0] == sg) // 2 for sg in range(NS)}
    firstuse = {sg: min(i for i, h in enumerate(Hs) if h[0] == sg) // 2 for sg in range(NS)}
    wsched = {}
    for w in range(4, FR):
        wsched.setdefault(lastuse[w - 4], []).append(w)
        assert lastuse[w - 4] < firstuse[w] - 1 or w >= ND, (w, lastuse[w - 4], firstuse[w])
        assert lastuse[w - 4] < firstuse[w] - 1
    LASTBAR = FR - 2
    q01 = max(i for i, h in enumerate(Hs) if h[0] < ND and h[1] == 0)
    isV = lambda x: isinstance(x, tuple)
    isval = lambda x: isinstance(x, str) and x.startswith("v_")
    def stage(sg, h1=(), h2=(), pre=None, valu=None):
        last = sg == NS - 1
        if P.get("sstamp") and sg >= 1: stamp()
        if pre: pre()
        NG = 64 if sg < ND else 32
        H = NG // 2
        h1 = list(h1); h2 = [o for w in wsched.get(sg, []) for o in wops(w)] + list(h2)
        blk = lambda k, b: (Hs[2 * k + b // 4][0], 4 * Hs[2 * k + b // 4][1] + b % 4)
        r1 = [((sg, b), o) for b in range(4, 8) for o in wreads2(*blk(sg, b), b)]
        r2 = [] if last else [((sg + 1, b), o) for b in range(4) for o in wreads2(*blk(sg + 1, b), b)]
        bar = sg <= LASTBAR
        plan = {g: [] for g in range(NG)}
        load = {g: 4 for g in range(NG)}
        WG_ = {H // 2 - 1: (sg, 3), NG - 1: (sg + 1, 1)}
        if not bar: WG_.update({H - 1: (sg, 5), 3 * H // 2 - 1: (sg, 7)})
        for g in WG_: load[g] += 4
        if bar: load[H - 1] += 8
        def place(lo, hi, rds, rhi, h):
            n = len(rds)
            for k in range(n):
                g = lo + k * (rhi - lo + 1) // n
                plan[g].append(("r",) + rds[k]); load[g] += 8
            nv = sum(isV(x) for x in h)
            pos = [None] * len(h); vi = 0; prev = lo
            for k, x in enumerate(h):
                if isV(x):
                    t = lo + int((vi + 0.5) * (hi - lo + 1) / nv); vi += 1
                    c = sorted(range(max(prev, t - 1), min(hi, t + 1) + 1), key=lambda g: (load[g], abs(g - t))) or [hi]
                    pos[k] = prev = c[0]; load[c[0]] += 8
            prev = lo
            for k, x in enumerate(h):
                if pos[k] is None:
                    nxt = next((pos[j] for j in range(k + 1, len(h)) if pos[j] is not None), hi)
                    if isval(x) and nxt > prev: nxt -= 1
                    c = [g for g in range(prev, nxt + 1) if load[g] <= 12]
                    g = c[0] if c else min(range(prev, max(prev, nxt) + 1), key=lambda g: load[g])
                    pos[k] = g; load[g] = max(load[g], 8 if isval(x) else 0) + 4
                pos[k] = max(pos[k], prev); prev = pos[k]
                plan[pos[k]].append(("o", x))
        place(0, H - 1, r1, (H - 7 if NG == 64 else H - 4) if bar else H - 1, h1)
        place(H, NG - 1, r2, NG - 1, h2)
        if valu:
            for k, x in enumerate(valu[0]): plan[valu[1] + k * (NG - valu[1]) // len(valu[0])].append(("o", x))
        sys.stderr.write("st%d:%d " % (sg, sum(max(16, v) for v in load.values())))
        g = 0
        for b in range(8):
            w = lg.need((sg, b))
            if w is not None: a("s_waitcnt lgkmcnt(%d)" % w)
            for mf in mfmas2(*blk(sg, b), b):
                a(mf)
                for x in plan[g]:
                    if x[0] == "r": a(x[2]); lg.issue(x[1])
                if g in WG_:
                    w = lg.need(WG_[g])
                    if w is not None: a("s_waitcnt lgkmcnt(%d)" % w)
                for x in plan[g]:
                    if x[0] != "r": E(x[1])
                if g == H - 1 and bar:
                    vwait("W%d" % Hs[2 * sg + 2][0], "W%d" % Hs[2 * sg + 3][0], lg0=True)
                    a("s_barrier")
                    lg.clear()
                if g == H - 2: vwait("X%d" % Hs[2 * sg + 1][0])
                if g == NG - 2 and not last: vwait("X%d" % Hs[2 * sg + 2][0])
                g += 1
    def oflag():
        vwait("os")
        V("f", "buffer_store_dword v7, v6, s[84:87], s92 offen %s" % SC)
    EPV = 224
    eload = ["v_lshlrev_b32 v4, %d, v15" % (F0S - 2), "s_or_b32 s3, s2, s32", "s_cselect_b32 s3, %d, 0" % OOB] + \
          [("e", "buffer_load_dwordx4 %s, v4, s[84:87], s3 offen offset:%d %s" % (vr(EPV + 4 * k, 4), k << F0S, SC)) for k in range(4)]
    def epoch():
        a("s_or_b32 s3, s2, s32")
        a("s_cbranch_scc1 L_noep")
        a("s_mov_b32 s97, 0")
        a.label("L_ep")
        for k in range(16): a("v_xor_b32 v%d, s96, v%d" % (EPV + k, EPV + k))
        for k in range(1, 16): a("v_or_b32 v%d, v%d, v%d" % (EPV, EPV, EPV + k))
        a("v_cmp_ne_u32 vcc, 0, v%d" % EPV)
        a("s_cbranch_vccz L_epok")
        for k in range(4): a("buffer_load_dwordx4 %s, v4, s[84:87], 0 offen offset:%d %s" % (vr(EPV + 4 * k, 4), k << F0S, SC))
        a("s_add_u32 s97, s97, 1")
        a("s_waitcnt vmcnt(0)")
        a("s_cmp_lt_u32 s97, 0x80000")
        a("s_cbranch_scc1 L_ep")
        a.label("L_epok")
        a("s_mov_b32 s3, %d" % EPOCH)
        a("buffer_store_dword v7, v6, s[84:87], s3 offen %s" % SC)
        a.label("L_noep")

    PK, XU, XRES, TE = 64, 112, 240, 224
    KEEP = 160
    sends = []
    for qd in range(3):
        for k in range(4):
            R = 64 + 32 * qd + 8 * k
            sends.append((["s_add_u32 s75, s74, %d" % (4096 * qd)] if k == 0 else []) +
                         [("v_cvt_pk_bf16_f32 v%d, v%d, v%d" % (R + r, R + 2 * r, R + 2 * r + 1)) for r in range(4)] +
                         [("S%d" % (qd // 2), "buffer_store_dwordx4 %s, v15, s[20:23], s75 offen offset:%d %s" % (vr(R, 4), 1024 * k, SC))])
    xres = [("R", "buffer_load_dwordx4 %s, v2, s[16:19], s%d offen offset:%d" % (vr(XRES + 4 * (2 * m + bp), 4), 72 + m, 64 * bp)) for m in range(2) for bp in range(2)]
    parts = ["s_xor_b32 s%d, s74, 0x%x" % (40 + qd, (dx << 16) + 4096 * qd) for qd, dx in enumerate((2, 6, 4))]
    for k in range(4):
        parts += [("P%d" % k, "buffer_load_dwordx4 %s, v15, s[20:23], s%d offen offset:%d %s" % (vr(PK + 16 * qd + 4 * k, 4), 40 + qd, 1024 * k, SC)) for qd in range(3)]
    SPA, SPB = P.get("send_a", [4, 2, 2]), P.get("send_b", [0, 0, 2, 2])
    FA, PA, CA = P.get("ex", [16.5, 18.5, 20])
    XRS = P.get("xres_stage", 12)
    def take(n):
        r = [o for x in sends[:n] for o in x]; del sends[:n]; return r
    def sflag():
        vwait("S0", "S1")
        V("f", "buffer_store_dword v7, v6, s[84:87], s88 offen %s" % SC)
    def round4(R, T):
        return ["v_cvt_pk_bf16_f32 v%d, v%d, v%d" % (T, R, R + 1), "v_cvt_pk_bf16_f32 v%d, v%d, v%d" % (T + 1, R + 2, R + 3),
                "v_lshlrev_b32 v%d, 16, v%d" % (R, T), "v_and_b32 v%d, s54, v%d" % (R + 1, T),
                "v_lshlrev_b32 v%d, 16, v%d" % (R + 2, T + 1), "v_and_b32 v%d, s54, v%d" % (R + 3, T + 1)]
    xpart = [lambda: vwait("R"), "v_mov_b32 v8, 0x3f80", "v_mov_b32 v9, 1.0"]
    for g4 in range(4):
        R = XRES + 4 * g4
        xpart += ["v_permlane16_swap_b32 v%d, v%d" % (R, R + 2), "v_permlane16_swap_b32 v%d, v%d" % (R + 1, R + 3)]
    for m in range(2):
        for bp in range(2):
            for be in range(2):
                for h in range(2):
                    src = XRES + 4 * (2 * m + bp) + 2 * be + h
                    d = XU + ((2 * bp + be) * 2 + m) * 4 + 2 * h
                    xpart += ["v_lshlrev_b32 v%d, 16, v%d" % (d, src), "v_and_b32 v%d, s54, v%d" % (d + 1, src)]
    DBL = P.get("xdouble", [0, 5, 8])
    xs = {}; nx = NX0
    for sg in range(NS):
        n = 2 if sg in DBL else (0 if sg in P.get("xskip", []) else 1)
        xs[sg] = [x for x in range(nx, min(nx + n, NS)) if x < NXB or lastuse[x - NXB] < sg]; nx += len(xs[sg])
        assert all(firstuse[x] > sg for x in xs[sg])
    assert nx == NS
    ck2 = min(sg for sg in xs if 7 in xs[sg]); cko = min(sg for sg in xs if ND in xs[sg])
    LST = P.get("late_stages", [2, 3])
    SP7 = P.get("spread7")
    x7 = []
    if SP7:
        x7 = xops(7); x7s = x7[0].replace("s39", "s95"); x7 = [(t, o.replace("s39", "s95")) for t, o in x7[1:]]
        ck2 = SP7[0]
    for sg in range(NS):
        if SP7: xs[sg] = [x for x in xs[sg] if x != 7]
        h1 = xops(xs[sg][0]) if xs[sg] else []
        h2 = xops(xs[sg][1]) if len(xs[sg]) > 1 else []
        if SP7 and sg >= SP7[0] and x7:
            h2 = h2 + ([x7s] if sg == SP7[0] else []) + x7[:SP7[1]]; x7 = x7[SP7[1]:]
        pre = []
        if sg in LST: h2 = h2 + wops(LATE[LST.index(sg)], True)
        if sg == 1: h2 = h2 + eload
        if sg == OSS: h2 = h2 + ostores
        if sg == max(2, OSS + 2): pre.append(oflag)
        if sg == ck2 - 2: h2 = h2 + [("p", "buffer_load_dword v12, v5, s[84:87], s58 offen %s" % SC)]
        if sg == ck2: pre += [lambda: check_flags(12, 5, "s58", "p", "L_f1b")]
        if sg == 4: pre += [lambda: vwait("e"), epoch]
        if sg == cko - 2: h2 = h2 + [("p", "buffer_load_dword v3, v13, s[84:87], s59 offen %s" % SC)]
        if sg == cko: pre.append(lambda: check_flags(3, 13, "s59", "p", "L_f2"))
        for hh, lst in ((2 * sg, h1), (2 * sg + 1, h2)):
            k = hh - q01 - 1
            t_ = take(SPA[k]) if 0 <= k < len(SPA) else []
            k = hh - 2 * ND
            if 0 <= k < len(SPB): t_ += take(SPB[k])
            if P.get("send_first", 1): lst[:0] = t_
            else: lst += t_
        if sg == XRS: h2 = h2 + xres
        if sg == PA: h2 = h2 + [("p", "buffer_load_dword v3, v14, s[84:87], 0 offen %s" % SC)]
        if sg - 0.5 == PA: h1 = h1 + [("p", "buffer_load_dword v3, v14, s[84:87], 0 offen %s" % SC)]
        if sg == FA: pre.append(sflag)
        if sg + 0.5 == FA: h2 = [sflag] + h2
        if sg == CA:
            pre.append(lambda: check_flags(3, 14, "0", "p", "L_f3")); h1 = h1 + parts[:9]; h2 = parts[9:] + h2
        if sg == ND: stamp()
        wv = None
        if sg == P.get("xpart_stage", 18): wv = (xpart, 0)
        stage(sg, h1, h2, pre=(lambda pre=pre: [f() for f in pre]), valu=wv)
    sys.stderr.write("\n")
    assert not sends
    stamp()
    if CA == NS:
        check_flags(3, 14, "0", "p", "L_f3")
        for o in parts: E(o)
    def dots(k):
        vwait("P%d" % k)
        for qd in range(3):
            for r in range(8):
                a("v_dot2_f32_bf16 v%d, v%d, v%d, v%d" % (KEEP + 8 * k + r, PK + 16 * qd + 4 * k + r // 2, 8 + (r & 1), KEEP + 8 * k + r))
    MIM = P.get("mimic", "s")
    if "s" in MIM:
        a("s_nop 7")
        for k in range(8):
            for x in round4(accO(0, 0) + 4 * k, 10 + 2 * (k % 2)): a(x)
    for bp in range(2):
        dots(2 * bp); dots(2 * bp + 1)
        o = 16 * bp
        H8 = range(0, 16, 2)
        if "y" in MIM:
            for k in range(4):
                for x in round4(KEEP + o + 4 * k, 10 + 2 * (k % 2)): a(x)
        for h in H8: a("v_pk_mul_f32 %s, %s, s[50:51]" % (vr(TE + o + h, 2), vr(KEEP + o + h, 2)))
        for r in range(16): a("v_exp_f32 v%d, v%d" % (TE + o + r, TE + o + r))
        for h in H8: a("v_pk_mul_f32 %s, %s, %s" % (vr(KEEP + o + h, 2), vr(KEEP + o + h, 2), vr(accO(0, 0) + o + h, 2)))
        for h in H8: a("v_pk_add_f32 %s, %s, s[52:53]" % (vr(TE + o + h, 2), vr(TE + o + h, 2)))
        for m in range(2):
            D = 32 + 4 * (2 * m + bp)
            offs = [o + (be * 2 + m) * 4 for be in range(2)]
            for f in offs:
                for r in range(4): a("v_rcp_f32 v%d, v%d" % (TE + f + r, TE + f + r))
            for f in offs:
                for h in (0, 2): a("v_pk_fma_f32 %s, %s, %s, %s" % (vr(KEEP + f + h, 2), vr(KEEP + f + h, 2), vr(TE + f + h, 2), vr(XU + f + h, 2)))
            for be, f in enumerate(offs):
                a("v_cvt_pk_bf16_f32 v%d, v%d, v%d" % (D + 2 * be, KEEP + f, KEEP + f + 1))
                a("v_cvt_pk_bf16_f32 v%d, v%d, v%d" % (D + 2 * be + 1, KEEP + f + 2, KEEP + f + 3))
            a("s_nop 0")
            a("v_permlane16_swap_b32 v%d, v%d" % (D, D + 2))
            a("v_permlane16_swap_b32 v%d, v%d" % (D + 1, D + 3))
            a("s_nop 0")
            a("buffer_store_dwordx4 %s, v2, s[24:27], s%d offen offset:%d %s" % (vr(D, 4), 72 + m, 64 * bp, P.get("outfl", "")))
    if probe is not None:
        stamp(); a("s_waitcnt vmcnt(0)"); stamp()
        a.label("L_probe")
        a("s_memrealtime s[4:5]"); a("s_waitcnt lgkmcnt(0)"); a("s_sub_u32 s4, s4, s98"); a("s_cmp_lt_u32 s4, 10000"); a("s_cbranch_scc1 L_probe")
    if prof:
        stamp(); a("s_waitcnt vmcnt(0)"); stamp()
        srd(a, 8, PWS, STAMP_OFF, 65536)
        a("s_lshl_b32 s3, s2, 8")
        a("v_lshl_add_u32 v8, v0, 2, s3")
        a("v_cmp_gt_u32 vcc, 64, v0")
        a("s_and_b64 exec, exec, vcc")
        a("s_cbranch_execz L_end")
        a("buffer_store_dword v31, v8, s[8:11], 0 offen")
    a.label("L_end")
    a("s_endpgm")
    desc(a, name, 256 + NAGPR, 100, 256)
    hdr = open("recurrent_scan__sliding_local_dilated__swiglu_ffn__prompt.s.ref").read().split("; Override launch")[0]
    if P.get("aslist", 1):
        hdr += "; @launch kernel=%s grid=(256,1,1) block=(256,1,1) lds=%d\n" % (name, LDS_BYTES)
    else:
        hdr += "; @launch grid=(256,1,1) block=(256,1,1) lds=%d\n" % LDS_BYTES
    return hdr + a.text()

if __name__ == "__main__":
    P = json.loads(sys.argv[2]) if len(sys.argv) > 2 else {}
    open(sys.argv[1], "w").write(gen(P))
```

```python
import sys, json
sys.path.insert(0, "dev")
from gen_common import *

MAIN = "recurrent_scan__sliding_local_dilated__swiglu_ffn__prompt_kernel"
SLOT = 40960
GATE, UP, QKV = 0, 14336, 28672
EX = 155648
LDS_BYTES = 163840
LNX = EX
R2 = SLOT
F0, F1H, F1O, F2, EPOCH = 0, 32768, 40960, 262144, 65536
NONCE_ADD = 0x6A09E667
OOB = 0x40000000
SC = "sc1"
MF = "v_mfma_f32_16x16x32_bf16"

class Cnt:
    def __init__(self, init=(), cap=15):
        self.q = list(init); self.cap = cap
    def issue(self, tag): self.q.append(tag)
    def need(self, *tags):
        idx = [i for i, t in enumerate(self.q) if t in tags]
        if not idx: return None
        last = max(idx)
        n = len(self.q) - 1 - last
        self.q = self.q[last + 1:]
        return min(n, self.cap)
    def clear(self): self.q = []

def cost(o):
    s = o[1] if isinstance(o, tuple) else o
    if callable(s): return 4
    if s.startswith(("v_exp", "v_rcp", "buffer_")): return 8
    return 4

def gen(P):
    a = Asm()
    name = MAIN
    prof, probe = P.get("prof"), P.get("probe")
    nst = [0]
    def stamp():
        if probe is not None:
            if nst[0] == probe:
                a("s_memrealtime s[98:99]"); a("s_waitcnt lgkmcnt(0)")
            nst[0] += 1
            return
        if not prof: return
        a("%s s[98:99]" % ("s_memtime" if prof == 2 else "s_memrealtime"))
        a("s_waitcnt lgkmcnt(0)")
        a("v_writelane_b32 v31, s98, %d" % nst[0])
        nst[0] += 1
    XSC = P.get("xsc", "sc1")
    ROT2 = P.get("g2_rot", 0)
    vm = Cnt(cap=63)
    def V(tag, s):
        vm.issue(tag)
        if s.endswith("lds") and a.lines[-1].strip().startswith("s_add_u32 m0"): a("s_nop 0")
        a(s)
    def E(o):
        if isinstance(o, tuple): V(*o)
        elif callable(o): o()
        else: a(o)
    def vwait(*tags, lg0=False):
        n = vm.need(*tags)
        parts = ([] if n is None else ["vmcnt(%d)" % n]) + (["lgkmcnt(0)"] if lg0 else [])
        if parts: a("s_waitcnt " + " ".join(parts))
    def check_flags(vreg, voff, soff, tag, label):
        vwait(tag)
        a("v_cmp_ne_u32 vcc, s96, v%d" % vreg)
        a("s_cbranch_vccz %s_ok" % label)
        a("s_mov_b32 s97, 0")
        a.label(label + "_spin")
        a("s_sleep 4")
        a("buffer_load_dword v%d, v%d, s[84:87], %s offen %s" % (vreg, voff, soff, SC))
        a("s_add_u32 s97, s97, 1")
        a("s_waitcnt vmcnt(0)")
        a("s_cmp_gt_u32 s97, 0x80000")
        a("s_cbranch_scc1 %s_ok" % label)
        a("v_cmp_ne_u32 vcc, s96, v%d" % vreg)
        a("s_cbranch_vccnz %s_spin" % label)
        a.label(label + "_ok")

    class Weave:
        def __init__(self, n, q, skip=0): self.n, self.c, self.q = n, -skip, q
        def __call__(self, t):
            a(t)
            if t.startswith("v_") and not t.startswith("v_mfma"):
                self.c += 1
                if self.c > 0 and self.c % self.n == 0: self.one()
        def one(self):
            while self.q:
                o = self.q.pop(0); E(o)
                if isinstance(o, tuple): break
        def flush(self):
            while self.q: self.one()

    accGU = lambda p, gu, m: 32 + ((p * 2 + gu) * 4 + m) * 4
    accQ = lambda s, m: (s * 4 + m) * 4
    HACC = 96
    XB = lambda buf, m, kh: (100 + buf * 40 + (m * 2 + kh) * 4) if buf < 2 else ((224 + (m * 2 + kh) * 4) if m < 4 else 172 + kh * 4)
    WR = lambda slot, kh: 180 + slot * 8 + kh * 4
    HW = lambda kh: 212 + kh * 4
    PARK = 220
    NAGPR = 256
    PX, PQKV, PWO, PG, PU, PD, POUT, PDBG, PWS = 64, 66, 68, 72, 74, 76, 78, 80, 82

    a.raw('.amdgcn_target "amdgcn-amd-amdhsa--gfx950"')
    kernel_header(a, name)
    a("s_cmp_ge_u32 s2, 256")
    a("s_cbranch_scc1 L_end")
    a("s_load_dwordx16 s[64:79], s[0:1], 0")
    a("s_load_dwordx4 s[80:83], s[0:1], 64")
    a("s_getpc_b64 s[4:5]")
    a.label("L_pc")
    a("v_and_b32 v17, 63, v0")
    a("s_mov_b32 s6, L_end-L_pc")
    a("s_mov_b32 s7, 0x20000")
    a("v_lshlrev_b32 v1, 7, v17")
    a("s_bfe_u32 s3, s2, 0x30003")
    a("s_lshl_b32 s3, s3, 13")
    V("c", "buffer_load_dword v29, v1, s[4:7], s3 offen")
    if prof: a("v_mov_b32 v31, 0")
    stamp()
    a("v_lshrrev_b32 v16, 6, v0")
    a("v_lshrrev_b32 v18, 3, v17")
    a("v_and_b32 v19, 7, v17")
    a("v_readfirstlane_b32 s32, v16")
    a("v_lshlrev_b32 v20, 11, v18")
    a("v_lshl_add_u32 v20, v16, 9, v20")
    a("v_lshl_add_u32 v20, v19, 4, v20")
    a("s_and_b32 s34, s2, 7")
    a("s_bfe_u32 s35, s2, 0x20003")
    a("s_lshl2_add_u32 s34, s34, s35")
    a("s_lshr_b32 s33, s2, 5")
    a("s_lshl_b32 s36, s33, 5")
    a("s_add_u32 s36, s36, s34")
    a("s_lshl_b32 s37, s36, 14")
    a("v_mov_b32 v6, 0")
    a("s_mov_b32 s50, %d" % (2048 * 2048))
    a("s_mov_b32 s51, 0x20000")
    a("s_waitcnt lgkmcnt(0)")
    a("s_mov_b64 s[48:49], s[%d:%d]" % (PX, PX + 1))
    LX = 32
    for u in range(4):
        V("x", "buffer_load_dwordx4 %s, v20, s[48:51], s37 offen offset:%d %s" % (vr(LX + 4 * u, 4), 128 * u, P.get("xfl", "")))
    srd(a, 84, PWS, FLAG_OFF, FLAG_BYTES)
    a("s_mov_b32 s3, %d" % EPOCH)
    V("ep", "buffer_load_dword v7, v6, s[84:87], s3 offen")
    stamp()
    if P.get("xrot", 1): a("s_and_b32 s80, s2, 7"); a("s_lshl_b32 s80, s80, 1")
    else: a("s_mov_b32 s80, 0")
    a("s_mov_b32 s81, s80")
    a("s_and_b32 s57, s34, 1")
    a("s_lshr_b32 s58, s34, 1")
    a("s_mul_i32 s58, s58, 448")
    a("s_cmp_eq_u32 s32, 1")
    a("s_cselect_b64 s[88:89], s[%d:%d], s[%d:%d]" % (PU, PU + 1, PG, PG + 1))
    a("s_cmp_eq_u32 s32, 3")
    a("s_cbranch_scc1 L_t3")
    a("s_mul_i32 s3, s57, 208")
    a("s_add_u32 s3, s3, s58")
    a("s_movk_i32 s92, 7168")
    a("s_movk_i32 s93, 118")
    a("s_cmp_eq_u32 s32, 2")
    a("s_cbranch_scc0 L_t01")
    a("s_mov_b64 s[88:89], s[%d:%d]" % (PQKV, PQKV + 1))
    a("s_lshl_b32 s3, s34, 6")
    a("s_movk_i32 s92, 6144")
    a("s_movk_i32 s93, 2048")
    a.label("L_t01")
    a("s_lshl_b32 s90, s92, 10")
    a("v_lshrrev_b32 v21, 2, v17")
    a("v_and_b32 v22, 3, v17")
    a("v_mul_u32_u24 v30, s92, v21")
    a("v_mul_u32_u24 v23, s93, v22")
    a("v_and_b32 v23, -4, v23")
    a("v_add3_u32 v30, v30, v23, s3")
    a("v_cmp_eq_u32 vcc, 3, v22")
    a("v_mov_b32 v23, %d" % OOB)
    a("s_lshl2_add_u32 s94, s80, s33")
    a("s_lshl_b32 s94, s94, 4")
    a("v_cndmask_b32 v30, v30, v23, vcc")
    a("v_mov_b32 v25, %s" % ("v30" if not P.get("now1") else str(OOB)))
    if P.get("noearly"): a("v_mov_b32 v30, %d" % OOB)
    a("s_mul_i32 s94, s94, s92")
    a("s_lshl_b32 s95, s92, 7")
    a("s_branch L_td")
    a.label("L_t3")
    a("s_mov_b64 s[88:89], s[%d:%d]" % (PD, PD + 1))
    a("v_lshlrev_b32 v30, 7, v17")
    a("s_bfe_u32 s3, s2, 0x20001")
    a("s_add_u32 s3, s3, 1")
    a("s_mul_i32 s90, s3, %d" % (896 * 2048))
    a("s_lshr_b32 s94, s2, 3")
    a("s_lshl_b32 s94, s94, 13")
    a("s_add_u32 s94, s94, s90")
    a("s_sub_u32 s94, s94, %d" % (128 * 2048))
    a("s_mov_b32 s95, 0")
    a("v_mov_b32 v25, v30")
    a("v_mov_b32 v30, %d" % OOB)
    if P.get("now2"): a("v_mov_b32 v25, %d" % OOB)
    a.label("L_td")
    a("s_mov_b32 s91, 0x20000")
    for k in range(P.get("t_early", 2)):
        V("t", "buffer_load_dword v29, v30, s[88:91], s94 offen %s" % P.get("t0fl", ""))
        for o in ["s_add_u32 s94, s94, s95", "s_cmp_ge_u32 s94, s90", "s_cselect_b32 s3, s90, 0", "s_sub_u32 s94, s94, s3"]: a(o)
    a("v_lshlrev_b32 v21, 17, v16")
    a("v_lshrrev_b32 v22, 2, v19")
    a("v_lshl_add_u32 v21, v22, 10, v21")
    a("v_and_b32 v22, 3, v19")
    a("v_lshl_add_u32 v21, v22, 8, v21")
    a("v_lshl_add_u32 v28, v18, 4, v21")
    a("s_lshl_b32 s60, s33, 19")
    a("s_lshr_b32 s51, s34, 1")
    a("s_lshl_b32 s51, s51, 11")
    a("s_add_u32 s50, s60, s51")
    a("s_lshl_b32 s51, s57, 7")
    a("s_add_u32 s50, s50, s51")
    a("s_add_u32 s51, s50, 32768")
    a("s_add_u32 s52, s50, 65536")
    a("s_add_u32 s53, s50, 98304")
    a("v_lshlrev_b32 v26, 5, v18")
    a("v_add_u32 v26, %d, v26" % LNX)
    a("v_lshl_add_u32 v27, v16, 3, v26")
    a("s_mov_b64 s[24:25], s[%d:%d]" % (PWS, PWS + 1))
    a("s_add_u32 s26, s60, 0x80000")
    a("s_mov_b32 s27, 0x20000")
    a("s_mov_b32 s54, 0xffff0000")
    F0S = P.get("f0shift", 7)
    a("s_lshl_b32 s92, s36, %d" % F0S)
    a("s_lshl2_add_u32 s92, s32, s92")
    a("s_mov_b32 s3, 0x3f803f80")
    a("v_mov_b32 v116, s3")
    a("s_max_u32 s61, s33, 1")
    a("s_sub_u32 s61, s61, 1")
    a("s_lshl_b32 s59, s61, %d" % (5 + F0S))
    a("s_add_u32 s59, s59, %d" % (30 << F0S))
    a("s_lshl_b32 s3, s33, %d" % (5 + F0S))
    a("s_lshl_b32 s48, s32, %d" % (3 + F0S))
    a("s_add_u32 s3, s3, s48")
    a("v_and_b32 v21, 3, v17")
    a("v_lshlrev_b32 v21, 2, v21")
    a("v_lshrrev_b32 v20, 2, v17")
    a("v_lshl_add_u32 v20, v20, %d, v21" % F0S)
    a("v_and_b32 v21, %d, v20" % ((1 << F0S) + 12))
    a("v_add_u32 v20, s3, v20")
    a("v_add_u32 v21, s59, v21")
    a("v_cmp_gt_u32 vcc, 32, v17")
    a("v_mov_b32 v22, %d" % OOB)
    a("v_lshlrev_b32 v15, 4, v17")
    a("v_cndmask_b32 v254, v21, v20, vcc")
    a("v_cndmask_b32 v121, v22, v25, vcc")
    a("v_cndmask_b32 v122, v25, v22, vcc")

    def g1_setup_w():
        def krow(dst, rho, t1):
            a("v_and_b32 v%d, 35, v%d" % (dst, rho))
            a("v_bfe_u32 v%d, v%d, 2, 2" % (t1, rho))
            a("v_lshl_or_b32 v%d, v%d, 3, v%d" % (dst, t1, dst))
            a("v_bfe_u32 v%d, v%d, 4, 1" % (t1, rho))
            a("v_lshl_or_b32 v%d, v%d, 2, v%d" % (dst, t1, dst))
        a("s_mul_i32 s56, s32, 192")
        a("s_lshl_b32 s59, s34, 6")
        a("s_movk_i32 s40, 4682")
        a("s_movk_i32 s41, 5462")
        a("s_movk_i32 s62, 7168")
        a("s_movk_i32 s63, 6144")
        a("s_mul_i32 s48, s57, 14")
        def gu_off(dst, imm):
            a("v_mul_u32_u24 v21, s40, v20")
            a("v_lshrrev_b32 v21, 16, v21")
            a("v_mul_u32_u24 v22, 14, v21")
            a("v_sub_u32 v22, v20, v22")
            a("v_add_u32 v22, s48, v22")
            a("v_lshrrev_b32 v23, 1, v22")
            a("v_xor_b32 v23, v23, v22")
            a("v_and_b32 v23, 1, v23")
            a("v_mul_u32_u24 v23, 3, v23")
            a("v_xor_b32 v22, v22, v23")
            krow(24, 21, 23)
            a("s_sub_u32 s3, s58, %d" % imm)
            a("v_lshl_add_u32 v22, v22, 4, s3")
            a("v_mad_u32_u24 v%d, v24, s62, v22" % dst)
        def qkv_off(dst, imm):
            a("v_mul_u32_u24 v21, s41, v20")
            a("v_lshrrev_b32 v21, 16, v21")
            a("v_mul_u32_u24 v22, 12, v21")
            a("v_sub_u32 v22, v20, v22")
            a("v_lshrrev_b32 v23, 1, v21")
            a("v_and_b32 v23, 2, v23")
            a("v_xor_b32 v22, v22, v23")
            a("v_lshrrev_b32 v25, 2, v22")
            a("v_and_b32 v22, 3, v22")
            a("s_sub_u32 s3, s59, %d" % imm)
            a("v_lshl_add_u32 v22, v22, 4, s3")
            a("v_lshl_add_u32 v22, v25, 11, v22")
            krow(24, 21, 23)
            a("v_mad_u32_u24 v%d, v24, s63, v22" % dst)
        for q in range(3):
            a("s_add_u32 s3, s56, %d" % (64 * q))
            a("v_add_u32 v20, s3, v17")
            gu_off(8 + q, 1024 * q)
            qkv_off(11 + q, 1024 * q)
        a("s_and_b32 s35, s32, 1")
        a("s_lshl_b32 s3, s35, 6")
        a("s_add_u32 s3, s3, 768")
        a("v_add_u32 v20, s3, v17")
        gu_off(14, 0)
        a("s_mul_i32 s43, s32, 3072")
        a("s_add_u32 s44, s43, %d" % UP)
        a("s_add_u32 s45, s43, %d" % QKV)
        a("s_lshr_b32 s46, s32, 1")
        a("s_mul_i32 s46, s46, %d" % UP)
        a("s_lshl_b32 s3, s35, 10")
        a("s_add_u32 s46, s46, s3")
        a("s_add_u32 s46, s46, 12288")
        srd(a, 8, PG, 0, 1024 * 7168)
        srd(a, 12, PU, 0, 1024 * 7168)
        srd(a, 16, PQKV, 0, 1024 * 6144)
        a("s_cmp_lt_u32 s32, 2")
        a("s_cselect_b64 s[20:21], s[%d:%d], s[%d:%d]" % (PG, PG + 1, PU, PU + 1))
        a("s_mov_b32 s22, %d" % (1024 * 7168))
        a("s_mov_b32 s23, 0x20000")
    def g1_setup_r():
        a("v_lshrrev_b32 v18, 2, v17")
        a("v_and_b32 v19, 3, v17")
        a("v_lshlrev_b32 v19, 3, v19")
        a("s_movk_i32 s3, 224")
        a("v_and_b32 v20, 16, v15")
        a("v_and_b32 v21, 2, v17")
        a("v_lshl_add_u32 v20, v21, 2, v20")
        a("v_mad_u32_u24 v1, v18, s3, v20")
        a("s_movk_i32 s3, 192")
        a("v_mad_u32_u24 v2, v18, s3, v19")
        a("v_add_u32 v2, %d, v2" % QKV)
        a("v_and_b32 v19, 16, v17")
        a("v_lshlrev_b32 v19, 1, v19")
        a("v_xor_b32 v20, 32, v19")
        a("v_add_u32 v3, v2, v20")
        a("v_add_u32 v2, v2, v19")
        a("s_cmp_eq_u32 s35, 1")
        a("s_cselect_b64 vcc, -1, 0")
        a("v_cndmask_b32 v4, v2, v3, vcc")
        a("s_lshr_b32 s3, s32, 1")
        a("s_lshl_b32 s3, s3, 6")
        a("s_add_u32 s3, s3, 64")
        a("v_add_u32 v4, s3, v4")
        a("s_mov_b32 s62, %d" % SLOT)
        a("s_mov_b32 s63, %d" % ((-2 * SLOT) & 0xffffffff))
        srd(a, 28, PWS, ACT_OFF, ACT_BYTES)
    def tau_ops():
        return ["s_add_u32 s81, s36, s80", "s_and_b32 s81, s81, 15", "s_mul_i32 s38, s81, 458752", "s_mul_i32 s39, s81, 393216"]
    def xoff_ops():
        return ["s_lshl_b32 s40, s81, 15", "s_add_u32 s42, s40, s61", "s_add_u32 s40, s40, s60", "s_add_u32 s41, s40, 4096"]
    def wdma_ops(tag):
        o = []
        for (mreg, sd, vb, so) in ((43, 8, 8, 38), (44, 12, 8, 38), (45, 16, 11, 39)):
            o.append("s_add_u32 m0, s37, s%d" % mreg)
            for q in range(3):
                o.append((tag, "buffer_load_dwordx4 v%d, s[%d:%d], s%d offen offset:%d lds" % (vb + q, sd, sd + 3, so, 1024 * q)))
        o.append("s_add_u32 m0, s37, s46")
        o.append((tag, "buffer_load_dwordx4 v14, s[20:23], s38 offen lds"))
        return o
    def xld_ops(buf, tag):
        o = []
        for f in range(8):
            o.append((tag, "buffer_load_dwordx4 %s, v15, s[24:27], s%d offen offset:%d %s" % (ar(XB(buf, f // 2, f % 2), 4), 40 + f // 4, 1024 * (f % 4), XSC)))
        for kh in range(2):
            o.append((tag, "buffer_load_dwordx4 %s, v15, s[24:27], s42 offen offset:%d %s" % (ar(XB(buf, 4, kh), 4), 1024 * kh, XSC)))
        return o

    g1_setup_w()
    a("s_mov_b32 s36, 0"); a("s_mov_b32 s37, 0")
    W0POS = P.get("w0pos", 1)
    al = Weave(P.get("w0_every", 14), tau_ops() + wdma_ops("W0") if W0POS == 2 else [], P.get("w0_skip", 0))

    vwait("x")
    stamp()
    X = 48
    for r in range(16):
        c1 = "0" if r < 2 else "v%d" % (112 + 2 * (r % 2))
        c2 = "0" if r < 2 else "v%d" % (113 + 2 * (r % 2))
        al("v_dot2_f32_bf16 v%d, v%d, v116, %s" % (112 + 2 * (r % 2), LX + r, c1))
        al("v_dot2_f32_bf16 v%d, v%d, v%d, %s" % (113 + 2 * (r % 2), LX + r, LX + r, c2))
    al("s_nop 2")
    al("v_pk_add_f32 v[112:113], v[112:113], v[114:115]")
    for m in ("quad_perm:[1,0,3,2]", "quad_perm:[2,3,0,1]", "row_half_mirror"):
        al("s_nop 0" if m != "quad_perm:[1,0,3,2]" else "s_nop 1")
        for v in (112, 113):
            al("v_add_f32_dpp v%d, v%d, v%d %s row_mask:0xf bank_mask:0xf" % (v, v, v, m))
    al("ds_write_b64 v27, v[112:113]")
    def unpack(r):
        al("v_lshlrev_b32 v%d, 16, v%d" % (X + 2 * r, LX + r))
        al("v_and_b32 v%d, s54, v%d" % (X + 2 * r + 1, LX + r))
    for r in range(8): unpack(r)
    al("s_waitcnt lgkmcnt(0)")
    al("s_barrier")
    al("ds_read_b128 v[80:83], v26")
    al("ds_read_b128 v[84:87], v26 offset:16")
    for r in range(8, 16): unpack(r)
    al("s_waitcnt lgkmcnt(0)")
    al("v_pk_add_f32 v[80:81], v[80:81], v[82:83]")
    al("v_pk_add_f32 v[84:85], v[84:85], v[86:87]")
    al("v_pk_add_f32 v[80:81], v[80:81], v[84:85]")
    al("v_mul_f32 v88, 0x3a800000, v80")
    al("v_mul_f32 v81, 0x3a800000, v81")
    al("v_fma_f32 v81, -v88, v88, v81")
    al("v_max_f32 v81, 0, v81")
    al("v_cvt_pk_bf16_f32 v88, v88, v81")
    al("v_and_b32 v81, s54, v88")
    al("v_lshlrev_b32 v88, 16, v88")
    al("v_add_f32 v81, 0x3727c5ac, v81")
    al("v_cvt_pk_bf16_f32 v81, v81, v81")
    al("v_and_b32 v81, s54, v81")
    al("v_sqrt_f32 v81, v81")
    al("v_sub_f32 v88, 0, v88")
    al("v_cvt_pk_bf16_f32 v81, v81, v81")
    al("v_and_b32 v81, s54, v81")
    al("v_rcp_f32 v90, v81")
    al("v_mov_b32 v89, v88")
    al("v_mov_b32 v91, v90")
    for u in range(4):
        R = range(4 * u, 4 * u + 4)
        for r in R: al("v_pk_add_f32 %s, %s, v[88:89]" % (vr(X + 2 * r, 2), vr(X + 2 * r, 2)))
        for r in R: al("v_cvt_pk_bf16_f32 v%d, v%d, v%d" % (LX + r, X + 2 * r, X + 2 * r + 1))
        for r in R: unpack(r)
        for r in R: al("v_pk_mul_f32 %s, %s, v[90:91]" % (vr(X + 2 * r, 2), vr(X + 2 * r, 2)))
        for r in R: al("v_cvt_pk_bf16_f32 v%d, v%d, v%d" % (LX + r, X + 2 * r, X + 2 * r + 1))
        V("xs", "buffer_store_dwordx4 %s, v28, s[24:27], s%d offen %s" % (vr(LX + 4 * u, 4), 50 + u, SC))
    al.flush()
    stamp()

    if P.get("t_early", 2) < 2 and P.get("t1pos", 0) == 0:
        V("t", "buffer_load_dword v29, v30, s[88:91], s94 offen %s" % P.get("t1fl", ""))
        for o in ["s_add_u32 s94, s94, s95", "s_cmp_ge_u32 s94, s90", "s_cselect_b32 s3, s90, 0", "s_sub_u32 s94, s94, s3"]: a(o)
    a("s_lshl_b32 s3, s32, 13")
    a("s_add_u32 s60, s60, s3")
    a("s_lshl_b32 s61, s61, 19")
    a("s_add_u32 s61, s61, %d" % (3 * 8192 + 3 * 2048))
    for o in xoff_ops(): E(o)
    a("v_mov_b32 v27, v121"); a("v_mov_b32 v28, v122")
    g1_setup_r()
    av = Weave(P.get("w0_every", 5), tau_ops() + wdma_ops("W0") if W0POS == 0 else [])
    SP, SMT, SNT = 66, 67, 70
    av("s_bfe_u32 s%d, s2, 0x10001" % SP)
    av("s_and_b32 s%d, s2, 1" % SMT); av("s_bfe_u32 s3, s2, 0x20003"); av("s_lshl2_add_u32 s%d, s%d, s3" % (SMT, SMT))
    av("s_lshr_b32 s%d, s2, 5" % SNT)
    park = {}
    def parkv(key, v):
        park[key] = PARK + len(park)
        assert park[key] < 224
        av("v_accvgpr_write_b32 a%d, v%d" % (park[key], v))
    unp = lambda key, v: "v_accvgpr_read_b32 v%d, a%d" % (v, park[key])
    av("s_lshl_b32 s48, s%d, 2" % SP); av("s_xor_b32 s48, s48, 4"); av("s_lshl_b32 s49, s%d, 8" % SNT); av("s_lshl_b32 s50, s32, 15"); av("s_add_u32 s50, s50, s49")
    av("v_lshrrev_b32 v20, 4, v17"); av("v_bfe_u32 v21, v17, 1, 3"); av("v_xor_b32 v21, s48, v21"); av("v_xor_b32 v21, v21, v20")
    av("v_and_b32 v22, 16, v15"); av("v_lshl_add_u32 v23, v20, 11, v22")
    av("v_lshl_add_u32 v16, v21, 5, v23"); av("v_add_u32 v16, s50, v16")
    av("s_lshl_b32 s51, s32, 16"); av("s_add_u32 s51, s51, s49"); av("s_lshl_b32 s3, s%d, 7" % SP); av("s_add_u32 s51, s51, s3")
    av("v_bfe_u32 v21, v17, 1, 2"); av("v_xor_b32 v21, v21, v20"); av("v_lshrrev_b32 v23, 3, v17")
    av("v_lshl_add_u32 v22, v23, 11, v22"); av("v_lshl_add_u32 v22, v21, 5, v22"); av("v_add_u32 v22, s51, v22")
    av("v_mov_b32 v30, v22")
    av("v_lshrrev_b32 v20, 2, v17"); av("v_and_b32 v21, 3, v17"); av("v_lshlrev_b32 v21, 3, v21"); av("v_add_u32 v21, %d, v21" % R2)
    av("v_lshl_add_u32 v22, v20, 8, v21"); av("v_and_b32 v23, 7, v20"); av("v_lshl_add_u32 v22, v23, 5, v22")
    parkv("vw", 22)
    av("v_lshl_add_u32 v22, v20, 7, v21"); av("v_bfe_u32 v23, v17, 3, 2"); av("v_lshl_add_u32 v22, v23, 5, v22")
    parkv("vwo", 22)
    av("v_and_b32 v20, 15, v17"); av("v_lshlrev_b32 v22, 11, v20"); av("v_bfe_u32 v23, v17, 4, 1"); av("v_lshl_add_u32 v22, v23, 5, v22")
    av("v_lshrrev_b32 v21, 5, v17"); av("v_lshl_add_u32 v22, v21, 4, v22")
    parkv("vout", 22)
    av("v_lshlrev_b32 v22, 10, v23"); av("v_lshl_add_u32 v22, v21, 8, v22"); av("v_lshl_add_u32 v26, v20, 4, v22")
    av("v_bfe_u32 v22, v17, 2, 2"); av("v_lshlrev_b32 v22, 8, v22"); av("v_lshrrev_b32 v23, 4, v17"); av("v_lshl_add_u32 v22, v23, 6, v22")
    av("v_and_b32 v23, 3, v17"); av("v_lshl_add_u32 v22, v23, 1, v22"); av("v_add_u32 v22, 1024, v22")
    a("s_cmp_ge_u32 s32, 2"); a("s_cselect_b64 vcc, -1, 0"); a("s_cselect_b32 s71, 16, 2")
    av("v_cndmask_b32 v22, v15, v22, vcc")
    av("s_lshl_b32 s3, s35, 3"); av("s_add_u32 s3, s3, %d" % EX); av("v_add_u32 v22, s3, v22")
    parkv("vhx", 22)
    av.flush()
    a("v_lshlrev_b32 v24, 8, v17"); a("v_add_u32 v25, 16384, v24")
    a("s_lshr_b32 s7, s2, 3"); a("s_lshl1_add_u32 s7, s7, s32"); a("s_lshl_b32 s7, s7, 15")
    a("s_lshl_b32 s52, s%d, 7" % SP); a("s_add_u32 s7, s7, s52")
    a("s_mov_b64 s[4:5], s[%d:%d]" % (PWO, PWO + 1)); a("s_mov_b32 s6, %d" % (1024 * 2048 if not P.get("nowot") else 0))
    a("s_cmp_lt_u32 s32, 2"); a("s_cbranch_scc1 L_alt")
    a("v_lshlrev_b32 v24, 7, v17"); a("v_add_u32 v25, 8192, v24")
    a("s_lshl_b32 s7, s2, 14")
    a("s_mov_b64 s[4:5], s[%d:%d]" % (PX, PX + 1)); a("s_mov_b32 s6, %d" % (2048 * 2048 if not P.get("noxt") else 0))
    a.label("L_alt")
    a("s_cmp_eq_u32 s32, 3"); a("s_cselect_b32 s47, 99, %d" % (13 if not P.get("ab_noalt") else 64))
    a("v_xor_b32 v17, 0x80, v16"); a("v_add_u32 v17, %d, v17" % 7168)
    a("v_add_u32 v18, %d, v16" % 14336); a("v_add_u32 v19, %d, v17" % 14336)
    vwait("xs")
    a("v_add_u32 v7, 0x%x, v7" % NONCE_ADD)
    V("f", "buffer_store_dword v7, v6, s[84:87], s92 offen %s" % SC)
    a("v_readfirstlane_b32 s96, v7")
    stamp()
    p0 = ("p", "buffer_load_dword v255, v254, s[84:87], 0 offen %s" % SC)
    q1 = (tau_ops() + wdma_ops("W0") if W0POS == 1 else []) + ["s_mov_b32 s36, 1", "s_mov_b32 s37, %d" % SLOT] + tau_ops() + (wdma_ops("W") if not P.get("peel0", 0) else [])
    W1POS = P.get("w1pos", 0)
    PB4 = P.get("poll_before", 0)
    if PB4:
        idx = [k for k, o in enumerate(q1) if isinstance(o, tuple)][-PB4]
        if q1[idx - 1].startswith("s_add_u32 m0") if isinstance(q1[idx - 1], str) else False: idx -= 1
        q1.insert(idx, p0)
    az = Weave(P.get("w1_every", 5), q1 if W1POS == 0 else [])
    for r in range(32, 254, 2): az("v_mov_b64 %s, 0" % vr(r, 2))
    az.flush()
    if not PB4: E(p0)
    a("s_lshl_b32 s72, s%d, 19" % SMT); a("s_add_u32 s72, s72, s51"); a("s_bfe_u32 s3, s2, 0x10002"); a("s_add_u32 s3, s3, s32")
    a("s_lshl_b32 s3, s3, 16"); a("s_add_u32 s72, s72, s3")
    a("s_lshl_b32 s56, s32, 12"); a("s_add_u32 s56, s56, %d" % R2)
    a("s_lshl_b32 s48, s33, 1"); a("s_lshr_b32 s3, s32, 1"); a("s_add_u32 s48, s48, s3"); a("s_mul_i32 s48, s48, %d" % ACT_MT)
    a("s_lshl_b32 s3, s35, 12"); a("s_add_u32 s48, s48, s3")
    a("s_mul_i32 s73, s34, 7"); a("s_lshr_b32 s73, s73, 1"); a("s_lshl_b32 s73, s73, 13"); a("s_add_u32 s73, s73, s48")
    a("s_lshl_b32 s3, s57, 9"); a("s_add_u32 s73, s73, s3")
    a("s_mul_i32 s74, s57, %d" % (8192 - 1024)); a("s_add_u32 s74, s74, 512"); a("s_add_u32 s74, s74, s73")
    a("s_add_u32 s75, s34, 112"); a("s_lshl_b32 s75, s75, 13"); a("s_add_u32 s75, s75, s48")
    a("s_lshl2_add_u32 s92, s33, s32"); a("s_lshl_b32 s92, s92, 7"); a("s_lshl2_add_u32 s92, s34, s92")
    FP = P.get("fpad", 1)
    a("s_add_u32 s35, s92, %d" % F1O)
    if FP: a("s_lshl_b32 s92, s92, 5")
    a("s_add_u32 s92, s92, %d" % (F1H if not FP else 131072))
    a("s_lshl2_add_u32 s58, s%d, s32" % SMT); a("s_lshl_b32 s58, s58, 7")
    a("s_add_u32 s59, s58, %d" % F1O)
    if FP: a("s_lshl_b32 s58, s58, 5")
    a("s_add_u32 s58, s58, %d" % (F1H if not FP else 131072))
    a("s_or_b32 s33, s33, s32")
    a("s_lshr_b32 s3, s32, 1"); a("s_lshl1_add_u32 s57, s%d, s3" % SMT); a("s_mul_i32 s57, s57, %d" % ACT_MT)
    a("s_and_b32 s3, s32, 1"); a("s_lshl_b32 s3, s3, 12"); a("s_add_u32 s57, s57, s3")
    a("s_mov_b32 s50, 0xbfb8aa3b"); a("s_mov_b32 s51, 0xbfb8aa3b"); a("s_mov_b32 s52, 1.0"); a("s_mov_b32 s53, 1.0")

    stamp()
    check_flags(255, 254, "0", "p", "L_f0")
    stamp()
    for o in xld_ops(0, "X0"): E(o)
    xlast = ["s_add_u32 s40, s80, 15", "s_and_b32 s40, s40, 15", "s_lshl_b32 s40, s40, 15", "s_add_u32 s40, s40, s60", "s_add_u32 s41, s40, 4096"] + xld_ops(2, "XL")[:8]
    if P.get("xl_pos", 1) == 0:
        for o in xlast: E(o)
    if W1POS == 1:
        for o in q1: E(o)
    a("v_mov_b64 v[254:255], 0")
    for r in range(0, 100, 4): a("%s %s, v[48:51], v[48:51], 0" % (MF, ar(r, 4)))

    blocks = []
    for p in range(7): blocks += [("gu", p, 0), ("gu", p, 1)]
    blocks += [("q", s) for s in range(6)]
    def wreads(b, dst, ab=0):
        o = []
        for kh in range(2):
            for s2 in range(2):
                d = ar(dst(kh) + 2 * s2, 2)
                if b[0] == "gu":
                    o.append("ds_read_b64_tr_b16 %s, v%d offset:%d" % (d, ab + 1, b[2] * UP + (32 * kh + 16 * s2) * 224 + 32 * b[1]))
                elif b[0] == "q":
                    o.append("ds_read_b64_tr_b16 %s, v%d offset:%d" % (d, ab + 2 + b[1] % 2, (32 * kh + 16 * s2) * 192 + 64 * (b[1] // 2)))
                else:
                    o.append("ds_read_b64_tr_b16 %s, v%d offset:%d" % (d, ab + 4, (32 * kh + 16 * s2) * 192))
        return o
    def mfmas(b, ring, buf):
        o = []
        for m in range(4):
            for kh in range(2):
                w, x = ar(WR(ring, kh), 4), ar(XB(buf, m, kh), 4)
                c = vr(accGU(b[1], b[2], m), 4) if b[0] == "gu" else ar(accQ(b[1], m), 4)
                if b[0] == "q" and b[1] >= 4: w, x = x, w
                o.append("%s %s, %s, %s, %s" % (MF, c, w, x, c))
        return o
    def halo_mf(buf):
        return ["%s %s, %s, %s, %s" % (MF, ar(HACC, 4), ar(HW(kh), 4), ar(XB(buf, 4, kh), 4), ar(HACC, 4)) for kh in range(2)]

    vwait("X0")
    a("s_barrier")
    stamp()
    for bi in range(3):
        for o in wreads(blocks[bi], lambda kh: WR(bi % 4, kh)): a(o)
    if P.get("xl_pos", 1) == 1:
        for o in xlast: E(o)
    if P.get("xl_pos", 1) == 2:
        for o in ["s_add_u32 s48, s80, 15", "s_and_b32 s48, s48, 15", "s_lshl_b32 s48, s48, 15", "s_add_u32 s48, s48, s60"]: a(o)
    if P.get("t_early", 2) < 2 and P.get("t1pos", 0) == 1:
        V("t", "buffer_load_dword v29, v27, s[88:91], s94 offen %s" % P.get("t1fl", ""))
        V("t", "buffer_load_dword v29, v28, s[88:91], s94 offen %s" % P.get("t1fl", ""))
        for o in ["s_add_u32 s94, s94, s95", "s_cmp_ge_u32 s94, s90", "s_cselect_b32 s3, s90, 0", "s_sub_u32 s94, s94, s3"]: a(o)
    LT = P.get("late_w2", 0)
    a("s_cmp_eq_u32 s32, 3"); a("s_cselect_b32 s95, %d, s95" % ((-(256 if LT else 128) * 2048) & 0xffffffff))
    a("s_cselect_b32 s49, -1, s90")
    if LT:
        a("s_cselect_b32 s3, %d, 0" % (6 * 128 * 2048)); a("s_cselect_b64 vcc, -1, 0"); a("s_add_u32 s94, s94, s3")
        a("v_lshlrev_b32 v20, 3, v15"); a("v_add_u32 v21, %d, v20" % (128 * 2048))
        a("v_cndmask_b32 v27, v27, v21, vcc"); a("v_cndmask_b32 v28, v28, v20, vcc")

    HRB, HMB = 9, 13
    def step(buf, misc, loop=None, spc=None):
        lg = Cnt([0] * 4 + [1] * 4 + [2] * 4)
        SPC, V0 = spc or P.get("vspace", 5.4), P.get("vstart", 5)
        place = {}
        nv = 0
        tgt = []
        for o in misc:
            if isinstance(o, tuple):
                g = int(V0 + nv * SPC) | 1
                if g // 8 >= HRB: g += 8
                tgt.append(g)
                if P.get("vweight", 0): nv += (1.55 if "s[16:19]" in o[1] else (1.1 if o[1].endswith("lds") else 0.77))
                else: nv += (P.get("xl_w", 0.4) if "s49" in o[1] else 1)
            else: tgt.append(None)
        nxt = None
        for k in range(len(misc) - 1, -1, -1):
            if tgt[k] is not None: nxt = tgt[k]
            elif nxt is not None:
                nxt -= 1; tgt[k] = nxt
        last = max(t for t in tgt if t is not None)
        for k in range(len(misc)):
            if tgt[k] is None:
                last += 1; tgt[k] = last
        for k in range(1, len(misc)):
            if tgt[k] < tgt[k - 1]: tgt[k] = tgt[k - 1]
        assert min(tgt) >= 0 and max(tgt) < 17 * 8, (min(tgt), max(tgt))
        for k, o in enumerate(misc): place.setdefault((tgt[k] // 8, tgt[k] % 8), []).append(o)
        for bi in range(20):
            mf = mfmas(blocks[bi], bi % 4, buf)
            fill = {}
            w = lg.need(bi)
            if w is not None: a("s_waitcnt lgkmcnt(%d)" % w)
            rd = []
            if bi <= 16: rd = [(bi + 3, o) for o in wreads(blocks[bi + 3], lambda kh: WR((bi + 3) % 4, kh))]; gaps = [0, 2, 4, 6]
            elif bi == 18:
                rd = [(100, o) for o in wreads(blocks[0], lambda kh: WR(0, kh))] + [(101, o) for o in wreads(blocks[1], lambda kh: WR(1, kh))]
                gaps = list(range(8))
            elif bi == 19: rd = [(102, o) for o in wreads(blocks[2], lambda kh: WR(2, kh))]; gaps = [0, 2, 4, 6]
            if bi == HRB:
                hr = [("H", o) for o in wreads(("h",), HW)]
                rd = [x for pr in zip(rd, hr) for x in pr]; gaps = list(range(8))
            for (tag, o), g in zip(rd, gaps if rd else []):
                fill.setdefault(g, []).append(o); lg.issue(tag)
            for g in range(8):
                for o in place.get((bi, g), []): fill.setdefault(g, []).append(o)
            if bi == HMB:
                assert lg.need("H") is None
                mf += halo_mf(buf)
            if bi == 17:
                for k, r in enumerate((1, 2, 3, 4)):
                    fill.setdefault(k + 1, []).append("v_add_u32 v%d, s93, v%d" % (r, r))
                fill.setdefault(7, []).append(lambda: (vwait("X", lg0=True), a("s_barrier")))
                lg.clear()
                if P.get("itrace"):
                    fill[7] += ["s_memtime s[98:99]", "s_add_u32 m0, s36, 30", "s_waitcnt lgkmcnt(0)", "v_writelane_b32 v31, s98, m0"]
            if bi == 19 and loop:
                fill.setdefault(5, []).append("s_cmp_lt_u32 s36, 15")
                fill.setdefault(7, []).append("s_cbranch_scc1 %s" % loop)
            for i, m in enumerate(mf):
                a(m)
                for o in fill.get(i, []): E(o)
    slot_ops = ["s_add_u32 s37, s37, s62", "s_cmp_eq_u32 s37, %d" % (3 * SLOT), "s_cselect_b32 s37, 0, s37",
                "s_cmp_eq_u32 s37, s62", "s_cselect_b32 s93, s63, s62"]
    def std_misc(buf):
        t = [("t", "buffer_load_dword v29, v%d, s[88:91], s94 offen %s" % (27 + buf, P.get("tfl", "")))] + (["s_add_u32 s94, s94, s95", "s_cmp_ge_u32 s94, s49", "s_cselect_b32 s3, s90, 0", "s_sub_u32 s94, s94, s3"] if buf else [])
        if buf: t += ["s_cmp_eq_u32 s36, s47", "s_cselect_b64 s[88:89], s[4:5], s[88:89]", "s_cselect_b32 s90, s6, s90", "s_cselect_b32 s94, s7, s94",
                      "s_cselect_b64 vcc, -1, 0", "v_cndmask_b32 v27, v27, v24, vcc", "v_cndmask_b32 v28, v28, v25, vcc"]
        xl = xld_ops(buf ^ 1, "X")
        if P.get("xl_pos", 1) == 2:
            ex = [("X", o[1].replace("s40", "s49").replace("s41", "s49")) for o in xld_ops(2, "X")[4 * buf:4 * buf + 4]]
            pre = ["s_cmp_eq_u32 s36, 14", "s_cselect_b32 s49, s48, %d" % OOB] if buf == 0 else ["s_add_u32 s49, s49, 4096"]
            xl = xl + pre + ex
        return xoff_ops() + xl[:2] + ["s_add_u32 s36, s36, 1"] + tau_ops() + xl[2:4] + slot_ops[:3] + xl[4:6] + slot_ops[3:] + xl[6:] + wdma_ops("W") + t
    if P.get("peel0", 0):
        m0 = std_misc(0); m1 = std_misc(1)
        iw = lambda m: [k for k, o in enumerate(m) if isinstance(o, tuple) and o[0] == "W"]
        NH = P.get("peel_h", 6)
        k0 = iw(m0)[NH] - 1 if NH < 10 else iw(m0)[-1] + 1
        k1 = iw(m0)[-1] + 1
        rest = [(("X", o[1]) if isinstance(o, tuple) else o) for o in m0[k0:k1]]
        w1 = [(("X", o[1]) if isinstance(o, tuple) else o) for o in wdma_ops("W")]
        xl1 = xlast if P.get("xl_pos", 1) == 3 else []
        xl1 = [((o[0], o[1].replace("s40", "s48").replace("s41", "s49")) if isinstance(o, tuple) else o.replace("s40", "s48").replace("s41", "s49")) for o in xl1]
        nv = lambda m: sum(isinstance(o, tuple) for o in m)
        a0 = w1 + m0[:k0] + m0[k1:]
        a1 = rest + m1[:iw(m1)[-1] + 1] + xl1 + m1[iw(m1)[-1] + 1:]
        step(0, a0, spc=min(5.4, 112.0 / nv(a0)))
        step(1, a1, spc=min(5.4, 108.0 / nv(a1)))
    a(".p2align 6")
    a.label("L_g1")
    vm.q = ["W"] * 10 + ["t"]
    step(0, std_misc(0))
    step(1, std_misc(1), loop="L_g1")
    assert vm.q == ["W"] * 10 + ["t"], vm.q
    stamp()

    ND, NO = 14, 8
    NS = ND + NO
    VDW, VDO = 16, 30
    NRES = 5
    ROTD = P.get("rotd", 4)
    RREG = [4, 5, 6, 7, 36, 37, 55]
    OLOC = {14: R2 + 32768, 15: R2 + 49152, 16: R2, 21: 0, 18: 16384, 17: 106496, 19: 122880, 20: 139264}
    FR = NS - NRES
    def wops(sg, force=False):
        if sg >= FR and not force: return []
        u = sg % 4
        o = []
        if sg < ND:
            if ROTD: o.append("s_lshl3_add_u32 s38, s%d, s%d" % (RREG[sg % 7], 44 + sg // 7))
            else: o.append("s_add_u32 s38, s%d, %d" % (44 + sg // 7, (sg % 7) * 131072))
            o.append("s_add_u32 m0, s56, %d" % (u * 16384))
            for q in range(4):
                o.append(("W%d" % sg, "buffer_load_dwordx4 v%d, s[8:11], s38 offen offset:%d lds" % (VDW + q, 1024 * q)))
        else:
            o.append("s_add_u32 m0, s56, %d" % ((OLOC[sg] - R2) & 0xffffffff))
            for q in range(4):
                o.append("s_mov_b32 s38, %d" % ((sg - ND) * 262144 + 15360 * q))
                o.append(("W%d" % sg, "buffer_load_dwordx4 v%d, s[12:15], s38 offen offset:%d lds" % (VDO, 1024 * q)))
        return o
    QI = {(0, 0): 0, (1, 0): 1, (1, 1): 2, (0, 1): 3}
    accD = lambda m, b: 64 + QI[(m >> 1, b >> 2)] * 32 + ((b & 3) * 2 + (m & 1)) * 4
    accO = lambda m, b: 192 + (b * 2 + m) * 4
    VW, VWO, VX = 32, 20, 52
    NXB = 6
    NX0 = P.get("nx0", 2)
    XB2 = lambda sg, f: (lambda u: (u * 32 if u < 4 else 192 + (u - 4) * 32) + f * 4)(sg % NXB)
    WR2 = lambda b, kh: 128 + b * 8 + kh * 4
    def xops(sg):
        if sg >= NS: return []
        o = []
        if sg < ND:
            o.append("s_add_u32 s39, s%d, %s" % (60 if sg < NX0 else 46 + sg // 7, ("s%d" % RREG[sg % 7]) if ROTD else str((sg % 7) * 16384)))
            for kh in range(2):
                for m in range(4):
                    o.append(("X%d" % sg, "buffer_load_dwordx4 %s, v%d, s[28:31], s39 offen offset:%d %s" % (ar(XB2(sg, kh * 4 + m), 4), VX + kh + 4 * (m >> 1), 1024 * (m & 1), XSC)))
        else:
            o.append("s_add_u32 s39, s57, %d" % (112 * 8192 + (sg - ND) * 32768))
            for kq in range(4):
                for m in range(2):
                    o.append(("X%d" % sg, "buffer_load_dwordx4 %s, v%d, s[28:31], s39 offen offset:%d %s" % (ar(XB2(sg, kq * 2 + m), 4), VX + kq, 1024 * m, XSC)))
        return o
    def wreads2(sg, b, rb=None):
        if rb is None: rb = b
        o = []
        u = sg % 4
        for kh in range(2):
            for s2 in range(2):
                if sg < ND: v, off = VW + b, u * 16384 + (32 * kh + 16 * s2) * 256
                else:
                    L = OLOC[sg]
                    vb, base = (40, 0) if L < R2 else ((VWO, R2) if L < 106496 else (44, 106496))
                    v, off = vb + b % 4, L - base + (64 * (b // 4) + 32 * kh + 16 * s2) * 128
                o.append("ds_read_b64_tr_b16 %s, v%d offset:%d" % (ar(WR2(rb, kh) + 2 * s2, 2), v, off))
        return o
    def mfmas2(sg, b, rb):
        o = []
        for m in ((2, 3, 0, 1) if sg < ND else (0, 1)):
            for kh in range(2):
                if sg < ND: c, x = accD(m, b), XB2(sg, kh * 4 + m)
                else: c, x = accO(m, b % 4), XB2(sg, (2 * (b // 4) + kh) * 2 + m)
                z = (sg == 0 and kh == 0) or (sg == ND and b < 4 and kh == 0)
                o.append("%s %s, %s, %s, %s" % (MF, vr(c, 4), ar(WR2(rb, kh), 4), ar(x, 4), "0" if z else vr(c, 4)))
        return o
    order = [(0, 0), (1, 0), (2, 0), (3, 0), (0, 1), (1, 1), (2, 1), (3, 1)]
    for b in range(4, 20): order += [(b, 0), (b, 1)]
    NPOS = len(order)
    done_pos = {b: max(i for i, (bb, s) in enumerate(order) if bb == b) for b in range(20)}
    AB2 = 7
    R0, R1, R2_ = accGU(0, 1, 0), accGU(2, 1, 0), accGU(4, 1, 0)
    Qf = lambda m: R0 + 12 + 4 * m
    Kf = lambda m: R0 + 28 + 4 * (m + 1)
    VV = lambda f, m: R1 + 10 * f + 2 * (m + 1)
    Pf = lambda m: R1 + 20 + 4 * m
    Sp = lambda m: R2_ + 8 * m
    Sc = lambda m: R2_ + 8 * m + 4
    TT = lambda m: R2_ + 32 + 4 * m
    def cvt_acc(dst, src, t):
        return ["v_accvgpr_read_b32 v%d, a%d" % (t + r, src + r) for r in range(4)] + \
               ["v_cvt_pk_bf16_f32 v%d, v%d, v%d" % (dst, t, t + 1), "v_cvt_pk_bf16_f32 v%d, v%d, v%d" % (dst + 1, t + 2, t + 3)]
    masks = ["v_lshrrev_b32 v13, 4, v15", "v_and_b32 v14, 15, v13", "v_and_b32 v27, 1, v13", "v_lshrrev_b32 v20, 4, v13", "v_lshl_add_u32 v20, v20, 2, v27",
             "v_cmp_le_u32 s[40:41], v20, v14", "v_add_u32 v20, 2, v20", "v_cmp_le_u32 s[42:43], v20, v14", "v_cmp_ne_u32 s[62:63], 0, v27",
             "v_lshlrev_b32 v27, 4, v27", "s_cmp_eq_u32 s33, 0", "s_cselect_b64 s[88:89], -1, 0", "s_andn2_b64 s[90:91], s[88:89], s[42:43]",
             "s_andn2_b64 s[88:89], s[88:89], s[40:41]", "s_mov_b32 s48, 0x3e3504f3", "s_mov_b32 s49, 0x3fb8aa3b",
             "s_lshl_b32 s3, s32, 11", "s_add_u32 s3, s3, %d" % EX, "v_add_u32 v25, s3, v15", unp("vhx", 24),
             "v_lshlrev_b32 v14, %d, v14" % (7 if FP else 2), "v_and_b32 v13, 31, v13", "v_lshlrev_b32 v13, 2, v13",
             "s_and_b32 s3, s2, 7", "s_xor_b32 s61, s3, %d" % P.get("g0", 1), "s_xor_b32 s3, s61, 1",
             "s_mul_i32 s44, s61, %d" % (7 * 131072), "s_mul_i32 s45, s3, %d" % (7 * 131072),
             "s_mul_i32 s46, s61, %d" % (7 * 16384), "s_add_u32 s46, s46, s57", "s_mul_i32 s47, s3, %d" % (7 * 16384), "s_add_u32 s47, s47, s57",
             "s_mov_b32 s60, s46", "s_lshl_b32 s61, s61, 9", "s_add_u32 s34, s61, s58", "s_lshl_b32 s3, s3, 9", "s_add_u32 s58, s58, s3", "v_and_b32 v5, 384, v14"]
    if ROTD >= 3:
        masks += ["s_add_u32 s3, s%d, s%d" % (SMT, SNT)]
        W1_ = {3: 4, 4: 2}[ROTD]
        for k in range(4):
            masks += ["s_add_u32 s%d, s3, %d" % (RREG[k], k), "s_and_b32 s%d, s%d, %d" % (RREG[k], RREG[k], W1_ - 1)]
            if k >= W1_: masks += ["s_add_u32 s%d, s%d, %d" % (RREG[k], RREG[k], W1_)]
            masks += ["s_lshl_b32 s%d, s%d, 14" % (RREG[k], RREG[k])]
        masks += ["s_mul_i32 s36, s3, 86", "s_lshr_b32 s36, s36, 8", "s_mul_i32 s36, s36, 3", "s_sub_u32 s3, s3, s36", "s_add_u32 s3, s3, 4", "s_lshl_b32 s36, s3, 14"]
        for k in (5, 6):
            masks += ["s_add_u32 s%d, s%d, 16384" % (RREG[k], RREG[k - 1]), "s_cmp_eq_u32 s%d, %d" % (RREG[k], 7 * 16384), "s_cselect_b32 s3, %d, 0" % (3 * 16384), "s_sub_u32 s%d, s%d, s3" % (RREG[k], RREG[k])]
    elif ROTD:
        if ROTD == 1: masks += ["s_and_b32 s3, s%d, 3" % SMT, "s_lshl1_add_u32 s3, s3, s%d" % SNT]
        else: masks += ["s_mov_b32 s3, s%d" % SNT]
        masks += ["s_cmp_ge_u32 s3, 7", "s_cselect_b32 s4, 7, 0", "s_sub_u32 s3, s3, s4", "s_lshl_b32 s4, s3, 14"]
        for k in range(1, 7):
            masks += ["s_add_u32 s%d, s%d, 16384" % (RREG[k], RREG[k - 1]), "s_cmp_eq_u32 s%d, %d" % (RREG[k], 7 * 16384), "s_cselect_b32 s%d, 0, s%d" % (RREG[k], RREG[k])]
    early = ["v_add_u32 v%d, s63, v%d" % (AB2 + r, r) for r in (1, 2, 3, 4)] + xoff_ops()[:2] + xld_ops(2, "X")[8:] + masks
    ctouch = []
    if P.get("ctouch2", 1):
        def getpc():
            a("s_getpc_b64 s[16:17]"); a.label("L_pc2")
        ctouch = [getpc, "s_mov_b32 s18, L_end-L_pc2", "s_bfe_u32 s3, s2, 0x30003", "s_lshl2_add_u32 s3, s3, s32", "s_lshl_b32 s3, s3, 11", "v_and_b32 v20, 0xf0, v15",
                  "v_lshl_add_u32 v20, v20, 3, s3", ("t", "buffer_load_dword v29, v20, s[16:19], 0 offen")]
        early = early[:4] + ctouch + early[4:]
    memq = ["s_mov_b64 s[8:9], s[%d:%d]" % (PD, PD + 1), "s_mov_b32 s10, %d" % (3584 * 2048)] + wops(0) + wops(1) + \
        ["s_mov_b64 s[12:13], s[%d:%d]" % (PWO, PWO + 1), "s_mov_b32 s14, %d" % (1024 * 2048)] + wops(19, True) + wops(20, True)
    stream = []
    def pkA(p): return [x for m in range(4) for h in (0, 2) for x in (
        "v_pk_mul_f32 %s, %s, %s" % (vr(accGU(p, 1, m) + h, 2), vr(accGU(p, 0, m) + h, 2), vr(accGU(p, 1, m) + h, 2)),)] + \
        ["v_pk_mul_f32 %s, %s, s[50:51]" % (vr(accGU(p, 0, m) + h, 2), vr(accGU(p, 0, m) + h, 2)) for m in range(4) for h in (0, 2)]
    def pkB(p): return ["v_pk_add_f32 %s, %s, s[52:53]" % (vr(accGU(p, 0, m) + h, 2), vr(accGU(p, 0, m) + h, 2)) for m in range(4) for h in (0, 2)]
    def pkC(p): return ["v_pk_mul_f32 %s, %s, %s" % (vr(accGU(p, 1, m) + h, 2), vr(accGU(p, 1, m) + h, 2), vr(accGU(p, 0, m) + h, 2)) for m in range(4) for h in (0, 2)]
    def fin(p):
        o = []
        sreg = 73 + (p & 1)
        for m in range(4):
            U = accGU(p, 1, m)
            D = accGU(p, 0, m & ~1) + 2 * (m & 1)
            o += ["v_cvt_pk_bf16_f32 v%d, v%d, v%d" % (D, U, U + 1), "v_cvt_pk_bf16_f32 v%d, v%d, v%d" % (D + 1, U + 2, U + 3)]
        for m in (0, 2):
            g0 = accGU(p, 0, m)
            o += ["v_permlane16_swap_b32 v%d, v%d" % (g0, g0 + 2), "v_permlane16_swap_b32 v%d, v%d" % (g0 + 1, g0 + 3)]
            o.append(("hs", "buffer_store_dwordx4 %s, v26, s[28:31], s%d offen offset:%d %s" % (vr(g0, 4), sreg, 1024 * m, SC)))
        o.append("s_add_u32 s%d, s%d, 8192" % (sreg, sreg))
        return o
    rdy = lambda b: (done_pos[b] + 1) * 8 + 7
    for p in range(8):
        burst = (pkC(p - 1) if p > 0 else []) + (pkA(p) if p < 7 else [])
        stream.append((rdy(2 * p + 1) if p < 7 else 0, burst, True))
        tr1 = ["v_exp_f32 v%d, v%d" % (accGU(p, 0, 0) + r, accGU(p, 0, 0) + r) for r in range(16)] if p < 7 else []
        f = fin(p - 1) if p > 0 else []
        if p > 0 and (p - 1) % 2 == 0 and p - 1 < 6: pass
        mix = []
        while tr1 or f:
            if f: mix.append(f.pop(0))
            if tr1: mix.append(tr1.pop(0))
        for o in mix: stream.append((0, [o], False))
        if p < 7:
            stream.append((0, pkB(p), True))
            for r in range(16): stream.append((0, ["v_rcp_f32 v%d, v%d" % (accGU(p, 0, 0) + r, accGU(p, 0, 0) + r)], False))
    stream.append((0, ["HDONE"], False))
    for s_, F in ((0, Qf), (1, Qf), (2, Kf), (3, Kf)):
        for m in (3, 2, 1, 0):
            for k, o in enumerate(cvt_acc(F(m) + 2 * (s_ & 1), accQ(s_, m), TT(m))):
                stream.append((rdy(14 + s_), [o], False))
    for m in (3, 2, 1, 0):
        for o in cvt_acc(VV(0, m), accQ(4, m), TT(m)): stream.append((rdy(18), [o], False))
    def hflag():
        vwait("hs")
        V("f", "buffer_store_dword v7, v6, s[84:87], s92 offen %s" % SC)
    GL = P.get("gaplen", 20)
    MSP = P.get("mem_space", 5)
    HDLY = P.get("hflag_delay", 99)
    BP = P.get("bar_pos", 28)
    lg = Cnt([0] * 4 + [1] * 4 + [2] * 4)
    HR = {3: 0, 15: 1}; HM = {7: 0, 19: 2}
    isv = lambda o: isinstance(o, str) and (o.startswith("v_") or o.startswith("s_nop"))
    front = []
    lastmem = -99; hdone = None; hsent = False; est = 0
    w = lg.need(0); a("s_waitcnt lgkmcnt(%d)" % w)
    for pos, (bi, st_) in enumerate(order):
        mf = mfmas(blocks[bi], pos % 4, 2 * st_)
        if P.get("tstamp") and pos in (4, 8, 16, 24, 32): stamp()
        if pos % 4 == 0: sys.stderr.write("pos %d: stream left %d est %d\n" % (pos, len(stream), est))
        rd = []
        if pos + 3 < NPOS:
            b3, s3 = order[pos + 3]
            rd = [(pos + 3, o) for o in wreads(blocks[b3], lambda kh: WR((pos + 3) % 4, kh), AB2 * s3)]
        gaps = [0, 2, 4, 6]
        if pos in HR:
            hr = [("H", o) for o in wreads(("h",), HW, AB2 * HR[pos])]
            rd = [x for pr in zip(rd, hr) for x in pr]; gaps = list(range(8))
        rdat = dict(zip(gaps, rd))
        if pos in HM:
            assert lg.need("H") is None
            if HM[pos]: vwait("X")
            mf += halo_mf(HM[pos])
        for i, m in enumerate(mf):
            g = pos * 8 + i
            a(m)
            t = 4
            if i in rdat:
                a(rdat[i][1]); lg.issue(rdat[i][0]); t += 8
            if i == len(mf) - 1 and pos + 1 < NPOS:
                w = lg.need(pos + 1)
                if pos == 0:
                    vwait("W"); a("s_barrier")
                if pos == BP:
                    assert not memq and BP > done_pos[13]
                    a("s_barrier"); memq += wops(2) + wops(3) + wops(21, True)
                if w is not None: a("s_waitcnt lgkmcnt(%d)" % w); t += 4
            if early:
                while early and t < 16:
                    o = early.pop(0); E(o); t = (max(t, 8) if isv(o) else t) + cost(o)
            else:
                q = front if front else memq
                if q and not isinstance(q[0], tuple) and t <= 12 - 4 * bool(stream and stream[0][0] <= g):
                    E(q.pop(0)); t += 4
                elif q and isinstance(q[0], tuple) and t == 4 and g - lastmem >= (MSP if q is memq else P.get("st_space", 4)):
                    E(q.pop(0)); t += 8; lastmem = g
                if hdone is not None and not hsent and not front and g >= hdone + HDLY and t == 4:
                    hflag(); hsent = True; t += 12
                if g == P.get("tpoll_gap", 305):
                    V("p", "buffer_load_dword v12, v5, s[84:87], s34 offen %s" % SC); t += 8
                t = max(t, 8)
                while stream and t < GL - 3 and stream[0][0] <= g:
                    r_, ops, burst = stream.pop(0)
                    if ops == ["HDONE"]: hdone = g; continue
                    if not isv(ops[0]): front.append(ops[0]); continue
                    for o in ops: E(o); t += cost(o)
                    if burst: t = max(t, 29 + 4 * len(ops))
            est += max(16, t)
    sys.stderr.write("tail: %d stream ops left after last MFMA, est %d, hdone %s hsent %s memq %d\n" % (len(stream), est, hdone, hsent, len(memq)))
    stamp()
    for o in front: E(o)
    a("s_nop 1")
    for r_, ops, burst in stream:
        for o in ops:
            if o != "HDONE": E(o)
    HPOS = P.get("hflag_pos", 0)
    if not hsent and HPOS == 0: hflag(); hsent = True
    M4 = range(4)
    a("s_nop 1")
    for m in (1, 2, 3):
        a("%s %s, %s, %s, 0" % (MF, vr(Sc(m), 4), vr(Kf(m), 4), vr(Qf(m), 4)))
        a("%s %s, %s, %s, 0" % (MF, vr(Sp(m), 4), vr(Kf(m - 1), 4), vr(Qf(m), 4)))
    a("%s %s, %s, %s, 0" % (MF, vr(Sc(0), 4), vr(Kf(0), 4), vr(Qf(0), 4)))
    for o in cvt_acc(2, HACC, 20): a(o)
    a("v_add_u32 v4, s71, v24"); a("v_add_u32 v10, s71, v4"); a("v_add_u32 v8, s71, v10")
    for o in cvt_acc(VV(1, 3), accQ(5, 3), TT(0)): a(o)
    a("ds_write_b16 v24, v2"); a("ds_write_b16_d16_hi v4, v2"); a("ds_write_b16 v10, v3"); a("ds_write_b16_d16_hi v8, v3")
    a("s_cmp_eq_u32 s32, 3")
    a("s_cbranch_scc1 L_noexp")
    a("ds_write_b128 v25, %s offset:2048" % vr(Kf(3), 4))
    a("ds_write_b64 v25, %s offset:3072" % vr(VV(0, 3), 2))
    a("ds_write_b64 v25, %s offset:3080" % vr(VV(1, 3), 2))
    a.label("L_noexp")
    if not hsent: hflag()
    PPOS = P.get("poll_pos", 9)
    poll1 = lambda: V("p", "buffer_load_dword v12, v5, s[84:87], s34 offen %s" % SC)
    if PPOS == 0: poll1()
    for m in (2, 1):
        for o in cvt_acc(VV(1, m), accQ(5, m), TT(m)): a(o)
    a("s_waitcnt lgkmcnt(0)")
    a("s_barrier")
    a("ds_read_b128 %s, v25" % vr(Kf(-1), 4))
    a("ds_read_b64 %s, v25 offset:1024" % vr(VV(0, -1), 2))
    a("ds_read_b64 %s, v25 offset:1032" % vr(VV(1, -1), 2))
    for o in cvt_acc(VV(1, 0), accQ(5, 0), TT(0)): a(o)
    a("s_and_b32 s3, s2, 4"); a("s_lshl_b32 s3, s3, 9")
    a("v_add_u32 v%d, s3, v15" % VX)
    for q in range(1, 4): a("v_add_u32 v%d, %d, v%d" % (VX + q, 8192 * q, VX))
    for q in range(2): a("v_xor_b32 v%d, 0x800, v%d" % (VX + 4 + q, VX + q))
    a("v_mov_b32 v11, 0xce6e6b28")
    a("s_waitcnt lgkmcnt(0)")
    a("%s %s, %s, %s, 0" % (MF, vr(Sp(0), 4), vr(Kf(-1), 4), vr(Qf(0), 4)))
    stamp()
    if PPOS == 1: poll1()
    LATE = [17, 18]
    dq = list(memq)
    aw = Weave(P.get("dma_every", 10), dq)
    CKP = P.get("check_pos", 0)
    BLK = P.get("blocking", 0)
    def hcheck():
        if BLK:
            aw.flush()
            check_flags(12, 5, "s34", "p", "L_f1")
            stamp()
            dq.extend([o for sg in range(NX0) for o in xops(sg)])
            aw.n = P.get("x_every", 4)
            for _ in range(P.get("x_burst", 4)): aw.one()
            return
        vwait("p")
        a("v_cmp_ne_u32 vcc, s96, v12")
        a("s_nop 0")
        a("s_cmp_eq_u64 vcc, 0")
        a("s_cselect_b32 s60, s46, %s" % ("s46" if P.get("ab_nocheck") else str(OOB)))
        if P.get("force_late"): a("s_mov_b32 s60, %d" % OOB)
        stamp()
        dq.extend([o for sg in range(NX0) for o in xops(sg)])
        for _ in range(P.get("x_burst", 3)): aw.one()
    if CKP == 0: hcheck()
    if P.get("ab_nosm"):
        aw_real = aw
        class Skip:
            def __call__(self, t):
                if t in keep: a(t)
            def one(self): aw_real.one()
            def flush(self): aw_real.flush()
        keep = set()
        aw = Skip()
    A_ = lambda m: TT(m)
    B_ = lambda m: TT(m) + 1
    X_ = lambda m: TT(m) + 2
    Y_ = lambda m: TT(m) + 3
    MR = (3, 2, 1, 0)
    for m in MR:
        for S_ in (Sc, Sp):
            aw("v_cndmask_b32 v%d, v%d, v%d, s[62:63]" % (S_(m), S_(m), S_(m) + 1))
            aw("v_cndmask_b32 v%d, v%d, v%d, s[62:63]" % (S_(m) + 2, S_(m) + 2, S_(m) + 3))
    for m in MR:
        aw("v_cndmask_b32 v%d, v%d, v%d, s[40:41]" % (A_(m), Sp(m), Sc(m)))
        aw("v_cndmask_b32 v%d, v%d, v%d, s[42:43]" % (B_(m), Sp(m) + 2, Sc(m) + 2))
    if CKP == 1: hcheck()
    def rnd():
        for m in MR: aw("v_cvt_pk_bf16_f32 v%d, v%d, v%d" % (X_(m), A_(m), B_(m)))
        for m in MR:
            aw("v_lshlrev_b32 v%d, 16, v%d" % (A_(m), X_(m)))
            aw("v_and_b32 v%d, s54, v%d" % (B_(m), X_(m)))
    rnd()
    for m in MR: aw("v_pk_mul_f32 %s, %s, s[48:49] op_sel_hi:[1,0]" % (vr(A_(m), 2), vr(A_(m), 2)))
    rnd()
    aw("v_cndmask_b32 v%d, v%d, v11, s[88:89]" % (A_(0), A_(0)))
    aw("v_cndmask_b32 v%d, v%d, v11, s[90:91]" % (B_(0), B_(0)))
    if CKP == 2: hcheck()
    if PPOS == 2: poll1()
    fillq = [unp("vw", VW)] + ["v_xor_b32 v%d, %d, v%d" % (VW + b, 32 * b, VW) for b in range(1, 8)] + \
            [unp("vwo", VWO)] + ["v_xor_b32 v%d, %d, v%d" % (VWO + b, 32 * b, VWO) for b in range(1, 4)] + \
            ["v_subrev_u32 v%d, %d, v%d" % (40 + b, R2, VWO + b) for b in range(4)] + \
            ["v_add_u32 v%d, %d, v%d" % (44 + b, 106496 - R2, VWO + b) for b in range(4)] + \
            [unp("vout", 2)]
    if P.get("ab_nosm"): keep.update(fillq)
    def pad(n):
        for _ in range(n):
            aw(fillq.pop(0) if fillq else "s_nop 0")
    def reduce(op):
        for m in MR: aw("%s v%d, v%d, v%d" % (op, X_(m), A_(m), B_(m)))
        for sw in ("v_permlane16_swap_b32", "v_permlane32_swap_b32"):
            for m in MR: aw("v_mov_b32 v%d, v%d" % (Y_(m), X_(m)))
            pad(2)
            for m in MR: aw("%s v%d, v%d" % (sw, X_(m), Y_(m)))
            pad(1)
            for m in MR: aw("%s v%d, v%d, v%d" % (op, X_(m), X_(m), Y_(m)))
    reduce("v_max_f32")
    if CKP == 3: hcheck()
    if PPOS == 3: poll1()
    for m in MR: aw("v_pk_add_f32 %s, %s, %s op_sel_hi:[1,0] neg_lo:[0,1] neg_hi:[0,1]" % (vr(A_(m), 2), vr(A_(m), 2), vr(X_(m), 2)))
    for m in MR: aw("v_pk_mul_f32 %s, %s, s[48:49] op_sel:[0,1]" % (vr(A_(m), 2), vr(A_(m), 2)))
    for m in MR:
        aw("v_exp_f32 v%d, v%d" % (A_(m), A_(m)))
        aw("v_exp_f32 v%d, v%d" % (B_(m), B_(m)))
    pad(1)
    reduce("v_add_f32")
    if CKP == 4: hcheck()
    if PPOS == 4: poll1()
    for m in MR: aw("v_rcp_f32 v%d, v%d" % (X_(m), X_(m)))
    pad(1)
    for m in MR: aw("v_pk_mul_f32 %s, %s, %s op_sel_hi:[1,0]" % (vr(A_(m), 2), vr(A_(m), 2), vr(X_(m), 2)))
    for m in MR: aw("v_cvt_pk_bf16_f32 v%d, v%d, v%d" % (X_(m), A_(m), B_(m)))
    for m in MR:
        aw("v_and_b32 v%d, 0xffff, v%d" % (A_(m), X_(m)))
        aw("v_lshrrev_b32 v%d, 16, v%d" % (B_(m), X_(m)))
    for m in MR:
        aw("v_lshlrev_b32 v%d, v27, v%d" % (A_(m), A_(m)))
        aw("v_lshlrev_b32 v%d, v27, v%d" % (B_(m), B_(m)))
    for m in MR:
        aw("v_cndmask_b32 v%d, v%d, 0, s[40:41]" % (Pf(m), A_(m)))
        aw("v_cndmask_b32 v%d, v%d, 0, s[42:43]" % (Pf(m) + 1, B_(m)))
        aw("v_cndmask_b32 v%d, 0, v%d, s[40:41]" % (Pf(m) + 2, A_(m)))
        aw("v_cndmask_b32 v%d, 0, v%d, s[42:43]" % (Pf(m) + 3, B_(m)))
    pad(max(2, len(fillq)))
    if CKP == 5: hcheck()
    sys.stderr.write("DMA queue left after softmax: %d\n" % len(dq))
    for m in MR:
        a("%s %s, %s, %s, 0" % (MF, vr(Sp(m), 4), vr(VV(0, m - 1), 4), vr(Pf(m), 4)))
        a("%s %s, %s, %s, 0" % (MF, vr(Sc(m), 4), vr(VV(1, m - 1), 4), vr(Pf(m), 4)))
    stamp()

    lg = Cnt()
    for b in range(4):
        for o in wreads2(0, b): a(o); lg.issue((0, b))
    for m in M4:
        for h in range(4):
            a("v_cvt_pk_bf16_f32 v%d, v%d, v%d" % (240 + 4 * m + h, Sp(m) + 2 * h, Sp(m) + 2 * h + 1))
    aw.flush()
    if not BLK:
        vwait(*[t for t in vm.q if not t.startswith("X")])
        sv = list(vm.q)
        a("s_cmp_eq_u32 s60, s46")
        a("s_cbranch_scc1 L_early")
        a("s_mov_b32 s60, s46")
        poll1()
        check_flags(12, 5, "s34", "p", "L_f1")
        for sg in range(NX0):
            for o in xops(sg): E(o)
        assert vm.q == sv, (vm.q, sv)
        a.label("L_early")
    ostores = [("os", "buffer_store_dwordx4 %s, v15, s[28:31], s75 offen offset:%d %s" % (vr(240 + 4 * m, 4), 1024 * m, SC)) for m in M4]

    srd(a, 16, PX, 0, 2048 * 2048)
    srd(a, 20, PWS, PART_OFF, PART_BYTES)
    srd(a, 24, POUT, 0, 2048 * 2048)
    a("s_add_u32 s73, s72, 32768")
    a("s_lshl2_add_u32 s74, s2, s32"); a("s_lshl_b32 s88, s74, 2"); a("s_add_u32 s88, s88, %d" % F2)
    a("s_lshl_b32 s74, s74, 14")
    a("v_and_b32 v14, 0x30, v15"); a("v_max_u32 v14, 16, v14"); a("v_lshlrev_b32 v14, 1, v14"); a("v_xor_b32 v14, s88, v14")
    a("s_add_u32 s89, s88, 4096"); a("s_movk_i32 s94, 4096")
    a("s_mov_b32 s92, s35")
    vwait("X0")
    stamp()

    AH = P.get("ahead", 1)
    Hs = [(sg, c) for sg in range(ND - AH) for c in (0, 1)] + [(sg, 0) for sg in range(ND - AH, ND)] + [(sg, 1) for sg in range(ND - AH, ND)] + \
         [(sg, c) for sg in range(ND, NS) for c in (0, 1)]
    lastuse = {sg: max(i for i, h in enumerate(Hs) if h[0] == sg) // 2 for sg in range(NS)}
    firstuse = {sg: min(i for i, h in enumerate(Hs) if h[0] == sg) // 2 for sg in range(NS)}
    wsched = {}
    for w in range(4, FR):
        wsched.setdefault(lastuse[w - 4], []).append(w)
        assert lastuse[w - 4] < firstuse[w] - 1 or w >= ND, (w, lastuse[w - 4], firstuse[w])
        assert lastuse[w - 4] < firstuse[w] - 1
    LASTBAR = FR - 2
    q01 = max(i for i, h in enumerate(Hs) if h[0] < ND and h[1] == 0)
    isV = lambda x: isinstance(x, tuple)
    isval = lambda x: isinstance(x, str) and x.startswith("v_")
    def stage(sg, h1=(), h2=(), pre=None, valu=None):
        last = sg == NS - 1
        if P.get("sstamp") and sg >= 1: stamp()
        if pre: pre()
        NG = 64 if sg < ND else 32
        H = NG // 2
        h1 = list(h1); h2 = [o for w in wsched.get(sg, []) for o in wops(w)] + list(h2)
        drop = lambda o: isinstance(o, tuple) and ((P.get("ab_dx") and o[0].startswith("X") and sg >= P["ab_dx"]) or (P.get("ab_dw") and o[0].startswith("W")) or (P.get("ab_dos") and o[0] in ("os", "e", "R")))
        h1 = [o for o in h1 if not drop(o)]; h2 = [o for o in h2 if not drop(o)]
        blk = lambda k, b: (Hs[2 * k + b // 4][0], 4 * Hs[2 * k + b // 4][1] + b % 4)
        r1 = [((sg, b), o) for b in range(4, 8) for o in wreads2(*blk(sg, b), b)]
        r2 = [] if last else [((sg + 1, b), o) for b in range(4) for o in wreads2(*blk(sg + 1, b), b)]
        bar = sg <= LASTBAR
        plan = {g: [] for g in range(NG)}
        load = {g: 4 for g in range(NG)}
        WG_ = {H // 2 - 1: (sg, 3), NG - 1: (sg + 1, 1)}
        if not bar: WG_.update({H - 1: (sg, 5), 3 * H // 2 - 1: (sg, 7)})
        for g in WG_: load[g] += 4
        if bar: load[H - 1] += 8
        def place(lo, hi, rds, rhi, h):
            n = len(rds)
            for k in range(n):
                g = lo + k * (rhi - lo + 1) // n
                plan[g].append(("r",) + rds[k]); load[g] += 8
            nv = sum(isV(x) for x in h)
            pos = [None] * len(h); vi = 0; prev = lo
            for k, x in enumerate(h):
                if isV(x):
                    t = lo + int((vi + 0.5) * (hi - lo + 1) / nv); vi += 1
                    c = sorted(range(max(prev, t - 1), min(hi, t + 1) + 1), key=lambda g: (load[g], abs(g - t))) or [hi]
                    pos[k] = prev = c[0]; load[c[0]] += 8
            prev = lo
            for k, x in enumerate(h):
                if pos[k] is None:
                    nxt = next((pos[j] for j in range(k + 1, len(h)) if pos[j] is not None), hi)
                    if isval(x) and nxt > prev: nxt -= 1
                    c = [g for g in range(prev, nxt + 1) if load[g] <= 12]
                    g = c[0] if c else min(range(prev, max(prev, nxt) + 1), key=lambda g: load[g])
                    pos[k] = g; load[g] = max(load[g], 8 if isval(x) else 0) + 4
                pos[k] = max(pos[k], prev); prev = pos[k]
                plan[pos[k]].append(("o", x))
        place(0, H - 1, r1, (H - 7 if NG == 64 else H - 4) if bar else H - 1, h1)
        place(H, NG - 1, r2, NG - 1, h2)
        if valu:
            for k, x in enumerate(valu[0]): plan[valu[1] + k * (NG - valu[1]) // len(valu[0])].append(("o", x))
        sys.stderr.write("st%d:%d " % (sg, sum(max(16, v) for v in load.values())))
        g = 0
        for b in range(8):
            w = lg.need((sg, b))
            if w is not None: a("s_waitcnt lgkmcnt(%d)" % w)
            for mf in mfmas2(*blk(sg, b), b):
                a(mf)
                for x in plan[g]:
                    if x[0] == "r": a(x[2]); lg.issue(x[1])
                if g in WG_:
                    w = lg.need(WG_[g])
                    if w is not None: a("s_waitcnt lgkmcnt(%d)" % w)
                for x in plan[g]:
                    if x[0] != "r": E(x[1])
                if g == H - 1 and bar:
                    vwait("W%d" % Hs[2 * sg + 2][0], "W%d" % Hs[2 * sg + 3][0], lg0=True)
                    a("s_barrier")
                    lg.clear()
                if g == H - 2: vwait("X%d" % Hs[2 * sg + 1][0])
                if g == NG - 2 and not last: vwait("X%d" % Hs[2 * sg + 2][0])
                g += 1
    def oflag():
        vwait("os")
        V("f", "buffer_store_dword v7, v6, s[84:87], s92 offen %s" % SC)
    EPV = 224
    eload = ["v_lshlrev_b32 v4, %d, v15" % (F0S - 2), "s_or_b32 s3, s2, s32", "s_cselect_b32 s3, %d, 0" % OOB] + \
          [("e", "buffer_load_dwordx4 %s, v4, s[84:87], s3 offen offset:%d %s" % (vr(EPV + 4 * k, 4), k << F0S, SC)) for k in range(4)]
    def epoch():
        a("s_or_b32 s3, s2, s32")
        a("s_cbranch_scc1 L_noep")
        a("s_mov_b32 s97, 0")
        a.label("L_ep")
        for k in range(16): a("v_xor_b32 v%d, s96, v%d" % (EPV + k, EPV + k))
        for k in range(1, 16): a("v_or_b32 v%d, v%d, v%d" % (EPV, EPV, EPV + k))
        a("v_cmp_ne_u32 vcc, 0, v%d" % EPV)
        a("s_cbranch_vccz L_epok")
        for k in range(4): a("buffer_load_dwordx4 %s, v4, s[84:87], 0 offen offset:%d %s" % (vr(EPV + 4 * k, 4), k << F0S, SC))
        a("s_add_u32 s97, s97, 1")
        a("s_waitcnt vmcnt(0)")
        a("s_cmp_lt_u32 s97, 0x80000")
        a("s_cbranch_scc1 L_ep")
        a.label("L_epok")
        a("s_mov_b32 s3, %d" % EPOCH)
        a("buffer_store_dword v7, v6, s[84:87], s3 offen %s" % SC)
        a.label("L_noep")

    PK, XU, XRES, TE = 64, 112, 240, 224
    KEEP = 160
    XUF = lambda o: 80 + (o // 16) * 32 + o % 16
    sends = []
    for hf in range(2):
        for qd in range(3):
            for k in (2 * hf, 2 * hf + 1):
                R = 64 + 32 * qd + 8 * k
                sends.append((["s_add_u32 s75, s74, %d" % (4096 * qd)] if k % 2 == 0 else []) +
                             [("v_cvt_pk_bf16_f32 v%d, v%d, v%d" % (R + r, R + 2 * r, R + 2 * r + 1)) for r in range(4)] +
                             [("S%d" % hf, "buffer_store_dwordx4 %s, v15, s[20:23], s75 offen offset:%d %s" % (vr(R, 4), 1024 * k, SC))])
    PKR = lambda qd, k: 64 + 32 * qd + 4 * k
    xres = [("R", "buffer_load_dwordx4 %s, v2, s[16:19], s%d offen offset:%d" % (vr(XRES + 4 * (2 * m + bp), 4), 72 + m, 64 * bp)) for m in range(2) for bp in range(2)]
    parts = ["s_xor_b32 s%d, s74, 0x%x" % (40 + qd, (dx << 16) + 4096 * qd) for qd, dx in enumerate((2, 6, 4))]
    for k in range(4):
        parts += [("P%d" % k, "buffer_load_dwordx4 %s, v15, s[20:23], s%d offen offset:%d %s" % (vr(PKR(qd, k), 4), 40 + qd, 1024 * k, SC)) for qd in range(3)]
    if P.get("ab_nosend"): sends = [[o for o in x if not isinstance(o, tuple)] for x in sends]
    if P.get("ab_noparts"): parts = parts[:3] + ["s_nop 0"] * 12
    SPA = P.get("send", [4, 2, 1, 1, 1, 1, 1, 1])
    NBB = P.get("nbb", 1)
    EXA, EXB = P.get("ex_a", [16, 18, 19]), P.get("ex_b", [19, 21, 22])
    XRS = P.get("xres_stage", 12)
    def take(n):
        r = [o for x in sends[:n] for o in x]; del sends[:n]; return r
    def sflag(hf):
        vwait("S%d" % hf)
        V("f", "buffer_store_dword v7, v6, s[84:87], s%d offen %s" % (88 + hf, SC))
    pollx = lambda hf: ("p%d" % hf, "buffer_load_dword v%d, v14, s[84:87], %s offen %s" % ((3, 12)[hf], ("0", "s94")[hf], SC))
    checkx = lambda hf: check_flags((3, 12)[hf], 14, ("0", "s94")[hf], "p%d" % hf, "L_f3%d" % hf)
    partx = lambda hf: parts[:9] if hf == 0 else parts[9:]
    def round4(R, T):
        return ["v_cvt_pk_bf16_f32 v%d, v%d, v%d" % (T, R, R + 1), "v_cvt_pk_bf16_f32 v%d, v%d, v%d" % (T + 1, R + 2, R + 3),
                "v_lshlrev_b32 v%d, 16, v%d" % (R, T), "v_and_b32 v%d, s54, v%d" % (R + 1, T),
                "v_lshlrev_b32 v%d, 16, v%d" % (R + 2, T + 1), "v_and_b32 v%d, s54, v%d" % (R + 3, T + 1)]
    xpart = [lambda: vwait("R"), "v_mov_b32 v8, 0x3f80", "v_mov_b32 v9, 1.0"]
    for g4 in range(4):
        R = XRES + 4 * g4
        xpart += ["v_permlane16_swap_b32 v%d, v%d" % (R, R + 2), "v_permlane16_swap_b32 v%d, v%d" % (R + 1, R + 3)]
    for m in range(2):
        for bp in range(2):
            for be in range(2):
                for h in range(2):
                    src = XRES + 4 * (2 * m + bp) + 2 * be + h
                    d = XUF(((2 * bp + be) * 2 + m) * 4 + 2 * h)
                    xpart += ["v_lshlrev_b32 v%d, 16, v%d" % (d, src), "v_and_b32 v%d, s54, v%d" % (d + 1, src)]
    QD, QO, SW = P.get("qd", 7.75), P.get("qo", 5.5), P.get("sw", 1.5)
    xq = []
    for x in range(NX0, NS):
        o = xops(x); xq += [(x, o[:2])] + [(x, [y]) for y in o[2:]]
    fq = []
    for t in LATE:
        o = wops(t, True)
        fq += [(1, [o[0], o[1 + 2 * k], o[2 + 2 * k]]) for k in range(4)]
    fq += [(2, [y]) for y in xres]
    OS0 = P.get("os_half", 2)
    FMIN = P.get("fill_from", 10)
    alloc = {}; first = {}; carry = 0.0
    for hh in range(2 * NS):
        sg = hh // 2
        w = carry + (4 * len(wsched.get(sg, [])) if hh % 2 else 0)
        L = []
        if OS0 <= hh < OS0 + 4: L.append(ostores[hh - OS0]); w += SW
        k = hh - q01 - 1
        if 0 <= k < len(SPA): w += SW * SPA[k]
        q = QD if sg < ND else QO
        urgent = lambda: xq and firstuse[xq[0][0]] <= sg + P.get("xmin", 1)
        while w + 0.5 <= q or urgent():
            if fq and hh >= FMIN and hh % 2 == 0 and not any(o in L for _, f in fq[:0] for o in f) and P.get("fill_mix", 1) and not urgent() and sum(1 for o in L if isinstance(o, tuple) and not o[0].startswith("X")) < 2:
                c, o = fq.pop(0); L += o; w += c
            elif xq and (xq[0][0] < NXB or lastuse[xq[0][0] - NXB] < sg):
                x, o = xq.pop(0); first.setdefault(x, sg); L += o; w += 1
                assert firstuse[x] > sg, (x, sg)
            elif fq and hh >= FMIN:
                c, o = fq.pop(0); L += o; w += c
            else: break
        carry = w - q if abs(w - q) < 1 or w > q else 0.0
        alloc[hh] = L
        sys.stderr.write("%d:%d " % (hh, sum(isinstance(o, tuple) for o in L)))
    sys.stderr.write(" first %s\n" % first)
    assert not xq and not fq
    assert all(not (isinstance(o, tuple) and (o[0] == "R" or o[0][0] == "W")) for hh in range(2 * 13, 2 * NS) for o in alloc[hh])
    ck2, cko = first[7], first[ND]
    for sg in range(NS):
        h1, h2 = list(alloc[2 * sg]), list(alloc[2 * sg + 1])
        pre = []
        if sg == 1: h2 = h2 + eload
        if sg == (OS0 + 3) // 2 + 2: pre.append(oflag)
        if sg == ck2 - 2: h2 = h2 + [("p", "buffer_load_dword v12, v5, s[84:87], s58 offen %s" % SC)]
        if sg == ck2: pre += [lambda: check_flags(12, 5, "s58", "p", "L_f1b")]
        if sg == 4: pre += [lambda: vwait("e"), epoch]
        if sg == cko - 2: h2 = h2 + [("p", "buffer_load_dword v3, v13, s[84:87], s59 offen %s" % SC)]
        if sg == cko: pre.append(lambda: check_flags(3, 13, "s59", "p", "L_f2"))
        for hh, lst in ((2 * sg, h1), (2 * sg + 1, h2)):
            k = hh - q01 - 1
            t_ = take(SPA[k]) if 0 <= k < len(SPA) else []
            if P.get("send_first", 1): lst[:0] = t_
            else: lst += t_
        for hf, (f_, p_, c_) in enumerate((EXA, EXB)):
            if sg == p_: h2 = h2 + [pollx(hf)]
            if sg - 0.5 == p_: h1 = h1 + [pollx(hf)]
            if sg == f_: pre.append(lambda hf=hf: sflag(hf))
            if sg + 0.5 == f_: h2 = [lambda hf=hf: sflag(hf)] + h2
            if sg == c_:
                pre.append(lambda hf=hf: checkx(hf)); px = partx(hf); h1 = h1 + px[:-3]; h2 = px[-3:] + h2
        if sg == ND: stamp()
        wv = None
        if sg == P.get("xpart_stage", 20): wv = (xpart, 0)
        stage(sg, h1, h2, pre=(lambda pre=pre: [f() for f in pre]), valu=wv)
    sys.stderr.write("\n")
    assert not sends
    stamp()
    for hf, (f_, p_, c_) in enumerate((EXA, EXB)):
        if c_ == NS and not (hf == 1 and NBB):
            checkx(hf)
            for o in partx(hf): E(o)
    def nb_try():
        vwait("p1")
        a("v_cmp_ne_u32 vcc, s96, v12")
        a("s_nop 0")
        a("s_cmp_eq_u64 vcc, 0")
        a("s_cselect_b32 s46, 0, %d" % OOB)
        if P.get("force_late"): a("s_mov_b32 s46, %d" % OOB)
        for qd in range(3): a("s_add_u32 s%d, s%d, s46" % (43 + qd, 40 + qd))
        for t, o in partx(1):
            for qd in range(3): o = o.replace("s%d offen" % (40 + qd), "s%d offen" % (43 + qd))
            V(t, o)
    def nb_fix():
        a("s_cmp_eq_u32 s46, 0")
        a("s_cbranch_scc1 L_nbok")
        sv = list(vm.q)
        E(pollx(1)); checkx(1)
        for o in partx(1): E(o)
        a("s_waitcnt vmcnt(0)")
        vm.q = sv
        a.label("L_nbok")
    if NBB == 1: nb_try()
    def dots(k):
        vwait("P%d" % k)
        for qd in range(3):
            for r in range(8):
                a("v_dot2_f32_bf16 v%d, v%d, v%d, v%d" % (KEEP + 8 * k + r, PKR(qd, k) + r // 2, 8 + (r & 1), KEEP + 8 * k + r))
    MIM = P.get("mimic", "s")
    if "s" in MIM:
        a("s_nop 7")
        for k in range(8):
            for x in round4(accO(0, 0) + 4 * k, 48 + 2 * (k % 2)): a(x)
    if NBB == 2: nb_try()
    for bp in range(2):
        if bp == 1 and NBB: nb_fix()
        dots(2 * bp); dots(2 * bp + 1)
        o = 16 * bp
        H8 = range(0, 16, 2)
        if "y" in MIM:
            for k in range(4):
                for x in round4(KEEP + o + 4 * k, 10 + 2 * (k % 2)): a(x)
        for h in H8: a("v_pk_mul_f32 %s, %s, s[50:51]" % (vr(TE + o + h, 2), vr(KEEP + o + h, 2)))
        for r in range(16): a("v_exp_f32 v%d, v%d" % (TE + o + r, TE + o + r))
        for h in H8: a("v_pk_mul_f32 %s, %s, %s" % (vr(KEEP + o + h, 2), vr(KEEP + o + h, 2), vr(accO(0, 0) + o + h, 2)))
        for h in H8: a("v_pk_add_f32 %s, %s, s[52:53]" % (vr(TE + o + h, 2), vr(TE + o + h, 2)))
        for m in range(2):
            D = 32 + 4 * (2 * m + bp)
            offs = [o + (be * 2 + m) * 4 for be in range(2)]
            for f in offs:
                for r in range(4): a("v_rcp_f32 v%d, v%d" % (TE + f + r, TE + f + r))
            for f in offs:
                for h in (0, 2): a("v_pk_fma_f32 %s, %s, %s, %s" % (vr(KEEP + f + h, 2), vr(KEEP + f + h, 2), vr(TE + f + h, 2), vr(XUF(f + h), 2)))
            for be, f in enumerate(offs):
                a("v_cvt_pk_bf16_f32 v%d, v%d, v%d" % (D + 2 * be, KEEP + f, KEEP + f + 1))
                a("v_cvt_pk_bf16_f32 v%d, v%d, v%d" % (D + 2 * be + 1, KEEP + f + 2, KEEP + f + 3))
            a("s_nop 0")
            a("v_permlane16_swap_b32 v%d, v%d" % (D, D + 2))
            a("v_permlane16_swap_b32 v%d, v%d" % (D + 1, D + 3))
            a("s_nop 0")
            V("out", "buffer_store_dwordx4 %s, v2, s[24:27], s%d offen offset:%d %s" % (vr(D, 4), 72 + m, 64 * bp, P.get("outfl", "")))
    if probe is not None:
        stamp(); a("s_waitcnt vmcnt(0)"); stamp()
        a.label("L_probe")
        a("s_memrealtime s[4:5]"); a("s_waitcnt lgkmcnt(0)"); a("s_sub_u32 s4, s4, s98"); a("s_cmp_lt_u32 s4, 10000"); a("s_cbranch_scc1 L_probe")
    if prof:
        stamp(); a("s_waitcnt vmcnt(0)"); stamp()
        srd(a, 8, PWS, STAMP_OFF, 65536)
        a("s_lshl_b32 s3, s2, 8")
        a("v_lshl_add_u32 v8, v0, 2, s3")
        a("v_cmp_gt_u32 vcc, 64, v0")
        a("s_and_b64 exec, exec, vcc")
        a("s_cbranch_execz L_end")
        a("buffer_store_dword v31, v8, s[8:11], 0 offen")
    a.label("L_end")
    a("s_endpgm")
    desc(a, name, 256 + NAGPR, 100, 256)
    hdr = open("recurrent_scan__sliding_local_dilated__swiglu_ffn__prompt.s.ref").read().split("; Override launch")[0]
    if P.get("aslist", 1):
        hdr += "; @launch kernel=%s grid=(256,1,1) block=(256,1,1) lds=%d\n" % (name, LDS_BYTES)
    else:
        hdr += "; @launch grid=(256,1,1) block=(256,1,1) lds=%d\n" % LDS_BYTES
    return hdr + a.text()

if __name__ == "__main__":
    P = json.loads(sys.argv[2]) if len(sys.argv) > 2 else {}
    open(sys.argv[1], "w").write(gen(P))
```

```python
import sys, json
sys.path.insert(0, "dev")
from gen_common import *

MAIN = "recurrent_scan__sliding_local_dilated__swiglu_ffn__prompt_kernel"
SLOT = 40960
GATE, UP, QKV = 0, 14336, 28672
EX = 155648
LDS_BYTES = 163840
LNX = EX
R2 = SLOT
F0, F1H, F1O, F2, EPOCH = 0, 32768, 40960, 262144, 65536
NONCE_ADD = 0x6A09E667
OOB = 0x40000000
SC = "sc1"
MF = "v_mfma_f32_16x16x32_bf16"

class Cnt:
    def __init__(self, init=(), cap=15):
        self.q = list(init); self.cap = cap
    def issue(self, tag): self.q.append(tag)
    def need(self, *tags):
        idx = [i for i, t in enumerate(self.q) if t in tags]
        if not idx: return None
        last = max(idx)
        n = len(self.q) - 1 - last
        self.q = self.q[last + 1:]
        return min(n, self.cap)
    def clear(self): self.q = []

def cost(o):
    s = o[1] if isinstance(o, tuple) else o
    if callable(s): return 4
    if s.startswith(("v_exp", "v_rcp", "buffer_", "v_permlane")): return 8
    return 4

def gen(P):
    a = Asm()
    name = MAIN
    prof, probe = P.get("prof"), P.get("probe")
    nst = [0]
    def stamp():
        if probe is not None:
            if nst[0] == probe:
                a("s_memrealtime s[98:99]"); a("s_waitcnt lgkmcnt(0)")
            nst[0] += 1
            return
        if not prof: return
        a("%s s[98:99]" % ("s_memtime" if prof == 2 else "s_memrealtime"))
        a("s_waitcnt lgkmcnt(0)")
        a("v_writelane_b32 v31, s98, %d" % nst[0])
        nst[0] += 1
    XSC = P.get("xsc", "sc1")
    ROT2 = P.get("g2_rot", 0)
    vm = Cnt(cap=63)
    def V(tag, s):
        vm.issue(tag)
        if s.endswith("lds") and a.lines[-1].strip().startswith("s_add_u32 m0"): a("s_nop 0")
        a(s)
    def E(o):
        if isinstance(o, tuple): V(*o)
        elif callable(o): o()
        else: a(o)
    def vwait(*tags, lg0=False):
        n = vm.need(*tags)
        parts = ([] if n is None else ["vmcnt(%d)" % n]) + (["lgkmcnt(0)"] if lg0 else [])
        if parts: a("s_waitcnt " + " ".join(parts))
    def check_flags(vreg, voff, soff, tag, label):
        vwait(tag)
        a("v_cmp_ne_u32 vcc, s96, v%d" % vreg)
        a("s_cbranch_vccz %s_ok" % label)
        a("s_mov_b32 s97, 0")
        a.label(label + "_spin")
        a("s_sleep 4")
        a("buffer_load_dword v%d, v%d, s[84:87], %s offen %s" % (vreg, voff, soff, SC))
        a("s_add_u32 s97, s97, 1")
        a("s_waitcnt vmcnt(0)")
        a("s_cmp_gt_u32 s97, 0x80000")
        a("s_cbranch_scc1 %s_ok" % label)
        a("v_cmp_ne_u32 vcc, s96, v%d" % vreg)
        a("s_cbranch_vccnz %s_spin" % label)
        a.label(label + "_ok")

    class Weave:
        def __init__(self, n, q, skip=0): self.n, self.c, self.q = n, -skip, q
        def __call__(self, t):
            a(t)
            if t.startswith("v_") and not t.startswith("v_mfma"):
                self.c += 1
                if self.c > 0 and self.c % self.n == 0: self.one()
        def one(self):
            while self.q:
                o = self.q.pop(0); E(o)
                if isinstance(o, tuple): break
        def flush(self):
            while self.q: self.one()

    accGU = lambda p, gu, m: 32 + ((p * 2 + gu) * 4 + m) * 4
    accQ = lambda s, m: (s * 4 + m) * 4
    HACC = 96
    XB = lambda buf, m, kh: (100 + buf * 40 + (m * 2 + kh) * 4) if buf < 2 else ((224 + (m * 2 + kh) * 4) if m < 4 else 172 + kh * 4)
    WR = lambda slot, kh: 180 + slot * 8 + kh * 4
    HW = lambda kh: 212 + kh * 4
    PARK = 220
    NAGPR = 256
    PX, PQKV, PWO, PG, PU, PD, POUT, PDBG, PWS = 64, 66, 68, 72, 74, 76, 78, 80, 82

    a.raw('.amdgcn_target "amdgcn-amd-amdhsa--gfx950"')
    kernel_header(a, name)
    a("s_cmp_ge_u32 s2, 256")
    a("s_cbranch_scc1 L_end")
    a("s_load_dwordx16 s[64:79], s[0:1], 0")
    a("s_load_dwordx4 s[80:83], s[0:1], 64")
    a("s_getpc_b64 s[4:5]")
    a.label("L_pc")
    a("v_and_b32 v17, 63, v0")
    a("s_mov_b32 s6, L_end-L_pc")
    a("s_mov_b32 s7, 0x20000")
    a("v_lshlrev_b32 v1, 7, v17")
    a("s_bfe_u32 s3, s2, 0x30003")
    a("s_lshl_b32 s3, s3, 13")
    V("c", "buffer_load_dword v29, v1, s[4:7], s3 offen")
    if prof: a("v_mov_b32 v31, 0")
    stamp()
    a("v_lshrrev_b32 v16, 6, v0")
    a("v_lshrrev_b32 v18, 3, v17")
    a("v_and_b32 v19, 7, v17")
    a("v_readfirstlane_b32 s32, v16")
    a("v_lshlrev_b32 v20, 11, v18")
    a("v_lshl_add_u32 v20, v16, 9, v20")
    a("v_lshl_add_u32 v20, v19, 4, v20")
    a("s_and_b32 s34, s2, 7")
    a("s_bfe_u32 s35, s2, 0x20003")
    a("s_lshl2_add_u32 s34, s34, s35")
    a("s_lshr_b32 s33, s2, 5")
    a("s_lshl_b32 s36, s33, 5")
    a("s_add_u32 s36, s36, s34")
    a("s_lshl_b32 s37, s36, 14")
    a("v_mov_b32 v6, 0")
    a("s_mov_b32 s50, %d" % (2048 * 2048))
    a("s_mov_b32 s51, 0x20000")
    a("s_waitcnt lgkmcnt(0)")
    a("s_mov_b64 s[48:49], s[%d:%d]" % (PX, PX + 1))
    LX = 32
    for u in range(4):
        V("x", "buffer_load_dwordx4 %s, v20, s[48:51], s37 offen offset:%d %s" % (vr(LX + 4 * u, 4), 128 * u, P.get("xfl", "")))
    srd(a, 84, PWS, FLAG_OFF, FLAG_BYTES)
    a("s_mov_b32 s3, %d" % EPOCH)
    V("ep", "buffer_load_dword v7, v6, s[84:87], s3 offen")
    stamp()
    if P.get("xrot", 1): a("s_and_b32 s80, s2, 7"); a("s_lshl_b32 s80, s80, 1")
    else: a("s_mov_b32 s80, 0")
    a("s_mov_b32 s81, s80")
    a("s_and_b32 s57, s34, 1")
    a("s_lshr_b32 s58, s34, 1")
    a("s_mul_i32 s58, s58, 448")
    a("s_cmp_eq_u32 s32, 1")
    a("s_cselect_b64 s[88:89], s[%d:%d], s[%d:%d]" % (PU, PU + 1, PG, PG + 1))
    a("s_cmp_eq_u32 s32, 3")
    a("s_cbranch_scc1 L_t3")
    a("s_mul_i32 s3, s57, 208")
    a("s_add_u32 s3, s3, s58")
    a("s_movk_i32 s92, 7168")
    a("s_movk_i32 s93, 118")
    a("s_cmp_eq_u32 s32, 2")
    a("s_cbranch_scc0 L_t01")
    a("s_mov_b64 s[88:89], s[%d:%d]" % (PQKV, PQKV + 1))
    a("s_lshl_b32 s3, s34, 6")
    a("s_movk_i32 s92, 6144")
    a("s_movk_i32 s93, 2048")
    a.label("L_t01")
    a("s_lshl_b32 s90, s92, 10")
    a("v_lshrrev_b32 v21, 2, v17")
    a("v_and_b32 v22, 3, v17")
    a("v_mul_u32_u24 v30, s92, v21")
    a("v_mul_u32_u24 v23, s93, v22")
    a("v_and_b32 v23, -4, v23")
    a("v_add3_u32 v30, v30, v23, s3")
    a("v_cmp_eq_u32 vcc, 3, v22")
    a("v_mov_b32 v23, %d" % OOB)
    a("s_lshl2_add_u32 s94, s80, s33")
    a("s_lshl_b32 s94, s94, 4")
    a("v_cndmask_b32 v30, v30, v23, vcc")
    a("v_mov_b32 v25, %s" % ("v30" if not P.get("now1") else str(OOB)))
    if P.get("noearly"): a("v_mov_b32 v30, %d" % OOB)
    a("s_mul_i32 s94, s94, s92")
    a("s_lshl_b32 s95, s92, 7")
    a("s_branch L_td")
    a.label("L_t3")
    a("s_mov_b64 s[88:89], s[%d:%d]" % (PD, PD + 1))
    a("v_lshlrev_b32 v30, 7, v17")
    a("s_bfe_u32 s3, s2, 0x20001")
    a("s_add_u32 s3, s3, 1")
    a("s_mul_i32 s90, s3, %d" % (896 * 2048))
    a("s_lshr_b32 s94, s2, 3")
    a("s_lshl_b32 s94, s94, 13")
    a("s_add_u32 s94, s94, s90")
    a("s_sub_u32 s94, s94, %d" % (128 * 2048))
    a("s_mov_b32 s95, 0")
    a("v_mov_b32 v25, v30")
    a("v_mov_b32 v30, %d" % OOB)
    if P.get("now2"): a("v_mov_b32 v25, %d" % OOB)
    a.label("L_td")
    a("s_mov_b32 s91, 0x20000")
    for k in range(P.get("t_early", 2)):
        V("t", "buffer_load_dword v29, v30, s[88:91], s94 offen %s" % P.get("t0fl", ""))
        for o in ["s_add_u32 s94, s94, s95", "s_cmp_ge_u32 s94, s90", "s_cselect_b32 s3, s90, 0", "s_sub_u32 s94, s94, s3"]: a(o)
    a("v_lshlrev_b32 v21, 17, v16")
    a("v_lshrrev_b32 v22, 2, v19")
    a("v_lshl_add_u32 v21, v22, 10, v21")
    a("v_and_b32 v22, 3, v19")
    a("v_lshl_add_u32 v21, v22, 8, v21")
    a("v_lshl_add_u32 v28, v18, 4, v21")
    a("s_lshl_b32 s60, s33, 19")
    a("s_lshr_b32 s51, s34, 1")
    a("s_lshl_b32 s51, s51, 11")
    a("s_add_u32 s50, s60, s51")
    a("s_lshl_b32 s51, s57, 7")
    a("s_add_u32 s50, s50, s51")
    a("s_add_u32 s51, s50, 32768")
    a("s_add_u32 s52, s50, 65536")
    a("s_add_u32 s53, s50, 98304")
    a("v_lshlrev_b32 v26, 5, v18")
    a("v_add_u32 v26, %d, v26" % LNX)
    a("v_lshl_add_u32 v27, v16, 3, v26")
    a("s_mov_b64 s[24:25], s[%d:%d]" % (PWS, PWS + 1))
    a("s_add_u32 s26, s60, 0x80000")
    a("s_mov_b32 s27, 0x20000")
    a("s_mov_b32 s54, 0xffff0000")
    F0S = P.get("f0shift", 7)
    a("s_lshl_b32 s92, s36, %d" % F0S)
    a("s_lshl2_add_u32 s92, s32, s92")
    a("s_mov_b32 s3, 0x3f803f80")
    a("v_mov_b32 v116, s3")
    a("s_max_u32 s61, s33, 1")
    a("s_sub_u32 s61, s61, 1")
    a("s_lshl_b32 s59, s61, %d" % (5 + F0S))
    a("s_add_u32 s59, s59, %d" % (30 << F0S))
    a("s_lshl_b32 s3, s33, %d" % (5 + F0S))
    a("s_lshl_b32 s48, s32, %d" % (3 + F0S))
    a("s_add_u32 s3, s3, s48")
    a("v_and_b32 v21, 3, v17")
    a("v_lshlrev_b32 v21, 2, v21")
    a("v_lshrrev_b32 v20, 2, v17")
    a("v_lshl_add_u32 v20, v20, %d, v21" % F0S)
    a("v_and_b32 v21, %d, v20" % ((1 << F0S) + 12))
    a("v_add_u32 v20, s3, v20")
    a("v_add_u32 v21, s59, v21")
    a("v_cmp_gt_u32 vcc, 32, v17")
    a("v_mov_b32 v22, %d" % OOB)
    a("v_lshlrev_b32 v15, 4, v17")
    a("v_cndmask_b32 v254, v21, v20, vcc")
    a("v_cndmask_b32 v121, v22, v25, vcc")
    a("v_cndmask_b32 v122, v25, v22, vcc")

    def g1_setup_w():
        def krow(dst, rho, t1):
            a("v_and_b32 v%d, 35, v%d" % (dst, rho))
            a("v_bfe_u32 v%d, v%d, 2, 2" % (t1, rho))
            a("v_lshl_or_b32 v%d, v%d, 3, v%d" % (dst, t1, dst))
            a("v_bfe_u32 v%d, v%d, 4, 1" % (t1, rho))
            a("v_lshl_or_b32 v%d, v%d, 2, v%d" % (dst, t1, dst))
        a("s_mul_i32 s56, s32, 192")
        a("s_lshl_b32 s59, s34, 6")
        a("s_movk_i32 s40, 4682")
        a("s_movk_i32 s41, 5462")
        a("s_movk_i32 s62, 7168")
        a("s_movk_i32 s63, 6144")
        a("s_mul_i32 s48, s57, 14")
        def gu_off(dst, imm):
            a("v_mul_u32_u24 v21, s40, v20")
            a("v_lshrrev_b32 v21, 16, v21")
            a("v_mul_u32_u24 v22, 14, v21")
            a("v_sub_u32 v22, v20, v22")
            a("v_add_u32 v22, s48, v22")
            a("v_lshrrev_b32 v23, 1, v22")
            a("v_xor_b32 v23, v23, v22")
            a("v_and_b32 v23, 1, v23")
            a("v_mul_u32_u24 v23, 3, v23")
            a("v_xor_b32 v22, v22, v23")
            krow(24, 21, 23)
            a("s_sub_u32 s3, s58, %d" % imm)
            a("v_lshl_add_u32 v22, v22, 4, s3")
            a("v_mad_u32_u24 v%d, v24, s62, v22" % dst)
        def qkv_off(dst, imm):
            a("v_mul_u32_u24 v21, s41, v20")
            a("v_lshrrev_b32 v21, 16, v21")
            a("v_mul_u32_u24 v22, 12, v21")
            a("v_sub_u32 v22, v20, v22")
            a("v_lshrrev_b32 v23, 1, v21")
            a("v_and_b32 v23, 2, v23")
            a("v_xor_b32 v22, v22, v23")
            a("v_lshrrev_b32 v25, 2, v22")
            a("v_and_b32 v22, 3, v22")
            a("s_sub_u32 s3, s59, %d" % imm)
            a("v_lshl_add_u32 v22, v22, 4, s3")
            a("v_lshl_add_u32 v22, v25, 11, v22")
            krow(24, 21, 23)
            a("v_mad_u32_u24 v%d, v24, s63, v22" % dst)
        for q in range(3):
            a("s_add_u32 s3, s56, %d" % (64 * q))
            a("v_add_u32 v20, s3, v17")
            gu_off(8 + q, 1024 * q)
            qkv_off(11 + q, 1024 * q)
        a("s_and_b32 s35, s32, 1")
        a("s_lshl_b32 s3, s35, 6")
        a("s_add_u32 s3, s3, 768")
        a("v_add_u32 v20, s3, v17")
        gu_off(14, 0)
        a("s_mul_i32 s43, s32, 3072")
        a("s_add_u32 s44, s43, %d" % UP)
        a("s_add_u32 s45, s43, %d" % QKV)
        a("s_lshr_b32 s46, s32, 1")
        a("s_mul_i32 s46, s46, %d" % UP)
        a("s_lshl_b32 s3, s35, 10")
        a("s_add_u32 s46, s46, s3")
        a("s_add_u32 s46, s46, 12288")
        srd(a, 8, PG, 0, 1024 * 7168)
        srd(a, 12, PU, 0, 1024 * 7168)
        srd(a, 16, PQKV, 0, 1024 * 6144)
        a("s_cmp_lt_u32 s32, 2")
        a("s_cselect_b64 s[20:21], s[%d:%d], s[%d:%d]" % (PG, PG + 1, PU, PU + 1))
        a("s_mov_b32 s22, %d" % (1024 * 7168))
        a("s_mov_b32 s23, 0x20000")
    def g1_setup_r():
        a("v_lshrrev_b32 v18, 2, v17")
        a("v_and_b32 v19, 3, v17")
        a("v_lshlrev_b32 v19, 3, v19")
        a("s_movk_i32 s3, 224")
        a("v_and_b32 v20, 16, v15")
        a("v_and_b32 v21, 2, v17")
        a("v_lshl_add_u32 v20, v21, 2, v20")
        a("v_mad_u32_u24 v1, v18, s3, v20")
        a("s_movk_i32 s3, 192")
        a("v_mad_u32_u24 v2, v18, s3, v19")
        a("v_add_u32 v2, %d, v2" % QKV)
        a("v_and_b32 v19, 16, v17")
        a("v_lshlrev_b32 v19, 1, v19")
        a("v_xor_b32 v20, 32, v19")
        a("v_add_u32 v3, v2, v20")
        a("v_add_u32 v2, v2, v19")
        a("s_cmp_eq_u32 s35, 1")
        a("s_cselect_b64 vcc, -1, 0")
        a("v_cndmask_b32 v4, v2, v3, vcc")
        a("s_lshr_b32 s3, s32, 1")
        a("s_lshl_b32 s3, s3, 6")
        a("s_add_u32 s3, s3, 64")
        a("v_add_u32 v4, s3, v4")
        a("s_mov_b32 s62, %d" % SLOT)
        a("s_mov_b32 s63, %d" % ((-2 * SLOT) & 0xffffffff))
        srd(a, 28, PWS, ACT_OFF, ACT_BYTES)
    def tau_ops():
        return ["s_add_u32 s81, s36, s80", "s_and_b32 s81, s81, 15", "s_mul_i32 s38, s81, 458752", "s_mul_i32 s39, s81, 393216"]
    def xoff_ops():
        return ["s_lshl_b32 s40, s81, 15", "s_add_u32 s42, s40, s61", "s_add_u32 s40, s40, s60", "s_add_u32 s41, s40, 4096"]
    def wdma_ops(tag):
        o = []
        for (mreg, sd, vb, so) in ((43, 8, 8, 38), (44, 12, 8, 38), (45, 16, 11, 39)):
            o.append("s_add_u32 m0, s37, s%d" % mreg)
            for q in range(3):
                o.append((tag, "buffer_load_dwordx4 v%d, s[%d:%d], s%d offen offset:%d lds" % (vb + q, sd, sd + 3, so, 1024 * q)))
        o.append("s_add_u32 m0, s37, s46")
        o.append((tag, "buffer_load_dwordx4 v14, s[20:23], s38 offen lds"))
        return o
    def xld_ops(buf, tag):
        o = []
        for f in range(8):
            o.append((tag, "buffer_load_dwordx4 %s, v15, s[24:27], s%d offen offset:%d %s" % (ar(XB(buf, f // 2, f % 2), 4), 40 + f // 4, 1024 * (f % 4), XSC)))
        for kh in range(2):
            o.append((tag, "buffer_load_dwordx4 %s, v15, s[24:27], s42 offen offset:%d %s" % (ar(XB(buf, 4, kh), 4), 1024 * kh, XSC)))
        return o

    g1_setup_w()
    a("s_mov_b32 s36, 0"); a("s_mov_b32 s37, 0")
    W0POS = P.get("w0pos", 1)
    al = Weave(P.get("w0_every", 14), tau_ops() + wdma_ops("W0") if W0POS == 2 else [], P.get("w0_skip", 0))

    vwait("x")
    stamp()
    X = 48
    for r in range(16):
        c1 = "0" if r < 2 else "v%d" % (112 + 2 * (r % 2))
        c2 = "0" if r < 2 else "v%d" % (113 + 2 * (r % 2))
        al("v_dot2_f32_bf16 v%d, v%d, v116, %s" % (112 + 2 * (r % 2), LX + r, c1))
        al("v_dot2_f32_bf16 v%d, v%d, v%d, %s" % (113 + 2 * (r % 2), LX + r, LX + r, c2))
    al("s_nop 2")
    al("v_pk_add_f32 v[112:113], v[112:113], v[114:115]")
    for m in ("quad_perm:[1,0,3,2]", "quad_perm:[2,3,0,1]", "row_half_mirror"):
        al("s_nop 0" if m != "quad_perm:[1,0,3,2]" else "s_nop 1")
        for v in (112, 113):
            al("v_add_f32_dpp v%d, v%d, v%d %s row_mask:0xf bank_mask:0xf" % (v, v, v, m))
    al("ds_write_b64 v27, v[112:113]")
    def unpack(r):
        al("v_lshlrev_b32 v%d, 16, v%d" % (X + 2 * r, LX + r))
        al("v_and_b32 v%d, s54, v%d" % (X + 2 * r + 1, LX + r))
    for r in range(8): unpack(r)
    al("s_waitcnt lgkmcnt(0)")
    al("s_barrier")
    al("ds_read_b128 v[80:83], v26")
    al("ds_read_b128 v[84:87], v26 offset:16")
    for r in range(8, 16): unpack(r)
    al("s_waitcnt lgkmcnt(0)")
    al("v_pk_add_f32 v[80:81], v[80:81], v[82:83]")
    al("v_pk_add_f32 v[84:85], v[84:85], v[86:87]")
    al("v_pk_add_f32 v[80:81], v[80:81], v[84:85]")
    al("v_mul_f32 v88, 0x3a800000, v80")
    al("v_mul_f32 v81, 0x3a800000, v81")
    al("v_fma_f32 v81, -v88, v88, v81")
    al("v_max_f32 v81, 0, v81")
    al("v_cvt_pk_bf16_f32 v88, v88, v81")
    al("v_and_b32 v81, s54, v88")
    al("v_lshlrev_b32 v88, 16, v88")
    al("v_add_f32 v81, 0x3727c5ac, v81")
    al("v_cvt_pk_bf16_f32 v81, v81, v81")
    al("v_and_b32 v81, s54, v81")
    al("v_sqrt_f32 v81, v81")
    al("v_sub_f32 v88, 0, v88")
    al("v_cvt_pk_bf16_f32 v81, v81, v81")
    al("v_and_b32 v81, s54, v81")
    al("v_rcp_f32 v90, v81")
    al("v_mov_b32 v89, v88")
    al("v_mov_b32 v91, v90")
    for u in range(4):
        R = range(4 * u, 4 * u + 4)
        for r in R: al("v_pk_add_f32 %s, %s, v[88:89]" % (vr(X + 2 * r, 2), vr(X + 2 * r, 2)))
        for r in R: al("v_cvt_pk_bf16_f32 v%d, v%d, v%d" % (LX + r, X + 2 * r, X + 2 * r + 1))
        for r in R: unpack(r)
        for r in R: al("v_pk_mul_f32 %s, %s, v[90:91]" % (vr(X + 2 * r, 2), vr(X + 2 * r, 2)))
        for r in R: al("v_cvt_pk_bf16_f32 v%d, v%d, v%d" % (LX + r, X + 2 * r, X + 2 * r + 1))
        V("xs", "buffer_store_dwordx4 %s, v28, s[24:27], s%d offen %s" % (vr(LX + 4 * u, 4), 50 + u, SC))
    al.flush()
    stamp()

    if P.get("t_early", 2) < 2 and P.get("t1pos", 0) == 0:
        V("t", "buffer_load_dword v29, v30, s[88:91], s94 offen %s" % P.get("t1fl", ""))
        for o in ["s_add_u32 s94, s94, s95", "s_cmp_ge_u32 s94, s90", "s_cselect_b32 s3, s90, 0", "s_sub_u32 s94, s94, s3"]: a(o)
    a("s_lshl_b32 s3, s32, 13")
    a("s_add_u32 s60, s60, s3")
    a("s_lshl_b32 s61, s61, 19")
    a("s_add_u32 s61, s61, %d" % (3 * 8192 + 3 * 2048))
    for o in xoff_ops(): E(o)
    a("v_mov_b32 v27, v121"); a("v_mov_b32 v28, v122")
    g1_setup_r()
    av = Weave(P.get("w0_every", 5), tau_ops() + wdma_ops("W0") if W0POS == 0 else [])
    SP, SMT, SNT = 66, 67, 70
    av("s_bfe_u32 s%d, s2, 0x10001" % SP)
    av("s_and_b32 s%d, s2, 1" % SMT); av("s_bfe_u32 s3, s2, 0x20003"); av("s_lshl2_add_u32 s%d, s%d, s3" % (SMT, SMT))
    av("s_lshr_b32 s%d, s2, 5" % SNT)
    park = {}
    def parkv(key, v):
        park[key] = PARK + len(park)
        assert park[key] < 224
        av("v_accvgpr_write_b32 a%d, v%d" % (park[key], v))
    unp = lambda key, v: "v_accvgpr_read_b32 v%d, a%d" % (v, park[key])
    av("s_lshl_b32 s48, s%d, 2" % SP); av("s_xor_b32 s48, s48, 4"); av("s_lshl_b32 s49, s%d, 8" % SNT); av("s_lshl_b32 s50, s32, 15"); av("s_add_u32 s50, s50, s49")
    av("v_lshrrev_b32 v20, 4, v17"); av("v_bfe_u32 v21, v17, 1, 3"); av("v_xor_b32 v21, s48, v21"); av("v_xor_b32 v21, v21, v20")
    av("v_and_b32 v22, 16, v15"); av("v_lshl_add_u32 v23, v20, 11, v22")
    av("v_lshl_add_u32 v16, v21, 5, v23"); av("v_add_u32 v16, s50, v16")
    av("s_lshl_b32 s51, s32, 16"); av("s_add_u32 s51, s51, s49"); av("s_lshl_b32 s3, s%d, 7" % SP); av("s_add_u32 s51, s51, s3")
    av("v_bfe_u32 v21, v17, 1, 2"); av("v_xor_b32 v21, v21, v20"); av("v_lshrrev_b32 v23, 3, v17")
    av("v_lshl_add_u32 v22, v23, 11, v22"); av("v_lshl_add_u32 v22, v21, 5, v22"); av("v_add_u32 v22, s51, v22")
    av("v_mov_b32 v30, v22")
    av("v_lshrrev_b32 v20, 2, v17"); av("v_and_b32 v21, 3, v17"); av("v_lshlrev_b32 v21, 3, v21"); av("v_add_u32 v21, %d, v21" % R2)
    av("v_lshl_add_u32 v22, v20, 8, v21"); av("v_and_b32 v23, 7, v20"); av("v_lshl_add_u32 v22, v23, 5, v22")
    parkv("vw", 22)
    av("v_lshl_add_u32 v22, v20, 7, v21"); av("v_bfe_u32 v23, v17, 3, 2"); av("v_lshl_add_u32 v22, v23, 5, v22")
    parkv("vwo", 22)
    av("v_and_b32 v20, 15, v17"); av("v_lshlrev_b32 v22, 11, v20"); av("v_bfe_u32 v23, v17, 4, 1"); av("v_lshl_add_u32 v22, v23, 5, v22")
    av("v_lshrrev_b32 v21, 5, v17"); av("v_lshl_add_u32 v22, v21, 4, v22")
    parkv("vout", 22)
    av("v_lshlrev_b32 v22, 10, v23"); av("v_lshl_add_u32 v22, v21, 8, v22"); av("v_lshl_add_u32 v26, v20, 4, v22")
    av("v_bfe_u32 v22, v17, 2, 2"); av("v_lshlrev_b32 v22, 8, v22"); av("v_lshrrev_b32 v23, 4, v17"); av("v_lshl_add_u32 v22, v23, 6, v22")
    av("v_and_b32 v23, 3, v17"); av("v_lshl_add_u32 v22, v23, 1, v22"); av("v_add_u32 v22, 1024, v22")
    a("s_cmp_ge_u32 s32, 2"); a("s_cselect_b64 vcc, -1, 0"); a("s_cselect_b32 s71, 16, 2")
    av("v_cndmask_b32 v22, v15, v22, vcc")
    av("s_lshl_b32 s3, s35, 3"); av("s_add_u32 s3, s3, %d" % EX); av("v_add_u32 v22, s3, v22")
    parkv("vhx", 22)
    av.flush()
    a("v_lshlrev_b32 v24, 8, v17"); a("v_add_u32 v25, 16384, v24")
    a("s_lshr_b32 s7, s2, 3"); a("s_lshl1_add_u32 s7, s7, s32"); a("s_lshl_b32 s7, s7, 15")
    a("s_lshl_b32 s52, s%d, 7" % SP); a("s_add_u32 s7, s7, s52")
    a("s_mov_b64 s[4:5], s[%d:%d]" % (PWO, PWO + 1)); a("s_mov_b32 s6, %d" % (1024 * 2048 if not P.get("nowot") else 0))
    a("s_cmp_lt_u32 s32, 2"); a("s_cbranch_scc1 L_alt")
    a("v_lshlrev_b32 v24, 7, v17"); a("v_add_u32 v25, 8192, v24")
    a("s_lshl_b32 s7, s2, 14")
    a("s_mov_b64 s[4:5], s[%d:%d]" % (PX, PX + 1)); a("s_mov_b32 s6, %d" % (2048 * 2048 if not P.get("noxt") else 0))
    a.label("L_alt")
    a("s_cmp_eq_u32 s32, 3"); a("s_cselect_b32 s47, 99, %d" % (13 if not P.get("ab_noalt") else 64))
    a("v_xor_b32 v17, 0x80, v16"); a("v_add_u32 v17, %d, v17" % 7168)
    a("v_add_u32 v18, %d, v16" % 14336); a("v_add_u32 v19, %d, v17" % 14336)
    vwait("xs")
    a("v_add_u32 v7, 0x%x, v7" % NONCE_ADD)
    V("f", "buffer_store_dword v7, v6, s[84:87], s92 offen %s" % SC)
    a("v_readfirstlane_b32 s96, v7")
    stamp()
    p0 = ("p", "buffer_load_dword v255, v254, s[84:87], 0 offen %s" % SC)
    q1 = (tau_ops() + wdma_ops("W0") if W0POS == 1 else []) + ["s_mov_b32 s36, 1", "s_mov_b32 s37, %d" % SLOT] + tau_ops() + (wdma_ops("W") if not P.get("peel0", 0) else [])
    W1POS = P.get("w1pos", 0)
    PB4 = P.get("poll_before", 0)
    if PB4:
        idx = [k for k, o in enumerate(q1) if isinstance(o, tuple)][-PB4]
        if q1[idx - 1].startswith("s_add_u32 m0") if isinstance(q1[idx - 1], str) else False: idx -= 1
        q1.insert(idx, p0)
    az = Weave(P.get("w1_every", 5), q1 if W1POS == 0 else [])
    for r in range(32, 254, 2): az("v_mov_b64 %s, 0" % vr(r, 2))
    az.flush()
    if not PB4: E(p0)
    a("s_lshl_b32 s72, s%d, 19" % SMT); a("s_add_u32 s72, s72, s51"); a("s_bfe_u32 s3, s2, 0x10002"); a("s_add_u32 s3, s3, s32")
    a("s_lshl_b32 s3, s3, 16"); a("s_add_u32 s72, s72, s3")
    a("s_lshl_b32 s56, s32, 12"); a("s_add_u32 s56, s56, %d" % R2)
    a("s_lshl_b32 s48, s33, 1"); a("s_lshr_b32 s3, s32, 1"); a("s_add_u32 s48, s48, s3"); a("s_mul_i32 s48, s48, %d" % ACT_MT)
    a("s_lshl_b32 s3, s35, 12"); a("s_add_u32 s48, s48, s3")
    a("s_mul_i32 s73, s34, 7"); a("s_lshr_b32 s73, s73, 1"); a("s_lshl_b32 s73, s73, 13"); a("s_add_u32 s73, s73, s48")
    a("s_lshl_b32 s3, s57, 9"); a("s_add_u32 s73, s73, s3")
    a("s_mul_i32 s74, s57, %d" % (8192 - 1024)); a("s_add_u32 s74, s74, 512"); a("s_add_u32 s74, s74, s73")
    a("s_add_u32 s75, s34, 112"); a("s_lshl_b32 s75, s75, 13"); a("s_add_u32 s75, s75, s48")
    a("s_lshl2_add_u32 s92, s33, s32"); a("s_lshl_b32 s92, s92, 7"); a("s_lshl2_add_u32 s92, s34, s92")
    FP = P.get("fpad", 1)
    a("s_add_u32 s35, s92, %d" % F1O)
    if FP: a("s_lshl_b32 s92, s92, 5")
    a("s_add_u32 s92, s92, %d" % (F1H if not FP else 131072))
    a("s_lshl2_add_u32 s58, s%d, s32" % SMT); a("s_lshl_b32 s58, s58, 7")
    a("s_add_u32 s59, s58, %d" % F1O)
    if FP: a("s_lshl_b32 s58, s58, 5")
    a("s_add_u32 s58, s58, %d" % (F1H if not FP else 131072))
    a("s_or_b32 s33, s33, s32")
    a("s_lshr_b32 s3, s32, 1"); a("s_lshl1_add_u32 s57, s%d, s3" % SMT); a("s_mul_i32 s57, s57, %d" % ACT_MT)
    a("s_and_b32 s3, s32, 1"); a("s_lshl_b32 s3, s3, 12"); a("s_add_u32 s57, s57, s3")
    a("s_mov_b32 s50, 0xbfb8aa3b"); a("s_mov_b32 s51, 0xbfb8aa3b"); a("s_mov_b32 s52, 1.0"); a("s_mov_b32 s53, 1.0")

    stamp()
    check_flags(255, 254, "0", "p", "L_f0")
    stamp()
    for o in xld_ops(0, "X0"): E(o)
    xlast = ["s_add_u32 s40, s80, 15", "s_and_b32 s40, s40, 15", "s_lshl_b32 s40, s40, 15", "s_add_u32 s40, s40, s60", "s_add_u32 s41, s40, 4096"] + xld_ops(2, "XL")[:8]
    if P.get("xl_pos", 1) == 0:
        for o in xlast: E(o)
    if W1POS == 1:
        for o in q1: E(o)
    a("v_mov_b64 v[254:255], 0")
    for r in range(0, 100, 4): a("%s %s, v[48:51], v[48:51], 0" % (MF, ar(r, 4)))

    blocks = []
    for p in range(7): blocks += [("gu", p, 0), ("gu", p, 1)]
    blocks += [("q", s) for s in range(6)]
    def wreads(b, dst, ab=0):
        o = []
        for kh in range(2):
            for s2 in range(2):
                d = ar(dst(kh) + 2 * s2, 2)
                if b[0] == "gu":
                    o.append("ds_read_b64_tr_b16 %s, v%d offset:%d" % (d, ab + 1, b[2] * UP + (32 * kh + 16 * s2) * 224 + 32 * b[1]))
                elif b[0] == "q":
                    o.append("ds_read_b64_tr_b16 %s, v%d offset:%d" % (d, ab + 2 + b[1] % 2, (32 * kh + 16 * s2) * 192 + 64 * (b[1] // 2)))
                else:
                    o.append("ds_read_b64_tr_b16 %s, v%d offset:%d" % (d, ab + 4, (32 * kh + 16 * s2) * 192))
        return o
    def mfmas(b, ring, buf):
        o = []
        for m in range(4):
            for kh in range(2):
                w, x = ar(WR(ring, kh), 4), ar(XB(buf, m, kh), 4)
                c = vr(accGU(b[1], b[2], m), 4) if b[0] == "gu" else ar(accQ(b[1], m), 4)
                if b[0] == "q" and b[1] >= 4: w, x = x, w
                o.append("%s %s, %s, %s, %s" % (MF, c, w, x, c))
        return o
    def halo_mf(buf):
        return ["%s %s, %s, %s, %s" % (MF, ar(HACC, 4), ar(HW(kh), 4), ar(XB(buf, 4, kh), 4), ar(HACC, 4)) for kh in range(2)]

    vwait("X0")
    a("s_barrier")
    stamp()
    for bi in range(3):
        for o in wreads(blocks[bi], lambda kh: WR(bi % 4, kh)): a(o)
    if P.get("xl_pos", 1) == 1:
        for o in xlast: E(o)
    if P.get("xl_pos", 1) == 2:
        for o in ["s_add_u32 s48, s80, 15", "s_and_b32 s48, s48, 15", "s_lshl_b32 s48, s48, 15", "s_add_u32 s48, s48, s60"]: a(o)
    if P.get("t_early", 2) < 2 and P.get("t1pos", 0) == 1:
        V("t", "buffer_load_dword v29, v27, s[88:91], s94 offen %s" % P.get("t1fl", ""))
        V("t", "buffer_load_dword v29, v28, s[88:91], s94 offen %s" % P.get("t1fl", ""))
        for o in ["s_add_u32 s94, s94, s95", "s_cmp_ge_u32 s94, s90", "s_cselect_b32 s3, s90, 0", "s_sub_u32 s94, s94, s3"]: a(o)
    LT = P.get("late_w2", 0)
    a("s_cmp_eq_u32 s32, 3"); a("s_cselect_b32 s95, %d, s95" % ((-(256 if LT else 128) * 2048) & 0xffffffff))
    a("s_cselect_b32 s49, -1, s90")
    if LT:
        a("s_cselect_b32 s3, %d, 0" % (6 * 128 * 2048)); a("s_cselect_b64 vcc, -1, 0"); a("s_add_u32 s94, s94, s3")
        a("v_lshlrev_b32 v20, 3, v15"); a("v_add_u32 v21, %d, v20" % (128 * 2048))
        a("v_cndmask_b32 v27, v27, v21, vcc"); a("v_cndmask_b32 v28, v28, v20, vcc")

    HRB, HMB = 9, 13
    def step(buf, misc, loop=None, spc=None):
        lg = Cnt([0] * 4 + [1] * 4 + [2] * 4)
        SPC, V0 = spc or P.get("vspace", 5.4), P.get("vstart", 5)
        place = {}
        nv = 0
        tgt = []
        for o in misc:
            if isinstance(o, tuple):
                g = int(V0 + nv * SPC) | 1
                if g // 8 >= HRB: g += 8
                tgt.append(g)
                if P.get("vweight", 0): nv += (1.55 if "s[16:19]" in o[1] else (1.1 if o[1].endswith("lds") else 0.77))
                else: nv += (P.get("xl_w", 0.4) if "s49" in o[1] else 1)
            else: tgt.append(None)
        nxt = None
        for k in range(len(misc) - 1, -1, -1):
            if tgt[k] is not None: nxt = tgt[k]
            elif nxt is not None:
                nxt -= 1; tgt[k] = nxt
        last = max(t for t in tgt if t is not None)
        for k in range(len(misc)):
            if tgt[k] is None:
                last += 1; tgt[k] = last
        for k in range(1, len(misc)):
            if tgt[k] < tgt[k - 1]: tgt[k] = tgt[k - 1]
        assert min(tgt) >= 0 and max(tgt) < 17 * 8, (min(tgt), max(tgt))
        for k, o in enumerate(misc): place.setdefault((tgt[k] // 8, tgt[k] % 8), []).append(o)
        for bi in range(20):
            mf = mfmas(blocks[bi], bi % 4, buf)
            fill = {}
            w = lg.need(bi)
            if w is not None: a("s_waitcnt lgkmcnt(%d)" % w)
            rd = []
            if bi <= 16: rd = [(bi + 3, o) for o in wreads(blocks[bi + 3], lambda kh: WR((bi + 3) % 4, kh))]; gaps = [0, 2, 4, 6]
            elif bi == 18:
                rd = [(100, o) for o in wreads(blocks[0], lambda kh: WR(0, kh))] + [(101, o) for o in wreads(blocks[1], lambda kh: WR(1, kh))]
                gaps = list(range(8))
            elif bi == 19: rd = [(102, o) for o in wreads(blocks[2], lambda kh: WR(2, kh))]; gaps = [0, 2, 4, 6]
            if bi == HRB:
                hr = [("H", o) for o in wreads(("h",), HW)]
                rd = [x for pr in zip(rd, hr) for x in pr]; gaps = list(range(8))
            for (tag, o), g in zip(rd, gaps if rd else []):
                fill.setdefault(g, []).append(o); lg.issue(tag)
            for g in range(8):
                for o in place.get((bi, g), []): fill.setdefault(g, []).append(o)
            if bi == HMB:
                assert lg.need("H") is None
                mf += halo_mf(buf)
            if bi == 17:
                for k, r in enumerate((1, 2, 3, 4)):
                    fill.setdefault(k + 1, []).append("v_add_u32 v%d, s93, v%d" % (r, r))
                fill.setdefault(7, []).append(lambda: (vwait("X", lg0=True), a("s_barrier")))
                lg.clear()
                if P.get("itrace"):
                    fill[7] += ["s_memtime s[98:99]", "s_add_u32 m0, s36, 30", "s_waitcnt lgkmcnt(0)", "v_writelane_b32 v31, s98, m0"]
            if bi == 19 and loop:
                fill.setdefault(5, []).append("s_cmp_lt_u32 s36, 15")
                fill.setdefault(7, []).append("s_cbranch_scc1 %s" % loop)
            for i, m in enumerate(mf):
                a(m)
                for o in fill.get(i, []): E(o)
    slot_ops = ["s_add_u32 s37, s37, s62", "s_cmp_eq_u32 s37, %d" % (3 * SLOT), "s_cselect_b32 s37, 0, s37",
                "s_cmp_eq_u32 s37, s62", "s_cselect_b32 s93, s63, s62"]
    def std_misc(buf):
        t = [("t", "buffer_load_dword v29, v%d, s[88:91], s94 offen %s" % (27 + buf, P.get("tfl", "")))] + (["s_add_u32 s94, s94, s95", "s_cmp_ge_u32 s94, s49", "s_cselect_b32 s3, s90, 0", "s_sub_u32 s94, s94, s3"] if buf else [])
        if buf: t += ["s_cmp_eq_u32 s36, s47", "s_cselect_b64 s[88:89], s[4:5], s[88:89]", "s_cselect_b32 s90, s6, s90", "s_cselect_b32 s94, s7, s94",
                      "s_cselect_b64 vcc, -1, 0", "v_cndmask_b32 v27, v27, v24, vcc", "v_cndmask_b32 v28, v28, v25, vcc"]
        xl = xld_ops(buf ^ 1, "X")
        if P.get("xl_pos", 1) == 2:
            ex = [("X", o[1].replace("s40", "s49").replace("s41", "s49")) for o in xld_ops(2, "X")[4 * buf:4 * buf + 4]]
            pre = ["s_cmp_eq_u32 s36, 14", "s_cselect_b32 s49, s48, %d" % OOB] if buf == 0 else ["s_add_u32 s49, s49, 4096"]
            xl = xl + pre + ex
        return xoff_ops() + xl[:2] + ["s_add_u32 s36, s36, 1"] + tau_ops() + xl[2:4] + slot_ops[:3] + xl[4:6] + slot_ops[3:] + xl[6:] + wdma_ops("W") + t
    if P.get("peel0", 0):
        m0 = std_misc(0); m1 = std_misc(1)
        iw = lambda m: [k for k, o in enumerate(m) if isinstance(o, tuple) and o[0] == "W"]
        NH = P.get("peel_h", 6)
        k0 = iw(m0)[NH] - 1 if NH < 10 else iw(m0)[-1] + 1
        k1 = iw(m0)[-1] + 1
        rest = [(("X", o[1]) if isinstance(o, tuple) else o) for o in m0[k0:k1]]
        w1 = [(("X", o[1]) if isinstance(o, tuple) else o) for o in wdma_ops("W")]
        xl1 = xlast if P.get("xl_pos", 1) == 3 else []
        xl1 = [((o[0], o[1].replace("s40", "s48").replace("s41", "s49")) if isinstance(o, tuple) else o.replace("s40", "s48").replace("s41", "s49")) for o in xl1]
        nv = lambda m: sum(isinstance(o, tuple) for o in m)
        a0 = w1 + m0[:k0] + m0[k1:]
        a1 = rest + m1[:iw(m1)[-1] + 1] + xl1 + m1[iw(m1)[-1] + 1:]
        step(0, a0, spc=min(5.4, 112.0 / nv(a0)))
        step(1, a1, spc=min(5.4, 108.0 / nv(a1)))
    a(".p2align 6")
    a.label("L_g1")
    vm.q = ["W"] * 10 + ["t"]
    step(0, std_misc(0))
    step(1, std_misc(1), loop="L_g1")
    assert vm.q == ["W"] * 10 + ["t"], vm.q
    stamp()

    ND, NO = 14, 8
    NS = ND + NO
    VDW, VDO = 16, 30
    NRES = 5
    ROTD = P.get("rotd", 5)
    RREG = [4, 5, 6, 7, 36, 37, 55]
    ROTO = P.get("roto", 1)
    OLOC = {14: R2 + 32768, 15: R2 + 49152, 16: R2, 21: 0, 18: 16384, 17: 106496, 19: 122880, 20: 139264}
    FR = NS - NRES
    def wops(sg, force=False):
        if sg >= FR and not force: return []
        u = sg % 4
        o = []
        if sg < ND:
            if ROTD: o.append("s_lshl3_add_u32 s38, s%d, s%d" % (RREG[sg % 7], 44 + sg // 7))
            else: o.append("s_add_u32 s38, s%d, %d" % (44 + sg // 7, (sg % 7) * 131072))
            o.append("s_add_u32 m0, s56, %d" % (u * 16384))
            for q in range(4):
                o.append(("W%d" % sg, "buffer_load_dwordx4 v%d, s[8:11], s38 offen offset:%d lds" % (VDW + q, 1024 * q)))
        else:
            o.append("s_add_u32 m0, s56, %d" % ((OLOC[sg] - R2) & 0xffffffff))
            for q in range(4):
                if ROTO: o.append(lambda sg=sg, q=q: [a("s_bfe_u32 s38, s80, 0x%x" % (0x40000 + 4 * (sg - ND))), a("s_lshl_b32 s38, s38, 18"), a("s_add_u32 s38, s38, %d" % (15360 * q))])
                else: o.append("s_mov_b32 s38, %d" % ((sg - ND) * 262144 + 15360 * q))
                o.append(("W%d" % sg, "buffer_load_dwordx4 v%d, s[12:15], s38 offen offset:%d lds" % (VDO, 1024 * q)))
        return o
    QI = {(0, 0): 0, (1, 0): 1, (1, 1): 2, (0, 1): 3}
    accD = lambda m, b: 64 + QI[(m >> 1, b >> 2)] * 32 + ((b & 3) * 2 + (m & 1)) * 4
    accO = lambda m, b: 192 + (b * 2 + m) * 4
    VW, VWO, VX = 32, 20, 52
    NXB = 6
    NX0 = P.get("nx0", 2)
    XB2 = lambda sg, f: (lambda u: (u * 32 if u < 4 else 192 + (u - 4) * 32) + f * 4)(sg % NXB)
    WR2 = lambda b, kh: 128 + b * 8 + kh * 4
    def xops(sg):
        if sg >= NS: return []
        o = []
        if sg < ND:
            o.append("s_add_u32 s39, s%d, %s" % (60 if sg < NX0 else 46 + sg // 7, ("s%d" % RREG[sg % 7]) if ROTD else str((sg % 7) * 16384)))
            for kh in range(2):
                for m in range(4):
                    o.append(("X%d" % sg, "buffer_load_dwordx4 %s, v%d, s[28:31], s39 offen offset:%d %s" % (ar(XB2(sg, kh * 4 + m), 4), VX + kh + 4 * (m >> 1), 1024 * (m & 1), XSC)))
        else:
            if ROTO: o.append(lambda sg=sg: [a("s_bfe_u32 s39, s80, 0x%x" % (0x40000 + 4 * (sg - ND))), a("s_lshl_b32 s39, s39, 15"), a("s_add_u32 s39, s39, s81")])
            else: o.append("s_add_u32 s39, s57, %d" % (112 * 8192 + (sg - ND) * 32768))
            for kq in range(4):
                for m in range(2):
                    o.append(("X%d" % sg, "buffer_load_dwordx4 %s, v%d, s[28:31], s39 offen offset:%d %s" % (ar(XB2(sg, kq * 2 + m), 4), VX + kq, 1024 * m, XSC)))
        return o
    def wreads2(sg, b, rb=None):
        if rb is None: rb = b
        o = []
        u = sg % 4
        for kh in range(2):
            for s2 in range(2):
                if sg < ND: v, off = VW + b, u * 16384 + (32 * kh + 16 * s2) * 256
                else:
                    L = OLOC[sg]
                    vb, base = (40, 0) if L < R2 else ((VWO, R2) if L < 106496 else (44, 106496))
                    v, off = vb + b % 4, L - base + (64 * (b // 4) + 32 * kh + 16 * s2) * 128
                o.append("ds_read_b64_tr_b16 %s, v%d offset:%d" % (ar(WR2(rb, kh) + 2 * s2, 2), v, off))
        return o
    def mfmas2(sg, b, rb):
        o = []
        for m in ((2, 3, 0, 1) if sg < ND else (0, 1)):
            for kh in range(2):
                if sg < ND: c, x = accD(m, b), XB2(sg, kh * 4 + m)
                else: c, x = accO(m, b % 4), XB2(sg, (2 * (b // 4) + kh) * 2 + m)
                z = (sg == 0 and kh == 0) or (sg == ND and b < 4 and kh == 0)
                o.append("%s %s, %s, %s, %s" % (MF, vr(c, 4), ar(WR2(rb, kh), 4), ar(x, 4), "0" if z else vr(c, 4)))
        return o
    order = [(0, 0), (1, 0), (2, 0), (3, 0), (0, 1), (1, 1), (2, 1), (3, 1)]
    for b in range(4, 20): order += [(b, 0), (b, 1)]
    NPOS = len(order)
    done_pos = {b: max(i for i, (bb, s) in enumerate(order) if bb == b) for b in range(20)}
    AB2 = 7
    R0, R1, R2_ = accGU(0, 1, 0), accGU(2, 1, 0), accGU(4, 1, 0)
    Qf = lambda m: R0 + 12 + 4 * m
    Kf = lambda m: R0 + 28 + 4 * (m + 1)
    VV = lambda f, m: R1 + 10 * f + 2 * (m + 1)
    Pf = lambda m: R1 + 20 + 4 * m
    Sp = lambda m: R2_ + 8 * m
    Sc = lambda m: R2_ + 8 * m + 4
    TT = lambda m: R2_ + 32 + 4 * m
    def cvt_acc(dst, src, t):
        return ["v_accvgpr_read_b32 v%d, a%d" % (t + r, src + r) for r in range(4)] + \
               ["v_cvt_pk_bf16_f32 v%d, v%d, v%d" % (dst, t, t + 1), "v_cvt_pk_bf16_f32 v%d, v%d, v%d" % (dst + 1, t + 2, t + 3)]
    masks = ["v_lshrrev_b32 v13, 4, v15", "v_and_b32 v14, 15, v13", "v_and_b32 v27, 1, v13", "v_lshrrev_b32 v20, 4, v13", "v_lshl_add_u32 v20, v20, 2, v27",
             "v_cmp_le_u32 s[40:41], v20, v14", "v_add_u32 v20, 2, v20", "v_cmp_le_u32 s[42:43], v20, v14", "v_cmp_ne_u32 s[62:63], 0, v27",
             "v_lshlrev_b32 v27, 4, v27", "s_cmp_eq_u32 s33, 0", "s_cselect_b64 s[88:89], -1, 0", "s_andn2_b64 s[90:91], s[88:89], s[42:43]",
             "s_andn2_b64 s[88:89], s[88:89], s[40:41]", "s_mov_b32 s48, 0x3e3504f3", "s_mov_b32 s49, 0x3fb8aa3b",
             "s_lshl_b32 s3, s32, 11", "s_add_u32 s3, s3, %d" % EX, "v_add_u32 v25, s3, v15", unp("vhx", 24),
             "v_lshlrev_b32 v14, %d, v14" % (7 if FP else 2), "v_and_b32 v13, 31, v13", "v_lshlrev_b32 v13, 2, v13",
             "s_and_b32 s3, s2, 7", "s_xor_b32 s61, s3, %d" % P.get("g0", 1), "s_xor_b32 s3, s61, 1",
             "s_mul_i32 s44, s61, %d" % (7 * 131072), "s_mul_i32 s45, s3, %d" % (7 * 131072),
             "s_mul_i32 s46, s61, %d" % (7 * 16384), "s_add_u32 s46, s46, s57", "s_mul_i32 s47, s3, %d" % (7 * 16384), "s_add_u32 s47, s47, s57",
             "s_mov_b32 s60, s46", "s_lshl_b32 s61, s61, 9", "s_add_u32 s34, s61, s58", "s_lshl_b32 s3, s3, 9", "s_add_u32 s58, s58, s3", "v_and_b32 v5, 384, v14"]
    if ROTD >= 5:
        def perm(r):
            p = list(range(7))
            if ROTD == 5:
                for c in range(r, 6, 4): p[c], p[c + 1] = p[c + 1], p[c]
            else:
                for c in range(r, 5, 4): p[c], p[c + 1], p[c + 2] = p[c + 2], p[c], p[c + 1]
                if r == 3: p[0], p[1] = p[1], p[0]
            return sum(v << (4 * k) for k, v in enumerate(p))
        masks += ["s_add_u32 s3, s%d, s%d" % (SMT, SNT), "s_mov_b32 s4, 0x%x" % perm(0), "s_mov_b32 s5, 0x%x" % perm(2), "s_bitcmp1_b32 s3, 0",
                  "s_cselect_b32 s4, 0x%x, s4" % perm(1), "s_cselect_b32 s5, 0x%x, s5" % perm(3), "s_bitcmp1_b32 s3, 1", "s_cselect_b32 s3, s5, s4"]
        for k in range(7):
            masks += ["s_bfe_u32 s%d, s3, 0x%x" % (RREG[k], 0x40000 + 4 * k), "s_lshl_b32 s%d, s%d, 14" % (RREG[k], RREG[k])]
        if ROTO:
            def perm8(r):
                p = list(range(8))
                for c in range(r, 7, 4): p[c], p[c + 1] = p[c + 1], p[c]
                return sum(v << (4 * k) for k, v in enumerate(p))
            masks += ["s_add_u32 s3, s%d, s%d" % (SMT, SNT), "s_mov_b32 s80, 0x%x" % perm8(0), "s_mov_b32 s81, 0x%x" % perm8(2), "s_bitcmp1_b32 s3, 0",
                      "s_cselect_b32 s80, 0x%x, s80" % perm8(1), "s_cselect_b32 s81, 0x%x, s81" % perm8(3), "s_bitcmp1_b32 s3, 1", "s_cselect_b32 s80, s81, s80",
                      "s_add_u32 s81, s57, %d" % (112 * 8192)]
    elif ROTD >= 3:
        masks += ["s_add_u32 s3, s%d, s%d" % (SMT, SNT)]
        W1_ = {3: 4, 4: 2}[ROTD]
        for k in range(4):
            masks += ["s_add_u32 s%d, s3, %d" % (RREG[k], k), "s_and_b32 s%d, s%d, %d" % (RREG[k], RREG[k], W1_ - 1)]
            if k >= W1_: masks += ["s_add_u32 s%d, s%d, %d" % (RREG[k], RREG[k], W1_)]
            masks += ["s_lshl_b32 s%d, s%d, 14" % (RREG[k], RREG[k])]
        masks += ["s_mul_i32 s36, s3, 86", "s_lshr_b32 s36, s36, 8", "s_mul_i32 s36, s36, 3", "s_sub_u32 s3, s3, s36", "s_add_u32 s3, s3, 4", "s_lshl_b32 s36, s3, 14"]
        for k in (5, 6):
            masks += ["s_add_u32 s%d, s%d, 16384" % (RREG[k], RREG[k - 1]), "s_cmp_eq_u32 s%d, %d" % (RREG[k], 7 * 16384), "s_cselect_b32 s3, %d, 0" % (3 * 16384), "s_sub_u32 s%d, s%d, s3" % (RREG[k], RREG[k])]
    elif ROTD:
        if ROTD == 1: masks += ["s_and_b32 s3, s%d, 3" % SMT, "s_lshl1_add_u32 s3, s3, s%d" % SNT]
        else: masks += ["s_mov_b32 s3, s%d" % SNT]
        masks += ["s_cmp_ge_u32 s3, 7", "s_cselect_b32 s4, 7, 0", "s_sub_u32 s3, s3, s4", "s_lshl_b32 s4, s3, 14"]
        for k in range(1, 7):
            masks += ["s_add_u32 s%d, s%d, 16384" % (RREG[k], RREG[k - 1]), "s_cmp_eq_u32 s%d, %d" % (RREG[k], 7 * 16384), "s_cselect_b32 s%d, 0, s%d" % (RREG[k], RREG[k])]
    early = ["v_add_u32 v%d, s63, v%d" % (AB2 + r, r) for r in (1, 2, 3, 4)] + xoff_ops()[:2] + xld_ops(2, "X")[8:] + masks
    ctouch = []
    if P.get("ctouch2", 1):
        def getpc():
            a("s_getpc_b64 s[16:17]"); a.label("L_pc2")
        ctouch = [getpc, "s_mov_b32 s18, L_end-L_pc2", "s_bfe_u32 s3, s2, 0x30003", "s_lshl2_add_u32 s3, s3, s32", "s_lshl_b32 s3, s3, 11", "v_and_b32 v20, 0xf0, v15",
                  "v_lshl_add_u32 v20, v20, 3, s3", ("t", "buffer_load_dword v29, v20, s[16:19], 0 offen")]
        early = early[:4] + ctouch + early[4:]
    memq = ["s_mov_b64 s[8:9], s[%d:%d]" % (PD, PD + 1), "s_mov_b32 s10, %d" % (3584 * 2048)] + wops(0) + wops(1) + \
        ["s_mov_b64 s[12:13], s[%d:%d]" % (PWO, PWO + 1), "s_mov_b32 s14, %d" % (1024 * 2048)] + wops(19, True) + wops(20, True)
    stream = []
    def pkA(p): return [x for m in range(4) for h in (0, 2) for x in (
        "v_pk_mul_f32 %s, %s, %s" % (vr(accGU(p, 1, m) + h, 2), vr(accGU(p, 0, m) + h, 2), vr(accGU(p, 1, m) + h, 2)),)] + \
        ["v_pk_mul_f32 %s, %s, s[50:51]" % (vr(accGU(p, 0, m) + h, 2), vr(accGU(p, 0, m) + h, 2)) for m in range(4) for h in (0, 2)]
    def pkB(p): return ["v_pk_add_f32 %s, %s, s[52:53]" % (vr(accGU(p, 0, m) + h, 2), vr(accGU(p, 0, m) + h, 2)) for m in range(4) for h in (0, 2)]
    def pkC(p): return ["v_pk_mul_f32 %s, %s, %s" % (vr(accGU(p, 1, m) + h, 2), vr(accGU(p, 1, m) + h, 2), vr(accGU(p, 0, m) + h, 2)) for m in range(4) for h in (0, 2)]
    def fin(p):
        o = []
        sreg = 73 + (p & 1)
        for m in range(4):
            U = accGU(p, 1, m)
            D = accGU(p, 0, m & ~1) + 2 * (m & 1)
            o += ["v_cvt_pk_bf16_f32 v%d, v%d, v%d" % (D, U, U + 1), "v_cvt_pk_bf16_f32 v%d, v%d, v%d" % (D + 1, U + 2, U + 3)]
        for m in (0, 2):
            g0 = accGU(p, 0, m)
            o += ["v_permlane16_swap_b32 v%d, v%d" % (g0, g0 + 2), "v_permlane16_swap_b32 v%d, v%d" % (g0 + 1, g0 + 3)]
            o.append(("hs", "buffer_store_dwordx4 %s, v26, s[28:31], s%d offen offset:%d %s" % (vr(g0, 4), sreg, 1024 * m, SC)))
        o.append("s_add_u32 s%d, s%d, 8192" % (sreg, sreg))
        return o
    rdy = lambda b: (done_pos[b] + 1) * 8 + 7
    for p in range(8):
        burst = (pkC(p - 1) if p > 0 else []) + (pkA(p) if p < 7 else [])
        stream.append((rdy(2 * p + 1) if p < 7 else 0, burst, True))
        tr1 = ["v_exp_f32 v%d, v%d" % (accGU(p, 0, 0) + r, accGU(p, 0, 0) + r) for r in range(16)] if p < 7 else []
        f = fin(p - 1) if p > 0 else []
        if p > 0 and (p - 1) % 2 == 0 and p - 1 < 6: pass
        mix = []
        while tr1 or f:
            if f: mix.append(f.pop(0))
            if tr1: mix.append(tr1.pop(0))
        for o in mix: stream.append((0, [o], False))
        if p < 7:
            stream.append((0, pkB(p), True))
            for r in range(16): stream.append((0, ["v_rcp_f32 v%d, v%d" % (accGU(p, 0, 0) + r, accGU(p, 0, 0) + r)], False))
    stream.append((0, ["HDONE"], False))
    for s_, F in ((0, Qf), (1, Qf), (2, Kf), (3, Kf)):
        for m in (3, 2, 1, 0):
            for k, o in enumerate(cvt_acc(F(m) + 2 * (s_ & 1), accQ(s_, m), TT(m))):
                stream.append((rdy(14 + s_), [o], False))
    for m in (3, 2, 1, 0):
        for o in cvt_acc(VV(0, m), accQ(4, m), TT(m)): stream.append((rdy(18), [o], False))
    def hflag():
        vwait("hs")
        V("f", "buffer_store_dword v7, v6, s[84:87], s92 offen %s" % SC)
    GL = P.get("gaplen", 20)
    MSP = P.get("mem_space", 5)
    HDLY = P.get("hflag_delay", 99)
    BP = P.get("bar_pos", 28)
    lg = Cnt([0] * 4 + [1] * 4 + [2] * 4)
    HR = {3: 0, 15: 1}; HM = {7: 0, 19: 2}
    isv = lambda o: isinstance(o, str) and (o.startswith("v_") or o.startswith("s_nop"))
    front = []
    lastmem = -99; hdone = None; hsent = False; est = 0
    w = lg.need(0); a("s_waitcnt lgkmcnt(%d)" % w)
    for pos, (bi, st_) in enumerate(order):
        mf = mfmas(blocks[bi], pos % 4, 2 * st_)
        if P.get("tstamp") and pos in (4, 8, 16, 24, 32): stamp()
        if pos % 4 == 0: sys.stderr.write("pos %d: stream left %d est %d\n" % (pos, len(stream), est))
        rd = []
        if pos + 3 < NPOS:
            b3, s3 = order[pos + 3]
            rd = [(pos + 3, o) for o in wreads(blocks[b3], lambda kh: WR((pos + 3) % 4, kh), AB2 * s3)]
        gaps = [0, 2, 4, 6]
        if pos in HR:
            hr = [("H", o) for o in wreads(("h",), HW, AB2 * HR[pos])]
            rd = [x for pr in zip(rd, hr) for x in pr]; gaps = list(range(8))
        rdat = dict(zip(gaps, rd))
        if pos in HM:
            assert lg.need("H") is None
            if HM[pos]: vwait("X")
            mf += halo_mf(HM[pos])
        for i, m in enumerate(mf):
            g = pos * 8 + i
            a(m)
            t = 4
            if i in rdat:
                a(rdat[i][1]); lg.issue(rdat[i][0]); t += 8
            if i == len(mf) - 1 and pos + 1 < NPOS:
                w = lg.need(pos + 1)
                if pos == 0:
                    vwait("W"); a("s_barrier")
                if pos == BP:
                    assert not memq and BP > done_pos[13]
                    a("s_barrier"); memq += wops(2) + wops(3) + wops(21, True)
                if w is not None: a("s_waitcnt lgkmcnt(%d)" % w); t += 4
            if early:
                while early and t < 16:
                    o = early.pop(0); E(o); t = (max(t, 8) if isv(o) else t) + cost(o)
            else:
                q = front if front else memq
                if q and not isinstance(q[0], tuple) and t <= 12 - 4 * bool(stream and stream[0][0] <= g):
                    E(q.pop(0)); t += 4
                elif q and isinstance(q[0], tuple) and t == 4 and g - lastmem >= (MSP if q is memq else P.get("st_space", 4)):
                    E(q.pop(0)); t += 8; lastmem = g
                if hdone is not None and not hsent and not front and g >= hdone + HDLY and t == 4:
                    hflag(); hsent = True; t += 12
                if g == P.get("tpoll_gap", 305):
                    V("p", "buffer_load_dword v12, v5, s[84:87], s34 offen %s" % SC); t += 8
                t = max(t, 8)
                def to_burst():
                    c = 0
                    for r_, ops, burst in stream[:4]:
                        if burst: return c if r_ <= g else None
                        if isv(ops[0]): c += cost(ops[0])
                    return None
                while stream and stream[0][0] <= g:
                    tb = to_burst() if P.get("bfix", 1) else None
                    if tb is not None and t + tb <= 28: pass
                    elif tb is not None and tb <= 16 and t >= 16: break
                    elif t >= GL - 3: break
                    r_, ops, burst = stream.pop(0)
                    if ops == ["HDONE"]: hdone = g; continue
                    if not isv(ops[0]): front.append(ops[0]); continue
                    for o in ops: E(o); t += cost(o)
                    if burst: t = max(t, 29 + 4 * len(ops))
            est += max(16, t)
    sys.stderr.write("tail: %d stream ops left after last MFMA, est %d, hdone %s hsent %s memq %d\n" % (len(stream), est, hdone, hsent, len(memq)))
    stamp()
    for o in front: E(o)
    a("s_nop 1")
    for r_, ops, burst in stream:
        for o in ops:
            if o != "HDONE": E(o)
    HPOS = P.get("hflag_pos", 0)
    if not hsent and HPOS == 0: hflag(); hsent = True
    M4 = range(4)
    a("s_nop 1")
    for m in (1, 2, 3):
        a("%s %s, %s, %s, 0" % (MF, vr(Sc(m), 4), vr(Kf(m), 4), vr(Qf(m), 4)))
        a("%s %s, %s, %s, 0" % (MF, vr(Sp(m), 4), vr(Kf(m - 1), 4), vr(Qf(m), 4)))
    a("%s %s, %s, %s, 0" % (MF, vr(Sc(0), 4), vr(Kf(0), 4), vr(Qf(0), 4)))
    for o in cvt_acc(2, HACC, 20): a(o)
    a("v_add_u32 v4, s71, v24"); a("v_add_u32 v10, s71, v4"); a("v_add_u32 v8, s71, v10")
    for o in cvt_acc(VV(1, 3), accQ(5, 3), TT(0)): a(o)
    a("ds_write_b16 v24, v2"); a("ds_write_b16_d16_hi v4, v2"); a("ds_write_b16 v10, v3"); a("ds_write_b16_d16_hi v8, v3")
    a("s_cmp_eq_u32 s32, 3")
    a("s_cbranch_scc1 L_noexp")
    a("ds_write_b128 v25, %s offset:2048" % vr(Kf(3), 4))
    a("ds_write_b64 v25, %s offset:3072" % vr(VV(0, 3), 2))
    a("ds_write_b64 v25, %s offset:3080" % vr(VV(1, 3), 2))
    a.label("L_noexp")
    if not hsent: hflag()
    PPOS = P.get("poll_pos", 9)
    poll1 = lambda: V("p", "buffer_load_dword v12, v5, s[84:87], s34 offen %s" % SC)
    if PPOS == 0: poll1()
    for m in (2, 1):
        for o in cvt_acc(VV(1, m), accQ(5, m), TT(m)): a(o)
    a("s_waitcnt lgkmcnt(0)")
    a("s_barrier")
    a("ds_read_b128 %s, v25" % vr(Kf(-1), 4))
    a("ds_read_b64 %s, v25 offset:1024" % vr(VV(0, -1), 2))
    a("ds_read_b64 %s, v25 offset:1032" % vr(VV(1, -1), 2))
    for o in cvt_acc(VV(1, 0), accQ(5, 0), TT(0)): a(o)
    a("s_and_b32 s3, s2, 4"); a("s_lshl_b32 s3, s3, 9")
    a("v_add_u32 v%d, s3, v15" % VX)
    for q in range(1, 4): a("v_add_u32 v%d, %d, v%d" % (VX + q, 8192 * q, VX))
    for q in range(2): a("v_xor_b32 v%d, 0x800, v%d" % (VX + 4 + q, VX + q))
    a("v_mov_b32 v11, 0xce6e6b28")
    a("s_waitcnt lgkmcnt(0)")
    a("%s %s, %s, %s, 0" % (MF, vr(Sp(0), 4), vr(Kf(-1), 4), vr(Qf(0), 4)))
    stamp()
    if PPOS == 1: poll1()
    LATE = [17, 18]
    dq = list(memq)
    aw = Weave(P.get("dma_every", 10), dq)
    CKP = P.get("check_pos", 0)
    BLK = P.get("blocking", 0)
    def hcheck():
        if BLK:
            aw.flush()
            check_flags(12, 5, "s34", "p", "L_f1")
            stamp()
            dq.extend([o for sg in range(NX0) for o in xops(sg)])
            aw.n = P.get("x_every", 4)
            for _ in range(P.get("x_burst", 4)): aw.one()
            return
        vwait("p")
        a("v_cmp_ne_u32 vcc, s96, v12")
        a("s_nop 0")
        a("s_cmp_eq_u64 vcc, 0")
        a("s_cselect_b32 s60, s46, %s" % ("s46" if P.get("ab_nocheck") else str(OOB)))
        if P.get("force_late"): a("s_mov_b32 s60, %d" % OOB)
        stamp()
        dq.extend([o for sg in range(NX0) for o in xops(sg)])
        for _ in range(P.get("x_burst", 3)): aw.one()
    if CKP == 0: hcheck()
    if P.get("ab_nosm"):
        aw_real = aw
        class Skip:
            def __call__(self, t):
                if t in keep: a(t)
            def one(self): aw_real.one()
            def flush(self): aw_real.flush()
        keep = set()
        aw = Skip()
    A_ = lambda m: TT(m)
    B_ = lambda m: TT(m) + 1
    X_ = lambda m: TT(m) + 2
    Y_ = lambda m: TT(m) + 3
    MR = (3, 2, 1, 0)
    for m in MR:
        for S_ in (Sc, Sp):
            aw("v_cndmask_b32 v%d, v%d, v%d, s[62:63]" % (S_(m), S_(m), S_(m) + 1))
            aw("v_cndmask_b32 v%d, v%d, v%d, s[62:63]" % (S_(m) + 2, S_(m) + 2, S_(m) + 3))
    for m in MR:
        aw("v_cndmask_b32 v%d, v%d, v%d, s[40:41]" % (A_(m), Sp(m), Sc(m)))
        aw("v_cndmask_b32 v%d, v%d, v%d, s[42:43]" % (B_(m), Sp(m) + 2, Sc(m) + 2))
    if CKP == 1: hcheck()
    def rnd():
        for m in MR: aw("v_cvt_pk_bf16_f32 v%d, v%d, v%d" % (X_(m), A_(m), B_(m)))
        for m in MR:
            aw("v_lshlrev_b32 v%d, 16, v%d" % (A_(m), X_(m)))
            aw("v_and_b32 v%d, s54, v%d" % (B_(m), X_(m)))
    rnd()
    for m in MR: aw("v_pk_mul_f32 %s, %s, s[48:49] op_sel_hi:[1,0]" % (vr(A_(m), 2), vr(A_(m), 2)))
    rnd()
    aw("v_cndmask_b32 v%d, v%d, v11, s[88:89]" % (A_(0), A_(0)))
    aw("v_cndmask_b32 v%d, v%d, v11, s[90:91]" % (B_(0), B_(0)))
    if CKP == 2: hcheck()
    if PPOS == 2: poll1()
    fillq = [unp("vw", VW)] + ["v_xor_b32 v%d, %d, v%d" % (VW + b, 32 * b, VW) for b in range(1, 8)] + \
            [unp("vwo", VWO)] + ["v_xor_b32 v%d, %d, v%d" % (VWO + b, 32 * b, VWO) for b in range(1, 4)] + \
            ["v_subrev_u32 v%d, %d, v%d" % (40 + b, R2, VWO + b) for b in range(4)] + \
            ["v_add_u32 v%d, %d, v%d" % (44 + b, 106496 - R2, VWO + b) for b in range(4)] + \
            [unp("vout", 2)]
    if P.get("ab_nosm"): keep.update(fillq)
    def pad(n):
        for _ in range(n):
            aw(fillq.pop(0) if fillq else "s_nop 0")
    def reduce(op):
        for m in MR: aw("%s v%d, v%d, v%d" % (op, X_(m), A_(m), B_(m)))
        for sw in ("v_permlane16_swap_b32", "v_permlane32_swap_b32"):
            for m in MR: aw("v_mov_b32 v%d, v%d" % (Y_(m), X_(m)))
            pad(2)
            for m in MR: aw("%s v%d, v%d" % (sw, X_(m), Y_(m)))
            pad(1)
            for m in MR: aw("%s v%d, v%d, v%d" % (op, X_(m), X_(m), Y_(m)))
    reduce("v_max_f32")
    if CKP == 3: hcheck()
    if PPOS == 3: poll1()
    for m in MR: aw("v_pk_add_f32 %s, %s, %s op_sel_hi:[1,0] neg_lo:[0,1] neg_hi:[0,1]" % (vr(A_(m), 2), vr(A_(m), 2), vr(X_(m), 2)))
    for m in MR: aw("v_pk_mul_f32 %s, %s, s[48:49] op_sel:[0,1]" % (vr(A_(m), 2), vr(A_(m), 2)))
    for m in MR:
        aw("v_exp_f32 v%d, v%d" % (A_(m), A_(m)))
        aw("v_exp_f32 v%d, v%d" % (B_(m), B_(m)))
    pad(1)
    reduce("v_add_f32")
    if CKP == 4: hcheck()
    if PPOS == 4: poll1()
    for m in MR: aw("v_rcp_f32 v%d, v%d" % (X_(m), X_(m)))
    pad(1)
    for m in MR: aw("v_pk_mul_f32 %s, %s, %s op_sel_hi:[1,0]" % (vr(A_(m), 2), vr(A_(m), 2), vr(X_(m), 2)))
    for m in MR: aw("v_cvt_pk_bf16_f32 v%d, v%d, v%d" % (X_(m), A_(m), B_(m)))
    for m in MR:
        aw("v_and_b32 v%d, 0xffff, v%d" % (A_(m), X_(m)))
        aw("v_lshrrev_b32 v%d, 16, v%d" % (B_(m), X_(m)))
    for m in MR:
        aw("v_lshlrev_b32 v%d, v27, v%d" % (A_(m), A_(m)))
        aw("v_lshlrev_b32 v%d, v27, v%d" % (B_(m), B_(m)))
    for m in MR:
        aw("v_cndmask_b32 v%d, v%d, 0, s[40:41]" % (Pf(m), A_(m)))
        aw("v_cndmask_b32 v%d, v%d, 0, s[42:43]" % (Pf(m) + 1, B_(m)))
        aw("v_cndmask_b32 v%d, 0, v%d, s[40:41]" % (Pf(m) + 2, A_(m)))
        aw("v_cndmask_b32 v%d, 0, v%d, s[42:43]" % (Pf(m) + 3, B_(m)))
    pad(max(2, len(fillq)))
    if CKP == 5: hcheck()
    sys.stderr.write("DMA queue left after softmax: %d\n" % len(dq))
    for m in MR:
        a("%s %s, %s, %s, 0" % (MF, vr(Sp(m), 4), vr(VV(0, m - 1), 4), vr(Pf(m), 4)))
        a("%s %s, %s, %s, 0" % (MF, vr(Sc(m), 4), vr(VV(1, m - 1), 4), vr(Pf(m), 4)))
    stamp()

    lg = Cnt()
    for b in range(4):
        for o in wreads2(0, b): a(o); lg.issue((0, b))
    for m in M4:
        for h in range(4):
            a("v_cvt_pk_bf16_f32 v%d, v%d, v%d" % (240 + 4 * m + h, Sp(m) + 2 * h, Sp(m) + 2 * h + 1))
    aw.flush()
    if not BLK:
        vwait(*[t for t in vm.q if not t.startswith("X")])
        sv = list(vm.q)
        a("s_cmp_eq_u32 s60, s46")
        a("s_cbranch_scc1 L_early")
        a("s_mov_b32 s60, s46")
        poll1()
        check_flags(12, 5, "s34", "p", "L_f1")
        for sg in range(NX0):
            for o in xops(sg): E(o)
        assert vm.q == sv, (vm.q, sv)
        a.label("L_early")
    ostores = [("os", "buffer_store_dwordx4 %s, v15, s[28:31], s75 offen offset:%d %s" % (vr(240 + 4 * m, 4), 1024 * m, SC)) for m in M4]

    srd(a, 16, PX, 0, 2048 * 2048)
    srd(a, 20, PWS, PART_OFF, PART_BYTES)
    srd(a, 24, POUT, 0, 2048 * 2048)
    a("s_add_u32 s73, s72, 32768")
    a("s_lshl2_add_u32 s74, s2, s32"); a("s_lshl_b32 s88, s74, 2"); a("s_add_u32 s88, s88, %d" % F2)
    a("s_lshl_b32 s74, s74, 14")
    a("v_and_b32 v14, 0x30, v15"); a("v_max_u32 v14, 16, v14"); a("v_lshlrev_b32 v14, 1, v14"); a("v_xor_b32 v14, s88, v14")
    a("s_add_u32 s89, s88, 4096"); a("s_movk_i32 s94, 4096")
    a("s_mov_b32 s92, s35")
    vwait("X0")
    stamp()

    AH = P.get("ahead", 1)
    Hs = [(sg, c) for sg in range(ND - AH) for c in (0, 1)] + [(sg, 0) for sg in range(ND - AH, ND)] + [(sg, 1) for sg in range(ND - AH, ND)] + \
         [(sg, c) for sg in range(ND, NS) for c in (0, 1)]
    lastuse = {sg: max(i for i, h in enumerate(Hs) if h[0] == sg) // 2 for sg in range(NS)}
    firstuse = {sg: min(i for i, h in enumerate(Hs) if h[0] == sg) // 2 for sg in range(NS)}
    wsched = {}
    for w in range(4, FR):
        wsched.setdefault(lastuse[w - 4], []).append(w)
        assert lastuse[w - 4] < firstuse[w] - 1 or w >= ND, (w, lastuse[w - 4], firstuse[w])
        assert lastuse[w - 4] < firstuse[w] - 1
    LASTBAR = FR - 2
    q01 = max(i for i, h in enumerate(Hs) if h[0] < ND and h[1] == 0)
    isV = lambda x: isinstance(x, tuple)
    isval = lambda x: isinstance(x, str) and x.startswith("v_")
    def stage(sg, h1=(), h2=(), pre=None, valu=None):
        last = sg == NS - 1
        if P.get("sstamp") and sg >= 1: stamp()
        if pre: pre()
        NG = 64 if sg < ND else 32
        H = NG // 2
        h1 = list(h1); h2 = [o for w in wsched.get(sg, []) for o in wops(w)] + list(h2)
        drop = lambda o: isinstance(o, tuple) and ((P.get("ab_dx") and o[0].startswith("X") and sg >= P["ab_dx"]) or (P.get("ab_dw") and o[0].startswith("W")) or (P.get("ab_dos") and o[0] in ("os", "e", "R")))
        h1 = [o for o in h1 if not drop(o)]; h2 = [o for o in h2 if not drop(o)]
        blk = lambda k, b: (Hs[2 * k + b // 4][0], 4 * Hs[2 * k + b // 4][1] + b % 4)
        r1 = [((sg, b), o) for b in range(4, 8) for o in wreads2(*blk(sg, b), b)]
        r2 = [] if last else [((sg + 1, b), o) for b in range(4) for o in wreads2(*blk(sg + 1, b), b)]
        bar = sg <= LASTBAR
        plan = {g: [] for g in range(NG)}
        load = {g: 4 for g in range(NG)}
        WG_ = {H // 2 - 1: (sg, 3), NG - 1: (sg + 1, 1)}
        if not bar: WG_.update({H - 1: (sg, 5), 3 * H // 2 - 1: (sg, 7)})
        for g in WG_: load[g] += 4
        if bar: load[H - 1] += 8
        def place(lo, hi, rds, rhi, h):
            n = len(rds)
            for k in range(n):
                g = lo + k * (rhi - lo + 1) // n
                plan[g].append(("r",) + rds[k]); load[g] += 8
            nv = sum(isV(x) for x in h)
            pos = [None] * len(h); vi = 0; prev = lo
            for k, x in enumerate(h):
                if isV(x):
                    t = lo + int((vi + 0.5) * (hi - lo + 1) / nv); vi += 1
                    c = sorted(range(max(prev, t - 1), min(hi, t + 1) + 1), key=lambda g: (load[g], abs(g - t))) or [hi]
                    pos[k] = prev = c[0]; load[c[0]] += 8
            prev = lo
            for k, x in enumerate(h):
                if pos[k] is None:
                    nxt = next((pos[j] for j in range(k + 1, len(h)) if pos[j] is not None), hi)
                    if isval(x) and nxt > prev: nxt -= 1
                    c = [g for g in range(prev, nxt + 1) if load[g] <= 12]
                    g = c[0] if c else min(range(prev, max(prev, nxt) + 1), key=lambda g: load[g])
                    pos[k] = g; load[g] = max(load[g], 8 if isval(x) else 0) + 4
                pos[k] = max(pos[k], prev); prev = pos[k]
                plan[pos[k]].append(("o", x))
        place(0, H - 1, r1, (H - 7 if NG == 64 else H - 4) if bar else H - 1, h1)
        place(H, NG - 1, r2, NG - 1, h2)
        if valu:
            for k, x in enumerate(valu[0]): plan[valu[1] + k * (NG - valu[1]) // len(valu[0])].append(("o", x))
        sys.stderr.write("st%d:%d " % (sg, sum(max(16, v) for v in load.values())))
        g = 0
        for b in range(8):
            w = lg.need((sg, b))
            if w is not None: a("s_waitcnt lgkmcnt(%d)" % w)
            for mf in mfmas2(*blk(sg, b), b):
                a(mf)
                for x in plan[g]:
                    if x[0] == "r": a(x[2]); lg.issue(x[1])
                if g in WG_:
                    w = lg.need(WG_[g])
                    if w is not None: a("s_waitcnt lgkmcnt(%d)" % w)
                for x in plan[g]:
                    if x[0] != "r": E(x[1])
                if g == H - 1 and bar:
                    vwait("W%d" % Hs[2 * sg + 2][0], "W%d" % Hs[2 * sg + 3][0], lg0=True)
                    a("s_barrier")
                    lg.clear()
                if g == H - 2: vwait("X%d" % Hs[2 * sg + 1][0])
                if g == NG - 2 and not last: vwait("X%d" % Hs[2 * sg + 2][0])
                g += 1
    def oflag():
        vwait("os")
        V("f", "buffer_store_dword v7, v6, s[84:87], s92 offen %s" % SC)
    EPV = 224
    eload = ["v_lshlrev_b32 v4, %d, v15" % (F0S - 2), "s_or_b32 s3, s2, s32", "s_cselect_b32 s3, %d, 0" % OOB] + \
          [("e", "buffer_load_dwordx4 %s, v4, s[84:87], s3 offen offset:%d %s" % (vr(EPV + 4 * k, 4), k << F0S, SC)) for k in range(4)]
    def epoch():
        a("s_or_b32 s3, s2, s32")
        a("s_cbranch_scc1 L_noep")
        a("s_mov_b32 s97, 0")
        a.label("L_ep")
        for k in range(16): a("v_xor_b32 v%d, s96, v%d" % (EPV + k, EPV + k))
        for k in range(1, 16): a("v_or_b32 v%d, v%d, v%d" % (EPV, EPV, EPV + k))
        a("v_cmp_ne_u32 vcc, 0, v%d" % EPV)
        a("s_cbranch_vccz L_epok")
        for k in range(4): a("buffer_load_dwordx4 %s, v4, s[84:87], 0 offen offset:%d %s" % (vr(EPV + 4 * k, 4), k << F0S, SC))
        a("s_add_u32 s97, s97, 1")
        a("s_waitcnt vmcnt(0)")
        a("s_cmp_lt_u32 s97, 0x80000")
        a("s_cbranch_scc1 L_ep")
        a.label("L_epok")
        a("s_mov_b32 s3, %d" % EPOCH)
        a("buffer_store_dword v7, v6, s[84:87], s3 offen %s" % SC)
        a.label("L_noep")

    PK, XU, XRES, TE = 64, 112, 240, 224
    KEEP = 160
    XUF = lambda o: 80 + (o // 16) * 32 + o % 16
    sends = []
    for hf in range(2):
        for qd in range(3):
            for k in (2 * hf, 2 * hf + 1):
                R = 64 + 32 * qd + 8 * k
                sends.append((["s_add_u32 s75, s74, %d" % (4096 * qd)] if k % 2 == 0 else []) +
                             [("v_cvt_pk_bf16_f32 v%d, v%d, v%d" % (R + r, R + 2 * r, R + 2 * r + 1)) for r in range(4)] +
                             [("S%d" % hf, "buffer_store_dwordx4 %s, v15, s[20:23], s75 offen offset:%d %s" % (vr(R, 4), 1024 * k, SC))])
    PKR = lambda qd, k: 64 + 32 * qd + 4 * k
    xres = [("R", "buffer_load_dwordx4 %s, v2, s[16:19], s%d offen offset:%d" % (vr(XRES + 4 * (2 * m + bp), 4), 72 + m, 64 * bp)) for m in range(2) for bp in range(2)]
    parts = ["s_xor_b32 s%d, s74, 0x%x" % (40 + qd, (dx << 16) + 4096 * qd) for qd, dx in enumerate((2, 6, 4))]
    for k in range(4):
        parts += [("P%d" % k, "buffer_load_dwordx4 %s, v15, s[20:23], s%d offen offset:%d %s" % (vr(PKR(qd, k), 4), 40 + qd, 1024 * k, SC)) for qd in range(3)]
    if P.get("ab_nosend"): sends = [[o for o in x if not isinstance(o, tuple)] for x in sends]
    if P.get("ab_noparts"): parts = parts[:3] + ["s_nop 0"] * 12
    SPA = P.get("send", [4, 2, 1, 1, 1, 1, 1, 1])
    NBB = P.get("nbb", 1)
    EXA, EXB = P.get("ex_a", [16, 18, 19]), P.get("ex_b", [19, 21, 22])
    XRS = P.get("xres_stage", 12)
    def take(n):
        r = [o for x in sends[:n] for o in x]; del sends[:n]; return r
    def sflag(hf):
        vwait("S%d" % hf)
        V("f", "buffer_store_dword v7, v6, s[84:87], s%d offen %s" % (88 + hf, SC))
    pollx = lambda hf: ("p%d" % hf, "buffer_load_dword v%d, v14, s[84:87], %s offen %s" % ((3, 12)[hf], ("0", "s94")[hf], SC))
    checkx = lambda hf: check_flags((3, 12)[hf], 14, ("0", "s94")[hf], "p%d" % hf, "L_f3%d" % hf)
    partx = lambda hf: parts[:9] if hf == 0 else parts[9:]
    def round4(R, T):
        return ["v_cvt_pk_bf16_f32 v%d, v%d, v%d" % (T, R, R + 1), "v_cvt_pk_bf16_f32 v%d, v%d, v%d" % (T + 1, R + 2, R + 3),
                "v_lshlrev_b32 v%d, 16, v%d" % (R, T), "v_and_b32 v%d, s54, v%d" % (R + 1, T),
                "v_lshlrev_b32 v%d, 16, v%d" % (R + 2, T + 1), "v_and_b32 v%d, s54, v%d" % (R + 3, T + 1)]
    xpart = [lambda: vwait("R"), "v_mov_b32 v8, 0x3f80", "v_mov_b32 v9, 1.0"]
    for g4 in range(4):
        R = XRES + 4 * g4
        xpart += ["v_permlane16_swap_b32 v%d, v%d" % (R, R + 2), "v_permlane16_swap_b32 v%d, v%d" % (R + 1, R + 3)]
    for m in range(2):
        for bp in range(2):
            for be in range(2):
                for h in range(2):
                    src = XRES + 4 * (2 * m + bp) + 2 * be + h
                    d = XUF(((2 * bp + be) * 2 + m) * 4 + 2 * h)
                    xpart += ["v_lshlrev_b32 v%d, 16, v%d" % (d, src), "v_and_b32 v%d, s54, v%d" % (d + 1, src)]
    QD, QO, SW = P.get("qd", 7.75), P.get("qo", 5.5), P.get("sw", 1.5)
    xq = []
    for x in range(NX0, NS):
        o = xops(x); xq += [(x, o[:2])] + [(x, [y]) for y in o[2:]]
    fq = []
    for t in LATE:
        o = wops(t, True)
        fq += [(1, [o[0], o[1 + 2 * k], o[2 + 2 * k]]) for k in range(4)]
    fq += [(2, [y]) for y in xres]
    OS0 = P.get("os_half", 0)
    FMIN = P.get("fill_from", 10)
    alloc = {}; first = {}; carry = 0.0
    for hh in range(2 * NS):
        sg = hh // 2
        w = carry + (4 * len(wsched.get(sg, [])) if hh % 2 else 0)
        L = []
        if OS0 <= hh < OS0 + 4: L.append(ostores[hh - OS0]); w += SW
        k = hh - q01 - 1
        if 0 <= k < len(SPA): w += SW * SPA[k]
        q = QD if sg < ND else QO
        urgent = lambda: xq and firstuse[xq[0][0]] <= sg + P.get("xmin", 1)
        while w + 0.5 <= q or urgent():
            if fq and hh >= FMIN and hh % 2 == 0 and not any(o in L for _, f in fq[:0] for o in f) and P.get("fill_mix", 1) and not urgent() and sum(1 for o in L if isinstance(o, tuple) and not o[0].startswith("X")) < 2:
                c, o = fq.pop(0); L += o; w += c
            elif xq and (xq[0][0] < NXB or lastuse[xq[0][0] - NXB] < sg):
                x, o = xq.pop(0); first.setdefault(x, sg); L += o; w += 1
                assert firstuse[x] > sg, (x, sg)
            elif fq and hh >= FMIN:
                c, o = fq.pop(0); L += o; w += c
            else: break
        carry = w - q if abs(w - q) < 1 or w > q else 0.0
        alloc[hh] = L
        sys.stderr.write("%d:%d " % (hh, sum(isinstance(o, tuple) for o in L)))
    sys.stderr.write(" first %s\n" % first)
    assert not xq and not fq
    assert all(not (isinstance(o, tuple) and (o[0] == "R" or o[0][0] == "W")) for hh in range(2 * 13, 2 * NS) for o in alloc[hh])
    ck2, cko = first[7], first[ND]
    for sg in range(NS):
        h1, h2 = list(alloc[2 * sg]), list(alloc[2 * sg + 1])
        pre = []
        if sg == 1: h2 = h2 + eload
        if sg == (OS0 + 3) // 2 + 2: pre.append(oflag)
        if sg == ck2 - 2: h2 = h2 + [("p", "buffer_load_dword v12, v5, s[84:87], s58 offen %s" % SC)]
        if sg == ck2: pre += [lambda: check_flags(12, 5, "s58", "p", "L_f1b")]
        if sg == 4: pre += [lambda: vwait("e"), epoch]
        if sg == cko - 2: h2 = h2 + [("p", "buffer_load_dword v3, v13, s[84:87], s59 offen %s" % SC)]
        if sg == cko: pre.append(lambda: check_flags(3, 13, "s59", "p", "L_f2"))
        for hh, lst in ((2 * sg, h1), (2 * sg + 1, h2)):
            k = hh - q01 - 1
            t_ = take(SPA[k]) if 0 <= k < len(SPA) else []
            if P.get("send_first", 1): lst[:0] = t_
            else: lst += t_
        for hf, (f_, p_, c_) in enumerate((EXA, EXB)):
            if sg == p_: h2 = h2 + [pollx(hf)]
            if sg - 0.5 == p_: h1 = h1 + [pollx(hf)]
            if sg == f_: pre.append(lambda hf=hf: sflag(hf))
            if sg + 0.5 == f_: h2 = [lambda hf=hf: sflag(hf)] + h2
            if sg == c_:
                pre.append(lambda hf=hf: checkx(hf)); px = partx(hf); h1 = h1 + px[:-3]; h2 = px[-3:] + h2
        if sg == ND: stamp()
        wv = None
        if sg == P.get("xpart_stage", 20): wv = (xpart, 0)
        stage(sg, h1, h2, pre=(lambda pre=pre: [f() for f in pre]), valu=wv)
    sys.stderr.write("\n")
    assert not sends
    stamp()
    for hf, (f_, p_, c_) in enumerate((EXA, EXB)):
        if c_ == NS and not (hf == 1 and NBB):
            checkx(hf)
            for o in partx(hf): E(o)
    def nb_try():
        vwait("p1")
        a("v_cmp_ne_u32 vcc, s96, v12")
        a("s_nop 0")
        a("s_cmp_eq_u64 vcc, 0")
        a("s_cselect_b32 s46, 0, %d" % OOB)
        if P.get("force_late"): a("s_mov_b32 s46, %d" % OOB)
        for qd in range(3): a("s_add_u32 s%d, s%d, s46" % (43 + qd, 40 + qd))
        for t, o in partx(1):
            for qd in range(3): o = o.replace("s%d offen" % (40 + qd), "s%d offen" % (43 + qd))
            V(t, o)
    def nb_fix():
        a("s_cmp_eq_u32 s46, 0")
        a("s_cbranch_scc1 L_nbok")
        sv = list(vm.q)
        E(pollx(1)); checkx(1)
        for o in partx(1): E(o)
        a("s_waitcnt vmcnt(0)")
        vm.q = sv
        a.label("L_nbok")
    if NBB == 1: nb_try()
    def dots(k):
        vwait("P%d" % k)
        for qd in range(3):
            for r in range(8):
                a("v_dot2_f32_bf16 v%d, v%d, v%d, v%d" % (KEEP + 8 * k + r, PKR(qd, k) + r // 2, 8 + (r & 1), KEEP + 8 * k + r))
    MIM = P.get("mimic", "s")
    if "s" in MIM:
        a("s_nop 7")
        for k in range(8):
            for x in round4(accO(0, 0) + 4 * k, 48 + 2 * (k % 2)): a(x)
    if NBB == 2: nb_try()
    for bp in range(2):
        if bp == 1 and NBB: nb_fix()
        dots(2 * bp); dots(2 * bp + 1)
        o = 16 * bp
        H8 = range(0, 16, 2)
        if "y" in MIM:
            for k in range(4):
                for x in round4(KEEP + o + 4 * k, 10 + 2 * (k % 2)): a(x)
        for h in H8: a("v_pk_mul_f32 %s, %s, s[50:51]" % (vr(TE + o + h, 2), vr(KEEP + o + h, 2)))
        for r in range(16): a("v_exp_f32 v%d, v%d" % (TE + o + r, TE + o + r))
        for h in H8: a("v_pk_mul_f32 %s, %s, %s" % (vr(KEEP + o + h, 2), vr(KEEP + o + h, 2), vr(accO(0, 0) + o + h, 2)))
        for h in H8: a("v_pk_add_f32 %s, %s, s[52:53]" % (vr(TE + o + h, 2), vr(TE + o + h, 2)))
        for m in range(2):
            D = 32 + 4 * (2 * m + bp)
            offs = [o + (be * 2 + m) * 4 for be in range(2)]
            for f in offs:
                for r in range(4): a("v_rcp_f32 v%d, v%d" % (TE + f + r, TE + f + r))
            for f in offs:
                for h in (0, 2): a("v_pk_fma_f32 %s, %s, %s, %s" % (vr(KEEP + f + h, 2), vr(KEEP + f + h, 2), vr(TE + f + h, 2), vr(XUF(f + h), 2)))
            for be, f in enumerate(offs):
                a("v_cvt_pk_bf16_f32 v%d, v%d, v%d" % (D + 2 * be, KEEP + f, KEEP + f + 1))
                a("v_cvt_pk_bf16_f32 v%d, v%d, v%d" % (D + 2 * be + 1, KEEP + f + 2, KEEP + f + 3))
            a("s_nop 0")
            a("v_permlane16_swap_b32 v%d, v%d" % (D, D + 2))
            a("v_permlane16_swap_b32 v%d, v%d" % (D + 1, D + 3))
            a("s_nop 0")
            V("out", "buffer_store_dwordx4 %s, v2, s[24:27], s%d offen offset:%d %s" % (vr(D, 4), 72 + m, 64 * bp, P.get("outfl", "")))
    if probe is not None:
        stamp(); a("s_waitcnt vmcnt(0)"); stamp()
        a.label("L_probe")
        a("s_memrealtime s[4:5]"); a("s_waitcnt lgkmcnt(0)"); a("s_sub_u32 s4, s4, s98"); a("s_cmp_lt_u32 s4, 10000"); a("s_cbranch_scc1 L_probe")
    if prof:
        stamp(); a("s_waitcnt vmcnt(0)"); stamp()
        srd(a, 8, PWS, STAMP_OFF, 65536)
        a("s_lshl_b32 s3, s2, 8")
        a("v_lshl_add_u32 v8, v0, 2, s3")
        a("v_cmp_gt_u32 vcc, 64, v0")
        a("s_and_b64 exec, exec, vcc")
        a("s_cbranch_execz L_end")
        a("buffer_store_dword v31, v8, s[8:11], 0 offen")
    a.label("L_end")
    a("s_endpgm")
    desc(a, name, 256 + NAGPR, 100, 256)
    hdr = open("recurrent_scan__sliding_local_dilated__swiglu_ffn__prompt.s.ref").read().split("; Override launch")[0]
    if P.get("aslist", 1):
        hdr += "; @launch kernel=%s grid=(256,1,1) block=(256,1,1) lds=%d\n" % (name, LDS_BYTES)
    else:
        hdr += "; @launch grid=(256,1,1) block=(256,1,1) lds=%d\n" % LDS_BYTES
    return hdr + a.text()

if __name__ == "__main__":
    P = json.loads(sys.argv[2]) if len(sys.argv) > 2 else {}
    open(sys.argv[1], "w").write(gen(P))
```

```python
import sys, json
sys.path.insert(0, "dev")
from gen_common import *

MAIN = "recurrent_scan__sliding_local_dilated__swiglu_ffn__prompt_kernel"
SLOT = 40960
GATE, UP, QKV = 0, 14336, 28672
EX = 155648
LDS_BYTES = 163840
LNX = EX
R2 = SLOT
F0, F1H, F1O, F2, EPOCH = 0, 32768, 40960, 262144, 65536
NONCE_ADD = 0x6A09E667
OOB = 0x40000000
SC = "sc1"
MF = "v_mfma_f32_16x16x32_bf16"

class Cnt:
    def __init__(self, init=(), cap=15):
        self.q = list(init); self.cap = cap
    def issue(self, tag): self.q.append(tag)
    def need(self, *tags):
        idx = [i for i, t in enumerate(self.q) if t in tags]
        if not idx: return None
        last = max(idx)
        n = len(self.q) - 1 - last
        self.q = self.q[last + 1:]
        return min(n, self.cap)
    def clear(self): self.q = []

def cost(o):
    s = o[1] if isinstance(o, tuple) else o
    if callable(s): return 4
    if s.startswith(("v_exp", "v_rcp", "buffer_", "v_permlane")): return 8
    return 4

def gen(P):
    a = Asm()
    name = MAIN
    prof, probe = P.get("prof"), P.get("probe")
    nst = [0]
    def stamp():
        if probe is not None:
            if nst[0] == probe:
                a("s_memrealtime s[98:99]"); a("s_waitcnt lgkmcnt(0)")
            nst[0] += 1
            return
        if not prof: return
        a("%s s[98:99]" % ("s_memtime" if prof == 2 else "s_memrealtime"))
        a("s_waitcnt lgkmcnt(0)")
        a("v_writelane_b32 v31, s98, %d" % nst[0])
        nst[0] += 1
    XSC = P.get("xsc", "sc1")
    ROT2 = P.get("g2_rot", 0)
    vm = Cnt(cap=63)
    def V(tag, s):
        vm.issue(tag)
        if s.endswith("lds") and a.lines[-1].strip().startswith("s_add_u32 m0"): a("s_nop 0")
        a(s)
    def E(o):
        if isinstance(o, tuple): V(*o)
        elif callable(o): o()
        else: a(o)
    def vwait(*tags, lg0=False):
        n = vm.need(*tags)
        parts = ([] if n is None else ["vmcnt(%d)" % n]) + (["lgkmcnt(0)"] if lg0 else [])
        if parts: a("s_waitcnt " + " ".join(parts))
    def check_flags(vreg, voff, soff, tag, label):
        vwait(tag)
        a("v_cmp_ne_u32 vcc, s96, v%d" % vreg)
        a("s_cbranch_vccz %s_ok" % label)
        a("s_mov_b32 s97, 0")
        a.label(label + "_spin")
        if P.get("spin_sleep", 1): a("s_sleep %d" % P.get("spin_sleep", 1))
        a("buffer_load_dword v%d, v%d, s[84:87], %s offen %s" % (vreg, voff, soff, P.get("pollfl", SC)))
        a("s_add_u32 s97, s97, 1")
        a("s_waitcnt vmcnt(0)")
        a("s_cmp_gt_u32 s97, 0x80000")
        a("s_cbranch_scc1 %s_ok" % label)
        a("v_cmp_ne_u32 vcc, s96, v%d" % vreg)
        a("s_cbranch_vccnz %s_spin" % label)
        a.label(label + "_ok")

    class Weave:
        def __init__(self, n, q, skip=0): self.n, self.c, self.q = n, -skip, q
        def __call__(self, t):
            a(t)
            if t.startswith("v_") and not t.startswith("v_mfma"):
                self.c += 1
                if self.c > 0 and self.c % self.n == 0: self.one()
        def one(self):
            while self.q:
                o = self.q.pop(0); E(o)
                if isinstance(o, tuple): break
        def flush(self):
            while self.q: self.one()

    accGU = lambda p, gu, m: 32 + ((p * 2 + gu) * 4 + m) * 4
    accQ = lambda s, m: (s * 4 + m) * 4
    HACC = 96
    XB = lambda buf, m, kh: (100 + buf * 40 + (m * 2 + kh) * 4) if buf < 2 else ((224 + (m * 2 + kh) * 4) if m < 4 else 172 + kh * 4)
    WR = lambda slot, kh: 180 + slot * 8 + kh * 4
    HW = lambda kh: 212 + kh * 4
    PARK = 220
    NAGPR = 256
    PX, PQKV, PWO, PG, PU, PD, POUT, PDBG, PWS = 64, 66, 68, 72, 74, 76, 78, 80, 82

    a.raw('.amdgcn_target "amdgcn-amd-amdhsa--gfx950"')
    kernel_header(a, name)
    a("s_cmp_ge_u32 s2, 256")
    a("s_cbranch_scc1 L_end")
    a("s_load_dwordx16 s[64:79], s[0:1], 0")
    a("s_load_dwordx4 s[80:83], s[0:1], 64")
    a("s_getpc_b64 s[4:5]")
    a.label("L_pc")
    a("v_and_b32 v17, 63, v0")
    a("s_mov_b32 s6, L_end-L_pc")
    a("s_mov_b32 s7, 0x20000")
    a("v_lshlrev_b32 v1, 7, v17")
    a("s_bfe_u32 s3, s2, 0x30003")
    a("s_lshl_b32 s3, s3, 13")
    V("c", "buffer_load_dword v29, v1, s[4:7], s3 offen")
    if prof: a("v_mov_b32 v31, 0")
    stamp()
    a("v_lshrrev_b32 v16, 6, v0")
    a("v_lshrrev_b32 v18, 3, v17")
    a("v_and_b32 v19, 7, v17")
    a("v_readfirstlane_b32 s32, v16")
    a("v_lshlrev_b32 v20, 11, v18")
    a("v_lshl_add_u32 v20, v16, 9, v20")
    a("v_lshl_add_u32 v20, v19, 4, v20")
    a("s_and_b32 s34, s2, 7")
    a("s_bfe_u32 s35, s2, 0x20003")
    a("s_lshl2_add_u32 s34, s34, s35")
    a("s_lshr_b32 s33, s2, 5")
    a("s_lshl_b32 s36, s33, 5")
    a("s_add_u32 s36, s36, s34")
    a("s_lshl_b32 s37, s36, 14")
    a("v_mov_b32 v6, 0")
    a("s_mov_b32 s50, %d" % (2048 * 2048))
    a("s_mov_b32 s51, 0x20000")
    a("s_waitcnt lgkmcnt(0)")
    a("s_mov_b64 s[48:49], s[%d:%d]" % (PX, PX + 1))
    LX = 32
    for u in range(4):
        V("x", "buffer_load_dwordx4 %s, v20, s[48:51], s37 offen offset:%d %s" % (vr(LX + 4 * u, 4), 128 * u, P.get("xfl", "")))
    srd(a, 84, PWS, FLAG_OFF, FLAG_BYTES)
    a("s_mov_b32 s3, %d" % EPOCH)
    V("ep", "buffer_load_dword v7, v6, s[84:87], s3 offen")
    if P.get("ftouch", 0):
        a("v_lshlrev_b32 v21, 17, v17")
        a("s_lshl2_add_u32 s3, s2, s32")
        a("s_lshl_b32 s3, s3, 7")
        V("t", "buffer_load_dword v29, v21, s[84:87], s3 offen %s" % P.get("ftfl", ""))
    stamp()
    if P.get("xrot", 1): a("s_and_b32 s80, s2, 7"); a("s_lshl_b32 s80, s80, 1")
    else: a("s_mov_b32 s80, 0")
    a("s_mov_b32 s81, s80")
    a("s_and_b32 s57, s34, 1")
    a("s_lshr_b32 s58, s34, 1")
    a("s_mul_i32 s58, s58, 448")
    a("s_cmp_eq_u32 s32, 1")
    a("s_cselect_b64 s[88:89], s[%d:%d], s[%d:%d]" % (PU, PU + 1, PG, PG + 1))
    a("s_cmp_eq_u32 s32, 3")
    a("s_cbranch_scc1 L_t3")
    a("s_mul_i32 s3, s57, 208")
    a("s_add_u32 s3, s3, s58")
    a("s_movk_i32 s92, 7168")
    a("s_movk_i32 s93, 118")
    a("s_cmp_eq_u32 s32, 2")
    a("s_cbranch_scc0 L_t01")
    a("s_mov_b64 s[88:89], s[%d:%d]" % (PQKV, PQKV + 1))
    a("s_lshl_b32 s3, s34, 6")
    a("s_movk_i32 s92, 6144")
    a("s_movk_i32 s93, 2048")
    a.label("L_t01")
    a("s_lshl_b32 s90, s92, 10")
    a("v_bfe_u32 v21, v17, 2, 3")
    a("v_and_b32 v22, 32, v17")
    a("v_lshl_add_u32 v21, v22, 1, v21")
    a("v_and_b32 v22, 3, v17")
    a("v_mul_u32_u24 v30, s92, v21")
    a("v_mul_u32_u24 v23, s93, v22")
    a("v_and_b32 v23, -4, v23")
    a("v_add3_u32 v30, v30, v23, s3")
    a("v_cmp_eq_u32 vcc, 3, v22")
    a("v_mov_b32 v23, %d" % OOB)
    a("s_lshl3_add_u32 s94, s80, s33")
    a("s_lshl_b32 s94, s94, 3")
    a("v_cndmask_b32 v30, v30, v23, vcc")
    a("v_mov_b32 v25, %s" % ("v30" if not P.get("now1") else str(OOB)))
    if P.get("noearly"): a("v_mov_b32 v30, %d" % OOB)
    a("s_mul_i32 s94, s94, s92")
    a("s_lshl_b32 s95, s92, 7")
    a("s_branch L_td")
    a.label("L_t3")
    a("s_mov_b64 s[88:89], s[%d:%d]" % (PD, PD + 1))
    a("v_lshlrev_b32 v30, 7, v17")
    a("s_bfe_u32 s3, s2, 0x20001")
    a("s_add_u32 s3, s3, 1")
    a("s_mul_i32 s90, s3, %d" % (896 * 2048))
    a("s_lshr_b32 s94, s2, 3")
    a("s_lshl_b32 s94, s94, 13")
    a("s_add_u32 s94, s94, s90")
    a("s_sub_u32 s94, s94, %d" % (128 * 2048))
    a("s_mov_b32 s95, 0")
    a("v_mov_b32 v25, v30")
    a("v_mov_b32 v30, %d" % OOB)
    if P.get("now2"): a("v_mov_b32 v25, %d" % OOB)
    a.label("L_td")
    a("s_mov_b32 s91, 0x20000")
    TH = P.get("t_half", 0)
    if TH:
        a("s_mov_b32 exec_hi, 0")
        V("t", "buffer_load_dword v29, v30, s[88:91], s94 offen")
        a("s_mov_b32 exec_hi, -1")
    for k in range(P.get("t_early", 2) if not TH else 0):
        V("t", "buffer_load_dword v29, v30, s[88:91], s94 offen %s" % P.get("t0fl", ""))
        for o in ["s_add_u32 s94, s94, s95", "s_cmp_ge_u32 s94, s90", "s_cselect_b32 s3, s90, 0", "s_sub_u32 s94, s94, s3"]: a(o)
    a("v_lshlrev_b32 v21, 17, v16")
    a("v_lshrrev_b32 v22, 2, v19")
    a("v_lshl_add_u32 v21, v22, 10, v21")
    a("v_and_b32 v22, 3, v19")
    a("v_lshl_add_u32 v21, v22, 8, v21")
    a("v_lshl_add_u32 v28, v18, 4, v21")
    a("s_lshl_b32 s60, s33, 19")
    a("s_lshr_b32 s51, s34, 1")
    a("s_lshl_b32 s51, s51, 11")
    a("s_add_u32 s50, s60, s51")
    a("s_lshl_b32 s51, s57, 7")
    a("s_add_u32 s50, s50, s51")
    a("s_add_u32 s51, s50, 32768")
    a("s_add_u32 s52, s50, 65536")
    a("s_add_u32 s53, s50, 98304")
    a("v_lshlrev_b32 v26, 5, v18")
    a("v_add_u32 v26, %d, v26" % LNX)
    a("v_lshl_add_u32 v27, v16, 3, v26")
    a("s_mov_b64 s[24:25], s[%d:%d]" % (PWS, PWS + 1))
    a("s_add_u32 s26, s60, 0x80000")
    a("s_mov_b32 s27, 0x20000")
    a("s_mov_b32 s54, 0xffff0000")
    F0S = P.get("f0shift", 7)
    a("s_lshl_b32 s92, s36, %d" % F0S)
    WF = P.get("wgflag", 1)
    if WF: a("s_lshl_b32 s3, s32, 28"); a("s_add_u32 s92, s92, s3")
    else: a("s_lshl2_add_u32 s92, s32, s92")
    a("s_mov_b32 s3, 0x3f803f80")
    a("v_mov_b32 v116, s3")
    a("s_max_u32 s61, s33, 1")
    a("s_sub_u32 s61, s61, 1")
    a("s_lshl_b32 s59, s61, %d" % (5 + F0S))
    a("s_add_u32 s59, s59, %d" % (30 << F0S))
    a("s_lshl_b32 s3, s33, %d" % (5 + F0S))
    a("s_lshl_b32 s48, s32, %d" % (3 + F0S))
    a("s_add_u32 s3, s3, s48")
    a("v_and_b32 v21, %d, v17" % (0 if WF else 3))
    a("v_lshlrev_b32 v21, 2, v21")
    a("v_lshrrev_b32 v20, 2, v17")
    a("v_lshl_add_u32 v20, v20, %d, v21" % F0S)
    a("v_and_b32 v21, %d, v20" % ((1 << F0S) + 12))
    a("v_add_u32 v20, s3, v20")
    a("v_add_u32 v21, s59, v21")
    a("v_cmp_gt_u32 vcc, 32, v17")
    a("v_mov_b32 v22, %d" % OOB)
    a("v_lshlrev_b32 v15, 4, v17")
    a("v_cndmask_b32 v254, v21, v20, vcc")
    a("v_cndmask_b32 v121, v22, v25, vcc")
    a("v_cndmask_b32 v122, v25, v22, vcc")

    def g1_setup_w():
        def krow(dst, rho, t1):
            a("v_and_b32 v%d, 35, v%d" % (dst, rho))
            a("v_bfe_u32 v%d, v%d, 2, 2" % (t1, rho))
            a("v_lshl_or_b32 v%d, v%d, 3, v%d" % (dst, t1, dst))
            a("v_bfe_u32 v%d, v%d, 4, 1" % (t1, rho))
            a("v_lshl_or_b32 v%d, v%d, 2, v%d" % (dst, t1, dst))
        a("s_mul_i32 s56, s32, 192")
        a("s_lshl_b32 s59, s34, 6")
        a("s_movk_i32 s40, 4682")
        a("s_movk_i32 s41, 5462")
        a("s_movk_i32 s62, 7168")
        a("s_movk_i32 s63, 6144")
        a("s_mul_i32 s48, s57, 14")
        def gu_off(dst, imm):
            a("v_mul_u32_u24 v21, s40, v20")
            a("v_lshrrev_b32 v21, 16, v21")
            a("v_mul_u32_u24 v22, 14, v21")
            a("v_sub_u32 v22, v20, v22")
            a("v_add_u32 v22, s48, v22")
            a("v_lshrrev_b32 v23, 1, v22")
            a("v_xor_b32 v23, v23, v22")
            a("v_and_b32 v23, 1, v23")
            a("v_mul_u32_u24 v23, 3, v23")
            a("v_xor_b32 v22, v22, v23")
            krow(24, 21, 23)
            a("s_sub_u32 s3, s58, %d" % imm)
            a("v_lshl_add_u32 v22, v22, 4, s3")
            a("v_mad_u32_u24 v%d, v24, s62, v22" % dst)
        def qkv_off(dst, imm):
            a("v_mul_u32_u24 v21, s41, v20")
            a("v_lshrrev_b32 v21, 16, v21")
            a("v_mul_u32_u24 v22, 12, v21")
            a("v_sub_u32 v22, v20, v22")
            a("v_lshrrev_b32 v23, 1, v21")
            a("v_and_b32 v23, 2, v23")
            a("v_xor_b32 v22, v22, v23")
            a("v_lshrrev_b32 v25, 2, v22")
            a("v_and_b32 v22, 3, v22")
            a("s_sub_u32 s3, s59, %d" % imm)
            a("v_lshl_add_u32 v22, v22, 4, s3")
            a("v_lshl_add_u32 v22, v25, 11, v22")
            krow(24, 21, 23)
            a("v_mad_u32_u24 v%d, v24, s63, v22" % dst)
        for q in range(3):
            a("s_add_u32 s3, s56, %d" % (64 * q))
            a("v_add_u32 v20, s3, v17")
            gu_off(8 + q, 1024 * q)
            qkv_off(11 + q, 1024 * q)
        a("s_and_b32 s35, s32, 1")
        a("s_lshl_b32 s3, s35, 6")
        a("s_add_u32 s3, s3, 768")
        a("v_add_u32 v20, s3, v17")
        gu_off(14, 0)
        a("s_mul_i32 s43, s32, 3072")
        a("s_add_u32 s44, s43, %d" % UP)
        a("s_add_u32 s45, s43, %d" % QKV)
        a("s_lshr_b32 s46, s32, 1")
        a("s_mul_i32 s46, s46, %d" % UP)
        a("s_lshl_b32 s3, s35, 10")
        a("s_add_u32 s46, s46, s3")
        a("s_add_u32 s46, s46, 12288")
        srd(a, 8, PG, 0, 1024 * 7168)
        srd(a, 12, PU, 0, 1024 * 7168)
        srd(a, 16, PQKV, 0, 1024 * 6144)
        a("s_cmp_lt_u32 s32, 2")
        a("s_cselect_b64 s[20:21], s[%d:%d], s[%d:%d]" % (PG, PG + 1, PU, PU + 1))
        a("s_mov_b32 s22, %d" % (1024 * 7168))
        a("s_mov_b32 s23, 0x20000")
    def g1_setup_r():
        a("v_lshrrev_b32 v18, 2, v17")
        a("v_and_b32 v19, 3, v17")
        a("v_lshlrev_b32 v19, 3, v19")
        a("s_movk_i32 s3, 224")
        a("v_and_b32 v20, 16, v15")
        a("v_and_b32 v21, 2, v17")
        a("v_lshl_add_u32 v20, v21, 2, v20")
        a("v_mad_u32_u24 v1, v18, s3, v20")
        a("s_movk_i32 s3, 192")
        a("v_mad_u32_u24 v2, v18, s3, v19")
        a("v_add_u32 v2, %d, v2" % QKV)
        a("v_and_b32 v19, 16, v17")
        a("v_lshlrev_b32 v19, 1, v19")
        a("v_xor_b32 v20, 32, v19")
        a("v_add_u32 v3, v2, v20")
        a("v_add_u32 v2, v2, v19")
        a("s_cmp_eq_u32 s35, 1")
        a("s_cselect_b64 vcc, -1, 0")
        a("v_cndmask_b32 v4, v2, v3, vcc")
        a("s_lshr_b32 s3, s32, 1")
        a("s_lshl_b32 s3, s3, 6")
        a("s_add_u32 s3, s3, 64")
        a("v_add_u32 v4, s3, v4")
        a("s_mov_b32 s62, %d" % SLOT)
        a("s_mov_b32 s63, %d" % ((-2 * SLOT) & 0xffffffff))
        srd(a, 28, PWS, ACT_OFF, ACT_BYTES)
    def tau_ops():
        return ["s_add_u32 s81, s36, s80", "s_and_b32 s81, s81, 15", "s_mul_i32 s38, s81, 458752", "s_mul_i32 s39, s81, 393216"]
    def xoff_ops():
        return ["s_lshl_b32 s40, s81, 15", "s_add_u32 s42, s40, s61", "s_add_u32 s40, s40, s60", "s_add_u32 s41, s40, 4096"]
    def wdma_ops(tag):
        o = []
        for (mreg, sd, vb, so) in ((43, 8, 8, 38), (44, 12, 8, 38), (45, 16, 11, 39)):
            o.append("s_add_u32 m0, s37, s%d" % mreg)
            for q in range(3):
                o.append((tag, "buffer_load_dwordx4 v%d, s[%d:%d], s%d offen offset:%d lds" % (vb + q, sd, sd + 3, so, 1024 * q)))
        o.append("s_add_u32 m0, s37, s46")
        o.append((tag, "buffer_load_dwordx4 v14, s[20:23], s38 offen lds"))
        return o
    def xld_ops(buf, tag):
        o = []
        for f in range(8):
            o.append((tag, "buffer_load_dwordx4 %s, v15, s[24:27], s%d offen offset:%d %s" % (ar(XB(buf, f // 2, f % 2), 4), 40 + f // 4, 1024 * (f % 4), XSC)))
        for kh in range(2):
            o.append((tag, "buffer_load_dwordx4 %s, v15, s[24:27], s42 offen offset:%d %s" % (ar(XB(buf, 4, kh), 4), 1024 * kh, "" if P.get("halo_plain", 0) else XSC)))
        return o

    g1_setup_w()
    a("s_mov_b32 s36, 0"); a("s_mov_b32 s37, 0")
    W0POS = P.get("w0pos", 1)
    al = Weave(P.get("w0_every", 14), tau_ops() + wdma_ops("W0") if W0POS == 2 else [], P.get("w0_skip", 0))

    if P.get("ab_noln") == 2:
        a("s_branch L_skipln")
    vwait("x")
    stamp()
    X = 48
    for r in range(16):
        c1 = "0" if r < 2 else "v%d" % (112 + 2 * (r % 2))
        c2 = "0" if r < 2 else "v%d" % (113 + 2 * (r % 2))
        al("v_dot2_f32_bf16 v%d, v%d, v116, %s" % (112 + 2 * (r % 2), LX + r, c1))
        al("v_dot2_f32_bf16 v%d, v%d, v%d, %s" % (113 + 2 * (r % 2), LX + r, LX + r, c2))
    al("s_nop 2")
    al("v_pk_add_f32 v[112:113], v[112:113], v[114:115]")
    for m in ("quad_perm:[1,0,3,2]", "quad_perm:[2,3,0,1]", "row_half_mirror"):
        al("s_nop 0" if m != "quad_perm:[1,0,3,2]" else "s_nop 1")
        for v in (112, 113):
            al("v_add_f32_dpp v%d, v%d, v%d %s row_mask:0xf bank_mask:0xf" % (v, v, v, m))
    al("ds_write_b64 v27, v[112:113]")
    def unpack(r):
        al("v_lshlrev_b32 v%d, 16, v%d" % (X + 2 * r, LX + r))
        al("v_and_b32 v%d, s54, v%d" % (X + 2 * r + 1, LX + r))
    for r in range(8): unpack(r)
    al("s_waitcnt lgkmcnt(0)")
    al("s_barrier")
    al("ds_read_b128 v[80:83], v26")
    al("ds_read_b128 v[84:87], v26 offset:16")
    for r in range(8, 16): unpack(r)
    al("s_waitcnt lgkmcnt(0)")
    al("v_pk_add_f32 v[80:81], v[80:81], v[82:83]")
    al("v_pk_add_f32 v[84:85], v[84:85], v[86:87]")
    al("v_pk_add_f32 v[80:81], v[80:81], v[84:85]")
    al("v_mul_f32 v88, 0x3a800000, v80")
    al("v_mul_f32 v81, 0x3a800000, v81")
    al("v_fma_f32 v81, -v88, v88, v81")
    al("v_max_f32 v81, 0, v81")
    al("v_cvt_pk_bf16_f32 v88, v88, v81")
    al("v_and_b32 v81, s54, v88")
    al("v_lshlrev_b32 v88, 16, v88")
    al("v_add_f32 v81, 0x3727c5ac, v81")
    al("v_cvt_pk_bf16_f32 v81, v81, v81")
    al("v_and_b32 v81, s54, v81")
    al("v_sqrt_f32 v81, v81")
    al("v_sub_f32 v88, 0, v88")
    al("v_cvt_pk_bf16_f32 v81, v81, v81")
    al("v_and_b32 v81, s54, v81")
    al("v_rcp_f32 v90, v81")
    al("v_mov_b32 v89, v88")
    al("v_mov_b32 v91, v90")
    for u in range(4):
        R = range(4 * u, 4 * u + 4)
        for r in R: al("v_pk_add_f32 %s, %s, v[88:89]" % (vr(X + 2 * r, 2), vr(X + 2 * r, 2)))
        for r in R: al("v_cvt_pk_bf16_f32 v%d, v%d, v%d" % (LX + r, X + 2 * r, X + 2 * r + 1))
        for r in R: unpack(r)
        for r in R: al("v_pk_mul_f32 %s, %s, v[90:91]" % (vr(X + 2 * r, 2), vr(X + 2 * r, 2)))
        for r in R: al("v_cvt_pk_bf16_f32 v%d, v%d, v%d" % (LX + r, X + 2 * r, X + 2 * r + 1))
        V("xs", "buffer_store_dwordx4 %s, v28, s[24:27], s%d offen %s" % (vr(LX + 4 * u, 4), 50 + u, SC))
    al.flush()
    if P.get("ab_noln") == 2: a.label("L_skipln")
    stamp()

    if TH == 2: a("v_mov_b32 v253, v30")
    if TH == 1:
        for k in range(2):
            V("t", "buffer_load_dword v29, v30, s[88:91], s94 offen")
            for o in ["s_add_u32 s94, s94, s95", "s_cmp_ge_u32 s94, s90", "s_cselect_b32 s3, s90, 0", "s_sub_u32 s94, s94, s3"]: a(o)
    if P.get("t_early", 2) < 2 and P.get("t1pos", 0) == 0:
        V("t", "buffer_load_dword v29, v30, s[88:91], s94 offen %s" % P.get("t1fl", ""))
        for o in ["s_add_u32 s94, s94, s95", "s_cmp_ge_u32 s94, s90", "s_cselect_b32 s3, s90, 0", "s_sub_u32 s94, s94, s3"]: a(o)
    a("s_lshl_b32 s3, s32, 13")
    a("s_add_u32 s60, s60, s3")
    a("s_lshl_b32 s61, s61, 19")
    a("s_add_u32 s61, s61, %d" % (3 * 8192 + 3 * 2048))
    for o in xoff_ops(): E(o)
    a("v_mov_b32 v27, v121"); a("v_mov_b32 v28, v122")
    g1_setup_r()
    av = Weave(P.get("w0_every", 5), tau_ops() + wdma_ops("W0") if W0POS == 0 else [])
    SP, SMT, SNT = 66, 67, 70
    av("s_bfe_u32 s%d, s2, 0x10001" % SP)
    av("s_and_b32 s%d, s2, 1" % SMT); av("s_bfe_u32 s3, s2, 0x20003"); av("s_lshl2_add_u32 s%d, s%d, s3" % (SMT, SMT))
    av("s_lshr_b32 s%d, s2, 5" % SNT)
    park = {}
    def parkv(key, v):
        park[key] = PARK + len(park)
        assert park[key] < 224
        av("v_accvgpr_write_b32 a%d, v%d" % (park[key], v))
    unp = lambda key, v: "v_accvgpr_read_b32 v%d, a%d" % (v, park[key])
    av("s_lshl_b32 s48, s%d, 2" % SP); av("s_xor_b32 s48, s48, 4"); av("s_lshl_b32 s49, s%d, 8" % SNT); av("s_lshl_b32 s50, s32, 15"); av("s_add_u32 s50, s50, s49")
    av("v_lshrrev_b32 v20, 4, v17"); av("v_bfe_u32 v21, v17, 1, 3"); av("v_xor_b32 v21, s48, v21"); av("v_xor_b32 v21, v21, v20")
    av("v_and_b32 v22, 16, v15"); av("v_lshl_add_u32 v23, v20, 11, v22")
    av("v_lshl_add_u32 v16, v21, 5, v23"); av("v_add_u32 v16, s50, v16")
    av("s_lshl_b32 s51, s32, 16"); av("s_add_u32 s51, s51, s49"); av("s_lshl_b32 s3, s%d, 7" % SP); av("s_add_u32 s51, s51, s3")
    av("v_bfe_u32 v21, v17, 1, 2"); av("v_xor_b32 v21, v21, v20"); av("v_lshrrev_b32 v23, 3, v17")
    av("v_lshl_add_u32 v22, v23, 11, v22"); av("v_lshl_add_u32 v22, v21, 5, v22"); av("v_add_u32 v22, s51, v22")
    av("v_mov_b32 v30, v22")
    av("v_lshrrev_b32 v20, 2, v17"); av("v_and_b32 v21, 3, v17"); av("v_lshlrev_b32 v21, 3, v21"); av("v_add_u32 v21, %d, v21" % R2)
    av("v_lshl_add_u32 v22, v20, 8, v21"); av("v_and_b32 v23, 7, v20"); av("v_lshl_add_u32 v22, v23, 5, v22")
    parkv("vw", 22)
    av("v_lshl_add_u32 v22, v20, 7, v21"); av("v_bfe_u32 v23, v17, 3, 2"); av("v_lshl_add_u32 v22, v23, 5, v22")
    parkv("vwo", 22)
    av("v_and_b32 v20, 15, v17"); av("v_lshlrev_b32 v22, 11, v20"); av("v_bfe_u32 v23, v17, 4, 1"); av("v_lshl_add_u32 v22, v23, 5, v22")
    av("v_lshrrev_b32 v21, 5, v17"); av("v_lshl_add_u32 v22, v21, 4, v22")
    parkv("vout", 22)
    av("v_lshlrev_b32 v22, 10, v23"); av("v_lshl_add_u32 v22, v21, 8, v22"); av("v_lshl_add_u32 v26, v20, 4, v22")
    av("v_bfe_u32 v22, v17, 2, 2"); av("v_lshlrev_b32 v22, 8, v22"); av("v_lshrrev_b32 v23, 4, v17"); av("v_lshl_add_u32 v22, v23, 6, v22")
    av("v_and_b32 v23, 3, v17"); av("v_lshl_add_u32 v22, v23, 1, v22"); av("v_add_u32 v22, 1024, v22")
    a("s_cmp_ge_u32 s32, 2"); a("s_cselect_b64 vcc, -1, 0"); a("s_cselect_b32 s71, 16, 2")
    av("v_cndmask_b32 v22, v15, v22, vcc")
    av("s_lshl_b32 s3, s35, 3"); av("s_add_u32 s3, s3, %d" % EX); av("v_add_u32 v22, s3, v22")
    parkv("vhx", 22)
    av.flush()
    a("v_lshlrev_b32 v24, 8, v17"); a("v_add_u32 v25, 16384, v24")
    a("s_lshr_b32 s7, s2, 3"); a("s_lshl1_add_u32 s7, s7, s32"); a("s_lshl_b32 s7, s7, 15")
    a("s_lshl_b32 s52, s%d, 7" % SP); a("s_add_u32 s7, s7, s52")
    a("s_mov_b64 s[4:5], s[%d:%d]" % (PWO, PWO + 1)); a("s_mov_b32 s6, %d" % (1024 * 2048 if not P.get("nowot") else 0))
    a("s_cmp_lt_u32 s32, 2"); a("s_cbranch_scc1 L_alt")
    a("v_lshlrev_b32 v24, 7, v17"); a("v_add_u32 v25, 8192, v24")
    a("s_lshl_b32 s7, s2, 14")
    a("s_mov_b64 s[4:5], s[%d:%d]" % (PX, PX + 1)); a("s_mov_b32 s6, %d" % (2048 * 2048 if not P.get("noxt") else 0))
    a.label("L_alt")
    a("s_cmp_eq_u32 s32, 3"); a("s_cselect_b32 s47, 99, %d" % (13 if not P.get("ab_noalt") else 64))
    a("v_xor_b32 v17, 0x80, v16"); a("v_add_u32 v17, %d, v17" % 7168)
    a("v_add_u32 v18, %d, v16" % 14336); a("v_add_u32 v19, %d, v17" % 14336)
    a("v_bfe_u32 v20, v15, 2, 7")
    vwait("xs")
    if WF: a("s_barrier")
    a("v_add_u32 v7, 0x%x, v7" % NONCE_ADD)
    FL = P.get("fline", 3)
    V("f", "buffer_store_dword v7, v%d, s[84:87], s92 offen %s" % (20 if FL & 1 else 6, SC))
    a("v_readfirstlane_b32 s96, v7")
    if TH == 2:
        a("s_mov_b32 exec_lo, 0")
        V("t", "buffer_load_dword v29, v253, s[88:91], s94 offen")
        a("s_mov_b32 exec_lo, -1")
        for o in ["s_add_u32 s94, s94, s95", "s_cmp_ge_u32 s94, s90", "s_cselect_b32 s3, s90, 0", "s_sub_u32 s94, s94, s3"]: a(o)
        if P.get("t2pos", 1) == 0:
            a("s_mov_b32 exec_hi, 0")
            V("t", "buffer_load_dword v29, v253, s[88:91], s94 offen")
            a("s_mov_b32 exec_hi, -1")
    stamp()
    p0 = ("p", "buffer_load_dword v255, v254, s[84:87], 0 offen %s" % P.get("pollfl", SC))
    q1 = (tau_ops() + wdma_ops("W0") if W0POS == 1 else []) + ["s_mov_b32 s36, 1", "s_mov_b32 s37, %d" % SLOT] + tau_ops() + (wdma_ops("W") if not P.get("peel0", 0) else [])
    W1POS = P.get("w1pos", 0)
    PB4 = P.get("poll_before", 5)
    if PB4:
        idx = [k for k, o in enumerate(q1) if isinstance(o, tuple)][-PB4]
        if q1[idx - 1].startswith("s_add_u32 m0") if isinstance(q1[idx - 1], str) else False: idx -= 1
        q1.insert(idx, p0)
    az = Weave(P.get("w1_every", 5), q1 if W1POS == 0 else [])
    for r in range(32, 254, 2): az("v_mov_b64 %s, 0" % vr(r, 2))
    az.flush()
    if not PB4 and not P.get("poll_late"): E(p0)
    a("s_lshl_b32 s72, s%d, 19" % SMT); a("s_add_u32 s72, s72, s51"); a("s_bfe_u32 s3, s2, 0x10002"); a("s_add_u32 s3, s3, s32")
    a("s_lshl_b32 s3, s3, 16"); a("s_add_u32 s72, s72, s3")
    a("s_lshl_b32 s56, s32, 12"); a("s_add_u32 s56, s56, %d" % R2)
    a("s_lshl_b32 s48, s33, 1"); a("s_lshr_b32 s3, s32, 1"); a("s_add_u32 s48, s48, s3"); a("s_mul_i32 s48, s48, %d" % ACT_MT)
    a("s_lshl_b32 s3, s35, 12"); a("s_add_u32 s48, s48, s3")
    a("s_mul_i32 s73, s34, 7"); a("s_lshr_b32 s73, s73, 1"); a("s_lshl_b32 s73, s73, 13"); a("s_add_u32 s73, s73, s48")
    a("s_lshl_b32 s3, s57, 9"); a("s_add_u32 s73, s73, s3")
    a("s_mul_i32 s74, s57, %d" % (8192 - 1024)); a("s_add_u32 s74, s74, 512"); a("s_add_u32 s74, s74, s73")
    a("s_add_u32 s75, s34, 112"); a("s_lshl_b32 s75, s75, 13"); a("s_add_u32 s75, s75, s48")
    a("s_lshl2_add_u32 s92, s33, s32"); a("s_lshl_b32 s92, s92, 7"); a("s_lshl2_add_u32 s92, s34, s92")
    FP = P.get("fpad", 1)
    a("s_add_u32 s35, s92, %d" % F1O)
    if FP: a("s_lshl_b32 s92, s92, 5")
    a("s_add_u32 s92, s92, %d" % (F1H if not FP else 131072))
    a("s_lshl2_add_u32 s58, s%d, s32" % SMT); a("s_lshl_b32 s58, s58, 7")
    a("s_add_u32 s59, s58, %d" % F1O)
    if FP: a("s_lshl_b32 s58, s58, 5")
    a("s_add_u32 s58, s58, %d" % (F1H if not FP else 131072))
    a("s_or_b32 s33, s33, s32")
    a("s_lshr_b32 s3, s32, 1"); a("s_lshl1_add_u32 s57, s%d, s3" % SMT); a("s_mul_i32 s57, s57, %d" % ACT_MT)
    a("s_and_b32 s3, s32, 1"); a("s_lshl_b32 s3, s3, 12"); a("s_add_u32 s57, s57, s3")
    a("s_mov_b32 s50, 0xbfb8aa3b"); a("s_mov_b32 s51, 0xbfb8aa3b"); a("s_mov_b32 s52, 1.0"); a("s_mov_b32 s53, 1.0")

    if P.get("poll_late"):
        for r in range(0, 100, 4): a("%s %s, v[48:51], v[48:51], 0" % (MF, ar(r, 4)))
        E(p0)
    stamp()
    if not P.get("ab_noln"): check_flags(255, 254, "0", "p", "L_f0")
    if P.get("halo_plain", 0) == 1: V("inv", "buffer_inv sc1")
    stamp()
    for o in xld_ops(0, "X0"): E(o)
    xlast = ["s_add_u32 s40, s80, 15", "s_and_b32 s40, s40, 15", "s_lshl_b32 s40, s40, 15", "s_add_u32 s40, s40, s60", "s_add_u32 s41, s40, 4096"] + xld_ops(2, "XL")[:8]
    if P.get("xl_pos", 1) == 0:
        for o in xlast: E(o)
    if W1POS == 1:
        for o in q1: E(o)
    a("v_mov_b64 v[254:255], 0")
    for r in (range(0, 100, 4) if not P.get("poll_late") else []): a("%s %s, v[48:51], v[48:51], 0" % (MF, ar(r, 4)))

    blocks = []
    for p in range(7): blocks += [("gu", p, 0), ("gu", p, 1)]
    blocks += [("q", s) for s in range(6)]
    def wreads(b, dst, ab=0):
        o = []
        for kh in range(2):
            for s2 in range(2):
                d = ar(dst(kh) + 2 * s2, 2)
                if b[0] == "gu":
                    o.append("ds_read_b64_tr_b16 %s, v%d offset:%d" % (d, ab + 1, b[2] * UP + (32 * kh + 16 * s2) * 224 + 32 * b[1]))
                elif b[0] == "q":
                    o.append("ds_read_b64_tr_b16 %s, v%d offset:%d" % (d, ab + 2 + b[1] % 2, (32 * kh + 16 * s2) * 192 + 64 * (b[1] // 2)))
                else:
                    o.append("ds_read_b64_tr_b16 %s, v%d offset:%d" % (d, ab + 4, (32 * kh + 16 * s2) * 192))
        return o
    def mfmas(b, ring, buf):
        o = []
        for m in range(4):
            for kh in range(2):
                w, x = ar(WR(ring, kh), 4), ar(XB(buf, m, kh), 4)
                c = vr(accGU(b[1], b[2], m), 4) if b[0] == "gu" else ar(accQ(b[1], m), 4)
                if b[0] == "q" and b[1] >= 4: w, x = x, w
                o.append("%s %s, %s, %s, %s" % (MF, c, w, x, c))
        return o
    def halo_mf(buf):
        return ["%s %s, %s, %s, %s" % (MF, ar(HACC, 4), ar(HW(kh), 4), ar(XB(buf, 4, kh), 4), ar(HACC, 4)) for kh in range(2)]

    vwait("X0")
    a("s_barrier")
    stamp()
    for bi in range(3):
        for o in wreads(blocks[bi], lambda kh: WR(bi % 4, kh)): a(o)
    if P.get("xl_pos", 1) == 1:
        for o in xlast: E(o)
    if P.get("xl_pos", 1) == 2:
        for o in ["s_add_u32 s48, s80, 15", "s_and_b32 s48, s48, 15", "s_lshl_b32 s48, s48, 15", "s_add_u32 s48, s48, s60"]: a(o)
    if P.get("t_early", 2) < 2 and P.get("t1pos", 0) == 1:
        V("t", "buffer_load_dword v29, v27, s[88:91], s94 offen %s" % P.get("t1fl", ""))
        V("t", "buffer_load_dword v29, v28, s[88:91], s94 offen %s" % P.get("t1fl", ""))
        for o in ["s_add_u32 s94, s94, s95", "s_cmp_ge_u32 s94, s90", "s_cselect_b32 s3, s90, 0", "s_sub_u32 s94, s94, s3"]: a(o)
    if TH == 2:
        if P.get("t2pos", 1) == 1: V("t", "buffer_load_dword v29, v27, s[88:91], s94 offen")
        if P.get("t3pos", 0) == 0: V("t", "buffer_load_dword v29, v28, s[88:91], s94 offen")
        else: a("s_mov_b32 s48, s94")
        for o in ["s_add_u32 s94, s94, s95", "s_cmp_ge_u32 s94, s90", "s_cselect_b32 s3, s90, 0", "s_sub_u32 s94, s94, s3"]: a(o)
    LT = P.get("late_w2", 0)
    a("s_cmp_eq_u32 s32, 3"); a("s_cselect_b32 s95, %d, s95" % ((-(256 if LT else 128) * 2048) & 0xffffffff))
    a("s_cselect_b32 s49, -1, s90")
    if LT:
        a("s_cselect_b32 s3, %d, 0" % (6 * 128 * 2048)); a("s_cselect_b64 vcc, -1, 0"); a("s_add_u32 s94, s94, s3")
        a("v_lshlrev_b32 v20, 3, v15"); a("v_add_u32 v21, %d, v20" % (128 * 2048))
        a("v_cndmask_b32 v27, v27, v21, vcc"); a("v_cndmask_b32 v28, v28, v20, vcc")

    HRB, HMB = 9, 13
    def step(buf, misc, loop=None, spc=None):
        lg = Cnt([0] * 4 + [1] * 4 + [2] * 4)
        SPC, V0 = spc or P.get("vspace", 5.4), P.get("vstart", 5)
        place = {}
        nv = 0
        tgt = []
        for o in misc:
            if isinstance(o, tuple):
                g = int(V0 + nv * SPC) | 1
                if g // 8 >= HRB: g += 8
                tgt.append(g)
                if P.get("vweight", 0): nv += (1.55 if "s[16:19]" in o[1] else (1.1 if o[1].endswith("lds") else 0.77))
                else: nv += (P.get("xl_w", 0.4) if "s49" in o[1] else 1)
            else: tgt.append(None)
        nxt = None
        for k in range(len(misc) - 1, -1, -1):
            if tgt[k] is not None: nxt = tgt[k]
            elif nxt is not None:
                nxt -= 1; tgt[k] = nxt
        last = max(t for t in tgt if t is not None)
        for k in range(len(misc)):
            if tgt[k] is None:
                last += 1; tgt[k] = last
        for k in range(1, len(misc)):
            if tgt[k] < tgt[k - 1]: tgt[k] = tgt[k - 1]
        assert min(tgt) >= 0 and max(tgt) < 17 * 8, (min(tgt), max(tgt))
        for k, o in enumerate(misc): place.setdefault((tgt[k] // 8, tgt[k] % 8), []).append(o)
        for bi in range(20):
            mf = mfmas(blocks[bi], bi % 4, buf)
            fill = {}
            w = lg.need(bi)
            if w is not None: a("s_waitcnt lgkmcnt(%d)" % w)
            rd = []
            if bi <= 16: rd = [(bi + 3, o) for o in wreads(blocks[bi + 3], lambda kh: WR((bi + 3) % 4, kh))]; gaps = [0, 2, 4, 6]
            elif bi == 18:
                rd = [(100, o) for o in wreads(blocks[0], lambda kh: WR(0, kh))] + [(101, o) for o in wreads(blocks[1], lambda kh: WR(1, kh))]
                gaps = list(range(8))
            elif bi == 19: rd = [(102, o) for o in wreads(blocks[2], lambda kh: WR(2, kh))]; gaps = [0, 2, 4, 6]
            if bi == HRB and not P.get("ab_nohalo"):
                hr = [("H", o) for o in wreads(("h",), HW)]
                rd = [x for pr in zip(rd, hr) for x in pr]; gaps = list(range(8))
            for (tag, o), g in zip(rd, gaps if rd else []):
                fill.setdefault(g, []).append(o); lg.issue(tag)
            for g in range(8):
                for o in place.get((bi, g), []): fill.setdefault(g, []).append(o)
            if bi == HMB and not P.get("ab_nohalo"):
                assert lg.need("H") is None
                mf += halo_mf(buf)
            if bi == 17:
                for k, r in enumerate((1, 2, 3, 4)):
                    fill.setdefault(k + 1, []).append("v_add_u32 v%d, s93, v%d" % (r, r))
                fill.setdefault(7, []).append(lambda: (vwait("X", lg0=True), a("s_barrier")))
                lg.clear()
                if P.get("itrace"):
                    fill[7] += ["s_memtime s[98:99]", "s_add_u32 m0, s36, 30", "s_waitcnt lgkmcnt(0)", "v_writelane_b32 v31, s98, m0"]
            if bi == 19 and loop:
                fill.setdefault(5, []).append("s_cmp_lt_u32 s36, 15")
                fill.setdefault(7, []).append("s_cbranch_scc1 %s" % loop)
            for i, m in enumerate(mf):
                a(m)
                for o in fill.get(i, []):
                    if isinstance(o, tuple) and ((P.get("ab_g1x") and o[0] == "X") or (P.get("ab_g1w") and o[0] == "W") or (P.get("ab_g1q") and "s[16:19]" in o[1])):
                        vm.issue(o[0]); continue
                    if P.get("ab_g1d") and isinstance(o, str) and o.startswith("ds_read") and bi % 2 == 1: continue
                    if P.get("ab_g1b") and callable(o): vm.need("X"); continue
                    E(o)
    slot_ops = ["s_add_u32 s37, s37, s62", "s_cmp_eq_u32 s37, %d" % (3 * SLOT), "s_cselect_b32 s37, 0, s37",
                "s_cmp_eq_u32 s37, s62", "s_cselect_b32 s93, s63, s62"]
    def std_misc(buf):
        t = [("t", "buffer_load_dword v29, v%d, s[88:91], s94 offen %s" % (27 + buf, P.get("tfl", "")))] + (["s_add_u32 s94, s94, s95", "s_cmp_ge_u32 s94, s49", "s_cselect_b32 s3, s90, 0", "s_sub_u32 s94, s94, s3"] if buf else [])
        if buf: t += ["s_cmp_eq_u32 s36, s47", "s_cselect_b64 s[88:89], s[4:5], s[88:89]", "s_cselect_b32 s90, s6, s90", "s_cselect_b32 s94, s7, s94",
                      "s_cselect_b64 vcc, -1, 0", "v_cndmask_b32 v27, v27, v24, vcc", "v_cndmask_b32 v28, v28, v25, vcc"]
        xl = xld_ops(buf ^ 1, "X")
        if P.get("ab_nohalo"): xl = xl[:8]
        if P.get("xl_pos", 1) == 2:
            ex = [("X", o[1].replace("s40", "s49").replace("s41", "s49")) for o in xld_ops(2, "X")[4 * buf:4 * buf + 4]]
            pre = ["s_cmp_eq_u32 s36, 14", "s_cselect_b32 s49, s48, %d" % OOB] if buf == 0 else ["s_add_u32 s49, s49, 4096"]
            xl = xl + pre + ex
        return xoff_ops() + xl[:2] + ["s_add_u32 s36, s36, 1"] + tau_ops() + xl[2:4] + slot_ops[:3] + xl[4:6] + slot_ops[3:] + xl[6:] + wdma_ops("W") + t
    if P.get("peel0", 0):
        m0 = std_misc(0); m1 = std_misc(1)
        iw = lambda m: [k for k, o in enumerate(m) if isinstance(o, tuple) and o[0] == "W"]
        NH = P.get("peel_h", 6)
        k0 = iw(m0)[NH] - 1 if NH < 10 else iw(m0)[-1] + 1
        k1 = iw(m0)[-1] + 1
        rest = [(("X", o[1]) if isinstance(o, tuple) else o) for o in m0[k0:k1]]
        w1 = [(("X", o[1]) if isinstance(o, tuple) else o) for o in wdma_ops("W")]
        xl1 = xlast if P.get("xl_pos", 1) == 3 else []
        xl1 = [((o[0], o[1].replace("s40", "s48").replace("s41", "s49")) if isinstance(o, tuple) else o.replace("s40", "s48").replace("s41", "s49")) for o in xl1]
        nv = lambda m: sum(isinstance(o, tuple) for o in m)
        a0 = w1 + m0[:k0] + ([("t", "buffer_load_dword v29, v28, s[88:91], s48 offen")] if P.get("t3pos", 0) else []) + m0[k1:]
        a1 = rest + m1[:iw(m1)[-1] + 1] + xl1 + m1[iw(m1)[-1] + 1:]
        step(0, a0, spc=min(5.4, 112.0 / nv(a0)))
        step(1, a1, spc=min(5.4, 108.0 / nv(a1)))
    a(".p2align 6")
    a.label("L_g1")
    vm.q = ["W"] * 10 + ["t"]
    step(0, std_misc(0))
    step(1, std_misc(1), loop="L_g1")
    assert vm.q == ["W"] * 10 + ["t"], vm.q
    stamp()

    ND, NO = 14, 8
    NS = ND + NO
    VDW, VDO = 16, 30
    NRES = 5
    ROTD = P.get("rotd", 5)
    RREG = [4, 5, 6, 7, 36, 37, 55]
    ROTO = P.get("roto", 1)
    OLOC = {14: R2 + 32768, 15: R2 + 49152, 16: R2, 21: 0, 18: 16384, 17: 106496, 19: 122880, 20: 139264}
    FR = NS - NRES
    def wops(sg, force=False):
        if sg >= FR and not force: return []
        u = sg % 4
        o = []
        if sg < ND:
            if ROTD: o.append("s_lshl3_add_u32 s38, s%d, s%d" % (RREG[sg % 7], 44 + sg // 7))
            else: o.append("s_add_u32 s38, s%d, %d" % (44 + sg // 7, (sg % 7) * 131072))
            o.append("s_add_u32 m0, s56, %d" % (u * 16384))
            for q in range(4):
                o.append(("W%d" % sg, "buffer_load_dwordx4 v%d, s[8:11], s38 offen offset:%d lds" % (VDW + q, 1024 * q)))
        else:
            o.append("s_add_u32 m0, s56, %d" % ((OLOC[sg] - R2) & 0xffffffff))
            for q in range(4):
                if ROTO: o.append(lambda sg=sg, q=q: [a("s_bfe_u32 s38, s80, 0x%x" % (0x40000 + 4 * (sg - ND))), a("s_lshl_b32 s38, s38, 18"), a("s_add_u32 s38, s38, %d" % (15360 * q))])
                else: o.append("s_mov_b32 s38, %d" % ((sg - ND) * 262144 + 15360 * q))
                o.append(("W%d" % sg, "buffer_load_dwordx4 v%d, s[12:15], s38 offen offset:%d lds" % (VDO, 1024 * q)))
        return o
    QI = {(0, 0): 0, (1, 0): 1, (1, 1): 2, (0, 1): 3}
    accD = lambda m, b: 64 + QI[(m >> 1, b >> 2)] * 32 + ((m & 1) * 4 + (b & 3)) * 4
    accO = lambda m, b: 192 + (m * 4 + b) * 4
    VW, VWO, VX = 32, 20, 52
    NXB = 6
    NX0 = P.get("nx0", 2)
    XB2 = lambda sg, f: (lambda u: (u * 32 if u < 4 else 192 + (u - 4) * 32) + f * 4)(sg % NXB)
    WR2 = lambda b, kh: 128 + b * 8 + kh * 4
    def xops(sg):
        if sg >= NS: return []
        o = []
        if sg < ND:
            o.append("s_add_u32 s39, s%d, %s" % (60 if sg < NX0 else 46 + sg // 7, ("s%d" % RREG[sg % 7]) if ROTD else str((sg % 7) * 16384)))
            for kh in range(2):
                for m in range(4):
                    o.append(("X%d" % sg, "buffer_load_dwordx4 %s, v%d, s[28:31], s39 offen offset:%d %s" % (ar(XB2(sg, kh * 4 + m), 4), VX + kh + 4 * (m >> 1), 1024 * (m & 1), XSC)))
        else:
            if ROTO: o.append(lambda sg=sg: [a("s_bfe_u32 s39, s80, 0x%x" % (0x40000 + 4 * (sg - ND))), a("s_lshl_b32 s39, s39, 15"), a("s_add_u32 s39, s39, s81")])
            else: o.append("s_add_u32 s39, s57, %d" % (112 * 8192 + (sg - ND) * 32768))
            for kq in range(4):
                for m in range(2):
                    o.append(("X%d" % sg, "buffer_load_dwordx4 %s, v%d, s[28:31], s39 offen offset:%d %s" % (ar(XB2(sg, kq * 2 + m), 4), VX + kq, 1024 * m, XSC)))
        return o
    def wreads2(sg, b, rb=None):
        if rb is None: rb = b
        o = []
        u = sg % 4
        for kh in range(2):
            for s2 in range(2):
                if sg < ND: v, off = VW + b, u * 16384 + (32 * kh + 16 * s2) * 256
                else:
                    L = OLOC[sg]
                    vb, base = (40, 0) if L < R2 else ((VWO, R2) if L < 106496 else (44, 106496))
                    v, off = vb + b % 4, L - base + (64 * (b // 4) + 32 * kh + 16 * s2) * 128
                o.append("ds_read_b64_tr_b16 %s, v%d offset:%d" % (ar(WR2(rb, kh) + 2 * s2, 2), v, off))
        return o
    def mfmas2(sg, b, rb):
        o = []
        for m in ((2, 3, 0, 1) if sg < ND else (0, 1)):
            for kh in range(2):
                if sg < ND: c, x = accD(m, b), XB2(sg, kh * 4 + m)
                else: c, x = accO(m, b % 4), XB2(sg, (2 * (b // 4) + kh) * 2 + m)
                z = (sg == 0 and kh == 0) or (sg == ND and b < 4 and kh == 0)
                o.append("%s %s, %s, %s, %s" % (MF, vr(c, 4), ar(WR2(rb, kh), 4), ar(x, 4), "0" if z else vr(c, 4)))
        return o
    order = [(0, 0), (1, 0), (2, 0), (3, 0), (0, 1), (1, 1), (2, 1), (3, 1)]
    for b in range(4, 20): order += [(b, 0), (b, 1)]
    NPOS = len(order)
    done_pos = {b: max(i for i, (bb, s) in enumerate(order) if bb == b) for b in range(20)}
    AB2 = 7
    R0, R1, R2_ = accGU(0, 1, 0), accGU(2, 1, 0), accGU(4, 1, 0)
    Qf = lambda m: R0 + 12 + 4 * m
    Kf = lambda m: R0 + 28 + 4 * (m + 1)
    VV = lambda f, m: R1 + 10 * f + 2 * (m + 1)
    Pf = lambda m: R1 + 20 + 4 * m
    Sp = lambda m: R2_ + 8 * m
    Sc = lambda m: R2_ + 8 * m + 4
    TT = lambda m: R2_ + 32 + 4 * m
    def cvt_acc(dst, src, t):
        return ["v_accvgpr_read_b32 v%d, a%d" % (t + r, src + r) for r in range(4)] + \
               ["v_cvt_pk_bf16_f32 v%d, v%d, v%d" % (dst, t, t + 1), "v_cvt_pk_bf16_f32 v%d, v%d, v%d" % (dst + 1, t + 2, t + 3)]
    masks = ["v_lshrrev_b32 v13, 4, v15", "v_and_b32 v14, 15, v13", "v_and_b32 v27, 1, v13", "v_lshrrev_b32 v20, 4, v13", "v_lshl_add_u32 v20, v20, 2, v27",
             "v_cmp_le_u32 s[40:41], v20, v14", "v_add_u32 v20, 2, v20", "v_cmp_le_u32 s[42:43], v20, v14", "v_cmp_ne_u32 s[62:63], 0, v27",
             "v_lshlrev_b32 v27, 4, v27", "s_cmp_eq_u32 s33, 0", "s_cselect_b64 s[88:89], -1, 0", "s_andn2_b64 s[90:91], s[88:89], s[42:43]",
             "s_andn2_b64 s[88:89], s[88:89], s[40:41]", "s_mov_b32 s48, 0x3e3504f3", "s_mov_b32 s49, 0x3fb8aa3b",
             "s_lshl_b32 s3, s32, 11", "s_add_u32 s3, s3, %d" % EX, "v_add_u32 v25, s3, v15", unp("vhx", 24),
             "v_lshlrev_b32 v14, %d, v14" % (7 if FP else 2), "v_and_b32 v13, 31, v13", "v_lshlrev_b32 v13, 2, v13",
             "s_and_b32 s3, s2, 7", "s_xor_b32 s61, s3, %d" % P.get("g0", 1), "s_xor_b32 s3, s61, 1",
             "s_mul_i32 s44, s61, %d" % (7 * 131072), "s_mul_i32 s45, s3, %d" % (7 * 131072),
             "s_mul_i32 s46, s61, %d" % (7 * 16384), "s_add_u32 s46, s46, s57", "s_mul_i32 s47, s3, %d" % (7 * 16384), "s_add_u32 s47, s47, s57",
             "s_mov_b32 s60, s46", "s_lshl_b32 s61, s61, 9", "s_add_u32 s34, s61, s58", "s_lshl_b32 s3, s3, 9", "s_add_u32 s58, s58, s3", "v_and_b32 v5, 384, v14"]
    if ROTD >= 5:
        def perm(r):
            p = list(range(7))
            if ROTD == 5:
                for c in range(r, 6, 4): p[c], p[c + 1] = p[c + 1], p[c]
            else:
                for c in range(r, 5, 4): p[c], p[c + 1], p[c + 2] = p[c + 2], p[c], p[c + 1]
                if r == 3: p[0], p[1] = p[1], p[0]
            return sum(v << (4 * k) for k, v in enumerate(p))
        masks += ["s_add_u32 s3, s%d, s%d" % (SMT, SNT), "s_mov_b32 s4, 0x%x" % perm(0), "s_mov_b32 s5, 0x%x" % perm(2), "s_bitcmp1_b32 s3, 0",
                  "s_cselect_b32 s4, 0x%x, s4" % perm(1), "s_cselect_b32 s5, 0x%x, s5" % perm(3), "s_bitcmp1_b32 s3, 1", "s_cselect_b32 s3, s5, s4"]
        for k in range(7):
            masks += ["s_bfe_u32 s%d, s3, 0x%x" % (RREG[k], 0x40000 + 4 * k), "s_lshl_b32 s%d, s%d, 14" % (RREG[k], RREG[k])]
        if ROTO:
            def perm8(r):
                p = list(range(8))
                for c in range(r, 7, 4): p[c], p[c + 1] = p[c + 1], p[c]
                return sum(v << (4 * k) for k, v in enumerate(p))
            masks += ["s_add_u32 s3, s%d, s%d" % (SMT, SNT), "s_mov_b32 s80, 0x%x" % perm8(0), "s_mov_b32 s81, 0x%x" % perm8(2), "s_bitcmp1_b32 s3, 0",
                      "s_cselect_b32 s80, 0x%x, s80" % perm8(1), "s_cselect_b32 s81, 0x%x, s81" % perm8(3), "s_bitcmp1_b32 s3, 1", "s_cselect_b32 s80, s81, s80",
                      "s_add_u32 s81, s57, %d" % (112 * 8192)]
    elif ROTD >= 3:
        masks += ["s_add_u32 s3, s%d, s%d" % (SMT, SNT)]
        W1_ = {3: 4, 4: 2}[ROTD]
        for k in range(4):
            masks += ["s_add_u32 s%d, s3, %d" % (RREG[k], k), "s_and_b32 s%d, s%d, %d" % (RREG[k], RREG[k], W1_ - 1)]
            if k >= W1_: masks += ["s_add_u32 s%d, s%d, %d" % (RREG[k], RREG[k], W1_)]
            masks += ["s_lshl_b32 s%d, s%d, 14" % (RREG[k], RREG[k])]
        masks += ["s_mul_i32 s36, s3, 86", "s_lshr_b32 s36, s36, 8", "s_mul_i32 s36, s36, 3", "s_sub_u32 s3, s3, s36", "s_add_u32 s3, s3, 4", "s_lshl_b32 s36, s3, 14"]
        for k in (5, 6):
            masks += ["s_add_u32 s%d, s%d, 16384" % (RREG[k], RREG[k - 1]), "s_cmp_eq_u32 s%d, %d" % (RREG[k], 7 * 16384), "s_cselect_b32 s3, %d, 0" % (3 * 16384), "s_sub_u32 s%d, s%d, s3" % (RREG[k], RREG[k])]
    elif ROTD:
        if ROTD == 1: masks += ["s_and_b32 s3, s%d, 3" % SMT, "s_lshl1_add_u32 s3, s3, s%d" % SNT]
        else: masks += ["s_mov_b32 s3, s%d" % SNT]
        masks += ["s_cmp_ge_u32 s3, 7", "s_cselect_b32 s4, 7, 0", "s_sub_u32 s3, s3, s4", "s_lshl_b32 s4, s3, 14"]
        for k in range(1, 7):
            masks += ["s_add_u32 s%d, s%d, 16384" % (RREG[k], RREG[k - 1]), "s_cmp_eq_u32 s%d, %d" % (RREG[k], 7 * 16384), "s_cselect_b32 s%d, 0, s%d" % (RREG[k], RREG[k])]
    early = ["v_add_u32 v%d, s63, v%d" % (AB2 + r, r) for r in (1, 2, 3, 4)] + xoff_ops()[:2] + xld_ops(2, "X")[8:] + masks
    ctouch = []
    if P.get("ctouch2", 1):
        def getpc():
            a("s_getpc_b64 s[16:17]"); a.label("L_pc2")
        ctouch = [getpc, "s_mov_b32 s18, L_end-L_pc2", "s_bfe_u32 s3, s2, 0x30003", "s_lshl2_add_u32 s3, s3, s32", "s_lshl_b32 s3, s3, 11", "v_and_b32 v20, 0xf0, v15",
                  "v_lshl_add_u32 v20, v20, 3, s3", ("t", "buffer_load_dword v29, v20, s[16:19], 0 offen")]
        early = early[:4] + ctouch + early[4:]
    memq = ["s_mov_b64 s[8:9], s[%d:%d]" % (PD, PD + 1), "s_mov_b32 s10, %d" % (3584 * 2048)] + wops(0) + wops(1) + \
        ["s_mov_b64 s[12:13], s[%d:%d]" % (PWO, PWO + 1), "s_mov_b32 s14, %d" % (1024 * 2048)] + wops(19, True) + wops(20, True)
    stream = []
    def pkA(p): return [x for m in range(4) for h in (0, 2) for x in (
        "v_pk_mul_f32 %s, %s, %s" % (vr(accGU(p, 1, m) + h, 2), vr(accGU(p, 0, m) + h, 2), vr(accGU(p, 1, m) + h, 2)),)] + \
        ["v_pk_mul_f32 %s, %s, s[50:51]" % (vr(accGU(p, 0, m) + h, 2), vr(accGU(p, 0, m) + h, 2)) for m in range(4) for h in (0, 2)]
    def pkB(p): return ["v_pk_add_f32 %s, %s, s[52:53]" % (vr(accGU(p, 0, m) + h, 2), vr(accGU(p, 0, m) + h, 2)) for m in range(4) for h in (0, 2)]
    def pkC(p): return ["v_pk_mul_f32 %s, %s, %s" % (vr(accGU(p, 1, m) + h, 2), vr(accGU(p, 1, m) + h, 2), vr(accGU(p, 0, m) + h, 2)) for m in range(4) for h in (0, 2)]
    def fin(p):
        o = []
        sreg = 73 + (p & 1)
        for m in range(4):
            U = accGU(p, 1, m)
            D = accGU(p, 0, m & ~1) + 2 * (m & 1)
            o += ["v_cvt_pk_bf16_f32 v%d, v%d, v%d" % (D, U, U + 1), "v_cvt_pk_bf16_f32 v%d, v%d, v%d" % (D + 1, U + 2, U + 3)]
        for m in (0, 2):
            g0 = accGU(p, 0, m)
            o += ["v_permlane16_swap_b32 v%d, v%d" % (g0, g0 + 2), "v_permlane16_swap_b32 v%d, v%d" % (g0 + 1, g0 + 3)]
            o.append(("hs", "buffer_store_dwordx4 %s, v26, s[28:31], s%d offen offset:%d %s" % (vr(g0, 4), sreg, 1024 * m, SC)))
        o.append("s_add_u32 s%d, s%d, 8192" % (sreg, sreg))
        return o
    rdy = lambda b: (done_pos[b] + 1) * 8 + 7
    for p in range(8):
        burst = (pkC(p - 1) if p > 0 else []) + (pkA(p) if p < 7 else [])
        stream.append((rdy(2 * p + 1) if p < 7 else 0, burst, True))
        tr1 = ["v_exp_f32 v%d, v%d" % (accGU(p, 0, 0) + r, accGU(p, 0, 0) + r) for r in range(16)] if p < 7 else []
        f = fin(p - 1) if p > 0 else []
        if p > 0 and (p - 1) % 2 == 0 and p - 1 < 6: pass
        mix = []
        while tr1 or f:
            if f: mix.append(f.pop(0))
            if tr1: mix.append(tr1.pop(0))
        for o in mix: stream.append((0, [o], False))
        if p < 7:
            stream.append((0, pkB(p), True))
            for r in range(16): stream.append((0, ["v_rcp_f32 v%d, v%d" % (accGU(p, 0, 0) + r, accGU(p, 0, 0) + r)], False))
    stream.append((0, ["HDONE"], False))
    for s_, F in ((0, Qf), (1, Qf), (2, Kf), (3, Kf)):
        for m in (3, 2, 1, 0):
            for k, o in enumerate(cvt_acc(F(m) + 2 * (s_ & 1), accQ(s_, m), TT(m))):
                stream.append((rdy(14 + s_), [o], False))
    for m in (3, 2, 1, 0):
        for o in cvt_acc(VV(0, m), accQ(4, m), TT(m)): stream.append((rdy(18), [o], False))
    def hflag():
        vwait("hs")
        V("f", "buffer_store_dword v7, v%d, s[84:87], s92 offen %s" % (13 if FL & 2 else 6, SC))
    GL = P.get("gaplen", 20)
    MSP = P.get("mem_space", 5)
    HDLY = P.get("hflag_delay", 99)
    BP = P.get("bar_pos", 28)
    lg = Cnt([0] * 4 + [1] * 4 + [2] * 4)
    HR = {3: 0, 15: 1}; HM = {7: 0, 19: 2}
    isv = lambda o: isinstance(o, str) and (o.startswith("v_") or o.startswith("s_nop"))
    front = []
    lastmem = -99; hdone = None; hsent = False; est = 0
    w = lg.need(0); a("s_waitcnt lgkmcnt(%d)" % w)
    for pos, (bi, st_) in enumerate(order):
        mf = mfmas(blocks[bi], pos % 4, 2 * st_)
        if P.get("tstamp") and pos in (4, 8, 16, 24, 32): stamp()
        if pos % 4 == 0: sys.stderr.write("pos %d: stream left %d est %d\n" % (pos, len(stream), est))
        rd = []
        if pos + 3 < NPOS:
            b3, s3 = order[pos + 3]
            rd = [(pos + 3, o) for o in wreads(blocks[b3], lambda kh: WR((pos + 3) % 4, kh), AB2 * s3)]
        gaps = [0, 2, 4, 6]
        if pos in HR:
            hr = [("H", o) for o in wreads(("h",), HW, AB2 * HR[pos])]
            rd = [x for pr in zip(rd, hr) for x in pr]; gaps = list(range(8))
        rdat = dict(zip(gaps, rd))
        if pos in HM:
            assert lg.need("H") is None
            if HM[pos]: vwait("X")
            mf += halo_mf(HM[pos])
        for i, m in enumerate(mf):
            g = pos * 8 + i
            a(m)
            t = 4
            if i in rdat:
                a(rdat[i][1]); lg.issue(rdat[i][0]); t += 8
            if i == len(mf) - 1 and pos + 1 < NPOS:
                w = lg.need(pos + 1)
                if pos == 0:
                    vwait("W"); a("s_barrier")
                if pos == BP:
                    assert not memq and BP > done_pos[13]
                    a("s_barrier"); memq += wops(2) + wops(3) + wops(21, True)
                if w is not None: a("s_waitcnt lgkmcnt(%d)" % w); t += 4
            if early:
                while early and t < 16:
                    o = early.pop(0); E(o); t = (max(t, 8) if isv(o) else t) + cost(o)
            else:
                q = front if front else memq
                if q and not isinstance(q[0], tuple) and t <= 12 - 4 * bool(stream and stream[0][0] <= g):
                    E(q.pop(0)); t += 4
                elif q and isinstance(q[0], tuple) and t == 4 and g - lastmem >= (MSP if q is memq else P.get("st_space", 4)):
                    E(q.pop(0)); t += 8; lastmem = g
                if hdone is not None and not hsent and not front and g >= hdone + HDLY and t == 4:
                    hflag(); hsent = True; t += 12
                if g == P.get("tpoll_gap", 305):
                    V("p", "buffer_load_dword v12, v5, s[84:87], s34 offen %s" % SC); t += 8
                t = max(t, 8)
                def to_burst():
                    c = 0
                    for r_, ops, burst in stream[:4]:
                        if burst: return c if r_ <= g else None
                        if isv(ops[0]): c += cost(ops[0])
                    return None
                while stream and stream[0][0] <= g:
                    tb = to_burst() if P.get("bfix", 1) else None
                    if tb is not None and t + tb <= 28: pass
                    elif tb is not None and tb <= 16 and t >= 16: break
                    elif t >= GL - 3: break
                    r_, ops, burst = stream.pop(0)
                    if ops == ["HDONE"]: hdone = g; continue
                    if not isv(ops[0]): front.append(ops[0]); continue
                    for o in ops: E(o); t += cost(o)
                    if burst: t = max(t, 29 + 4 * len(ops))
            est += max(16, t)
    sys.stderr.write("tail: %d stream ops left after last MFMA, est %d, hdone %s hsent %s memq %d\n" % (len(stream), est, hdone, hsent, len(memq)))
    stamp()
    for o in front: E(o)
    a("s_nop 1")
    for r_, ops, burst in stream:
        for o in ops:
            if o != "HDONE": E(o)
    HPOS = P.get("hflag_pos", 0)
    if not hsent and HPOS == 0: hflag(); hsent = True
    M4 = range(4)
    a("s_nop 1")
    for m in (1, 2, 3):
        a("%s %s, %s, %s, 0" % (MF, vr(Sc(m), 4), vr(Kf(m), 4), vr(Qf(m), 4)))
        a("%s %s, %s, %s, 0" % (MF, vr(Sp(m), 4), vr(Kf(m - 1), 4), vr(Qf(m), 4)))
    a("%s %s, %s, %s, 0" % (MF, vr(Sc(0), 4), vr(Kf(0), 4), vr(Qf(0), 4)))
    for o in cvt_acc(2, HACC, 20): a(o)
    a("v_add_u32 v4, s71, v24"); a("v_add_u32 v10, s71, v4"); a("v_add_u32 v8, s71, v10")
    for o in cvt_acc(VV(1, 3), accQ(5, 3), TT(0)): a(o)
    a("ds_write_b16 v24, v2"); a("ds_write_b16_d16_hi v4, v2"); a("ds_write_b16 v10, v3"); a("ds_write_b16_d16_hi v8, v3")
    a("s_cmp_eq_u32 s32, 3")
    a("s_cbranch_scc1 L_noexp")
    a("ds_write_b128 v25, %s offset:2048" % vr(Kf(3), 4))
    a("ds_write_b64 v25, %s offset:3072" % vr(VV(0, 3), 2))
    a("ds_write_b64 v25, %s offset:3080" % vr(VV(1, 3), 2))
    a.label("L_noexp")
    if not hsent: hflag()
    PPOS = P.get("poll_pos", 9)
    poll1 = lambda: V("p", "buffer_load_dword v12, v5, s[84:87], s34 offen %s" % SC)
    if PPOS == 0: poll1()
    for m in (2, 1):
        for o in cvt_acc(VV(1, m), accQ(5, m), TT(m)): a(o)
    vwait("W0", lg0=True)
    a("s_barrier")
    a("ds_read_b128 %s, v25" % vr(Kf(-1), 4))
    a("ds_read_b64 %s, v25 offset:1024" % vr(VV(0, -1), 2))
    a("ds_read_b64 %s, v25 offset:1032" % vr(VV(1, -1), 2))
    for o in cvt_acc(VV(1, 0), accQ(5, 0), TT(0)): a(o)
    a("s_and_b32 s3, s2, 4"); a("s_lshl_b32 s3, s3, 9")
    a("v_add_u32 v%d, s3, v15" % VX)
    for q in range(1, 4): a("v_add_u32 v%d, %d, v%d" % (VX + q, 8192 * q, VX))
    for q in range(2): a("v_xor_b32 v%d, 0x800, v%d" % (VX + 4 + q, VX + q))
    a("v_mov_b32 v11, 0xce6e6b28")
    a("s_waitcnt lgkmcnt(0)")
    a("%s %s, %s, %s, 0" % (MF, vr(Sp(0), 4), vr(Kf(-1), 4), vr(Qf(0), 4)))
    stamp()
    if PPOS == 1: poll1()
    LATE = [17, 18]
    dq = list(memq)
    aw = Weave(P.get("dma_every", 10), dq)
    CKP = P.get("check_pos", 0)
    BLK = P.get("blocking", 0)
    def hcheck():
        if BLK:
            aw.flush()
            check_flags(12, 5, "s34", "p", "L_f1")
            stamp()
            dq.extend([o for sg in range(NX0) for o in xops(sg)])
            aw.n = P.get("x_every", 4)
            for _ in range(P.get("x_burst", 4)): aw.one()
            return
        vwait("p")
        a("v_cmp_ne_u32 vcc, s96, v12")
        a("s_nop 0")
        a("s_cmp_eq_u64 vcc, 0")
        a("s_cselect_b32 s60, s46, %s" % ("s46" if P.get("ab_nocheck") else str(OOB)))
        if P.get("force_late"): a("s_mov_b32 s60, %d" % OOB)
        stamp()
        dq.extend([o for sg in range(NX0) for o in xops(sg)])
        for _ in range(P.get("x_burst", 3)): aw.one()
    if CKP == 0: hcheck()
    if P.get("ab_nosm"):
        aw_real = aw
        class Skip:
            def __call__(self, t):
                if t in keep: a(t)
            def one(self): aw_real.one()
            def flush(self): aw_real.flush()
        keep = set()
        aw = Skip()
    A_ = lambda m: TT(m)
    B_ = lambda m: TT(m) + 1
    X_ = lambda m: TT(m) + 2
    Y_ = lambda m: TT(m) + 3
    MR = (3, 2, 1, 0)
    for m in MR:
        for S_ in (Sc, Sp):
            aw("v_cndmask_b32 v%d, v%d, v%d, s[62:63]" % (S_(m), S_(m), S_(m) + 1))
            aw("v_cndmask_b32 v%d, v%d, v%d, s[62:63]" % (S_(m) + 2, S_(m) + 2, S_(m) + 3))
    for m in MR:
        aw("v_cndmask_b32 v%d, v%d, v%d, s[40:41]" % (A_(m), Sp(m), Sc(m)))
        aw("v_cndmask_b32 v%d, v%d, v%d, s[42:43]" % (B_(m), Sp(m) + 2, Sc(m) + 2))
    if CKP == 1: hcheck()
    def rnd():
        for m in MR: aw("v_cvt_pk_bf16_f32 v%d, v%d, v%d" % (X_(m), A_(m), B_(m)))
        for m in MR:
            aw("v_lshlrev_b32 v%d, 16, v%d" % (A_(m), X_(m)))
            aw("v_and_b32 v%d, s54, v%d" % (B_(m), X_(m)))
    rnd()
    for m in MR: aw("v_pk_mul_f32 %s, %s, s[48:49] op_sel_hi:[1,0]" % (vr(A_(m), 2), vr(A_(m), 2)))
    rnd()
    aw("v_cndmask_b32 v%d, v%d, v11, s[88:89]" % (A_(0), A_(0)))
    aw("v_cndmask_b32 v%d, v%d, v11, s[90:91]" % (B_(0), B_(0)))
    if CKP == 2: hcheck()
    if PPOS == 2: poll1()
    fillq = [unp("vw", VW)] + ["v_xor_b32 v%d, %d, v%d" % (VW + b, 32 * b, VW) for b in range(1, 8)] + \
            [unp("vwo", VWO)] + ["v_xor_b32 v%d, %d, v%d" % (VWO + b, 32 * b, VWO) for b in range(1, 4)] + \
            ["v_subrev_u32 v%d, %d, v%d" % (40 + b, R2, VWO + b) for b in range(4)] + \
            ["v_add_u32 v%d, %d, v%d" % (44 + b, 106496 - R2, VWO + b) for b in range(4)] + \
            [unp("vout", 2)]
    if P.get("ab_nosm"): keep.update(fillq)
    def pad(n):
        for _ in range(n):
            aw(fillq.pop(0) if fillq else "s_nop 0")
    def reduce(op):
        for m in MR: aw("%s v%d, v%d, v%d" % (op, X_(m), A_(m), B_(m)))
        for sw in ("v_permlane16_swap_b32", "v_permlane32_swap_b32"):
            for m in MR: aw("v_mov_b32 v%d, v%d" % (Y_(m), X_(m)))
            pad(2)
            for m in MR: aw("%s v%d, v%d" % (sw, X_(m), Y_(m)))
            pad(1)
            for m in MR: aw("%s v%d, v%d, v%d" % (op, X_(m), X_(m), Y_(m)))
    reduce("v_max_f32")
    if CKP == 3: hcheck()
    if PPOS == 3: poll1()
    for m in MR: aw("v_pk_add_f32 %s, %s, %s op_sel_hi:[1,0] neg_lo:[0,1] neg_hi:[0,1]" % (vr(A_(m), 2), vr(A_(m), 2), vr(X_(m), 2)))
    for m in MR: aw("v_pk_mul_f32 %s, %s, s[48:49] op_sel:[0,1]" % (vr(A_(m), 2), vr(A_(m), 2)))
    for m in MR:
        aw("v_exp_f32 v%d, v%d" % (A_(m), A_(m)))
        aw("v_exp_f32 v%d, v%d" % (B_(m), B_(m)))
    pad(1)
    reduce("v_add_f32")
    if CKP == 4: hcheck()
    if PPOS == 4: poll1()
    for m in MR: aw("v_rcp_f32 v%d, v%d" % (X_(m), X_(m)))
    pad(1)
    for m in MR: aw("v_pk_mul_f32 %s, %s, %s op_sel_hi:[1,0]" % (vr(A_(m), 2), vr(A_(m), 2), vr(X_(m), 2)))
    for m in MR: aw("v_cvt_pk_bf16_f32 v%d, v%d, v%d" % (X_(m), A_(m), B_(m)))
    for m in MR:
        aw("v_and_b32 v%d, 0xffff, v%d" % (A_(m), X_(m)))
        aw("v_lshrrev_b32 v%d, 16, v%d" % (B_(m), X_(m)))
    for m in MR:
        aw("v_lshlrev_b32 v%d, v27, v%d" % (A_(m), A_(m)))
        aw("v_lshlrev_b32 v%d, v27, v%d" % (B_(m), B_(m)))
    for m in MR:
        aw("v_cndmask_b32 v%d, v%d, 0, s[40:41]" % (Pf(m), A_(m)))
        aw("v_cndmask_b32 v%d, v%d, 0, s[42:43]" % (Pf(m) + 1, B_(m)))
        aw("v_cndmask_b32 v%d, 0, v%d, s[40:41]" % (Pf(m) + 2, A_(m)))
        aw("v_cndmask_b32 v%d, 0, v%d, s[42:43]" % (Pf(m) + 3, B_(m)))
    pad(max(2, len(fillq)))
    if CKP == 5: hcheck()
    sys.stderr.write("DMA queue left after softmax: %d\n" % len(dq))
    for m in MR:
        a("%s %s, %s, %s, 0" % (MF, vr(Sp(m), 4), vr(VV(0, m - 1), 4), vr(Pf(m), 4)))
        a("%s %s, %s, %s, 0" % (MF, vr(Sc(m), 4), vr(VV(1, m - 1), 4), vr(Pf(m), 4)))
    stamp()

    lg = Cnt()
    for b in range(4):
        for o in wreads2(0, b): a(o); lg.issue((0, b))
    for m in M4:
        for h in range(4):
            a("v_cvt_pk_bf16_f32 v%d, v%d, v%d" % (240 + 4 * m + h, Sp(m) + 2 * h, Sp(m) + 2 * h + 1))
    aw.flush()
    if not BLK:
        vwait(*[t for t in vm.q if not t.startswith("X")])
        sv = list(vm.q)
        a("s_cmp_eq_u32 s60, s46")
        a("s_cbranch_scc1 L_early")
        a("s_mov_b32 s60, s46")
        poll1()
        check_flags(12, 5, "s34", "p", "L_f1")
        for sg in range(NX0):
            for o in xops(sg): E(o)
        assert vm.q == sv, (vm.q, sv)
        a.label("L_early")
    ostores = [("os", "buffer_store_dwordx4 %s, v15, s[28:31], s75 offen offset:%d %s" % (vr(240 + 4 * m, 4), 1024 * m, SC)) for m in M4]

    srd(a, 16, PX, 0, 2048 * 2048)
    srd(a, 20, PWS, PART_OFF, PART_BYTES)
    srd(a, 24, POUT, 0, 2048 * 2048)
    a("s_add_u32 s73, s72, 32768")
    a("s_lshl2_add_u32 s74, s2, s32"); F2S = P.get("f2shift", 2); a("s_lshl_b32 s88, s74, %d" % F2S); a("s_add_u32 s88, s88, %d" % F2)
    a("s_lshl_b32 s74, s74, 14")
    a("v_and_b32 v14, 0x30, v15"); a("v_max_u32 v14, 16, v14"); a("v_lshlrev_b32 v14, %d, v14" % (F2S - 1)); a("v_xor_b32 v14, s88, v14")
    a("s_add_u32 s89, s88, %d" % (1024 << F2S)); a("s_mov_b32 s94, %d" % (1024 << F2S))
    a("s_mov_b32 s92, s35")
    vwait("X0")
    stamp()

    AH = P.get("ahead", 1)
    Hs = [(sg, c) for sg in range(ND - AH) for c in (0, 1)] + [(sg, 0) for sg in range(ND - AH, ND)] + [(sg, 1) for sg in range(ND - AH, ND)] + \
         [(sg, c) for sg in range(ND, NS) for c in (0, 1)]
    lastuse = {sg: max(i for i, h in enumerate(Hs) if h[0] == sg) // 2 for sg in range(NS)}
    firstuse = {sg: min(i for i, h in enumerate(Hs) if h[0] == sg) // 2 for sg in range(NS)}
    wsched = {}
    for w in range(4, FR):
        wsched.setdefault(lastuse[w - 4], []).append(w)
        assert lastuse[w - 4] < firstuse[w] - 1 or w >= ND, (w, lastuse[w - 4], firstuse[w])
        assert lastuse[w - 4] < firstuse[w] - 1
    LASTBAR = FR - 2
    q01 = max(i for i, h in enumerate(Hs) if h[0] < ND and h[1] == 0)
    isV = lambda x: isinstance(x, tuple)
    isval = lambda x: isinstance(x, str) and x.startswith("v_")
    def stage(sg, h1=(), h2=(), pre=None, valu=None):
        last = sg == NS - 1
        if P.get("sstamp") and sg >= 1: stamp()
        if pre: pre()
        NG = 64 if sg < ND else 32
        H = NG // 2
        h1 = list(h1); h2 = [o for w in wsched.get(sg, []) for o in wops(w)] + list(h2)
        drop = lambda o: isinstance(o, tuple) and ((P.get("ab_dx") and o[0].startswith("X") and sg >= P["ab_dx"]) or (P.get("ab_dw") and o[0].startswith("W")) or (P.get("ab_dos") and o[0] in ("os", "e", "R")))
        h1 = [o for o in h1 if not drop(o)]; h2 = [o for o in h2 if not drop(o)]
        blk = lambda k, b: (Hs[2 * k + b // 4][0], 4 * Hs[2 * k + b // 4][1] + b % 4)
        r1 = [((sg, b), o) for b in range(4, 8) for o in wreads2(*blk(sg, b), b)]
        r2 = [] if last else [((sg + 1, b), o) for b in range(4) for o in wreads2(*blk(sg + 1, b), b)]
        bar = sg <= LASTBAR
        plan = {g: [] for g in range(NG)}
        load = {g: 4 for g in range(NG)}
        WG_ = {H // 2 - 1: (sg, 3), NG - 1: (sg + 1, 1)}
        if not bar: WG_.update({H - 1: (sg, 5), 3 * H // 2 - 1: (sg, 7)})
        for g in WG_: load[g] += 4
        if bar: load[H - 1] += 8
        def place(lo, hi, rds, rhi, h):
            n = len(rds)
            for k in range(n):
                g = lo + k * (rhi - lo + 1) // n
                plan[g].append(("r",) + rds[k]); load[g] += 8
            nv = sum(isV(x) for x in h)
            pos = [None] * len(h); vi = 0; prev = lo
            for k, x in enumerate(h):
                if isV(x):
                    t = lo + int((vi + 0.5) * (hi - lo + 1) / nv); vi += 1
                    c = sorted(range(max(prev, t - 1), min(hi, t + 1) + 1), key=lambda g: (load[g], abs(g - t))) or [hi]
                    pos[k] = prev = c[0]; load[c[0]] += 8
            prev = lo
            for k, x in enumerate(h):
                if pos[k] is None:
                    nxt = next((pos[j] for j in range(k + 1, len(h)) if pos[j] is not None), hi)
                    if isval(x) and nxt > prev: nxt -= 1
                    c = [g for g in range(prev, nxt + 1) if load[g] <= 12]
                    g = c[0] if c else min(range(prev, max(prev, nxt) + 1), key=lambda g: load[g])
                    pos[k] = g; load[g] = max(load[g], 8 if isval(x) else 0) + 4
                pos[k] = max(pos[k], prev); prev = pos[k]
                plan[pos[k]].append(("o", x))
        place(0, H - 1, r1, (H - 7 if NG == 64 else H - 4) if bar else H - 1, h1)
        place(H, NG - 1, r2, NG - 1, h2)
        if valu:
            for k, x in enumerate(valu[0]): plan[valu[1] + k * (NG - valu[1]) // len(valu[0])].append(("o", x))
        sys.stderr.write("st%d:%d " % (sg, sum(max(16, v) for v in load.values())))
        g = 0
        for b in range(8):
            w = lg.need((sg, b))
            if w is not None: a("s_waitcnt lgkmcnt(%d)" % w)
            for mf in mfmas2(*blk(sg, b), b):
                a(mf)
                for x in plan[g]:
                    if x[0] == "r": a(x[2]); lg.issue(x[1])
                if g in WG_:
                    w = lg.need(WG_[g])
                    if w is not None: a("s_waitcnt lgkmcnt(%d)" % w)
                for x in plan[g]:
                    if x[0] != "r": E(x[1])
                if g == H - 1 and bar:
                    allw = ["W%d" % w for w in range(NS)] if sg == LASTBAR else []
                    vwait("W%d" % Hs[2 * sg + 2][0], "W%d" % Hs[2 * sg + 3][0], *allw, lg0=True)
                    a("s_barrier")
                    lg.clear()
                if g == H - 2: vwait("X%d" % Hs[2 * sg + 1][0])
                if g == NG - 2 and not last: vwait("X%d" % Hs[2 * sg + 2][0])
                g += 1
    def oflag():
        vwait("os")
        V("f", "buffer_store_dword v7, v6, s[84:87], s92 offen %s" % SC)
    EPV = 224
    eload = ["v_lshlrev_b32 v4, %d, v15" % (F0S - 2), "s_or_b32 s3, s2, s32", "s_cselect_b32 s3, %d, 0" % OOB] + \
          [("e", "buffer_load_dwordx4 %s, v4, s[84:87], s3 offen offset:%d %s" % (vr(EPV + 4 * k, 4), k << F0S, SC)) for k in range(4)]
    def epoch():
        a("s_or_b32 s3, s2, s32")
        a("s_cbranch_scc1 L_noep")
        a("s_mov_b32 s97, 0")
        a.label("L_ep")
        for k in range(0, 16, 4 if WF else 1): a("v_xor_b32 v%d, s96, v%d" % (EPV + k, EPV + k))
        for k in range(4 if WF else 1, 16, 4 if WF else 1): a("v_or_b32 v%d, v%d, v%d" % (EPV, EPV, EPV + k))
        a("v_cmp_ne_u32 vcc, 0, v%d" % EPV)
        a("s_cbranch_vccz L_epok")
        for k in range(4): a("buffer_load_dwordx4 %s, v4, s[84:87], 0 offen offset:%d %s" % (vr(EPV + 4 * k, 4), k << F0S, SC))
        a("s_add_u32 s97, s97, 1")
        a("s_waitcnt vmcnt(0)")
        a("s_cmp_lt_u32 s97, 0x80000")
        a("s_cbranch_scc1 L_ep")
        a.label("L_epok")
        a("s_mov_b32 s3, %d" % EPOCH)
        a("buffer_store_dword v7, v6, s[84:87], s3 offen %s" % SC)
        a.label("L_noep")

    PK, XU, XRES, TE = 64, 112, 240, 224
    KEEP = 160
    XUF = lambda o: 80 + (o // 16) * 32 + o % 16
    sends = []
    for hf in range(2):
        for qd in range(3):
            for k in (2 * hf, 2 * hf + 1):
                R = 64 + 32 * qd + 8 * k
                sends.append((["s_add_u32 s75, s74, %d" % (4096 * qd)] if k % 2 == 0 else []) +
                             [("v_cvt_pk_bf16_f32 v%d, v%d, v%d" % (R + r, R + 2 * r, R + 2 * r + 1)) for r in range(4)] +
                             [("S%d" % hf, "buffer_store_dwordx4 %s, v15, s[20:23], s75 offen offset:%d %s" % (vr(R, 4), 1024 * k, SC))])
    PKR = lambda qd, k: 64 + 32 * qd + 4 * k
    xres = [("R", "buffer_load_dwordx4 %s, v2, s[16:19], s%d offen offset:%d" % (vr(XRES + 4 * (2 * m + bp), 4), 72 + m, 64 * bp)) for m in range(2) for bp in range(2)]
    parts = ["s_xor_b32 s%d, s74, 0x%x" % (40 + qd, (dx << 16) + 4096 * qd) for qd, dx in enumerate((2, 6, 4))]
    for k in range(4):
        parts += [("P%d" % k, "buffer_load_dwordx4 %s, v15, s[20:23], s%d offen offset:%d %s" % (vr(PKR(qd, k), 4), 40 + qd, 1024 * k, SC)) for qd in range(3)]
    if P.get("ab_nosend"): sends = [[o for o in x if not isinstance(o, tuple)] for x in sends]
    if P.get("ab_noparts"): parts = parts[:3] + ["s_nop 0"] * 12
    SPA = P.get("send", [4, 2, 1, 1, 1, 1, 1, 1])
    NBB = P.get("nbb", 1)
    EXA, EXB = P.get("ex_a", [16, 17.5, 19]), P.get("ex_b", [18.5, 20.5, 22])
    XRS = P.get("xres_stage", 12)
    def take(n):
        r = [o for x in sends[:n] for o in x]; del sends[:n]; return r
    def sflag(hf):
        vwait("S%d" % hf)
        V("f", "buffer_store_dword v7, v%d, s[84:87], s%d offen %s" % (13 if (FL & 4 and F2S == 7) else 6, 88 + hf, SC))
    pollx = lambda hf: ("p%d" % hf, "buffer_load_dword v%d, v14, s[84:87], %s offen %s" % ((3, 12)[hf], ("0", "s94")[hf], SC))
    checkx = lambda hf: check_flags((3, 12)[hf], 14, ("0", "s94")[hf], "p%d" % hf, "L_f3%d" % hf)
    partx = lambda hf: parts[:9] if hf == 0 else parts[9:]
    def round4(R, T):
        return ["v_cvt_pk_bf16_f32 v%d, v%d, v%d" % (T, R, R + 1), "v_cvt_pk_bf16_f32 v%d, v%d, v%d" % (T + 1, R + 2, R + 3),
                "v_lshlrev_b32 v%d, 16, v%d" % (R, T), "v_and_b32 v%d, s54, v%d" % (R + 1, T),
                "v_lshlrev_b32 v%d, 16, v%d" % (R + 2, T + 1), "v_and_b32 v%d, s54, v%d" % (R + 3, T + 1)]
    xpart = [lambda: vwait("R"), "v_mov_b32 v8, 0x3f80", "v_mov_b32 v9, 1.0"]
    for g4 in range(4):
        R = XRES + 4 * g4
        xpart += ["v_permlane16_swap_b32 v%d, v%d" % (R, R + 2), "v_permlane16_swap_b32 v%d, v%d" % (R + 1, R + 3)]
    for m in range(2):
        for bp in range(2):
            for be in range(2):
                for h in range(2):
                    src = XRES + 4 * (2 * m + bp) + 2 * be + h
                    d = XUF((m * 4 + 2 * bp + be) * 4 + 2 * h)
                    xpart += ["v_lshlrev_b32 v%d, 16, v%d" % (d, src), "v_and_b32 v%d, s54, v%d" % (d + 1, src)]
    QD, QO, SW = P.get("qd", 7.75), P.get("qo", 5.5), P.get("sw", 1.5)
    xq = []
    for x in range(NX0, NS):
        o = xops(x); xq += [(x, o[:2])] + [(x, [y]) for y in o[2:]]
    fq = []
    for t in LATE:
        o = wops(t, True)
        fq += [(1, [o[0], o[1 + 2 * k], o[2 + 2 * k]]) for k in range(4)]
    fq += [(2, [y]) for y in xres]
    OS0 = P.get("os_half", 0)
    FMIN = P.get("fill_from", 10)
    alloc = {}; first = {}; carry = 0.0
    for hh in range(2 * NS):
        sg = hh // 2
        w = carry + (4 * len(wsched.get(sg, [])) if hh % 2 else 0)
        L = []
        if OS0 <= hh < OS0 + 4: L.append(ostores[hh - OS0]); w += SW
        k = hh - q01 - 1
        if 0 <= k < len(SPA): w += SW * SPA[k]
        q = QD if sg < ND else QO
        urgent = lambda: xq and firstuse[xq[0][0]] <= sg + P.get("xmin", 1)
        while w + 0.5 <= q or urgent():
            if fq and hh >= FMIN and hh % 2 == 0 and not any(o in L for _, f in fq[:0] for o in f) and P.get("fill_mix", 1) and not urgent() and sum(1 for o in L if isinstance(o, tuple) and not o[0].startswith("X")) < 2:
                c, o = fq.pop(0); L += o; w += c
            elif xq and (xq[0][0] < NXB or lastuse[xq[0][0] - NXB] < sg):
                x, o = xq.pop(0); first.setdefault(x, sg); L += o; w += 1
                assert firstuse[x] > sg, (x, sg)
            elif fq and hh >= FMIN:
                c, o = fq.pop(0); L += o; w += c
            else: break
        carry = w - q if abs(w - q) < 1 or w > q else 0.0
        alloc[hh] = L
        sys.stderr.write("%d:%d " % (hh, sum(isinstance(o, tuple) for o in L)))
    sys.stderr.write(" first %s\n" % first)
    assert not xq and not fq
    assert all(not (isinstance(o, tuple) and (o[0] == "R" or o[0][0] == "W")) for hh in range(2 * 13, 2 * NS) for o in alloc[hh])
    ck2, cko = first[7], first[ND]
    for sg in range(NS):
        h1, h2 = list(alloc[2 * sg]), list(alloc[2 * sg + 1])
        pre = []
        if sg == 1: h2 = h2 + eload
        if sg == (OS0 + 3) // 2 + 2: pre.append(oflag)
        if sg == ck2 - 2: h2 = h2 + [("p", "buffer_load_dword v12, v5, s[84:87], s58 offen %s" % SC)]
        if sg == ck2: pre += [lambda: check_flags(12, 5, "s58", "p", "L_f1b")]
        if sg == 4: pre += [lambda: vwait("e"), epoch]
        if sg == cko - 2: h2 = h2 + [("p", "buffer_load_dword v3, v13, s[84:87], s59 offen %s" % SC)]
        if sg == cko: pre.append(lambda: check_flags(3, 13, "s59", "p", "L_f2"))
        for hh, lst in ((2 * sg, h1), (2 * sg + 1, h2)):
            k = hh - q01 - 1
            t_ = take(SPA[k]) if 0 <= k < len(SPA) else []
            if P.get("send_first", 1): lst[:0] = t_
            else: lst += t_
        for hf, (f_, p_, c_) in enumerate((EXA, EXB)):
            if sg == p_: h2 = h2 + [pollx(hf)]
            if sg - 0.5 == p_: h1 = h1 + [pollx(hf)]
            if sg == f_: pre.append(lambda hf=hf: sflag(hf))
            if sg + 0.5 == f_: h2 = [lambda hf=hf: sflag(hf)] + h2
            if sg == c_:
                pre.append(lambda hf=hf: checkx(hf)); px = partx(hf); h1 = h1 + px[:-3]; h2 = px[-3:] + h2
        if sg == ND: stamp()
        wv = None
        if sg == P.get("xpart_stage", 20): wv = (xpart, 0)
        stage(sg, h1, h2, pre=(lambda pre=pre: [f() for f in pre]), valu=wv)
    sys.stderr.write("\n")
    assert not sends
    stamp()
    for hf, (f_, p_, c_) in enumerate((EXA, EXB)):
        if c_ == NS and not (hf == 1 and NBB):
            checkx(hf)
            for o in partx(hf): E(o)
    def nb_try():
        vwait("p1")
        a("v_cmp_ne_u32 vcc, s96, v12")
        a("s_nop 0")
        a("s_cmp_eq_u64 vcc, 0")
        a("s_cselect_b32 s46, 0, %d" % OOB)
        if P.get("force_late"): a("s_mov_b32 s46, %d" % OOB)
        for qd in range(3): a("s_add_u32 s%d, s%d, s46" % (43 + qd, 40 + qd))
        for t, o in partx(1):
            for qd in range(3): o = o.replace("s%d offen" % (40 + qd), "s%d offen" % (43 + qd))
            V(t, o)
    def nb_fix():
        a("s_cmp_eq_u32 s46, 0")
        a("s_cbranch_scc1 L_nbok")
        sv = list(vm.q)
        E(pollx(1)); checkx(1)
        for o in partx(1): E(o)
        a("s_waitcnt vmcnt(0)")
        vm.q = sv
        a.label("L_nbok")
    if NBB == 1: nb_try()
    def dots(k):
        vwait("P%d" % k)
        for qd in range(3):
            for r in range(8):
                a("v_dot2_f32_bf16 v%d, v%d, v%d, v%d" % (KEEP + 8 * k + r, PKR(qd, k) + r // 2, 8 + (r & 1), KEEP + 8 * k + r))
    MIM = P.get("mimic", "s")
    if "s" in MIM:
        a("s_nop 7")
        for k in range(8):
            for x in round4(accO(0, 0) + 4 * k, 48 + 2 * (k % 2)): a(x)
    if NBB == 2: nb_try()
    for m in range(2):
        if m == 1 and NBB: nb_fix()
        dots(2 * m); dots(2 * m + 1)
        o = 16 * m
        H8 = range(0, 16, 2)
        if "y" in MIM:
            for k in range(4):
                for x in round4(KEEP + o + 4 * k, 10 + 2 * (k % 2)): a(x)
        for h in H8: a("v_pk_mul_f32 %s, %s, s[50:51]" % (vr(TE + o + h, 2), vr(KEEP + o + h, 2)))
        for r in range(16): a("v_exp_f32 v%d, v%d" % (TE + o + r, TE + o + r))
        for h in H8: a("v_pk_mul_f32 %s, %s, %s" % (vr(KEEP + o + h, 2), vr(KEEP + o + h, 2), vr(accO(0, 0) + o + h, 2)))
        for h in H8: a("v_pk_add_f32 %s, %s, s[52:53]" % (vr(TE + o + h, 2), vr(TE + o + h, 2)))
        for bp in range(2):
            D = 32 + 4 * (2 * m + bp)
            offs = [o + (bp * 2 + be) * 4 for be in range(2)]
            for f in offs:
                for r in range(4): a("v_rcp_f32 v%d, v%d" % (TE + f + r, TE + f + r))
            for f in offs:
                for h in (0, 2): a("v_pk_fma_f32 %s, %s, %s, %s" % (vr(KEEP + f + h, 2), vr(KEEP + f + h, 2), vr(TE + f + h, 2), vr(XUF(f + h), 2)))
            for be, f in enumerate(offs):
                a("v_cvt_pk_bf16_f32 v%d, v%d, v%d" % (D + 2 * be, KEEP + f, KEEP + f + 1))
                a("v_cvt_pk_bf16_f32 v%d, v%d, v%d" % (D + 2 * be + 1, KEEP + f + 2, KEEP + f + 3))
            a("s_nop 0")
            a("v_permlane16_swap_b32 v%d, v%d" % (D, D + 2))
            a("v_permlane16_swap_b32 v%d, v%d" % (D + 1, D + 3))
            a("s_nop 0")
            V("out", "buffer_store_dwordx4 %s, v2, s[24:27], s%d offen offset:%d %s" % (vr(D, 4), 72 + m, 64 * bp, P.get("outfl", ["sc1", ""])[m]))
    if probe is not None:
        stamp(); a("s_waitcnt vmcnt(0)"); stamp()
        a.label("L_probe")
        a("s_memrealtime s[4:5]"); a("s_waitcnt lgkmcnt(0)"); a("s_sub_u32 s4, s4, s98"); a("s_cmp_lt_u32 s4, 10000"); a("s_cbranch_scc1 L_probe")
    if prof:
        stamp(); a("s_waitcnt vmcnt(0)"); stamp()
        srd(a, 8, PWS, STAMP_OFF, 65536)
        a("s_lshl_b32 s3, s2, 8")
        a("v_lshl_add_u32 v8, v0, 2, s3")
        a("v_cmp_gt_u32 vcc, 64, v0")
        a("s_and_b64 exec, exec, vcc")
        a("s_cbranch_execz L_end")
        a("buffer_store_dword v31, v8, s[8:11], 0 offen")
    a.label("L_end")
    a("s_endpgm")
    desc(a, name, 256 + NAGPR, 100, 256)
    hdr = open("recurrent_scan__sliding_local_dilated__swiglu_ffn__prompt.s.ref").read().split("; Override launch")[0]
    if P.get("aslist", 1):
        hdr += "; @launch kernel=%s grid=(256,1,1) block=(256,1,1) lds=%d\n" % (name, LDS_BYTES)
    else:
        hdr += "; @launch grid=(256,1,1) block=(256,1,1) lds=%d\n" % LDS_BYTES
    return hdr + a.text()

if __name__ == "__main__":
    P = json.loads(sys.argv[2]) if len(sys.argv) > 2 else {}
    open(sys.argv[1], "w").write(gen(P))
```

```python
import sys, json
sys.path.insert(0, "dev")
from gen_common import *

MAIN = "recurrent_scan__sliding_local_dilated__swiglu_ffn__prompt_kernel"
SLOT = 40960
GATE, UP, QKV = 0, 14336, 28672
EX = 155648
LDS_BYTES = 163840
LNX = EX
R2 = SLOT
F0, F1H, F1O, F2, EPOCH = 0, 32768, 40960, 262144, 65536
NONCE_ADD = 0x6A09E667
OOB = 0x40000000
SC = "sc1"
MF = "v_mfma_f32_16x16x32_bf16"

class Cnt:
    def __init__(self, init=(), cap=15):
        self.q = list(init); self.cap = cap
    def issue(self, tag): self.q.append(tag)
    def need(self, *tags):
        idx = [i for i, t in enumerate(self.q) if t in tags]
        if not idx: return None
        last = max(idx)
        n = len(self.q) - 1 - last
        self.q = self.q[last + 1:]
        return min(n, self.cap)
    def clear(self): self.q = []

def cost(o):
    s = o[1] if isinstance(o, tuple) else o
    if callable(s): return 4
    if s.startswith(("v_exp", "v_rcp", "buffer_", "v_permlane")): return 8
    return 4

def gen(P):
    a = Asm()
    name = MAIN
    prof, probe = P.get("prof"), P.get("probe")
    nst = [0]
    def stamp():
        if probe is not None:
            if nst[0] == probe:
                a("s_memrealtime s[98:99]"); a("s_waitcnt lgkmcnt(0)")
            nst[0] += 1
            return
        if not prof: return
        a("%s s[98:99]" % ("s_memtime" if prof == 2 else "s_memrealtime"))
        a("s_waitcnt lgkmcnt(0)")
        a("v_writelane_b32 v31, s98, %d" % nst[0])
        nst[0] += 1
    XSC = P.get("xsc", "sc1")
    ROT2 = P.get("g2_rot", 0)
    vm = Cnt(cap=63)
    def V(tag, s):
        vm.issue(tag)
        if s.endswith("lds") and a.lines[-1].strip().startswith("s_add_u32 m0"): a("s_nop 0")
        a(s)
    def E(o):
        if isinstance(o, tuple): V(*o)
        elif callable(o): o()
        else: a(o)
    def vwait(*tags, lg0=False):
        n = vm.need(*tags)
        parts = ([] if n is None else ["vmcnt(%d)" % n]) + (["lgkmcnt(0)"] if lg0 else [])
        if parts: a("s_waitcnt " + " ".join(parts))
    def check_flags(vreg, voff, soff, tag, label):
        vwait(tag)
        a("v_cmp_ne_u32 vcc, s96, v%d" % vreg)
        a("s_cbranch_vccz %s_ok" % label)
        a("s_mov_b32 s97, 0")
        a.label(label + "_spin")
        if P.get("spin_sleep", 1): a("s_sleep %d" % P.get("spin_sleep", 1))
        a("buffer_load_dword v%d, v%d, s[84:87], %s offen %s" % (vreg, voff, soff, P.get("pollfl", SC)))
        a("s_add_u32 s97, s97, 1")
        a("s_waitcnt vmcnt(0)")
        a("s_cmp_gt_u32 s97, 0x80000")
        a("s_cbranch_scc1 %s_ok" % label)
        a("v_cmp_ne_u32 vcc, s96, v%d" % vreg)
        a("s_cbranch_vccnz %s_spin" % label)
        a.label(label + "_ok")

    class Weave:
        def __init__(self, n, q, skip=0): self.n, self.c, self.q = n, -skip, q
        def __call__(self, t):
            a(t)
            if t.startswith("v_") and not t.startswith("v_mfma"):
                self.c += 1
                if self.c > 0 and self.c % self.n == 0: self.one()
        def one(self):
            while self.q:
                o = self.q.pop(0); E(o)
                if isinstance(o, tuple): break
        def flush(self):
            while self.q: self.one()

    accGU = lambda p, gu, m: 32 + ((p * 2 + gu) * 4 + m) * 4
    accQ = lambda s, m: (s * 4 + m) * 4
    HACC = 96
    XB = lambda buf, m, kh: (100 + buf * 40 + (m * 2 + kh) * 4) if buf < 2 else ((224 + (m * 2 + kh) * 4) if m < 4 else 172 + kh * 4)
    WR = lambda slot, kh: 180 + slot * 8 + kh * 4
    HW = lambda kh: 212 + kh * 4
    PARK = 220
    NAGPR = 256
    PX, PQKV, PWO, PG, PU, PD, POUT, PDBG, PWS = 64, 66, 68, 72, 74, 76, 78, 80, 82

    a.raw('.amdgcn_target "amdgcn-amd-amdhsa--gfx950"')
    kernel_header(a, name)
    a("s_cmp_ge_u32 s2, 256")
    a("s_cbranch_scc1 L_end")
    a("s_load_dwordx16 s[64:79], s[0:1], 0")
    a("s_load_dwordx4 s[80:83], s[0:1], 64")
    a("s_getpc_b64 s[4:5]")
    a.label("L_pc")
    a("v_and_b32 v17, 63, v0")
    a("s_mov_b32 s6, L_end-L_pc")
    a("s_mov_b32 s7, 0x20000")
    a("v_lshlrev_b32 v1, 7, v17")
    a("s_bfe_u32 s3, s2, 0x30003")
    a("s_lshl_b32 s3, s3, 13")
    V("c", "buffer_load_dword v29, v1, s[4:7], s3 offen")
    if prof: a("v_mov_b32 v31, 0")
    stamp()
    a("v_lshrrev_b32 v16, 6, v0")
    a("v_lshrrev_b32 v18, 3, v17")
    a("v_and_b32 v19, 7, v17")
    a("v_readfirstlane_b32 s32, v16")
    a("v_lshlrev_b32 v20, 11, v18")
    a("v_lshl_add_u32 v20, v16, 9, v20")
    a("v_lshl_add_u32 v20, v19, 4, v20")
    a("s_and_b32 s34, s2, 7")
    a("s_bfe_u32 s35, s2, 0x20003")
    a("s_lshl2_add_u32 s34, s34, s35")
    a("s_lshr_b32 s33, s2, 5")
    a("s_lshl_b32 s36, s33, 5")
    a("s_add_u32 s36, s36, s34")
    a("s_lshl_b32 s37, s36, 14")
    a("v_mov_b32 v6, 0")
    a("s_mov_b32 s50, %d" % (2048 * 2048))
    a("s_mov_b32 s51, 0x20000")
    a("s_waitcnt lgkmcnt(0)")
    a("s_mov_b64 s[48:49], s[%d:%d]" % (PX, PX + 1))
    LX = 32
    for u in range(4):
        V("x", "buffer_load_dwordx4 %s, v20, s[48:51], s37 offen offset:%d %s" % (vr(LX + 4 * u, 4), 128 * u, P.get("xfl", "")))
    srd(a, 84, PWS, FLAG_OFF, FLAG_BYTES)
    a("s_mov_b32 s3, %d" % EPOCH)
    V("ep", "buffer_load_dword v7, v6, s[84:87], s3 offen")
    if P.get("ftouch", 0):
        a("v_lshlrev_b32 v21, 17, v17")
        a("s_lshl2_add_u32 s3, s2, s32")
        a("s_lshl_b32 s3, s3, 7")
        V("t", "buffer_load_dword v29, v21, s[84:87], s3 offen %s" % P.get("ftfl", ""))
    stamp()
    if P.get("xrot", 1): a("s_and_b32 s80, s2, 7"); a("s_lshl_b32 s80, s80, 1")
    else: a("s_mov_b32 s80, 0")
    a("s_mov_b32 s81, s80")
    a("s_and_b32 s57, s34, 1")
    a("s_lshr_b32 s58, s34, 1")
    a("s_mul_i32 s58, s58, 448")
    a("s_cmp_eq_u32 s32, 1")
    a("s_cselect_b64 s[88:89], s[%d:%d], s[%d:%d]" % (PU, PU + 1, PG, PG + 1))
    a("s_cmp_eq_u32 s32, 3")
    a("s_cbranch_scc1 L_t3")
    a("s_mul_i32 s3, s57, 208")
    a("s_add_u32 s3, s3, s58")
    a("s_movk_i32 s92, 7168")
    a("s_movk_i32 s93, 118")
    a("s_cmp_eq_u32 s32, 2")
    a("s_cbranch_scc0 L_t01")
    a("s_mov_b64 s[88:89], s[%d:%d]" % (PQKV, PQKV + 1))
    a("s_lshl_b32 s3, s34, 6")
    a("s_movk_i32 s92, 6144")
    a("s_movk_i32 s93, 2048")
    a.label("L_t01")
    a("s_lshl_b32 s90, s92, 10")
    a("v_bfe_u32 v21, v17, 2, 3")
    a("v_and_b32 v22, 32, v17")
    a("v_lshl_add_u32 v21, v22, 1, v21")
    a("v_and_b32 v22, 3, v17")
    a("v_mul_u32_u24 v30, s92, v21")
    a("v_mul_u32_u24 v23, s93, v22")
    a("v_and_b32 v23, -4, v23")
    a("v_add3_u32 v30, v30, v23, s3")
    a("v_cmp_eq_u32 vcc, 3, v22")
    a("v_mov_b32 v23, %d" % OOB)
    a("s_lshl3_add_u32 s94, s80, s33")
    a("s_lshl_b32 s94, s94, 3")
    a("v_cndmask_b32 v30, v30, v23, vcc")
    a("v_mov_b32 v25, %s" % ("v30" if not P.get("now1") else str(OOB)))
    if P.get("noearly"): a("v_mov_b32 v30, %d" % OOB)
    a("s_mul_i32 s94, s94, s92")
    a("s_lshl_b32 s95, s92, 7")
    a("s_branch L_td")
    a.label("L_t3")
    a("s_mov_b64 s[88:89], s[%d:%d]" % (PD, PD + 1))
    a("v_lshlrev_b32 v30, 7, v17")
    a("s_bfe_u32 s3, s2, 0x20001")
    a("s_add_u32 s3, s3, 1")
    a("s_mul_i32 s90, s3, %d" % (896 * 2048))
    a("s_lshr_b32 s94, s2, 3")
    a("s_lshl_b32 s94, s94, 13")
    a("s_add_u32 s94, s94, s90")
    a("s_sub_u32 s94, s94, %d" % (128 * 2048))
    a("s_mov_b32 s95, 0")
    a("v_mov_b32 v25, v30")
    a("v_mov_b32 v30, %d" % OOB)
    if P.get("now2"): a("v_mov_b32 v25, %d" % OOB)
    a.label("L_td")
    a("s_mov_b32 s91, 0x20000")
    TH = P.get("t_half", 0)
    if TH:
        a("s_mov_b32 exec_hi, 0")
        V("t", "buffer_load_dword v29, v30, s[88:91], s94 offen")
        a("s_mov_b32 exec_hi, -1")
    for k in range(P.get("t_early", 1) if not TH else 0):
        V("t", "buffer_load_dword v29, v30, s[88:91], s94 offen %s" % P.get("t0fl", ""))
        for o in ["s_add_u32 s94, s94, s95", "s_cmp_ge_u32 s94, s90", "s_cselect_b32 s3, s90, 0", "s_sub_u32 s94, s94, s3"]: a(o)
    if P.get("t_w2"):
        a("s_mov_b32 exec_hi, 0")
        V("t", "buffer_load_dword v29, v30, s[88:91], s94 offen")
        a("s_mov_b32 exec_hi, -1")
    a("v_lshlrev_b32 v21, 17, v16")
    a("v_lshrrev_b32 v22, 2, v19")
    a("v_lshl_add_u32 v21, v22, 10, v21")
    a("v_and_b32 v22, 3, v19")
    a("v_lshl_add_u32 v21, v22, 8, v21")
    a("v_lshl_add_u32 v28, v18, 4, v21")
    a("s_lshl_b32 s60, s33, 19")
    a("s_lshr_b32 s51, s34, 1")
    a("s_lshl_b32 s51, s51, 11")
    a("s_add_u32 s50, s60, s51")
    a("s_lshl_b32 s51, s57, 7")
    a("s_add_u32 s50, s50, s51")
    a("s_add_u32 s51, s50, 32768")
    a("s_add_u32 s52, s50, 65536")
    a("s_add_u32 s53, s50, 98304")
    a("v_lshlrev_b32 v26, 5, v18")
    a("v_add_u32 v26, %d, v26" % LNX)
    a("v_lshl_add_u32 v27, v16, 3, v26")
    a("s_mov_b64 s[24:25], s[%d:%d]" % (PWS, PWS + 1))
    a("s_add_u32 s26, s60, 0x80000")
    a("s_mov_b32 s27, 0x20000")
    a("s_mov_b32 s54, 0xffff0000")
    F0S = P.get("f0shift", 7)
    a("s_lshl_b32 s92, s36, %d" % F0S)
    WF = P.get("wgflag", 1)
    if WF: a("s_lshl_b32 s3, s32, 28"); a("s_add_u32 s92, s92, s3")
    else: a("s_lshl2_add_u32 s92, s32, s92")
    a("s_mov_b32 s3, 0x3f803f80")
    a("v_mov_b32 v116, s3")
    a("s_max_u32 s61, s33, 1")
    a("s_sub_u32 s61, s61, 1")
    a("s_lshl_b32 s59, s61, %d" % (5 + F0S))
    a("s_add_u32 s59, s59, %d" % (30 << F0S))
    a("s_lshl_b32 s3, s33, %d" % (5 + F0S))
    a("s_lshl_b32 s48, s32, %d" % (3 + F0S))
    a("s_add_u32 s3, s3, s48")
    a("v_and_b32 v21, %d, v17" % (0 if WF else 3))
    a("v_lshlrev_b32 v21, 2, v21")
    a("v_lshrrev_b32 v20, 2, v17")
    a("v_lshl_add_u32 v20, v20, %d, v21" % F0S)
    a("v_and_b32 v21, %d, v20" % ((1 << F0S) + 12))
    a("v_add_u32 v20, s3, v20")
    a("v_add_u32 v21, s59, v21")
    a("v_cmp_gt_u32 vcc, 32, v17")
    a("v_mov_b32 v22, %d" % OOB)
    a("v_lshlrev_b32 v15, 4, v17")
    a("v_cndmask_b32 v254, v21, v20, vcc")
    a("v_cndmask_b32 v121, v22, v25, vcc")
    a("v_cndmask_b32 v122, v25, v22, vcc")

    def g1_setup_w():
        def krow(dst, rho, t1):
            a("v_and_b32 v%d, 35, v%d" % (dst, rho))
            a("v_bfe_u32 v%d, v%d, 2, 2" % (t1, rho))
            a("v_lshl_or_b32 v%d, v%d, 3, v%d" % (dst, t1, dst))
            a("v_bfe_u32 v%d, v%d, 4, 1" % (t1, rho))
            a("v_lshl_or_b32 v%d, v%d, 2, v%d" % (dst, t1, dst))
        a("s_mul_i32 s56, s32, 192")
        a("s_lshl_b32 s59, s34, 6")
        a("s_movk_i32 s40, 4682")
        a("s_movk_i32 s41, 5462")
        a("s_movk_i32 s62, 7168")
        a("s_movk_i32 s63, 6144")
        a("s_mul_i32 s48, s57, 14")
        def gu_off(dst, imm):
            a("v_mul_u32_u24 v21, s40, v20")
            a("v_lshrrev_b32 v21, 16, v21")
            a("v_mul_u32_u24 v22, 14, v21")
            a("v_sub_u32 v22, v20, v22")
            a("v_add_u32 v22, s48, v22")
            a("v_lshrrev_b32 v23, 1, v22")
            a("v_xor_b32 v23, v23, v22")
            a("v_and_b32 v23, 1, v23")
            a("v_mul_u32_u24 v23, 3, v23")
            a("v_xor_b32 v22, v22, v23")
            krow(24, 21, 23)
            a("s_sub_u32 s3, s58, %d" % imm)
            a("v_lshl_add_u32 v22, v22, 4, s3")
            a("v_mad_u32_u24 v%d, v24, s62, v22" % dst)
        def qkv_off(dst, imm):
            a("v_mul_u32_u24 v21, s41, v20")
            a("v_lshrrev_b32 v21, 16, v21")
            a("v_mul_u32_u24 v22, 12, v21")
            a("v_sub_u32 v22, v20, v22")
            a("v_lshrrev_b32 v23, 1, v21")
            a("v_and_b32 v23, 2, v23")
            a("v_xor_b32 v22, v22, v23")
            a("v_lshrrev_b32 v25, 2, v22")
            a("v_and_b32 v22, 3, v22")
            a("s_sub_u32 s3, s59, %d" % imm)
            a("v_lshl_add_u32 v22, v22, 4, s3")
            a("v_lshl_add_u32 v22, v25, 11, v22")
            krow(24, 21, 23)
            a("v_mad_u32_u24 v%d, v24, s63, v22" % dst)
        for q in range(3):
            a("s_add_u32 s3, s56, %d" % (64 * q))
            a("v_add_u32 v20, s3, v17")
            gu_off(8 + q, 1024 * q)
            qkv_off(11 + q, 1024 * q)
        a("s_and_b32 s35, s32, 1")
        a("s_lshl_b32 s3, s35, 6")
        a("s_add_u32 s3, s3, 768")
        a("v_add_u32 v20, s3, v17")
        gu_off(14, 0)
        a("s_mul_i32 s43, s32, 3072")
        a("s_add_u32 s44, s43, %d" % UP)
        a("s_add_u32 s45, s43, %d" % QKV)
        a("s_lshr_b32 s46, s32, 1")
        a("s_mul_i32 s46, s46, %d" % UP)
        a("s_lshl_b32 s3, s35, 10")
        a("s_add_u32 s46, s46, s3")
        a("s_add_u32 s46, s46, 12288")
        srd(a, 8, PG, 0, 1024 * 7168)
        srd(a, 12, PU, 0, 1024 * 7168)
        srd(a, 16, PQKV, 0, 1024 * 6144)
        a("s_cmp_lt_u32 s32, 2")
        a("s_cselect_b64 s[20:21], s[%d:%d], s[%d:%d]" % (PG, PG + 1, PU, PU + 1))
        a("s_mov_b32 s22, %d" % (1024 * 7168))
        a("s_mov_b32 s23, 0x20000")
    def g1_setup_r():
        a("v_lshrrev_b32 v18, 2, v17")
        a("v_and_b32 v19, 3, v17")
        a("v_lshlrev_b32 v19, 3, v19")
        a("s_movk_i32 s3, 224")
        a("v_and_b32 v20, 16, v15")
        a("v_and_b32 v21, 2, v17")
        a("v_lshl_add_u32 v20, v21, 2, v20")
        a("v_mad_u32_u24 v1, v18, s3, v20")
        a("s_movk_i32 s3, 192")
        a("v_mad_u32_u24 v2, v18, s3, v19")
        a("v_add_u32 v2, %d, v2" % QKV)
        a("v_and_b32 v19, 16, v17")
        a("v_lshlrev_b32 v19, 1, v19")
        a("v_xor_b32 v20, 32, v19")
        a("v_add_u32 v3, v2, v20")
        a("v_add_u32 v2, v2, v19")
        a("s_cmp_eq_u32 s35, 1")
        a("s_cselect_b64 vcc, -1, 0")
        a("v_cndmask_b32 v4, v2, v3, vcc")
        a("s_lshr_b32 s3, s32, 1")
        a("s_lshl_b32 s3, s3, 6")
        a("s_add_u32 s3, s3, 64")
        a("v_add_u32 v4, s3, v4")
        a("s_mov_b32 s62, %d" % SLOT)
        a("s_mov_b32 s63, %d" % ((-2 * SLOT) & 0xffffffff))
        srd(a, 28, PWS, ACT_OFF, ACT_BYTES)
    def tau_ops():
        return ["s_add_u32 s81, s36, s80", "s_and_b32 s81, s81, 15", "s_mul_i32 s38, s81, 458752", "s_mul_i32 s39, s81, 393216"]
    def xoff_ops():
        return ["s_lshl_b32 s40, s81, 15", "s_add_u32 s42, s40, s61", "s_add_u32 s40, s40, s60", "s_add_u32 s41, s40, 4096"]
    def wdma_ops(tag):
        o = []
        for (mreg, sd, vb, so) in ((43, 8, 8, 38), (44, 12, 8, 38), (45, 16, 11, 39)):
            o.append("s_add_u32 m0, s37, s%d" % mreg)
            for q in range(3):
                o.append((tag, "buffer_load_dwordx4 v%d, s[%d:%d], s%d offen offset:%d lds" % (vb + q, sd, sd + 3, so, 1024 * q)))
        o.append("s_add_u32 m0, s37, s46")
        o.append((tag, "buffer_load_dwordx4 v14, s[20:23], s38 offen lds"))
        return o
    def xld_ops(buf, tag):
        o = []
        for f in range(8):
            o.append((tag, "buffer_load_dwordx4 %s, v15, s[24:27], s%d offen offset:%d %s" % (ar(XB(buf, f // 2, f % 2), 4), 40 + f // 4, 1024 * (f % 4), XSC)))
        for kh in range(2):
            o.append((tag, "buffer_load_dwordx4 %s, v15, s[24:27], s42 offen offset:%d %s" % (ar(XB(buf, 4, kh), 4), 1024 * kh, "" if P.get("halo_plain", 0) else XSC)))
        return o

    g1_setup_w()
    a("s_mov_b32 s36, 0"); a("s_mov_b32 s37, 0")
    W0POS = P.get("w0pos", 1)
    al = Weave(P.get("w0_every", 14), tau_ops() + wdma_ops("W0") if W0POS == 2 else [], P.get("w0_skip", 0))

    if P.get("ab_noln") == 2:
        a("s_branch L_skipln")
    vwait("x")
    stamp()
    X = 48
    for r in range(16):
        c1 = "0" if r < 2 else "v%d" % (112 + 2 * (r % 2))
        c2 = "0" if r < 2 else "v%d" % (113 + 2 * (r % 2))
        al("v_dot2_f32_bf16 v%d, v%d, v116, %s" % (112 + 2 * (r % 2), LX + r, c1))
        al("v_dot2_f32_bf16 v%d, v%d, v%d, %s" % (113 + 2 * (r % 2), LX + r, LX + r, c2))
    al("s_nop 2")
    al("v_pk_add_f32 v[112:113], v[112:113], v[114:115]")
    for m in ("quad_perm:[1,0,3,2]", "quad_perm:[2,3,0,1]", "row_half_mirror"):
        al("s_nop 0" if m != "quad_perm:[1,0,3,2]" else "s_nop 1")
        for v in (112, 113):
            al("v_add_f32_dpp v%d, v%d, v%d %s row_mask:0xf bank_mask:0xf" % (v, v, v, m))
    al("ds_write_b64 v27, v[112:113]")
    def unpack(r):
        al("v_lshlrev_b32 v%d, 16, v%d" % (X + 2 * r, LX + r))
        al("v_and_b32 v%d, s54, v%d" % (X + 2 * r + 1, LX + r))
    for r in range(8): unpack(r)
    al("s_waitcnt lgkmcnt(0)")
    al("s_barrier")
    al("ds_read_b128 v[80:83], v26")
    al("ds_read_b128 v[84:87], v26 offset:16")
    for r in range(8, 16): unpack(r)
    al("s_waitcnt lgkmcnt(0)")
    al("v_pk_add_f32 v[80:81], v[80:81], v[82:83]")
    al("v_pk_add_f32 v[84:85], v[84:85], v[86:87]")
    al("v_pk_add_f32 v[80:81], v[80:81], v[84:85]")
    al("v_mul_f32 v88, 0x3a800000, v80")
    al("v_mul_f32 v81, 0x3a800000, v81")
    al("v_fma_f32 v81, -v88, v88, v81")
    al("v_max_f32 v81, 0, v81")
    al("v_cvt_pk_bf16_f32 v88, v88, v81")
    al("v_and_b32 v81, s54, v88")
    al("v_lshlrev_b32 v88, 16, v88")
    al("v_add_f32 v81, 0x3727c5ac, v81")
    al("v_cvt_pk_bf16_f32 v81, v81, v81")
    al("v_and_b32 v81, s54, v81")
    al("v_sqrt_f32 v81, v81")
    al("v_sub_f32 v88, 0, v88")
    al("v_cvt_pk_bf16_f32 v81, v81, v81")
    al("v_and_b32 v81, s54, v81")
    al("v_rcp_f32 v90, v81")
    al("v_mov_b32 v89, v88")
    al("v_mov_b32 v91, v90")
    for u in range(4):
        R = range(4 * u, 4 * u + 4)
        for r in R: al("v_pk_add_f32 %s, %s, v[88:89]" % (vr(X + 2 * r, 2), vr(X + 2 * r, 2)))
        for r in R: al("v_cvt_pk_bf16_f32 v%d, v%d, v%d" % (LX + r, X + 2 * r, X + 2 * r + 1))
        for r in R: unpack(r)
        for r in R: al("v_pk_mul_f32 %s, %s, v[90:91]" % (vr(X + 2 * r, 2), vr(X + 2 * r, 2)))
        for r in R: al("v_cvt_pk_bf16_f32 v%d, v%d, v%d" % (LX + r, X + 2 * r, X + 2 * r + 1))
        V("xs", "buffer_store_dwordx4 %s, v28, s[24:27], s%d offen %s" % (vr(LX + 4 * u, 4), 50 + u, SC))
    al.flush()
    if P.get("ab_noln") == 2: a.label("L_skipln")
    stamp()

    if TH == 3:
        for o in ["s_add_u32 s94, s94, s95", "s_cmp_ge_u32 s94, s90", "s_cselect_b32 s3, s90, 0", "s_sub_u32 s94, s94, s3"]: a(o)
    if TH == 2: a("v_mov_b32 v253, v30")
    if TH == 1:
        for k in range(2):
            V("t", "buffer_load_dword v29, v30, s[88:91], s94 offen")
            for o in ["s_add_u32 s94, s94, s95", "s_cmp_ge_u32 s94, s90", "s_cselect_b32 s3, s90, 0", "s_sub_u32 s94, s94, s3"]: a(o)
    if P.get("t_early", 1) < 2 and P.get("t1pos", 4) == 0:
        V("t", "buffer_load_dword v29, v30, s[88:91], s94 offen %s" % P.get("t1fl", ""))
        for o in ["s_add_u32 s94, s94, s95", "s_cmp_ge_u32 s94, s90", "s_cselect_b32 s3, s90, 0", "s_sub_u32 s94, s94, s3"]: a(o)
    a("s_lshl_b32 s3, s32, 13")
    a("s_add_u32 s60, s60, s3")
    a("s_lshl_b32 s61, s61, 19")
    a("s_add_u32 s61, s61, %d" % (3 * 8192 + 3 * 2048))
    for o in xoff_ops(): E(o)
    a("v_mov_b32 v27, v121"); a("v_mov_b32 v28, v122")
    g1_setup_r()
    av = Weave(P.get("w0_every", 5), tau_ops() + wdma_ops("W0") if W0POS == 0 else [])
    SP, SMT, SNT = 66, 67, 70
    av("s_bfe_u32 s%d, s2, 0x10001" % SP)
    av("s_and_b32 s%d, s2, 1" % SMT); av("s_bfe_u32 s3, s2, 0x20003"); av("s_lshl2_add_u32 s%d, s%d, s3" % (SMT, SMT))
    av("s_lshr_b32 s%d, s2, 5" % SNT)
    park = {}
    def parkv(key, v):
        park[key] = PARK + len(park)
        assert park[key] < 224
        av("v_accvgpr_write_b32 a%d, v%d" % (park[key], v))
    unp = lambda key, v: "v_accvgpr_read_b32 v%d, a%d" % (v, park[key])
    av("s_lshl_b32 s48, s%d, 2" % SP); av("s_xor_b32 s48, s48, 4"); av("s_lshl_b32 s49, s%d, 8" % SNT); av("s_lshl_b32 s50, s32, 15"); av("s_add_u32 s50, s50, s49")
    av("v_lshrrev_b32 v20, 4, v17"); av("v_bfe_u32 v21, v17, 1, 3"); av("v_xor_b32 v21, s48, v21"); av("v_xor_b32 v21, v21, v20")
    av("v_and_b32 v22, 16, v15"); av("v_lshl_add_u32 v23, v20, 11, v22")
    av("v_lshl_add_u32 v16, v21, 5, v23"); av("v_add_u32 v16, s50, v16")
    av("s_lshl_b32 s51, s32, 16"); av("s_add_u32 s51, s51, s49"); av("s_lshl_b32 s3, s%d, 7" % SP); av("s_add_u32 s51, s51, s3")
    av("v_bfe_u32 v21, v17, 1, 2"); av("v_xor_b32 v21, v21, v20"); av("v_lshrrev_b32 v23, 3, v17")
    av("v_lshl_add_u32 v22, v23, 11, v22"); av("v_lshl_add_u32 v22, v21, 5, v22"); av("v_add_u32 v22, s51, v22")
    av("v_mov_b32 v30, v22")
    av("v_lshrrev_b32 v20, 2, v17"); av("v_and_b32 v21, 3, v17"); av("v_lshlrev_b32 v21, 3, v21"); av("v_add_u32 v21, %d, v21" % R2)
    av("v_lshl_add_u32 v22, v20, 8, v21"); av("v_and_b32 v23, 7, v20"); av("v_lshl_add_u32 v22, v23, 5, v22")
    parkv("vw", 22)
    av("v_lshl_add_u32 v22, v20, 7, v21"); av("v_bfe_u32 v23, v17, 3, 2"); av("v_lshl_add_u32 v22, v23, 5, v22")
    parkv("vwo", 22)
    av("v_and_b32 v20, 15, v17"); av("v_lshlrev_b32 v22, 11, v20"); av("v_bfe_u32 v23, v17, 4, 1"); av("v_lshl_add_u32 v22, v23, 5, v22")
    av("v_lshrrev_b32 v21, 5, v17"); av("v_lshl_add_u32 v22, v21, 4, v22")
    parkv("vout", 22)
    av("v_lshlrev_b32 v22, 10, v23"); av("v_lshl_add_u32 v22, v21, 8, v22"); av("v_lshl_add_u32 v26, v20, 4, v22")
    av("v_bfe_u32 v22, v17, 2, 2"); av("v_lshlrev_b32 v22, 8, v22"); av("v_lshrrev_b32 v23, 4, v17"); av("v_lshl_add_u32 v22, v23, 6, v22")
    av("v_and_b32 v23, 3, v17"); av("v_lshl_add_u32 v22, v23, 1, v22"); av("v_add_u32 v22, 1024, v22")
    a("s_cmp_ge_u32 s32, 2"); a("s_cselect_b64 vcc, -1, 0"); a("s_cselect_b32 s71, 16, 2")
    av("v_cndmask_b32 v22, v15, v22, vcc")
    av("s_lshl_b32 s3, s35, 3"); av("s_add_u32 s3, s3, %d" % EX); av("v_add_u32 v22, s3, v22")
    parkv("vhx", 22)
    av.flush()
    AL = P.get("alt_light", 1)
    if not AL:
        a("v_lshlrev_b32 v24, 8, v17"); a("v_add_u32 v25, 16384, v24")
        a("s_lshr_b32 s7, s2, 3"); a("s_lshl1_add_u32 s7, s7, s32"); a("s_lshl_b32 s7, s7, 15")
        a("s_lshl_b32 s52, s%d, 7" % SP); a("s_add_u32 s7, s7, s52")
        a("s_mov_b64 s[4:5], s[%d:%d]" % (PWO, PWO + 1)); a("s_mov_b32 s6, %d" % (1024 * 2048 if not P.get("nowot") else 0))
        a("s_cmp_lt_u32 s32, 2"); a("s_cbranch_scc1 L_alt")
        a("v_lshlrev_b32 v24, 7, v17"); a("v_add_u32 v25, 8192, v24")
        a("s_lshl_b32 s7, s2, 14")
        a("s_mov_b64 s[4:5], s[%d:%d]" % (PX, PX + 1)); a("s_mov_b32 s6, %d" % (2048 * 2048 if not P.get("noxt") else 0))
    else:
        a("v_lshlrev_b32 v22, 7, v17"); a("v_cmp_gt_u32 vcc, 32, v17"); a("v_mov_b32 v21, %d" % OOB)
        a("s_lshl_b32 s7, s2, 13")
        if AL == 1: a("v_cndmask_b32 v24, v21, v22, vcc"); a("v_cndmask_b32 v25, v22, v21, vcc")
        else: a("v_mov_b32 v24, v22"); a("v_mov_b32 v25, v21")
        a("s_mov_b64 s[4:5], s[%d:%d]" % (PWO, PWO + 1)); a("s_mov_b32 s6, %d" % (1024 * 2048))
        a("s_cmp_eq_u32 s32, 0"); a("s_cbranch_scc1 L_alt")
        a("s_lshl1_add_u32 s7, s2, s35"); a("s_lshl_b32 s7, s7, 13")
        a("s_mov_b64 s[4:5], s[%d:%d]" % (PX, PX + 1)); a("s_mov_b32 s6, %d" % (2048 * 2048))
    a.label("L_alt")
    a("s_cmp_eq_u32 s32, 3"); a("s_cselect_b32 s47, 99, %d" % (13 if not P.get("ab_noalt") else 64))
    a("v_xor_b32 v17, 0x80, v16"); a("v_add_u32 v17, %d, v17" % 7168)
    a("v_add_u32 v18, %d, v16" % 14336); a("v_add_u32 v19, %d, v17" % 14336)
    a("v_bfe_u32 v20, v15, 2, 7")
    vwait("xs")
    if WF: a("s_barrier")
    a("v_add_u32 v7, 0x%x, v7" % NONCE_ADD)
    FL = P.get("fline", 3)
    V("f", "buffer_store_dword v7, v%d, s[84:87], s92 offen %s" % (20 if FL & 1 else 6, SC))
    a("v_readfirstlane_b32 s96, v7")
    if TH == 2:
        a("s_mov_b32 exec_lo, 0")
        V("t", "buffer_load_dword v29, v253, s[88:91], s94 offen")
        a("s_mov_b32 exec_lo, -1")
        for o in ["s_add_u32 s94, s94, s95", "s_cmp_ge_u32 s94, s90", "s_cselect_b32 s3, s90, 0", "s_sub_u32 s94, s94, s3"]: a(o)
        if P.get("t2pos", 1) == 0:
            a("s_mov_b32 exec_hi, 0")
            V("t", "buffer_load_dword v29, v253, s[88:91], s94 offen")
            a("s_mov_b32 exec_hi, -1")
    stamp()
    p0 = ("p", "buffer_load_dword v255, v254, s[84:87], 0 offen %s" % P.get("pollfl", SC))
    q1 = (tau_ops() + wdma_ops("W0") if W0POS == 1 else []) + ["s_mov_b32 s36, 1", "s_mov_b32 s37, %d" % SLOT] + tau_ops() + (wdma_ops("W") if not P.get("peel0", 0) else [])
    W1POS = P.get("w1pos", 0)
    PB4 = P.get("poll_before", 5)
    if PB4:
        idx = [k for k, o in enumerate(q1) if isinstance(o, tuple)][-PB4]
        if q1[idx - 1].startswith("s_add_u32 m0") if isinstance(q1[idx - 1], str) else False: idx -= 1
        q1.insert(idx, p0)
    az = Weave(P.get("w1_every", 5), q1 if W1POS == 0 else [])
    for r in range(32, 254, 2): az("v_mov_b64 %s, 0" % vr(r, 2))
    az.flush()
    if not PB4 and not P.get("poll_late"): E(p0)
    a("s_lshl_b32 s72, s%d, 19" % SMT); a("s_add_u32 s72, s72, s51"); a("s_bfe_u32 s3, s2, 0x10002"); a("s_add_u32 s3, s3, s32")
    a("s_lshl_b32 s3, s3, 16"); a("s_add_u32 s72, s72, s3")
    a("s_lshl_b32 s56, s32, 12"); a("s_add_u32 s56, s56, %d" % R2)
    a("s_lshl_b32 s48, s33, 1"); a("s_lshr_b32 s3, s32, 1"); a("s_add_u32 s48, s48, s3"); a("s_mul_i32 s48, s48, %d" % ACT_MT)
    a("s_lshl_b32 s3, s35, 12"); a("s_add_u32 s48, s48, s3")
    a("s_mul_i32 s73, s34, 7"); a("s_lshr_b32 s73, s73, 1"); a("s_lshl_b32 s73, s73, 13"); a("s_add_u32 s73, s73, s48")
    a("s_lshl_b32 s3, s57, 9"); a("s_add_u32 s73, s73, s3")
    a("s_mul_i32 s74, s57, %d" % (8192 - 1024)); a("s_add_u32 s74, s74, 512"); a("s_add_u32 s74, s74, s73")
    a("s_add_u32 s75, s34, 112"); a("s_lshl_b32 s75, s75, 13"); a("s_add_u32 s75, s75, s48")
    a("s_lshl2_add_u32 s92, s33, s32"); a("s_lshl_b32 s92, s92, 7"); a("s_lshl2_add_u32 s92, s34, s92")
    FP = P.get("fpad", 1)
    a("s_add_u32 s35, s92, %d" % F1O)
    if FP: a("s_lshl_b32 s92, s92, 5")
    a("s_add_u32 s92, s92, %d" % (F1H if not FP else 131072))
    a("s_lshl2_add_u32 s58, s%d, s32" % SMT); a("s_lshl_b32 s58, s58, 7")
    a("s_add_u32 s59, s58, %d" % F1O)
    if FP: a("s_lshl_b32 s58, s58, 5")
    a("s_add_u32 s58, s58, %d" % (F1H if not FP else 131072))
    a("s_or_b32 s33, s33, s32")
    a("s_lshr_b32 s3, s32, 1"); a("s_lshl1_add_u32 s57, s%d, s3" % SMT); a("s_mul_i32 s57, s57, %d" % ACT_MT)
    a("s_and_b32 s3, s32, 1"); a("s_lshl_b32 s3, s3, 12"); a("s_add_u32 s57, s57, s3")
    a("s_mov_b32 s50, 0xbfb8aa3b"); a("s_mov_b32 s51, 0xbfb8aa3b"); a("s_mov_b32 s52, 1.0"); a("s_mov_b32 s53, 1.0")

    if P.get("poll_late"):
        for r in range(0, 100, 4): a("%s %s, v[48:51], v[48:51], 0" % (MF, ar(r, 4)))
        E(p0)
    stamp()
    if not P.get("ab_noln"): check_flags(255, 254, "0", "p", "L_f0")
    if P.get("halo_plain", 0) == 1: V("inv", "buffer_inv sc1")
    stamp()
    for o in xld_ops(0, "X0"): E(o)
    xlast = ["s_add_u32 s40, s80, 15", "s_and_b32 s40, s40, 15", "s_lshl_b32 s40, s40, 15", "s_add_u32 s40, s40, s60", "s_add_u32 s41, s40, 4096"] + xld_ops(2, "XL")[:8]
    if P.get("xl_pos", 0) == 0:
        for o in xlast: E(o)
    if W1POS == 1:
        for o in q1: E(o)
    a("v_mov_b64 v[254:255], 0")
    for r in (range(0, 100, 4) if not P.get("poll_late") else []): a("%s %s, v[48:51], v[48:51], 0" % (MF, ar(r, 4)))

    blocks = []
    for p in range(7): blocks += [("gu", p, 0), ("gu", p, 1)]
    blocks += [("q", s) for s in range(6)]
    def wreads(b, dst, ab=0):
        o = []
        for kh in range(2):
            for s2 in range(2):
                d = ar(dst(kh) + 2 * s2, 2)
                if b[0] == "gu":
                    o.append("ds_read_b64_tr_b16 %s, v%d offset:%d" % (d, ab + 1, b[2] * UP + (32 * kh + 16 * s2) * 224 + 32 * b[1]))
                elif b[0] == "q":
                    o.append("ds_read_b64_tr_b16 %s, v%d offset:%d" % (d, ab + 2 + b[1] % 2, (32 * kh + 16 * s2) * 192 + 64 * (b[1] // 2)))
                else:
                    o.append("ds_read_b64_tr_b16 %s, v%d offset:%d" % (d, ab + 4, (32 * kh + 16 * s2) * 192))
        return o
    def mfmas(b, ring, buf):
        o = []
        for m in range(4):
            for kh in range(2):
                w, x = ar(WR(ring, kh), 4), ar(XB(buf, m, kh), 4)
                c = vr(accGU(b[1], b[2], m), 4) if b[0] == "gu" else ar(accQ(b[1], m), 4)
                if b[0] == "q" and b[1] >= 4: w, x = x, w
                o.append("%s %s, %s, %s, %s" % (MF, c, w, x, c))
        return o
    def halo_mf(buf):
        return ["%s %s, %s, %s, %s" % (MF, ar(HACC, 4), ar(HW(kh), 4), ar(XB(buf, 4, kh), 4), ar(HACC, 4)) for kh in range(2)]

    vwait("X0")
    a("s_barrier")
    stamp()
    for bi in range(3):
        for o in wreads(blocks[bi], lambda kh: WR(bi % 4, kh)): a(o)
    if P.get("xl_pos", 0) == 1:
        for o in xlast: E(o)
    if P.get("xl_pos", 0) == 2:
        for o in ["s_add_u32 s48, s80, 15", "s_and_b32 s48, s48, 15", "s_lshl_b32 s48, s48, 15", "s_add_u32 s48, s48, s60"]: a(o)
    if P.get("t_early", 1) < 2 and P.get("t1pos", 4) >= 1:
        if P.get("t1pos") in (1, 2): V("t", "buffer_load_dword v29, v27, s[88:91], s94 offen %s" % P.get("t1fl", ""))
        if P.get("t1pos") in (1, 3): V("t", "buffer_load_dword v29, v28, s[88:91], s94 offen %s" % P.get("t1fl", ""))
        for o in ["s_add_u32 s94, s94, s95", "s_cmp_ge_u32 s94, s90", "s_cselect_b32 s3, s90, 0", "s_sub_u32 s94, s94, s3"]: a(o)
    if TH == 2:
        if P.get("t2pos", 1) == 1: V("t", "buffer_load_dword v29, v27, s[88:91], s94 offen")
        if P.get("t3pos", 0) == 0: V("t", "buffer_load_dword v29, v28, s[88:91], s94 offen")
        else: a("s_mov_b32 s48, s94")
        for o in ["s_add_u32 s94, s94, s95", "s_cmp_ge_u32 s94, s90", "s_cselect_b32 s3, s90, 0", "s_sub_u32 s94, s94, s3"]: a(o)
    LT = P.get("late_w2", 0)
    a("s_cmp_eq_u32 s32, 3"); a("s_cselect_b32 s95, %d, s95" % ((-(256 if LT else 128) * 2048) & 0xffffffff))
    a("s_cselect_b32 s49, -1, s90")
    if LT:
        a("s_cselect_b32 s3, %d, 0" % (6 * 128 * 2048)); a("s_cselect_b64 vcc, -1, 0"); a("s_add_u32 s94, s94, s3")
        a("v_lshlrev_b32 v20, 3, v15"); a("v_add_u32 v21, %d, v20" % (128 * 2048))
        a("v_cndmask_b32 v27, v27, v21, vcc"); a("v_cndmask_b32 v28, v28, v20, vcc")

    HRB, HMB = 9, 13
    def step(buf, misc, loop=None, spc=None):
        lg = Cnt([0] * 4 + [1] * 4 + [2] * 4)
        SPC, V0 = spc or P.get("vspace", 5.4), P.get("vstart", 5)
        place = {}
        nv = 0
        tgt = []
        for o in misc:
            if isinstance(o, tuple):
                g = int(V0 + nv * SPC) | 1
                if g // 8 >= HRB: g += 8
                tgt.append(g)
                if P.get("vweight", 0): nv += (1.55 if "s[16:19]" in o[1] else (1.1 if o[1].endswith("lds") else 0.77))
                else: nv += (P.get("xl_w", 0.4) if "s49" in o[1] else 1)
            else: tgt.append(None)
        nxt = None
        for k in range(len(misc) - 1, -1, -1):
            if tgt[k] is not None: nxt = tgt[k]
            elif nxt is not None:
                nxt -= 1; tgt[k] = nxt
        last = max(t for t in tgt if t is not None)
        for k in range(len(misc)):
            if tgt[k] is None:
                last += 1; tgt[k] = last
        for k in range(1, len(misc)):
            if tgt[k] < tgt[k - 1]: tgt[k] = tgt[k - 1]
        assert min(tgt) >= 0 and max(tgt) < 17 * 8, (min(tgt), max(tgt))
        for k, o in enumerate(misc): place.setdefault((tgt[k] // 8, tgt[k] % 8), []).append(o)
        for bi in range(20):
            mf = mfmas(blocks[bi], bi % 4, buf)
            fill = {}
            w = lg.need(bi)
            if w is not None: a("s_waitcnt lgkmcnt(%d)" % w)
            rd = []
            if bi <= 16: rd = [(bi + 3, o) for o in wreads(blocks[bi + 3], lambda kh: WR((bi + 3) % 4, kh))]; gaps = [0, 2, 4, 6]
            elif bi == 18:
                rd = [(100, o) for o in wreads(blocks[0], lambda kh: WR(0, kh))] + [(101, o) for o in wreads(blocks[1], lambda kh: WR(1, kh))]
                gaps = list(range(8))
            elif bi == 19: rd = [(102, o) for o in wreads(blocks[2], lambda kh: WR(2, kh))]; gaps = [0, 2, 4, 6]
            if bi == HRB and not P.get("ab_nohalo"):
                hr = [("H", o) for o in wreads(("h",), HW)]
                rd = [x for pr in zip(rd, hr) for x in pr]; gaps = list(range(8))
            for (tag, o), g in zip(rd, gaps if rd else []):
                fill.setdefault(g, []).append(o); lg.issue(tag)
            for g in range(8):
                for o in place.get((bi, g), []): fill.setdefault(g, []).append(o)
            if bi == HMB and not P.get("ab_nohalo"):
                assert lg.need("H") is None
                mf += halo_mf(buf)
            if bi == 17:
                for k, r in enumerate((1, 2, 3, 4)):
                    fill.setdefault(k + 1, []).append("v_add_u32 v%d, s93, v%d" % (r, r))
                fill.setdefault(7, []).append(lambda: (vwait("X", lg0=True), a("s_barrier")))
                lg.clear()
                if P.get("itrace"):
                    fill[7] += ["s_memtime s[98:99]", "s_add_u32 m0, s36, 30", "s_waitcnt lgkmcnt(0)", "v_writelane_b32 v31, s98, m0"]
            if bi == 19 and loop:
                fill.setdefault(5, []).append("s_cmp_lt_u32 s36, 15")
                fill.setdefault(7, []).append("s_cbranch_scc1 %s" % loop)
            for i, m in enumerate(mf):
                a(m)
                for o in fill.get(i, []):
                    if isinstance(o, tuple) and ((P.get("ab_g1x") and o[0] == "X") or (P.get("ab_g1w") and o[0] == "W") or (P.get("ab_g1q") and "s[16:19]" in o[1])):
                        vm.issue(o[0]); continue
                    if P.get("ab_g1d") and isinstance(o, str) and o.startswith("ds_read") and bi % 2 == 1: continue
                    if P.get("ab_g1b") and callable(o): vm.need("X"); continue
                    E(o)
    slot_ops = ["s_add_u32 s37, s37, s62", "s_cmp_eq_u32 s37, %d" % (3 * SLOT), "s_cselect_b32 s37, 0, s37",
                "s_cmp_eq_u32 s37, s62", "s_cselect_b32 s93, s63, s62"]
    def std_misc(buf):
        t = [("t", "buffer_load_dword v29, v%d, s[88:91], s94 offen %s" % (27 + buf, P.get("tfl", "")))] + (["s_add_u32 s94, s94, s95", "s_cmp_ge_u32 s94, s49", "s_cselect_b32 s3, s90, 0", "s_sub_u32 s94, s94, s3"] if buf else [])
        if buf: t += ["s_cmp_eq_u32 s36, s47", "s_cselect_b64 s[88:89], s[4:5], s[88:89]", "s_cselect_b32 s90, s6, s90", "s_cselect_b32 s94, s7, s94",
                      "s_cselect_b64 vcc, -1, 0", "v_cndmask_b32 v27, v27, v24, vcc", "v_cndmask_b32 v28, v28, v25, vcc"]
        xl = xld_ops(buf ^ 1, "X")
        if P.get("ab_nohalo"): xl = xl[:8]
        if P.get("xl_pos", 0) == 2:
            ex = [("X", o[1].replace("s40", "s49").replace("s41", "s49")) for o in xld_ops(2, "X")[4 * buf:4 * buf + 4]]
            pre = ["s_cmp_eq_u32 s36, 14", "s_cselect_b32 s49, s48, %d" % OOB] if buf == 0 else ["s_add_u32 s49, s49, 4096"]
            xl = xl + pre + ex
        return xoff_ops() + xl[:2] + ["s_add_u32 s36, s36, 1"] + tau_ops() + xl[2:4] + slot_ops[:3] + xl[4:6] + slot_ops[3:] + xl[6:] + wdma_ops("W") + t
    if P.get("peel0", 0):
        m0 = std_misc(0); m1 = std_misc(1)
        iw = lambda m: [k for k, o in enumerate(m) if isinstance(o, tuple) and o[0] == "W"]
        NH = P.get("peel_h", 6)
        k0 = iw(m0)[NH] - 1 if NH < 10 else iw(m0)[-1] + 1
        k1 = iw(m0)[-1] + 1
        rest = [(("X", o[1]) if isinstance(o, tuple) else o) for o in m0[k0:k1]]
        w1 = [(("X", o[1]) if isinstance(o, tuple) else o) for o in wdma_ops("W")]
        xl1 = xlast if P.get("xl_pos", 0) == 3 else []
        xl1 = [((o[0], o[1].replace("s40", "s48").replace("s41", "s49")) if isinstance(o, tuple) else o.replace("s40", "s48").replace("s41", "s49")) for o in xl1]
        nv = lambda m: sum(isinstance(o, tuple) for o in m)
        a0 = w1 + m0[:k0] + ([("t", "buffer_load_dword v29, v28, s[88:91], s48 offen")] if P.get("t3pos", 0) else []) + m0[k1:]
        a1 = rest + m1[:iw(m1)[-1] + 1] + xl1 + m1[iw(m1)[-1] + 1:]
        step(0, a0, spc=min(5.4, 112.0 / nv(a0)))
        step(1, a1, spc=min(5.4, 108.0 / nv(a1)))
    a(".p2align 6")
    for _ in range(P.get("loop_shift", 0)): a("s_nop 0")
    a.label("L_g1")
    vm.q = ["W"] * 10 + ["t"]
    step(0, std_misc(0))
    step(1, std_misc(1), loop="L_g1")
    assert vm.q == ["W"] * 10 + ["t"], vm.q
    stamp()

    for _ in range(P.get("tail_shift", 0)): a("s_nop 0")
    ND, NO = 14, 8
    NS = ND + NO
    VDW, VDO = 16, 30
    NRES = 5
    ROTD = P.get("rotd", 5)
    RREG = [4, 5, 6, 7, 36, 37, 55]
    ROTO = P.get("roto", 1)
    OLOC = {14: R2 + 32768, 15: R2 + 49152, 16: R2, 21: 0, 18: 16384, 17: 106496, 19: 122880, 20: 139264}
    FR = NS - NRES
    def wops(sg, force=False):
        if sg >= FR and not force: return []
        u = sg % 4
        o = []
        if sg < ND:
            if ROTD: o.append("s_lshl3_add_u32 s38, s%d, s%d" % (RREG[sg % 7], 44 + sg // 7))
            else: o.append("s_add_u32 s38, s%d, %d" % (44 + sg // 7, (sg % 7) * 131072))
            o.append("s_add_u32 m0, s56, %d" % (u * 16384))
            for q in range(4):
                o.append(("W%d" % sg, "buffer_load_dwordx4 v%d, s[8:11], s38 offen offset:%d lds" % (VDW + q, 1024 * q)))
        else:
            o.append("s_add_u32 m0, s56, %d" % ((OLOC[sg] - R2) & 0xffffffff))
            for q in range(4):
                if ROTO: o.append(lambda sg=sg, q=q: [a("s_bfe_u32 s38, s80, 0x%x" % (0x40000 + 4 * (sg - ND))), a("s_lshl_b32 s38, s38, 18"), a("s_add_u32 s38, s38, %d" % (15360 * q))])
                else: o.append("s_mov_b32 s38, %d" % ((sg - ND) * 262144 + 15360 * q))
                o.append(("W%d" % sg, "buffer_load_dwordx4 v%d, s[12:15], s38 offen offset:%d lds" % (VDO, 1024 * q)))
        return o
    QI = {(0, 0): 0, (1, 0): 1, (1, 1): 2, (0, 1): 3}
    accD = lambda m, b: 64 + QI[(m >> 1, b >> 2)] * 32 + ((m & 1) * 4 + (b & 3)) * 4
    accO = lambda m, b: 192 + (m * 4 + b) * 4
    VW, VWO, VX = 32, 20, 52
    NXB = 6
    NX0 = P.get("nx0", 2)
    XB2 = lambda sg, f: (lambda u: (u * 32 if u < 4 else 192 + (u - 4) * 32) + f * 4)(sg % NXB)
    WR2 = lambda b, kh: 128 + b * 8 + kh * 4
    def xops(sg):
        if sg >= NS: return []
        o = []
        if sg < ND:
            o.append("s_add_u32 s39, s%d, %s" % (60 if sg < NX0 else 46 + sg // 7, ("s%d" % RREG[sg % 7]) if ROTD else str((sg % 7) * 16384)))
            for kh in range(2):
                for m in range(4):
                    o.append(("X%d" % sg, "buffer_load_dwordx4 %s, v%d, s[28:31], s39 offen offset:%d %s" % (ar(XB2(sg, kh * 4 + m), 4), VX + kh + 4 * (m >> 1), 1024 * (m & 1), XSC)))
        else:
            if ROTO: o.append(lambda sg=sg: [a("s_bfe_u32 s39, s80, 0x%x" % (0x40000 + 4 * (sg - ND))), a("s_lshl_b32 s39, s39, 15"), a("s_add_u32 s39, s39, s81")])
            else: o.append("s_add_u32 s39, s57, %d" % (112 * 8192 + (sg - ND) * 32768))
            for kq in range(4):
                for m in range(2):
                    o.append(("X%d" % sg, "buffer_load_dwordx4 %s, v%d, s[28:31], s39 offen offset:%d %s" % (ar(XB2(sg, kq * 2 + m), 4), VX + kq, 1024 * m, XSC)))
        return o
    def wreads2(sg, b, rb=None):
        if rb is None: rb = b
        o = []
        u = sg % 4
        for kh in range(2):
            for s2 in range(2):
                if sg < ND: v, off = VW + b, u * 16384 + (32 * kh + 16 * s2) * 256
                else:
                    L = OLOC[sg]
                    vb, base = (40, 0) if L < R2 else ((VWO, R2) if L < 106496 else (44, 106496))
                    v, off = vb + b % 4, L - base + (64 * (b // 4) + 32 * kh + 16 * s2) * 128
                o.append("ds_read_b64_tr_b16 %s, v%d offset:%d" % (ar(WR2(rb, kh) + 2 * s2, 2), v, off))
        return o
    def mfmas2(sg, b, rb):
        o = []
        for m in ((2, 3, 0, 1) if sg < ND else (0, 1)):
            for kh in range(2):
                if sg < ND: c, x = accD(m, b), XB2(sg, kh * 4 + m)
                else: c, x = accO(m, b % 4), XB2(sg, (2 * (b // 4) + kh) * 2 + m)
                z = (sg == 0 and kh == 0) or (sg == ND and b < 4 and kh == 0)
                o.append("%s %s, %s, %s, %s" % (MF, vr(c, 4), ar(WR2(rb, kh), 4), ar(x, 4), "0" if z else vr(c, 4)))
        return o
    order = [(0, 0), (1, 0), (2, 0), (3, 0), (0, 1), (1, 1), (2, 1), (3, 1)]
    for b in range(4, 20): order += [(b, 0), (b, 1)]
    NPOS = len(order)
    done_pos = {b: max(i for i, (bb, s) in enumerate(order) if bb == b) for b in range(20)}
    AB2 = 7
    R0, R1, R2_ = accGU(0, 1, 0), accGU(2, 1, 0), accGU(4, 1, 0)
    Qf = lambda m: R0 + 12 + 4 * m
    Kf = lambda m: R0 + 28 + 4 * (m + 1)
    VV = lambda f, m: R1 + 10 * f + 2 * (m + 1)
    Pf = lambda m: R1 + 20 + 4 * m
    Sp = lambda m: R2_ + 8 * m
    Sc = lambda m: R2_ + 8 * m + 4
    TT = lambda m: R2_ + 32 + 4 * m
    def cvt_acc(dst, src, t):
        return ["v_accvgpr_read_b32 v%d, a%d" % (t + r, src + r) for r in range(4)] + \
               ["v_cvt_pk_bf16_f32 v%d, v%d, v%d" % (dst, t, t + 1), "v_cvt_pk_bf16_f32 v%d, v%d, v%d" % (dst + 1, t + 2, t + 3)]
    masks = ["v_lshrrev_b32 v13, 4, v15", "v_and_b32 v14, 15, v13", "v_and_b32 v27, 1, v13", "v_lshrrev_b32 v20, 4, v13", "v_lshl_add_u32 v20, v20, 2, v27",
             "v_cmp_le_u32 s[40:41], v20, v14", "v_add_u32 v20, 2, v20", "v_cmp_le_u32 s[42:43], v20, v14", "v_cmp_ne_u32 s[62:63], 0, v27",
             "v_lshlrev_b32 v27, 4, v27", "s_cmp_eq_u32 s33, 0", "s_cselect_b64 s[88:89], -1, 0", "s_andn2_b64 s[90:91], s[88:89], s[42:43]",
             "s_andn2_b64 s[88:89], s[88:89], s[40:41]", "s_mov_b32 s48, 0x3e3504f3", "s_mov_b32 s49, 0x3fb8aa3b",
             "s_lshl_b32 s3, s32, 11", "s_add_u32 s3, s3, %d" % EX, "v_add_u32 v25, s3, v15", unp("vhx", 24),
             "v_lshlrev_b32 v14, %d, v14" % (7 if FP else 2), "v_and_b32 v13, 31, v13", "v_lshlrev_b32 v13, 2, v13",
             "s_and_b32 s3, s2, 7", "s_xor_b32 s61, s3, %d" % P.get("g0", 1), "s_xor_b32 s3, s61, 1",
             "s_mul_i32 s44, s61, %d" % (7 * 131072), "s_mul_i32 s45, s3, %d" % (7 * 131072),
             "s_mul_i32 s46, s61, %d" % (7 * 16384), "s_add_u32 s46, s46, s57", "s_mul_i32 s47, s3, %d" % (7 * 16384), "s_add_u32 s47, s47, s57",
             "s_mov_b32 s60, s46", "s_lshl_b32 s61, s61, 9", "s_add_u32 s34, s61, s58", "s_lshl_b32 s3, s3, 9", "s_add_u32 s58, s58, s3", "v_and_b32 v5, 384, v14"]
    if ROTD >= 5:
        def perm(r):
            p = list(range(7))
            if ROTD == 5:
                for c in range(r, 6, 4): p[c], p[c + 1] = p[c + 1], p[c]
            else:
                for c in range(r, 5, 4): p[c], p[c + 1], p[c + 2] = p[c + 2], p[c], p[c + 1]
                if r == 3: p[0], p[1] = p[1], p[0]
            if P.get("ab_hit"): p = [k % 2 for k in range(7)]
            return sum(v << (4 * k) for k, v in enumerate(p))
        masks += ["s_add_u32 s3, s%d, s%d" % (SMT, SNT), "s_mov_b32 s4, 0x%x" % perm(0), "s_mov_b32 s5, 0x%x" % perm(2), "s_bitcmp1_b32 s3, 0",
                  "s_cselect_b32 s4, 0x%x, s4" % perm(1), "s_cselect_b32 s5, 0x%x, s5" % perm(3), "s_bitcmp1_b32 s3, 1", "s_cselect_b32 s3, s5, s4"]
        for k in range(7):
            masks += ["s_bfe_u32 s%d, s3, 0x%x" % (RREG[k], 0x40000 + 4 * k), "s_lshl_b32 s%d, s%d, 14" % (RREG[k], RREG[k])]
        if ROTO:
            def perm8(r):
                p = list(range(8))
                for c in range(r, 7, 4): p[c], p[c + 1] = p[c + 1], p[c]
                if P.get("ab_hit") == 2: p = [k % 2 for k in range(8)]
                return sum(v << (4 * k) for k, v in enumerate(p))
            masks += ["s_add_u32 s3, s%d, s%d" % (SMT, SNT), "s_mov_b32 s80, 0x%x" % perm8(0), "s_mov_b32 s81, 0x%x" % perm8(2), "s_bitcmp1_b32 s3, 0",
                      "s_cselect_b32 s80, 0x%x, s80" % perm8(1), "s_cselect_b32 s81, 0x%x, s81" % perm8(3), "s_bitcmp1_b32 s3, 1", "s_cselect_b32 s80, s81, s80",
                      "s_add_u32 s81, s57, %d" % (112 * 8192)]
    elif ROTD >= 3:
        masks += ["s_add_u32 s3, s%d, s%d" % (SMT, SNT)]
        W1_ = {3: 4, 4: 2}[ROTD]
        for k in range(4):
            masks += ["s_add_u32 s%d, s3, %d" % (RREG[k], k), "s_and_b32 s%d, s%d, %d" % (RREG[k], RREG[k], W1_ - 1)]
            if k >= W1_: masks += ["s_add_u32 s%d, s%d, %d" % (RREG[k], RREG[k], W1_)]
            masks += ["s_lshl_b32 s%d, s%d, 14" % (RREG[k], RREG[k])]
        masks += ["s_mul_i32 s36, s3, 86", "s_lshr_b32 s36, s36, 8", "s_mul_i32 s36, s36, 3", "s_sub_u32 s3, s3, s36", "s_add_u32 s3, s3, 4", "s_lshl_b32 s36, s3, 14"]
        for k in (5, 6):
            masks += ["s_add_u32 s%d, s%d, 16384" % (RREG[k], RREG[k - 1]), "s_cmp_eq_u32 s%d, %d" % (RREG[k], 7 * 16384), "s_cselect_b32 s3, %d, 0" % (3 * 16384), "s_sub_u32 s%d, s%d, s3" % (RREG[k], RREG[k])]
    elif ROTD:
        if ROTD == 1: masks += ["s_and_b32 s3, s%d, 3" % SMT, "s_lshl1_add_u32 s3, s3, s%d" % SNT]
        else: masks += ["s_mov_b32 s3, s%d" % SNT]
        masks += ["s_cmp_ge_u32 s3, 7", "s_cselect_b32 s4, 7, 0", "s_sub_u32 s3, s3, s4", "s_lshl_b32 s4, s3, 14"]
        for k in range(1, 7):
            masks += ["s_add_u32 s%d, s%d, 16384" % (RREG[k], RREG[k - 1]), "s_cmp_eq_u32 s%d, %d" % (RREG[k], 7 * 16384), "s_cselect_b32 s%d, 0, s%d" % (RREG[k], RREG[k])]
    early = ["v_add_u32 v%d, s63, v%d" % (AB2 + r, r) for r in (1, 2, 3, 4)] + xoff_ops()[:2] + xld_ops(2, "X")[8:] + masks
    ctouch = []
    if P.get("ctouch2", 1):
        def getpc():
            a("s_getpc_b64 s[16:17]"); a.label("L_pc2")
        ctouch = [getpc, "s_mov_b32 s18, L_end-L_pc2", "s_bfe_u32 s3, s2, 0x30003", "s_lshl2_add_u32 s3, s3, s32", "s_lshl_b32 s3, s3, 11", "v_and_b32 v20, 0xf0, v15",
                  "v_lshl_add_u32 v20, v20, 3, s3", ("t", "buffer_load_dword v29, v20, s[16:19], 0 offen")]
        early = early[:4] + ctouch + early[4:]
    memq = ["s_mov_b64 s[8:9], s[%d:%d]" % (PD, PD + 1), "s_mov_b32 s10, %d" % (3584 * 2048)] + wops(0) + wops(1) + \
        ["s_mov_b64 s[12:13], s[%d:%d]" % (PWO, PWO + 1), "s_mov_b32 s14, %d" % (1024 * 2048)] + wops(19, True) + wops(20, True)
    stream = []
    def pkA(p): return [x for m in range(4) for h in (0, 2) for x in (
        "v_pk_mul_f32 %s, %s, %s" % (vr(accGU(p, 1, m) + h, 2), vr(accGU(p, 0, m) + h, 2), vr(accGU(p, 1, m) + h, 2)),)] + \
        ["v_pk_mul_f32 %s, %s, s[50:51]" % (vr(accGU(p, 0, m) + h, 2), vr(accGU(p, 0, m) + h, 2)) for m in range(4) for h in (0, 2)]
    def pkB(p): return ["v_pk_add_f32 %s, %s, s[52:53]" % (vr(accGU(p, 0, m) + h, 2), vr(accGU(p, 0, m) + h, 2)) for m in range(4) for h in (0, 2)]
    def pkC(p): return ["v_pk_mul_f32 %s, %s, %s" % (vr(accGU(p, 1, m) + h, 2), vr(accGU(p, 1, m) + h, 2), vr(accGU(p, 0, m) + h, 2)) for m in range(4) for h in (0, 2)]
    def fin(p):
        o = []
        sreg = 73 + (p & 1)
        for m in range(4):
            U = accGU(p, 1, m)
            D = accGU(p, 0, m & ~1) + 2 * (m & 1)
            o += ["v_cvt_pk_bf16_f32 v%d, v%d, v%d" % (D, U, U + 1), "v_cvt_pk_bf16_f32 v%d, v%d, v%d" % (D + 1, U + 2, U + 3)]
        for m in (0, 2):
            g0 = accGU(p, 0, m)
            o += ["v_permlane16_swap_b32 v%d, v%d" % (g0, g0 + 2), "v_permlane16_swap_b32 v%d, v%d" % (g0 + 1, g0 + 3)]
            o.append(("hs", "buffer_store_dwordx4 %s, v26, s[28:31], s%d offen offset:%d %s" % (vr(g0, 4), sreg, 1024 * m, SC)))
        o.append("s_add_u32 s%d, s%d, 8192" % (sreg, sreg))
        return o
    rdy = lambda b: (done_pos[b] + 1) * 8 + 7
    for p in range(8):
        burst = (pkC(p - 1) if p > 0 else []) + (pkA(p) if p < 7 else [])
        stream.append((rdy(2 * p + 1) if p < 7 else 0, burst, True))
        tr1 = ["v_exp_f32 v%d, v%d" % (accGU(p, 0, 0) + r, accGU(p, 0, 0) + r) for r in range(16)] if p < 7 else []
        f = fin(p - 1) if p > 0 else []
        if p > 0 and (p - 1) % 2 == 0 and p - 1 < 6: pass
        mix = []
        while tr1 or f:
            if f: mix.append(f.pop(0))
            if tr1: mix.append(tr1.pop(0))
        for o in mix: stream.append((0, [o], False))
        if p < 7:
            stream.append((0, pkB(p), True))
            for r in range(16): stream.append((0, ["v_rcp_f32 v%d, v%d" % (accGU(p, 0, 0) + r, accGU(p, 0, 0) + r)], False))
    stream.append((0, ["HDONE"], False))
    for s_, F in ((0, Qf), (1, Qf), (2, Kf), (3, Kf)):
        for m in (3, 2, 1, 0):
            for k, o in enumerate(cvt_acc(F(m) + 2 * (s_ & 1), accQ(s_, m), TT(m))):
                stream.append((rdy(14 + s_), [o], False))
    for m in (3, 2, 1, 0):
        for o in cvt_acc(VV(0, m), accQ(4, m), TT(m)): stream.append((rdy(18), [o], False))
    def hflag():
        vwait("hs")
        V("f", "buffer_store_dword v7, v%d, s[84:87], s92 offen %s" % (13 if FL & 2 else 6, SC))
    GL = P.get("gaplen", 20)
    MSP = P.get("mem_space", 5)
    HDLY = P.get("hflag_delay", 99)
    BP = P.get("bar_pos", 28)
    lg = Cnt([0] * 4 + [1] * 4 + [2] * 4)
    HR = {3: 0, 15: 1}; HM = {7: 0, 19: 2}
    isv = lambda o: isinstance(o, str) and (o.startswith("v_") or o.startswith("s_nop"))
    front = []
    lastmem = -99; hdone = None; hsent = False; est = 0
    w = lg.need(0); a("s_waitcnt lgkmcnt(%d)" % w)
    for pos, (bi, st_) in enumerate(order):
        mf = mfmas(blocks[bi], pos % 4, 2 * st_)
        if P.get("tstamp") and pos in (4, 8, 16, 24, 32): stamp()
        if pos % 4 == 0: sys.stderr.write("pos %d: stream left %d est %d\n" % (pos, len(stream), est))
        rd = []
        if pos + 3 < NPOS:
            b3, s3 = order[pos + 3]
            rd = [(pos + 3, o) for o in wreads(blocks[b3], lambda kh: WR((pos + 3) % 4, kh), AB2 * s3)]
        gaps = [0, 2, 4, 6]
        if pos in HR:
            hr = [("H", o) for o in wreads(("h",), HW, AB2 * HR[pos])]
            rd = [x for pr in zip(rd, hr) for x in pr]; gaps = list(range(8))
        rdat = dict(zip(gaps, rd))
        if pos in HM:
            assert lg.need("H") is None
            if HM[pos]: vwait("X")
            mf += halo_mf(HM[pos])
        for i, m in enumerate(mf):
            g = pos * 8 + i
            a(m)
            t = 4
            if i in rdat:
                a(rdat[i][1]); lg.issue(rdat[i][0]); t += 8
            if i == len(mf) - 1 and pos + 1 < NPOS:
                w = lg.need(pos + 1)
                if pos == 0:
                    vwait("W"); a("s_barrier")
                if pos == BP:
                    assert not memq and BP > done_pos[13]
                    a("s_barrier"); memq += wops(2) + wops(3) + wops(21, True)
                if w is not None: a("s_waitcnt lgkmcnt(%d)" % w); t += 4
            if early:
                while early and t < 16:
                    o = early.pop(0); E(o); t = (max(t, 8) if isv(o) else t) + cost(o)
            else:
                q = front if front else memq
                if q and not isinstance(q[0], tuple) and t <= 12 - 4 * bool(stream and stream[0][0] <= g):
                    E(q.pop(0)); t += 4
                elif q and isinstance(q[0], tuple) and t == 4 and g - lastmem >= (MSP if q is memq else P.get("st_space", 4)):
                    E(q.pop(0)); t += 8; lastmem = g
                if hdone is not None and not hsent and not front and g >= hdone + HDLY and t == 4:
                    hflag(); hsent = True; t += 12
                if g == P.get("tpoll_gap", 305):
                    V("p", "buffer_load_dword v12, v5, s[84:87], s34 offen %s" % SC); t += 8
                t = max(t, 8)
                def to_burst():
                    c = 0
                    for r_, ops, burst in stream[:4]:
                        if burst: return c if r_ <= g else None
                        if isv(ops[0]): c += cost(ops[0])
                    return None
                while stream and stream[0][0] <= g:
                    tb = to_burst() if P.get("bfix", 1) else None
                    if tb is not None and t + tb <= 28: pass
                    elif tb is not None and tb <= 16 and t >= 16: break
                    elif t >= GL - 3: break
                    r_, ops, burst = stream.pop(0)
                    if ops == ["HDONE"]: hdone = g; continue
                    if not isv(ops[0]): front.append(ops[0]); continue
                    for o in ops: E(o); t += cost(o)
                    if burst: t = max(t, 29 + 4 * len(ops))
            est += max(16, t)
    sys.stderr.write("tail: %d stream ops left after last MFMA, est %d, hdone %s hsent %s memq %d\n" % (len(stream), est, hdone, hsent, len(memq)))
    stamp()
    for o in front: E(o)
    a("s_nop 1")
    for r_, ops, burst in stream:
        for o in ops:
            if o != "HDONE": E(o)
    HPOS = P.get("hflag_pos", 0)
    if not hsent and HPOS == 0: hflag(); hsent = True
    M4 = range(4)
    a("s_nop 1")
    for m in (1, 2, 3):
        a("%s %s, %s, %s, 0" % (MF, vr(Sc(m), 4), vr(Kf(m), 4), vr(Qf(m), 4)))
        a("%s %s, %s, %s, 0" % (MF, vr(Sp(m), 4), vr(Kf(m - 1), 4), vr(Qf(m), 4)))
    a("%s %s, %s, %s, 0" % (MF, vr(Sc(0), 4), vr(Kf(0), 4), vr(Qf(0), 4)))
    for o in cvt_acc(2, HACC, 20): a(o)
    a("v_add_u32 v4, s71, v24"); a("v_add_u32 v10, s71, v4"); a("v_add_u32 v8, s71, v10")
    for o in cvt_acc(VV(1, 3), accQ(5, 3), TT(0)): a(o)
    a("ds_write_b16 v24, v2"); a("ds_write_b16_d16_hi v4, v2"); a("ds_write_b16 v10, v3"); a("ds_write_b16_d16_hi v8, v3")
    a("s_cmp_eq_u32 s32, 3")
    a("s_cbranch_scc1 L_noexp")
    a("ds_write_b128 v25, %s offset:2048" % vr(Kf(3), 4))
    a("ds_write_b64 v25, %s offset:3072" % vr(VV(0, 3), 2))
    a("ds_write_b64 v25, %s offset:3080" % vr(VV(1, 3), 2))
    a.label("L_noexp")
    if not hsent: hflag()
    PPOS = P.get("poll_pos", 9)
    poll1 = lambda: V("p", "buffer_load_dword v12, v5, s[84:87], s34 offen %s" % SC)
    if PPOS == 0: poll1()
    for m in (2, 1):
        for o in cvt_acc(VV(1, m), accQ(5, m), TT(m)): a(o)
    vwait("W0", lg0=True)
    a("s_barrier")
    a("ds_read_b128 %s, v25" % vr(Kf(-1), 4))
    a("ds_read_b64 %s, v25 offset:1024" % vr(VV(0, -1), 2))
    a("ds_read_b64 %s, v25 offset:1032" % vr(VV(1, -1), 2))
    for o in cvt_acc(VV(1, 0), accQ(5, 0), TT(0)): a(o)
    a("s_and_b32 s3, s2, 4"); a("s_lshl_b32 s3, s3, 9")
    a("v_add_u32 v%d, s3, v15" % VX)
    for q in range(1, 4): a("v_add_u32 v%d, %d, v%d" % (VX + q, 8192 * q, VX))
    for q in range(2): a("v_xor_b32 v%d, 0x800, v%d" % (VX + 4 + q, VX + q))
    a("v_mov_b32 v11, 0xce6e6b28")
    a("s_waitcnt lgkmcnt(0)")
    a("%s %s, %s, %s, 0" % (MF, vr(Sp(0), 4), vr(Kf(-1), 4), vr(Qf(0), 4)))
    stamp()
    if PPOS == 1: poll1()
    LATE = [17, 18]
    dq = list(memq)
    aw = Weave(P.get("dma_every", 10), dq)
    CKP = P.get("check_pos", 0)
    BLK = P.get("blocking", 0)
    def hcheck():
        if BLK:
            aw.flush()
            check_flags(12, 5, "s34", "p", "L_f1")
            stamp()
            dq.extend([o for sg in range(NX0) for o in xops(sg)])
            aw.n = P.get("x_every", 4)
            for _ in range(P.get("x_burst", 4)): aw.one()
            return
        vwait("p")
        a("v_cmp_ne_u32 vcc, s96, v12")
        a("s_nop 0")
        a("s_cmp_eq_u64 vcc, 0")
        a("s_cselect_b32 s60, s46, %s" % ("s46" if P.get("ab_nocheck") else str(OOB)))
        if P.get("force_late"): a("s_mov_b32 s60, %d" % OOB)
        stamp()
        dq.extend([o for sg in range(NX0) for o in xops(sg)])
        for _ in range(P.get("x_burst", 3)): aw.one()
    if CKP == 0: hcheck()
    if P.get("ab_nosm"):
        aw_real = aw
        class Skip:
            def __call__(self, t):
                if t in keep: a(t)
            def one(self): aw_real.one()
            def flush(self): aw_real.flush()
        keep = set()
        aw = Skip()
    A_ = lambda m: TT(m)
    B_ = lambda m: TT(m) + 1
    X_ = lambda m: TT(m) + 2
    Y_ = lambda m: TT(m) + 3
    MR = (3, 2, 1, 0)
    for m in MR:
        for S_ in (Sc, Sp):
            aw("v_cndmask_b32 v%d, v%d, v%d, s[62:63]" % (S_(m), S_(m), S_(m) + 1))
            aw("v_cndmask_b32 v%d, v%d, v%d, s[62:63]" % (S_(m) + 2, S_(m) + 2, S_(m) + 3))
    for m in MR:
        aw("v_cndmask_b32 v%d, v%d, v%d, s[40:41]" % (A_(m), Sp(m), Sc(m)))
        aw("v_cndmask_b32 v%d, v%d, v%d, s[42:43]" % (B_(m), Sp(m) + 2, Sc(m) + 2))
    if CKP == 1: hcheck()
    def rnd():
        for m in MR: aw("v_cvt_pk_bf16_f32 v%d, v%d, v%d" % (X_(m), A_(m), B_(m)))
        for m in MR:
            aw("v_lshlrev_b32 v%d, 16, v%d" % (A_(m), X_(m)))
            aw("v_and_b32 v%d, s54, v%d" % (B_(m), X_(m)))
    rnd()
    for m in MR: aw("v_pk_mul_f32 %s, %s, s[48:49] op_sel_hi:[1,0]" % (vr(A_(m), 2), vr(A_(m), 2)))
    rnd()
    aw("v_cndmask_b32 v%d, v%d, v11, s[88:89]" % (A_(0), A_(0)))
    aw("v_cndmask_b32 v%d, v%d, v11, s[90:91]" % (B_(0), B_(0)))
    if CKP == 2: hcheck()
    if PPOS == 2: poll1()
    fillq = [unp("vw", VW)] + ["v_xor_b32 v%d, %d, v%d" % (VW + b, 32 * b, VW) for b in range(1, 8)] + \
            [unp("vwo", VWO)] + ["v_xor_b32 v%d, %d, v%d" % (VWO + b, 32 * b, VWO) for b in range(1, 4)] + \
            ["v_subrev_u32 v%d, %d, v%d" % (40 + b, R2, VWO + b) for b in range(4)] + \
            ["v_add_u32 v%d, %d, v%d" % (44 + b, 106496 - R2, VWO + b) for b in range(4)] + \
            [unp("vout", 2)]
    if P.get("ab_nosm"): keep.update(fillq)
    def pad(n):
        for _ in range(n):
            aw(fillq.pop(0) if fillq else "s_nop 0")
    def reduce(op):
        for m in MR: aw("%s v%d, v%d, v%d" % (op, X_(m), A_(m), B_(m)))
        for sw in ("v_permlane16_swap_b32", "v_permlane32_swap_b32"):
            for m in MR: aw("v_mov_b32 v%d, v%d" % (Y_(m), X_(m)))
            pad(2)
            for m in MR: aw("%s v%d, v%d" % (sw, X_(m), Y_(m)))
            pad(1)
            for m in MR: aw("%s v%d, v%d, v%d" % (op, X_(m), X_(m), Y_(m)))
    reduce("v_max_f32")
    if CKP == 3: hcheck()
    if PPOS == 3: poll1()
    for m in MR: aw("v_pk_add_f32 %s, %s, %s op_sel_hi:[1,0] neg_lo:[0,1] neg_hi:[0,1]" % (vr(A_(m), 2), vr(A_(m), 2), vr(X_(m), 2)))
    for m in MR: aw("v_pk_mul_f32 %s, %s, s[48:49] op_sel:[0,1]" % (vr(A_(m), 2), vr(A_(m), 2)))
    for m in MR:
        aw("v_exp_f32 v%d, v%d" % (A_(m), A_(m)))
        aw("v_exp_f32 v%d, v%d" % (B_(m), B_(m)))
    pad(1)
    reduce("v_add_f32")
    if CKP == 4: hcheck()
    if PPOS == 4: poll1()
    for m in MR: aw("v_rcp_f32 v%d, v%d" % (X_(m), X_(m)))
    pad(1)
    for m in MR: aw("v_pk_mul_f32 %s, %s, %s op_sel_hi:[1,0]" % (vr(A_(m), 2), vr(A_(m), 2), vr(X_(m), 2)))
    for m in MR: aw("v_cvt_pk_bf16_f32 v%d, v%d, v%d" % (X_(m), A_(m), B_(m)))
    for m in MR:
        aw("v_and_b32 v%d, 0xffff, v%d" % (A_(m), X_(m)))
        aw("v_lshrrev_b32 v%d, 16, v%d" % (B_(m), X_(m)))
    for m in MR:
        aw("v_lshlrev_b32 v%d, v27, v%d" % (A_(m), A_(m)))
        aw("v_lshlrev_b32 v%d, v27, v%d" % (B_(m), B_(m)))
    for m in MR:
        aw("v_cndmask_b32 v%d, v%d, 0, s[40:41]" % (Pf(m), A_(m)))
        aw("v_cndmask_b32 v%d, v%d, 0, s[42:43]" % (Pf(m) + 1, B_(m)))
        aw("v_cndmask_b32 v%d, 0, v%d, s[40:41]" % (Pf(m) + 2, A_(m)))
        aw("v_cndmask_b32 v%d, 0, v%d, s[42:43]" % (Pf(m) + 3, B_(m)))
    pad(max(2, len(fillq)))
    if CKP == 5: hcheck()
    sys.stderr.write("DMA queue left after softmax: %d\n" % len(dq))
    for m in MR:
        a("%s %s, %s, %s, 0" % (MF, vr(Sp(m), 4), vr(VV(0, m - 1), 4), vr(Pf(m), 4)))
        a("%s %s, %s, %s, 0" % (MF, vr(Sc(m), 4), vr(VV(1, m - 1), 4), vr(Pf(m), 4)))
    stamp()

    for _ in range(P.get("g2_shift", 0)): a("s_nop 0")
    lg = Cnt()
    for b in range(4):
        for o in wreads2(0, b): a(o); lg.issue((0, b))
    for m in M4:
        for h in range(4):
            a("v_cvt_pk_bf16_f32 v%d, v%d, v%d" % (240 + 4 * m + h, Sp(m) + 2 * h, Sp(m) + 2 * h + 1))
    aw.flush()
    if not BLK:
        vwait(*[t for t in vm.q if not t.startswith("X")])
        sv = list(vm.q)
        a("s_cmp_eq_u32 s60, s46")
        a("s_cbranch_scc1 L_early")
        a("s_mov_b32 s60, s46")
        poll1()
        check_flags(12, 5, "s34", "p", "L_f1")
        for sg in range(NX0):
            for o in xops(sg): E(o)
        assert vm.q == sv, (vm.q, sv)
        a.label("L_early")
    ostores = [("os", "buffer_store_dwordx4 %s, v15, s[28:31], s75 offen offset:%d %s" % (vr(240 + 4 * m, 4), 1024 * m, SC)) for m in M4]

    srd(a, 16, PX, 0, 2048 * 2048)
    srd(a, 20, PWS, PART_OFF, PART_BYTES)
    srd(a, 24, POUT, 0, 2048 * 2048)
    a("s_add_u32 s73, s72, 32768")
    a("s_lshl2_add_u32 s74, s2, s32"); F2S = P.get("f2shift", 2); a("s_lshl_b32 s88, s74, %d" % F2S); a("s_add_u32 s88, s88, %d" % F2)
    a("s_lshl_b32 s74, s74, 14")
    a("v_and_b32 v14, 0x30, v15"); a("v_max_u32 v14, 16, v14"); a("v_lshlrev_b32 v14, %d, v14" % (F2S - 1)); a("v_xor_b32 v14, s88, v14")
    a("s_add_u32 s89, s88, %d" % (1024 << F2S)); a("s_mov_b32 s94, %d" % (1024 << F2S))
    a("s_mov_b32 s92, s35")
    vwait("X0")
    stamp()

    AH = P.get("ahead", 1)
    Hs = [(sg, c) for sg in range(ND - AH) for c in (0, 1)] + [(sg, 0) for sg in range(ND - AH, ND)] + [(sg, 1) for sg in range(ND - AH, ND)] + \
         [(sg, c) for sg in range(ND, NS) for c in (0, 1)]
    lastuse = {sg: max(i for i, h in enumerate(Hs) if h[0] == sg) // 2 for sg in range(NS)}
    firstuse = {sg: min(i for i, h in enumerate(Hs) if h[0] == sg) // 2 for sg in range(NS)}
    wsched = {}
    for w in range(4, FR):
        wsched.setdefault(lastuse[w - 4], []).append(w)
        assert lastuse[w - 4] < firstuse[w] - 1 or w >= ND, (w, lastuse[w - 4], firstuse[w])
        assert lastuse[w - 4] < firstuse[w] - 1
    LASTBAR = FR - 2
    q01 = max(i for i, h in enumerate(Hs) if h[0] < ND and h[1] == 0)
    isV = lambda x: isinstance(x, tuple)
    isval = lambda x: isinstance(x, str) and x.startswith("v_")
    def stage(sg, h1=(), h2=(), pre=None, valu=None):
        last = sg == NS - 1
        if P.get("sstamp") and sg >= 1: stamp()
        if pre: pre()
        NG = 64 if sg < ND else 32
        H = NG // 2
        h1 = list(h1); h2 = [o for w in wsched.get(sg, []) for o in wops(w)] + list(h2)
        drop = lambda o: isinstance(o, tuple) and ((P.get("ab_dx") and o[0].startswith("X") and sg >= P["ab_dx"]) or (P.get("ab_dw") and o[0].startswith("W")) or (P.get("ab_dos") and o[0] in ("os", "e", "R")))
        h1 = [o for o in h1 if not drop(o)]; h2 = [o for o in h2 if not drop(o)]
        blk = lambda k, b: (Hs[2 * k + b // 4][0], 4 * Hs[2 * k + b // 4][1] + b % 4)
        r1 = [((sg, b), o) for b in range(4, 8) for o in wreads2(*blk(sg, b), b)]
        r2 = [] if last else [((sg + 1, b), o) for b in range(4) for o in wreads2(*blk(sg + 1, b), b)]
        bar = sg <= LASTBAR
        plan = {g: [] for g in range(NG)}
        load = {g: 4 for g in range(NG)}
        WG_ = {H // 2 - 1: (sg, 3), NG - 1: (sg + 1, 1)}
        if not bar: WG_.update({H - 1: (sg, 5), 3 * H // 2 - 1: (sg, 7)})
        for g in WG_: load[g] += 4
        if bar: load[H - 1] += 8
        def place(lo, hi, rds, rhi, h):
            n = len(rds)
            for k in range(n):
                g = lo + k * (rhi - lo + 1) // n
                plan[g].append(("r",) + rds[k]); load[g] += 8
            nv = sum(isV(x) for x in h)
            pos = [None] * len(h); vi = 0; prev = lo
            for k, x in enumerate(h):
                if isV(x):
                    t = lo + int((vi + 0.5) * (hi - lo + 1) / nv); vi += 1
                    c = sorted(range(max(prev, t - 1), min(hi, t + 1) + 1), key=lambda g: (load[g], abs(g - t))) or [hi]
                    pos[k] = prev = c[0]; load[c[0]] += 8
            prev = lo
            for k, x in enumerate(h):
                if pos[k] is None:
                    nxt = next((pos[j] for j in range(k + 1, len(h)) if pos[j] is not None), hi)
                    if isval(x) and nxt > prev: nxt -= 1
                    c = [g for g in range(prev, nxt + 1) if load[g] <= 12]
                    g = c[0] if c else min(range(prev, max(prev, nxt) + 1), key=lambda g: load[g])
                    pos[k] = g; load[g] = max(load[g], 8 if isval(x) else 0) + 4
                pos[k] = max(pos[k], prev); prev = pos[k]
                plan[pos[k]].append(("o", x))
        place(0, H - 1, r1, (H - 7 if NG == 64 else H - 4) if bar else H - 1, h1)
        place(H, NG - 1, r2, NG - 1, h2)
        if valu:
            for k, x in enumerate(valu[0]): plan[valu[1] + k * (NG - valu[1]) // len(valu[0])].append(("o", x))
        sys.stderr.write("st%d:%d " % (sg, sum(max(16, v) for v in load.values())))
        g = 0
        for b in range(8):
            w = lg.need((sg, b))
            if w is not None: a("s_waitcnt lgkmcnt(%d)" % w)
            for mf in mfmas2(*blk(sg, b), b):
                a(mf)
                for x in plan[g]:
                    if x[0] == "r": a(x[2]); lg.issue(x[1])
                if g in WG_:
                    w = lg.need(WG_[g])
                    if w is not None: a("s_waitcnt lgkmcnt(%d)" % w)
                for x in plan[g]:
                    if x[0] != "r": E(x[1])
                if g == H - 1 and bar:
                    allw = ["W%d" % w for w in range(NS)] if sg == LASTBAR else []
                    vwait("W%d" % Hs[2 * sg + 2][0], "W%d" % Hs[2 * sg + 3][0], *allw, lg0=True)
                    a("s_barrier")
                    lg.clear()
                if g == H - 2: vwait("X%d" % Hs[2 * sg + 1][0])
                if g == NG - 2 and not last: vwait("X%d" % Hs[2 * sg + 2][0])
                g += 1
    def oflag():
        vwait("os")
        V("f", "buffer_store_dword v7, v6, s[84:87], s92 offen %s" % SC)
    EPV = 224
    eload = ["v_lshlrev_b32 v4, %d, v15" % (F0S - 2), "s_or_b32 s3, s2, s32", "s_cselect_b32 s3, %d, 0" % OOB] + \
          [("e", "buffer_load_dwordx4 %s, v4, s[84:87], s3 offen offset:%d %s" % (vr(EPV + 4 * k, 4), k << F0S, SC)) for k in range(4)]
    def epoch():
        a("s_or_b32 s3, s2, s32")
        a("s_cbranch_scc1 L_noep")
        a("s_mov_b32 s97, 0")
        a.label("L_ep")
        for k in range(0, 16, 4 if WF else 1): a("v_xor_b32 v%d, s96, v%d" % (EPV + k, EPV + k))
        for k in range(4 if WF else 1, 16, 4 if WF else 1): a("v_or_b32 v%d, v%d, v%d" % (EPV, EPV, EPV + k))
        a("v_cmp_ne_u32 vcc, 0, v%d" % EPV)
        a("s_cbranch_vccz L_epok")
        for k in range(4): a("buffer_load_dwordx4 %s, v4, s[84:87], 0 offen offset:%d %s" % (vr(EPV + 4 * k, 4), k << F0S, SC))
        a("s_add_u32 s97, s97, 1")
        a("s_waitcnt vmcnt(0)")
        a("s_cmp_lt_u32 s97, 0x80000")
        a("s_cbranch_scc1 L_ep")
        a.label("L_epok")
        a("s_mov_b32 s3, %d" % EPOCH)
        a("buffer_store_dword v7, v6, s[84:87], s3 offen %s" % SC)
        a.label("L_noep")

    PK, XU, XRES, TE = 64, 112, 240, 224
    KEEP = 160
    XUF = lambda o: 80 + (o // 16) * 32 + o % 16
    sends = []
    for hf in range(2):
        for qd in range(3):
            for k in (2 * hf, 2 * hf + 1):
                R = 64 + 32 * qd + 8 * k
                sends.append((["s_add_u32 s75, s74, %d" % (4096 * qd)] if k % 2 == 0 else []) +
                             [("v_cvt_pk_bf16_f32 v%d, v%d, v%d" % (R + r, R + 2 * r, R + 2 * r + 1)) for r in range(4)] +
                             [("S%d" % hf, "buffer_store_dwordx4 %s, v15, s[20:23], s75 offen offset:%d %s" % (vr(R, 4), 1024 * k, SC))])
    if P.get("send_order"): sends = sends[0:4] + sends[6:10] + sends[4:6] + sends[10:12]
    PKR = lambda qd, k: 64 + 32 * qd + 4 * k
    xres = [("R", "buffer_load_dwordx4 %s, v2, s[16:19], s%d offen offset:%d" % (vr(XRES + 4 * (2 * m + bp), 4), 72 + m, 64 * bp)) for m in range(2) for bp in range(2)]
    parts = ["s_xor_b32 s%d, s74, 0x%x" % (40 + qd, (dx << 16) + 4096 * qd) for qd, dx in enumerate((2, 6, 4))]
    for k in range(4):
        parts += [("P%d" % k, "buffer_load_dwordx4 %s, v15, s[20:23], s%d offen offset:%d %s" % (vr(PKR(qd, k), 4), 40 + qd, 1024 * k, SC)) for qd in range(3)]
    if P.get("ab_nosend"): sends = [[o for o in x if not isinstance(o, tuple)] for x in sends]
    if P.get("ab_noparts"): parts = parts[:3] + ["s_nop 0"] * 12
    SPA = P.get("send", [4, 2, 1, 1, 1, 1, 1, 1])
    NBB = P.get("nbb", 1)
    EXA, EXB = P.get("ex_a", [16, 17.5, 19]), P.get("ex_b", [18.5, 20.5, 22])
    XRS = P.get("xres_stage", 12)
    def take(n):
        r = [o for x in sends[:n] for o in x]; del sends[:n]; return r
    def sflag(hf):
        vwait("S%d" % hf)
        V("f", "buffer_store_dword v7, v%d, s[84:87], s%d offen %s" % (13 if (FL & 4 and F2S == 7) else 6, 88 + hf, SC))
    pollx = lambda hf: ("p%d" % hf, "buffer_load_dword v%d, v14, s[84:87], %s offen %s" % ((3, 12)[hf], ("0", "s94")[hf], SC))
    checkx = lambda hf: check_flags((3, 12)[hf], 14, ("0", "s94")[hf], "p%d" % hf, "L_f3%d" % hf)
    partx = lambda hf: parts[:9] if hf == 0 else parts[9:]
    def round4(R, T):
        return ["v_cvt_pk_bf16_f32 v%d, v%d, v%d" % (T, R, R + 1), "v_cvt_pk_bf16_f32 v%d, v%d, v%d" % (T + 1, R + 2, R + 3),
                "v_lshlrev_b32 v%d, 16, v%d" % (R, T), "v_and_b32 v%d, s54, v%d" % (R + 1, T),
                "v_lshlrev_b32 v%d, 16, v%d" % (R + 2, T + 1), "v_and_b32 v%d, s54, v%d" % (R + 3, T + 1)]
    xpart = [lambda: vwait("R"), "v_mov_b32 v8, 0x3f80", "v_mov_b32 v9, 1.0"]
    for g4 in range(4):
        R = XRES + 4 * g4
        xpart += ["v_permlane16_swap_b32 v%d, v%d" % (R, R + 2), "v_permlane16_swap_b32 v%d, v%d" % (R + 1, R + 3)]
    for m in range(2):
        for bp in range(2):
            for be in range(2):
                for h in range(2):
                    src = XRES + 4 * (2 * m + bp) + 2 * be + h
                    d = XUF((m * 4 + 2 * bp + be) * 4 + 2 * h)
                    xpart += ["v_lshlrev_b32 v%d, 16, v%d" % (d, src), "v_and_b32 v%d, s54, v%d" % (d + 1, src)]
    QD, QO, SW = P.get("qd", 7.75), P.get("qo", 5.5), P.get("sw", 1.5)
    xq = []
    for x in range(NX0, NS):
        o = xops(x); xq += [(x, o[:2])] + [(x, [y]) for y in o[2:]]
    fq = []
    for t in LATE:
        o = wops(t, True)
        fq += [(1, [o[0], o[1 + 2 * k], o[2 + 2 * k]]) for k in range(4)]
    fq += [(2, [y]) for y in xres]
    OS0 = P.get("os_half", 0)
    FMIN = P.get("fill_from", 10)
    alloc = {}; first = {}; carry = 0.0
    for hh in range(2 * NS):
        sg = hh // 2
        w = carry + (4 * len(wsched.get(sg, [])) if hh % 2 else 0)
        L = []
        if OS0 <= hh < OS0 + 4: L.append(ostores[hh - OS0]); w += SW
        k = hh - q01 - 1
        if 0 <= k < len(SPA): w += SW * SPA[k]
        q = QD if sg < ND else QO
        urgent = lambda: xq and firstuse[xq[0][0]] <= sg + P.get("xmin", 1)
        while w + 0.5 <= q or urgent():
            if fq and hh >= FMIN and hh % 2 == 0 and not any(o in L for _, f in fq[:0] for o in f) and P.get("fill_mix", 1) and not urgent() and sum(1 for o in L if isinstance(o, tuple) and not o[0].startswith("X")) < 2:
                c, o = fq.pop(0); L += o; w += c
            elif xq and (xq[0][0] < NXB or lastuse[xq[0][0] - NXB] < sg):
                x, o = xq.pop(0); first.setdefault(x, sg); L += o; w += 1
                assert firstuse[x] > sg, (x, sg)
            elif fq and hh >= FMIN:
                c, o = fq.pop(0); L += o; w += c
            else: break
        carry = w - q if abs(w - q) < 1 or w > q else 0.0
        alloc[hh] = L
        sys.stderr.write("%d:%d " % (hh, sum(isinstance(o, tuple) for o in L)))
    sys.stderr.write(" first %s\n" % first)
    assert not xq and not fq
    assert all(not (isinstance(o, tuple) and (o[0] == "R" or o[0][0] == "W")) for hh in range(2 * 13, 2 * NS) for o in alloc[hh])
    ck2, cko = first[7], first[ND]
    for sg in range(NS):
        h1, h2 = list(alloc[2 * sg]), list(alloc[2 * sg + 1])
        pre = []
        if sg == 1: h2 = h2 + eload
        if sg == (OS0 + 3) // 2 + 2: pre.append(oflag)
        if sg == ck2 - 2: h2 = h2 + [("p", "buffer_load_dword v12, v5, s[84:87], s58 offen %s" % SC)]
        if sg == ck2: pre += [lambda: check_flags(12, 5, "s58", "p", "L_f1b")]
        if sg == 4: pre += [lambda: vwait("e"), epoch]
        if sg == cko - 2: h2 = h2 + [("p", "buffer_load_dword v3, v13, s[84:87], s59 offen %s" % SC)]
        if sg == cko: pre.append(lambda: check_flags(3, 13, "s59", "p", "L_f2"))
        for hh, lst in ((2 * sg, h1), (2 * sg + 1, h2)):
            k = hh - q01 - 1
            t_ = take(SPA[k]) if 0 <= k < len(SPA) else []
            if P.get("send_first", 1): lst[:0] = t_
            else: lst += t_
        for hf, (f_, p_, c_) in enumerate((EXA, EXB)):
            if sg == p_: h2 = h2 + [pollx(hf)]
            if sg - 0.5 == p_: h1 = h1 + [pollx(hf)]
            if sg == f_: pre.append(lambda hf=hf: sflag(hf))
            if sg + 0.5 == f_: h2 = [lambda hf=hf: sflag(hf)] + h2
            if sg == c_:
                pre.append(lambda hf=hf: checkx(hf)); px = partx(hf); h1 = h1 + px[:-3]; h2 = px[-3:] + h2
        if sg == ND: stamp()
        wv = None
        if sg == P.get("xpart_stage", 20): wv = (xpart, 0)
        stage(sg, h1, h2, pre=(lambda pre=pre: [f() for f in pre]), valu=wv)
    sys.stderr.write("\n")
    assert not sends
    stamp()
    for hf, (f_, p_, c_) in enumerate((EXA, EXB)):
        if c_ == NS and not (hf == 1 and NBB):
            checkx(hf)
            for o in partx(hf): E(o)
    def nb_try():
        vwait("p1")
        a("v_cmp_ne_u32 vcc, s96, v12")
        a("s_nop 0")
        a("s_cmp_eq_u64 vcc, 0")
        a("s_cselect_b32 s46, 0, %d" % OOB)
        if P.get("force_late"): a("s_mov_b32 s46, %d" % OOB)
        for qd in range(3): a("s_add_u32 s%d, s%d, s46" % (43 + qd, 40 + qd))
        for t, o in partx(1):
            for qd in range(3): o = o.replace("s%d offen" % (40 + qd), "s%d offen" % (43 + qd))
            V(t, o)
    def nb_fix():
        a("s_cmp_eq_u32 s46, 0")
        a("s_cbranch_scc1 L_nbok")
        sv = list(vm.q)
        E(pollx(1)); checkx(1)
        for o in partx(1): E(o)
        a("s_waitcnt vmcnt(0)")
        vm.q = sv
        a.label("L_nbok")
    if NBB == 1: nb_try()
    def dots(k):
        vwait("P%d" % k)
        for qd in range(3):
            for r in range(8):
                a("v_dot2_f32_bf16 v%d, v%d, v%d, v%d" % (KEEP + 8 * k + r, PKR(qd, k) + r // 2, 8 + (r & 1), KEEP + 8 * k + r))
    MIM = P.get("mimic", "s")
    if "s" in MIM:
        a("s_nop 7")
        for k in range(8):
            for x in round4(accO(0, 0) + 4 * k, 48 + 2 * (k % 2)): a(x)
    if NBB == 2: nb_try()
    for m in range(2):
        if m == 1 and NBB: nb_fix()
        dots(2 * m); dots(2 * m + 1)
        o = 16 * m
        H8 = range(0, 16, 2)
        if "y" in MIM:
            for k in range(4):
                for x in round4(KEEP + o + 4 * k, 10 + 2 * (k % 2)): a(x)
        for h in H8: a("v_pk_mul_f32 %s, %s, s[50:51]" % (vr(TE + o + h, 2), vr(KEEP + o + h, 2)))
        for r in range(16): a("v_exp_f32 v%d, v%d" % (TE + o + r, TE + o + r))
        for h in H8: a("v_pk_mul_f32 %s, %s, %s" % (vr(KEEP + o + h, 2), vr(KEEP + o + h, 2), vr(accO(0, 0) + o + h, 2)))
        for h in H8: a("v_pk_add_f32 %s, %s, s[52:53]" % (vr(TE + o + h, 2), vr(TE + o + h, 2)))
        for bp in range(2):
            D = 32 + 4 * (2 * m + bp)
            offs = [o + (bp * 2 + be) * 4 for be in range(2)]
            for f in offs:
                for r in range(4): a("v_rcp_f32 v%d, v%d" % (TE + f + r, TE + f + r))
            for f in offs:
                for h in (0, 2): a("v_pk_fma_f32 %s, %s, %s, %s" % (vr(KEEP + f + h, 2), vr(KEEP + f + h, 2), vr(TE + f + h, 2), vr(XUF(f + h), 2)))
            for be, f in enumerate(offs):
                a("v_cvt_pk_bf16_f32 v%d, v%d, v%d" % (D + 2 * be, KEEP + f, KEEP + f + 1))
                a("v_cvt_pk_bf16_f32 v%d, v%d, v%d" % (D + 2 * be + 1, KEEP + f + 2, KEEP + f + 3))
            a("s_nop 0")
            a("v_permlane16_swap_b32 v%d, v%d" % (D, D + 2))
            a("v_permlane16_swap_b32 v%d, v%d" % (D + 1, D + 3))
            a("s_nop 0")
            V("out", "buffer_store_dwordx4 %s, v2, s[24:27], s%d offen offset:%d %s" % (vr(D, 4), 72 + m, 64 * bp, P.get("outfl", ["sc1", ""])[m]))
    if probe is not None:
        stamp(); a("s_waitcnt vmcnt(0)"); stamp()
        a.label("L_probe")
        a("s_memrealtime s[4:5]"); a("s_waitcnt lgkmcnt(0)"); a("s_sub_u32 s4, s4, s98"); a("s_cmp_lt_u32 s4, 10000"); a("s_cbranch_scc1 L_probe")
    if prof:
        stamp(); a("s_waitcnt vmcnt(0)"); stamp()
        srd(a, 8, PWS, STAMP_OFF, 65536)
        a("s_lshl_b32 s3, s2, 8")
        a("v_lshl_add_u32 v8, v0, 2, s3")
        a("v_cmp_gt_u32 vcc, 64, v0")
        a("s_and_b64 exec, exec, vcc")
        a("s_cbranch_execz L_end")
        a("buffer_store_dword v31, v8, s[8:11], 0 offen")
    a.label("L_end")
    a("s_endpgm")
    desc(a, name, 256 + NAGPR, 100, 256)
    hdr = open("recurrent_scan__sliding_local_dilated__swiglu_ffn__prompt.s.ref").read().split("; Override launch")[0]
    if P.get("aslist", 1):
        hdr += "; @launch kernel=%s grid=(256,1,1) block=(256,1,1) lds=%d\n" % (name, LDS_BYTES)
    else:
        hdr += "; @launch grid=(256,1,1) block=(256,1,1) lds=%d\n" % LDS_BYTES
    txt = a.text()
    if P.get("mfma_align"):
        txt = txt.replace("    v_mfma", "    .p2align 3\n    v_mfma")
    return hdr + txt

if __name__ == "__main__":
    P = json.loads(sys.argv[2]) if len(sys.argv) > 2 else {}
    open(sys.argv[1], "w").write(gen(P))
```

```python
import sys, json
sys.path.insert(0, "dev")
from gen_common import *

MAIN = "recurrent_scan__sliding_local_dilated__swiglu_ffn__prompt_kernel"
SLOT = 40960
GATE, UP, QKV = 0, 14336, 28672
EX = 155648
LDS_BYTES = 163840
LNX = EX
R2 = SLOT
F0, F1H, F1O, F2, EPOCH = 0, 32768, 40960, 262144, 65536
NONCE_ADD = 0x6A09E667
OOB = 0x40000000
SC = "sc1"
MF = "v_mfma_f32_16x16x32_bf16"

class Cnt:
    def __init__(self, init=(), cap=15):
        self.q = list(init); self.cap = cap
    def issue(self, tag): self.q.append(tag)
    def need(self, *tags):
        idx = [i for i, t in enumerate(self.q) if t in tags]
        if not idx: return None
        last = max(idx)
        n = len(self.q) - 1 - last
        self.q = self.q[last + 1:]
        return min(n, self.cap)
    def clear(self): self.q = []

def cost(o):
    s = o[1] if isinstance(o, tuple) else o
    if callable(s): return 4
    if s.startswith(("v_exp", "v_rcp", "buffer_", "v_permlane")): return 8
    return 4

def gen(P):
    a = Asm()
    name = MAIN
    prof, probe = P.get("prof"), P.get("probe")
    nst = [0]
    def stamp():
        if probe is not None:
            if nst[0] == probe:
                a("s_memrealtime s[98:99]"); a("s_waitcnt lgkmcnt(0)")
            nst[0] += 1
            return
        if not prof: return
        a("%s s[98:99]" % ("s_memtime" if prof == 2 else "s_memrealtime"))
        a("s_waitcnt lgkmcnt(0)")
        a("v_writelane_b32 v31, s98, %d" % nst[0])
        nst[0] += 1
    XSC = P.get("xsc", "sc1")
    ROT2 = P.get("g2_rot", 0)
    vm = Cnt(cap=63)
    def V(tag, s):
        vm.issue(tag)
        if s.endswith("lds") and a.lines[-1].strip().startswith("s_add_u32 m0"): a("s_nop 0")
        a(s)
    def E(o):
        if isinstance(o, tuple): V(*o)
        elif callable(o): o()
        else: a(o)
    def vwait(*tags, lg0=False):
        n = vm.need(*tags)
        parts = ([] if n is None else ["vmcnt(%d)" % n]) + (["lgkmcnt(0)"] if lg0 else [])
        if parts: a("s_waitcnt " + " ".join(parts))
    def check_flags(vreg, voff, soff, tag, label):
        vwait(tag)
        a("v_cmp_ne_u32 vcc, s96, v%d" % vreg)
        a("s_cbranch_vccz %s_ok" % label)
        a("s_mov_b32 s97, 0")
        a.label(label + "_spin")
        if P.get("spin_sleep", 1): a("s_sleep %d" % P.get("spin_sleep", 1))
        a("buffer_load_dword v%d, v%d, s[84:87], %s offen %s" % (vreg, voff, soff, P.get("pollfl", SC)))
        a("s_add_u32 s97, s97, 1")
        a("s_waitcnt vmcnt(0)")
        a("s_cmp_gt_u32 s97, 0x80000")
        a("s_cbranch_scc1 %s_ok" % label)
        a("v_cmp_ne_u32 vcc, s96, v%d" % vreg)
        a("s_cbranch_vccnz %s_spin" % label)
        a.label(label + "_ok")

    class Weave:
        def __init__(self, n, q, skip=0): self.n, self.c, self.q = n, -skip, q
        def __call__(self, t):
            a(t)
            if t.startswith("v_") and not t.startswith("v_mfma"):
                self.c += 1
                if self.c > 0 and self.c % self.n == 0: self.one()
        def one(self):
            while self.q:
                o = self.q.pop(0); E(o)
                if isinstance(o, tuple): break
        def flush(self):
            while self.q: self.one()

    accGU = lambda p, gu, m: 32 + ((p * 2 + gu) * 4 + m) * 4
    accQ = lambda s, m: (s * 4 + m) * 4
    HACC = 96
    XB = lambda buf, m, kh: (100 + buf * 40 + (m * 2 + kh) * 4) if buf < 2 else ((224 + (m * 2 + kh) * 4) if m < 4 else 172 + kh * 4)
    WR = lambda slot, kh: 180 + slot * 8 + kh * 4
    HW = lambda kh: 212 + kh * 4
    PARK = 220
    NAGPR = 256
    PX, PQKV, PWO, PG, PU, PD, POUT, PDBG, PWS = 64, 66, 68, 72, 74, 76, 78, 80, 82

    a.raw('.amdgcn_target "amdgcn-amd-amdhsa--gfx950"')
    kernel_header(a, name)
    a("s_cmp_ge_u32 s2, 256")
    a("s_cbranch_scc1 L_end")
    a("s_load_dwordx16 s[64:79], s[0:1], 0")
    a("s_load_dwordx4 s[80:83], s[0:1], 64")
    a("s_getpc_b64 s[4:5]")
    a.label("L_pc")
    a("v_and_b32 v17, 63, v0")
    a("s_mov_b32 s6, L_end-L_pc")
    a("s_mov_b32 s7, 0x20000")
    a("v_lshlrev_b32 v1, 7, v17")
    a("s_bfe_u32 s3, s2, 0x30003")
    a("s_lshl_b32 s3, s3, 13")
    V("c", "buffer_load_dword v29, v1, s[4:7], s3 offen")
    if prof: a("v_mov_b32 v31, 0")
    stamp()
    a("v_lshrrev_b32 v16, 6, v0")
    a("v_lshrrev_b32 v18, 3, v17")
    a("v_and_b32 v19, 7, v17")
    a("v_readfirstlane_b32 s32, v16")
    a("v_lshlrev_b32 v20, 11, v18")
    a("v_lshl_add_u32 v20, v16, 9, v20")
    a("v_lshl_add_u32 v20, v19, 4, v20")
    a("s_and_b32 s34, s2, 7")
    a("s_bfe_u32 s35, s2, 0x20003")
    a("s_lshl2_add_u32 s34, s34, s35")
    a("s_lshr_b32 s33, s2, 5")
    a("s_lshl_b32 s36, s33, 5")
    a("s_add_u32 s36, s36, s34")
    a("s_lshl_b32 s37, s36, 14")
    a("v_mov_b32 v6, 0")
    a("s_mov_b32 s50, %d" % (2048 * 2048))
    a("s_mov_b32 s51, 0x20000")
    a("s_waitcnt lgkmcnt(0)")
    a("s_mov_b64 s[48:49], s[%d:%d]" % (PX, PX + 1))
    LX = 32
    for u in range(4):
        V("x", "buffer_load_dwordx4 %s, v20, s[48:51], s37 offen offset:%d %s" % (vr(LX + 4 * u, 4), 128 * u, P.get("xfl", "")))
    srd(a, 84, PWS, FLAG_OFF, FLAG_BYTES)
    a("s_mov_b32 s3, %d" % EPOCH)
    V("ep", "buffer_load_dword v7, v6, s[84:87], s3 offen")
    if P.get("ftouch", 0):
        a("v_lshlrev_b32 v21, 17, v17")
        a("s_lshl2_add_u32 s3, s2, s32")
        a("s_lshl_b32 s3, s3, 7")
        V("t", "buffer_load_dword v29, v21, s[84:87], s3 offen %s" % P.get("ftfl", ""))
    stamp()
    if P.get("xrot", 1): a("s_and_b32 s80, s2, 7"); a("s_lshl_b32 s80, s80, 1")
    else: a("s_mov_b32 s80, 0")
    a("s_mov_b32 s81, s80")
    a("s_and_b32 s57, s34, 1")
    a("s_lshr_b32 s58, s34, 1")
    a("s_mul_i32 s58, s58, 448")
    a("s_cmp_eq_u32 s32, 1")
    a("s_cselect_b64 s[88:89], s[%d:%d], s[%d:%d]" % (PU, PU + 1, PG, PG + 1))
    a("s_cmp_eq_u32 s32, 3")
    a("s_cbranch_scc1 L_t3")
    XT = P.get("xtouch", 1)
    if not XT:
        a("s_mul_i32 s3, s57, 208")
        a("s_add_u32 s3, s3, s58")
        a("s_movk_i32 s92, 7168")
        a("s_movk_i32 s93, 118")
        a("s_cmp_eq_u32 s32, 2")
        a("s_cbranch_scc0 L_t01")
        a("s_mov_b64 s[88:89], s[%d:%d]" % (PQKV, PQKV + 1))
        a("s_lshl_b32 s3, s34, 6")
        a("s_movk_i32 s92, 6144")
        a("s_movk_i32 s93, 2048")
        a.label("L_t01")
        a("s_lshl_b32 s90, s92, 10")
        a("v_bfe_u32 v21, v17, 2, 3")
        a("v_and_b32 v22, 32, v17")
        a("v_lshl_add_u32 v21, v22, 1, v21")
        a("v_and_b32 v22, 3, v17")
        a("v_mul_u32_u24 v30, s92, v21")
        a("v_mul_u32_u24 v23, s93, v22")
        a("v_and_b32 v23, -4, v23")
        a("v_add3_u32 v30, v30, v23, s3")
        a("v_cmp_eq_u32 vcc, 3, v22")
        a("v_mov_b32 v23, %d" % OOB)
        a("s_lshl3_add_u32 s94, s80, s33")
        a("s_lshl_b32 s94, s94, 3")
        a("v_cndmask_b32 v30, v30, v23, vcc")
    else:
        a("s_and_b32 s93, s2, 7")
        a("s_mul_i32 s3, s93, 896")
        a("s_movk_i32 s92, 7168")
        a("v_lshl_add_u32 v23, v19, 7, s3")
        a("s_movk_i32 s95, 6")
        a("s_cmp_eq_u32 s32, 2")
        a("s_cbranch_scc0 L_t01")
        a("s_mov_b64 s[88:89], s[%d:%d]" % (PQKV, PQKV + 1))
        a("s_lshl_b32 s3, s93, 8")
        a("s_movk_i32 s92, 6144")
        a("v_and_b32 v22, 1, v17")
        a("v_lshl_add_u32 v23, v22, 7, s3")
        a("v_lshrrev_b32 v22, 1, v19")
        a("v_lshl_add_u32 v23, v22, 11, v23")
        a("s_movk_i32 s95, 5")
        a.label("L_t01")
        a("s_lshl_b32 s90, s92, 10")
        a("v_and_b32 v21, 1, v18")
        a("v_and_b32 v22, 32, v17")
        a("v_lshl_add_u32 v21, v22, 1, v21")
        a("v_mad_u32_u24 v30, v21, s92, v23")
        a("v_and_b32 v22, 23, v17")
        a("v_cmp_lt_u32 vcc, s95, v22")
        a("v_mov_b32 v23, %d" % OOB)
        a("s_lshr_b32 s94, s2, 3")
        a("s_lshl_b32 s3, s80, 5")
        a("s_add_u32 s94, s94, s3")
        a("s_lshl_b32 s94, s94, 1")
        a("v_cndmask_b32 v30, v30, v23, vcc")
    a("v_mov_b32 v25, %s" % ("v30" if not P.get("now1") else str(OOB)))
    if P.get("noearly"): a("v_mov_b32 v30, %d" % OOB)
    a("s_mul_i32 s94, s94, s92")
    a("s_lshl_b32 s95, s92, 7")
    a("s_branch L_td")
    a.label("L_t3")
    a("s_mov_b64 s[88:89], s[%d:%d]" % (PD, PD + 1))
    a("v_lshlrev_b32 v30, 7, v17")
    a("s_bfe_u32 s3, s2, 0x20001")
    a("s_add_u32 s3, s3, 1")
    a("s_mul_i32 s90, s3, %d" % (896 * 2048))
    a("s_lshr_b32 s94, s2, 3")
    a("s_lshl_b32 s94, s94, 13")
    a("s_add_u32 s94, s94, s90")
    a("s_sub_u32 s94, s94, %d" % (128 * 2048))
    a("s_mov_b32 s95, 0")
    if P.get("w2half", 1):
        a("s_and_b32 s3, s2, 1"); a("s_lshl_b32 s3, s3, 4"); a("v_and_b32 v21, 16, v17"); a("v_xor_b32 v21, s3, v21"); a("v_lshl_add_u32 v30, v21, 26, v30")
    a("v_mov_b32 v25, v30")
    a("v_mov_b32 v30, %d" % OOB)
    if P.get("now2"): a("v_mov_b32 v25, %d" % OOB)
    a.label("L_td")
    a("s_mov_b32 s91, 0x20000")
    TH = P.get("t_half", 0)
    if TH:
        a("s_mov_b32 exec_hi, 0")
        V("t", "buffer_load_dword v29, v30, s[88:91], s94 offen")
        a("s_mov_b32 exec_hi, -1")
    for k in range(P.get("t_early", 1) if not TH else 0):
        V("t", "buffer_load_dword v29, v30, s[88:91], s94 offen %s" % P.get("t0fl", ""))
        for o in ["s_add_u32 s94, s94, s95", "s_cmp_ge_u32 s94, s90", "s_cselect_b32 s3, s90, 0", "s_sub_u32 s94, s94, s3"]: a(o)
    if P.get("t_w2"):
        a("s_mov_b32 exec_hi, 0")
        V("t", "buffer_load_dword v29, v30, s[88:91], s94 offen")
        a("s_mov_b32 exec_hi, -1")
    a("v_lshlrev_b32 v21, 17, v16")
    a("v_lshrrev_b32 v22, 2, v19")
    a("v_lshl_add_u32 v21, v22, 10, v21")
    a("v_and_b32 v22, 3, v19")
    a("v_lshl_add_u32 v21, v22, 8, v21")
    a("v_lshl_add_u32 v28, v18, 4, v21")
    a("s_lshl_b32 s60, s33, 19")
    a("s_lshr_b32 s51, s34, 1")
    a("s_lshl_b32 s51, s51, 11")
    a("s_add_u32 s50, s60, s51")
    a("s_lshl_b32 s51, s57, 7")
    a("s_add_u32 s50, s50, s51")
    a("s_add_u32 s51, s50, 32768")
    a("s_add_u32 s52, s50, 65536")
    a("s_add_u32 s53, s50, 98304")
    a("v_lshlrev_b32 v26, 5, v18")
    a("v_add_u32 v26, %d, v26" % LNX)
    a("v_lshl_add_u32 v27, v16, 3, v26")
    a("s_mov_b64 s[24:25], s[%d:%d]" % (PWS, PWS + 1))
    a("s_add_u32 s26, s60, 0x80000")
    a("s_mov_b32 s27, 0x20000")
    a("s_mov_b32 s54, 0xffff0000")
    F0S = P.get("f0shift", 7)
    a("s_lshl_b32 s92, s36, %d" % F0S)
    WF = P.get("wgflag", 1)
    if WF: a("s_lshl_b32 s3, s32, 28"); a("s_add_u32 s92, s92, s3")
    else: a("s_lshl2_add_u32 s92, s32, s92")
    a("s_mov_b32 s3, 0x3f803f80")
    a("v_mov_b32 v116, s3")
    a("s_max_u32 s61, s33, 1")
    a("s_sub_u32 s61, s61, 1")
    a("s_lshl_b32 s59, s61, %d" % (5 + F0S))
    a("s_add_u32 s59, s59, %d" % (30 << F0S))
    a("s_lshl_b32 s3, s33, %d" % (5 + F0S))
    a("s_lshl_b32 s48, s32, %d" % (3 + F0S))
    a("s_add_u32 s3, s3, s48")
    a("v_and_b32 v21, %d, v17" % (0 if WF else 3))
    a("v_lshlrev_b32 v21, 2, v21")
    a("v_lshrrev_b32 v20, 2, v17")
    a("v_lshl_add_u32 v20, v20, %d, v21" % F0S)
    a("v_and_b32 v21, %d, v20" % ((1 << F0S) + 12))
    a("v_add_u32 v20, s3, v20")
    a("v_add_u32 v21, s59, v21")
    a("v_cmp_gt_u32 vcc, 32, v17")
    a("v_mov_b32 v22, %d" % OOB)
    a("v_lshlrev_b32 v15, 4, v17")
    a("v_cndmask_b32 v254, v21, v20, vcc")
    a("v_cndmask_b32 v121, v22, v25, vcc")
    a("v_cndmask_b32 v122, v25, v22, vcc")

    def g1_setup_w():
        def krow(dst, rho, t1):
            a("v_and_b32 v%d, 35, v%d" % (dst, rho))
            a("v_bfe_u32 v%d, v%d, 2, 2" % (t1, rho))
            a("v_lshl_or_b32 v%d, v%d, 3, v%d" % (dst, t1, dst))
            a("v_bfe_u32 v%d, v%d, 4, 1" % (t1, rho))
            a("v_lshl_or_b32 v%d, v%d, 2, v%d" % (dst, t1, dst))
        a("s_mul_i32 s56, s32, 192")
        a("s_lshl_b32 s59, s34, 6")
        a("s_movk_i32 s40, 4682")
        a("s_movk_i32 s41, 5462")
        a("s_movk_i32 s62, 7168")
        a("s_movk_i32 s63, 6144")
        a("s_mul_i32 s48, s57, 14")
        def gu_off(dst, imm):
            a("v_mul_u32_u24 v21, s40, v20")
            a("v_lshrrev_b32 v21, 16, v21")
            a("v_mul_u32_u24 v22, 14, v21")
            a("v_sub_u32 v22, v20, v22")
            a("v_add_u32 v22, s48, v22")
            a("v_lshrrev_b32 v23, 1, v22")
            a("v_xor_b32 v23, v23, v22")
            a("v_and_b32 v23, 1, v23")
            a("v_mul_u32_u24 v23, 3, v23")
            a("v_xor_b32 v22, v22, v23")
            krow(24, 21, 23)
            a("s_sub_u32 s3, s58, %d" % imm)
            a("v_lshl_add_u32 v22, v22, 4, s3")
            a("v_mad_u32_u24 v%d, v24, s62, v22" % dst)
        def qkv_off(dst, imm):
            a("v_mul_u32_u24 v21, s41, v20")
            a("v_lshrrev_b32 v21, 16, v21")
            a("v_mul_u32_u24 v22, 12, v21")
            a("v_sub_u32 v22, v20, v22")
            a("v_lshrrev_b32 v23, 1, v21")
            a("v_and_b32 v23, 2, v23")
            a("v_xor_b32 v22, v22, v23")
            a("v_lshrrev_b32 v25, 2, v22")
            a("v_and_b32 v22, 3, v22")
            a("s_sub_u32 s3, s59, %d" % imm)
            a("v_lshl_add_u32 v22, v22, 4, s3")
            a("v_lshl_add_u32 v22, v25, 11, v22")
            krow(24, 21, 23)
            a("v_mad_u32_u24 v%d, v24, s63, v22" % dst)
        for q in range(3):
            a("s_add_u32 s3, s56, %d" % (64 * q))
            a("v_add_u32 v20, s3, v17")
            gu_off(8 + q, 1024 * q)
            qkv_off(11 + q, 1024 * q)
        a("s_and_b32 s35, s32, 1")
        a("s_lshl_b32 s3, s35, 6")
        a("s_add_u32 s3, s3, 768")
        a("v_add_u32 v20, s3, v17")
        gu_off(14, 0)
        a("s_mul_i32 s43, s32, 3072")
        a("s_add_u32 s44, s43, %d" % UP)
        a("s_add_u32 s45, s43, %d" % QKV)
        a("s_lshr_b32 s46, s32, 1")
        a("s_mul_i32 s46, s46, %d" % UP)
        a("s_lshl_b32 s3, s35, 10")
        a("s_add_u32 s46, s46, s3")
        a("s_add_u32 s46, s46, 12288")
        srd(a, 8, PG, 0, 1024 * 7168)
        srd(a, 12, PU, 0, 1024 * 7168)
        srd(a, 16, PQKV, 0, 1024 * 6144)
        a("s_cmp_lt_u32 s32, 2")
        a("s_cselect_b64 s[20:21], s[%d:%d], s[%d:%d]" % (PG, PG + 1, PU, PU + 1))
        a("s_mov_b32 s22, %d" % (1024 * 7168))
        a("s_mov_b32 s23, 0x20000")
    def g1_setup_r():
        a("v_lshrrev_b32 v18, 2, v17")
        a("v_and_b32 v19, 3, v17")
        a("v_lshlrev_b32 v19, 3, v19")
        a("s_movk_i32 s3, 224")
        a("v_and_b32 v20, 16, v15")
        a("v_and_b32 v21, 2, v17")
        a("v_lshl_add_u32 v20, v21, 2, v20")
        a("v_mad_u32_u24 v1, v18, s3, v20")
        a("s_movk_i32 s3, 192")
        a("v_mad_u32_u24 v2, v18, s3, v19")
        a("v_add_u32 v2, %d, v2" % QKV)
        a("v_and_b32 v19, 16, v17")
        a("v_lshlrev_b32 v19, 1, v19")
        a("v_xor_b32 v20, 32, v19")
        a("v_add_u32 v3, v2, v20")
        a("v_add_u32 v2, v2, v19")
        a("s_cmp_eq_u32 s35, 1")
        a("s_cselect_b64 vcc, -1, 0")
        a("v_cndmask_b32 v4, v2, v3, vcc")
        a("s_lshr_b32 s3, s32, 1")
        a("s_lshl_b32 s3, s3, 6")
        a("s_add_u32 s3, s3, 64")
        a("v_add_u32 v4, s3, v4")
        a("s_mov_b32 s62, %d" % SLOT)
        a("s_mov_b32 s63, %d" % ((-2 * SLOT) & 0xffffffff))
        srd(a, 28, PWS, ACT_OFF, ACT_BYTES)
    def tau_ops():
        return ["s_add_u32 s81, s36, s80", "s_and_b32 s81, s81, 15", "s_mul_i32 s38, s81, 458752", "s_mul_i32 s39, s81, 393216"]
    def xoff_ops():
        return ["s_lshl_b32 s40, s81, 15", "s_add_u32 s42, s40, s61", "s_add_u32 s40, s40, s60", "s_add_u32 s41, s40, 4096"]
    def wdma_ops(tag):
        o = []
        for (mreg, sd, vb, so) in ((43, 8, 8, 38), (44, 12, 8, 38), (45, 16, 11, 39)):
            o.append("s_add_u32 m0, s37, s%d" % mreg)
            for q in range(3):
                o.append((tag, "buffer_load_dwordx4 v%d, s[%d:%d], s%d offen offset:%d lds" % (vb + q, sd, sd + 3, so, 1024 * q)))
        o.append("s_add_u32 m0, s37, s46")
        o.append((tag, "buffer_load_dwordx4 v14, s[20:23], s38 offen lds"))
        return o
    def xld_ops(buf, tag):
        o = []
        for f in range(8):
            o.append((tag, "buffer_load_dwordx4 %s, v15, s[24:27], s%d offen offset:%d %s" % (ar(XB(buf, f // 2, f % 2), 4), 40 + f // 4, 1024 * (f % 4), XSC)))
        for kh in range(2):
            o.append((tag, "buffer_load_dwordx4 %s, v15, s[24:27], s42 offen offset:%d %s" % (ar(XB(buf, 4, kh), 4), 1024 * kh, "" if P.get("halo_plain", 0) else XSC)))
        return o

    g1_setup_w()
    a("s_mov_b32 s36, 0"); a("s_mov_b32 s37, 0")
    W0POS = P.get("w0pos", 1)
    al = Weave(P.get("w0_every", 14), tau_ops() + wdma_ops("W0") if W0POS == 2 else [], P.get("w0_skip", 0))

    if P.get("ab_noln") == 2:
        a("s_branch L_skipln")
    vwait("x")
    stamp()
    X = 48
    for r in range(16):
        c1 = "0" if r < 2 else "v%d" % (112 + 2 * (r % 2))
        c2 = "0" if r < 2 else "v%d" % (113 + 2 * (r % 2))
        al("v_dot2_f32_bf16 v%d, v%d, v116, %s" % (112 + 2 * (r % 2), LX + r, c1))
        al("v_dot2_f32_bf16 v%d, v%d, v%d, %s" % (113 + 2 * (r % 2), LX + r, LX + r, c2))
    al("s_nop 2")
    al("v_pk_add_f32 v[112:113], v[112:113], v[114:115]")
    for m in ("quad_perm:[1,0,3,2]", "quad_perm:[2,3,0,1]", "row_half_mirror"):
        al("s_nop 0" if m != "quad_perm:[1,0,3,2]" else "s_nop 1")
        for v in (112, 113):
            al("v_add_f32_dpp v%d, v%d, v%d %s row_mask:0xf bank_mask:0xf" % (v, v, v, m))
    al("ds_write_b64 v27, v[112:113]")
    def unpack(r):
        al("v_lshlrev_b32 v%d, 16, v%d" % (X + 2 * r, LX + r))
        al("v_and_b32 v%d, s54, v%d" % (X + 2 * r + 1, LX + r))
    for r in range(8): unpack(r)
    al("s_waitcnt lgkmcnt(0)")
    al("s_barrier")
    al("ds_read_b128 v[80:83], v26")
    al("ds_read_b128 v[84:87], v26 offset:16")
    for r in range(8, 16): unpack(r)
    al("s_waitcnt lgkmcnt(0)")
    al("v_pk_add_f32 v[80:81], v[80:81], v[82:83]")
    al("v_pk_add_f32 v[84:85], v[84:85], v[86:87]")
    al("v_pk_add_f32 v[80:81], v[80:81], v[84:85]")
    al("v_mul_f32 v88, 0x3a800000, v80")
    al("v_mul_f32 v81, 0x3a800000, v81")
    al("v_fma_f32 v81, -v88, v88, v81")
    al("v_max_f32 v81, 0, v81")
    al("v_cvt_pk_bf16_f32 v88, v88, v81")
    al("v_and_b32 v81, s54, v88")
    al("v_lshlrev_b32 v88, 16, v88")
    al("v_add_f32 v81, 0x3727c5ac, v81")
    al("v_cvt_pk_bf16_f32 v81, v81, v81")
    al("v_and_b32 v81, s54, v81")
    al("v_sqrt_f32 v81, v81")
    al("v_sub_f32 v88, 0, v88")
    al("v_cvt_pk_bf16_f32 v81, v81, v81")
    al("v_and_b32 v81, s54, v81")
    al("v_rcp_f32 v90, v81")
    al("v_mov_b32 v89, v88")
    al("v_mov_b32 v91, v90")
    for u in range(4):
        R = range(4 * u, 4 * u + 4)
        for r in R: al("v_pk_add_f32 %s, %s, v[88:89]" % (vr(X + 2 * r, 2), vr(X + 2 * r, 2)))
        for r in R: al("v_cvt_pk_bf16_f32 v%d, v%d, v%d" % (LX + r, X + 2 * r, X + 2 * r + 1))
        for r in R: unpack(r)
        for r in R: al("v_pk_mul_f32 %s, %s, v[90:91]" % (vr(X + 2 * r, 2), vr(X + 2 * r, 2)))
        for r in R: al("v_cvt_pk_bf16_f32 v%d, v%d, v%d" % (LX + r, X + 2 * r, X + 2 * r + 1))
        V("xs", "buffer_store_dwordx4 %s, v28, s[24:27], s%d offen %s" % (vr(LX + 4 * u, 4), 50 + u, SC))
    al.flush()
    if P.get("ab_noln") == 2: a.label("L_skipln")
    stamp()

    if TH == 3:
        for o in ["s_add_u32 s94, s94, s95", "s_cmp_ge_u32 s94, s90", "s_cselect_b32 s3, s90, 0", "s_sub_u32 s94, s94, s3"]: a(o)
    if TH == 2: a("v_mov_b32 v253, v30")
    if TH == 1:
        for k in range(2):
            V("t", "buffer_load_dword v29, v30, s[88:91], s94 offen")
            for o in ["s_add_u32 s94, s94, s95", "s_cmp_ge_u32 s94, s90", "s_cselect_b32 s3, s90, 0", "s_sub_u32 s94, s94, s3"]: a(o)
    if P.get("t_early", 1) < 2 and P.get("t1pos", 4) == 0:
        V("t", "buffer_load_dword v29, v30, s[88:91], s94 offen %s" % P.get("t1fl", ""))
        for o in ["s_add_u32 s94, s94, s95", "s_cmp_ge_u32 s94, s90", "s_cselect_b32 s3, s90, 0", "s_sub_u32 s94, s94, s3"]: a(o)
    a("s_lshl_b32 s3, s32, 13")
    a("s_add_u32 s60, s60, s3")
    a("s_lshl_b32 s61, s61, 19")
    a("s_add_u32 s61, s61, %d" % (3 * 8192 + 3 * 2048))
    for o in xoff_ops(): E(o)
    a("v_mov_b32 v27, v121"); a("v_mov_b32 v28, v122")
    g1_setup_r()
    av = Weave(P.get("w0_every", 5), tau_ops() + wdma_ops("W0") if W0POS == 0 else [])
    SP, SMT, SNT = 66, 67, 70
    av("s_bfe_u32 s%d, s2, 0x10001" % SP)
    av("s_and_b32 s%d, s2, 1" % SMT); av("s_bfe_u32 s3, s2, 0x20003"); av("s_lshl2_add_u32 s%d, s%d, s3" % (SMT, SMT))
    av("s_lshr_b32 s%d, s2, 5" % SNT)
    park = {}
    def parkv(key, v):
        park[key] = PARK + len(park)
        assert park[key] < 224
        av("v_accvgpr_write_b32 a%d, v%d" % (park[key], v))
    unp = lambda key, v: "v_accvgpr_read_b32 v%d, a%d" % (v, park[key])
    av("s_lshl_b32 s48, s%d, 2" % SP); av("s_xor_b32 s48, s48, 4"); av("s_lshl_b32 s49, s%d, 8" % SNT); av("s_lshl_b32 s50, s32, 15"); av("s_add_u32 s50, s50, s49")
    av("v_lshrrev_b32 v20, 4, v17"); av("v_bfe_u32 v21, v17, 1, 3"); av("v_xor_b32 v21, s48, v21"); av("v_xor_b32 v21, v21, v20")
    av("v_and_b32 v22, 16, v15"); av("v_lshl_add_u32 v23, v20, 11, v22")
    av("v_lshl_add_u32 v16, v21, 5, v23"); av("v_add_u32 v16, s50, v16")
    av("s_lshl_b32 s51, s32, 16"); av("s_add_u32 s51, s51, s49"); av("s_lshl_b32 s3, s%d, 7" % SP); av("s_add_u32 s51, s51, s3")
    av("v_bfe_u32 v21, v17, 1, 2"); av("v_xor_b32 v21, v21, v20"); av("v_lshrrev_b32 v23, 3, v17")
    av("v_lshl_add_u32 v22, v23, 11, v22"); av("v_lshl_add_u32 v22, v21, 5, v22"); av("v_add_u32 v22, s51, v22")
    av("v_mov_b32 v30, v22")
    av("v_lshrrev_b32 v20, 2, v17"); av("v_and_b32 v21, 3, v17"); av("v_lshlrev_b32 v21, 3, v21"); av("v_add_u32 v21, %d, v21" % R2)
    av("v_lshl_add_u32 v22, v20, 8, v21"); av("v_and_b32 v23, 7, v20"); av("v_lshl_add_u32 v22, v23, 5, v22")
    parkv("vw", 22)
    av("v_lshl_add_u32 v22, v20, 7, v21"); av("v_bfe_u32 v23, v17, 3, 2"); av("v_lshl_add_u32 v22, v23, 5, v22")
    parkv("vwo", 22)
    av("v_and_b32 v20, 15, v17"); av("v_lshlrev_b32 v22, 11, v20"); av("v_bfe_u32 v23, v17, 4, 1"); av("v_lshl_add_u32 v22, v23, 5, v22")
    av("v_lshrrev_b32 v21, 5, v17"); av("v_lshl_add_u32 v22, v21, 4, v22")
    parkv("vout", 22)
    av("v_lshlrev_b32 v22, 10, v23"); av("v_lshl_add_u32 v22, v21, 8, v22"); av("v_lshl_add_u32 v26, v20, 4, v22")
    av("v_bfe_u32 v22, v17, 2, 2"); av("v_lshlrev_b32 v22, 8, v22"); av("v_lshrrev_b32 v23, 4, v17"); av("v_lshl_add_u32 v22, v23, 6, v22")
    av("v_and_b32 v23, 3, v17"); av("v_lshl_add_u32 v22, v23, 1, v22"); av("v_add_u32 v22, 1024, v22")
    a("s_cmp_ge_u32 s32, 2"); a("s_cselect_b64 vcc, -1, 0"); a("s_cselect_b32 s71, 16, 2")
    av("v_cndmask_b32 v22, v15, v22, vcc")
    av("s_lshl_b32 s3, s35, 3"); av("s_add_u32 s3, s3, %d" % EX); av("v_add_u32 v22, s3, v22")
    parkv("vhx", 22)
    av.flush()
    AL = P.get("alt_light", 1)
    if not AL:
        a("v_lshlrev_b32 v24, 8, v17"); a("v_add_u32 v25, 16384, v24")
        a("s_lshr_b32 s7, s2, 3"); a("s_lshl1_add_u32 s7, s7, s32"); a("s_lshl_b32 s7, s7, 15")
        a("s_lshl_b32 s52, s%d, 7" % SP); a("s_add_u32 s7, s7, s52")
        a("s_mov_b64 s[4:5], s[%d:%d]" % (PWO, PWO + 1)); a("s_mov_b32 s6, %d" % (1024 * 2048 if not P.get("nowot") else 0))
        a("s_cmp_lt_u32 s32, 2"); a("s_cbranch_scc1 L_alt")
        a("v_lshlrev_b32 v24, 7, v17"); a("v_add_u32 v25, 8192, v24")
        a("s_lshl_b32 s7, s2, 14")
        a("s_mov_b64 s[4:5], s[%d:%d]" % (PX, PX + 1)); a("s_mov_b32 s6, %d" % (2048 * 2048 if not P.get("noxt") else 0))
    else:
        a("v_lshlrev_b32 v22, 7, v17"); a("v_cmp_gt_u32 vcc, 32, v17"); a("v_mov_b32 v21, %d" % OOB)
        a("s_lshl_b32 s7, s2, 13")
        if AL == 1: a("v_cndmask_b32 v24, v21, v22, vcc"); a("v_cndmask_b32 v25, v22, v21, vcc")
        else: a("v_mov_b32 v24, v22"); a("v_mov_b32 v25, v21")
        a("s_mov_b64 s[4:5], s[%d:%d]" % (PWO, PWO + 1)); a("s_mov_b32 s6, %d" % (1024 * 2048))
        a("s_cmp_eq_u32 s32, 0"); a("s_cbranch_scc1 L_alt")
        a("s_lshl1_add_u32 s7, s2, s35"); a("s_lshl_b32 s7, s7, 13")
        a("s_mov_b64 s[4:5], s[%d:%d]" % (PX, PX + 1)); a("s_mov_b32 s6, %d" % (2048 * 2048 if not P.get("noxt", 1) else 0))
    a.label("L_alt")
    a("s_cmp_eq_u32 s32, 3"); a("s_cselect_b32 s47, 99, %d" % (13 if not P.get("ab_noalt") else 64))
    a("v_xor_b32 v17, 0x80, v16"); a("v_add_u32 v17, %d, v17" % 7168)
    a("v_add_u32 v18, %d, v16" % 14336); a("v_add_u32 v19, %d, v17" % 14336)
    a("v_bfe_u32 v20, v15, 2, 7")
    vwait("xs")
    if WF: a("s_barrier")
    a("v_add_u32 v7, 0x%x, v7" % NONCE_ADD)
    FL = P.get("fline", 3)
    V("f", "buffer_store_dword v7, v%d, s[84:87], s92 offen %s" % (20 if FL & 1 else 6, SC))
    a("v_readfirstlane_b32 s96, v7")
    if TH == 2:
        a("s_mov_b32 exec_lo, 0")
        V("t", "buffer_load_dword v29, v253, s[88:91], s94 offen")
        a("s_mov_b32 exec_lo, -1")
        for o in ["s_add_u32 s94, s94, s95", "s_cmp_ge_u32 s94, s90", "s_cselect_b32 s3, s90, 0", "s_sub_u32 s94, s94, s3"]: a(o)
        if P.get("t2pos", 1) == 0:
            a("s_mov_b32 exec_hi, 0")
            V("t", "buffer_load_dword v29, v253, s[88:91], s94 offen")
            a("s_mov_b32 exec_hi, -1")
    stamp()
    p0 = ("p", "buffer_load_dword v255, v254, s[84:87], 0 offen %s" % P.get("pollfl", SC))
    q1 = (tau_ops() + wdma_ops("W0") if W0POS == 1 else []) + ["s_mov_b32 s36, 1", "s_mov_b32 s37, %d" % SLOT] + tau_ops() + (wdma_ops("W") if not P.get("peel0", 0) else [])
    W1POS = P.get("w1pos", 0)
    PB4 = P.get("poll_before", 5)
    if PB4:
        idx = [k for k, o in enumerate(q1) if isinstance(o, tuple)][-PB4]
        if q1[idx - 1].startswith("s_add_u32 m0") if isinstance(q1[idx - 1], str) else False: idx -= 1
        q1.insert(idx, p0)
    az = Weave(P.get("w1_every", 5), q1 if W1POS == 0 else [])
    for r in range(32, 254, 2): az("v_mov_b64 %s, 0" % vr(r, 2))
    az.flush()
    if not PB4 and not P.get("poll_late"): E(p0)
    a("s_lshl_b32 s72, s%d, 19" % SMT); a("s_add_u32 s72, s72, s51"); a("s_bfe_u32 s3, s2, 0x10002"); a("s_add_u32 s3, s3, s32")
    a("s_lshl_b32 s3, s3, 16"); a("s_add_u32 s72, s72, s3")
    a("s_lshl_b32 s56, s32, 12"); a("s_add_u32 s56, s56, %d" % R2)
    a("s_lshl_b32 s48, s33, 1"); a("s_lshr_b32 s3, s32, 1"); a("s_add_u32 s48, s48, s3"); a("s_mul_i32 s48, s48, %d" % ACT_MT)
    a("s_lshl_b32 s3, s35, 12"); a("s_add_u32 s48, s48, s3")
    a("s_mul_i32 s73, s34, 7"); a("s_lshr_b32 s73, s73, 1"); a("s_lshl_b32 s73, s73, 13"); a("s_add_u32 s73, s73, s48")
    a("s_lshl_b32 s3, s57, 9"); a("s_add_u32 s73, s73, s3")
    a("s_mul_i32 s74, s57, %d" % (8192 - 1024)); a("s_add_u32 s74, s74, 512"); a("s_add_u32 s74, s74, s73")
    a("s_add_u32 s75, s34, 112"); a("s_lshl_b32 s75, s75, 13"); a("s_add_u32 s75, s75, s48")
    a("s_lshl2_add_u32 s92, s33, s32"); a("s_lshl_b32 s92, s92, 7"); a("s_lshl2_add_u32 s92, s34, s92")
    FP = P.get("fpad", 1)
    a("s_add_u32 s35, s92, %d" % F1O)
    if FP: a("s_lshl_b32 s92, s92, 5")
    a("s_add_u32 s92, s92, %d" % (F1H if not FP else 131072))
    a("s_lshl2_add_u32 s58, s%d, s32" % SMT); a("s_lshl_b32 s58, s58, 7")
    a("s_add_u32 s59, s58, %d" % F1O)
    if FP: a("s_lshl_b32 s58, s58, 5")
    a("s_add_u32 s58, s58, %d" % (F1H if not FP else 131072))
    a("s_or_b32 s33, s33, s32")
    a("s_lshr_b32 s3, s32, 1"); a("s_lshl1_add_u32 s57, s%d, s3" % SMT); a("s_mul_i32 s57, s57, %d" % ACT_MT)
    a("s_and_b32 s3, s32, 1"); a("s_lshl_b32 s3, s3, 12"); a("s_add_u32 s57, s57, s3")
    a("s_mov_b32 s50, 0xbfb8aa3b"); a("s_mov_b32 s51, 0xbfb8aa3b"); a("s_mov_b32 s52, 1.0"); a("s_mov_b32 s53, 1.0")

    if P.get("poll_late"):
        for r in range(0, 100, 4): a("%s %s, v[48:51], v[48:51], 0" % (MF, ar(r, 4)))
        E(p0)
    stamp()
    if not P.get("ab_noln"): check_flags(255, 254, "0", "p", "L_f0")
    if P.get("halo_plain", 0) == 1: V("inv", "buffer_inv sc1")
    stamp()
    for o in xld_ops(0, "X0"): E(o)
    xlast = ["s_add_u32 s40, s80, 15", "s_and_b32 s40, s40, 15", "s_lshl_b32 s40, s40, 15", "s_add_u32 s40, s40, s60", "s_add_u32 s41, s40, 4096"] + xld_ops(2, "XL")[:8]
    if P.get("xl_pos", 0) == 0:
        for o in xlast: E(o)
    if W1POS == 1:
        for o in q1: E(o)
    a("v_mov_b64 v[254:255], 0")
    for r in (range(0, 100, 4) if not P.get("poll_late") else []): a("%s %s, v[48:51], v[48:51], 0" % (MF, ar(r, 4)))

    blocks = []
    for p in range(7): blocks += [("gu", p, 0), ("gu", p, 1)]
    blocks += [("q", s) for s in range(6)]
    def wreads(b, dst, ab=0):
        o = []
        for kh in range(2):
            for s2 in range(2):
                d = ar(dst(kh) + 2 * s2, 2)
                if b[0] == "gu":
                    o.append("ds_read_b64_tr_b16 %s, v%d offset:%d" % (d, ab + 1, b[2] * UP + (32 * kh + 16 * s2) * 224 + 32 * b[1]))
                elif b[0] == "q":
                    o.append("ds_read_b64_tr_b16 %s, v%d offset:%d" % (d, ab + 2 + b[1] % 2, (32 * kh + 16 * s2) * 192 + 64 * (b[1] // 2)))
                else:
                    o.append("ds_read_b64_tr_b16 %s, v%d offset:%d" % (d, ab + 4, (32 * kh + 16 * s2) * 192))
        return o
    def mfmas(b, ring, buf):
        o = []
        for m in range(4):
            for kh in range(2):
                w, x = ar(WR(ring, kh), 4), ar(XB(buf, m, kh), 4)
                c = vr(accGU(b[1], b[2], m), 4) if b[0] == "gu" else ar(accQ(b[1], m), 4)
                if b[0] == "q" and b[1] >= 4: w, x = x, w
                o.append("%s %s, %s, %s, %s" % (MF, c, w, x, c))
        return o
    def halo_mf(buf):
        return ["%s %s, %s, %s, %s" % (MF, ar(HACC, 4), ar(HW(kh), 4), ar(XB(buf, 4, kh), 4), ar(HACC, 4)) for kh in range(2)]

    vwait("X0")
    a("s_barrier")
    stamp()
    for bi in range(3):
        for o in wreads(blocks[bi], lambda kh: WR(bi % 4, kh)): a(o)
    if P.get("xl_pos", 0) == 1:
        for o in xlast: E(o)
    if P.get("xl_pos", 0) == 2:
        for o in ["s_add_u32 s48, s80, 15", "s_and_b32 s48, s48, 15", "s_lshl_b32 s48, s48, 15", "s_add_u32 s48, s48, s60"]: a(o)
    if P.get("t_early", 1) < 2 and P.get("t1pos", 4) >= 1:
        if P.get("t1pos") in (1, 2): V("t", "buffer_load_dword v29, v27, s[88:91], s94 offen %s" % P.get("t1fl", ""))
        if P.get("t1pos") in (1, 3): V("t", "buffer_load_dword v29, v28, s[88:91], s94 offen %s" % P.get("t1fl", ""))
        for o in ["s_add_u32 s94, s94, s95", "s_cmp_ge_u32 s94, s90", "s_cselect_b32 s3, s90, 0", "s_sub_u32 s94, s94, s3"]: a(o)
    if TH == 2:
        if P.get("t2pos", 1) == 1: V("t", "buffer_load_dword v29, v27, s[88:91], s94 offen")
        if P.get("t3pos", 0) == 0: V("t", "buffer_load_dword v29, v28, s[88:91], s94 offen")
        else: a("s_mov_b32 s48, s94")
        for o in ["s_add_u32 s94, s94, s95", "s_cmp_ge_u32 s94, s90", "s_cselect_b32 s3, s90, 0", "s_sub_u32 s94, s94, s3"]: a(o)
    LT = P.get("late_w2", 0)
    a("s_cmp_eq_u32 s32, 3"); a("s_cselect_b32 s95, %d, s95" % ((-(256 if LT else 128) * 2048) & 0xffffffff))
    a("s_cselect_b32 s49, -1, s90")
    if LT:
        a("s_cselect_b32 s3, %d, 0" % (6 * 128 * 2048)); a("s_cselect_b64 vcc, -1, 0"); a("s_add_u32 s94, s94, s3")
        a("v_lshlrev_b32 v20, 3, v15"); a("v_add_u32 v21, %d, v20" % (128 * 2048))
        a("v_cndmask_b32 v27, v27, v21, vcc"); a("v_cndmask_b32 v28, v28, v20, vcc")

    HRB, HMB = 9, 13
    def step(buf, misc, loop=None, spc=None):
        lg = Cnt([0] * 4 + [1] * 4 + [2] * 4)
        SPC, V0 = spc or P.get("vspace", 5.4), P.get("vstart", 5)
        place = {}
        nv = 0
        tgt = []
        for o in misc:
            if isinstance(o, tuple):
                g = int(V0 + nv * SPC) | 1
                if g // 8 >= HRB: g += 8
                tgt.append(g)
                if P.get("vweight", 0): nv += (1.55 if "s[16:19]" in o[1] else (1.1 if o[1].endswith("lds") else 0.77))
                else: nv += (P.get("xl_w", 0.4) if "s49" in o[1] else 1)
            else: tgt.append(None)
        nxt = None
        for k in range(len(misc) - 1, -1, -1):
            if tgt[k] is not None: nxt = tgt[k]
            elif nxt is not None:
                nxt -= 1; tgt[k] = nxt
        last = max(t for t in tgt if t is not None)
        for k in range(len(misc)):
            if tgt[k] is None:
                last += 1; tgt[k] = last
        for k in range(1, len(misc)):
            if tgt[k] < tgt[k - 1]: tgt[k] = tgt[k - 1]
        assert min(tgt) >= 0 and max(tgt) < 17 * 8, (min(tgt), max(tgt))
        for k, o in enumerate(misc): place.setdefault((tgt[k] // 8, tgt[k] % 8), []).append(o)
        for bi in range(20):
            mf = mfmas(blocks[bi], bi % 4, buf)
            fill = {}
            w = lg.need(bi)
            if w is not None: a("s_waitcnt lgkmcnt(%d)" % w)
            rd = []
            if bi <= 16: rd = [(bi + 3, o) for o in wreads(blocks[bi + 3], lambda kh: WR((bi + 3) % 4, kh))]; gaps = [0, 2, 4, 6]
            elif bi == 18:
                rd = [(100, o) for o in wreads(blocks[0], lambda kh: WR(0, kh))] + [(101, o) for o in wreads(blocks[1], lambda kh: WR(1, kh))]
                gaps = list(range(8))
            elif bi == 19: rd = [(102, o) for o in wreads(blocks[2], lambda kh: WR(2, kh))]; gaps = [0, 2, 4, 6]
            if bi == HRB and not P.get("ab_nohalo"):
                hr = [("H", o) for o in wreads(("h",), HW)]
                rd = [x for pr in zip(rd, hr) for x in pr]; gaps = list(range(8))
            for (tag, o), g in zip(rd, gaps if rd else []):
                fill.setdefault(g, []).append(o); lg.issue(tag)
            for g in range(8):
                for o in place.get((bi, g), []): fill.setdefault(g, []).append(o)
            if bi == HMB and not P.get("ab_nohalo"):
                assert lg.need("H") is None
                mf += halo_mf(buf)
            if bi == 17:
                for k, r in enumerate((1, 2, 3, 4)):
                    fill.setdefault(k + 1, []).append("v_add_u32 v%d, s93, v%d" % (r, r))
                fill.setdefault(7, []).append(lambda: (vwait("X", lg0=True), a("s_barrier")))
                lg.clear()
                if P.get("itrace"):
                    fill[7] += ["s_memtime s[98:99]", "s_add_u32 m0, s36, 30", "s_waitcnt lgkmcnt(0)", "v_writelane_b32 v31, s98, m0"]
            if bi == 19 and loop:
                fill.setdefault(5, []).append("s_cmp_lt_u32 s36, %d" % (13 if P.get("xl_pos", 0) == 4 else 15))
                fill.setdefault(7, []).append("s_cbranch_scc1 %s" % loop)
            for i, m in enumerate(mf):
                a(m)
                for o in fill.get(i, []):
                    if isinstance(o, tuple) and ((P.get("ab_g1x") and o[0] == "X") or (P.get("ab_g1w") and o[0] == "W") or (P.get("ab_g1q") and "s[16:19]" in o[1])):
                        vm.issue(o[0]); continue
                    if P.get("ab_g1d") and isinstance(o, str) and o.startswith("ds_read") and bi % 2 == 1: continue
                    if P.get("ab_g1b") and callable(o): vm.need("X"); continue
                    E(o)
    slot_ops = ["s_add_u32 s37, s37, s62", "s_cmp_eq_u32 s37, %d" % (3 * SLOT), "s_cselect_b32 s37, 0, s37",
                "s_cmp_eq_u32 s37, s62", "s_cselect_b32 s93, s63, s62"]
    def std_misc(buf):
        t = [("t", "buffer_load_dword v29, v%d, s[88:91], s94 offen %s" % (27 + buf, P.get("tfl", "")))] + (["s_add_u32 s94, s94, s95", "s_cmp_ge_u32 s94, s49", "s_cselect_b32 s3, s90, 0", "s_sub_u32 s94, s94, s3"] if buf else [])
        if buf: t += ["s_cmp_eq_u32 s36, s47", "s_cselect_b64 s[88:89], s[4:5], s[88:89]", "s_cselect_b32 s90, s6, s90", "s_cselect_b32 s94, s7, s94",
                      "s_cselect_b64 vcc, -1, 0", "v_cndmask_b32 v27, v27, v24, vcc", "v_cndmask_b32 v28, v28, v25, vcc"]
        xl = xld_ops(buf ^ 1, "X")
        if P.get("ab_nohalo"): xl = xl[:8]
        if P.get("xl_pos", 0) == 2:
            ex = [("X", o[1].replace("s40", "s49").replace("s41", "s49")) for o in xld_ops(2, "X")[4 * buf:4 * buf + 4]]
            pre = ["s_cmp_eq_u32 s36, 14", "s_cselect_b32 s49, s48, %d" % OOB] if buf == 0 else ["s_add_u32 s49, s49, 4096"]
            xl = xl + pre + ex
        return xoff_ops() + xl[:2] + ["s_add_u32 s36, s36, 1"] + tau_ops() + xl[2:4] + slot_ops[:3] + xl[4:6] + slot_ops[3:] + xl[6:] + wdma_ops("W") + t
    if P.get("peel0", 0):
        m0 = std_misc(0); m1 = std_misc(1)
        iw = lambda m: [k for k, o in enumerate(m) if isinstance(o, tuple) and o[0] == "W"]
        NH = P.get("peel_h", 6)
        k0 = iw(m0)[NH] - 1 if NH < 10 else iw(m0)[-1] + 1
        k1 = iw(m0)[-1] + 1
        rest = [(("X", o[1]) if isinstance(o, tuple) else o) for o in m0[k0:k1]]
        w1 = [(("X", o[1]) if isinstance(o, tuple) else o) for o in wdma_ops("W")]
        xl1 = xlast if P.get("xl_pos", 0) == 3 else []
        xl1 = [((o[0], o[1].replace("s40", "s48").replace("s41", "s49")) if isinstance(o, tuple) else o.replace("s40", "s48").replace("s41", "s49")) for o in xl1]
        nv = lambda m: sum(isinstance(o, tuple) for o in m)
        a0 = w1 + m0[:k0] + ([("t", "buffer_load_dword v29, v28, s[88:91], s48 offen")] if P.get("t3pos", 0) else []) + m0[k1:]
        a1 = rest + m1[:iw(m1)[-1] + 1] + xl1 + m1[iw(m1)[-1] + 1:]
        step(0, a0, spc=min(5.4, 112.0 / nv(a0)))
        step(1, a1, spc=min(5.4, 108.0 / nv(a1)))
    a(".p2align 6")
    for _ in range(P.get("loop_shift", 0)): a("s_nop 0")
    a.label("L_g1")
    vm.q = ["W"] * 10 + ["t"]
    step(0, std_misc(0))
    step(1, std_misc(1), loop="L_g1")
    assert vm.q == ["W"] * 10 + ["t"], vm.q
    if P.get("xl_pos", 0) == 4:
        xl4 = [((o[0], o[1].replace("s40", "s48").replace("s41", "s47")) if isinstance(o, tuple) else o.replace("s40", "s48").replace("s41", "s47")) for o in xlast]
        m0 = std_misc(0); m1 = std_misc(1)
        it = lambda m: next(k for k, o in enumerate(m) if isinstance(o, tuple) and o[0] == "t")
        iw = lambda m: next(k for k, o in enumerate(m) if isinstance(o, tuple) and o[0] == "W") - 1
        NA_ = 5 + P.get("xl_split", 4)
        step(0, m0[:iw(m0)] + xl4[:NA_] + m0[iw(m0):], spc=P.get("xl_spc", 4.7))
        step(1, m1[:iw(m1)] + xl4[NA_:] + m1[iw(m1):it(m1) + 1], spc=P.get("xl_spc", 4.7))
    stamp()

    for _ in range(P.get("tail_shift", 0)): a("s_nop 0")
    ND, NO = 14, 8
    NS = ND + NO
    VDW, VDO = 16, 30
    NRES = 5
    ROTD = P.get("rotd", 5)
    RREG = [4, 5, 6, 7, 36, 37, 55]
    ROTO = P.get("roto", 1)
    OLOC = {14: R2 + 32768, 15: R2 + 49152, 16: R2, 21: 0, 18: 16384, 17: 106496, 19: 122880, 20: 139264}
    FR = NS - NRES
    def wops(sg, force=False):
        if sg >= FR and not force: return []
        u = sg % 4
        o = []
        if sg < ND:
            if ROTD: o.append("s_lshl3_add_u32 s38, s%d, s%d" % (RREG[sg % 7], 44 + sg // 7))
            else: o.append("s_add_u32 s38, s%d, %d" % (44 + sg // 7, (sg % 7) * 131072))
            o.append("s_add_u32 m0, s56, %d" % (u * 16384))
            for q in range(4):
                o.append(("W%d" % sg, "buffer_load_dwordx4 v%d, s[8:11], s38 offen offset:%d lds" % (VDW + q, 1024 * q)))
        else:
            o.append("s_add_u32 m0, s56, %d" % ((OLOC[sg] - R2) & 0xffffffff))
            for q in range(4):
                if ROTO: o.append(lambda sg=sg, q=q: [a("s_bfe_u32 s38, s80, 0x%x" % (0x40000 + 4 * (sg - ND))), a("s_lshl_b32 s38, s38, 18"), a("s_add_u32 s38, s38, %d" % (15360 * q))])
                else: o.append("s_mov_b32 s38, %d" % ((sg - ND) * 262144 + 15360 * q))
                o.append(("W%d" % sg, "buffer_load_dwordx4 v%d, s[12:15], s38 offen offset:%d lds" % (VDO, 1024 * q)))
        return o
    QI = {(0, 0): 0, (1, 0): 1, (1, 1): 2, (0, 1): 3}
    accD = lambda m, b: 64 + QI[(m >> 1, b >> 2)] * 32 + ((m & 1) * 4 + (b & 3)) * 4
    accO = lambda m, b: 192 + (m * 4 + b) * 4
    VW, VWO, VX = 32, 20, 52
    NXB = 6
    NX0 = P.get("nx0", 2)
    XB2 = lambda sg, f: (lambda u: (u * 32 if u < 4 else 192 + (u - 4) * 32) + f * 4)(sg % NXB)
    WR2 = lambda b, kh: 128 + b * 8 + kh * 4
    def xops(sg):
        if sg >= NS: return []
        o = []
        if sg < ND:
            o.append("s_add_u32 s39, s%d, %s" % (60 if sg < NX0 else 46 + sg // 7, ("s%d" % RREG[sg % 7]) if ROTD else str((sg % 7) * 16384)))
            for kh in range(2):
                for m in range(4):
                    o.append(("X%d" % sg, "buffer_load_dwordx4 %s, v%d, s[28:31], s39 offen offset:%d %s" % (ar(XB2(sg, kh * 4 + m), 4), VX + kh + 4 * (m >> 1), 1024 * (m & 1), XSC)))
        else:
            if ROTO: o.append(lambda sg=sg: [a("s_bfe_u32 s39, s80, 0x%x" % (0x40000 + 4 * (sg - ND))), a("s_lshl_b32 s39, s39, 15"), a("s_add_u32 s39, s39, s81")])
            else: o.append("s_add_u32 s39, s57, %d" % (112 * 8192 + (sg - ND) * 32768))
            for kq in range(4):
                for m in range(2):
                    o.append(("X%d" % sg, "buffer_load_dwordx4 %s, v%d, s[28:31], s39 offen offset:%d %s" % (ar(XB2(sg, kq * 2 + m), 4), VX + kq, 1024 * m, XSC)))
        return o
    def wreads2(sg, b, rb=None):
        if rb is None: rb = b
        o = []
        u = sg % 4
        for kh in range(2):
            for s2 in range(2):
                if sg < ND: v, off = VW + b, u * 16384 + (32 * kh + 16 * s2) * 256
                else:
                    L = OLOC[sg]
                    vb, base = (40, 0) if L < R2 else ((VWO, R2) if L < 106496 else (44, 106496))
                    v, off = vb + b % 4, L - base + (64 * (b // 4) + 32 * kh + 16 * s2) * 128
                o.append("ds_read_b64_tr_b16 %s, v%d offset:%d" % (ar(WR2(rb, kh) + 2 * s2, 2), v, off))
        return o
    def mfmas2(sg, b, rb):
        o = []
        for m in ((2, 3, 0, 1) if sg < ND else (0, 1)):
            for kh in range(2):
                if sg < ND: c, x = accD(m, b), XB2(sg, kh * 4 + m)
                else: c, x = accO(m, b % 4), XB2(sg, (2 * (b // 4) + kh) * 2 + m)
                z = (sg == 0 and kh == 0) or (sg == ND and b < 4 and kh == 0)
                o.append("%s %s, %s, %s, %s" % (MF, vr(c, 4), ar(WR2(rb, kh), 4), ar(x, 4), "0" if z else vr(c, 4)))
        return o
    order = [(0, 0), (1, 0), (2, 0), (3, 0), (0, 1), (1, 1), (2, 1), (3, 1)]
    for b in range(4, 20): order += [(b, 0), (b, 1)]
    NPOS = len(order)
    done_pos = {b: max(i for i, (bb, s) in enumerate(order) if bb == b) for b in range(20)}
    AB2 = 7
    R0, R1, R2_ = accGU(0, 1, 0), accGU(2, 1, 0), accGU(4, 1, 0)
    Qf = lambda m: R0 + 12 + 4 * m
    Kf = lambda m: R0 + 28 + 4 * (m + 1)
    VV = lambda f, m: R1 + 10 * f + 2 * (m + 1)
    Pf = lambda m: R1 + 20 + 4 * m
    Sp = lambda m: R2_ + 8 * m
    Sc = lambda m: R2_ + 8 * m + 4
    TT = lambda m: R2_ + 32 + 4 * m
    def cvt_acc(dst, src, t):
        return ["v_accvgpr_read_b32 v%d, a%d" % (t + r, src + r) for r in range(4)] + \
               ["v_cvt_pk_bf16_f32 v%d, v%d, v%d" % (dst, t, t + 1), "v_cvt_pk_bf16_f32 v%d, v%d, v%d" % (dst + 1, t + 2, t + 3)]
    masks = ["v_lshrrev_b32 v13, 4, v15", "v_and_b32 v14, 15, v13", "v_and_b32 v27, 1, v13", "v_lshrrev_b32 v20, 4, v13", "v_lshl_add_u32 v20, v20, 2, v27",
             "v_cmp_le_u32 s[40:41], v20, v14", "v_add_u32 v20, 2, v20", "v_cmp_le_u32 s[42:43], v20, v14", "v_cmp_ne_u32 s[62:63], 0, v27",
             "v_lshlrev_b32 v27, 4, v27", "s_cmp_eq_u32 s33, 0", "s_cselect_b64 s[88:89], -1, 0", "s_andn2_b64 s[90:91], s[88:89], s[42:43]",
             "s_andn2_b64 s[88:89], s[88:89], s[40:41]", "s_mov_b32 s48, 0x3e3504f3", "s_mov_b32 s49, 0x3fb8aa3b",
             "s_lshl_b32 s3, s32, 11", "s_add_u32 s3, s3, %d" % EX, "v_add_u32 v25, s3, v15", unp("vhx", 24),
             "v_lshlrev_b32 v14, %d, v14" % (7 if FP else 2), "v_and_b32 v13, 31, v13", "v_lshlrev_b32 v13, 2, v13",
             "s_and_b32 s3, s2, 7", "s_xor_b32 s61, s3, %d" % P.get("g0", 1), "s_xor_b32 s3, s61, 1",
             "s_mul_i32 s44, s61, %d" % (7 * 131072), "s_mul_i32 s45, s3, %d" % (7 * 131072),
             "s_mul_i32 s46, s61, %d" % (7 * 16384), "s_add_u32 s46, s46, s57", "s_mul_i32 s47, s3, %d" % (7 * 16384), "s_add_u32 s47, s47, s57",
             "s_mov_b32 s60, s46", "s_lshl_b32 s61, s61, 9", "s_add_u32 s34, s61, s58", "s_lshl_b32 s3, s3, 9", "s_add_u32 s58, s58, s3", "v_and_b32 v5, 384, v14"]
    if ROTD >= 5:
        def perm(r):
            p = list(range(7))
            if ROTD == 5:
                for c in range(r, 6, 4): p[c], p[c + 1] = p[c + 1], p[c]
            else:
                for c in range(r, 5, 4): p[c], p[c + 1], p[c + 2] = p[c + 2], p[c], p[c + 1]
                if r == 3: p[0], p[1] = p[1], p[0]
            if P.get("ab_hit"): p = [k % 2 for k in range(7)]
            return sum(v << (4 * k) for k, v in enumerate(p))
        masks += ["s_add_u32 s3, s%d, s%d" % (SMT, SNT), "s_mov_b32 s4, 0x%x" % perm(0), "s_mov_b32 s5, 0x%x" % perm(2), "s_bitcmp1_b32 s3, 0",
                  "s_cselect_b32 s4, 0x%x, s4" % perm(1), "s_cselect_b32 s5, 0x%x, s5" % perm(3), "s_bitcmp1_b32 s3, 1", "s_cselect_b32 s3, s5, s4"]
        for k in range(7):
            masks += ["s_bfe_u32 s%d, s3, 0x%x" % (RREG[k], 0x40000 + 4 * k), "s_lshl_b32 s%d, s%d, 14" % (RREG[k], RREG[k])]
        if ROTO:
            def perm8(r):
                p = list(range(8))
                for c in range(r, 7, 4): p[c], p[c + 1] = p[c + 1], p[c]
                if P.get("ab_hit") == 2: p = [k % 2 for k in range(8)]
                return sum(v << (4 * k) for k, v in enumerate(p))
            masks += ["s_add_u32 s3, s%d, s%d" % (SMT, SNT), "s_mov_b32 s80, 0x%x" % perm8(0), "s_mov_b32 s81, 0x%x" % perm8(2), "s_bitcmp1_b32 s3, 0",
                      "s_cselect_b32 s80, 0x%x, s80" % perm8(1), "s_cselect_b32 s81, 0x%x, s81" % perm8(3), "s_bitcmp1_b32 s3, 1", "s_cselect_b32 s80, s81, s80",
                      "s_add_u32 s81, s57, %d" % (112 * 8192)]
    elif ROTD >= 3:
        masks += ["s_add_u32 s3, s%d, s%d" % (SMT, SNT)]
        W1_ = {3: 4, 4: 2}[ROTD]
        for k in range(4):
            masks += ["s_add_u32 s%d, s3, %d" % (RREG[k], k), "s_and_b32 s%d, s%d, %d" % (RREG[k], RREG[k], W1_ - 1)]
            if k >= W1_: masks += ["s_add_u32 s%d, s%d, %d" % (RREG[k], RREG[k], W1_)]
            masks += ["s_lshl_b32 s%d, s%d, 14" % (RREG[k], RREG[k])]
        masks += ["s_mul_i32 s36, s3, 86", "s_lshr_b32 s36, s36, 8", "s_mul_i32 s36, s36, 3", "s_sub_u32 s3, s3, s36", "s_add_u32 s3, s3, 4", "s_lshl_b32 s36, s3, 14"]
        for k in (5, 6):
            masks += ["s_add_u32 s%d, s%d, 16384" % (RREG[k], RREG[k - 1]), "s_cmp_eq_u32 s%d, %d" % (RREG[k], 7 * 16384), "s_cselect_b32 s3, %d, 0" % (3 * 16384), "s_sub_u32 s%d, s%d, s3" % (RREG[k], RREG[k])]
    elif ROTD:
        if ROTD == 1: masks += ["s_and_b32 s3, s%d, 3" % SMT, "s_lshl1_add_u32 s3, s3, s%d" % SNT]
        else: masks += ["s_mov_b32 s3, s%d" % SNT]
        masks += ["s_cmp_ge_u32 s3, 7", "s_cselect_b32 s4, 7, 0", "s_sub_u32 s3, s3, s4", "s_lshl_b32 s4, s3, 14"]
        for k in range(1, 7):
            masks += ["s_add_u32 s%d, s%d, 16384" % (RREG[k], RREG[k - 1]), "s_cmp_eq_u32 s%d, %d" % (RREG[k], 7 * 16384), "s_cselect_b32 s%d, 0, s%d" % (RREG[k], RREG[k])]
    early = ["v_add_u32 v%d, s63, v%d" % (AB2 + r, r) for r in (1, 2, 3, 4)] + xoff_ops()[:2] + xld_ops(2, "X")[8:] + masks
    ctouch = []
    if P.get("ctouch2", 1):
        def getpc():
            a("s_getpc_b64 s[16:17]"); a.label("L_pc2")
        ctouch = [getpc, "s_mov_b32 s18, L_end-L_pc2", "s_bfe_u32 s3, s2, 0x30003", "s_lshl2_add_u32 s3, s3, s32", "s_lshl_b32 s3, s3, 11", "v_and_b32 v20, 0xf0, v15",
                  "v_lshl_add_u32 v20, v20, 3, s3", ("t", "buffer_load_dword v29, v20, s[16:19], 0 offen")]
        early = early[:4] + ctouch + early[4:]
    w2t = []
    if P.get("w2tail"):
        early += ["s_bfe_u32 s3, s2, 0x20001", "s_mul_i32 s94, s3, %d" % (896 * 2048), "s_lshr_b32 s3, s2, 3", "s_mul_i32 s3, s3, %d" % (28 * 2048), "s_add_u32 s94, s94, s3",
                  "s_lshl_b32 s3, s32, 14", "s_add_u32 s94, s94, s3", "s_add_u32 s95, s94, 8192", "s_cmp_eq_u32 s32, 3", "s_cselect_b32 s95, %d, s95" % OOB, "v_lshlrev_b32 v28, 3, v15"]
        w2t = [("t", "buffer_load_dword v29, v28, s[8:11], s94 offen"), ("t", "buffer_load_dword v29, v28, s[8:11], s95 offen")]
    memq = ["s_mov_b64 s[8:9], s[%d:%d]" % (PD, PD + 1), "s_mov_b32 s10, %d" % (3584 * 2048)] + (w2t if P.get("w2tail") == 1 else []) + wops(0) + wops(1) + (w2t if P.get("w2tail") == 2 else []) + \
        ["s_mov_b64 s[12:13], s[%d:%d]" % (PWO, PWO + 1), "s_mov_b32 s14, %d" % (1024 * 2048)] + wops(19, True) + wops(20, True)
    stream = []
    def pkA(p): return [x for m in range(4) for h in (0, 2) for x in (
        "v_pk_mul_f32 %s, %s, %s" % (vr(accGU(p, 1, m) + h, 2), vr(accGU(p, 0, m) + h, 2), vr(accGU(p, 1, m) + h, 2)),)] + \
        ["v_pk_mul_f32 %s, %s, s[50:51]" % (vr(accGU(p, 0, m) + h, 2), vr(accGU(p, 0, m) + h, 2)) for m in range(4) for h in (0, 2)]
    def pkB(p): return ["v_pk_add_f32 %s, %s, s[52:53]" % (vr(accGU(p, 0, m) + h, 2), vr(accGU(p, 0, m) + h, 2)) for m in range(4) for h in (0, 2)]
    def pkC(p): return ["v_pk_mul_f32 %s, %s, %s" % (vr(accGU(p, 1, m) + h, 2), vr(accGU(p, 1, m) + h, 2), vr(accGU(p, 0, m) + h, 2)) for m in range(4) for h in (0, 2)]
    def fin(p):
        o = []
        sreg = 73 + (p & 1)
        for m in range(4):
            U = accGU(p, 1, m)
            D = accGU(p, 0, m & ~1) + 2 * (m & 1)
            o += ["v_cvt_pk_bf16_f32 v%d, v%d, v%d" % (D, U, U + 1), "v_cvt_pk_bf16_f32 v%d, v%d, v%d" % (D + 1, U + 2, U + 3)]
        for m in (0, 2):
            g0 = accGU(p, 0, m)
            o += ["v_permlane16_swap_b32 v%d, v%d" % (g0, g0 + 2), "v_permlane16_swap_b32 v%d, v%d" % (g0 + 1, g0 + 3)]
            o.append(("hs", "buffer_store_dwordx4 %s, v26, s[28:31], s%d offen offset:%d %s" % (vr(g0, 4), sreg, 1024 * m, SC)))
        o.append("s_add_u32 s%d, s%d, 8192" % (sreg, sreg))
        return o
    rdy = lambda b: (done_pos[b] + 1) * 8 + 7
    for p in range(8):
        burst = (pkC(p - 1) if p > 0 else []) + (pkA(p) if p < 7 else [])
        stream.append((rdy(2 * p + 1) if p < 7 else 0, burst, True))
        tr1 = ["v_exp_f32 v%d, v%d" % (accGU(p, 0, 0) + r, accGU(p, 0, 0) + r) for r in range(16)] if p < 7 else []
        f = fin(p - 1) if p > 0 else []
        if p > 0 and (p - 1) % 2 == 0 and p - 1 < 6: pass
        mix = []
        while tr1 or f:
            if f: mix.append(f.pop(0))
            if tr1: mix.append(tr1.pop(0))
        for o in mix: stream.append((0, [o], False))
        if p < 7:
            stream.append((0, pkB(p), True))
            for r in range(16): stream.append((0, ["v_rcp_f32 v%d, v%d" % (accGU(p, 0, 0) + r, accGU(p, 0, 0) + r)], False))
    stream.append((0, ["HDONE"], False))
    for s_, F in ((0, Qf), (1, Qf), (2, Kf), (3, Kf)):
        for m in (3, 2, 1, 0):
            for k, o in enumerate(cvt_acc(F(m) + 2 * (s_ & 1), accQ(s_, m), TT(m))):
                stream.append((rdy(14 + s_), [o], False))
    for m in (3, 2, 1, 0):
        for o in cvt_acc(VV(0, m), accQ(4, m), TT(m)): stream.append((rdy(18), [o], False))
    def hflag():
        vwait("hs")
        V("f", "buffer_store_dword v7, v%d, s[84:87], s92 offen %s" % (13 if FL & 2 else 6, SC))
    GL = P.get("gaplen", 20)
    MSP = P.get("mem_space", 5)
    HDLY = P.get("hflag_delay", 99)
    BP = P.get("bar_pos", 28)
    lg = Cnt([0] * 4 + [1] * 4 + [2] * 4)
    HR = {3: 0, 15: 1}; HM = {7: 0, 19: 2}
    isv = lambda o: isinstance(o, str) and (o.startswith("v_") or o.startswith("s_nop"))
    front = []
    lastmem = -99; hdone = None; hsent = False; est = 0
    w = lg.need(0); a("s_waitcnt lgkmcnt(%d)" % w)
    for pos, (bi, st_) in enumerate(order):
        mf = mfmas(blocks[bi], pos % 4, 2 * st_)
        if P.get("tstamp") and pos in (4, 8, 16, 24, 32): stamp()
        if pos % 4 == 0: sys.stderr.write("pos %d: stream left %d est %d\n" % (pos, len(stream), est))
        rd = []
        if pos + 3 < NPOS:
            b3, s3 = order[pos + 3]
            rd = [(pos + 3, o) for o in wreads(blocks[b3], lambda kh: WR((pos + 3) % 4, kh), AB2 * s3)]
        gaps = [0, 2, 4, 6]
        if pos in HR:
            hr = [("H", o) for o in wreads(("h",), HW, AB2 * HR[pos])]
            rd = [x for pr in zip(rd, hr) for x in pr]; gaps = list(range(8))
        rdat = dict(zip(gaps, rd))
        if pos in HM:
            assert lg.need("H") is None
            if HM[pos]: vwait("X")
            mf += halo_mf(HM[pos])
        for i, m in enumerate(mf):
            g = pos * 8 + i
            a(m)
            t = 4
            if i in rdat:
                a(rdat[i][1]); lg.issue(rdat[i][0]); t += 8
            if i == len(mf) - 1 and pos + 1 < NPOS:
                w = lg.need(pos + 1)
                if pos == 0:
                    vwait("W"); a("s_barrier")
                if pos == BP:
                    assert BP > done_pos[13]
                    a("s_barrier"); memq += wops(2) + wops(3) + wops(21, True)
                if w is not None: a("s_waitcnt lgkmcnt(%d)" % w); t += 4
            if early:
                while early and t < 16:
                    o = early.pop(0); E(o); t = (max(t, 8) if isv(o) else t) + cost(o)
            else:
                q = front if front else memq
                if q and not isinstance(q[0], tuple) and t <= 12 - 4 * bool(stream and stream[0][0] <= g):
                    E(q.pop(0)); t += 4
                elif q and isinstance(q[0], tuple) and t == 4 and g - lastmem >= (MSP if q is memq else P.get("st_space", 4)):
                    E(q.pop(0)); t += 8; lastmem = g
                if hdone is not None and not hsent and not front and g >= hdone + HDLY and t == 4:
                    hflag(); hsent = True; t += 12
                if g == P.get("tpoll_gap", 305):
                    V("p", "buffer_load_dword v12, v5, s[84:87], s34 offen %s" % SC); t += 8
                t = max(t, 8)
                def to_burst():
                    c = 0
                    for r_, ops, burst in stream[:4]:
                        if burst: return c if r_ <= g else None
                        if isv(ops[0]): c += cost(ops[0])
                    return None
                while stream and stream[0][0] <= g:
                    tb = to_burst() if P.get("bfix", 1) else None
                    if tb is not None and t + tb <= 28: pass
                    elif tb is not None and tb <= 16 and t >= 16: break
                    elif t >= GL - 3: break
                    r_, ops, burst = stream.pop(0)
                    if ops == ["HDONE"]: hdone = g; continue
                    if not isv(ops[0]): front.append(ops[0]); continue
                    for o in ops: E(o); t += cost(o)
                    if burst: t = max(t, 29 + 4 * len(ops))
            est += max(16, t)
    sys.stderr.write("tail: %d stream ops left after last MFMA, est %d, hdone %s hsent %s memq %d\n" % (len(stream), est, hdone, hsent, len(memq)))
    stamp()
    for o in front: E(o)
    a("s_nop 1")
    for r_, ops, burst in stream:
        for o in ops:
            if o != "HDONE": E(o)
    HPOS = P.get("hflag_pos", 0)
    if not hsent and HPOS == 0: hflag(); hsent = True
    M4 = range(4)
    a("s_nop 1")
    for m in (1, 2, 3):
        a("%s %s, %s, %s, 0" % (MF, vr(Sc(m), 4), vr(Kf(m), 4), vr(Qf(m), 4)))
        a("%s %s, %s, %s, 0" % (MF, vr(Sp(m), 4), vr(Kf(m - 1), 4), vr(Qf(m), 4)))
    a("%s %s, %s, %s, 0" % (MF, vr(Sc(0), 4), vr(Kf(0), 4), vr(Qf(0), 4)))
    for o in cvt_acc(2, HACC, 20): a(o)
    a("v_add_u32 v4, s71, v24"); a("v_add_u32 v10, s71, v4"); a("v_add_u32 v8, s71, v10")
    for o in cvt_acc(VV(1, 3), accQ(5, 3), TT(0)): a(o)
    a("ds_write_b16 v24, v2"); a("ds_write_b16_d16_hi v4, v2"); a("ds_write_b16 v10, v3"); a("ds_write_b16_d16_hi v8, v3")
    a("s_cmp_eq_u32 s32, 3")
    a("s_cbranch_scc1 L_noexp")
    a("ds_write_b128 v25, %s offset:2048" % vr(Kf(3), 4))
    a("ds_write_b64 v25, %s offset:3072" % vr(VV(0, 3), 2))
    a("ds_write_b64 v25, %s offset:3080" % vr(VV(1, 3), 2))
    a.label("L_noexp")
    if not hsent: hflag()
    PPOS = P.get("poll_pos", 9)
    poll1 = lambda: V("p", "buffer_load_dword v12, v5, s[84:87], s34 offen %s" % SC)
    if PPOS == 0: poll1()
    for m in (2, 1):
        for o in cvt_acc(VV(1, m), accQ(5, m), TT(m)): a(o)
    vwait("W0", lg0=True)
    a("s_barrier")
    a("ds_read_b128 %s, v25" % vr(Kf(-1), 4))
    a("ds_read_b64 %s, v25 offset:1024" % vr(VV(0, -1), 2))
    a("ds_read_b64 %s, v25 offset:1032" % vr(VV(1, -1), 2))
    for o in cvt_acc(VV(1, 0), accQ(5, 0), TT(0)): a(o)
    a("s_and_b32 s3, s2, 4"); a("s_lshl_b32 s3, s3, 9")
    a("v_add_u32 v%d, s3, v15" % VX)
    for q in range(1, 4): a("v_add_u32 v%d, %d, v%d" % (VX + q, 8192 * q, VX))
    for q in range(2): a("v_xor_b32 v%d, 0x800, v%d" % (VX + 4 + q, VX + q))
    a("v_mov_b32 v11, 0xce6e6b28")
    a("s_waitcnt lgkmcnt(0)")
    a("%s %s, %s, %s, 0" % (MF, vr(Sp(0), 4), vr(Kf(-1), 4), vr(Qf(0), 4)))
    stamp()
    if PPOS == 1: poll1()
    LATE = [17, 18]
    dq = list(memq)
    aw = Weave(P.get("dma_every", 10), dq)
    CKP = P.get("check_pos", 0)
    BLK = P.get("blocking", 0)
    def hcheck():
        if BLK:
            aw.flush()
            check_flags(12, 5, "s34", "p", "L_f1")
            stamp()
            dq.extend([o for sg in range(NX0) for o in xops(sg)])
            aw.n = P.get("x_every", 4)
            for _ in range(P.get("x_burst", 4)): aw.one()
            return
        vwait("p")
        a("v_cmp_ne_u32 vcc, s96, v12")
        a("s_nop 0")
        a("s_cmp_eq_u64 vcc, 0")
        a("s_cselect_b32 s60, s46, %s" % ("s46" if P.get("ab_nocheck") else str(OOB)))
        if P.get("force_late"): a("s_mov_b32 s60, %d" % OOB)
        stamp()
        dq.extend([o for sg in range(NX0) for o in xops(sg)])
        for _ in range(P.get("x_burst", 3)): aw.one()
    if CKP == 0: hcheck()
    if P.get("ab_nosm"):
        aw_real = aw
        class Skip:
            def __call__(self, t):
                if t in keep: a(t)
            def one(self): aw_real.one()
            def flush(self): aw_real.flush()
        keep = set()
        aw = Skip()
    A_ = lambda m: TT(m)
    B_ = lambda m: TT(m) + 1
    X_ = lambda m: TT(m) + 2
    Y_ = lambda m: TT(m) + 3
    MR = (3, 2, 1, 0)
    for m in MR:
        for S_ in (Sc, Sp):
            aw("v_cndmask_b32 v%d, v%d, v%d, s[62:63]" % (S_(m), S_(m), S_(m) + 1))
            aw("v_cndmask_b32 v%d, v%d, v%d, s[62:63]" % (S_(m) + 2, S_(m) + 2, S_(m) + 3))
    for m in MR:
        aw("v_cndmask_b32 v%d, v%d, v%d, s[40:41]" % (A_(m), Sp(m), Sc(m)))
        aw("v_cndmask_b32 v%d, v%d, v%d, s[42:43]" % (B_(m), Sp(m) + 2, Sc(m) + 2))
    if CKP == 1: hcheck()
    def rnd():
        for m in MR: aw("v_cvt_pk_bf16_f32 v%d, v%d, v%d" % (X_(m), A_(m), B_(m)))
        for m in MR:
            aw("v_lshlrev_b32 v%d, 16, v%d" % (A_(m), X_(m)))
            aw("v_and_b32 v%d, s54, v%d" % (B_(m), X_(m)))
    rnd()
    for m in MR: aw("v_pk_mul_f32 %s, %s, s[48:49] op_sel_hi:[1,0]" % (vr(A_(m), 2), vr(A_(m), 2)))
    rnd()
    aw("v_cndmask_b32 v%d, v%d, v11, s[88:89]" % (A_(0), A_(0)))
    aw("v_cndmask_b32 v%d, v%d, v11, s[90:91]" % (B_(0), B_(0)))
    if CKP == 2: hcheck()
    if PPOS == 2: poll1()
    fillq = [unp("vw", VW)] + ["v_xor_b32 v%d, %d, v%d" % (VW + b, 32 * b, VW) for b in range(1, 8)] + \
            [unp("vwo", VWO)] + ["v_xor_b32 v%d, %d, v%d" % (VWO + b, 32 * b, VWO) for b in range(1, 4)] + \
            ["v_subrev_u32 v%d, %d, v%d" % (40 + b, R2, VWO + b) for b in range(4)] + \
            ["v_add_u32 v%d, %d, v%d" % (44 + b, 106496 - R2, VWO + b) for b in range(4)] + \
            [unp("vout", 2)]
    if P.get("ab_nosm"): keep.update(fillq)
    def pad(n):
        for _ in range(n):
            aw(fillq.pop(0) if fillq else "s_nop 0")
    def reduce(op):
        for m in MR: aw("%s v%d, v%d, v%d" % (op, X_(m), A_(m), B_(m)))
        for sw in ("v_permlane16_swap_b32", "v_permlane32_swap_b32"):
            for m in MR: aw("v_mov_b32 v%d, v%d" % (Y_(m), X_(m)))
            pad(2)
            for m in MR: aw("%s v%d, v%d" % (sw, X_(m), Y_(m)))
            pad(1)
            for m in MR: aw("%s v%d, v%d, v%d" % (op, X_(m), X_(m), Y_(m)))
    reduce("v_max_f32")
    if CKP == 3: hcheck()
    if PPOS == 3: poll1()
    for m in MR: aw("v_pk_add_f32 %s, %s, %s op_sel_hi:[1,0] neg_lo:[0,1] neg_hi:[0,1]" % (vr(A_(m), 2), vr(A_(m), 2), vr(X_(m), 2)))
    for m in MR: aw("v_pk_mul_f32 %s, %s, s[48:49] op_sel:[0,1]" % (vr(A_(m), 2), vr(A_(m), 2)))
    for m in MR:
        aw("v_exp_f32 v%d, v%d" % (A_(m), A_(m)))
        aw("v_exp_f32 v%d, v%d" % (B_(m), B_(m)))
    pad(1)
    reduce("v_add_f32")
    if CKP == 4: hcheck()
    if PPOS == 4: poll1()
    for m in MR: aw("v_rcp_f32 v%d, v%d" % (X_(m), X_(m)))
    pad(1)
    for m in MR: aw("v_pk_mul_f32 %s, %s, %s op_sel_hi:[1,0]" % (vr(A_(m), 2), vr(A_(m), 2), vr(X_(m), 2)))
    for m in MR: aw("v_cvt_pk_bf16_f32 v%d, v%d, v%d" % (X_(m), A_(m), B_(m)))
    for m in MR:
        aw("v_and_b32 v%d, 0xffff, v%d" % (A_(m), X_(m)))
        aw("v_lshrrev_b32 v%d, 16, v%d" % (B_(m), X_(m)))
    for m in MR:
        aw("v_lshlrev_b32 v%d, v27, v%d" % (A_(m), A_(m)))
        aw("v_lshlrev_b32 v%d, v27, v%d" % (B_(m), B_(m)))
    for m in MR:
        aw("v_cndmask_b32 v%d, v%d, 0, s[40:41]" % (Pf(m), A_(m)))
        aw("v_cndmask_b32 v%d, v%d, 0, s[42:43]" % (Pf(m) + 1, B_(m)))
        aw("v_cndmask_b32 v%d, 0, v%d, s[40:41]" % (Pf(m) + 2, A_(m)))
        aw("v_cndmask_b32 v%d, 0, v%d, s[42:43]" % (Pf(m) + 3, B_(m)))
    pad(max(2, len(fillq)))
    if CKP == 5: hcheck()
    sys.stderr.write("DMA queue left after softmax: %d\n" % len(dq))
    for m in MR:
        a("%s %s, %s, %s, 0" % (MF, vr(Sp(m), 4), vr(VV(0, m - 1), 4), vr(Pf(m), 4)))
        a("%s %s, %s, %s, 0" % (MF, vr(Sc(m), 4), vr(VV(1, m - 1), 4), vr(Pf(m), 4)))
    stamp()

    for _ in range(P.get("g2_shift", 0)): a("s_nop 0")
    lg = Cnt()
    for b in range(4):
        for o in wreads2(0, b): a(o); lg.issue((0, b))
    for m in M4:
        for h in range(4):
            a("v_cvt_pk_bf16_f32 v%d, v%d, v%d" % (240 + 4 * m + h, Sp(m) + 2 * h, Sp(m) + 2 * h + 1))
    aw.flush()
    if not BLK:
        vwait(*[t for t in vm.q if not t.startswith("X")])
        sv = list(vm.q)
        a("s_cmp_eq_u32 s60, s46")
        a("s_cbranch_scc1 L_early")
        a("s_mov_b32 s60, s46")
        poll1()
        check_flags(12, 5, "s34", "p", "L_f1")
        for sg in range(NX0):
            for o in xops(sg): E(o)
        assert vm.q == sv, (vm.q, sv)
        a.label("L_early")
    ostores = [("os", "buffer_store_dwordx4 %s, v15, s[28:31], s75 offen offset:%d %s" % (vr(240 + 4 * m, 4), 1024 * m, SC)) for m in M4]

    srd(a, 16, PX, 0, 2048 * 2048)
    srd(a, 20, PWS, PART_OFF, PART_BYTES)
    srd(a, 24, POUT, 0, 2048 * 2048)
    a("s_add_u32 s73, s72, 32768")
    a("s_lshl2_add_u32 s74, s2, s32"); F2S = P.get("f2shift", 2); a("s_lshl_b32 s88, s74, %d" % F2S); a("s_add_u32 s88, s88, %d" % F2)
    a("s_lshl_b32 s74, s74, 14")
    a("v_and_b32 v14, 0x30, v15"); a("v_max_u32 v14, 16, v14"); a("v_lshlrev_b32 v14, %d, v14" % (F2S - 1)); a("v_xor_b32 v14, s88, v14")
    a("s_add_u32 s89, s88, %d" % (1024 << F2S)); a("s_mov_b32 s94, %d" % (1024 << F2S))
    a("s_mov_b32 s92, s35")
    vwait("X0")
    stamp()

    AH = P.get("ahead", 1)
    Hs = [(sg, c) for sg in range(ND - AH) for c in (0, 1)] + [(sg, 0) for sg in range(ND - AH, ND)] + [(sg, 1) for sg in range(ND - AH, ND)] + \
         [(sg, c) for sg in range(ND, NS) for c in (0, 1)]
    lastuse = {sg: max(i for i, h in enumerate(Hs) if h[0] == sg) // 2 for sg in range(NS)}
    firstuse = {sg: min(i for i, h in enumerate(Hs) if h[0] == sg) // 2 for sg in range(NS)}
    wsched = {}
    for w in range(4, FR):
        wsched.setdefault(lastuse[w - 4], []).append(w)
        assert lastuse[w - 4] < firstuse[w] - 1 or w >= ND, (w, lastuse[w - 4], firstuse[w])
        assert lastuse[w - 4] < firstuse[w] - 1
    LASTBAR = FR - 2
    q01 = max(i for i, h in enumerate(Hs) if h[0] < ND and h[1] == 0)
    isV = lambda x: isinstance(x, tuple)
    isval = lambda x: isinstance(x, str) and x.startswith("v_")
    def stage(sg, h1=(), h2=(), pre=None, valu=None):
        last = sg == NS - 1
        if P.get("sstamp") and sg >= 1: stamp()
        if pre: pre()
        NG = 64 if sg < ND else 32
        H = NG // 2
        h1 = list(h1); h2 = [o for w in wsched.get(sg, []) for o in wops(w)] + list(h2)
        drop = lambda o: isinstance(o, tuple) and ((P.get("ab_dx") and o[0].startswith("X") and sg >= P["ab_dx"]) or (P.get("ab_dw") and o[0].startswith("W")) or (P.get("ab_dos") and o[0] in ("os", "e", "R")))
        h1 = [o for o in h1 if not drop(o)]; h2 = [o for o in h2 if not drop(o)]
        blk = lambda k, b: (Hs[2 * k + b // 4][0], 4 * Hs[2 * k + b // 4][1] + b % 4)
        r1 = [((sg, b), o) for b in range(4, 8) for o in wreads2(*blk(sg, b), b)]
        r2 = [] if last else [((sg + 1, b), o) for b in range(4) for o in wreads2(*blk(sg + 1, b), b)]
        bar = sg <= LASTBAR
        plan = {g: [] for g in range(NG)}
        load = {g: 4 for g in range(NG)}
        WG_ = {H // 2 - 1: (sg, 3), NG - 1: (sg + 1, 1)}
        if not bar: WG_.update({H - 1: (sg, 5), 3 * H // 2 - 1: (sg, 7)})
        for g in WG_: load[g] += 4
        if bar: load[H - 1] += 8
        def place(lo, hi, rds, rhi, h):
            n = len(rds)
            for k in range(n):
                g = lo + k * (rhi - lo + 1) // n
                plan[g].append(("r",) + rds[k]); load[g] += 8
            nv = sum(isV(x) for x in h)
            pos = [None] * len(h); vi = 0; prev = lo
            for k, x in enumerate(h):
                if isV(x):
                    t = lo + int((vi + 0.5) * (hi - lo + 1) / nv); vi += 1
                    c = sorted(range(max(prev, t - 1), min(hi, t + 1) + 1), key=lambda g: (load[g], abs(g - t))) or [hi]
                    pos[k] = prev = c[0]; load[c[0]] += 8
            prev = lo
            for k, x in enumerate(h):
                if pos[k] is None:
                    nxt = next((pos[j] for j in range(k + 1, len(h)) if pos[j] is not None), hi)
                    if isval(x) and nxt > prev: nxt -= 1
                    c = [g for g in range(prev, nxt + 1) if load[g] <= 12]
                    g = c[0] if c else min(range(prev, max(prev, nxt) + 1), key=lambda g: load[g])
                    pos[k] = g; load[g] = max(load[g], 8 if isval(x) else 0) + 4
                pos[k] = max(pos[k], prev); prev = pos[k]
                plan[pos[k]].append(("o", x))
        place(0, H - 1, r1, (H - 7 if NG == 64 else H - 4) if bar else H - 1, h1)
        place(H, NG - 1, r2, NG - 1, h2)
        if valu:
            for k, x in enumerate(valu[0]): plan[valu[1] + k * (NG - valu[1]) // len(valu[0])].append(("o", x))
        sys.stderr.write("st%d:%d " % (sg, sum(max(16, v) for v in load.values())))
        g = 0
        for b in range(8):
            w = lg.need((sg, b))
            if w is not None: a("s_waitcnt lgkmcnt(%d)" % w)
            for mf in mfmas2(*blk(sg, b), b):
                a(mf)
                for x in plan[g]:
                    if x[0] == "r": a(x[2]); lg.issue(x[1])
                if g in WG_:
                    w = lg.need(WG_[g])
                    if w is not None: a("s_waitcnt lgkmcnt(%d)" % w)
                for x in plan[g]:
                    if x[0] != "r": E(x[1])
                if g == H - 1 and bar:
                    allw = ["W%d" % w for w in range(NS)] if sg == LASTBAR else []
                    vwait("W%d" % Hs[2 * sg + 2][0], "W%d" % Hs[2 * sg + 3][0], *allw, lg0=True)
                    a("s_barrier")
                    lg.clear()
                if g == H - 2: vwait("X%d" % Hs[2 * sg + 1][0])
                if g == NG - 2 and not last: vwait("X%d" % Hs[2 * sg + 2][0])
                g += 1
    def oflag():
        vwait("os")
        V("f", "buffer_store_dword v7, v6, s[84:87], s92 offen %s" % SC)
    EPV = 224
    eload = ["v_lshlrev_b32 v4, %d, v15" % (F0S - 2), "s_or_b32 s3, s2, s32", "s_cselect_b32 s3, %d, 0" % OOB] + \
          [("e", "buffer_load_dwordx4 %s, v4, s[84:87], s3 offen offset:%d %s" % (vr(EPV + 4 * k, 4), k << F0S, SC)) for k in range(4)]
    def epoch():
        a("s_or_b32 s3, s2, s32")
        a("s_cbranch_scc1 L_noep")
        a("s_mov_b32 s97, 0")
        a.label("L_ep")
        for k in range(0, 16, 4 if WF else 1): a("v_xor_b32 v%d, s96, v%d" % (EPV + k, EPV + k))
        for k in range(4 if WF else 1, 16, 4 if WF else 1): a("v_or_b32 v%d, v%d, v%d" % (EPV, EPV, EPV + k))
        a("v_cmp_ne_u32 vcc, 0, v%d" % EPV)
        a("s_cbranch_vccz L_epok")
        for k in range(4): a("buffer_load_dwordx4 %s, v4, s[84:87], 0 offen offset:%d %s" % (vr(EPV + 4 * k, 4), k << F0S, SC))
        a("s_add_u32 s97, s97, 1")
        a("s_waitcnt vmcnt(0)")
        a("s_cmp_lt_u32 s97, 0x80000")
        a("s_cbranch_scc1 L_ep")
        a.label("L_epok")
        a("s_mov_b32 s3, %d" % EPOCH)
        a("buffer_store_dword v7, v6, s[84:87], s3 offen %s" % SC)
        a.label("L_noep")

    PK, XU, XRES, TE = 64, 112, 240, 224
    KEEP = 160
    XUF = lambda o: 80 + (o // 16) * 32 + o % 16
    sends = []
    for hf in range(2):
        for qd in range(3):
            for k in (2 * hf, 2 * hf + 1):
                R = 64 + 32 * qd + 8 * k
                sends.append((["s_add_u32 s75, s74, %d" % (4096 * qd)] if k % 2 == 0 else []) +
                             [("v_cvt_pk_bf16_f32 v%d, v%d, v%d" % (R + r, R + 2 * r, R + 2 * r + 1)) for r in range(4)] +
                             [("S%d" % hf, "buffer_store_dwordx4 %s, v15, s[20:23], s75 offen offset:%d %s" % (vr(R, 4), 1024 * k, SC))])
    if P.get("send_order"): sends = sends[0:4] + sends[6:10] + sends[4:6] + sends[10:12]
    PKR = lambda qd, k: 64 + 32 * qd + 4 * k
    xres = [("R", "buffer_load_dwordx4 %s, v2, s[16:19], s%d offen offset:%d" % (vr(XRES + 4 * (2 * m + bp), 4), 72 + m, 64 * bp)) for m in range(2) for bp in range(2)]
    parts = ["s_xor_b32 s%d, s74, 0x%x" % (40 + qd, (dx << 16) + 4096 * qd) for qd, dx in enumerate((2, 6, 4))]
    for k in range(4):
        parts += [("P%d" % k, "buffer_load_dwordx4 %s, v15, s[20:23], s%d offen offset:%d %s" % (vr(PKR(qd, k), 4), 40 + qd, 1024 * k, SC)) for qd in range(3)]
    if P.get("ab_nosend"): sends = [[o for o in x if not isinstance(o, tuple)] for x in sends]
    if P.get("ab_noparts"): parts = parts[:3] + ["s_nop 0"] * 12
    SPA = P.get("send", [4, 2, 1, 1, 1, 1, 1, 1])
    NBB = P.get("nbb", 1)
    EXA, EXB = P.get("ex_a", [16, 17.5, 19]), P.get("ex_b", [18.5, 20.5, 22])
    XRS = P.get("xres_stage", 12)
    def take(n):
        r = [o for x in sends[:n] for o in x]; del sends[:n]; return r
    def sflag(hf):
        vwait("S%d" % hf)
        V("f", "buffer_store_dword v7, v%d, s[84:87], s%d offen %s" % (13 if (FL & 4 and F2S == 7) else 6, 88 + hf, SC))
    pollx = lambda hf: ("p%d" % hf, "buffer_load_dword v%d, v14, s[84:87], %s offen %s" % ((3, 12)[hf], ("0", "s94")[hf], SC))
    checkx = lambda hf: check_flags((3, 12)[hf], 14, ("0", "s94")[hf], "p%d" % hf, "L_f3%d" % hf)
    partx = lambda hf: parts[:9] if hf == 0 else parts[9:]
    def round4(R, T):
        return ["v_cvt_pk_bf16_f32 v%d, v%d, v%d" % (T, R, R + 1), "v_cvt_pk_bf16_f32 v%d, v%d, v%d" % (T + 1, R + 2, R + 3),
                "v_lshlrev_b32 v%d, 16, v%d" % (R, T), "v_and_b32 v%d, s54, v%d" % (R + 1, T),
                "v_lshlrev_b32 v%d, 16, v%d" % (R + 2, T + 1), "v_and_b32 v%d, s54, v%d" % (R + 3, T + 1)]
    xpart = [lambda: vwait("R"), "v_mov_b32 v8, 0x3f80", "v_mov_b32 v9, 1.0"]
    for g4 in range(4):
        R = XRES + 4 * g4
        xpart += ["v_permlane16_swap_b32 v%d, v%d" % (R, R + 2), "v_permlane16_swap_b32 v%d, v%d" % (R + 1, R + 3)]
    for m in range(2):
        for bp in range(2):
            for be in range(2):
                for h in range(2):
                    src = XRES + 4 * (2 * m + bp) + 2 * be + h
                    d = XUF((m * 4 + 2 * bp + be) * 4 + 2 * h)
                    xpart += ["v_lshlrev_b32 v%d, 16, v%d" % (d, src), "v_and_b32 v%d, s54, v%d" % (d + 1, src)]
    QD, QO, SW = P.get("qd", 7.75), P.get("qo", 5.5), P.get("sw", 1.5)
    xq = []
    for x in range(NX0, NS):
        o = xops(x); xq += [(x, o[:2])] + [(x, [y]) for y in o[2:]]
    fq = []
    for t in LATE:
        o = wops(t, True)
        fq += [(1, [o[0], o[1 + 2 * k], o[2 + 2 * k]]) for k in range(4)]
    fq += [(2, [y]) for y in xres]
    OS0 = P.get("os_half", 0)
    FMIN = P.get("fill_from", 10)
    alloc = {}; first = {}; carry = 0.0
    for hh in range(2 * NS):
        sg = hh // 2
        w = carry + (4 * len(wsched.get(sg, [])) if hh % 2 else 0)
        L = []
        if OS0 <= hh < OS0 + 4: L.append(ostores[hh - OS0]); w += SW
        k = hh - q01 - 1
        if 0 <= k < len(SPA): w += SW * SPA[k]
        q = QD if sg < ND else QO
        urgent = lambda: xq and firstuse[xq[0][0]] <= sg + P.get("xmin", 1)
        while w + 0.5 <= q or urgent():
            if fq and hh >= FMIN and hh % 2 == 0 and not any(o in L for _, f in fq[:0] for o in f) and P.get("fill_mix", 1) and not urgent() and sum(1 for o in L if isinstance(o, tuple) and not o[0].startswith("X")) < 2:
                c, o = fq.pop(0); L += o; w += c
            elif xq and (xq[0][0] < NXB or lastuse[xq[0][0] - NXB] < sg):
                x, o = xq.pop(0); first.setdefault(x, sg); L += o; w += 1
                assert firstuse[x] > sg, (x, sg)
            elif fq and hh >= FMIN:
                c, o = fq.pop(0); L += o; w += c
            else: break
        carry = w - q if abs(w - q) < 1 or w > q else 0.0
        alloc[hh] = L
        sys.stderr.write("%d:%d " % (hh, sum(isinstance(o, tuple) for o in L)))
    sys.stderr.write(" first %s\n" % first)
    assert not xq and not fq
    assert all(not (isinstance(o, tuple) and (o[0] == "R" or o[0][0] == "W")) for hh in range(2 * 13, 2 * NS) for o in alloc[hh])
    ck2, cko = first[7], first[ND]
    for sg in range(NS):
        h1, h2 = list(alloc[2 * sg]), list(alloc[2 * sg + 1])
        pre = []
        if sg == 1: h2 = h2 + eload
        if sg == (OS0 + 3) // 2 + 2: pre.append(oflag)
        if sg == ck2 - 2: h2 = h2 + [("p", "buffer_load_dword v12, v5, s[84:87], s58 offen %s" % SC)]
        if sg == ck2: pre += [lambda: check_flags(12, 5, "s58", "p", "L_f1b")]
        if sg == 4: pre += [lambda: vwait("e"), epoch]
        if sg == cko - 2: h2 = h2 + [("p", "buffer_load_dword v3, v13, s[84:87], s59 offen %s" % SC)]
        if sg == cko: pre.append(lambda: check_flags(3, 13, "s59", "p", "L_f2"))
        for hh, lst in ((2 * sg, h1), (2 * sg + 1, h2)):
            k = hh - q01 - 1
            t_ = take(SPA[k]) if 0 <= k < len(SPA) else []
            if P.get("send_first", 1): lst[:0] = t_
            else: lst += t_
        for hf, (f_, p_, c_) in enumerate((EXA, EXB)):
            if sg == p_: h2 = h2 + [pollx(hf)]
            if sg - 0.5 == p_: h1 = h1 + [pollx(hf)]
            if sg == f_: pre.append(lambda hf=hf: sflag(hf))
            if sg + 0.5 == f_: h2 = [lambda hf=hf: sflag(hf)] + h2
            if sg == c_:
                pre.append(lambda hf=hf: checkx(hf)); px = partx(hf); h1 = h1 + px[:-3]; h2 = px[-3:] + h2
        if sg == ND: stamp()
        wv = None
        if sg == P.get("xpart_stage", 20): wv = (xpart, 0)
        stage(sg, h1, h2, pre=(lambda pre=pre: [f() for f in pre]), valu=wv)
    sys.stderr.write("\n")
    assert not sends
    stamp()
    for hf, (f_, p_, c_) in enumerate((EXA, EXB)):
        if c_ == NS and not (hf == 1 and NBB):
            checkx(hf)
            for o in partx(hf): E(o)
    def nb_try():
        vwait("p1")
        a("v_cmp_ne_u32 vcc, s96, v12")
        a("s_nop 0")
        a("s_cmp_eq_u64 vcc, 0")
        a("s_cselect_b32 s46, 0, %d" % OOB)
        if P.get("force_late"): a("s_mov_b32 s46, %d" % OOB)
        for qd in range(3): a("s_add_u32 s%d, s%d, s46" % (43 + qd, 40 + qd))
        for t, o in partx(1):
            for qd in range(3): o = o.replace("s%d offen" % (40 + qd), "s%d offen" % (43 + qd))
            V(t, o)
    def nb_fix():
        a("s_cmp_eq_u32 s46, 0")
        a("s_cbranch_scc1 L_nbok")
        sv = list(vm.q)
        E(pollx(1)); checkx(1)
        for o in partx(1): E(o)
        a("s_waitcnt vmcnt(0)")
        vm.q = sv
        a.label("L_nbok")
    if NBB == 1: nb_try()
    def dots(k):
        vwait("P%d" % k)
        for qd in range(3):
            for r in range(8):
                a("v_dot2_f32_bf16 v%d, v%d, v%d, v%d" % (KEEP + 8 * k + r, PKR(qd, k) + r // 2, 8 + (r & 1), KEEP + 8 * k + r))
    MIM = P.get("mimic", "s")
    if "s" in MIM:
        a("s_nop 7")
        for k in range(8):
            for x in round4(accO(0, 0) + 4 * k, 48 + 2 * (k % 2)): a(x)
    if NBB == 2: nb_try()
    for m in range(2):
        if m == 1 and NBB: nb_fix()
        dots(2 * m); dots(2 * m + 1)
        o = 16 * m
        H8 = range(0, 16, 2)
        if "y" in MIM:
            for k in range(4):
                for x in round4(KEEP + o + 4 * k, 10 + 2 * (k % 2)): a(x)
        for h in H8: a("v_pk_mul_f32 %s, %s, s[50:51]" % (vr(TE + o + h, 2), vr(KEEP + o + h, 2)))
        for r in range(16): a("v_exp_f32 v%d, v%d" % (TE + o + r, TE + o + r))
        for h in H8: a("v_pk_mul_f32 %s, %s, %s" % (vr(KEEP + o + h, 2), vr(KEEP + o + h, 2), vr(accO(0, 0) + o + h, 2)))
        for h in H8: a("v_pk_add_f32 %s, %s, s[52:53]" % (vr(TE + o + h, 2), vr(TE + o + h, 2)))
        for bp in range(2):
            D = 32 + 4 * (2 * m + bp)
            offs = [o + (bp * 2 + be) * 4 for be in range(2)]
            for f in offs:
                for r in range(4): a("v_rcp_f32 v%d, v%d" % (TE + f + r, TE + f + r))
            for f in offs:
                for h in (0, 2): a("v_pk_fma_f32 %s, %s, %s, %s" % (vr(KEEP + f + h, 2), vr(KEEP + f + h, 2), vr(TE + f + h, 2), vr(XUF(f + h), 2)))
            for be, f in enumerate(offs):
                a("v_cvt_pk_bf16_f32 v%d, v%d, v%d" % (D + 2 * be, KEEP + f, KEEP + f + 1))
                a("v_cvt_pk_bf16_f32 v%d, v%d, v%d" % (D + 2 * be + 1, KEEP + f + 2, KEEP + f + 3))
            a("s_nop 0")
            a("v_permlane16_swap_b32 v%d, v%d" % (D, D + 2))
            a("v_permlane16_swap_b32 v%d, v%d" % (D + 1, D + 3))
            a("s_nop 0")
            V("out", "buffer_store_dwordx4 %s, v2, s[24:27], s%d offen offset:%d %s" % (vr(D, 4), 72 + m, 64 * bp, P.get("outfl", ["sc1", ""])[m]))
    if probe is not None:
        stamp(); a("s_waitcnt vmcnt(0)"); stamp()
        a.label("L_probe")
        a("s_memrealtime s[4:5]"); a("s_waitcnt lgkmcnt(0)"); a("s_sub_u32 s4, s4, s98"); a("s_cmp_lt_u32 s4, 10000"); a("s_cbranch_scc1 L_probe")
    if prof:
        stamp(); a("s_waitcnt vmcnt(0)"); stamp()
        srd(a, 8, PWS, STAMP_OFF, 65536)
        a("s_lshl_b32 s3, s2, 8")
        a("v_lshl_add_u32 v8, v0, 2, s3")
        a("v_cmp_gt_u32 vcc, 64, v0")
        a("s_and_b64 exec, exec, vcc")
        a("s_cbranch_execz L_end")
        a("buffer_store_dword v31, v8, s[8:11], 0 offen")
    a.label("L_end")
    a("s_endpgm")
    desc(a, name, 256 + NAGPR, 100, 256)
    hdr = open("recurrent_scan__sliding_local_dilated__swiglu_ffn__prompt.s.ref").read().split("; Override launch")[0]
    if P.get("aslist", 1):
        hdr += "; @launch kernel=%s grid=(256,1,1) block=(256,1,1) lds=%d\n" % (name, LDS_BYTES)
    else:
        hdr += "; @launch grid=(256,1,1) block=(256,1,1) lds=%d\n" % LDS_BYTES
    txt = a.text()
    if P.get("mfma_align"):
        txt = txt.replace("    v_mfma", "    .p2align 3\n    v_mfma")
    return hdr + txt

if __name__ == "__main__":
    P = json.loads(sys.argv[2]) if len(sys.argv) > 2 else {}
    open(sys.argv[1], "w").write(gen(P))
```

```python
import sys, json
sys.path.insert(0, "dev")
from gen_common import *

MAIN = "recurrent_scan__sliding_local_dilated__swiglu_ffn__prompt_kernel"
SLOT = 40960
GATE, UP, QKV = 0, 14336, 28672
EX = 155648
LDS_BYTES = 163840
LNX = EX
R2 = SLOT
F0, F1H, F1O, F2, EPOCH = 0, 32768, 40960, 262144, 65536
NONCE_ADD = 0x6A09E667
OOB = 0x40000000
SC = "sc1"
MF = "v_mfma_f32_16x16x32_bf16"

DOC = """; Single persistent kernel, one 4-wave workgroup per CU (generated by my own script):
;   phase 1  256x320 tile of xn @ [gate|up|q|k|v] (weights via LDS-DMA + transposing LDS reads), SwiGLU woven into
"""

class Cnt:
    def __init__(self, init=(), cap=15):
        self.q = list(init); self.cap = cap
    def issue(self, tag): self.q.append(tag)
    def need(self, *tags):
        idx = [i for i, t in enumerate(self.q) if t in tags]
        if not idx: return None
        last = max(idx)
        n = len(self.q) - 1 - last
        self.q = self.q[last + 1:]
        return min(n, self.cap)
    def clear(self): self.q = []

def cost(o):
    s = o[1] if isinstance(o, tuple) else o
    if callable(s): return 4
    if s.startswith(("v_exp", "v_rcp", "buffer_", "v_permlane")): return 8
    return 4

def gen(P):
    a = Asm()
    name = MAIN
    prof, probe = P.get("prof"), P.get("probe")
    nst = [0]
    def stamp():
        if probe is not None:
            if nst[0] == probe:
                a("s_memrealtime s[98:99]"); a("s_waitcnt lgkmcnt(0)")
            nst[0] += 1
            return
        if not prof: return
        a("%s s[98:99]" % ("s_memtime" if prof == 2 else "s_memrealtime"))
        a("s_waitcnt lgkmcnt(0)")
        a("v_writelane_b32 v31, s98, %d" % nst[0])
        nst[0] += 1
    XSC = P.get("xsc", "sc1")
    ROT2 = P.get("g2_rot", 0)
    vm = Cnt(cap=63)
    def V(tag, s):
        vm.issue(tag)
        if s.endswith("lds") and a.lines[-1].strip().startswith("s_add_u32 m0"): a("s_nop 0")
        a(s)
    def E(o):
        if isinstance(o, tuple): V(*o)
        elif callable(o): o()
        else: a(o)
    def vwait(*tags, lg0=False):
        n = vm.need(*tags)
        parts = ([] if n is None else ["vmcnt(%d)" % n]) + (["lgkmcnt(0)"] if lg0 else [])
        if parts: a("s_waitcnt " + " ".join(parts))
    def check_flags(vreg, voff, soff, tag, label):
        vwait(tag)
        a("v_cmp_ne_u32 vcc, s96, v%d" % vreg)
        a("s_cbranch_vccz %s_ok" % label)
        a("s_mov_b32 s97, 0")
        a.label(label + "_spin")
        if P.get("spin_sleep", 1): a("s_sleep %d" % P.get("spin_sleep", 1))
        a("buffer_load_dword v%d, v%d, s[84:87], %s offen %s" % (vreg, voff, soff, P.get("pollfl", SC)))
        a("s_add_u32 s97, s97, 1")
        a("s_waitcnt vmcnt(0)")
        a("s_cmp_gt_u32 s97, 0x80000")
        a("s_cbranch_scc1 %s_ok" % label)
        a("v_cmp_ne_u32 vcc, s96, v%d" % vreg)
        a("s_cbranch_vccnz %s_spin" % label)
        a.label(label + "_ok")

    class Weave:
        def __init__(self, n, q, skip=0): self.n, self.c, self.q = n, -skip, q
        def __call__(self, t):
            a(t)
            if t.startswith("v_") and not t.startswith("v_mfma"):
                self.c += 1
                if self.c > 0 and self.c % self.n == 0: self.one()
        def one(self):
            while self.q:
                o = self.q.pop(0); E(o)
                if isinstance(o, tuple): break
        def flush(self):
            while self.q: self.one()

    accGU = lambda p, gu, m: 32 + ((p * 2 + gu) * 4 + m) * 4
    accQ = lambda s, m: (s * 4 + m) * 4
    HACC = 96
    XB = lambda buf, m, kh: (100 + buf * 40 + (m * 2 + kh) * 4) if buf < 2 else ((224 + (m * 2 + kh) * 4) if m < 4 else 172 + kh * 4)
    WR = lambda slot, kh: 180 + slot * 8 + kh * 4
    HW = lambda kh: 212 + kh * 4
    PARK = 220
    NAGPR = 256
    PX, PQKV, PWO, PG, PU, PD, POUT, PDBG, PWS = 64, 66, 68, 72, 74, 76, 78, 80, 82

    a.raw('.amdgcn_target "amdgcn-amd-amdhsa--gfx950"')
    kernel_header(a, name)
    a("s_cmp_ge_u32 s2, 256")
    a("s_cbranch_scc1 L_end")
    a("s_load_dwordx16 s[64:79], s[0:1], 0")
    a("s_load_dwordx4 s[80:83], s[0:1], 64")
    a("s_getpc_b64 s[4:5]")
    a.label("L_pc")
    a("v_and_b32 v17, 63, v0")
    a("s_mov_b32 s6, L_end-L_pc")
    a("s_mov_b32 s7, 0x20000")
    a("v_lshlrev_b32 v1, 7, v17")
    a("s_bfe_u32 s3, s2, 0x30003")
    a("s_lshl_b32 s3, s3, 13")
    V("c", "buffer_load_dword v29, v1, s[4:7], s3 offen")
    if prof: a("v_mov_b32 v31, 0")
    stamp()
    a("v_lshrrev_b32 v16, 6, v0")
    a("v_lshrrev_b32 v18, 3, v17")
    a("v_and_b32 v19, 7, v17")
    a("v_readfirstlane_b32 s32, v16")
    a("v_lshlrev_b32 v20, 11, v18")
    a("v_lshl_add_u32 v20, v16, 9, v20")
    a("v_lshl_add_u32 v20, v19, 4, v20")
    a("s_and_b32 s34, s2, 7")
    a("s_bfe_u32 s35, s2, 0x20003")
    a("s_lshl2_add_u32 s34, s34, s35")
    a("s_lshr_b32 s33, s2, 5")
    a("s_lshl_b32 s36, s33, 5")
    a("s_add_u32 s36, s36, s34")
    a("s_lshl_b32 s37, s36, 14")
    a("v_mov_b32 v6, 0")
    a("s_mov_b32 s50, %d" % (2048 * 2048))
    a("s_mov_b32 s51, 0x20000")
    a("s_waitcnt lgkmcnt(0)")
    a("s_mov_b64 s[48:49], s[%d:%d]" % (PX, PX + 1))
    LX = 32
    for u in range(4):
        V("x", "buffer_load_dwordx4 %s, v20, s[48:51], s37 offen offset:%d %s" % (vr(LX + 4 * u, 4), 128 * u, P.get("xfl", "")))
    srd(a, 84, PWS, FLAG_OFF, FLAG_BYTES)
    a("s_mov_b32 s3, %d" % EPOCH)
    V("ep", "buffer_load_dword v7, v6, s[84:87], s3 offen")
    if P.get("ftouch", 0):
        a("v_lshlrev_b32 v21, 17, v17")
        a("s_lshl2_add_u32 s3, s2, s32")
        a("s_lshl_b32 s3, s3, 7")
        V("t", "buffer_load_dword v29, v21, s[84:87], s3 offen %s" % P.get("ftfl", ""))
    stamp()
    if P.get("xrot", 1): a("s_and_b32 s80, s2, 7"); a("s_lshl_b32 s80, s80, 1")
    else: a("s_mov_b32 s80, 0")
    a("s_mov_b32 s81, s80")
    a("s_and_b32 s57, s34, 1")
    a("s_lshr_b32 s58, s34, 1")
    a("s_mul_i32 s58, s58, 448")
    a("s_cmp_eq_u32 s32, 1")
    a("s_cselect_b64 s[88:89], s[%d:%d], s[%d:%d]" % (PU, PU + 1, PG, PG + 1))
    a("s_cmp_eq_u32 s32, 3")
    a("s_cbranch_scc1 L_t3")
    XT = P.get("xtouch", 1)
    if not XT:
        a("s_mul_i32 s3, s57, 208")
        a("s_add_u32 s3, s3, s58")
        a("s_movk_i32 s92, 7168")
        a("s_movk_i32 s93, 118")
        a("s_cmp_eq_u32 s32, 2")
        a("s_cbranch_scc0 L_t01")
        a("s_mov_b64 s[88:89], s[%d:%d]" % (PQKV, PQKV + 1))
        a("s_lshl_b32 s3, s34, 6")
        a("s_movk_i32 s92, 6144")
        a("s_movk_i32 s93, 2048")
        a.label("L_t01")
        a("s_lshl_b32 s90, s92, 10")
        a("v_bfe_u32 v21, v17, 2, 3")
        a("v_and_b32 v22, 32, v17")
        a("v_lshl_add_u32 v21, v22, 1, v21")
        a("v_and_b32 v22, 3, v17")
        a("v_mul_u32_u24 v30, s92, v21")
        a("v_mul_u32_u24 v23, s93, v22")
        a("v_and_b32 v23, -4, v23")
        a("v_add3_u32 v30, v30, v23, s3")
        a("v_cmp_eq_u32 vcc, 3, v22")
        a("v_mov_b32 v23, %d" % OOB)
        a("s_lshl3_add_u32 s94, s80, s33")
        a("s_lshl_b32 s94, s94, 3")
        a("v_cndmask_b32 v30, v30, v23, vcc")
    else:
        a("s_and_b32 s93, s2, 7")
        a("s_mul_i32 s3, s93, 896")
        a("s_movk_i32 s92, 7168")
        a("v_lshl_add_u32 v23, v19, 7, s3")
        a("s_movk_i32 s95, 6")
        a("s_cmp_eq_u32 s32, 2")
        a("s_cbranch_scc0 L_t01")
        a("s_mov_b64 s[88:89], s[%d:%d]" % (PQKV, PQKV + 1))
        a("s_lshl_b32 s3, s93, 8")
        a("s_movk_i32 s92, 6144")
        a("v_and_b32 v22, 1, v17")
        a("v_lshl_add_u32 v23, v22, 7, s3")
        a("v_lshrrev_b32 v22, 1, v19")
        a("v_lshl_add_u32 v23, v22, 11, v23")
        a("s_movk_i32 s95, 5")
        a.label("L_t01")
        a("s_lshl_b32 s90, s92, 10")
        a("v_and_b32 v21, 1, v18")
        a("v_and_b32 v22, 32, v17")
        a("v_lshl_add_u32 v21, v22, 1, v21")
        a("v_mad_u32_u24 v30, v21, s92, v23")
        a("v_and_b32 v22, 23, v17")
        a("v_cmp_lt_u32 vcc, s95, v22")
        a("v_mov_b32 v23, %d" % OOB)
        a("s_lshr_b32 s94, s2, 3")
        a("s_lshl_b32 s3, s80, 5")
        a("s_add_u32 s94, s94, s3")
        a("s_lshl_b32 s94, s94, 1")
        a("v_cndmask_b32 v30, v30, v23, vcc")
    a("v_mov_b32 v25, %s" % ("v30" if not P.get("now1") else str(OOB)))
    if P.get("noearly"): a("v_mov_b32 v30, %d" % OOB)
    a("s_mul_i32 s94, s94, s92")
    a("s_lshl_b32 s95, s92, 7")
    a("s_branch L_td")
    a.label("L_t3")
    a("s_mov_b64 s[88:89], s[%d:%d]" % (PD, PD + 1))
    a("v_lshlrev_b32 v30, 7, v17")
    a("s_bfe_u32 s3, s2, 0x20001")
    a("s_add_u32 s3, s3, 1")
    a("s_mul_i32 s90, s3, %d" % (896 * 2048))
    a("s_lshr_b32 s94, s2, 3")
    a("s_lshl_b32 s94, s94, 13")
    a("s_add_u32 s94, s94, s90")
    a("s_sub_u32 s94, s94, %d" % (128 * 2048))
    a("s_mov_b32 s95, 0")
    if P.get("w2half", 1):
        a("s_and_b32 s3, s2, 1"); a("s_lshl_b32 s3, s3, 4"); a("v_and_b32 v21, 16, v17"); a("v_xor_b32 v21, s3, v21"); a("v_lshl_add_u32 v30, v21, 26, v30")
    a("v_mov_b32 v25, v30")
    a("v_mov_b32 v30, %d" % OOB)
    if P.get("now2"): a("v_mov_b32 v25, %d" % OOB)
    a.label("L_td")
    a("s_mov_b32 s91, 0x20000")
    TH = P.get("t_half", 0)
    if TH:
        a("s_mov_b32 exec_hi, 0")
        V("t", "buffer_load_dword v29, v30, s[88:91], s94 offen")
        a("s_mov_b32 exec_hi, -1")
    for k in range(P.get("t_early", 1) if not TH else 0):
        V("t", "buffer_load_dword v29, v30, s[88:91], s94 offen %s" % P.get("t0fl", ""))
        for o in ["s_add_u32 s94, s94, s95", "s_cmp_ge_u32 s94, s90", "s_cselect_b32 s3, s90, 0", "s_sub_u32 s94, s94, s3"]: a(o)
    if P.get("t_w2"):
        a("s_mov_b32 exec_hi, 0")
        V("t", "buffer_load_dword v29, v30, s[88:91], s94 offen")
        a("s_mov_b32 exec_hi, -1")
    a("v_lshlrev_b32 v21, 17, v16")
    a("v_lshrrev_b32 v22, 2, v19")
    a("v_lshl_add_u32 v21, v22, 10, v21")
    a("v_and_b32 v22, 3, v19")
    a("v_lshl_add_u32 v21, v22, 8, v21")
    a("v_lshl_add_u32 v28, v18, 4, v21")
    a("s_lshl_b32 s60, s33, 19")
    a("s_lshr_b32 s51, s34, 1")
    a("s_lshl_b32 s51, s51, 11")
    a("s_add_u32 s50, s60, s51")
    a("s_lshl_b32 s51, s57, 7")
    a("s_add_u32 s50, s50, s51")
    a("s_add_u32 s51, s50, 32768")
    a("s_add_u32 s52, s50, 65536")
    a("s_add_u32 s53, s50, 98304")
    a("v_lshlrev_b32 v26, 5, v18")
    a("v_add_u32 v26, %d, v26" % LNX)
    a("v_lshl_add_u32 v27, v16, 3, v26")
    a("s_mov_b64 s[24:25], s[%d:%d]" % (PWS, PWS + 1))
    a("s_add_u32 s26, s60, 0x80000")
    a("s_mov_b32 s27, 0x20000")
    a("s_mov_b32 s54, 0xffff0000")
    F0S = P.get("f0shift", 7)
    a("s_lshl_b32 s92, s36, %d" % F0S)
    WF = P.get("wgflag", 1)
    if WF: a("s_lshl_b32 s3, s32, 28"); a("s_add_u32 s92, s92, s3")
    else: a("s_lshl2_add_u32 s92, s32, s92")
    a("s_mov_b32 s3, 0x3f803f80")
    a("v_mov_b32 v116, s3")
    a("s_max_u32 s61, s33, 1")
    a("s_sub_u32 s61, s61, 1")
    a("s_lshl_b32 s59, s61, %d" % (5 + F0S))
    a("s_add_u32 s59, s59, %d" % (30 << F0S))
    a("s_lshl_b32 s3, s33, %d" % (5 + F0S))
    a("s_lshl_b32 s48, s32, %d" % (3 + F0S))
    a("s_add_u32 s3, s3, s48")
    a("v_and_b32 v21, %d, v17" % (0 if WF else 3))
    a("v_lshlrev_b32 v21, 2, v21")
    a("v_lshrrev_b32 v20, 2, v17")
    a("v_lshl_add_u32 v20, v20, %d, v21" % F0S)
    a("v_and_b32 v21, %d, v20" % ((1 << F0S) + 12))
    a("v_add_u32 v20, s3, v20")
    a("v_add_u32 v21, s59, v21")
    a("v_cmp_gt_u32 vcc, 32, v17")
    a("v_mov_b32 v22, %d" % OOB)
    a("v_lshlrev_b32 v15, 4, v17")
    a("v_cndmask_b32 v254, v21, v20, vcc")
    a("v_cndmask_b32 v121, v22, v25, vcc")
    a("v_cndmask_b32 v122, v25, v22, vcc")

    def g1_setup_w():
        def krow(dst, rho, t1):
            a("v_and_b32 v%d, 35, v%d" % (dst, rho))
            a("v_bfe_u32 v%d, v%d, 2, 2" % (t1, rho))
            a("v_lshl_or_b32 v%d, v%d, 3, v%d" % (dst, t1, dst))
            a("v_bfe_u32 v%d, v%d, 4, 1" % (t1, rho))
            a("v_lshl_or_b32 v%d, v%d, 2, v%d" % (dst, t1, dst))
        a("s_mul_i32 s56, s32, 192")
        a("s_lshl_b32 s59, s34, 6")
        a("s_movk_i32 s40, 4682")
        a("s_movk_i32 s41, 5462")
        a("s_movk_i32 s62, 7168")
        a("s_movk_i32 s63, 6144")
        a("s_mul_i32 s48, s57, 14")
        def gu_off(dst, imm):
            a("v_mul_u32_u24 v21, s40, v20")
            a("v_lshrrev_b32 v21, 16, v21")
            a("v_mul_u32_u24 v22, 14, v21")
            a("v_sub_u32 v22, v20, v22")
            a("v_add_u32 v22, s48, v22")
            a("v_lshrrev_b32 v23, 1, v22")
            a("v_xor_b32 v23, v23, v22")
            a("v_and_b32 v23, 1, v23")
            a("v_mul_u32_u24 v23, 3, v23")
            a("v_xor_b32 v22, v22, v23")
            krow(24, 21, 23)
            a("s_sub_u32 s3, s58, %d" % imm)
            a("v_lshl_add_u32 v22, v22, 4, s3")
            a("v_mad_u32_u24 v%d, v24, s62, v22" % dst)
        def qkv_off(dst, imm):
            a("v_mul_u32_u24 v21, s41, v20")
            a("v_lshrrev_b32 v21, 16, v21")
            a("v_mul_u32_u24 v22, 12, v21")
            a("v_sub_u32 v22, v20, v22")
            a("v_lshrrev_b32 v23, 1, v21")
            a("v_and_b32 v23, 2, v23")
            a("v_xor_b32 v22, v22, v23")
            a("v_lshrrev_b32 v25, 2, v22")
            a("v_and_b32 v22, 3, v22")
            a("s_sub_u32 s3, s59, %d" % imm)
            a("v_lshl_add_u32 v22, v22, 4, s3")
            a("v_lshl_add_u32 v22, v25, 11, v22")
            krow(24, 21, 23)
            a("v_mad_u32_u24 v%d, v24, s63, v22" % dst)
        for q in range(3):
            a("s_add_u32 s3, s56, %d" % (64 * q))
            a("v_add_u32 v20, s3, v17")
            gu_off(8 + q, 1024 * q)
            qkv_off(11 + q, 1024 * q)
        a("s_and_b32 s35, s32, 1")
        a("s_lshl_b32 s3, s35, 6")
        a("s_add_u32 s3, s3, 768")
        a("v_add_u32 v20, s3, v17")
        gu_off(14, 0)
        a("s_mul_i32 s43, s32, 3072")
        a("s_add_u32 s44, s43, %d" % UP)
        a("s_add_u32 s45, s43, %d" % QKV)
        a("s_lshr_b32 s46, s32, 1")
        a("s_mul_i32 s46, s46, %d" % UP)
        a("s_lshl_b32 s3, s35, 10")
        a("s_add_u32 s46, s46, s3")
        a("s_add_u32 s46, s46, 12288")
        srd(a, 8, PG, 0, 1024 * 7168)
        srd(a, 12, PU, 0, 1024 * 7168)
        srd(a, 16, PQKV, 0, 1024 * 6144)
        a("s_cmp_lt_u32 s32, 2")
        a("s_cselect_b64 s[20:21], s[%d:%d], s[%d:%d]" % (PG, PG + 1, PU, PU + 1))
        a("s_mov_b32 s22, %d" % (1024 * 7168))
        a("s_mov_b32 s23, 0x20000")
    def g1_setup_r():
        a("v_lshrrev_b32 v18, 2, v17")
        a("v_and_b32 v19, 3, v17")
        a("v_lshlrev_b32 v19, 3, v19")
        a("s_movk_i32 s3, 224")
        a("v_and_b32 v20, 16, v15")
        a("v_and_b32 v21, 2, v17")
        a("v_lshl_add_u32 v20, v21, 2, v20")
        a("v_mad_u32_u24 v1, v18, s3, v20")
        a("s_movk_i32 s3, 192")
        a("v_mad_u32_u24 v2, v18, s3, v19")
        a("v_add_u32 v2, %d, v2" % QKV)
        a("v_and_b32 v19, 16, v17")
        a("v_lshlrev_b32 v19, 1, v19")
        a("v_xor_b32 v20, 32, v19")
        a("v_add_u32 v3, v2, v20")
        a("v_add_u32 v2, v2, v19")
        a("s_cmp_eq_u32 s35, 1")
        a("s_cselect_b64 vcc, -1, 0")
        a("v_cndmask_b32 v4, v2, v3, vcc")
        a("s_lshr_b32 s3, s32, 1")
        a("s_lshl_b32 s3, s3, 6")
        a("s_add_u32 s3, s3, 64")
        a("v_add_u32 v4, s3, v4")
        a("s_mov_b32 s62, %d" % SLOT)
        a("s_mov_b32 s63, %d" % ((-2 * SLOT) & 0xffffffff))
        srd(a, 28, PWS, ACT_OFF, ACT_BYTES)
    def tau_ops():
        return ["s_add_u32 s81, s36, s80", "s_and_b32 s81, s81, 15", "s_mul_i32 s38, s81, 458752", "s_mul_i32 s39, s81, 393216"]
    def xoff_ops():
        return ["s_lshl_b32 s40, s81, 15", "s_add_u32 s42, s40, s61", "s_add_u32 s40, s40, s60", "s_add_u32 s41, s40, 4096"]
    def wdma_ops(tag):
        o = []
        for (mreg, sd, vb, so) in ((43, 8, 8, 38), (44, 12, 8, 38), (45, 16, 11, 39)):
            o.append("s_add_u32 m0, s37, s%d" % mreg)
            for q in range(3):
                o.append((tag, "buffer_load_dwordx4 v%d, s[%d:%d], s%d offen offset:%d lds" % (vb + q, sd, sd + 3, so, 1024 * q)))
        o.append("s_add_u32 m0, s37, s46")
        o.append((tag, "buffer_load_dwordx4 v14, s[20:23], s38 offen lds"))
        return o
    def xld_ops(buf, tag):
        o = []
        for f in range(8):
            o.append((tag, "buffer_load_dwordx4 %s, v15, s[24:27], s%d offen offset:%d %s" % (ar(XB(buf, f // 2, f % 2), 4), 40 + f // 4, 1024 * (f % 4), XSC)))
        for kh in range(2):
            o.append((tag, "buffer_load_dwordx4 %s, v15, s[24:27], s42 offen offset:%d %s" % (ar(XB(buf, 4, kh), 4), 1024 * kh, "" if P.get("halo_plain", 0) else XSC)))
        return o

    g1_setup_w()
    a("s_mov_b32 s36, 0"); a("s_mov_b32 s37, 0")
    W0POS = P.get("w0pos", 1)
    al = Weave(P.get("w0_every", 14), tau_ops() + wdma_ops("W0") if W0POS == 2 else [], P.get("w0_skip", 0))

    if P.get("ab_noln") == 2:
        a("s_branch L_skipln")
    vwait("x")
    stamp()
    X = 48
    for r in range(16):
        c1 = "0" if r < 2 else "v%d" % (112 + 2 * (r % 2))
        c2 = "0" if r < 2 else "v%d" % (113 + 2 * (r % 2))
        al("v_dot2_f32_bf16 v%d, v%d, v116, %s" % (112 + 2 * (r % 2), LX + r, c1))
        al("v_dot2_f32_bf16 v%d, v%d, v%d, %s" % (113 + 2 * (r % 2), LX + r, LX + r, c2))
    al("s_nop 2")
    al("v_pk_add_f32 v[112:113], v[112:113], v[114:115]")
    for m in ("quad_perm:[1,0,3,2]", "quad_perm:[2,3,0,1]", "row_half_mirror"):
        al("s_nop 0" if m != "quad_perm:[1,0,3,2]" else "s_nop 1")
        for v in (112, 113):
            al("v_add_f32_dpp v%d, v%d, v%d %s row_mask:0xf bank_mask:0xf" % (v, v, v, m))
    al("ds_write_b64 v27, v[112:113]")
    def unpack(r):
        al("v_lshlrev_b32 v%d, 16, v%d" % (X + 2 * r, LX + r))
        al("v_and_b32 v%d, s54, v%d" % (X + 2 * r + 1, LX + r))
    for r in range(8): unpack(r)
    al("s_waitcnt lgkmcnt(0)")
    al("s_barrier")
    al("ds_read_b128 v[80:83], v26")
    al("ds_read_b128 v[84:87], v26 offset:16")
    for r in range(8, 16): unpack(r)
    al("s_waitcnt lgkmcnt(0)")
    al("v_pk_add_f32 v[80:81], v[80:81], v[82:83]")
    al("v_pk_add_f32 v[84:85], v[84:85], v[86:87]")
    al("v_pk_add_f32 v[80:81], v[80:81], v[84:85]")
    al("v_mul_f32 v88, 0x3a800000, v80")
    al("v_mul_f32 v81, 0x3a800000, v81")
    al("v_fma_f32 v81, -v88, v88, v81")
    al("v_max_f32 v81, 0, v81")
    al("v_cvt_pk_bf16_f32 v88, v88, v81")
    al("v_and_b32 v81, s54, v88")
    al("v_lshlrev_b32 v88, 16, v88")
    al("v_add_f32 v81, 0x3727c5ac, v81")
    al("v_cvt_pk_bf16_f32 v81, v81, v81")
    al("v_and_b32 v81, s54, v81")
    al("v_sqrt_f32 v81, v81")
    al("v_sub_f32 v88, 0, v88")
    al("v_cvt_pk_bf16_f32 v81, v81, v81")
    al("v_and_b32 v81, s54, v81")
    al("v_rcp_f32 v90, v81")
    al("v_mov_b32 v89, v88")
    al("v_mov_b32 v91, v90")
    for u in range(4):
        R = range(4 * u, 4 * u + 4)
        for r in R: al("v_pk_add_f32 %s, %s, v[88:89]" % (vr(X + 2 * r, 2), vr(X + 2 * r, 2)))
        for r in R: al("v_cvt_pk_bf16_f32 v%d, v%d, v%d" % (LX + r, X + 2 * r, X + 2 * r + 1))
        for r in R: unpack(r)
        for r in R: al("v_pk_mul_f32 %s, %s, v[90:91]" % (vr(X + 2 * r, 2), vr(X + 2 * r, 2)))
        for r in R: al("v_cvt_pk_bf16_f32 v%d, v%d, v%d" % (LX + r, X + 2 * r, X + 2 * r + 1))
        V("xs", "buffer_store_dwordx4 %s, v28, s[24:27], s%d offen %s" % (vr(LX + 4 * u, 4), 50 + u, SC))
    al.flush()
    if P.get("ab_noln") == 2: a.label("L_skipln")
    stamp()

    if TH == 3:
        for o in ["s_add_u32 s94, s94, s95", "s_cmp_ge_u32 s94, s90", "s_cselect_b32 s3, s90, 0", "s_sub_u32 s94, s94, s3"]: a(o)
    if TH == 2: a("v_mov_b32 v253, v30")
    if TH == 1:
        for k in range(2):
            V("t", "buffer_load_dword v29, v30, s[88:91], s94 offen")
            for o in ["s_add_u32 s94, s94, s95", "s_cmp_ge_u32 s94, s90", "s_cselect_b32 s3, s90, 0", "s_sub_u32 s94, s94, s3"]: a(o)
    if P.get("t_early", 1) < 2 and P.get("t1pos", 4) == 0:
        V("t", "buffer_load_dword v29, v30, s[88:91], s94 offen %s" % P.get("t1fl", ""))
        for o in ["s_add_u32 s94, s94, s95", "s_cmp_ge_u32 s94, s90", "s_cselect_b32 s3, s90, 0", "s_sub_u32 s94, s94, s3"]: a(o)
    a("s_lshl_b32 s3, s32, 13")
    a("s_add_u32 s60, s60, s3")
    a("s_lshl_b32 s61, s61, 19")
    a("s_add_u32 s61, s61, %d" % (3 * 8192 + 3 * 2048))
    for o in xoff_ops(): E(o)
    a("v_mov_b32 v27, v121"); a("v_mov_b32 v28, v122")
    g1_setup_r()
    av = Weave(P.get("w0_every", 5), tau_ops() + wdma_ops("W0") if W0POS == 0 else [])
    SP, SMT, SNT = 66, 67, 70
    av("s_bfe_u32 s%d, s2, 0x10001" % SP)
    av("s_and_b32 s%d, s2, 1" % SMT); av("s_bfe_u32 s3, s2, 0x20003"); av("s_lshl2_add_u32 s%d, s%d, s3" % (SMT, SMT))
    av("s_lshr_b32 s%d, s2, 5" % SNT)
    park = {}
    def parkv(key, v):
        park[key] = PARK + len(park)
        assert park[key] < 224
        av("v_accvgpr_write_b32 a%d, v%d" % (park[key], v))
    unp = lambda key, v: "v_accvgpr_read_b32 v%d, a%d" % (v, park[key])
    av("s_lshl_b32 s48, s%d, 2" % SP); av("s_xor_b32 s48, s48, 4"); av("s_lshl_b32 s49, s%d, 8" % SNT); av("s_lshl_b32 s50, s32, 15"); av("s_add_u32 s50, s50, s49")
    av("v_lshrrev_b32 v20, 4, v17"); av("v_bfe_u32 v21, v17, 1, 3"); av("v_xor_b32 v21, s48, v21"); av("v_xor_b32 v21, v21, v20")
    av("v_and_b32 v22, 16, v15"); av("v_lshl_add_u32 v23, v20, 11, v22")
    av("v_lshl_add_u32 v16, v21, 5, v23"); av("v_add_u32 v16, s50, v16")
    av("s_lshl_b32 s51, s32, 16"); av("s_add_u32 s51, s51, s49"); av("s_lshl_b32 s3, s%d, 7" % SP); av("s_add_u32 s51, s51, s3")
    av("v_bfe_u32 v21, v17, 1, 2"); av("v_xor_b32 v21, v21, v20"); av("v_lshrrev_b32 v23, 3, v17")
    av("v_lshl_add_u32 v22, v23, 11, v22"); av("v_lshl_add_u32 v22, v21, 5, v22"); av("v_add_u32 v22, s51, v22")
    av("v_mov_b32 v30, v22")
    av("v_lshrrev_b32 v20, 2, v17"); av("v_and_b32 v21, 3, v17"); av("v_lshlrev_b32 v21, 3, v21"); av("v_add_u32 v21, %d, v21" % R2)
    av("v_lshl_add_u32 v22, v20, 8, v21"); av("v_and_b32 v23, 7, v20"); av("v_lshl_add_u32 v22, v23, 5, v22")
    parkv("vw", 22)
    av("v_lshl_add_u32 v22, v20, 7, v21"); av("v_bfe_u32 v23, v17, 3, 2"); av("v_lshl_add_u32 v22, v23, 5, v22")
    parkv("vwo", 22)
    av("v_and_b32 v20, 15, v17"); av("v_lshlrev_b32 v22, 11, v20"); av("v_bfe_u32 v23, v17, 4, 1"); av("v_lshl_add_u32 v22, v23, 5, v22")
    av("v_lshrrev_b32 v21, 5, v17"); av("v_lshl_add_u32 v22, v21, 4, v22")
    parkv("vout", 22)
    av("v_lshlrev_b32 v22, 10, v23"); av("v_lshl_add_u32 v22, v21, 8, v22"); av("v_lshl_add_u32 v26, v20, 4, v22")
    av("v_bfe_u32 v22, v17, 2, 2"); av("v_lshlrev_b32 v22, 8, v22"); av("v_lshrrev_b32 v23, 4, v17"); av("v_lshl_add_u32 v22, v23, 6, v22")
    av("v_and_b32 v23, 3, v17"); av("v_lshl_add_u32 v22, v23, 1, v22"); av("v_add_u32 v22, 1024, v22")
    a("s_cmp_ge_u32 s32, 2"); a("s_cselect_b64 vcc, -1, 0"); a("s_cselect_b32 s71, 16, 2")
    av("v_cndmask_b32 v22, v15, v22, vcc")
    av("s_lshl_b32 s3, s35, 3"); av("s_add_u32 s3, s3, %d" % EX); av("v_add_u32 v22, s3, v22")
    parkv("vhx", 22)
    av.flush()
    AL = P.get("alt_light", 1)
    if not AL:
        a("v_lshlrev_b32 v24, 8, v17"); a("v_add_u32 v25, 16384, v24")
        a("s_lshr_b32 s7, s2, 3"); a("s_lshl1_add_u32 s7, s7, s32"); a("s_lshl_b32 s7, s7, 15")
        a("s_lshl_b32 s52, s%d, 7" % SP); a("s_add_u32 s7, s7, s52")
        a("s_mov_b64 s[4:5], s[%d:%d]" % (PWO, PWO + 1)); a("s_mov_b32 s6, %d" % (1024 * 2048 if not P.get("nowot") else 0))
        a("s_cmp_lt_u32 s32, 2"); a("s_cbranch_scc1 L_alt")
        a("v_lshlrev_b32 v24, 7, v17"); a("v_add_u32 v25, 8192, v24")
        a("s_lshl_b32 s7, s2, 14")
        a("s_mov_b64 s[4:5], s[%d:%d]" % (PX, PX + 1)); a("s_mov_b32 s6, %d" % (2048 * 2048 if not P.get("noxt") else 0))
    else:
        a("v_lshlrev_b32 v22, 7, v17"); a("v_cmp_gt_u32 vcc, 32, v17"); a("v_mov_b32 v21, %d" % OOB)
        a("s_lshl_b32 s7, s2, 13")
        if AL == 1: a("v_cndmask_b32 v24, v21, v22, vcc"); a("v_cndmask_b32 v25, v22, v21, vcc")
        else: a("v_mov_b32 v24, v22"); a("v_mov_b32 v25, v21")
        a("s_mov_b64 s[4:5], s[%d:%d]" % (PWO, PWO + 1)); a("s_mov_b32 s6, %d" % (1024 * 2048))
        a("s_cmp_eq_u32 s32, 0"); a("s_cbranch_scc1 L_alt")
        a("s_lshl1_add_u32 s7, s2, s35"); a("s_lshl_b32 s7, s7, 13")
        a("s_mov_b64 s[4:5], s[%d:%d]" % (PX, PX + 1)); a("s_mov_b32 s6, %d" % (2048 * 2048 if not P.get("noxt", 1) else 0))
    a.label("L_alt")
    a("s_cmp_eq_u32 s32, 3"); a("s_cselect_b32 s47, 99, %d" % (13 if not P.get("ab_noalt") else 64))
    a("v_xor_b32 v17, 0x80, v16"); a("v_add_u32 v17, %d, v17" % 7168)
    a("v_add_u32 v18, %d, v16" % 14336); a("v_add_u32 v19, %d, v17" % 14336)
    a("v_bfe_u32 v20, v15, 2, 7")
    vwait("xs")
    if WF: a("s_barrier")
    a("v_add_u32 v7, 0x%x, v7" % NONCE_ADD)
    FL = P.get("fline", 3)
    V("f", "buffer_store_dword v7, v%d, s[84:87], s92 offen %s" % (20 if FL & 1 else 6, SC))
    a("v_readfirstlane_b32 s96, v7")
    if TH == 2:
        a("s_mov_b32 exec_lo, 0")
        V("t", "buffer_load_dword v29, v253, s[88:91], s94 offen")
        a("s_mov_b32 exec_lo, -1")
        for o in ["s_add_u32 s94, s94, s95", "s_cmp_ge_u32 s94, s90", "s_cselect_b32 s3, s90, 0", "s_sub_u32 s94, s94, s3"]: a(o)
        if P.get("t2pos", 1) == 0:
            a("s_mov_b32 exec_hi, 0")
            V("t", "buffer_load_dword v29, v253, s[88:91], s94 offen")
            a("s_mov_b32 exec_hi, -1")
    stamp()
    p0 = ("p", "buffer_load_dword v255, v254, s[84:87], 0 offen %s" % P.get("pollfl", SC))
    q1 = (tau_ops() + wdma_ops("W0") if W0POS == 1 else []) + ["s_mov_b32 s36, 1", "s_mov_b32 s37, %d" % SLOT] + tau_ops() + (wdma_ops("W") if not P.get("peel0", 0) else [])
    W1POS = P.get("w1pos", 0)
    PB4 = P.get("poll_before", 3)
    if PB4:
        idx = [k for k, o in enumerate(q1) if isinstance(o, tuple)][-PB4]
        if q1[idx - 1].startswith("s_add_u32 m0") if isinstance(q1[idx - 1], str) else False: idx -= 1
        q1.insert(idx, p0)
    az = Weave(P.get("w1_every", 5), q1 if W1POS == 0 else [])
    ZE = P.get("zero_early", 254)
    for r in range(32, ZE, 2): az("v_mov_b64 %s, 0" % vr(r, 2))
    az.flush()
    if not PB4 and not P.get("poll_late"): E(p0)
    def scalars():
        a("s_lshl_b32 s72, s%d, 19" % SMT); a("s_add_u32 s72, s72, s51"); a("s_bfe_u32 s3, s2, 0x10002"); a("s_add_u32 s3, s3, s32")
        a("s_lshl_b32 s3, s3, 16"); a("s_add_u32 s72, s72, s3")
        a("s_lshl_b32 s56, s32, 12"); a("s_add_u32 s56, s56, %d" % R2)
        a("s_lshl_b32 s48, s33, 1"); a("s_lshr_b32 s3, s32, 1"); a("s_add_u32 s48, s48, s3"); a("s_mul_i32 s48, s48, %d" % ACT_MT)
        a("s_lshl_b32 s3, s35, 12"); a("s_add_u32 s48, s48, s3")
        a("s_mul_i32 s73, s34, 7"); a("s_lshr_b32 s73, s73, 1"); a("s_lshl_b32 s73, s73, 13"); a("s_add_u32 s73, s73, s48")
        a("s_lshl_b32 s3, s57, 9"); a("s_add_u32 s73, s73, s3")
        a("s_mul_i32 s74, s57, %d" % (8192 - 1024)); a("s_add_u32 s74, s74, 512"); a("s_add_u32 s74, s74, s73")
        a("s_add_u32 s75, s34, 112"); a("s_lshl_b32 s75, s75, 13"); a("s_add_u32 s75, s75, s48")
        a("s_lshl2_add_u32 s92, s33, s32"); a("s_lshl_b32 s92, s92, 7"); a("s_lshl2_add_u32 s92, s34, s92")
        FP = P.get("fpad", 1)
        a("s_add_u32 s35, s92, %d" % F1O)
        if FP: a("s_lshl_b32 s92, s92, 5")
        a("s_add_u32 s92, s92, %d" % (F1H if not FP else 131072))
        a("s_lshl2_add_u32 s58, s%d, s32" % SMT); a("s_lshl_b32 s58, s58, 7")
        a("s_add_u32 s59, s58, %d" % F1O)
        if FP: a("s_lshl_b32 s58, s58, 5")
        a("s_add_u32 s58, s58, %d" % (F1H if not FP else 131072))
        a("s_or_b32 s33, s33, s32")
        a("s_lshr_b32 s3, s32, 1"); a("s_lshl1_add_u32 s57, s%d, s3" % SMT); a("s_mul_i32 s57, s57, %d" % ACT_MT)
        a("s_and_b32 s3, s32, 1"); a("s_lshl_b32 s3, s3, 12"); a("s_add_u32 s57, s57, s3")
        a("s_mov_b32 s50, 0xbfb8aa3b"); a("s_mov_b32 s51, 0xbfb8aa3b"); a("s_mov_b32 s52, 1.0"); a("s_mov_b32 s53, 1.0")
    FP = P.get("fpad", 1)
    SL = P.get("setup_late", 0)
    if not SL: scalars()
    if P.get("poll_late"):
        for r in range(0, 100, 4): a("%s %s, v[48:51], v[48:51], 0" % (MF, ar(r, 4)))
        E(p0)
    stamp()
    if not P.get("ab_noln"): check_flags(255, 254, "0", "p", "L_f0")
    if P.get("halo_plain", 0) == 1: V("inv", "buffer_inv sc1")
    stamp()
    for o in xld_ops(0, "X0"): E(o)
    xlast = ["s_add_u32 s40, s80, 15", "s_and_b32 s40, s40, 15", "s_lshl_b32 s40, s40, 15", "s_add_u32 s40, s40, s60", "s_add_u32 s41, s40, 4096"] + xld_ops(2, "XL")[:8]
    if P.get("xl_pos", 0) == 0:
        for o in xlast: E(o)
    if W1POS == 1:
        for o in q1: E(o)
    if SL: scalars()
    for r in range(ZE, 256, 2): a("v_mov_b64 %s, 0" % vr(r, 2))
    for r in (range(0, 100, 4) if not P.get("poll_late") else []): a("%s %s, v[48:51], v[48:51], 0" % (MF, ar(r, 4)))

    blocks = []
    for p in range(7): blocks += [("gu", p, 0), ("gu", p, 1)]
    blocks += [("q", s) for s in range(6)]
    def wreads(b, dst, ab=0):
        o = []
        for kh in range(2):
            for s2 in range(2):
                d = ar(dst(kh) + 2 * s2, 2)
                if b[0] == "gu":
                    o.append("ds_read_b64_tr_b16 %s, v%d offset:%d" % (d, ab + 1, b[2] * UP + (32 * kh + 16 * s2) * 224 + 32 * b[1]))
                elif b[0] == "q":
                    o.append("ds_read_b64_tr_b16 %s, v%d offset:%d" % (d, ab + 2 + b[1] % 2, (32 * kh + 16 * s2) * 192 + 64 * (b[1] // 2)))
                else:
                    o.append("ds_read_b64_tr_b16 %s, v%d offset:%d" % (d, ab + 4, (32 * kh + 16 * s2) * 192))
        return o
    def mfmas(b, ring, buf):
        o = []
        for m in range(4):
            for kh in range(2):
                w, x = ar(WR(ring, kh), 4), ar(XB(buf, m, kh), 4)
                c = vr(accGU(b[1], b[2], m), 4) if b[0] == "gu" else ar(accQ(b[1], m), 4)
                if b[0] == "q" and b[1] >= 4: w, x = x, w
                o.append("%s %s, %s, %s, %s" % (MF, c, w, x, c))
        return o
    def halo_mf(buf):
        return ["%s %s, %s, %s, %s" % (MF, ar(HACC, 4), ar(HW(kh), 4), ar(XB(buf, 4, kh), 4), ar(HACC, 4)) for kh in range(2)]

    vwait("X0")
    a("s_barrier")
    stamp()
    for bi in range(3):
        for o in wreads(blocks[bi], lambda kh: WR(bi % 4, kh)): a(o)
    if P.get("xl_pos", 0) == 1:
        for o in xlast: E(o)
    if P.get("xl_pos", 0) == 2:
        for o in ["s_add_u32 s48, s80, 15", "s_and_b32 s48, s48, 15", "s_lshl_b32 s48, s48, 15", "s_add_u32 s48, s48, s60"]: a(o)
    if P.get("t_early", 1) < 2 and P.get("t1pos", 4) >= 1:
        if P.get("t1pos") in (1, 2): V("t", "buffer_load_dword v29, v27, s[88:91], s94 offen %s" % P.get("t1fl", ""))
        if P.get("t1pos") in (1, 3): V("t", "buffer_load_dword v29, v28, s[88:91], s94 offen %s" % P.get("t1fl", ""))
        for o in ["s_add_u32 s94, s94, s95", "s_cmp_ge_u32 s94, s90", "s_cselect_b32 s3, s90, 0", "s_sub_u32 s94, s94, s3"]: a(o)
    if TH == 2:
        if P.get("t2pos", 1) == 1: V("t", "buffer_load_dword v29, v27, s[88:91], s94 offen")
        if P.get("t3pos", 0) == 0: V("t", "buffer_load_dword v29, v28, s[88:91], s94 offen")
        else: a("s_mov_b32 s48, s94")
        for o in ["s_add_u32 s94, s94, s95", "s_cmp_ge_u32 s94, s90", "s_cselect_b32 s3, s90, 0", "s_sub_u32 s94, s94, s3"]: a(o)
    LT = P.get("late_w2", 0)
    a("s_cmp_eq_u32 s32, 3"); a("s_cselect_b32 s95, %d, s95" % ((-(256 if LT else 128) * 2048) & 0xffffffff))
    a("s_cselect_b32 s49, -1, s90")
    if LT:
        a("s_cselect_b32 s3, %d, 0" % (6 * 128 * 2048)); a("s_cselect_b64 vcc, -1, 0"); a("s_add_u32 s94, s94, s3")
        a("v_lshlrev_b32 v20, 3, v15"); a("v_add_u32 v21, %d, v20" % (128 * 2048))
        a("v_cndmask_b32 v27, v27, v21, vcc"); a("v_cndmask_b32 v28, v28, v20, vcc")

    HRB, HMB = 9, 13
    def step(buf, misc, loop=None, spc=None):
        lg = Cnt([0] * 4 + [1] * 4 + [2] * 4)
        SPC, V0 = spc or P.get("vspace", 5.4), P.get("vstart", 5)
        place = {}
        nv = 0
        tgt = []
        for o in misc:
            if isinstance(o, tuple):
                g = int(V0 + nv * SPC) | 1
                if g // 8 >= HRB: g += 8
                tgt.append(g)
                if P.get("vweight", 0): nv += (1.55 if "s[16:19]" in o[1] else (1.1 if o[1].endswith("lds") else 0.77))
                else: nv += (P.get("xl_w", 0.4) if "s49" in o[1] else 1)
            else: tgt.append(None)
        nxt = None
        for k in range(len(misc) - 1, -1, -1):
            if tgt[k] is not None: nxt = tgt[k]
            elif nxt is not None:
                nxt -= 1; tgt[k] = nxt
        last = max(t for t in tgt if t is not None)
        for k in range(len(misc)):
            if tgt[k] is None:
                last += 1; tgt[k] = last
        for k in range(1, len(misc)):
            if tgt[k] < tgt[k - 1]: tgt[k] = tgt[k - 1]
        assert min(tgt) >= 0 and max(tgt) < 17 * 8, (min(tgt), max(tgt))
        for k, o in enumerate(misc): place.setdefault((tgt[k] // 8, tgt[k] % 8), []).append(o)
        for bi in range(20):
            mf = mfmas(blocks[bi], bi % 4, buf)
            fill = {}
            w = lg.need(bi)
            if w is not None: a("s_waitcnt lgkmcnt(%d)" % w)
            rd = []
            if bi <= 16: rd = [(bi + 3, o) for o in wreads(blocks[bi + 3], lambda kh: WR((bi + 3) % 4, kh))]; gaps = [0, 2, 4, 6]
            elif bi == 18:
                rd = [(100, o) for o in wreads(blocks[0], lambda kh: WR(0, kh))] + [(101, o) for o in wreads(blocks[1], lambda kh: WR(1, kh))]
                gaps = list(range(8))
            elif bi == 19: rd = [(102, o) for o in wreads(blocks[2], lambda kh: WR(2, kh))]; gaps = [0, 2, 4, 6]
            if bi == HRB and not P.get("ab_nohalo"):
                hr = [("H", o) for o in wreads(("h",), HW)]
                rd = [x for pr in zip(rd, hr) for x in pr]; gaps = list(range(8))
            for (tag, o), g in zip(rd, gaps if rd else []):
                fill.setdefault(g, []).append(o); lg.issue(tag)
            for g in range(8):
                for o in place.get((bi, g), []): fill.setdefault(g, []).append(o)
            if bi == HMB and not P.get("ab_nohalo"):
                assert lg.need("H") is None
                mf += halo_mf(buf)
            if bi == 17:
                for k, r in enumerate((1, 2, 3, 4)):
                    fill.setdefault(k + 1, []).append("v_add_u32 v%d, s93, v%d" % (r, r))
                fill.setdefault(7, []).append(lambda: (vwait("X", lg0=True), a("s_barrier")))
                lg.clear()
                if P.get("itrace"):
                    fill[7] += ["s_memtime s[98:99]", "s_add_u32 m0, s36, 30", "s_waitcnt lgkmcnt(0)", "v_writelane_b32 v31, s98, m0"]
            if bi == 19 and loop:
                fill.setdefault(5, []).append("s_cmp_lt_u32 s36, %d" % (13 if P.get("xl_pos", 0) == 4 else 15))
                fill.setdefault(7, []).append("s_cbranch_scc1 %s" % loop)
            for i, m in enumerate(mf):
                a(m)
                for o in fill.get(i, []):
                    if isinstance(o, tuple) and ((P.get("ab_g1x") and o[0] == "X") or (P.get("ab_g1w") and o[0] == "W") or (P.get("ab_g1q") and "s[16:19]" in o[1])):
                        vm.issue(o[0]); continue
                    if P.get("ab_g1d") and isinstance(o, str) and o.startswith("ds_read") and bi % 2 == 1: continue
                    if P.get("ab_g1b") and callable(o): vm.need("X"); continue
                    E(o)
    slot_ops = ["s_add_u32 s37, s37, s62", "s_cmp_eq_u32 s37, %d" % (3 * SLOT), "s_cselect_b32 s37, 0, s37",
                "s_cmp_eq_u32 s37, s62", "s_cselect_b32 s93, s63, s62"]
    def std_misc(buf):
        t = [("t", "buffer_load_dword v29, v%d, s[88:91], s94 offen %s" % (27 + buf, P.get("tfl", "")))] + (["s_add_u32 s94, s94, s95", "s_cmp_ge_u32 s94, s49", "s_cselect_b32 s3, s90, 0", "s_sub_u32 s94, s94, s3"] if buf else [])
        if buf: t += ["s_cmp_eq_u32 s36, s47", "s_cselect_b64 s[88:89], s[4:5], s[88:89]", "s_cselect_b32 s90, s6, s90", "s_cselect_b32 s94, s7, s94",
                      "s_cselect_b64 vcc, -1, 0", "v_cndmask_b32 v27, v27, v24, vcc", "v_cndmask_b32 v28, v28, v25, vcc"]
        xl = xld_ops(buf ^ 1, "X")
        if P.get("ab_nohalo"): xl = xl[:8]
        if P.get("xl_pos", 0) == 2:
            ex = [("X", o[1].replace("s40", "s49").replace("s41", "s49")) for o in xld_ops(2, "X")[4 * buf:4 * buf + 4]]
            pre = ["s_cmp_eq_u32 s36, 14", "s_cselect_b32 s49, s48, %d" % OOB] if buf == 0 else ["s_add_u32 s49, s49, 4096"]
            xl = xl + pre + ex
        return xoff_ops() + xl[:2] + ["s_add_u32 s36, s36, 1"] + tau_ops() + xl[2:4] + slot_ops[:3] + xl[4:6] + slot_ops[3:] + xl[6:] + wdma_ops("W") + t
    if P.get("peel0", 0):
        m0 = std_misc(0); m1 = std_misc(1)
        iw = lambda m: [k for k, o in enumerate(m) if isinstance(o, tuple) and o[0] == "W"]
        NH = P.get("peel_h", 6)
        k0 = iw(m0)[NH] - 1 if NH < 10 else iw(m0)[-1] + 1
        k1 = iw(m0)[-1] + 1
        rest = [(("X", o[1]) if isinstance(o, tuple) else o) for o in m0[k0:k1]]
        w1 = [(("X", o[1]) if isinstance(o, tuple) else o) for o in wdma_ops("W")]
        xl1 = xlast if P.get("xl_pos", 0) == 3 else []
        xl1 = [((o[0], o[1].replace("s40", "s48").replace("s41", "s49")) if isinstance(o, tuple) else o.replace("s40", "s48").replace("s41", "s49")) for o in xl1]
        nv = lambda m: sum(isinstance(o, tuple) for o in m)
        a0 = w1 + m0[:k0] + ([("t", "buffer_load_dword v29, v28, s[88:91], s48 offen")] if P.get("t3pos", 0) else []) + m0[k1:]
        a1 = rest + m1[:iw(m1)[-1] + 1] + xl1 + m1[iw(m1)[-1] + 1:]
        step(0, a0, spc=min(5.4, 112.0 / nv(a0)))
        step(1, a1, spc=min(5.4, 108.0 / nv(a1)))
    a(".p2align 6")
    for _ in range(P.get("loop_shift", 0)): a("s_nop 0")
    a.label("L_g1")
    vm.q = ["W"] * 10 + ["t"]
    step(0, std_misc(0))
    step(1, std_misc(1), loop="L_g1")
    assert vm.q == ["W"] * 10 + ["t"], vm.q
    if P.get("xl_pos", 0) == 4:
        xl4 = [((o[0], o[1].replace("s40", "s48").replace("s41", "s47")) if isinstance(o, tuple) else o.replace("s40", "s48").replace("s41", "s47")) for o in xlast]
        m0 = std_misc(0); m1 = std_misc(1)
        it = lambda m: next(k for k, o in enumerate(m) if isinstance(o, tuple) and o[0] == "t")
        iw = lambda m: next(k for k, o in enumerate(m) if isinstance(o, tuple) and o[0] == "W") - 1
        NA_ = 5 + P.get("xl_split", 4)
        step(0, m0[:iw(m0)] + xl4[:NA_] + m0[iw(m0):], spc=P.get("xl_spc", 4.7))
        step(1, m1[:iw(m1)] + xl4[NA_:] + m1[iw(m1):it(m1) + 1], spc=P.get("xl_spc", 4.7))
    stamp()

    for _ in range(P.get("tail_shift", 0)): a("s_nop 0")
    ND, NO = 14, 8
    NS = ND + NO
    VDW, VDO = 16, 30
    NRES = 5
    ROTD = P.get("rotd", 5)
    RREG = [4, 5, 6, 7, 36, 37, 55]
    ROTO = P.get("roto", 1)
    OLOC = {14: R2 + 32768, 15: R2 + 49152, 16: R2, 21: 0, 18: 16384, 17: 106496, 19: 122880, 20: 139264}
    FR = NS - NRES
    def wops(sg, force=False):
        if sg >= FR and not force: return []
        u = sg % 4
        o = []
        if sg < ND:
            if ROTD: o.append("s_lshl3_add_u32 s38, s%d, s%d" % (RREG[sg % 7], 44 + sg // 7))
            else: o.append("s_add_u32 s38, s%d, %d" % (44 + sg // 7, (sg % 7) * 131072))
            o.append("s_add_u32 m0, s56, %d" % (u * 16384))
            for q in range(4):
                o.append(("W%d" % sg, "buffer_load_dwordx4 v%d, s[8:11], s38 offen offset:%d lds" % (VDW + q, 1024 * q)))
        else:
            o.append("s_add_u32 m0, s56, %d" % ((OLOC[sg] - R2) & 0xffffffff))
            for q in range(4):
                if ROTO: o.append(lambda sg=sg, q=q: [a("s_bfe_u32 s38, s80, 0x%x" % (0x40000 + 4 * (sg - ND))), a("s_lshl_b32 s38, s38, 18"), a("s_add_u32 s38, s38, %d" % (15360 * q))])
                else: o.append("s_mov_b32 s38, %d" % ((sg - ND) * 262144 + 15360 * q))
                o.append(("W%d" % sg, "buffer_load_dwordx4 v%d, s[12:15], s38 offen offset:%d lds" % (VDO, 1024 * q)))
        return o
    QI = {(0, 0): 0, (1, 0): 1, (1, 1): 2, (0, 1): 3}
    accD = lambda m, b: 64 + QI[(m >> 1, b >> 2)] * 32 + ((m & 1) * 4 + (b & 3)) * 4
    accO = lambda m, b: 192 + (m * 4 + b) * 4
    VW, VWO, VX = 32, 20, 52
    NXB = 6
    NX0 = P.get("nx0", 2)
    XB2 = lambda sg, f: (lambda u: (u * 32 if u < 4 else 192 + (u - 4) * 32) + f * 4)(sg % NXB)
    WR2 = lambda b, kh: 128 + b * 8 + kh * 4
    def xops(sg):
        if sg >= NS: return []
        o = []
        if sg < ND:
            o.append("s_add_u32 s39, s%d, %s" % (60 if sg < NX0 else 46 + sg // 7, ("s%d" % RREG[sg % 7]) if ROTD else str((sg % 7) * 16384)))
            for kh in range(2):
                for m in range(4):
                    o.append(("X%d" % sg, "buffer_load_dwordx4 %s, v%d, s[28:31], s39 offen offset:%d %s" % (ar(XB2(sg, kh * 4 + m), 4), VX + kh + 4 * (m >> 1), 1024 * (m & 1), XSC)))
        else:
            if ROTO: o.append(lambda sg=sg: [a("s_bfe_u32 s39, s80, 0x%x" % (0x40000 + 4 * (sg - ND))), a("s_lshl_b32 s39, s39, 15"), a("s_add_u32 s39, s39, s81")])
            else: o.append("s_add_u32 s39, s57, %d" % (112 * 8192 + (sg - ND) * 32768))
            for kq in range(4):
                for m in range(2):
                    o.append(("X%d" % sg, "buffer_load_dwordx4 %s, v%d, s[28:31], s39 offen offset:%d %s" % (ar(XB2(sg, kq * 2 + m), 4), VX + kq, 1024 * m, XSC)))
        return o
    def wreads2(sg, b, rb=None):
        if rb is None: rb = b
        o = []
        u = sg % 4
        for kh in range(2):
            for s2 in range(2):
                if sg < ND: v, off = VW + b, u * 16384 + (32 * kh + 16 * s2) * 256
                else:
                    L = OLOC[sg]
                    vb, base = (40, 0) if L < R2 else ((VWO, R2) if L < 106496 else (44, 106496))
                    v, off = vb + b % 4, L - base + (64 * (b // 4) + 32 * kh + 16 * s2) * 128
                o.append("ds_read_b64_tr_b16 %s, v%d offset:%d" % (ar(WR2(rb, kh) + 2 * s2, 2), v, off))
        return o
    def mfmas2(sg, b, rb):
        o = []
        for m in ((2, 3, 0, 1) if sg < ND else (0, 1)):
            for kh in range(2):
                if sg < ND: c, x = accD(m, b), XB2(sg, kh * 4 + m)
                else: c, x = accO(m, b % 4), XB2(sg, (2 * (b // 4) + kh) * 2 + m)
                z = (sg == 0 and kh == 0) or (sg == ND and b < 4 and kh == 0)
                o.append("%s %s, %s, %s, %s" % (MF, vr(c, 4), ar(WR2(rb, kh), 4), ar(x, 4), "0" if z else vr(c, 4)))
        return o
    order = [(0, 0), (1, 0), (2, 0), (3, 0), (0, 1), (1, 1), (2, 1), (3, 1)]
    for b in range(4, 20): order += [(b, 0), (b, 1)]
    NPOS = len(order)
    done_pos = {b: max(i for i, (bb, s) in enumerate(order) if bb == b) for b in range(20)}
    AB2 = 7
    R0, R1, R2_ = accGU(0, 1, 0), accGU(2, 1, 0), accGU(4, 1, 0)
    Qf = lambda m: R0 + 12 + 4 * m
    Kf = lambda m: R0 + 28 + 4 * (m + 1)
    VV = lambda f, m: R1 + 10 * f + 2 * (m + 1)
    Pf = lambda m: R1 + 20 + 4 * m
    Sp = lambda m: R2_ + 8 * m
    Sc = lambda m: R2_ + 8 * m + 4
    TT = lambda m: R2_ + 32 + 4 * m
    def cvt_acc(dst, src, t):
        return ["v_accvgpr_read_b32 v%d, a%d" % (t + r, src + r) for r in range(4)] + \
               ["v_cvt_pk_bf16_f32 v%d, v%d, v%d" % (dst, t, t + 1), "v_cvt_pk_bf16_f32 v%d, v%d, v%d" % (dst + 1, t + 2, t + 3)]
    masks = ["v_lshrrev_b32 v13, 4, v15", "v_and_b32 v14, 15, v13", "v_and_b32 v27, 1, v13", "v_lshrrev_b32 v20, 4, v13", "v_lshl_add_u32 v20, v20, 2, v27",
             "v_cmp_le_u32 s[40:41], v20, v14", "v_add_u32 v20, 2, v20", "v_cmp_le_u32 s[42:43], v20, v14", "v_cmp_ne_u32 s[62:63], 0, v27",
             "v_lshlrev_b32 v27, 4, v27", "s_cmp_eq_u32 s33, 0", "s_cselect_b64 s[88:89], -1, 0", "s_andn2_b64 s[90:91], s[88:89], s[42:43]",
             "s_andn2_b64 s[88:89], s[88:89], s[40:41]", "s_mov_b32 s48, 0x3e3504f3", "s_mov_b32 s49, 0x3fb8aa3b",
             "s_lshl_b32 s3, s32, 11", "s_add_u32 s3, s3, %d" % EX, "v_add_u32 v25, s3, v15", unp("vhx", 24),
             "v_lshlrev_b32 v14, %d, v14" % (7 if FP else 2), "v_and_b32 v13, 31, v13", "v_lshlrev_b32 v13, 2, v13",
             "s_and_b32 s3, s2, 7", "s_xor_b32 s61, s3, %d" % P.get("g0", 1), "s_xor_b32 s3, s61, 1",
             "s_mul_i32 s44, s61, %d" % (7 * 131072), "s_mul_i32 s45, s3, %d" % (7 * 131072),
             "s_mul_i32 s46, s61, %d" % (7 * 16384), "s_add_u32 s46, s46, s57", "s_mul_i32 s47, s3, %d" % (7 * 16384), "s_add_u32 s47, s47, s57",
             "s_mov_b32 s60, s46", "s_lshl_b32 s61, s61, 9", "s_add_u32 s34, s61, s58", "s_lshl_b32 s3, s3, 9", "s_add_u32 s58, s58, s3", "v_and_b32 v5, 384, v14"]
    if ROTD >= 5:
        def perm(r):
            p = list(range(7))
            if ROTD == 5:
                for c in range(r, 6, 4): p[c], p[c + 1] = p[c + 1], p[c]
            else:
                for c in range(r, 5, 4): p[c], p[c + 1], p[c + 2] = p[c + 2], p[c], p[c + 1]
                if r == 3: p[0], p[1] = p[1], p[0]
            if P.get("ab_hit"): p = [k % 2 for k in range(7)]
            return sum(v << (4 * k) for k, v in enumerate(p))
        masks += ["s_add_u32 s3, s%d, s%d" % (SMT, SNT), "s_mov_b32 s4, 0x%x" % perm(0), "s_mov_b32 s5, 0x%x" % perm(2), "s_bitcmp1_b32 s3, 0",
                  "s_cselect_b32 s4, 0x%x, s4" % perm(1), "s_cselect_b32 s5, 0x%x, s5" % perm(3), "s_bitcmp1_b32 s3, 1", "s_cselect_b32 s3, s5, s4"]
        for k in range(7):
            masks += ["s_bfe_u32 s%d, s3, 0x%x" % (RREG[k], 0x40000 + 4 * k), "s_lshl_b32 s%d, s%d, 14" % (RREG[k], RREG[k])]
        if ROTO:
            def perm8(r):
                p = list(range(8))
                for c in range(r, 7, 4): p[c], p[c + 1] = p[c + 1], p[c]
                if P.get("ab_hit") == 2: p = [k % 2 for k in range(8)]
                return sum(v << (4 * k) for k, v in enumerate(p))
            masks += ["s_add_u32 s3, s%d, s%d" % (SMT, SNT), "s_mov_b32 s80, 0x%x" % perm8(0), "s_mov_b32 s81, 0x%x" % perm8(2), "s_bitcmp1_b32 s3, 0",
                      "s_cselect_b32 s80, 0x%x, s80" % perm8(1), "s_cselect_b32 s81, 0x%x, s81" % perm8(3), "s_bitcmp1_b32 s3, 1", "s_cselect_b32 s80, s81, s80",
                      "s_add_u32 s81, s57, %d" % (112 * 8192)]
    elif ROTD >= 3:
        masks += ["s_add_u32 s3, s%d, s%d" % (SMT, SNT)]
        W1_ = {3: 4, 4: 2}[ROTD]
        for k in range(4):
            masks += ["s_add_u32 s%d, s3, %d" % (RREG[k], k), "s_and_b32 s%d, s%d, %d" % (RREG[k], RREG[k], W1_ - 1)]
            if k >= W1_: masks += ["s_add_u32 s%d, s%d, %d" % (RREG[k], RREG[k], W1_)]
            masks += ["s_lshl_b32 s%d, s%d, 14" % (RREG[k], RREG[k])]
        masks += ["s_mul_i32 s36, s3, 86", "s_lshr_b32 s36, s36, 8", "s_mul_i32 s36, s36, 3", "s_sub_u32 s3, s3, s36", "s_add_u32 s3, s3, 4", "s_lshl_b32 s36, s3, 14"]
        for k in (5, 6):
            masks += ["s_add_u32 s%d, s%d, 16384" % (RREG[k], RREG[k - 1]), "s_cmp_eq_u32 s%d, %d" % (RREG[k], 7 * 16384), "s_cselect_b32 s3, %d, 0" % (3 * 16384), "s_sub_u32 s%d, s%d, s3" % (RREG[k], RREG[k])]
    elif ROTD:
        if ROTD == 1: masks += ["s_and_b32 s3, s%d, 3" % SMT, "s_lshl1_add_u32 s3, s3, s%d" % SNT]
        else: masks += ["s_mov_b32 s3, s%d" % SNT]
        masks += ["s_cmp_ge_u32 s3, 7", "s_cselect_b32 s4, 7, 0", "s_sub_u32 s3, s3, s4", "s_lshl_b32 s4, s3, 14"]
        for k in range(1, 7):
            masks += ["s_add_u32 s%d, s%d, 16384" % (RREG[k], RREG[k - 1]), "s_cmp_eq_u32 s%d, %d" % (RREG[k], 7 * 16384), "s_cselect_b32 s%d, 0, s%d" % (RREG[k], RREG[k])]
    early = ["v_add_u32 v%d, s63, v%d" % (AB2 + r, r) for r in (1, 2, 3, 4)] + xoff_ops()[:2] + xld_ops(2, "X")[8:] + masks
    ctouch = []
    if P.get("ctouch2", 1):
        def getpc():
            a("s_getpc_b64 s[16:17]"); a.label("L_pc2")
        ctouch = [getpc, "s_mov_b32 s18, L_end-L_pc2", "s_bfe_u32 s3, s2, 0x30003", "s_lshl2_add_u32 s3, s3, s32", "s_lshl_b32 s3, s3, 11", "v_and_b32 v20, 0xf0, v15",
                  "v_lshl_add_u32 v20, v20, 3, s3", ("t", "buffer_load_dword v29, v20, s[16:19], 0 offen")]
        early = early[:4] + ctouch + early[4:]
    w2t = []
    if P.get("w2tail"):
        early += ["s_bfe_u32 s3, s2, 0x20001", "s_mul_i32 s94, s3, %d" % (896 * 2048), "s_lshr_b32 s3, s2, 3", "s_mul_i32 s3, s3, %d" % (28 * 2048), "s_add_u32 s94, s94, s3",
                  "s_lshl_b32 s3, s32, 14", "s_add_u32 s94, s94, s3", "s_add_u32 s95, s94, 8192", "s_cmp_eq_u32 s32, 3", "s_cselect_b32 s95, %d, s95" % OOB, "v_lshlrev_b32 v28, 3, v15"]
        w2t = [("t", "buffer_load_dword v29, v28, s[8:11], s94 offen"), ("t", "buffer_load_dword v29, v28, s[8:11], s95 offen")]
    memq = ["s_mov_b64 s[8:9], s[%d:%d]" % (PD, PD + 1), "s_mov_b32 s10, %d" % (3584 * 2048)] + (w2t if P.get("w2tail") == 1 else []) + wops(0) + wops(1) + (w2t if P.get("w2tail") == 2 else []) + \
        ["s_mov_b64 s[12:13], s[%d:%d]" % (PWO, PWO + 1), "s_mov_b32 s14, %d" % (1024 * 2048)] + wops(19, True) + wops(20, True)
    stream = []
    def pkA(p): return [x for m in range(4) for h in (0, 2) for x in (
        "v_pk_mul_f32 %s, %s, %s" % (vr(accGU(p, 1, m) + h, 2), vr(accGU(p, 0, m) + h, 2), vr(accGU(p, 1, m) + h, 2)),)] + \
        ["v_pk_mul_f32 %s, %s, s[50:51]" % (vr(accGU(p, 0, m) + h, 2), vr(accGU(p, 0, m) + h, 2)) for m in range(4) for h in (0, 2)]
    def pkB(p): return ["v_pk_add_f32 %s, %s, s[52:53]" % (vr(accGU(p, 0, m) + h, 2), vr(accGU(p, 0, m) + h, 2)) for m in range(4) for h in (0, 2)]
    def pkC(p): return ["v_pk_mul_f32 %s, %s, %s" % (vr(accGU(p, 1, m) + h, 2), vr(accGU(p, 1, m) + h, 2), vr(accGU(p, 0, m) + h, 2)) for m in range(4) for h in (0, 2)]
    def fin(p):
        o = []
        sreg = 73 + (p & 1)
        for m in range(4):
            U = accGU(p, 1, m)
            D = accGU(p, 0, m & ~1) + 2 * (m & 1)
            o += ["v_cvt_pk_bf16_f32 v%d, v%d, v%d" % (D, U, U + 1), "v_cvt_pk_bf16_f32 v%d, v%d, v%d" % (D + 1, U + 2, U + 3)]
        for m in (0, 2):
            g0 = accGU(p, 0, m)
            o += ["v_permlane16_swap_b32 v%d, v%d" % (g0, g0 + 2), "v_permlane16_swap_b32 v%d, v%d" % (g0 + 1, g0 + 3)]
            o.append(("hs", "buffer_store_dwordx4 %s, v26, s[28:31], s%d offen offset:%d %s" % (vr(g0, 4), sreg, 1024 * m, SC)))
        o.append("s_add_u32 s%d, s%d, 8192" % (sreg, sreg))
        return o
    rdy = lambda b: (done_pos[b] + 1) * 8 + 7
    for p in range(8):
        burst = (pkC(p - 1) if p > 0 else []) + (pkA(p) if p < 7 else [])
        stream.append((rdy(2 * p + 1) if p < 7 else 0, burst, True))
        tr1 = ["v_exp_f32 v%d, v%d" % (accGU(p, 0, 0) + r, accGU(p, 0, 0) + r) for r in range(16)] if p < 7 else []
        f = fin(p - 1) if p > 0 else []
        if p > 0 and (p - 1) % 2 == 0 and p - 1 < 6: pass
        mix = []
        while tr1 or f:
            if f: mix.append(f.pop(0))
            if tr1: mix.append(tr1.pop(0))
        for o in mix: stream.append((0, [o], False))
        if p < 7:
            stream.append((0, pkB(p), True))
            for r in range(16): stream.append((0, ["v_rcp_f32 v%d, v%d" % (accGU(p, 0, 0) + r, accGU(p, 0, 0) + r)], False))
    stream.append((0, ["HDONE"], False))
    for s_, F in ((0, Qf), (1, Qf), (2, Kf), (3, Kf)):
        for m in (3, 2, 1, 0):
            for k, o in enumerate(cvt_acc(F(m) + 2 * (s_ & 1), accQ(s_, m), TT(m))):
                stream.append((rdy(14 + s_), [o], False))
    for m in (3, 2, 1, 0):
        for o in cvt_acc(VV(0, m), accQ(4, m), TT(m)): stream.append((rdy(18), [o], False))
    def hflag():
        vwait("hs")
        V("f", "buffer_store_dword v7, v%d, s[84:87], s92 offen %s" % (13 if FL & 2 else 6, SC))
    GL = P.get("gaplen", 20)
    MSP = P.get("mem_space", 5)
    HDLY = P.get("hflag_delay", 99)
    BP = P.get("bar_pos", 28)
    lg = Cnt([0] * 4 + [1] * 4 + [2] * 4)
    HR = {3: 0, 15: 1}; HM = {7: 0, 19: 2}
    isv = lambda o: isinstance(o, str) and (o.startswith("v_") or o.startswith("s_nop"))
    front = []
    lastmem = -99; hdone = None; hsent = False; est = 0
    w = lg.need(0); a("s_waitcnt lgkmcnt(%d)" % w)
    for pos, (bi, st_) in enumerate(order):
        mf = mfmas(blocks[bi], pos % 4, 2 * st_)
        if P.get("tstamp") and pos in (4, 8, 16, 24, 32): stamp()
        if pos % 4 == 0: sys.stderr.write("pos %d: stream left %d est %d\n" % (pos, len(stream), est))
        rd = []
        if pos + 3 < NPOS:
            b3, s3 = order[pos + 3]
            rd = [(pos + 3, o) for o in wreads(blocks[b3], lambda kh: WR((pos + 3) % 4, kh), AB2 * s3)]
        gaps = [0, 2, 4, 6]
        if pos in HR:
            hr = [("H", o) for o in wreads(("h",), HW, AB2 * HR[pos])]
            rd = [x for pr in zip(rd, hr) for x in pr]; gaps = list(range(8))
        rdat = dict(zip(gaps, rd))
        if pos in HM:
            assert lg.need("H") is None
            if HM[pos]: vwait("X")
            mf += halo_mf(HM[pos])
        for i, m in enumerate(mf):
            g = pos * 8 + i
            a(m)
            t = 4
            if i in rdat:
                a(rdat[i][1]); lg.issue(rdat[i][0]); t += 8
            if i == len(mf) - 1 and pos + 1 < NPOS:
                w = lg.need(pos + 1)
                if pos == 0:
                    vwait("W"); a("s_barrier")
                if pos == BP:
                    assert BP > done_pos[13]
                    a("s_barrier"); memq += wops(2) + wops(3) + wops(21, True)
                if w is not None: a("s_waitcnt lgkmcnt(%d)" % w); t += 4
            if early:
                while early and t < 16:
                    o = early.pop(0); E(o); t = (max(t, 8) if isv(o) else t) + cost(o)
            else:
                q = front if front else memq
                if q and not isinstance(q[0], tuple) and t <= 12 - 4 * bool(stream and stream[0][0] <= g):
                    E(q.pop(0)); t += 4
                elif q and isinstance(q[0], tuple) and t == 4 and g - lastmem >= (MSP if q is memq else P.get("st_space", 4)):
                    E(q.pop(0)); t += 8; lastmem = g
                if hdone is not None and not hsent and not front and g >= hdone + HDLY and t == 4:
                    hflag(); hsent = True; t += 12
                if g == P.get("tpoll_gap", 305):
                    V("p", "buffer_load_dword v12, v5, s[84:87], s34 offen %s" % SC); t += 8
                t = max(t, 8)
                def to_burst():
                    c = 0
                    for r_, ops, burst in stream[:4]:
                        if burst: return c if r_ <= g else None
                        if isv(ops[0]): c += cost(ops[0])
                    return None
                while stream and stream[0][0] <= g:
                    tb = to_burst() if P.get("bfix", 1) else None
                    if tb is not None and t + tb <= 28: pass
                    elif tb is not None and tb <= 16 and t >= 16: break
                    elif t >= GL - 3: break
                    r_, ops, burst = stream.pop(0)
                    if ops == ["HDONE"]: hdone = g; continue
                    if not isv(ops[0]): front.append(ops[0]); continue
                    for o in ops: E(o); t += cost(o)
                    if burst: t = max(t, 29 + 4 * len(ops))
            est += max(16, t)
    sys.stderr.write("tail: %d stream ops left after last MFMA, est %d, hdone %s hsent %s memq %d\n" % (len(stream), est, hdone, hsent, len(memq)))
    stamp()
    for o in front: E(o)
    a("s_nop 1")
    for r_, ops, burst in stream:
        for o in ops:
            if o != "HDONE": E(o)
    HPOS = P.get("hflag_pos", 0)
    if not hsent and HPOS == 0: hflag(); hsent = True
    M4 = range(4)
    a("s_nop 1")
    for m in (1, 2, 3):
        a("%s %s, %s, %s, 0" % (MF, vr(Sc(m), 4), vr(Kf(m), 4), vr(Qf(m), 4)))
        a("%s %s, %s, %s, 0" % (MF, vr(Sp(m), 4), vr(Kf(m - 1), 4), vr(Qf(m), 4)))
    a("%s %s, %s, %s, 0" % (MF, vr(Sc(0), 4), vr(Kf(0), 4), vr(Qf(0), 4)))
    for o in cvt_acc(2, HACC, 20): a(o)
    a("v_add_u32 v4, s71, v24"); a("v_add_u32 v10, s71, v4"); a("v_add_u32 v8, s71, v10")
    for o in cvt_acc(VV(1, 3), accQ(5, 3), TT(0)): a(o)
    a("ds_write_b16 v24, v2"); a("ds_write_b16_d16_hi v4, v2"); a("ds_write_b16 v10, v3"); a("ds_write_b16_d16_hi v8, v3")
    a("s_cmp_eq_u32 s32, 3")
    a("s_cbranch_scc1 L_noexp")
    a("ds_write_b128 v25, %s offset:2048" % vr(Kf(3), 4))
    a("ds_write_b64 v25, %s offset:3072" % vr(VV(0, 3), 2))
    a("ds_write_b64 v25, %s offset:3080" % vr(VV(1, 3), 2))
    a.label("L_noexp")
    if not hsent: hflag()
    PPOS = P.get("poll_pos", 9)
    poll1 = lambda: V("p", "buffer_load_dword v12, v5, s[84:87], s34 offen %s" % SC)
    if PPOS == 0: poll1()
    for m in (2, 1):
        for o in cvt_acc(VV(1, m), accQ(5, m), TT(m)): a(o)
    vwait("W0", lg0=True)
    a("s_barrier")
    a("ds_read_b128 %s, v25" % vr(Kf(-1), 4))
    a("ds_read_b64 %s, v25 offset:1024" % vr(VV(0, -1), 2))
    a("ds_read_b64 %s, v25 offset:1032" % vr(VV(1, -1), 2))
    for o in cvt_acc(VV(1, 0), accQ(5, 0), TT(0)): a(o)
    a("s_and_b32 s3, s2, 4"); a("s_lshl_b32 s3, s3, 9")
    a("v_add_u32 v%d, s3, v15" % VX)
    for q in range(1, 4): a("v_add_u32 v%d, %d, v%d" % (VX + q, 8192 * q, VX))
    for q in range(2): a("v_xor_b32 v%d, 0x800, v%d" % (VX + 4 + q, VX + q))
    a("v_mov_b32 v11, 0xce6e6b28")
    a("s_waitcnt lgkmcnt(0)")
    a("%s %s, %s, %s, 0" % (MF, vr(Sp(0), 4), vr(Kf(-1), 4), vr(Qf(0), 4)))
    stamp()
    if PPOS == 1: poll1()
    LATE = [17, 18]
    dq = list(memq)
    aw = Weave(P.get("dma_every", 10), dq)
    CKP = P.get("check_pos", 0)
    BLK = P.get("blocking", 0)
    def hcheck():
        if BLK:
            aw.flush()
            check_flags(12, 5, "s34", "p", "L_f1")
            stamp()
            dq.extend([o for sg in range(NX0) for o in xops(sg)])
            aw.n = P.get("x_every", 4)
            for _ in range(P.get("x_burst", 4)): aw.one()
            return
        vwait("p")
        a("v_cmp_ne_u32 vcc, s96, v12")
        a("s_nop 0")
        a("s_cmp_eq_u64 vcc, 0")
        a("s_cselect_b32 s60, s46, %s" % ("s46" if P.get("ab_nocheck") else str(OOB)))
        if P.get("force_late"): a("s_mov_b32 s60, %d" % OOB)
        stamp()
        dq.extend([o for sg in range(NX0) for o in xops(sg)])
        for _ in range(P.get("x_burst", 3)): aw.one()
    if CKP == 0: hcheck()
    if P.get("ab_nosm"):
        aw_real = aw
        class Skip:
            def __call__(self, t):
                if t in keep: a(t)
            def one(self): aw_real.one()
            def flush(self): aw_real.flush()
        keep = set()
        aw = Skip()
    A_ = lambda m: TT(m)
    B_ = lambda m: TT(m) + 1
    X_ = lambda m: TT(m) + 2
    Y_ = lambda m: TT(m) + 3
    MR = (3, 2, 1, 0)
    for m in MR:
        for S_ in (Sc, Sp):
            aw("v_cndmask_b32 v%d, v%d, v%d, s[62:63]" % (S_(m), S_(m), S_(m) + 1))
            aw("v_cndmask_b32 v%d, v%d, v%d, s[62:63]" % (S_(m) + 2, S_(m) + 2, S_(m) + 3))
    for m in MR:
        aw("v_cndmask_b32 v%d, v%d, v%d, s[40:41]" % (A_(m), Sp(m), Sc(m)))
        aw("v_cndmask_b32 v%d, v%d, v%d, s[42:43]" % (B_(m), Sp(m) + 2, Sc(m) + 2))
    if CKP == 1: hcheck()
    def rnd():
        for m in MR: aw("v_cvt_pk_bf16_f32 v%d, v%d, v%d" % (X_(m), A_(m), B_(m)))
        for m in MR:
            aw("v_lshlrev_b32 v%d, 16, v%d" % (A_(m), X_(m)))
            aw("v_and_b32 v%d, s54, v%d" % (B_(m), X_(m)))
    rnd()
    for m in MR: aw("v_pk_mul_f32 %s, %s, s[48:49] op_sel_hi:[1,0]" % (vr(A_(m), 2), vr(A_(m), 2)))
    rnd()
    aw("v_cndmask_b32 v%d, v%d, v11, s[88:89]" % (A_(0), A_(0)))
    aw("v_cndmask_b32 v%d, v%d, v11, s[90:91]" % (B_(0), B_(0)))
    if CKP == 2: hcheck()
    if PPOS == 2: poll1()
    fillq = [unp("vw", VW)] + ["v_xor_b32 v%d, %d, v%d" % (VW + b, 32 * b, VW) for b in range(1, 8)] + \
            [unp("vwo", VWO)] + ["v_xor_b32 v%d, %d, v%d" % (VWO + b, 32 * b, VWO) for b in range(1, 4)] + \
            ["v_subrev_u32 v%d, %d, v%d" % (40 + b, R2, VWO + b) for b in range(4)] + \
            ["v_add_u32 v%d, %d, v%d" % (44 + b, 106496 - R2, VWO + b) for b in range(4)] + \
            [unp("vout", 2)]
    if P.get("ab_nosm"): keep.update(fillq)
    def pad(n):
        for _ in range(n):
            aw(fillq.pop(0) if fillq else "s_nop 0")
    def reduce(op):
        for m in MR: aw("%s v%d, v%d, v%d" % (op, X_(m), A_(m), B_(m)))
        for sw in ("v_permlane16_swap_b32", "v_permlane32_swap_b32"):
            for m in MR: aw("v_mov_b32 v%d, v%d" % (Y_(m), X_(m)))
            pad(2)
            for m in MR: aw("%s v%d, v%d" % (sw, X_(m), Y_(m)))
            pad(1)
            for m in MR: aw("%s v%d, v%d, v%d" % (op, X_(m), X_(m), Y_(m)))
    reduce("v_max_f32")
    if CKP == 3: hcheck()
    if PPOS == 3: poll1()
    for m in MR: aw("v_pk_add_f32 %s, %s, %s op_sel_hi:[1,0] neg_lo:[0,1] neg_hi:[0,1]" % (vr(A_(m), 2), vr(A_(m), 2), vr(X_(m), 2)))
    for m in MR: aw("v_pk_mul_f32 %s, %s, s[48:49] op_sel:[0,1]" % (vr(A_(m), 2), vr(A_(m), 2)))
    for m in MR:
        aw("v_exp_f32 v%d, v%d" % (A_(m), A_(m)))
        aw("v_exp_f32 v%d, v%d" % (B_(m), B_(m)))
    pad(1)
    reduce("v_add_f32")
    if CKP == 4: hcheck()
    if PPOS == 4: poll1()
    for m in MR: aw("v_rcp_f32 v%d, v%d" % (X_(m), X_(m)))
    pad(1)
    for m in MR: aw("v_pk_mul_f32 %s, %s, %s op_sel_hi:[1,0]" % (vr(A_(m), 2), vr(A_(m), 2), vr(X_(m), 2)))
    for m in MR: aw("v_cvt_pk_bf16_f32 v%d, v%d, v%d" % (X_(m), A_(m), B_(m)))
    for m in MR:
        aw("v_and_b32 v%d, 0xffff, v%d" % (A_(m), X_(m)))
        aw("v_lshrrev_b32 v%d, 16, v%d" % (B_(m), X_(m)))
    for m in MR:
        aw("v_lshlrev_b32 v%d, v27, v%d" % (A_(m), A_(m)))
        aw("v_lshlrev_b32 v%d, v27, v%d" % (B_(m), B_(m)))
    for m in MR:
        aw("v_cndmask_b32 v%d, v%d, 0, s[40:41]" % (Pf(m), A_(m)))
        aw("v_cndmask_b32 v%d, v%d, 0, s[42:43]" % (Pf(m) + 1, B_(m)))
        aw("v_cndmask_b32 v%d, 0, v%d, s[40:41]" % (Pf(m) + 2, A_(m)))
        aw("v_cndmask_b32 v%d, 0, v%d, s[42:43]" % (Pf(m) + 3, B_(m)))
    pad(max(2, len(fillq)))
    if CKP == 5: hcheck()
    sys.stderr.write("DMA queue left after softmax: %d\n" % len(dq))
    for m in MR:
        a("%s %s, %s, %s, 0" % (MF, vr(Sp(m), 4), vr(VV(0, m - 1), 4), vr(Pf(m), 4)))
        a("%s %s, %s, %s, 0" % (MF, vr(Sc(m), 4), vr(VV(1, m - 1), 4), vr(Pf(m), 4)))
    stamp()

    for _ in range(P.get("g2_shift", 0)): a("s_nop 0")
    lg = Cnt()
    for b in range(4):
        for o in wreads2(0, b): a(o); lg.issue((0, b))
    for m in M4:
        for h in range(4):
            a("v_cvt_pk_bf16_f32 v%d, v%d, v%d" % (240 + 4 * m + h, Sp(m) + 2 * h, Sp(m) + 2 * h + 1))
    aw.flush()
    if not BLK:
        vwait(*[t for t in vm.q if not t.startswith("X")])
        sv = list(vm.q)
        a("s_cmp_eq_u32 s60, s46")
        a("s_cbranch_scc1 L_early")
        a("s_mov_b32 s60, s46")
        poll1()
        check_flags(12, 5, "s34", "p", "L_f1")
        for sg in range(NX0):
            for o in xops(sg): E(o)
        assert vm.q == sv, (vm.q, sv)
        a.label("L_early")
    ostores = [("os", "buffer_store_dwordx4 %s, v15, s[28:31], s75 offen offset:%d %s" % (vr(240 + 4 * m, 4), 1024 * m, SC)) for m in M4]

    srd(a, 16, PX, 0, 2048 * 2048)
    srd(a, 20, PWS, PART_OFF, PART_BYTES)
    srd(a, 24, POUT, 0, 2048 * 2048)
    a("s_add_u32 s73, s72, 32768")
    a("s_lshl2_add_u32 s74, s2, s32"); F2S = P.get("f2shift", 2); a("s_lshl_b32 s88, s74, %d" % F2S); a("s_add_u32 s88, s88, %d" % F2)
    a("s_lshl_b32 s74, s74, 14")
    a("v_and_b32 v14, 0x30, v15"); a("v_max_u32 v14, 16, v14"); a("v_lshlrev_b32 v14, %d, v14" % (F2S - 1)); a("v_xor_b32 v14, s88, v14")
    a("s_add_u32 s89, s88, %d" % (1024 << F2S)); a("s_mov_b32 s94, %d" % (1024 << F2S))
    a("s_mov_b32 s92, s35")
    vwait("X0")
    stamp()

    AH = P.get("ahead", 1)
    Hs = [(sg, c) for sg in range(ND - AH) for c in (0, 1)] + [(sg, 0) for sg in range(ND - AH, ND)] + [(sg, 1) for sg in range(ND - AH, ND)] + \
         [(sg, c) for sg in range(ND, NS) for c in (0, 1)]
    lastuse = {sg: max(i for i, h in enumerate(Hs) if h[0] == sg) // 2 for sg in range(NS)}
    firstuse = {sg: min(i for i, h in enumerate(Hs) if h[0] == sg) // 2 for sg in range(NS)}
    wsched = {}
    for w in range(4, FR):
        wsched.setdefault(lastuse[w - 4], []).append(w)
        assert lastuse[w - 4] < firstuse[w] - 1 or w >= ND, (w, lastuse[w - 4], firstuse[w])
        assert lastuse[w - 4] < firstuse[w] - 1
    LASTBAR = FR - 2
    q01 = max(i for i, h in enumerate(Hs) if h[0] < ND and h[1] == 0)
    isV = lambda x: isinstance(x, tuple)
    isval = lambda x: isinstance(x, str) and x.startswith("v_")
    def stage(sg, h1=(), h2=(), pre=None, valu=None):
        last = sg == NS - 1
        if P.get("sstamp") and sg >= 1: stamp()
        if pre: pre()
        NG = 64 if sg < ND else 32
        H = NG // 2
        h1 = list(h1); h2 = [o for w in wsched.get(sg, []) for o in wops(w)] + list(h2)
        drop = lambda o: isinstance(o, tuple) and ((P.get("ab_dx") and o[0].startswith("X") and sg >= P["ab_dx"]) or (P.get("ab_dw") and o[0].startswith("W")) or (P.get("ab_dos") and o[0] in ("os", "e", "R")))
        h1 = [o for o in h1 if not drop(o)]; h2 = [o for o in h2 if not drop(o)]
        blk = lambda k, b: (Hs[2 * k + b // 4][0], 4 * Hs[2 * k + b // 4][1] + b % 4)
        r1 = [((sg, b), o) for b in range(4, 8) for o in wreads2(*blk(sg, b), b)]
        r2 = [] if last else [((sg + 1, b), o) for b in range(4) for o in wreads2(*blk(sg + 1, b), b)]
        bar = sg <= LASTBAR
        plan = {g: [] for g in range(NG)}
        load = {g: 4 for g in range(NG)}
        WG_ = {H // 2 - 1: (sg, 3), NG - 1: (sg + 1, 1)}
        if not bar: WG_.update({H - 1: (sg, 5), 3 * H // 2 - 1: (sg, 7)})
        for g in WG_: load[g] += 4
        if bar: load[H - 1] += 8
        def place(lo, hi, rds, rhi, h):
            n = len(rds)
            for k in range(n):
                g = lo + k * (rhi - lo + 1) // n
                plan[g].append(("r",) + rds[k]); load[g] += 8
            nv = sum(isV(x) for x in h)
            pos = [None] * len(h); vi = 0; prev = lo
            for k, x in enumerate(h):
                if isV(x):
                    t = lo + int((vi + 0.5) * (hi - lo + 1) / nv); vi += 1
                    c = sorted(range(max(prev, t - 1), min(hi, t + 1) + 1), key=lambda g: (load[g], abs(g - t))) or [hi]
                    pos[k] = prev = c[0]; load[c[0]] += 8
            prev = lo
            for k, x in enumerate(h):
                if pos[k] is None:
                    nxt = next((pos[j] for j in range(k + 1, len(h)) if pos[j] is not None), hi)
                    if isval(x) and nxt > prev: nxt -= 1
                    c = [g for g in range(prev, nxt + 1) if load[g] <= 12]
                    g = c[0] if c else min(range(prev, max(prev, nxt) + 1), key=lambda g: load[g])
                    pos[k] = g; load[g] = max(load[g], 8 if isval(x) else 0) + 4
                pos[k] = max(pos[k], prev); prev = pos[k]
                plan[pos[k]].append(("o", x))
        place(0, H - 1, r1, (H - 7 if NG == 64 else H - 4) if bar else H - 1, h1)
        place(H, NG - 1, r2, NG - 1, h2)
        if valu:
            for k, x in enumerate(valu[0]): plan[valu[1] + k * (NG - valu[1]) // len(valu[0])].append(("o", x))
        sys.stderr.write("st%d:%d " % (sg, sum(max(16, v) for v in load.values())))
        g = 0
        for b in range(8):
            w = lg.need((sg, b))
            if w is not None: a("s_waitcnt lgkmcnt(%d)" % w)
            for mf in mfmas2(*blk(sg, b), b):
                a(mf)
                for x in plan[g]:
                    if x[0] == "r": a(x[2]); lg.issue(x[1])
                if g in WG_:
                    w = lg.need(WG_[g])
                    if w is not None: a("s_waitcnt lgkmcnt(%d)" % w)
                for x in plan[g]:
                    if x[0] != "r": E(x[1])
                if g == H - 1 and bar:
                    allw = ["W%d" % w for w in range(NS)] if sg == LASTBAR else []
                    vwait("W%d" % Hs[2 * sg + 2][0], "W%d" % Hs[2 * sg + 3][0], *allw, lg0=True)
                    a("s_barrier")
                    lg.clear()
                if g == H - 2: vwait("X%d" % Hs[2 * sg + 1][0])
                if g == NG - 2 and not last: vwait("X%d" % Hs[2 * sg + 2][0])
                g += 1
    def oflag():
        vwait("os")
        V("f", "buffer_store_dword v7, v6, s[84:87], s92 offen %s" % SC)
    EPV = 224
    eload = ["v_lshlrev_b32 v4, %d, v15" % (F0S - 2), "s_or_b32 s3, s2, s32", "s_cselect_b32 s3, %d, 0" % OOB] + \
          [("e", "buffer_load_dwordx4 %s, v4, s[84:87], s3 offen offset:%d %s" % (vr(EPV + 4 * k, 4), k << F0S, SC)) for k in range(4)]
    def epoch():
        a("s_or_b32 s3, s2, s32")
        a("s_cbranch_scc1 L_noep")
        a("s_mov_b32 s97, 0")
        a.label("L_ep")
        for k in range(0, 16, 4 if WF else 1): a("v_xor_b32 v%d, s96, v%d" % (EPV + k, EPV + k))
        for k in range(4 if WF else 1, 16, 4 if WF else 1): a("v_or_b32 v%d, v%d, v%d" % (EPV, EPV, EPV + k))
        a("v_cmp_ne_u32 vcc, 0, v%d" % EPV)
        a("s_cbranch_vccz L_epok")
        for k in range(4): a("buffer_load_dwordx4 %s, v4, s[84:87], 0 offen offset:%d %s" % (vr(EPV + 4 * k, 4), k << F0S, SC))
        a("s_add_u32 s97, s97, 1")
        a("s_waitcnt vmcnt(0)")
        a("s_cmp_lt_u32 s97, 0x80000")
        a("s_cbranch_scc1 L_ep")
        a.label("L_epok")
        a("s_mov_b32 s3, %d" % EPOCH)
        a("buffer_store_dword v7, v6, s[84:87], s3 offen %s" % SC)
        a.label("L_noep")

    PK, XU, XRES, TE = 64, 112, 240, 224
    KEEP = 160
    XUF = lambda o: 80 + (o // 16) * 32 + o % 16
    sends = []
    for hf in range(2):
        for qd in range(3):
            for k in (2 * hf, 2 * hf + 1):
                R = 64 + 32 * qd + 8 * k
                sends.append((["s_add_u32 s75, s74, %d" % (4096 * qd)] if k % 2 == 0 else []) +
                             [("v_cvt_pk_bf16_f32 v%d, v%d, v%d" % (R + r, R + 2 * r, R + 2 * r + 1)) for r in range(4)] +
                             [("S%d" % hf, "buffer_store_dwordx4 %s, v15, s[20:23], s75 offen offset:%d %s" % (vr(R, 4), 1024 * k, SC))])
    if P.get("send_order"): sends = sends[0:4] + sends[6:10] + sends[4:6] + sends[10:12]
    PKR = lambda qd, k: 64 + 32 * qd + 4 * k
    xres = [("R", "buffer_load_dwordx4 %s, v2, s[16:19], s%d offen offset:%d" % (vr(XRES + 4 * (2 * m + bp), 4), 72 + m, 64 * bp)) for m in range(2) for bp in range(2)]
    parts = ["s_xor_b32 s%d, s74, 0x%x" % (40 + qd, (dx << 16) + 4096 * qd) for qd, dx in enumerate((2, 6, 4))]
    for k in range(4):
        parts += [("P%d" % k, "buffer_load_dwordx4 %s, v15, s[20:23], s%d offen offset:%d %s" % (vr(PKR(qd, k), 4), 40 + qd, 1024 * k, SC)) for qd in range(3)]
    if P.get("ab_nosend"): sends = [[o for o in x if not isinstance(o, tuple)] for x in sends]
    if P.get("ab_noparts"): parts = parts[:3] + ["s_nop 0"] * 12
    SPA = P.get("send", [4, 2, 1, 1, 1, 1, 1, 1])
    NBB = P.get("nbb", 1)
    EXA, EXB = P.get("ex_a", [16, 17.5, 19]), P.get("ex_b", [18.5, 20.5, 22])
    XRS = P.get("xres_stage", 12)
    def take(n):
        r = [o for x in sends[:n] for o in x]; del sends[:n]; return r
    def sflag(hf):
        vwait("S%d" % hf)
        V("f", "buffer_store_dword v7, v%d, s[84:87], s%d offen %s" % (13 if (FL & 4 and F2S == 7) else 6, 88 + hf, SC))
    pollx = lambda hf: ("p%d" % hf, "buffer_load_dword v%d, v14, s[84:87], %s offen %s" % ((3, 12)[hf], ("0", "s94")[hf], SC))
    checkx = lambda hf: check_flags((3, 12)[hf], 14, ("0", "s94")[hf], "p%d" % hf, "L_f3%d" % hf)
    partx = lambda hf: parts[:9] if hf == 0 else parts[9:]
    def round4(R, T):
        return ["v_cvt_pk_bf16_f32 v%d, v%d, v%d" % (T, R, R + 1), "v_cvt_pk_bf16_f32 v%d, v%d, v%d" % (T + 1, R + 2, R + 3),
                "v_lshlrev_b32 v%d, 16, v%d" % (R, T), "v_and_b32 v%d, s54, v%d" % (R + 1, T),
                "v_lshlrev_b32 v%d, 16, v%d" % (R + 2, T + 1), "v_and_b32 v%d, s54, v%d" % (R + 3, T + 1)]
    xpart = [lambda: vwait("R"), "v_mov_b32 v8, 0x3f80", "v_mov_b32 v9, 1.0"]
    for g4 in range(4):
        R = XRES + 4 * g4
        xpart += ["v_permlane16_swap_b32 v%d, v%d" % (R, R + 2), "v_permlane16_swap_b32 v%d, v%d" % (R + 1, R + 3)]
    for m in range(2):
        for bp in range(2):
            for be in range(2):
                for h in range(2):
                    src = XRES + 4 * (2 * m + bp) + 2 * be + h
                    d = XUF((m * 4 + 2 * bp + be) * 4 + 2 * h)
                    xpart += ["v_lshlrev_b32 v%d, 16, v%d" % (d, src), "v_and_b32 v%d, s54, v%d" % (d + 1, src)]
    QD, QO, SW = P.get("qd", 7.75), P.get("qo", 5.5), P.get("sw", 1.5)
    xq = []
    for x in range(NX0, NS):
        o = xops(x); xq += [(x, o[:2])] + [(x, [y]) for y in o[2:]]
    fq = []
    for t in LATE:
        o = wops(t, True)
        fq += [(1, [o[0], o[1 + 2 * k], o[2 + 2 * k]]) for k in range(4)]
    fq += [(2, [y]) for y in xres]
    OS0 = P.get("os_half", 0)
    FMIN = P.get("fill_from", 10)
    alloc = {}; first = {}; carry = 0.0
    for hh in range(2 * NS):
        sg = hh // 2
        w = carry + (4 * len(wsched.get(sg, [])) if hh % 2 else 0)
        L = []
        if OS0 <= hh < OS0 + 4: L.append(ostores[hh - OS0]); w += SW
        k = hh - q01 - 1
        if 0 <= k < len(SPA): w += SW * SPA[k]
        q = QD if sg < ND else QO
        urgent = lambda: xq and firstuse[xq[0][0]] <= sg + P.get("xmin", 1)
        while w + 0.5 <= q or urgent():
            if fq and hh >= FMIN and hh % 2 == 0 and not any(o in L for _, f in fq[:0] for o in f) and P.get("fill_mix", 1) and not urgent() and sum(1 for o in L if isinstance(o, tuple) and not o[0].startswith("X")) < 2:
                c, o = fq.pop(0); L += o; w += c
            elif xq and (xq[0][0] < NXB or lastuse[xq[0][0] - NXB] < sg):
                x, o = xq.pop(0); first.setdefault(x, sg); L += o; w += 1
                assert firstuse[x] > sg, (x, sg)
            elif fq and hh >= FMIN:
                c, o = fq.pop(0); L += o; w += c
            else: break
        carry = w - q if abs(w - q) < 1 or w > q else 0.0
        alloc[hh] = L
        sys.stderr.write("%d:%d " % (hh, sum(isinstance(o, tuple) for o in L)))
    sys.stderr.write(" first %s\n" % first)
    assert not xq and not fq
    assert all(not (isinstance(o, tuple) and (o[0] == "R" or o[0][0] == "W")) for hh in range(2 * 13, 2 * NS) for o in alloc[hh])
    ck2, cko = first[7], first[ND]
    for sg in range(NS):
        h1, h2 = list(alloc[2 * sg]), list(alloc[2 * sg + 1])
        pre = []
        if sg == 1: h2 = h2 + eload
        if sg == (OS0 + 3) // 2 + 2: pre.append(oflag)
        if sg == ck2 - 2: h2 = h2 + [("p", "buffer_load_dword v12, v5, s[84:87], s58 offen %s" % SC)]
        if sg == ck2: pre += [lambda: check_flags(12, 5, "s58", "p", "L_f1b")]
        if sg == 4: pre += [lambda: vwait("e"), epoch]
        if sg == cko - 2: h2 = h2 + [("p", "buffer_load_dword v3, v13, s[84:87], s59 offen %s" % SC)]
        if sg == cko: pre.append(lambda: check_flags(3, 13, "s59", "p", "L_f2"))
        for hh, lst in ((2 * sg, h1), (2 * sg + 1, h2)):
            k = hh - q01 - 1
            t_ = take(SPA[k]) if 0 <= k < len(SPA) else []
            if P.get("send_first", 1): lst[:0] = t_
            else: lst += t_
        for hf, (f_, p_, c_) in enumerate((EXA, EXB)):
            if sg == p_: h2 = h2 + [pollx(hf)]
            if sg - 0.5 == p_: h1 = h1 + [pollx(hf)]
            if sg == f_: pre.append(lambda hf=hf: sflag(hf))
            if sg + 0.5 == f_: h2 = [lambda hf=hf: sflag(hf)] + h2
            if sg == c_:
                pre.append(lambda hf=hf: checkx(hf)); px = partx(hf); h1 = h1 + px[:-3]; h2 = px[-3:] + h2
        if sg == ND: stamp()
        wv = None
        if sg == P.get("xpart_stage", 20): wv = (xpart, 0)
        stage(sg, h1, h2, pre=(lambda pre=pre: [f() for f in pre]), valu=wv)
    sys.stderr.write("\n")
    assert not sends
    stamp()
    for hf, (f_, p_, c_) in enumerate((EXA, EXB)):
        if c_ == NS and not (hf == 1 and NBB):
            checkx(hf)
            for o in partx(hf): E(o)
    def nb_try():
        vwait("p1")
        a("v_cmp_ne_u32 vcc, s96, v12")
        a("s_nop 0")
        a("s_cmp_eq_u64 vcc, 0")
        a("s_cselect_b32 s46, 0, %d" % OOB)
        if P.get("force_late"): a("s_mov_b32 s46, %d" % OOB)
        for qd in range(3): a("s_add_u32 s%d, s%d, s46" % (43 + qd, 40 + qd))
        for t, o in partx(1):
            for qd in range(3): o = o.replace("s%d offen" % (40 + qd), "s%d offen" % (43 + qd))
            V(t, o)
    def nb_fix():
        a("s_cmp_eq_u32 s46, 0")
        a("s_cbranch_scc1 L_nbok")
        sv = list(vm.q)
        E(pollx(1)); checkx(1)
        for o in partx(1): E(o)
        a("s_waitcnt vmcnt(0)")
        vm.q = sv
        a.label("L_nbok")
    if NBB == 1: nb_try()
    def dots(k):
        vwait("P%d" % k)
        for qd in range(3):
            for r in range(8):
                a("v_dot2_f32_bf16 v%d, v%d, v%d, v%d" % (KEEP + 8 * k + r, PKR(qd, k) + r // 2, 8 + (r & 1), KEEP + 8 * k + r))
    MIM = P.get("mimic", "s")
    if "s" in MIM:
        a("s_nop 7")
        for k in range(8):
            for x in round4(accO(0, 0) + 4 * k, 48 + 2 * (k % 2)): a(x)
    if NBB == 2: nb_try()
    for m in range(2):
        if m == 1 and NBB: nb_fix()
        dots(2 * m); dots(2 * m + 1)
        o = 16 * m
        H8 = range(0, 16, 2)
        if "y" in MIM:
            for k in range(4):
                for x in round4(KEEP + o + 4 * k, 10 + 2 * (k % 2)): a(x)
        for h in H8: a("v_pk_mul_f32 %s, %s, s[50:51]" % (vr(TE + o + h, 2), vr(KEEP + o + h, 2)))
        for r in range(16): a("v_exp_f32 v%d, v%d" % (TE + o + r, TE + o + r))
        for h in H8: a("v_pk_mul_f32 %s, %s, %s" % (vr(KEEP + o + h, 2), vr(KEEP + o + h, 2), vr(accO(0, 0) + o + h, 2)))
        for h in H8: a("v_pk_add_f32 %s, %s, s[52:53]" % (vr(TE + o + h, 2), vr(TE + o + h, 2)))
        for bp in range(2):
            D = 32 + 4 * (2 * m + bp)
            offs = [o + (bp * 2 + be) * 4 for be in range(2)]
            for f in offs:
                for r in range(4): a("v_rcp_f32 v%d, v%d" % (TE + f + r, TE + f + r))
            for f in offs:
                for h in (0, 2): a("v_pk_fma_f32 %s, %s, %s, %s" % (vr(KEEP + f + h, 2), vr(KEEP + f + h, 2), vr(TE + f + h, 2), vr(XUF(f + h), 2)))
            for be, f in enumerate(offs):
                a("v_cvt_pk_bf16_f32 v%d, v%d, v%d" % (D + 2 * be, KEEP + f, KEEP + f + 1))
                a("v_cvt_pk_bf16_f32 v%d, v%d, v%d" % (D + 2 * be + 1, KEEP + f + 2, KEEP + f + 3))
            a("s_nop 0")
            a("v_permlane16_swap_b32 v%d, v%d" % (D, D + 2))
            a("v_permlane16_swap_b32 v%d, v%d" % (D + 1, D + 3))
            a("s_nop 0")
            V("out", "buffer_store_dwordx4 %s, v2, s[24:27], s%d offen offset:%d %s" % (vr(D, 4), 72 + m, 64 * bp, P.get("outfl", ["sc1", ""])[m]))
    if probe is not None:
        stamp(); a("s_waitcnt vmcnt(0)"); stamp()
        a.label("L_probe")
        a("s_memrealtime s[4:5]"); a("s_waitcnt lgkmcnt(0)"); a("s_sub_u32 s4, s4, s98"); a("s_cmp_lt_u32 s4, 10000"); a("s_cbranch_scc1 L_probe")
    if prof:
        stamp(); a("s_waitcnt vmcnt(0)"); stamp()
        srd(a, 8, PWS, STAMP_OFF, 65536)
        a("s_lshl_b32 s3, s2, 8")
        a("v_lshl_add_u32 v8, v0, 2, s3")
        a("v_cmp_gt_u32 vcc, 64, v0")
        a("s_and_b64 exec, exec, vcc")
        a("s_cbranch_execz L_end")
        a("buffer_store_dword v31, v8, s[8:11], 0 offen")
    a.label("L_end")
    a("s_endpgm")
    desc(a, name, 256 + NAGPR, 100, 256)
    hdr = open("recurrent_scan__sliding_local_dilated__swiglu_ffn__prompt.s.ref").read().split("; Override launch")[0]
    hdr += DOC
    if P.get("aslist", 1):
        hdr += "; @launch kernel=%s grid=(256,1,1) block=(256,1,1) lds=%d\n" % (name, LDS_BYTES)
    else:
        hdr += "; @launch grid=(256,1,1) block=(256,1,1) lds=%d\n" % LDS_BYTES
    txt = a.text()
    if P.get("mfma_align"):
        txt = txt.replace("    v_mfma", "    .p2align 3\n    v_mfma")
    return hdr + txt

if __name__ == "__main__":
    P = json.loads(sys.argv[2]) if len(sys.argv) > 2 else {}
    open(sys.argv[1], "w").write(gen(P))
```

```python
import sys, json
sys.path.insert(0, "dev")
from gen_common import *

MAIN = "recurrent_scan__sliding_local_dilated__swiglu_ffn__prompt_kernel"
SLOT = 40960
GATE, UP, QKV = 0, 14336, 28672
EX = 155648
LDS_BYTES = 163840
LNX = EX
R2 = SLOT
F0, F1H, F1O, F2, EPOCH = 0, 32768, 40960, 262144, 65536
NONCE_ADD = 0x6A09E667
OOB = 0x40000000
SC = "sc1"
MF = "v_mfma_f32_16x16x32_bf16"

DOC = """; Single persistent kernel, one 4-wave workgroup per CU (generated by my own script):
;   phase 1  256x320 tile of xn @ [gate|up|q|k|v] (weights via LDS-DMA + transposing LDS reads), SwiGLU woven into
"""

class Cnt:
    def __init__(self, init=(), cap=15):
        self.q = list(init); self.cap = cap
    def issue(self, tag): self.q.append(tag)
    def need(self, *tags):
        idx = [i for i, t in enumerate(self.q) if t in tags]
        if not idx: return None
        last = max(idx)
        n = len(self.q) - 1 - last
        self.q = self.q[last + 1:]
        return min(n, self.cap)
    def clear(self): self.q = []

def cost(o):
    s = o[1] if isinstance(o, tuple) else o
    if callable(s): return 4
    if s.startswith(("v_exp", "v_rcp", "buffer_", "v_permlane")): return 8
    return 4

def gen(P):
    a = Asm()
    name = MAIN
    prof, probe = P.get("prof"), P.get("probe")
    nst = [0]
    def stamp():
        if probe is not None:
            if nst[0] == probe:
                a("s_memrealtime s[98:99]"); a("s_waitcnt lgkmcnt(0)")
            nst[0] += 1
            return
        if not prof: return
        a("%s s[98:99]" % ("s_memtime" if prof == 2 else "s_memrealtime"))
        a("s_waitcnt lgkmcnt(0)")
        a("v_writelane_b32 v31, s98, %d" % nst[0])
        nst[0] += 1
    XSC = P.get("xsc", "sc1")
    ROT2 = P.get("g2_rot", 0)
    vm = Cnt(cap=63)
    def V(tag, s):
        vm.issue(tag)
        if s.endswith("lds") and a.lines[-1].strip().startswith("s_add_u32 m0"): a("s_nop 0")
        a(s)
    def E(o):
        if isinstance(o, tuple): V(*o)
        elif callable(o): o()
        else: a(o)
    def vwait(*tags, lg0=False):
        n = vm.need(*tags)
        parts = ([] if n is None else ["vmcnt(%d)" % n]) + (["lgkmcnt(0)"] if lg0 else [])
        if parts: a("s_waitcnt " + " ".join(parts))
    def check_flags(vreg, voff, soff, tag, label):
        vwait(tag)
        a("v_cmp_ne_u32 vcc, s96, v%d" % vreg)
        a("s_cbranch_vccz %s_ok" % label)
        a("s_mov_b32 s97, 0")
        a.label(label + "_spin")
        if P.get("spin_sleep", 1): a("s_sleep %d" % P.get("spin_sleep", 1))
        a("buffer_load_dword v%d, v%d, s[84:87], %s offen %s" % (vreg, voff, soff, P.get("pollfl", SC)))
        a("s_add_u32 s97, s97, 1")
        a("s_waitcnt vmcnt(0)")
        a("s_cmp_gt_u32 s97, 0x80000")
        a("s_cbranch_scc1 %s_ok" % label)
        a("v_cmp_ne_u32 vcc, s96, v%d" % vreg)
        a("s_cbranch_vccnz %s_spin" % label)
        a.label(label + "_ok")

    class Weave:
        def __init__(self, n, q, skip=0): self.n, self.c, self.q = n, -skip, q
        def __call__(self, t):
            a(t)
            if t.startswith("v_") and not t.startswith("v_mfma"):
                self.c += 1
                if self.c > 0 and self.c % self.n == 0: self.one()
        def one(self):
            while self.q:
                o = self.q.pop(0); E(o)
                if isinstance(o, tuple): break
        def flush(self):
            while self.q: self.one()

    accGU = lambda p, gu, m: 32 + ((p * 2 + gu) * 4 + m) * 4
    accQ = lambda s, m: (s * 4 + m) * 4
    HACC = 96
    XB = lambda buf, m, kh: (100 + buf * 40 + (m * 2 + kh) * 4) if buf < 2 else ((224 + (m * 2 + kh) * 4) if m < 4 else 172 + kh * 4)
    WR = lambda slot, kh: 180 + slot * 8 + kh * 4
    HW = lambda kh: 212 + kh * 4
    PARK = 220
    NAGPR = 256
    PX, PQKV, PWO, PG, PU, PD, POUT, PDBG, PWS = 64, 66, 68, 72, 74, 76, 78, 80, 82

    a.raw('.amdgcn_target "amdgcn-amd-amdhsa--gfx950"')
    kernel_header(a, name)
    a("s_cmp_ge_u32 s2, 256")
    a("s_cbranch_scc1 L_end")
    a("s_load_dwordx16 s[64:79], s[0:1], 0")
    a("s_load_dwordx4 s[80:83], s[0:1], 64")
    a("s_getpc_b64 s[4:5]")
    a.label("L_pc")
    a("v_and_b32 v17, 63, v0")
    a("s_mov_b32 s6, L_end-L_pc")
    a("s_mov_b32 s7, 0x20000")
    a("v_lshlrev_b32 v1, 7, v17")
    a("s_bfe_u32 s3, s2, 0x30003")
    a("s_lshl_b32 s3, s3, 13")
    V("c", "buffer_load_dword v29, v1, s[4:7], s3 offen")
    if prof: a("v_mov_b32 v31, 0")
    stamp()
    a("v_lshrrev_b32 v16, 6, v0")
    a("v_lshrrev_b32 v18, 3, v17")
    a("v_and_b32 v19, 7, v17")
    a("v_readfirstlane_b32 s32, v16")
    a("v_lshlrev_b32 v20, 11, v18")
    a("v_lshl_add_u32 v20, v16, 9, v20")
    a("v_lshl_add_u32 v20, v19, 4, v20")
    a("s_and_b32 s34, s2, 7")
    a("s_bfe_u32 s35, s2, 0x20003")
    a("s_lshl2_add_u32 s34, s34, s35")
    a("s_lshr_b32 s33, s2, 5")
    a("s_lshl_b32 s36, s33, 5")
    a("s_add_u32 s36, s36, s34")
    a("s_lshl_b32 s37, s36, 14")
    a("v_mov_b32 v6, 0")
    a("s_mov_b32 s50, %d" % (2048 * 2048))
    a("s_mov_b32 s51, 0x20000")
    a("s_waitcnt lgkmcnt(0)")
    a("s_mov_b64 s[48:49], s[%d:%d]" % (PX, PX + 1))
    LX = 32
    for u in range(4):
        V("x", "buffer_load_dwordx4 %s, v20, s[48:51], s37 offen offset:%d %s" % (vr(LX + 4 * u, 4), 128 * u, P.get("xfl", "")))
    srd(a, 84, PWS, FLAG_OFF, FLAG_BYTES)
    a("s_mov_b32 s3, %d" % EPOCH)
    V("ep", "buffer_load_dword v7, v6, s[84:87], s3 offen")
    if P.get("ftouch", 0):
        a("v_lshlrev_b32 v21, 17, v17")
        a("s_lshl2_add_u32 s3, s2, s32")
        a("s_lshl_b32 s3, s3, 7")
        V("t", "buffer_load_dword v29, v21, s[84:87], s3 offen %s" % P.get("ftfl", ""))
    stamp()
    if P.get("xrot", 1): a("s_and_b32 s80, s2, 7"); a("s_lshl_b32 s80, s80, 1")
    else: a("s_mov_b32 s80, 0")
    a("s_mov_b32 s81, s80")
    a("s_and_b32 s57, s34, 1")
    a("s_lshr_b32 s58, s34, 1")
    a("s_mul_i32 s58, s58, 448")
    a("s_cmp_eq_u32 s32, 1")
    a("s_cselect_b64 s[88:89], s[%d:%d], s[%d:%d]" % (PU, PU + 1, PG, PG + 1))
    a("s_cmp_eq_u32 s32, 3")
    a("s_cbranch_scc1 L_t3")
    XT = P.get("xtouch", 1)
    if not XT:
        a("s_mul_i32 s3, s57, 208")
        a("s_add_u32 s3, s3, s58")
        a("s_movk_i32 s92, 7168")
        a("s_movk_i32 s93, 118")
        a("s_cmp_eq_u32 s32, 2")
        a("s_cbranch_scc0 L_t01")
        a("s_mov_b64 s[88:89], s[%d:%d]" % (PQKV, PQKV + 1))
        a("s_lshl_b32 s3, s34, 6")
        a("s_movk_i32 s92, 6144")
        a("s_movk_i32 s93, 2048")
        a.label("L_t01")
        a("s_lshl_b32 s90, s92, 10")
        a("v_bfe_u32 v21, v17, 2, 3")
        a("v_and_b32 v22, 32, v17")
        a("v_lshl_add_u32 v21, v22, 1, v21")
        a("v_and_b32 v22, 3, v17")
        a("v_mul_u32_u24 v30, s92, v21")
        a("v_mul_u32_u24 v23, s93, v22")
        a("v_and_b32 v23, -4, v23")
        a("v_add3_u32 v30, v30, v23, s3")
        a("v_cmp_eq_u32 vcc, 3, v22")
        a("v_mov_b32 v23, %d" % OOB)
        a("s_lshl3_add_u32 s94, s80, s33")
        a("s_lshl_b32 s94, s94, 3")
        a("v_cndmask_b32 v30, v30, v23, vcc")
    else:
        a("s_and_b32 s93, s2, 7")
        a("s_mul_i32 s3, s93, 896")
        a("s_movk_i32 s92, 7168")
        a("v_lshl_add_u32 v23, v19, 7, s3")
        a("s_movk_i32 s95, 6")
        a("s_cmp_eq_u32 s32, 2")
        a("s_cbranch_scc0 L_t01")
        a("s_mov_b64 s[88:89], s[%d:%d]" % (PQKV, PQKV + 1))
        a("s_lshl_b32 s3, s93, 8")
        a("s_movk_i32 s92, 6144")
        a("v_and_b32 v22, 1, v17")
        a("v_lshl_add_u32 v23, v22, 7, s3")
        a("v_lshrrev_b32 v22, 1, v19")
        a("v_lshl_add_u32 v23, v22, 11, v23")
        a("s_movk_i32 s95, 5")
        a.label("L_t01")
        a("s_lshl_b32 s90, s92, 10")
        a("v_and_b32 v21, 1, v18")
        a("v_and_b32 v22, 32, v17")
        a("v_lshl_add_u32 v21, v22, 1, v21")
        a("v_mad_u32_u24 v30, v21, s92, v23")
        a("v_and_b32 v22, 23, v17")
        a("v_cmp_lt_u32 vcc, s95, v22")
        a("v_mov_b32 v23, %d" % OOB)
        a("s_lshr_b32 s94, s2, 3")
        a("s_lshl_b32 s3, s80, 5")
        a("s_add_u32 s94, s94, s3")
        a("s_lshl_b32 s94, s94, 1")
        a("v_cndmask_b32 v30, v30, v23, vcc")
    a("v_mov_b32 v25, %s" % ("v30" if not P.get("now1") else str(OOB)))
    if P.get("noearly"): a("v_mov_b32 v30, %d" % OOB)
    a("s_mul_i32 s94, s94, s92")
    a("s_lshl_b32 s95, s92, 7")
    a("s_branch L_td")
    a.label("L_t3")
    a("s_mov_b64 s[88:89], s[%d:%d]" % (PD, PD + 1))
    a("v_lshlrev_b32 v30, 7, v17")
    a("s_bfe_u32 s3, s2, 0x20001")
    a("s_add_u32 s3, s3, 1")
    a("s_mul_i32 s90, s3, %d" % (896 * 2048))
    a("s_lshr_b32 s94, s2, 3")
    a("s_lshl_b32 s94, s94, 13")
    a("s_add_u32 s94, s94, s90")
    a("s_sub_u32 s94, s94, %d" % (128 * 2048))
    a("s_mov_b32 s95, 0")
    if P.get("w2half", 1):
        a("s_and_b32 s3, s2, 1"); a("s_lshl_b32 s3, s3, 4"); a("v_and_b32 v21, 16, v17"); a("v_xor_b32 v21, s3, v21"); a("v_lshl_add_u32 v30, v21, 26, v30")
    a("v_mov_b32 v25, v30")
    a("v_mov_b32 v30, %d" % OOB)
    if P.get("now2"): a("v_mov_b32 v25, %d" % OOB)
    a.label("L_td")
    a("s_mov_b32 s91, 0x20000")
    TH = P.get("t_half", 0)
    if TH:
        a("s_mov_b32 exec_hi, 0")
        V("t", "buffer_load_dword v29, v30, s[88:91], s94 offen")
        a("s_mov_b32 exec_hi, -1")
    for k in range(P.get("t_early", 1) if not TH else 0):
        V("t", "buffer_load_dword v29, v30, s[88:91], s94 offen %s" % P.get("t0fl", ""))
        for o in ["s_add_u32 s94, s94, s95", "s_cmp_ge_u32 s94, s90", "s_cselect_b32 s3, s90, 0", "s_sub_u32 s94, s94, s3"]: a(o)
    if P.get("t_w2"):
        a("s_mov_b32 exec_hi, 0")
        V("t", "buffer_load_dword v29, v30, s[88:91], s94 offen")
        a("s_mov_b32 exec_hi, -1")
    a("v_lshlrev_b32 v21, 17, v16")
    a("v_lshrrev_b32 v22, 2, v19")
    a("v_lshl_add_u32 v21, v22, 10, v21")
    a("v_and_b32 v22, 3, v19")
    a("v_lshl_add_u32 v21, v22, 8, v21")
    a("v_lshl_add_u32 v28, v18, 4, v21")
    a("s_lshl_b32 s60, s33, 19")
    a("s_lshr_b32 s51, s34, 1")
    a("s_lshl_b32 s51, s51, 11")
    a("s_add_u32 s50, s60, s51")
    a("s_lshl_b32 s51, s57, 7")
    a("s_add_u32 s50, s50, s51")
    a("s_add_u32 s51, s50, 32768")
    a("s_add_u32 s52, s50, 65536")
    a("s_add_u32 s53, s50, 98304")
    a("v_lshlrev_b32 v26, 5, v18")
    a("v_add_u32 v26, %d, v26" % LNX)
    a("v_lshl_add_u32 v27, v16, 3, v26")
    a("s_mov_b64 s[24:25], s[%d:%d]" % (PWS, PWS + 1))
    a("s_add_u32 s26, s60, 0x80000")
    a("s_mov_b32 s27, 0x20000")
    a("s_mov_b32 s54, 0xffff0000")
    F0S = P.get("f0shift", 7)
    a("s_lshl_b32 s92, s36, %d" % F0S)
    WF = P.get("wgflag", 1)
    if WF: a("s_lshl_b32 s3, s32, 28"); a("s_add_u32 s92, s92, s3")
    else: a("s_lshl2_add_u32 s92, s32, s92")
    a("s_mov_b32 s3, 0x3f803f80")
    a("v_mov_b32 v116, s3")
    a("s_max_u32 s61, s33, 1")
    a("s_sub_u32 s61, s61, 1")
    a("s_lshl_b32 s59, s61, %d" % (5 + F0S))
    a("s_add_u32 s59, s59, %d" % (30 << F0S))
    a("s_lshl_b32 s3, s33, %d" % (5 + F0S))
    a("s_lshl_b32 s48, s32, %d" % (3 + F0S))
    a("s_add_u32 s3, s3, s48")
    a("v_and_b32 v21, %d, v17" % (0 if WF else 3))
    a("v_lshlrev_b32 v21, 2, v21")
    a("v_lshrrev_b32 v20, 2, v17")
    a("v_lshl_add_u32 v20, v20, %d, v21" % F0S)
    a("v_and_b32 v21, %d, v20" % ((1 << F0S) + 12))
    a("v_add_u32 v20, s3, v20")
    a("v_add_u32 v21, s59, v21")
    a("v_cmp_gt_u32 vcc, 32, v17")
    a("v_mov_b32 v22, %d" % OOB)
    a("v_lshlrev_b32 v15, 4, v17")
    a("v_cndmask_b32 v254, v21, v20, vcc")
    a("v_cndmask_b32 v121, v22, v25, vcc")
    a("v_cndmask_b32 v122, v25, v22, vcc")

    def g1_setup_w():
        def krow(dst, rho, t1):
            a("v_and_b32 v%d, 35, v%d" % (dst, rho))
            a("v_bfe_u32 v%d, v%d, 2, 2" % (t1, rho))
            a("v_lshl_or_b32 v%d, v%d, 3, v%d" % (dst, t1, dst))
            a("v_bfe_u32 v%d, v%d, 4, 1" % (t1, rho))
            a("v_lshl_or_b32 v%d, v%d, 2, v%d" % (dst, t1, dst))
        a("s_mul_i32 s56, s32, 192")
        a("s_lshl_b32 s59, s34, 6")
        a("s_movk_i32 s40, 4682")
        a("s_movk_i32 s41, 5462")
        a("s_movk_i32 s62, 7168")
        a("s_movk_i32 s63, 6144")
        a("s_mul_i32 s48, s57, 14")
        def gu_off(dst, imm):
            a("v_mul_u32_u24 v21, s40, v20")
            a("v_lshrrev_b32 v21, 16, v21")
            a("v_mul_u32_u24 v22, 14, v21")
            a("v_sub_u32 v22, v20, v22")
            a("v_add_u32 v22, s48, v22")
            a("v_lshrrev_b32 v23, 1, v22")
            a("v_xor_b32 v23, v23, v22")
            a("v_and_b32 v23, 1, v23")
            a("v_mul_u32_u24 v23, 3, v23")
            a("v_xor_b32 v22, v22, v23")
            krow(24, 21, 23)
            a("s_sub_u32 s3, s58, %d" % imm)
            a("v_lshl_add_u32 v22, v22, 4, s3")
            a("v_mad_u32_u24 v%d, v24, s62, v22" % dst)
        def qkv_off(dst, imm):
            a("v_mul_u32_u24 v21, s41, v20")
            a("v_lshrrev_b32 v21, 16, v21")
            a("v_mul_u32_u24 v22, 12, v21")
            a("v_sub_u32 v22, v20, v22")
            a("v_lshrrev_b32 v23, 1, v21")
            a("v_and_b32 v23, 2, v23")
            a("v_xor_b32 v22, v22, v23")
            a("v_lshrrev_b32 v25, 2, v22")
            a("v_and_b32 v22, 3, v22")
            a("s_sub_u32 s3, s59, %d" % imm)
            a("v_lshl_add_u32 v22, v22, 4, s3")
            a("v_lshl_add_u32 v22, v25, 11, v22")
            krow(24, 21, 23)
            a("v_mad_u32_u24 v%d, v24, s63, v22" % dst)
        for q in range(3):
            a("s_add_u32 s3, s56, %d" % (64 * q))
            a("v_add_u32 v20, s3, v17")
            gu_off(8 + q, 1024 * q)
            qkv_off(11 + q, 1024 * q)
        a("s_and_b32 s35, s32, 1")
        a("s_lshl_b32 s3, s35, 6")
        a("s_add_u32 s3, s3, 768")
        a("v_add_u32 v20, s3, v17")
        gu_off(14, 0)
        a("s_mul_i32 s43, s32, 3072")
        a("s_add_u32 s44, s43, %d" % UP)
        a("s_add_u32 s45, s43, %d" % QKV)
        a("s_lshr_b32 s46, s32, 1")
        a("s_mul_i32 s46, s46, %d" % UP)
        a("s_lshl_b32 s3, s35, 10")
        a("s_add_u32 s46, s46, s3")
        a("s_add_u32 s46, s46, 12288")
        srd(a, 8, PG, 0, 1024 * 7168)
        srd(a, 12, PU, 0, 1024 * 7168)
        srd(a, 16, PQKV, 0, 1024 * 6144)
        a("s_cmp_lt_u32 s32, 2")
        a("s_cselect_b64 s[20:21], s[%d:%d], s[%d:%d]" % (PG, PG + 1, PU, PU + 1))
        a("s_mov_b32 s22, %d" % (1024 * 7168))
        a("s_mov_b32 s23, 0x20000")
    def g1_setup_r():
        a("v_lshrrev_b32 v18, 2, v17")
        a("v_and_b32 v19, 3, v17")
        a("v_lshlrev_b32 v19, 3, v19")
        a("s_movk_i32 s3, 224")
        a("v_and_b32 v20, 16, v15")
        a("v_and_b32 v21, 2, v17")
        a("v_lshl_add_u32 v20, v21, 2, v20")
        a("v_mad_u32_u24 v1, v18, s3, v20")
        a("s_movk_i32 s3, 192")
        a("v_mad_u32_u24 v2, v18, s3, v19")
        a("v_add_u32 v2, %d, v2" % QKV)
        a("v_and_b32 v19, 16, v17")
        a("v_lshlrev_b32 v19, 1, v19")
        a("v_xor_b32 v20, 32, v19")
        a("v_add_u32 v3, v2, v20")
        a("v_add_u32 v2, v2, v19")
        a("s_cmp_eq_u32 s35, 1")
        a("s_cselect_b64 vcc, -1, 0")
        a("v_cndmask_b32 v4, v2, v3, vcc")
        a("s_lshr_b32 s3, s32, 1")
        a("s_lshl_b32 s3, s3, 6")
        a("s_add_u32 s3, s3, 64")
        a("v_add_u32 v4, s3, v4")
        a("s_mov_b32 s62, %d" % SLOT)
        a("s_mov_b32 s63, %d" % ((-2 * SLOT) & 0xffffffff))
        srd(a, 28, PWS, ACT_OFF, ACT_BYTES)
    def tau_ops():
        return ["s_add_u32 s81, s36, s80", "s_and_b32 s81, s81, 15", "s_mul_i32 s38, s81, 458752", "s_mul_i32 s39, s81, 393216"]
    def xoff_ops():
        return ["s_lshl_b32 s40, s81, 15", "s_add_u32 s42, s40, s61", "s_add_u32 s40, s40, s60", "s_add_u32 s41, s40, 4096"]
    def wdma_ops(tag):
        o = []
        for (mreg, sd, vb, so) in ((43, 8, 8, 38), (44, 12, 8, 38), (45, 16, 11, 39)):
            o.append("s_add_u32 m0, s37, s%d" % mreg)
            for q in range(3):
                o.append((tag, "buffer_load_dwordx4 v%d, s[%d:%d], s%d offen offset:%d lds" % (vb + q, sd, sd + 3, so, 1024 * q)))
        o.append("s_add_u32 m0, s37, s46")
        o.append((tag, "buffer_load_dwordx4 v14, s[20:23], s38 offen lds"))
        return o
    def xld_ops(buf, tag):
        o = []
        for f in range(8):
            o.append((tag, "buffer_load_dwordx4 %s, v15, s[24:27], s%d offen offset:%d %s" % (ar(XB(buf, f // 2, f % 2), 4), 40 + f // 4, 1024 * (f % 4), XSC)))
        for kh in range(2):
            o.append((tag, "buffer_load_dwordx4 %s, v15, s[24:27], s42 offen offset:%d %s" % (ar(XB(buf, 4, kh), 4), 1024 * kh, "" if P.get("halo_plain", 0) else XSC)))
        return o

    g1_setup_w()
    a("s_mov_b32 s36, 0"); a("s_mov_b32 s37, 0")
    W0POS = P.get("w0pos", 1)
    al = Weave(P.get("w0_every", 14), tau_ops() + wdma_ops("W0") if W0POS == 2 else [], P.get("w0_skip", 0))

    if P.get("ab_noln") == 2:
        a("s_branch L_skipln")
    vwait("x")
    stamp()
    X = 48
    for r in range(16):
        c1 = "0" if r < 2 else "v%d" % (112 + 2 * (r % 2))
        c2 = "0" if r < 2 else "v%d" % (113 + 2 * (r % 2))
        al("v_dot2_f32_bf16 v%d, v%d, v116, %s" % (112 + 2 * (r % 2), LX + r, c1))
        al("v_dot2_f32_bf16 v%d, v%d, v%d, %s" % (113 + 2 * (r % 2), LX + r, LX + r, c2))
    al("s_nop 2")
    al("v_pk_add_f32 v[112:113], v[112:113], v[114:115]")
    for m in ("quad_perm:[1,0,3,2]", "quad_perm:[2,3,0,1]", "row_half_mirror"):
        al("s_nop 0" if m != "quad_perm:[1,0,3,2]" else "s_nop 1")
        for v in (112, 113):
            al("v_add_f32_dpp v%d, v%d, v%d %s row_mask:0xf bank_mask:0xf" % (v, v, v, m))
    al("ds_write_b64 v27, v[112:113]")
    def unpack(r):
        al("v_lshlrev_b32 v%d, 16, v%d" % (X + 2 * r, LX + r))
        al("v_and_b32 v%d, s54, v%d" % (X + 2 * r + 1, LX + r))
    for r in range(8): unpack(r)
    al("s_waitcnt lgkmcnt(0)")
    al("s_barrier")
    al("ds_read_b128 v[80:83], v26")
    al("ds_read_b128 v[84:87], v26 offset:16")
    for r in range(8, 16): unpack(r)
    al("s_waitcnt lgkmcnt(0)")
    al("v_pk_add_f32 v[80:81], v[80:81], v[82:83]")
    al("v_pk_add_f32 v[84:85], v[84:85], v[86:87]")
    al("v_pk_add_f32 v[80:81], v[80:81], v[84:85]")
    al("v_mul_f32 v88, 0x3a800000, v80")
    al("v_mul_f32 v81, 0x3a800000, v81")
    al("v_fma_f32 v81, -v88, v88, v81")
    al("v_max_f32 v81, 0, v81")
    al("v_cvt_pk_bf16_f32 v88, v88, v81")
    al("v_and_b32 v81, s54, v88")
    al("v_lshlrev_b32 v88, 16, v88")
    al("v_add_f32 v81, 0x3727c5ac, v81")
    al("v_cvt_pk_bf16_f32 v81, v81, v81")
    al("v_and_b32 v81, s54, v81")
    al("v_sqrt_f32 v81, v81")
    al("v_sub_f32 v88, 0, v88")
    al("v_cvt_pk_bf16_f32 v81, v81, v81")
    al("v_and_b32 v81, s54, v81")
    al("v_rcp_f32 v90, v81")
    al("v_mov_b32 v89, v88")
    al("v_mov_b32 v91, v90")
    for u in range(4):
        R = range(4 * u, 4 * u + 4)
        for r in R: al("v_pk_add_f32 %s, %s, v[88:89]" % (vr(X + 2 * r, 2), vr(X + 2 * r, 2)))
        for r in R: al("v_cvt_pk_bf16_f32 v%d, v%d, v%d" % (LX + r, X + 2 * r, X + 2 * r + 1))
        for r in R: unpack(r)
        for r in R: al("v_pk_mul_f32 %s, %s, v[90:91]" % (vr(X + 2 * r, 2), vr(X + 2 * r, 2)))
        for r in R: al("v_cvt_pk_bf16_f32 v%d, v%d, v%d" % (LX + r, X + 2 * r, X + 2 * r + 1))
        V("xs", "buffer_store_dwordx4 %s, v28, s[24:27], s%d offen %s" % (vr(LX + 4 * u, 4), 50 + u, SC))
    al.flush()
    if P.get("ab_noln") == 2: a.label("L_skipln")
    stamp()

    if TH == 3:
        for o in ["s_add_u32 s94, s94, s95", "s_cmp_ge_u32 s94, s90", "s_cselect_b32 s3, s90, 0", "s_sub_u32 s94, s94, s3"]: a(o)
    if TH == 2: a("v_mov_b32 v253, v30")
    if TH == 1:
        for k in range(2):
            V("t", "buffer_load_dword v29, v30, s[88:91], s94 offen")
            for o in ["s_add_u32 s94, s94, s95", "s_cmp_ge_u32 s94, s90", "s_cselect_b32 s3, s90, 0", "s_sub_u32 s94, s94, s3"]: a(o)
    if P.get("t_early", 1) < 2 and P.get("t1pos", 4) == 0:
        V("t", "buffer_load_dword v29, v30, s[88:91], s94 offen %s" % P.get("t1fl", ""))
        for o in ["s_add_u32 s94, s94, s95", "s_cmp_ge_u32 s94, s90", "s_cselect_b32 s3, s90, 0", "s_sub_u32 s94, s94, s3"]: a(o)
    a("s_lshl_b32 s3, s32, 13")
    a("s_add_u32 s60, s60, s3")
    a("s_lshl_b32 s61, s61, 19")
    a("s_add_u32 s61, s61, %d" % (3 * 8192 + 3 * 2048))
    for o in xoff_ops(): E(o)
    a("v_mov_b32 v27, v121"); a("v_mov_b32 v28, v122")
    g1_setup_r()
    av = Weave(P.get("w0_every", 5), tau_ops() + wdma_ops("W0") if W0POS == 0 else [])
    SP, SMT, SNT = 66, 67, 70
    av("s_bfe_u32 s%d, s2, 0x10001" % SP)
    av("s_and_b32 s%d, s2, 1" % SMT); av("s_bfe_u32 s3, s2, 0x20003"); av("s_lshl2_add_u32 s%d, s%d, s3" % (SMT, SMT))
    av("s_lshr_b32 s%d, s2, 5" % SNT)
    park = {}
    def parkv(key, v):
        park[key] = PARK + len(park)
        assert park[key] < 224
        av("v_accvgpr_write_b32 a%d, v%d" % (park[key], v))
    unp = lambda key, v: "v_accvgpr_read_b32 v%d, a%d" % (v, park[key])
    av("s_lshl_b32 s48, s%d, 2" % SP); av("s_xor_b32 s48, s48, 4"); av("s_lshl_b32 s49, s%d, 8" % SNT); av("s_lshl_b32 s50, s32, 15"); av("s_add_u32 s50, s50, s49")
    av("v_lshrrev_b32 v20, 4, v17"); av("v_bfe_u32 v21, v17, 1, 3"); av("v_xor_b32 v21, s48, v21"); av("v_xor_b32 v21, v21, v20")
    av("v_and_b32 v22, 16, v15"); av("v_lshl_add_u32 v23, v20, 11, v22")
    av("v_lshl_add_u32 v16, v21, 5, v23"); av("v_add_u32 v16, s50, v16")
    av("s_lshl_b32 s51, s32, 16"); av("s_add_u32 s51, s51, s49"); av("s_lshl_b32 s3, s%d, 7" % SP); av("s_add_u32 s51, s51, s3")
    av("v_bfe_u32 v21, v17, 1, 2"); av("v_xor_b32 v21, v21, v20"); av("v_lshrrev_b32 v23, 3, v17")
    av("v_lshl_add_u32 v22, v23, 11, v22"); av("v_lshl_add_u32 v22, v21, 5, v22"); av("v_add_u32 v22, s51, v22")
    av("v_mov_b32 v30, v22")
    av("v_lshrrev_b32 v20, 2, v17"); av("v_and_b32 v21, 3, v17"); av("v_lshlrev_b32 v21, 3, v21"); av("v_add_u32 v21, %d, v21" % R2)
    av("v_lshl_add_u32 v22, v20, 8, v21"); av("v_and_b32 v23, 7, v20"); av("v_lshl_add_u32 v22, v23, 5, v22")
    parkv("vw", 22)
    av("v_lshl_add_u32 v22, v20, 7, v21"); av("v_bfe_u32 v23, v17, 3, 2"); av("v_lshl_add_u32 v22, v23, 5, v22")
    parkv("vwo", 22)
    av("v_and_b32 v20, 15, v17"); av("v_lshlrev_b32 v22, 11, v20"); av("v_bfe_u32 v23, v17, 4, 1"); av("v_lshl_add_u32 v22, v23, 5, v22")
    av("v_lshrrev_b32 v21, 5, v17"); av("v_lshl_add_u32 v22, v21, 4, v22")
    parkv("vout", 22)
    av("v_lshlrev_b32 v22, 10, v23"); av("v_lshl_add_u32 v22, v21, 8, v22"); av("v_lshl_add_u32 v26, v20, 4, v22")
    av("v_bfe_u32 v22, v17, 2, 2"); av("v_lshlrev_b32 v22, 8, v22"); av("v_lshrrev_b32 v23, 4, v17"); av("v_lshl_add_u32 v22, v23, 6, v22")
    av("v_and_b32 v23, 3, v17"); av("v_lshl_add_u32 v22, v23, 1, v22"); av("v_add_u32 v22, 1024, v22")
    a("s_cmp_ge_u32 s32, 2"); a("s_cselect_b64 vcc, -1, 0"); a("s_cselect_b32 s71, 16, 2")
    av("v_cndmask_b32 v22, v15, v22, vcc")
    av("s_lshl_b32 s3, s35, 3"); av("s_add_u32 s3, s3, %d" % EX); av("v_add_u32 v22, s3, v22")
    parkv("vhx", 22)
    av.flush()
    AL = P.get("alt_light", 1)
    if not AL:
        a("v_lshlrev_b32 v24, 8, v17"); a("v_add_u32 v25, 16384, v24")
        a("s_lshr_b32 s7, s2, 3"); a("s_lshl1_add_u32 s7, s7, s32"); a("s_lshl_b32 s7, s7, 15")
        a("s_lshl_b32 s52, s%d, 7" % SP); a("s_add_u32 s7, s7, s52")
        a("s_mov_b64 s[4:5], s[%d:%d]" % (PWO, PWO + 1)); a("s_mov_b32 s6, %d" % (1024 * 2048 if not P.get("nowot") else 0))
        a("s_cmp_lt_u32 s32, 2"); a("s_cbranch_scc1 L_alt")
        a("v_lshlrev_b32 v24, 7, v17"); a("v_add_u32 v25, 8192, v24")
        a("s_lshl_b32 s7, s2, 14")
        a("s_mov_b64 s[4:5], s[%d:%d]" % (PX, PX + 1)); a("s_mov_b32 s6, %d" % (2048 * 2048 if not P.get("noxt") else 0))
    else:
        a("v_lshlrev_b32 v22, 7, v17"); a("v_cmp_gt_u32 vcc, 32, v17"); a("v_mov_b32 v21, %d" % OOB)
        a("s_lshl_b32 s7, s2, 13")
        if AL == 1: a("v_cndmask_b32 v24, v21, v22, vcc"); a("v_cndmask_b32 v25, v22, v21, vcc")
        else: a("v_mov_b32 v24, v22"); a("v_mov_b32 v25, v21")
        a("s_mov_b64 s[4:5], s[%d:%d]" % (PWO, PWO + 1)); a("s_mov_b32 s6, %d" % (1024 * 2048))
        a("s_cmp_eq_u32 s32, 0"); a("s_cbranch_scc1 L_alt")
        a("s_lshl1_add_u32 s7, s2, s35"); a("s_lshl_b32 s7, s7, 13")
        a("s_mov_b64 s[4:5], s[%d:%d]" % (PX, PX + 1)); a("s_mov_b32 s6, %d" % (2048 * 2048 if not P.get("noxt", 1) else 0))
    a.label("L_alt")
    a("s_cmp_eq_u32 s32, 3"); a("s_cselect_b32 s47, 99, %d" % (13 if not P.get("ab_noalt") else 64))
    a("v_xor_b32 v17, 0x80, v16"); a("v_add_u32 v17, %d, v17" % 7168)
    a("v_add_u32 v18, %d, v16" % 14336); a("v_add_u32 v19, %d, v17" % 14336)
    a("v_bfe_u32 v20, v15, 2, 7")
    vwait("xs")
    if WF: a("s_barrier")
    a("v_add_u32 v7, 0x%x, v7" % NONCE_ADD)
    FL = P.get("fline", 3)
    V("f", "buffer_store_dword v7, v%d, s[84:87], s92 offen %s" % (20 if FL & 1 else 6, SC))
    a("v_readfirstlane_b32 s96, v7")
    if TH == 2:
        a("s_mov_b32 exec_lo, 0")
        V("t", "buffer_load_dword v29, v253, s[88:91], s94 offen")
        a("s_mov_b32 exec_lo, -1")
        for o in ["s_add_u32 s94, s94, s95", "s_cmp_ge_u32 s94, s90", "s_cselect_b32 s3, s90, 0", "s_sub_u32 s94, s94, s3"]: a(o)
        if P.get("t2pos", 1) == 0:
            a("s_mov_b32 exec_hi, 0")
            V("t", "buffer_load_dword v29, v253, s[88:91], s94 offen")
            a("s_mov_b32 exec_hi, -1")
    stamp()
    p0 = ("p", "buffer_load_dword v255, v254, s[84:87], 0 offen %s" % P.get("pollfl", SC))
    q1 = (tau_ops() + wdma_ops("W0") if W0POS == 1 else []) + ["s_mov_b32 s36, 1", "s_mov_b32 s37, %d" % SLOT] + tau_ops() + (wdma_ops("W") if not P.get("peel0", 0) else [])
    W1POS = P.get("w1pos", 0)
    PB4 = P.get("poll_before", 3)
    if PB4:
        idx = [k for k, o in enumerate(q1) if isinstance(o, tuple)][-PB4]
        if q1[idx - 1].startswith("s_add_u32 m0") if isinstance(q1[idx - 1], str) else False: idx -= 1
        q1.insert(idx, p0)
    az = Weave(P.get("w1_every", 5), q1 if W1POS == 0 else [])
    ZE = P.get("zero_early", 254)
    for r in range(32, ZE, 2): az("v_mov_b64 %s, 0" % vr(r, 2))
    az.flush()
    if not PB4 and not P.get("poll_late"): E(p0)
    def scalars():
        a("s_lshl_b32 s72, s%d, 19" % SMT); a("s_add_u32 s72, s72, s51"); a("s_bfe_u32 s3, s2, 0x10002"); a("s_add_u32 s3, s3, s32")
        a("s_lshl_b32 s3, s3, 16"); a("s_add_u32 s72, s72, s3")
        a("s_lshl_b32 s56, s32, 12"); a("s_add_u32 s56, s56, %d" % R2)
        a("s_lshl_b32 s48, s33, 1"); a("s_lshr_b32 s3, s32, 1"); a("s_add_u32 s48, s48, s3"); a("s_mul_i32 s48, s48, %d" % ACT_MT)
        a("s_lshl_b32 s3, s35, 12"); a("s_add_u32 s48, s48, s3")
        a("s_mul_i32 s73, s34, 7"); a("s_lshr_b32 s73, s73, 1"); a("s_lshl_b32 s73, s73, 13"); a("s_add_u32 s73, s73, s48")
        a("s_lshl_b32 s3, s57, 9"); a("s_add_u32 s73, s73, s3")
        a("s_mul_i32 s74, s57, %d" % (8192 - 1024)); a("s_add_u32 s74, s74, 512"); a("s_add_u32 s74, s74, s73")
        a("s_add_u32 s75, s34, 112"); a("s_lshl_b32 s75, s75, 13"); a("s_add_u32 s75, s75, s48")
        a("s_lshl2_add_u32 s92, s33, s32"); a("s_lshl_b32 s92, s92, 7"); a("s_lshl2_add_u32 s92, s34, s92")
        FP = P.get("fpad", 1)
        a("s_add_u32 s35, s92, %d" % F1O)
        if FP: a("s_lshl_b32 s92, s92, 5")
        a("s_add_u32 s92, s92, %d" % (F1H if not FP else 131072))
        a("s_lshl2_add_u32 s58, s%d, s32" % SMT); a("s_lshl_b32 s58, s58, 7")
        a("s_add_u32 s59, s58, %d" % F1O)
        if FP: a("s_lshl_b32 s58, s58, 5")
        a("s_add_u32 s58, s58, %d" % (F1H if not FP else 131072))
        a("s_or_b32 s33, s33, s32")
        a("s_lshr_b32 s3, s32, 1"); a("s_lshl1_add_u32 s57, s%d, s3" % SMT); a("s_mul_i32 s57, s57, %d" % ACT_MT)
        a("s_and_b32 s3, s32, 1"); a("s_lshl_b32 s3, s3, 12"); a("s_add_u32 s57, s57, s3")
        a("s_mov_b32 s50, 0xbfb8aa3b"); a("s_mov_b32 s51, 0xbfb8aa3b"); a("s_mov_b32 s52, 1.0"); a("s_mov_b32 s53, 1.0")
    FP = P.get("fpad", 1)
    SL = P.get("setup_late", 0)
    if not SL: scalars()
    if P.get("poll_late"):
        for r in range(0, 100, 4): a("%s %s, v[48:51], v[48:51], 0" % (MF, ar(r, 4)))
        E(p0)
    stamp()
    if not P.get("ab_noln"): check_flags(255, 254, "0", "p", "L_f0")
    if P.get("halo_plain", 0) == 1: V("inv", "buffer_inv sc1")
    stamp()
    for o in xld_ops(0, "X0"): E(o)
    xlast = ["s_add_u32 s40, s80, 15", "s_and_b32 s40, s40, 15", "s_lshl_b32 s40, s40, 15", "s_add_u32 s40, s40, s60", "s_add_u32 s41, s40, 4096"] + xld_ops(2, "XL")[:8]
    if P.get("xl_pos", 0) == 0:
        for o in xlast: E(o)
    if W1POS == 1:
        for o in q1: E(o)
    if SL: scalars()
    for r in range(ZE, 256, 2): a("v_mov_b64 %s, 0" % vr(r, 2))
    for r in (range(0, 100, 4) if not P.get("poll_late") else []): a("%s %s, v[48:51], v[48:51], 0" % (MF, ar(r, 4)))

    blocks = []
    for p in range(7): blocks += [("gu", p, 0), ("gu", p, 1)]
    blocks += [("q", s) for s in range(6)]
    def wreads(b, dst, ab=0):
        o = []
        for kh in range(2):
            for s2 in range(2):
                d = ar(dst(kh) + 2 * s2, 2)
                if b[0] == "gu":
                    o.append("ds_read_b64_tr_b16 %s, v%d offset:%d" % (d, ab + 1, b[2] * UP + (32 * kh + 16 * s2) * 224 + 32 * b[1]))
                elif b[0] == "q":
                    o.append("ds_read_b64_tr_b16 %s, v%d offset:%d" % (d, ab + 2 + b[1] % 2, (32 * kh + 16 * s2) * 192 + 64 * (b[1] // 2)))
                else:
                    o.append("ds_read_b64_tr_b16 %s, v%d offset:%d" % (d, ab + 4, (32 * kh + 16 * s2) * 192))
        return o
    def mfmas(b, ring, buf):
        o = []
        for m in range(4):
            for kh in range(2):
                w, x = ar(WR(ring, kh), 4), ar(XB(buf, m, kh), 4)
                c = vr(accGU(b[1], b[2], m), 4) if b[0] == "gu" else ar(accQ(b[1], m), 4)
                if b[0] == "q" and b[1] >= 4: w, x = x, w
                o.append("%s %s, %s, %s, %s" % (MF, c, w, x, c))
        return o
    def halo_mf(buf):
        return ["%s %s, %s, %s, %s" % (MF, ar(HACC, 4), ar(HW(kh), 4), ar(XB(buf, 4, kh), 4), ar(HACC, 4)) for kh in range(2)]

    vwait("X0")
    a("s_barrier")
    stamp()
    for bi in range(3):
        for o in wreads(blocks[bi], lambda kh: WR(bi % 4, kh)): a(o)
    if P.get("xl_pos", 0) == 1:
        for o in xlast: E(o)
    if P.get("xl_pos", 0) == 2:
        for o in ["s_add_u32 s48, s80, 15", "s_and_b32 s48, s48, 15", "s_lshl_b32 s48, s48, 15", "s_add_u32 s48, s48, s60"]: a(o)
    if P.get("t_early", 1) < 2 and P.get("t1pos", 4) >= 1:
        if P.get("t1pos") in (1, 2): V("t", "buffer_load_dword v29, v27, s[88:91], s94 offen %s" % P.get("t1fl", ""))
        if P.get("t1pos") in (1, 3): V("t", "buffer_load_dword v29, v28, s[88:91], s94 offen %s" % P.get("t1fl", ""))
        for o in ["s_add_u32 s94, s94, s95", "s_cmp_ge_u32 s94, s90", "s_cselect_b32 s3, s90, 0", "s_sub_u32 s94, s94, s3"]: a(o)
    if TH == 2:
        if P.get("t2pos", 1) == 1: V("t", "buffer_load_dword v29, v27, s[88:91], s94 offen")
        if P.get("t3pos", 0) == 0: V("t", "buffer_load_dword v29, v28, s[88:91], s94 offen")
        else: a("s_mov_b32 s48, s94")
        for o in ["s_add_u32 s94, s94, s95", "s_cmp_ge_u32 s94, s90", "s_cselect_b32 s3, s90, 0", "s_sub_u32 s94, s94, s3"]: a(o)
    LT = P.get("late_w2", 0)
    a("s_cmp_eq_u32 s32, 3"); a("s_cselect_b32 s95, %d, s95" % ((-(256 if LT else 128) * 2048) & 0xffffffff))
    a("s_cselect_b32 s49, -1, s90")
    if LT:
        a("s_cselect_b32 s3, %d, 0" % (6 * 128 * 2048)); a("s_cselect_b64 vcc, -1, 0"); a("s_add_u32 s94, s94, s3")
        a("v_lshlrev_b32 v20, 3, v15"); a("v_add_u32 v21, %d, v20" % (128 * 2048))
        a("v_cndmask_b32 v27, v27, v21, vcc"); a("v_cndmask_b32 v28, v28, v20, vcc")

    HRB, HMB = 9, 13
    def step(buf, misc, loop=None, spc=None):
        lg = Cnt([0] * 4 + [1] * 4 + [2] * 4)
        SPC, V0 = spc or P.get("vspace", 5.4), P.get("vstart", 5)
        place = {}
        nv = 0
        tgt = []
        for o in misc:
            if isinstance(o, tuple):
                g = int(V0 + nv * SPC) | 1
                if g // 8 >= HRB: g += 8
                tgt.append(g)
                if P.get("vweight", 0): nv += (1.55 if "s[16:19]" in o[1] else (1.1 if o[1].endswith("lds") else 0.77))
                else: nv += (P.get("xl_w", 0.4) if "s49" in o[1] else 1)
            else: tgt.append(None)
        nxt = None
        for k in range(len(misc) - 1, -1, -1):
            if tgt[k] is not None: nxt = tgt[k]
            elif nxt is not None:
                nxt -= 1; tgt[k] = nxt
        last = max(t for t in tgt if t is not None)
        for k in range(len(misc)):
            if tgt[k] is None:
                last += 1; tgt[k] = last
        for k in range(1, len(misc)):
            if tgt[k] < tgt[k - 1]: tgt[k] = tgt[k - 1]
        assert min(tgt) >= 0 and max(tgt) < 17 * 8, (min(tgt), max(tgt))
        for k, o in enumerate(misc): place.setdefault((tgt[k] // 8, tgt[k] % 8), []).append(o)
        for bi in range(20):
            mf = mfmas(blocks[bi], bi % 4, buf)
            fill = {}
            w = lg.need(bi)
            if w is not None: a("s_waitcnt lgkmcnt(%d)" % w)
            rd = []
            if bi <= 16: rd = [(bi + 3, o) for o in wreads(blocks[bi + 3], lambda kh: WR((bi + 3) % 4, kh))]; gaps = [0, 2, 4, 6]
            elif bi == 18:
                rd = [(100, o) for o in wreads(blocks[0], lambda kh: WR(0, kh))] + [(101, o) for o in wreads(blocks[1], lambda kh: WR(1, kh))]
                gaps = list(range(8))
            elif bi == 19: rd = [(102, o) for o in wreads(blocks[2], lambda kh: WR(2, kh))]; gaps = [0, 2, 4, 6]
            if bi == HRB and not P.get("ab_nohalo"):
                hr = [("H", o) for o in wreads(("h",), HW)]
                rd = [x for pr in zip(rd, hr) for x in pr]; gaps = list(range(8))
            for (tag, o), g in zip(rd, gaps if rd else []):
                fill.setdefault(g, []).append(o); lg.issue(tag)
            for g in range(8):
                for o in place.get((bi, g), []): fill.setdefault(g, []).append(o)
            if bi == HMB and not P.get("ab_nohalo"):
                assert lg.need("H") is None
                mf += halo_mf(buf)
            if bi == 17:
                for k, r in enumerate((1, 2, 3, 4)):
                    fill.setdefault(k + 1, []).append("v_add_u32 v%d, s93, v%d" % (r, r))
                fill.setdefault(7, []).append(lambda: (vwait("X", lg0=True), a("s_barrier")))
                lg.clear()
                if P.get("itrace"):
                    fill[7] += ["s_memtime s[98:99]", "s_add_u32 m0, s36, 30", "s_waitcnt lgkmcnt(0)", "v_writelane_b32 v31, s98, m0"]
            if bi == 19 and loop:
                fill.setdefault(5, []).append("s_cmp_lt_u32 s36, %d" % (13 if P.get("xl_pos", 0) == 4 else 15))
                fill.setdefault(7, []).append("s_cbranch_scc1 %s" % loop)
            for i, m in enumerate(mf):
                a(m)
                for o in fill.get(i, []):
                    if isinstance(o, tuple) and ((P.get("ab_g1x") and o[0] == "X") or (P.get("ab_g1w") and o[0] == "W") or (P.get("ab_g1q") and "s[16:19]" in o[1])):
                        vm.issue(o[0]); continue
                    if P.get("ab_g1d") and isinstance(o, str) and o.startswith("ds_read") and bi % 2 == 1: continue
                    if P.get("ab_g1b") and callable(o): vm.need("X"); continue
                    E(o)
    slot_ops = ["s_add_u32 s37, s37, s62", "s_cmp_eq_u32 s37, %d" % (3 * SLOT), "s_cselect_b32 s37, 0, s37",
                "s_cmp_eq_u32 s37, s62", "s_cselect_b32 s93, s63, s62"]
    def std_misc(buf):
        t = [("t", "buffer_load_dword v29, v%d, s[88:91], s94 offen %s" % (27 + buf, P.get("tfl", "")))] + (["s_add_u32 s94, s94, s95", "s_cmp_ge_u32 s94, s49", "s_cselect_b32 s3, s90, 0", "s_sub_u32 s94, s94, s3"] if buf else [])
        if buf: t += ["s_cmp_eq_u32 s36, s47", "s_cselect_b64 s[88:89], s[4:5], s[88:89]", "s_cselect_b32 s90, s6, s90", "s_cselect_b32 s94, s7, s94",
                      "s_cselect_b64 vcc, -1, 0", "v_cndmask_b32 v27, v27, v24, vcc", "v_cndmask_b32 v28, v28, v25, vcc"]
        xl = xld_ops(buf ^ 1, "X")
        if P.get("ab_nohalo"): xl = xl[:8]
        if P.get("xl_pos", 0) == 2:
            ex = [("X", o[1].replace("s40", "s49").replace("s41", "s49")) for o in xld_ops(2, "X")[4 * buf:4 * buf + 4]]
            pre = ["s_cmp_eq_u32 s36, 14", "s_cselect_b32 s49, s48, %d" % OOB] if buf == 0 else ["s_add_u32 s49, s49, 4096"]
            xl = xl + pre + ex
        return xoff_ops() + xl[:2] + ["s_add_u32 s36, s36, 1"] + tau_ops() + xl[2:4] + slot_ops[:3] + xl[4:6] + slot_ops[3:] + xl[6:] + wdma_ops("W") + t
    if P.get("peel0", 0):
        m0 = std_misc(0); m1 = std_misc(1)
        iw = lambda m: [k for k, o in enumerate(m) if isinstance(o, tuple) and o[0] == "W"]
        NH = P.get("peel_h", 6)
        k0 = iw(m0)[NH] - 1 if NH < 10 else iw(m0)[-1] + 1
        k1 = iw(m0)[-1] + 1
        rest = [(("X", o[1]) if isinstance(o, tuple) else o) for o in m0[k0:k1]]
        w1 = [(("X", o[1]) if isinstance(o, tuple) else o) for o in wdma_ops("W")]
        xl1 = xlast if P.get("xl_pos", 0) == 3 else []
        xl1 = [((o[0], o[1].replace("s40", "s48").replace("s41", "s49")) if isinstance(o, tuple) else o.replace("s40", "s48").replace("s41", "s49")) for o in xl1]
        nv = lambda m: sum(isinstance(o, tuple) for o in m)
        a0 = w1 + m0[:k0] + ([("t", "buffer_load_dword v29, v28, s[88:91], s48 offen")] if P.get("t3pos", 0) else []) + m0[k1:]
        a1 = rest + m1[:iw(m1)[-1] + 1] + xl1 + m1[iw(m1)[-1] + 1:]
        step(0, a0, spc=min(5.4, 112.0 / nv(a0)))
        step(1, a1, spc=min(5.4, 108.0 / nv(a1)))
    a(".p2align 6")
    for _ in range(P.get("loop_shift", 0)): a("s_nop 0")
    a.label("L_g1")
    vm.q = ["W"] * 10 + ["t"]
    step(0, std_misc(0))
    step(1, std_misc(1), loop="L_g1")
    assert vm.q == ["W"] * 10 + ["t"], vm.q
    if P.get("xl_pos", 0) == 4:
        xl4 = [((o[0], o[1].replace("s40", "s48").replace("s41", "s47")) if isinstance(o, tuple) else o.replace("s40", "s48").replace("s41", "s47")) for o in xlast]
        m0 = std_misc(0); m1 = std_misc(1)
        it = lambda m: next(k for k, o in enumerate(m) if isinstance(o, tuple) and o[0] == "t")
        iw = lambda m: next(k for k, o in enumerate(m) if isinstance(o, tuple) and o[0] == "W") - 1
        NA_ = 5 + P.get("xl_split", 4)
        step(0, m0[:iw(m0)] + xl4[:NA_] + m0[iw(m0):], spc=P.get("xl_spc", 4.7))
        step(1, m1[:iw(m1)] + xl4[NA_:] + m1[iw(m1):it(m1) + 1], spc=P.get("xl_spc", 4.7))
    stamp()

    for _ in range(P.get("tail_shift", 0)): a("s_nop 0")
    ND, NO = 14, 8
    NS = ND + NO
    VDW, VDO = 16, 30
    NRES = 5
    ROTD = P.get("rotd", 5)
    RREG = [4, 5, 6, 7, 36, 37, 55]
    ROTO = P.get("roto", 1)
    OLOC = {14: R2 + 32768, 15: R2 + 49152, 16: R2, 21: 0, 18: 16384, 17: 106496, 19: 122880, 20: 139264}
    FR = NS - NRES
    def wops(sg, force=False):
        if sg >= FR and not force: return []
        u = sg % 4
        o = []
        if sg < ND:
            if ROTD: o.append("s_lshl3_add_u32 s38, s%d, s%d" % (RREG[sg % 7], 44 + sg // 7))
            else: o.append("s_add_u32 s38, s%d, %d" % (44 + sg // 7, (sg % 7) * 131072))
            o.append("s_add_u32 m0, s56, %d" % (u * 16384))
            for q in range(4):
                o.append(("W%d" % sg, "buffer_load_dwordx4 v%d, s[8:11], s38 offen offset:%d lds" % (VDW + q, 1024 * q)))
        else:
            o.append("s_add_u32 m0, s56, %d" % ((OLOC[sg] - R2) & 0xffffffff))
            for q in range(4):
                if ROTO: o.append(lambda sg=sg, q=q: [a("s_bfe_u32 s38, s80, 0x%x" % (0x40000 + 4 * (sg - ND))), a("s_lshl_b32 s38, s38, 18"), a("s_add_u32 s38, s38, %d" % (15360 * q))])
                else: o.append("s_mov_b32 s38, %d" % ((sg - ND) * 262144 + 15360 * q))
                o.append(("W%d" % sg, "buffer_load_dwordx4 v%d, s[12:15], s38 offen offset:%d lds" % (VDO, 1024 * q)))
        return o
    QI = {(0, 0): 0, (1, 0): 1, (1, 1): 2, (0, 1): 3}
    accD = lambda m, b: 64 + QI[(m >> 1, b >> 2)] * 32 + ((m & 1) * 4 + (b & 3)) * 4
    accO = lambda m, b: 192 + (m * 4 + b) * 4
    VW, VWO, VX = 32, 20, 52
    NXB = 6
    NX0 = P.get("nx0", 2)
    XB2 = lambda sg, f: (lambda u: (u * 32 if u < 4 else 192 + (u - 4) * 32) + f * 4)(sg % NXB)
    WR2 = lambda b, kh: 128 + b * 8 + kh * 4
    def xops(sg):
        if sg >= NS: return []
        o = []
        if sg < ND:
            o.append("s_add_u32 s39, s%d, %s" % (60 if sg < NX0 else 46 + sg // 7, ("s%d" % RREG[sg % 7]) if ROTD else str((sg % 7) * 16384)))
            for kh in range(2):
                for m in range(4):
                    o.append(("X%d" % sg, "buffer_load_dwordx4 %s, v%d, s[28:31], s39 offen offset:%d %s" % (ar(XB2(sg, kh * 4 + m), 4), VX + kh + 4 * (m >> 1), 1024 * (m & 1), XSC)))
        else:
            if ROTO: o.append(lambda sg=sg: [a("s_bfe_u32 s39, s80, 0x%x" % (0x40000 + 4 * (sg - ND))), a("s_lshl_b32 s39, s39, 15"), a("s_add_u32 s39, s39, s81")])
            else: o.append("s_add_u32 s39, s57, %d" % (112 * 8192 + (sg - ND) * 32768))
            for kq in range(4):
                for m in range(2):
                    o.append(("X%d" % sg, "buffer_load_dwordx4 %s, v%d, s[28:31], s39 offen offset:%d %s" % (ar(XB2(sg, kq * 2 + m), 4), VX + kq, 1024 * m, XSC)))
        return o
    def wreads2(sg, b, rb=None):
        if rb is None: rb = b
        o = []
        u = sg % 4
        for kh in range(2):
            for s2 in range(2):
                if sg < ND: v, off = VW + b, u * 16384 + (32 * kh + 16 * s2) * 256
                else:
                    L = OLOC[sg]
                    vb, base = (40, 0) if L < R2 else ((VWO, R2) if L < 106496 else (44, 106496))
                    v, off = vb + b % 4, L - base + (64 * (b // 4) + 32 * kh + 16 * s2) * 128
                o.append("ds_read_b64_tr_b16 %s, v%d offset:%d" % (ar(WR2(rb, kh) + 2 * s2, 2), v, off))
        return o
    def mfmas2(sg, b, rb):
        o = []
        for m in ((2, 3, 0, 1) if sg < ND else (0, 1)):
            for kh in range(2):
                if sg < ND: c, x = accD(m, b), XB2(sg, kh * 4 + m)
                else: c, x = accO(m, b % 4), XB2(sg, (2 * (b // 4) + kh) * 2 + m)
                z = (sg == 0 and kh == 0) or (sg == ND and b < 4 and kh == 0)
                o.append("%s %s, %s, %s, %s" % (MF, vr(c, 4), ar(WR2(rb, kh), 4), ar(x, 4), "0" if z else vr(c, 4)))
        return o
    order = [(0, 0), (1, 0), (2, 0), (3, 0), (0, 1), (1, 1), (2, 1), (3, 1)]
    for b in range(4, 20): order += [(b, 0), (b, 1)]
    NPOS = len(order)
    done_pos = {b: max(i for i, (bb, s) in enumerate(order) if bb == b) for b in range(20)}
    AB2 = 7
    R0, R1, R2_ = accGU(0, 1, 0), accGU(2, 1, 0), accGU(4, 1, 0)
    Qf = lambda m: R0 + 12 + 4 * m
    Kf = lambda m: R0 + 28 + 4 * (m + 1)
    VV = lambda f, m: R1 + 10 * f + 2 * (m + 1)
    Pf = lambda m: R1 + 20 + 4 * m
    Sp = lambda m: R2_ + 8 * m
    Sc = lambda m: R2_ + 8 * m + 4
    TT = lambda m: R2_ + 32 + 4 * m
    def cvt_acc(dst, src, t):
        return ["v_accvgpr_read_b32 v%d, a%d" % (t + r, src + r) for r in range(4)] + \
               ["v_cvt_pk_bf16_f32 v%d, v%d, v%d" % (dst, t, t + 1), "v_cvt_pk_bf16_f32 v%d, v%d, v%d" % (dst + 1, t + 2, t + 3)]
    masks = ["v_lshrrev_b32 v13, 4, v15", "v_and_b32 v14, 15, v13", "v_and_b32 v27, 1, v13", "v_lshrrev_b32 v20, 4, v13", "v_lshl_add_u32 v20, v20, 2, v27",
             "v_cmp_le_u32 s[40:41], v20, v14", "v_add_u32 v20, 2, v20", "v_cmp_le_u32 s[42:43], v20, v14", "v_cmp_ne_u32 s[62:63], 0, v27",
             "v_lshlrev_b32 v27, 4, v27", "s_cmp_eq_u32 s33, 0", "s_cselect_b64 s[88:89], -1, 0", "s_andn2_b64 s[90:91], s[88:89], s[42:43]",
             "s_andn2_b64 s[88:89], s[88:89], s[40:41]", "s_mov_b32 s48, 0x3e3504f3", "s_mov_b32 s49, 0x3fb8aa3b",
             "s_lshl_b32 s3, s32, 11", "s_add_u32 s3, s3, %d" % EX, "v_add_u32 v25, s3, v15", unp("vhx", 24),
             "v_lshlrev_b32 v14, %d, v14" % (7 if FP else 2), "v_and_b32 v13, 31, v13", "v_lshlrev_b32 v13, 2, v13",
             "s_and_b32 s3, s2, 7", "s_xor_b32 s61, s3, %d" % P.get("g0", 1), "s_xor_b32 s3, s61, 1",
             "s_mul_i32 s44, s61, %d" % (7 * 131072), "s_mul_i32 s45, s3, %d" % (7 * 131072),
             "s_mul_i32 s46, s61, %d" % (7 * 16384), "s_add_u32 s46, s46, s57", "s_mul_i32 s47, s3, %d" % (7 * 16384), "s_add_u32 s47, s47, s57",
             "s_mov_b32 s60, s46", "s_lshl_b32 s61, s61, 9", "s_add_u32 s34, s61, s58", "s_lshl_b32 s3, s3, 9", "s_add_u32 s58, s58, s3", "v_and_b32 v5, 384, v14", "s_and_b32 s95, s2, 4", "s_lshl_b32 s95, s95, 9"]
    if ROTD >= 5:
        def perm(r):
            p = list(range(7))
            if ROTD == 5:
                for c in range(r, 6, 4): p[c], p[c + 1] = p[c + 1], p[c]
            else:
                for c in range(r, 5, 4): p[c], p[c + 1], p[c + 2] = p[c + 2], p[c], p[c + 1]
                if r == 3: p[0], p[1] = p[1], p[0]
            if P.get("ab_hit"): p = [k % 2 for k in range(7)]
            return sum(v << (4 * k) for k, v in enumerate(p))
        masks += ["s_add_u32 s3, s%d, s%d" % (SMT, SNT), "s_mov_b32 s4, 0x%x" % perm(0), "s_mov_b32 s5, 0x%x" % perm(2), "s_bitcmp1_b32 s3, 0",
                  "s_cselect_b32 s4, 0x%x, s4" % perm(1), "s_cselect_b32 s5, 0x%x, s5" % perm(3), "s_bitcmp1_b32 s3, 1", "s_cselect_b32 s3, s5, s4"]
        for k in range(7):
            masks += ["s_bfe_u32 s%d, s3, 0x%x" % (RREG[k], 0x40000 + 4 * k), "s_lshl_b32 s%d, s%d, 14" % (RREG[k], RREG[k])]
        if ROTO:
            def perm8(r):
                p = list(range(8))
                for c in range(r, 7, 4): p[c], p[c + 1] = p[c + 1], p[c]
                if P.get("ab_hit") == 2: p = [k % 2 for k in range(8)]
                return sum(v << (4 * k) for k, v in enumerate(p))
            masks += ["s_add_u32 s3, s%d, s%d" % (SMT, SNT), "s_mov_b32 s80, 0x%x" % perm8(0), "s_mov_b32 s81, 0x%x" % perm8(2), "s_bitcmp1_b32 s3, 0",
                      "s_cselect_b32 s80, 0x%x, s80" % perm8(1), "s_cselect_b32 s81, 0x%x, s81" % perm8(3), "s_bitcmp1_b32 s3, 1", "s_cselect_b32 s80, s81, s80",
                      "s_add_u32 s81, s57, %d" % (112 * 8192)]
    elif ROTD >= 3:
        masks += ["s_add_u32 s3, s%d, s%d" % (SMT, SNT)]
        W1_ = {3: 4, 4: 2}[ROTD]
        for k in range(4):
            masks += ["s_add_u32 s%d, s3, %d" % (RREG[k], k), "s_and_b32 s%d, s%d, %d" % (RREG[k], RREG[k], W1_ - 1)]
            if k >= W1_: masks += ["s_add_u32 s%d, s%d, %d" % (RREG[k], RREG[k], W1_)]
            masks += ["s_lshl_b32 s%d, s%d, 14" % (RREG[k], RREG[k])]
        masks += ["s_mul_i32 s36, s3, 86", "s_lshr_b32 s36, s36, 8", "s_mul_i32 s36, s36, 3", "s_sub_u32 s3, s3, s36", "s_add_u32 s3, s3, 4", "s_lshl_b32 s36, s3, 14"]
        for k in (5, 6):
            masks += ["s_add_u32 s%d, s%d, 16384" % (RREG[k], RREG[k - 1]), "s_cmp_eq_u32 s%d, %d" % (RREG[k], 7 * 16384), "s_cselect_b32 s3, %d, 0" % (3 * 16384), "s_sub_u32 s%d, s%d, s3" % (RREG[k], RREG[k])]
    elif ROTD:
        if ROTD == 1: masks += ["s_and_b32 s3, s%d, 3" % SMT, "s_lshl1_add_u32 s3, s3, s%d" % SNT]
        else: masks += ["s_mov_b32 s3, s%d" % SNT]
        masks += ["s_cmp_ge_u32 s3, 7", "s_cselect_b32 s4, 7, 0", "s_sub_u32 s3, s3, s4", "s_lshl_b32 s4, s3, 14"]
        for k in range(1, 7):
            masks += ["s_add_u32 s%d, s%d, 16384" % (RREG[k], RREG[k - 1]), "s_cmp_eq_u32 s%d, %d" % (RREG[k], 7 * 16384), "s_cselect_b32 s%d, 0, s%d" % (RREG[k], RREG[k])]
    early = ["v_add_u32 v%d, s63, v%d" % (AB2 + r, r) for r in (1, 2, 3, 4)] + xoff_ops()[:2] + xld_ops(2, "X")[8:] + masks
    ctouch = []
    if P.get("ctouch2", 1):
        def getpc():
            a("s_getpc_b64 s[16:17]"); a.label("L_pc2")
        ctouch = [getpc, "s_mov_b32 s18, L_end-L_pc2", "s_bfe_u32 s3, s2, 0x30003", "s_lshl2_add_u32 s3, s3, s32", "s_lshl_b32 s3, s3, 11", "v_and_b32 v20, 0xf0, v15",
                  "v_lshl_add_u32 v20, v20, 3, s3", ("t", "buffer_load_dword v29, v20, s[16:19], 0 offen")]
        early = early[:4] + ctouch + early[4:]
    w2t = []
    if P.get("w2tail"):
        early += ["s_bfe_u32 s3, s2, 0x20001", "s_mul_i32 s94, s3, %d" % (896 * 2048), "s_lshr_b32 s3, s2, 3", "s_mul_i32 s3, s3, %d" % (28 * 2048), "s_add_u32 s94, s94, s3",
                  "s_lshl_b32 s3, s32, 14", "s_add_u32 s94, s94, s3", "s_add_u32 s95, s94, 8192", "s_cmp_eq_u32 s32, 3", "s_cselect_b32 s95, %d, s95" % OOB, "v_lshlrev_b32 v28, 3, v15"]
        w2t = [("t", "buffer_load_dword v29, v28, s[8:11], s94 offen"), ("t", "buffer_load_dword v29, v28, s[8:11], s95 offen")]
    memq = ["s_mov_b64 s[8:9], s[%d:%d]" % (PD, PD + 1), "s_mov_b32 s10, %d" % (3584 * 2048)] + (w2t if P.get("w2tail") == 1 else []) + wops(0) + wops(1) + (w2t if P.get("w2tail") == 2 else []) + \
        ["s_mov_b64 s[12:13], s[%d:%d]" % (PWO, PWO + 1), "s_mov_b32 s14, %d" % (1024 * 2048)] + wops(19, True) + wops(20, True)
    stream = []
    def pkA(p): return [x for m in range(4) for h in (0, 2) for x in (
        "v_pk_mul_f32 %s, %s, %s" % (vr(accGU(p, 1, m) + h, 2), vr(accGU(p, 0, m) + h, 2), vr(accGU(p, 1, m) + h, 2)),)] + \
        ["v_pk_mul_f32 %s, %s, s[50:51]" % (vr(accGU(p, 0, m) + h, 2), vr(accGU(p, 0, m) + h, 2)) for m in range(4) for h in (0, 2)]
    def pkB(p): return ["v_pk_add_f32 %s, %s, s[52:53]" % (vr(accGU(p, 0, m) + h, 2), vr(accGU(p, 0, m) + h, 2)) for m in range(4) for h in (0, 2)]
    def pkC(p): return ["v_pk_mul_f32 %s, %s, %s" % (vr(accGU(p, 1, m) + h, 2), vr(accGU(p, 1, m) + h, 2), vr(accGU(p, 0, m) + h, 2)) for m in range(4) for h in (0, 2)]
    def fin(p):
        o = []
        sreg = 73 + (p & 1)
        for m in range(4):
            U = accGU(p, 1, m)
            D = accGU(p, 0, m & ~1) + 2 * (m & 1)
            o += ["v_cvt_pk_bf16_f32 v%d, v%d, v%d" % (D, U, U + 1), "v_cvt_pk_bf16_f32 v%d, v%d, v%d" % (D + 1, U + 2, U + 3)]
        for m in (0, 2):
            g0 = accGU(p, 0, m)
            o += ["v_permlane16_swap_b32 v%d, v%d" % (g0, g0 + 2), "v_permlane16_swap_b32 v%d, v%d" % (g0 + 1, g0 + 3)]
            o.append(("hs", "buffer_store_dwordx4 %s, v26, s[28:31], s%d offen offset:%d %s" % (vr(g0, 4), sreg, 1024 * m, SC)))
        o.append("s_add_u32 s%d, s%d, 8192" % (sreg, sreg))
        return o
    rdy = lambda b: (done_pos[b] + 1) * 8 + (P.get("rdy", 1) if b < 14 else P.get("rdyq", 1))
    for p in range(8):
        burst = (pkC(p - 1) if p > 0 else []) + (pkA(p) if p < 7 else [])
        stream.append((rdy(2 * p + 1) if p < 7 else 0, burst, True))
        tr1 = ["v_exp_f32 v%d, v%d" % (accGU(p, 0, 0) + r, accGU(p, 0, 0) + r) for r in range(16)] if p < 7 else []
        f = fin(p - 1) if p > 0 else []
        if p > 0 and (p - 1) % 2 == 0 and p - 1 < 6: pass
        mix = []
        while tr1 or f:
            if f: mix.append(f.pop(0))
            if tr1: mix.append(tr1.pop(0))
        for o in mix: stream.append((0, [o], False))
        if p < 7:
            stream.append((0, pkB(p), True))
            for r in range(16): stream.append((0, ["v_rcp_f32 v%d, v%d" % (accGU(p, 0, 0) + r, accGU(p, 0, 0) + r)], False))
    stream.append((0, ["HDONE"], False))
    MV = P.get("move", 0)
    H0 = Pf(0)
    halo_ops = cvt_acc(H0, HACC, H0 + 4) + ["v_add_u32 v%d, s71, v24" % (H0 + 2), "v_add_u32 v%d, s71, v%d" % (H0 + 3, H0 + 2), "v_add_u32 v%d, s71, v%d" % (H0 + 8, H0 + 3),
        "ds_write_b16 v24, v%d" % H0, "ds_write_b16_d16_hi v%d, v%d" % (H0 + 2, H0), "ds_write_b16 v%d, v%d" % (H0 + 3, H0 + 1), "ds_write_b16_d16_hi v%d, v%d" % (H0 + 8, H0 + 1)]
    vx_ops = ["v_add_u32 v%d, s95, v15" % VX] + ["v_add_u32 v%d, %d, v%d" % (VX + q, 8192 * q, VX) for q in range(1, 4)] + ["v_xor_b32 v%d, 0x800, v%d" % (VX + 4 + q, VX + q) for q in range(2)]
    fillq = [unp("vw", VW)] + ["v_xor_b32 v%d, %d, v%d" % (VW + b, 32 * b, VW) for b in range(1, 8)] + \
            [unp("vwo", VWO)] + ["v_xor_b32 v%d, %d, v%d" % (VWO + b, 32 * b, VWO) for b in range(1, 4)] + \
            ["v_subrev_u32 v%d, %d, v%d" % (40 + b, R2, VWO + b) for b in range(4)] + \
            ["v_add_u32 v%d, %d, v%d" % (44 + b, 106496 - R2, VWO + b) for b in range(4)] + \
            [unp("vout", 2)]
    mv = (halo_ops if MV & 1 else []) + (vx_ops if MV & 2 else [])
    NF_ = P.get("move_fill", 0)
    mv += fillq[:NF_]; del fillq[:NF_]
    for s_, F in ((0, Qf), (1, Qf), (2, Kf), (3, Kf)):
        for m in (0, 1, 2, 3):
            for k, o in enumerate(cvt_acc(F(m) + 2 * (s_ & 1), accQ(s_, m), TT(m))):
                stream.append((rdy(14 + s_), [o], False))
    for o in mv: stream.append((0, [o], False))
    for m in (0, 1, 2, 3):
        for o in cvt_acc(VV(0, m), accQ(4, m), TT(m)): stream.append((rdy(18), [o], False))
    def hflag():
        vwait("hs")
        V("f", "buffer_store_dword v7, v%d, s[84:87], s92 offen %s" % (13 if FL & 2 else 6, SC))
    GL = P.get("gaplen", 20)
    MSP = P.get("mem_space", 5)
    HDLY = P.get("hflag_delay", 36)
    BP = P.get("bar_pos", 28)
    lg = Cnt([0] * 4 + [1] * 4 + [2] * 4)
    HR = {3: 0, 15: 1}; HM = {7: 0, 19: 2}
    isv = lambda o: isinstance(o, str) and (o.startswith("v_") or o.startswith("s_nop"))
    front = []
    lastmem = -99; hdone = None; hsent = False; est = 0
    w = lg.need(0); a("s_waitcnt lgkmcnt(%d)" % w)
    for pos, (bi, st_) in enumerate(order):
        mf = mfmas(blocks[bi], pos % 4, 2 * st_)
        if P.get("tstamp") and pos in (4, 8, 16, 24, 32): stamp()
        if pos % 4 == 0: sys.stderr.write("pos %d: stream left %d est %d\n" % (pos, len(stream), est))
        rd = []
        if pos + 3 < NPOS:
            b3, s3 = order[pos + 3]
            rd = [(pos + 3, o) for o in wreads(blocks[b3], lambda kh: WR((pos + 3) % 4, kh), AB2 * s3)]
        gaps = [0, 2, 4, 6]
        if pos in HR:
            hr = [("H", o) for o in wreads(("h",), HW, AB2 * HR[pos])]
            rd = [x for pr in zip(rd, hr) for x in pr]; gaps = list(range(8))
        rdat = dict(zip(gaps, rd))
        if pos in HM:
            assert lg.need("H") is None
            if HM[pos]: vwait("X")
            mf += halo_mf(HM[pos])
        for i, m in enumerate(mf):
            g = pos * 8 + i
            a(m)
            t = 4
            if i in rdat:
                a(rdat[i][1]); lg.issue(rdat[i][0]); t += 8
            if i == len(mf) - 1 and pos + 1 < NPOS:
                w = lg.need(pos + 1)
                if pos == 0:
                    vwait("W"); a("s_barrier")
                if pos == BP:
                    assert BP > done_pos[13]
                    a("s_barrier"); memq += wops(2) + wops(3) + wops(21, True)
                if w is not None: a("s_waitcnt lgkmcnt(%d)" % w); t += 4
            if early:
                while early and t < 16:
                    o = early.pop(0); E(o); t = (max(t, 8) if isv(o) else t) + cost(o)
            else:
                q = front if front else memq
                if q and not isinstance(q[0], tuple) and t <= 12 - 4 * bool(stream and stream[0][0] <= g):
                    E(q.pop(0)); t += 4
                elif q and isinstance(q[0], tuple) and t == 4 and g - lastmem >= (MSP if q is memq else P.get("st_space", 4)):
                    E(q.pop(0)); t += 8; lastmem = g
                if hdone is not None and not hsent and not front and g >= hdone + HDLY and t == 4:
                    hflag(); hsent = True; t += 12
                if g == P.get("tpoll_gap", 305):
                    V("p", "buffer_load_dword v12, v5, s[84:87], s34 offen %s" % SC); t += 8
                t = max(t, 8)
                def to_burst():
                    c = 0
                    for r_, ops, burst in stream[:4]:
                        if burst: return c if r_ <= g else None
                        if isv(ops[0]): c += cost(ops[0])
                    return None
                while stream and stream[0][0] <= g:
                    tb = to_burst() if P.get("bfix", 1) else None
                    if tb is not None and t + tb <= 28: pass
                    elif tb is not None and tb <= 16 and t >= 16: break
                    elif t >= GL - 3: break
                    r_, ops, burst = stream.pop(0)
                    if ops == ["HDONE"]: hdone = g; continue
                    if not isv(ops[0]): front.append(ops[0]); continue
                    for o in ops: E(o); t += cost(o)
                    if burst: t = max(t, 29 + 4 * len(ops))
            est += max(16, t)
    sys.stderr.write("tail: %d stream ops left after last MFMA, est %d, hdone %s hsent %s memq %d\n" % (len(stream), est, hdone, hsent, len(memq)))
    stamp()
    for o in front: E(o)
    a("s_nop 1")
    for r_, ops, burst in stream:
        for o in ops:
            if o != "HDONE": E(o)
    HPOS = P.get("hflag_pos", 0)
    if not hsent and HPOS == 0: hflag(); hsent = True
    M4 = range(4)
    a("s_nop 1")
    for m in (1, 2, 3):
        a("%s %s, %s, %s, 0" % (MF, vr(Sc(m), 4), vr(Kf(m), 4), vr(Qf(m), 4)))
        a("%s %s, %s, %s, 0" % (MF, vr(Sp(m), 4), vr(Kf(m - 1), 4), vr(Qf(m), 4)))
    a("%s %s, %s, %s, 0" % (MF, vr(Sc(0), 4), vr(Kf(0), 4), vr(Qf(0), 4)))
    if not MV & 1:
        for o in halo_ops: a(o)
    for o in cvt_acc(VV(1, 3), accQ(5, 3), TT(0)): a(o)
    a("s_cmp_eq_u32 s32, 3")
    a("s_cbranch_scc1 L_noexp")
    a("ds_write_b128 v25, %s offset:2048" % vr(Kf(3), 4))
    a("ds_write_b64 v25, %s offset:3072" % vr(VV(0, 3), 2))
    a("ds_write_b64 v25, %s offset:3080" % vr(VV(1, 3), 2))
    a.label("L_noexp")
    if not hsent: hflag()
    PPOS = P.get("poll_pos", 9)
    poll1 = lambda: V("p", "buffer_load_dword v12, v5, s[84:87], s34 offen %s" % SC)
    if PPOS == 0: poll1()
    for m in (2, 1):
        for o in cvt_acc(VV(1, m), accQ(5, m), TT(m)): a(o)
    vwait("W0", lg0=True)
    a("s_barrier")
    a("ds_read_b128 %s, v25" % vr(Kf(-1), 4))
    a("ds_read_b64 %s, v25 offset:1024" % vr(VV(0, -1), 2))
    a("ds_read_b64 %s, v25 offset:1032" % vr(VV(1, -1), 2))
    for o in cvt_acc(VV(1, 0), accQ(5, 0), TT(0)): a(o)
    if not MV & 2:
        for o in vx_ops: a(o)
    a("v_mov_b32 v11, 0xce6e6b28")
    a("s_waitcnt lgkmcnt(0)")
    a("%s %s, %s, %s, 0" % (MF, vr(Sp(0), 4), vr(Kf(-1), 4), vr(Qf(0), 4)))
    stamp()
    if PPOS == 1: poll1()
    LATE = [17, 18]
    dq = list(memq)
    aw = Weave(P.get("dma_every", 10), dq)
    CKP = P.get("check_pos", 0)
    BLK = P.get("blocking", 0)
    def hcheck():
        if BLK:
            aw.flush()
            check_flags(12, 5, "s34", "p", "L_f1")
            stamp()
            dq.extend([o for sg in range(NX0) for o in xops(sg)])
            aw.n = P.get("x_every", 4)
            for _ in range(P.get("x_burst", 4)): aw.one()
            return
        vwait("p")
        a("v_cmp_ne_u32 vcc, s96, v12")
        a("s_nop 0")
        a("s_cmp_eq_u64 vcc, 0")
        a("s_cselect_b32 s60, s46, %s" % ("s46" if P.get("ab_nocheck") else str(OOB)))
        if P.get("force_late"): a("s_mov_b32 s60, %d" % OOB)
        stamp()
        if not P.get("ab_nox0"): dq.extend([o for sg in range(NX0) for o in xops(sg)])
        elif P.get("ab_nox0") == 2: dq.extend(xops(1)[:5])
        for _ in range(P.get("x_burst", 3)): aw.one()
    if CKP == 0: hcheck()
    if P.get("ab_nosm"):
        aw_real = aw
        class Skip:
            def __call__(self, t):
                if t in keep: a(t)
            def one(self): aw_real.one()
            def flush(self): aw_real.flush()
        keep = set()
        aw = Skip()
    A_ = lambda m: TT(m)
    B_ = lambda m: TT(m) + 1
    X_ = lambda m: TT(m) + 2
    Y_ = lambda m: TT(m) + 3
    MR = (3, 2, 1, 0)
    for m in MR:
        for S_ in (Sc, Sp):
            aw("v_cndmask_b32 v%d, v%d, v%d, s[62:63]" % (S_(m), S_(m), S_(m) + 1))
            aw("v_cndmask_b32 v%d, v%d, v%d, s[62:63]" % (S_(m) + 2, S_(m) + 2, S_(m) + 3))
    for m in MR:
        aw("v_cndmask_b32 v%d, v%d, v%d, s[40:41]" % (A_(m), Sp(m), Sc(m)))
        aw("v_cndmask_b32 v%d, v%d, v%d, s[42:43]" % (B_(m), Sp(m) + 2, Sc(m) + 2))
    if CKP == 1: hcheck()
    def rnd():
        for m in MR: aw("v_cvt_pk_bf16_f32 v%d, v%d, v%d" % (X_(m), A_(m), B_(m)))
        for m in MR:
            aw("v_lshlrev_b32 v%d, 16, v%d" % (A_(m), X_(m)))
            aw("v_and_b32 v%d, s54, v%d" % (B_(m), X_(m)))
    rnd()
    for m in MR: aw("v_pk_mul_f32 %s, %s, s[48:49] op_sel_hi:[1,0]" % (vr(A_(m), 2), vr(A_(m), 2)))
    rnd()
    aw("v_cndmask_b32 v%d, v%d, v11, s[88:89]" % (A_(0), A_(0)))
    aw("v_cndmask_b32 v%d, v%d, v11, s[90:91]" % (B_(0), B_(0)))
    if CKP == 2: hcheck()
    if PPOS == 2: poll1()
    if P.get("ab_nosm"): keep.update(fillq)
    def pad(n):
        for _ in range(n):
            aw(fillq.pop(0) if fillq else "s_nop 0")
    def reduce(op):
        for m in MR: aw("%s v%d, v%d, v%d" % (op, X_(m), A_(m), B_(m)))
        for sw in ("v_permlane16_swap_b32", "v_permlane32_swap_b32"):
            for m in MR: aw("v_mov_b32 v%d, v%d" % (Y_(m), X_(m)))
            pad(2)
            for m in MR: aw("%s v%d, v%d" % (sw, X_(m), Y_(m)))
            pad(1)
            for m in MR: aw("%s v%d, v%d, v%d" % (op, X_(m), X_(m), Y_(m)))
    reduce("v_max_f32")
    if CKP == 3: hcheck()
    if PPOS == 3: poll1()
    for m in MR: aw("v_pk_add_f32 %s, %s, %s op_sel_hi:[1,0] neg_lo:[0,1] neg_hi:[0,1]" % (vr(A_(m), 2), vr(A_(m), 2), vr(X_(m), 2)))
    for m in MR: aw("v_pk_mul_f32 %s, %s, s[48:49] op_sel:[0,1]" % (vr(A_(m), 2), vr(A_(m), 2)))
    for m in MR:
        aw("v_exp_f32 v%d, v%d" % (A_(m), A_(m)))
        aw("v_exp_f32 v%d, v%d" % (B_(m), B_(m)))
    pad(1)
    reduce("v_add_f32")
    if CKP == 4: hcheck()
    if PPOS == 4: poll1()
    for m in MR: aw("v_rcp_f32 v%d, v%d" % (X_(m), X_(m)))
    pad(1)
    for m in MR: aw("v_pk_mul_f32 %s, %s, %s op_sel_hi:[1,0]" % (vr(A_(m), 2), vr(A_(m), 2), vr(X_(m), 2)))
    for m in MR: aw("v_cvt_pk_bf16_f32 v%d, v%d, v%d" % (X_(m), A_(m), B_(m)))
    for m in MR:
        aw("v_and_b32 v%d, 0xffff, v%d" % (A_(m), X_(m)))
        aw("v_lshrrev_b32 v%d, 16, v%d" % (B_(m), X_(m)))
    for m in MR:
        aw("v_lshlrev_b32 v%d, v27, v%d" % (A_(m), A_(m)))
        aw("v_lshlrev_b32 v%d, v27, v%d" % (B_(m), B_(m)))
    for m in MR:
        aw("v_cndmask_b32 v%d, v%d, 0, s[40:41]" % (Pf(m), A_(m)))
        aw("v_cndmask_b32 v%d, v%d, 0, s[42:43]" % (Pf(m) + 1, B_(m)))
        aw("v_cndmask_b32 v%d, 0, v%d, s[40:41]" % (Pf(m) + 2, A_(m)))
        aw("v_cndmask_b32 v%d, 0, v%d, s[42:43]" % (Pf(m) + 3, B_(m)))
    pad(max(2, len(fillq)))
    if CKP == 5: hcheck()
    sys.stderr.write("DMA queue left after softmax: %d\n" % len(dq))
    for m in MR:
        a("%s %s, %s, %s, 0" % (MF, vr(Sp(m), 4), vr(VV(0, m - 1), 4), vr(Pf(m), 4)))
        a("%s %s, %s, %s, 0" % (MF, vr(Sc(m), 4), vr(VV(1, m - 1), 4), vr(Pf(m), 4)))
    stamp()

    for _ in range(P.get("g2_shift", 0)): a("s_nop 0")
    lg = Cnt()
    for b in range(4):
        for o in wreads2(0, b): a(o); lg.issue((0, b))
    for m in M4:
        for h in range(4):
            a("v_cvt_pk_bf16_f32 v%d, v%d, v%d" % (240 + 4 * m + h, Sp(m) + 2 * h, Sp(m) + 2 * h + 1))
    aw.flush()
    if not BLK:
        vwait(*[t for t in vm.q if not t.startswith("X")])
        sv = list(vm.q)
        a("s_cmp_eq_u32 s60, s46")
        a("s_cbranch_scc1 L_early")
        a("s_mov_b32 s60, s46")
        poll1()
        check_flags(12, 5, "s34", "p", "L_f1")
        for sg in range(NX0):
            for o in xops(sg): E(o)
        if P.get("ab_nox0"): vm.q = sv
        assert vm.q == sv, (vm.q, sv)
        a.label("L_early")
    ostores = [("os", "buffer_store_dwordx4 %s, v15, s[28:31], s75 offen offset:%d %s" % (vr(240 + 4 * m, 4), 1024 * m, SC)) for m in M4]

    srd(a, 16, PX, 0, 2048 * 2048)
    srd(a, 20, PWS, PART_OFF, PART_BYTES)
    srd(a, 24, POUT, 0, 2048 * 2048)
    a("s_add_u32 s73, s72, 32768")
    a("s_lshl2_add_u32 s74, s2, s32"); F2S = P.get("f2shift", 2); a("s_lshl_b32 s88, s74, %d" % F2S); a("s_add_u32 s88, s88, %d" % F2)
    a("s_lshl_b32 s74, s74, 14")
    a("v_and_b32 v14, 0x30, v15"); a("v_max_u32 v14, 16, v14"); a("v_lshlrev_b32 v14, %d, v14" % (F2S - 1)); a("v_xor_b32 v14, s88, v14")
    a("s_add_u32 s89, s88, %d" % (1024 << F2S)); a("s_mov_b32 s94, %d" % (1024 << F2S))
    a("s_mov_b32 s92, s35")
    vwait("X0")
    stamp()

    AH = P.get("ahead", 1)
    Hs = [(sg, c) for sg in range(ND - AH) for c in (0, 1)] + [(sg, 0) for sg in range(ND - AH, ND)] + [(sg, 1) for sg in range(ND - AH, ND)] + \
         [(sg, c) for sg in range(ND, NS) for c in (0, 1)]
    lastuse = {sg: max(i for i, h in enumerate(Hs) if h[0] == sg) // 2 for sg in range(NS)}
    firstuse = {sg: min(i for i, h in enumerate(Hs) if h[0] == sg) // 2 for sg in range(NS)}
    wsched = {}
    for w in range(4, FR):
        wsched.setdefault(lastuse[w - 4], []).append(w)
        assert lastuse[w - 4] < firstuse[w] - 1 or w >= ND, (w, lastuse[w - 4], firstuse[w])
        assert lastuse[w - 4] < firstuse[w] - 1
    LASTBAR = FR - 2
    q01 = max(i for i, h in enumerate(Hs) if h[0] < ND and h[1] == 0)
    isV = lambda x: isinstance(x, tuple)
    isval = lambda x: isinstance(x, str) and x.startswith("v_")
    def stage(sg, h1=(), h2=(), pre=None, valu=None):
        last = sg == NS - 1
        if P.get("sstamp") and sg >= 1: stamp()
        if pre: pre()
        NG = 64 if sg < ND else 32
        H = NG // 2
        h1 = list(h1); h2 = [o for w in wsched.get(sg, []) for o in wops(w)] + list(h2)
        drop = lambda o: isinstance(o, tuple) and ((P.get("ab_dx") and o[0].startswith("X") and sg >= P["ab_dx"]) or (P.get("ab_dw") and o[0].startswith("W")) or (P.get("ab_dos") and o[0] in ("os", "e", "R")))
        h1 = [o for o in h1 if not drop(o)]; h2 = [o for o in h2 if not drop(o)]
        blk = lambda k, b: (Hs[2 * k + b // 4][0], 4 * Hs[2 * k + b // 4][1] + b % 4)
        r1 = [((sg, b), o) for b in range(4, 8) for o in wreads2(*blk(sg, b), b)]
        r2 = [] if last else [((sg + 1, b), o) for b in range(4) for o in wreads2(*blk(sg + 1, b), b)]
        bar = sg <= LASTBAR
        plan = {g: [] for g in range(NG)}
        load = {g: 4 for g in range(NG)}
        WG_ = {H // 2 - 1: (sg, 3), NG - 1: (sg + 1, 1)}
        if not bar: WG_.update({H - 1: (sg, 5), 3 * H // 2 - 1: (sg, 7)})
        for g in WG_: load[g] += 4
        if bar: load[H - 1] += 8
        def place(lo, hi, rds, rhi, h):
            n = len(rds)
            for k in range(n):
                g = lo + k * (rhi - lo + 1) // n
                plan[g].append(("r",) + rds[k]); load[g] += 8
            nv = sum(isV(x) for x in h)
            pos = [None] * len(h); vi = 0; prev = lo
            for k, x in enumerate(h):
                if isV(x):
                    t = lo + int((vi + 0.5) * (hi - lo + 1) / nv); vi += 1
                    c = sorted(range(max(prev, t - 1), min(hi, t + 1) + 1), key=lambda g: (load[g], abs(g - t))) or [hi]
                    pos[k] = prev = c[0]; load[c[0]] += 8
            prev = lo
            for k, x in enumerate(h):
                if pos[k] is None:
                    nxt = next((pos[j] for j in range(k + 1, len(h)) if pos[j] is not None), hi)
                    if isval(x) and nxt > prev: nxt -= 1
                    c = [g for g in range(prev, nxt + 1) if load[g] <= 12]
                    g = c[0] if c else min(range(prev, max(prev, nxt) + 1), key=lambda g: load[g])
                    pos[k] = g; load[g] = max(load[g], 8 if isval(x) else 0) + 4
                pos[k] = max(pos[k], prev); prev = pos[k]
                plan[pos[k]].append(("o", x))
        place(0, H - 1, r1, (H - 7 if NG == 64 else H - 4) if bar else H - 1, h1)
        place(H, NG - 1, r2, NG - 1, h2)
        if valu:
            for k, x in enumerate(valu[0]): plan[valu[1] + k * (NG - valu[1]) // len(valu[0])].append(("o", x))
        sys.stderr.write("st%d:%d " % (sg, sum(max(16, v) for v in load.values())))
        g = 0
        for b in range(8):
            w = lg.need((sg, b))
            if w is not None: a("s_waitcnt lgkmcnt(%d)" % w)
            for mf in mfmas2(*blk(sg, b), b):
                a(mf)
                for x in plan[g]:
                    if x[0] == "r": a(x[2]); lg.issue(x[1])
                if g in WG_:
                    w = lg.need(WG_[g])
                    if w is not None: a("s_waitcnt lgkmcnt(%d)" % w)
                for x in plan[g]:
                    if x[0] != "r": E(x[1])
                if g == H - 1 and bar:
                    allw = ["W%d" % w for w in range(NS)] if sg == LASTBAR else []
                    vwait("W%d" % Hs[2 * sg + 2][0], "W%d" % Hs[2 * sg + 3][0], *allw, lg0=True)
                    a("s_barrier")
                    lg.clear()
                if g == H - 2: vwait("X%d" % Hs[2 * sg + 1][0])
                if g == NG - 2 and not last: vwait("X%d" % Hs[2 * sg + 2][0])
                g += 1
    def oflag():
        vwait("os")
        V("f", "buffer_store_dword v7, v6, s[84:87], s92 offen %s" % SC)
    EPV = 224
    eload = ["v_lshlrev_b32 v4, %d, v15" % (F0S - 2), "s_or_b32 s3, s2, s32", "s_cselect_b32 s3, %d, 0" % OOB] + \
          [("e", "buffer_load_dwordx4 %s, v4, s[84:87], s3 offen offset:%d %s" % (vr(EPV + 4 * k, 4), k << F0S, SC)) for k in range(4)]
    def epoch():
        a("s_or_b32 s3, s2, s32")
        a("s_cbranch_scc1 L_noep")
        a("s_mov_b32 s97, 0")
        a.label("L_ep")
        for k in range(0, 16, 4 if WF else 1): a("v_xor_b32 v%d, s96, v%d" % (EPV + k, EPV + k))
        for k in range(4 if WF else 1, 16, 4 if WF else 1): a("v_or_b32 v%d, v%d, v%d" % (EPV, EPV, EPV + k))
        a("v_cmp_ne_u32 vcc, 0, v%d" % EPV)
        a("s_cbranch_vccz L_epok")
        for k in range(4): a("buffer_load_dwordx4 %s, v4, s[84:87], 0 offen offset:%d %s" % (vr(EPV + 4 * k, 4), k << F0S, SC))
        a("s_add_u32 s97, s97, 1")
        a("s_waitcnt vmcnt(0)")
        a("s_cmp_lt_u32 s97, 0x80000")
        a("s_cbranch_scc1 L_ep")
        a.label("L_epok")
        a("s_mov_b32 s3, %d" % EPOCH)
        a("buffer_store_dword v7, v6, s[84:87], s3 offen %s" % SC)
        a.label("L_noep")

    PK, XU, XRES, TE = 64, 112, 240, 224
    KEEP = 160
    XUF = lambda o: 80 + (o // 16) * 32 + o % 16
    sends = []
    for hf in range(2):
        for qd in range(3):
            for k in (2 * hf, 2 * hf + 1):
                R = 64 + 32 * qd + 8 * k
                sends.append((["s_add_u32 s75, s74, %d" % (4096 * qd)] if k % 2 == 0 else []) +
                             [("v_cvt_pk_bf16_f32 v%d, v%d, v%d" % (R + r, R + 2 * r, R + 2 * r + 1)) for r in range(4)] +
                             [("S%d" % hf, "buffer_store_dwordx4 %s, v15, s[20:23], s75 offen offset:%d %s" % (vr(R, 4), 1024 * k, SC))])
    if P.get("send_order"): sends = sends[0:4] + sends[6:10] + sends[4:6] + sends[10:12]
    PKR = lambda qd, k: 64 + 32 * qd + 4 * k
    xres = [("R", "buffer_load_dwordx4 %s, v2, s[16:19], s%d offen offset:%d" % (vr(XRES + 4 * (2 * m + bp), 4), 72 + m, 64 * bp)) for m in range(2) for bp in range(2)]
    parts = ["s_xor_b32 s%d, s74, 0x%x" % (40 + qd, (dx << 16) + 4096 * qd) for qd, dx in enumerate((2, 6, 4))]
    for k in range(4):
        parts += [("P%d" % k, "buffer_load_dwordx4 %s, v15, s[20:23], s%d offen offset:%d %s" % (vr(PKR(qd, k), 4), 40 + qd, 1024 * k, SC)) for qd in range(3)]
    if P.get("ab_nosend"): sends = [[o for o in x if not isinstance(o, tuple)] for x in sends]
    if P.get("ab_noparts"): parts = parts[:3] + ["s_nop 0"] * 12
    SPA = P.get("send", [4, 2, 1, 1, 1, 1, 1, 1])
    NBB = P.get("nbb", 1)
    EXA, EXB = P.get("ex_a", [16, 17.5, 19]), P.get("ex_b", [18.5, 20.5, 22])
    XRS = P.get("xres_stage", 12)
    def take(n):
        r = [o for x in sends[:n] for o in x]; del sends[:n]; return r
    def sflag(hf):
        vwait("S%d" % hf)
        V("f", "buffer_store_dword v7, v%d, s[84:87], s%d offen %s" % (13 if (FL & 4 and F2S == 7) else 6, 88 + hf, SC))
    pollx = lambda hf: ("p%d" % hf, "buffer_load_dword v%d, v14, s[84:87], %s offen %s" % ((3, 12)[hf], ("0", "s94")[hf], SC))
    checkx = lambda hf: check_flags((3, 12)[hf], 14, ("0", "s94")[hf], "p%d" % hf, "L_f3%d" % hf)
    partx = lambda hf: parts[:9] if hf == 0 else parts[9:]
    def round4(R, T):
        return ["v_cvt_pk_bf16_f32 v%d, v%d, v%d" % (T, R, R + 1), "v_cvt_pk_bf16_f32 v%d, v%d, v%d" % (T + 1, R + 2, R + 3),
                "v_lshlrev_b32 v%d, 16, v%d" % (R, T), "v_and_b32 v%d, s54, v%d" % (R + 1, T),
                "v_lshlrev_b32 v%d, 16, v%d" % (R + 2, T + 1), "v_and_b32 v%d, s54, v%d" % (R + 3, T + 1)]
    xpart = [lambda: vwait("R"), "v_mov_b32 v8, 0x3f80", "v_mov_b32 v9, 1.0"]
    for g4 in range(4):
        R = XRES + 4 * g4
        xpart += ["v_permlane16_swap_b32 v%d, v%d" % (R, R + 2), "v_permlane16_swap_b32 v%d, v%d" % (R + 1, R + 3)]
    for m in range(2):
        for bp in range(2):
            for be in range(2):
                for h in range(2):
                    src = XRES + 4 * (2 * m + bp) + 2 * be + h
                    d = XUF((m * 4 + 2 * bp + be) * 4 + 2 * h)
                    xpart += ["v_lshlrev_b32 v%d, 16, v%d" % (d, src), "v_and_b32 v%d, s54, v%d" % (d + 1, src)]
    QD, QO, SW = P.get("qd", 7.75), P.get("qo", 5.5), P.get("sw", 1.5)
    xq = []
    for x in range(NX0, NS):
        o = xops(x); xq += [(x, o[:2])] + [(x, [y]) for y in o[2:]]
    fq = []
    for t in LATE:
        o = wops(t, True)
        fq += [(1, [o[0], o[1 + 2 * k], o[2 + 2 * k]]) for k in range(4)]
    fq += [(2, [y]) for y in xres]
    OS0 = P.get("os_half", 0)
    FMIN = P.get("fill_from", 10)
    alloc = {}; first = {}; carry = 0.0
    for hh in range(2 * NS):
        sg = hh // 2
        w = carry + (4 * len(wsched.get(sg, [])) if hh % 2 else 0)
        L = []
        if OS0 <= hh < OS0 + 4: L.append(ostores[hh - OS0]); w += SW
        k = hh - q01 - 1
        if 0 <= k < len(SPA): w += SW * SPA[k]
        q = QD if sg < ND else QO
        urgent = lambda: xq and firstuse[xq[0][0]] <= sg + P.get("xmin", 1)
        while w + 0.5 <= q or urgent():
            if fq and hh >= FMIN and hh % 2 == 0 and not any(o in L for _, f in fq[:0] for o in f) and P.get("fill_mix", 1) and not urgent() and sum(1 for o in L if isinstance(o, tuple) and not o[0].startswith("X")) < 2:
                c, o = fq.pop(0); L += o; w += c
            elif xq and (xq[0][0] < NXB or lastuse[xq[0][0] - NXB] < sg):
                x, o = xq.pop(0); first.setdefault(x, sg); L += o; w += 1
                assert firstuse[x] > sg, (x, sg)
            elif fq and hh >= FMIN:
                c, o = fq.pop(0); L += o; w += c
            else: break
        carry = w - q if abs(w - q) < 1 or w > q else 0.0
        alloc[hh] = L
        sys.stderr.write("%d:%d " % (hh, sum(isinstance(o, tuple) for o in L)))
    sys.stderr.write(" first %s\n" % first)
    assert not xq and not fq
    assert all(not (isinstance(o, tuple) and (o[0] == "R" or o[0][0] == "W")) for hh in range(2 * 13, 2 * NS) for o in alloc[hh])
    ck2, cko = first[7], first[ND]
    for sg in range(NS):
        h1, h2 = list(alloc[2 * sg]), list(alloc[2 * sg + 1])
        pre = []
        if sg == 1: h2 = h2 + eload
        if sg == (OS0 + 3) // 2 + 2: pre.append(oflag)
        if sg == ck2 - 2: h2 = h2 + [("p", "buffer_load_dword v12, v5, s[84:87], s58 offen %s" % SC)]
        if sg == ck2: pre += [lambda: check_flags(12, 5, "s58", "p", "L_f1b")]
        if sg == 4: pre += [lambda: vwait("e"), epoch]
        if sg == cko - 2: h2 = h2 + [("p", "buffer_load_dword v3, v13, s[84:87], s59 offen %s" % SC)]
        if sg == cko: pre.append(lambda: check_flags(3, 13, "s59", "p", "L_f2"))
        for hh, lst in ((2 * sg, h1), (2 * sg + 1, h2)):
            k = hh - q01 - 1
            t_ = take(SPA[k]) if 0 <= k < len(SPA) else []
            if P.get("send_first", 1): lst[:0] = t_
            else: lst += t_
        for hf, (f_, p_, c_) in enumerate((EXA, EXB)):
            if sg == p_: h2 = h2 + [pollx(hf)]
            if sg - 0.5 == p_: h1 = h1 + [pollx(hf)]
            if sg == f_: pre.append(lambda hf=hf: sflag(hf))
            if sg + 0.5 == f_: h2 = [lambda hf=hf: sflag(hf)] + h2
            if sg == c_:
                pre.append(lambda hf=hf: checkx(hf)); px = partx(hf); h1 = h1 + px[:-3]; h2 = px[-3:] + h2
        if sg == ND: stamp()
        wv = None
        if sg == P.get("xpart_stage", 20): wv = (xpart, 0)
        stage(sg, h1, h2, pre=(lambda pre=pre: [f() for f in pre]), valu=wv)
    sys.stderr.write("\n")
    assert not sends
    stamp()
    for hf, (f_, p_, c_) in enumerate((EXA, EXB)):
        if c_ == NS and not (hf == 1 and NBB):
            checkx(hf)
            for o in partx(hf): E(o)
    def nb_try():
        vwait("p1")
        a("v_cmp_ne_u32 vcc, s96, v12")
        a("s_nop 0")
        a("s_cmp_eq_u64 vcc, 0")
        a("s_cselect_b32 s46, 0, %d" % OOB)
        if P.get("force_late"): a("s_mov_b32 s46, %d" % OOB)
        for qd in range(3): a("s_add_u32 s%d, s%d, s46" % (43 + qd, 40 + qd))
        for t, o in partx(1):
            for qd in range(3): o = o.replace("s%d offen" % (40 + qd), "s%d offen" % (43 + qd))
            V(t, o)
    def nb_fix():
        a("s_cmp_eq_u32 s46, 0")
        a("s_cbranch_scc1 L_nbok")
        sv = list(vm.q)
        E(pollx(1)); checkx(1)
        for o in partx(1): E(o)
        a("s_waitcnt vmcnt(0)")
        vm.q = sv
        a.label("L_nbok")
    if NBB == 1: nb_try()
    def dots(k):
        vwait("P%d" % k)
        for qd in range(3):
            for r in range(8):
                a("v_dot2_f32_bf16 v%d, v%d, v%d, v%d" % (KEEP + 8 * k + r, PKR(qd, k) + r // 2, 8 + (r & 1), KEEP + 8 * k + r))
    MIM = P.get("mimic", "s")
    if "s" in MIM:
        a("s_nop 7")
        for k in range(8):
            for x in round4(accO(0, 0) + 4 * k, 48 + 2 * (k % 2)): a(x)
    if NBB == 2: nb_try()
    for m in range(2):
        if m == 1 and NBB: nb_fix()
        dots(2 * m); dots(2 * m + 1)
        o = 16 * m
        H8 = range(0, 16, 2)
        if "y" in MIM:
            for k in range(4):
                for x in round4(KEEP + o + 4 * k, 10 + 2 * (k % 2)): a(x)
        for h in H8: a("v_pk_mul_f32 %s, %s, s[50:51]" % (vr(TE + o + h, 2), vr(KEEP + o + h, 2)))
        for r in range(16): a("v_exp_f32 v%d, v%d" % (TE + o + r, TE + o + r))
        for h in H8: a("v_pk_mul_f32 %s, %s, %s" % (vr(KEEP + o + h, 2), vr(KEEP + o + h, 2), vr(accO(0, 0) + o + h, 2)))
        for h in H8: a("v_pk_add_f32 %s, %s, s[52:53]" % (vr(TE + o + h, 2), vr(TE + o + h, 2)))
        for bp in range(2):
            D = 32 + 4 * (2 * m + bp)
            offs = [o + (bp * 2 + be) * 4 for be in range(2)]
            for f in offs:
                for r in range(4): a("v_rcp_f32 v%d, v%d" % (TE + f + r, TE + f + r))
            for f in offs:
                for h in (0, 2): a("v_pk_fma_f32 %s, %s, %s, %s" % (vr(KEEP + f + h, 2), vr(KEEP + f + h, 2), vr(TE + f + h, 2), vr(XUF(f + h), 2)))
            for be, f in enumerate(offs):
                a("v_cvt_pk_bf16_f32 v%d, v%d, v%d" % (D + 2 * be, KEEP + f, KEEP + f + 1))
                a("v_cvt_pk_bf16_f32 v%d, v%d, v%d" % (D + 2 * be + 1, KEEP + f + 2, KEEP + f + 3))
            a("s_nop 0")
            a("v_permlane16_swap_b32 v%d, v%d" % (D, D + 2))
            a("v_permlane16_swap_b32 v%d, v%d" % (D + 1, D + 3))
            a("s_nop 0")
            V("out", "buffer_store_dwordx4 %s, v2, s[24:27], s%d offen offset:%d %s" % (vr(D, 4), 72 + m, 64 * bp, P.get("outfl", ["sc1", ""])[m]))
    if probe is not None:
        stamp(); a("s_waitcnt vmcnt(0)"); stamp()
        a.label("L_probe")
        a("s_memrealtime s[4:5]"); a("s_waitcnt lgkmcnt(0)"); a("s_sub_u32 s4, s4, s98"); a("s_cmp_lt_u32 s4, 10000"); a("s_cbranch_scc1 L_probe")
    if prof:
        stamp(); a("s_waitcnt vmcnt(0)"); stamp()
        srd(a, 8, PWS, STAMP_OFF, 65536)
        a("s_lshl_b32 s3, s2, 8")
        a("v_lshl_add_u32 v8, v0, 2, s3")
        a("v_cmp_gt_u32 vcc, 64, v0")
        a("s_and_b64 exec, exec, vcc")
        a("s_cbranch_execz L_end")
        a("buffer_store_dword v31, v8, s[8:11], 0 offen")
    a.label("L_end")
    a("s_endpgm")
    desc(a, name, 256 + NAGPR, 100, 256)
    hdr = open("recurrent_scan__sliding_local_dilated__swiglu_ffn__prompt.s.ref").read().split("; Override launch")[0]
    hdr += DOC
    if P.get("aslist", 1):
        hdr += "; @launch kernel=%s grid=(256,1,1) block=(256,1,1) lds=%d\n" % (name, LDS_BYTES)
    else:
        hdr += "; @launch grid=(256,1,1) block=(256,1,1) lds=%d\n" % LDS_BYTES
    txt = a.text()
    if P.get("mfma_align"):
        txt = txt.replace("    v_mfma", "    .p2align 3\n    v_mfma")
    return hdr + txt

if __name__ == "__main__":
    P = json.loads(sys.argv[2]) if len(sys.argv) > 2 else {}
    open(sys.argv[1], "w").write(gen(P))
```
